```python
import torch

def _softmax(x, axis=-1):
    return torch.softmax(x, dim=axis)
def _gelu(x):
    return torch.nn.functional.gelu(x, approximate="tanh")
def _silu(x):
    return torch.nn.functional.silu(x)
def _sigmoid(x):
    return torch.sigmoid(x)
def _layernorm(x, axis=-1, eps=1e-5):
    m = x.mean(dim=axis, keepdim=True)
    v = x.var(dim=axis, keepdim=True, unbiased=False)
    return (x - m) / torch.sqrt(v + eps)
def _scatter_add(tgt, idx, src, axis=0):
    return tgt.clone().index_add_(axis, idx, src)
def _segment_sum(src, seg, n):
    out = torch.zeros((n,) + src.shape[1:], dtype=src.dtype)
    return out.index_add_(0, seg, src)
def _pad(x, pw):
    flat = tuple(v for pair in reversed(pw) for v in pair)
    return torch.nn.functional.pad(x, flat)

kernel_name = 'recurrent_scan__compressed_kv_cla__glu_gated_reglu__prompt'

def setup_inputs():

    _w = (lambda a: (lambda t: t.to(torch.bfloat16) if t.is_floating_point() else t)(torch.as_tensor(a)))
    def _A_setup():
        B, H, Sq, Sk, D, M = 1, 32, 2048, 2048, 128, 512
        Dc = 4 * D
        return {
            "x": _w((lambda *s: torch.randn(*s, dtype=torch.bfloat16) * 0.05)(B, Sq, M)),
            "c_kv": _w((lambda *s: torch.randn(*s, dtype=torch.bfloat16) * 1.6)(B, Sk, Dc)),
            "w_q": _w((lambda *s: torch.randn(*s, dtype=torch.bfloat16) * 1.6)(M, H, D) * (M ** -0.5)),
            "w_uk": _w((lambda *s: torch.randn(*s, dtype=torch.bfloat16) * 1.6)(Dc, H, D) * (Dc ** -0.5)),
            "w_uv": _w((lambda *s: torch.randn(*s, dtype=torch.bfloat16) * 1.6)(Dc, H, D) * (Dc ** -0.5)),
            "w_o": _w((lambda *s: torch.randn(*s, dtype=torch.bfloat16) * 1.6)(H, D, M) * ((H * D) ** -0.5)),
        }
    _A_in = _A_setup()

    def _B_setup():
        B, S, D, F = 1, 2048, 512, 1376
        return {
            "x": _w((lambda *s: torch.randn(*s, dtype=torch.bfloat16) * 0.05)(B, S, D)),
            "W_gate": _w((lambda *s: torch.randn(*s, dtype=torch.bfloat16) * 0.2)(D, F) * (2.0 / D) ** 0.5),
            "W_up": _w((lambda *s: torch.randn(*s, dtype=torch.bfloat16) * 0.2)(D, F) * (2.0 / D) ** 0.5),
            "W_down": _w((lambda *s: torch.randn(*s, dtype=torch.bfloat16) * 0.2)(F, D) * (1.0 / F) ** 0.5),
        }
    _B_in = _B_setup()

    return {
        "A_x": _A_in["x"],
        "A_c_kv": _A_in["c_kv"],
        "A_w_q": _A_in["w_q"],
        "A_w_uk": _A_in["w_uk"],
        "A_w_uv": _A_in["w_uv"],
        "A_w_o": _A_in["w_o"],
        "B_x": _B_in["x"],
        "B_W_gate": _B_in["W_gate"],
        "B_W_up": _B_in["W_up"],
        "B_W_down": _B_in["W_down"],
    }

def reference(A_x, A_c_kv, A_w_q, A_w_uk, A_w_uv, A_w_o, B_x, B_W_gate, B_W_up, B_W_down):
    def _A_ref(x, c_kv, w_q, w_uk, w_uv, w_o):
        B, Sq, M = x.shape[0], x.shape[1], x.shape[2]
        Sk = c_kv.shape[1]
        H, D = w_q.shape[1], w_q.shape[2]
        q = torch.einsum("bqm,mhd->bhqd", x, w_q)
        k = torch.einsum("bkc,chd->bhkd", c_kv, w_uk)
        v = torch.einsum("bkc,chd->bhkd", c_kv, w_uv)
        scores = torch.einsum("bhqd,bhkd->bhqk", q, k) * (D ** -0.5)
        off = Sk - Sq
        qi = torch.arange(Sq)[:, None]
        kj = torch.arange(Sk)[None, :]
        cmask = kj <= (qi + off)
        scores = torch.where(cmask[None, None], scores, -1e9)
        p = _softmax(scores, axis=-1)
        ctx = torch.einsum("bhqk,bhkd->bhqd", p, v)
        return torch.einsum("bhqd,hdm->bqm", ctx, w_o)

    def _B_ref(x, W_gate, W_up, W_down):
        gate = torch.einsum("bsd,df->bsf", x, W_gate)
        up = torch.einsum("bsd,df->bsf", x, W_up)
        gate = gate * (lambda x, dt: x.to(dt))(gate > 0, gate.dtype)
        h = gate * up
        return torch.einsum("bsf,fd->bsd", h, W_down)

    x = A_x
    xn = _layernorm(x, axis=-1)
    s = _A_ref(xn, A_c_kv, A_w_q, A_w_uk, A_w_uv, A_w_o)
    g = _silu(_B_ref(xn, B_W_gate, B_W_up, B_W_down))
    return x + s * g
```

```python
import re

def vr(b, n=1): return f"v{b}" if n == 1 else f"v[{b}:{b+n-1}]"
def ar(b, n=1): return f"a{b}" if n == 1 else f"a[{b}:{b+n-1}]"
def sr(b, n=1): return f"s{b}" if n == 1 else f"s[{b}:{b+n-1}]"

_REG = re.compile(r"^-?(?:abs\()?([vas])(?:(\d+)|\[(\d+):(\d+)\])\)?$")
def regs_of(tok):
    tok = tok.strip()
    if tok.startswith('|') and tok.endswith('|'): tok = tok[1:-1]
    m = _REG.match(tok)
    if m:
        k = m.group(1)
        if m.group(2) is not None: return {(k, int(m.group(2)))}
        return {(k, i) for i in range(int(m.group(3)), int(m.group(4))+1)}
    if tok == 'vcc': return {('s', 106), ('s', 107)}
    if tok == 'exec': return {('s', 126), ('s', 127)}
    if tok == 'm0': return {('s', 124)}
    return set()

TRANS = ('v_exp_f32','v_log_f32','v_rcp_f32','v_rsq_f32','v_sqrt_f32','v_sin_f32','v_cos_f32')

class Ins:
    __slots__ = ('text','op','w','r','kind','srcc','passes','ws')
    def __init__(self, text):
        self.text = text
        t = text.split(';')[0].strip()
        self.op = t.split()[0] if t else ''
        rest = t[len(self.op):].strip()
        ops = [x.strip() for x in rest.split(',')] if rest else []
        ops = [o.split()[0] if o else o for o in ops]
        self.w = set(); self.r = set(); self.srcc = set(); self.passes = 0; self.ws = 1
        op = self.op
        R = [regs_of(o) for o in ops]
        if op.endswith(':') or op.startswith('.') or op == '':
            self.kind = 'label'; self.ws = 0
        elif op.startswith('v_mfma'):
            self.kind = 'mfma'; self.w = R[0]; self.r = R[1] | R[2] | R[3]; self.srcc = R[3]
            self.passes = 4 if '16x16x32' in op else 8
        elif op.startswith('v_cmp'):
            self.kind = 'valu'; self.w = R[0]; self.r = set().union(*R[1:])
        elif op in ('v_readfirstlane_b32', 'v_readlane_b32'):
            self.kind = 'valu'; self.w = R[0]; self.r = set().union(*R[1:])
        elif op.startswith('v_permlane') and 'swap' in op:
            self.kind = 'valu'; self.w = R[0] | R[1]; self.r = R[0] | R[1]
        elif op.startswith('v_'):
            self.kind = 'valu'; self.w = set(R[0]); self.r = set().union(*R[1:]) if len(R) > 1 else set()
            if op.startswith('v_fmac') or op.startswith('v_dot2c'): self.r |= R[0]
            if op.startswith('v_cndmask') and len(R) == 3: self.r |= regs_of('vcc')
            if op.startswith('v_add_co') or op.startswith('v_sub_co'): self.w |= R[1]
        elif op.startswith('ds_read') :
            self.kind = 'ds'; self.w = R[0]; self.r = R[1]
        elif op.startswith('ds_write'):
            self.kind = 'ds'; self.r = set().union(*R)
        elif op.startswith('ds_bpermute') or op.startswith('ds_swizzle'):
            self.kind = 'ds'; self.w = R[0]; self.r = set().union(*R[1:])
        elif op.startswith('buffer_load'):
            self.kind = 'vmem'
            if ' lds' in t: self.r = set().union(*R) | regs_of('m0'); self.kind = 'dma'
            else: self.w = R[0]; self.r = set().union(*R[1:])
        elif op.startswith('buffer_store'):
            self.kind = 'store'; self.r = set().union(*R); self.srcc = R[0]
        elif op == 's_nop':
            self.kind = 'nop'; self.ws = int(ops[0], 0) + 1
        elif op.startswith('s_'):
            self.kind = 'salu'
            if op.startswith('s_cmp') or op.startswith('s_cbranch') or op in ('s_branch','s_barrier','s_waitcnt','s_endpgm','s_setprio','s_sleep','s_setpc_b64'):
                self.r = set().union(*R) if R else set()
            else:
                self.w = R[0] if R else set(); self.r = set().union(*R[1:]) if len(R) > 1 else set()
        else:
            raise ValueError("unknown op: " + text)

class Asm:
    def __init__(self):
        self.lines = []
    def __call__(self, text):
        for l in text.split('\n'):
            l = l.strip()
            if l: self.lines.append(l)
    def label(self, n): self.lines.append(n + ':')
    def text(self): return '\n'.join(('' if (l.endswith(':') or l.startswith('.') or l.startswith(';')) else ' ') + l for l in self.lines) + '\n'

def check_hazards(lines, verbose=True):
    ins = []
    for l in lines:
        if l.startswith(';') or l.startswith('.'): continue
        ins.append(Ins(l))
    probs = []
    n = len(ins)
    for i, c in enumerate(ins):
        if c.kind in ('label', 'nop'): continue
        dist = 0
        j = i - 1
        while j >= 0 and dist < 20:
            p = ins[j]
            if p.op in ('s_branch', 's_endpgm', 's_setpc_b64'): break
            need = 0
            vw = {x for x in p.w if x[0] in 'va'}
            sw = {x for x in p.w if x[0] == 's'}
            if p.kind == 'valu':
                if c.kind == 'mfma' and vw & c.r: need = max(need, 2)
                if c.op.startswith('v_permlane') and vw & c.r: need = max(need, 2)
                if c.op in ('v_readfirstlane_b32','v_readlane_b32') and vw & c.r: need = max(need, 1)
                if p.op in TRANS and c.kind in ('valu',) and c.op not in TRANS and vw & c.r: need = max(need, 1)
                if p.op in TRANS and c.kind in ('mfma','store','ds','vmem','dma') and vw & c.r: need = max(need, 2 if c.kind=='mfma' else 1)
                if sw:
                    if c.kind in ('vmem','dma','store') and sw & c.r: need = max(need, 5)
                    if c.kind == 'valu' and sw & c.r: need = max(need, 2)
                    if c.kind == 'salu' and sw & c.r and not c.op.startswith('s_cbranch'): need = max(need, 1)
                if 'dpp' in c.text and vw & c.r: need = max(need, 2)
                if p.op.startswith('v_dot'):
                    if c.op == p.op:
                        ab = set().union(*[regs_of(x.strip().split()[0]) for x in c.text.split(',')[1:3]])
                        if vw & ab: need = max(need, 3)
                    elif vw & (c.r | c.w): need = max(need, 3)
            if p.kind == 'mfma':
                ps = p.passes
                big = {4: 8, 8: 12}[ps]
                if c.kind == 'mfma':
                    ab = c.r - c.srcc
                    if p.w & ab: need = max(need, big)
                    if p.w & c.srcc:
                        if not (p.w == c.srcc and p.passes == c.passes): need = max(need, {4: 6, 8: 10}[ps])
                    if (p.w & c.w) and not (p.w & c.srcc): need = max(need, {4:6,8:10}[ps])
                elif c.kind in ('valu','ds','vmem','dma','store'):
                    if p.w & (c.r | c.w): need = max(need, big)
                    if c.kind == 'valu' and p.srcc & c.w: need = max(need, {4: 3, 8: 7}[ps])
            if p.kind == 'store' and p.op.endswith('x4'):
                if p.srcc & c.w: need = max(need, 2 if c.kind == 'valu' else 1)
            if p.kind == 'salu' and ('s', 124) in p.w and c.kind == 'dma': need = max(need, 1)
            if need > dist:
                probs.append(f"hazard need {need} have {dist}: [{p.text}] -> [{c.text}]")
            dist += p.ws
            j -= 1
    if verbose:
        for p in probs[:40]: print(p)
        print(f"hazard check: {len(probs)} problems over {n} instrs")
    return probs
```

```python
from asmlib import *
import math

QF_BASE = 0
KV_BASE = 16 << 20
A3_BASE = 48 << 20
A3_TB64 = 171 * 4096
WS_USED = A3_BASE + 32 * A3_TB64
MF = "v_mfma_f32_16x16x32_bf16"
CSCALE = math.log2(math.e) / math.sqrt(128.0)

def f32bits(x):
    import struct
    return struct.unpack('<I', struct.pack('<f', x))[0]

def gen_k1(A, store_flags=""):
    ACC = [8, 72]; WF = 136; TRA = 168; VW = 176; VO = 178; OUT = 184; SC = 196; RSTD = 200; T = 204
    S_ACT, S_WA, S_WB, S_OUT = 8, 12, 16, 20
    sW, sTB, sCG, sSU, sEND, sDMA, sOB, sM0, sT0, sT1, sTYPE, sJOB2, sOBASE = 24, 25, 26, 27, 28, 29, 30, 31, 32, 33, 34, 35, 36
    sONES, sSLO, sSHI = 37, 38, 39
    P_X, P_CKV, P_WQ, P_WUK, P_WUV, P_WG, P_WU, P_WS = 40, 42, 44, 46, 48, 50, 52, 54
    sSTG = 56
    sROW = 57

    A(".globl k1_kernel\n.p2align 8\n.type k1_kernel,@function")
    A.label("k1_kernel")
    A("s_cmp_ge_u32 s2, 256\ns_cbranch_scc1 K1_END")
    A(f"s_load_dwordx4 s[{P_X}:{P_X+3}], s[0:1], 0")
    A(f"s_load_dwordx4 s[{P_WQ}:{P_WQ+3}], s[0:1], 16")
    A(f"s_load_dwordx2 s[{P_WUV}:{P_WUV+1}], s[0:1], 32")
    A(f"s_load_dwordx2 s[{P_WG}:{P_WG+1}], s[0:1], 56")
    A(f"s_load_dwordx2 s[{P_WU}:{P_WU+1}], s[0:1], 64")
    A(f"s_load_dwordx2 s[{P_WS}:{P_WS+1}], s[0:1], 96")
    A(f"v_lshrrev_b32 v1, 6, v0\nv_and_b32 v0, 63, v0\ns_nop 0\nv_readfirstlane_b32 s{sW}, v1")
    A(f"s_and_b32 s{sT0}, s2, 7\ns_lshr_b32 s{sT1}, s2, 3\ns_and_b32 s{sTB}, s{sT1}, 7\ns_lshr_b32 s{sT1}, s{sT1}, 3")
    A(f"s_lshl_b32 s{sCG}, s{sT0}, 2\ns_add_u32 s{sCG}, s{sCG}, s{sT1}")
    A(f"s_mov_b32 s{sONES}, 0x3f803f80\ns_mov_b32 s{sSLO}, 0x00003f80\ns_mov_b32 s{sSHI}, 0x3f800000")
    A(f"s_mov_b32 s{sJOB2}, 0")
    A(f"s_mul_i32 s{sSTG}, s{sW}, 24576\ns_add_u32 s{sSTG}, s{sSTG}, 65536")
    A(f"s_lshl_b32 s{sROW}, s{sTB}, 18\ns_lshl_b32 s{sT0}, s{sW}, 16\ns_add_u32 s{sROW}, s{sROW}, s{sT0}")
    for r in (S_ACT, S_WA, S_WB, S_OUT): A(f"s_mov_b32 s{r+3}, 0x00020000")
    A(f"s_mov_b32 s{S_ACT+2}, 0x200000")
    A("s_waitcnt lgkmcnt(0)")
    A(f"s_mov_b32 s{S_OUT}, s{P_WS}\ns_mov_b32 s{S_OUT+1}, s{P_WS+1}\ns_mov_b32 s{S_OUT+2}, 0")
    A(f"s_cmp_lt_u32 s{sCG}, 8\ns_cbranch_scc1 K1_DISP_K")
    A(f"s_cmp_lt_u32 s{sCG}, 16\ns_cbranch_scc1 K1_DISP_V")
    A(f"s_mov_b32 s{S_ACT}, s{P_X}\ns_mov_b32 s{S_ACT+1}, s{P_X+1}")
    A(f"s_cmp_lt_u32 s{sCG}, 25\ns_cbranch_scc1 K1_DISP_Q")
    A(f"s_cmp_lt_u32 s{sCG}, 31\ns_cbranch_scc1 K1_DISP_G")
    A(f"s_mov_b32 s{sSU}, 63\ns_mov_b32 s{sEND}, 64\ns_mov_b32 s{sJOB2}, 1\ns_branch K1_SETUP_Q")
    A.label("K1_DISP_Q")
    A(f"s_sub_u32 s{sT0}, s{sCG}, 16\ns_mul_i32 s{sSU}, s{sT0}, 7\ns_add_u32 s{sEND}, s{sSU}, 7\ns_branch K1_SETUP_Q")
    A.label("K1_DISP_G")
    A(f"s_sub_u32 s{sT0}, s{sCG}, 25\ns_mul_i32 s{sSU}, s{sT0}, 7\ns_add_u32 s{sEND}, s{sSU}, 7\ns_branch K1_SETUP_G")
    A.label("K1_DISP_K")
    A(f"s_mov_b32 s{S_ACT}, s{P_CKV}\ns_mov_b32 s{S_ACT+1}, s{P_CKV+1}")
    A(f"s_lshl_b32 s{sSU}, s{sCG}, 3\ns_add_u32 s{sEND}, s{sSU}, 8\ns_branch K1_SETUP_K")
    A.label("K1_DISP_V")
    A(f"s_mov_b32 s{S_ACT}, s{P_CKV}\ns_mov_b32 s{S_ACT+1}, s{P_CKV+1}")
    A(f"s_sub_u32 s{sT0}, s{sCG}, 8\ns_lshl_b32 s{sSU}, s{sT0}, 3\ns_add_u32 s{sEND}, s{sSU}, 8\ns_branch K1_SETUP_V")

    def dma_consts(ty):
        if ty == 'G':
            return 64, 128*2752, [(S_WA, 0, 0), (S_WA, 0, 16*2752), (S_WB, 0, 0), (S_WB, 0, 16*2752)]
        return 128, 128*8192, [(S_WA, 0, 0), (S_WA, 1, 8*8192), (S_WA, 0, 16*8192), (S_WA, 1, 24*8192)]

    def dma_slot(ty, su_rel, q, ringslot):
        cs, ss, pieces = dma_consts(ty)
        out = []
        for j, (srd, vi, ex) in enumerate(pieces):
            out.append([f"s_add_u32 m0, s{sM0}, {ringslot*16384 + j*1024}",
                        f"s_add_u32 s{sT0}, s{sDMA}, {su_rel*cs + q*ss + ex}",
                        f"buffer_load_dwordx4 v{VW+vi}, s[{srd}:{srd+3}], s{sT0} offen lds"])
        return out

    def setup(ty):
        A.label(f"K1_SETUP_{ty}")
        ptr = {'Q': P_WQ, 'K': P_WUK, 'V': P_WUV, 'G': P_WG}[ty]
        A(f"s_mov_b32 s{S_WA}, s{ptr}\ns_mov_b32 s{S_WA+1}, s{ptr+1}")
        pb = P_WU if ty == 'G' else ptr
        A(f"s_mov_b32 s{S_WB}, s{pb}\ns_mov_b32 s{S_WB+1}, s{pb+1}")
        wsz = 512*2752 if ty == 'G' else 512*8192
        A(f"s_mov_b32 s{S_WA+2}, {wsz}\ns_mov_b32 s{S_WB+2}, {wsz}")
        A(f"s_mov_b32 s{sTYPE}, {'QKVG'.index(ty)}")
        cs, ss, _ = dma_consts(ty)
        pitch = 2752 if ty == 'G' else 8192
        A(f"s_mul_i32 s{sDMA}, s{sSU}, {cs}\ns_mul_i32 s{sT0}, s{sW}, {32*pitch}\ns_add_u32 s{sDMA}, s{sDMA}, s{sT0}")
        A(f"s_lshl_b32 s{sM0}, s{sW}, 12")
        A("v_lshrrev_b32 v1, 4, v0\nv_bfe_u32 v2, v0, 2, 2\nv_and_b32 v3, 3, v0")
        if ty != 'G':
            A("v_lshrrev_b32 v4, 3, v0\nv_and_b32 v5, 7, v0\nv_bfe_u32 v6, v0, 4, 1\nv_lshlrev_b32 v6, 1, v6\nv_xor_b32 v5, v5, v6")
            A(f"v_lshlrev_b32 v4, 13, v4\nv_lshl_add_u32 v{VW}, v5, 4, v4\nv_xor_b32 v{VW+1}, 64, v{VW}")
            A("v_lshrrev_b32 v4, 1, v2\nv_and_b32 v5, 1, v1\nv_lshl_add_u32 v4, v5, 1, v4")
            A("v_lshl_add_u32 v5, v1, 3, v2\nv_lshlrev_b32 v5, 7, v5\nv_lshl_add_u32 v5, v3, 3, v5")
            for nb in range(4):
                A(f"v_xor_b32 v6, {nb}, v4\nv_lshl_add_u32 v{TRA+2*nb}, v6, 5, v5\nv_add_u32 v{TRA+2*nb+1}, 512, v{TRA+2*nb}")
        else:
            A(f"v_lshrrev_b32 v4, 2, v0\nv_lshrrev_b32 v6, 5, v0\nv_lshlrev_b32 v6, 1, v6\nv_xor_b32 v5, v3, v6")
            A(f"v_mul_u32_u24 v4, 2752, v4\nv_lshl_add_u32 v{VW}, v5, 4, v4\nv_mov_b32 v{VW+1}, v{VW}")
            A("v_and_b32 v4, 1, v1")
            A("v_lshl_add_u32 v5, v1, 3, v2\nv_lshlrev_b32 v5, 6, v5\nv_lshl_add_u32 v5, v3, 3, v5")
            for nb in range(4):
                A(f"v_xor_b32 v6, {nb%2}, v4\nv_lshl_add_u32 v6, v6, 5, v5\nv_add_u32 v{TRA+2*nb}, {(nb//2)*2048}, v6\nv_add_u32 v{TRA+2*nb+1}, 256, v{TRA+2*nb}")
        A("v_lshlrev_b32 v4, 4, v0")
        if ty == 'Q':
            for t in range(4): A(f"v_add_u32 v{VO+t}, {t*4096}, v4")
            A(f"s_lshl_b32 s{sOBASE}, s{sTB}, 16\ns_lshl_b32 s{sT0}, s{sW}, 14\ns_add_u32 s{sOBASE}, s{sOBASE}, s{sT0}\ns_add_u32 s{sOBASE}, s{sOBASE}, {QF_BASE}")
        elif ty == 'K':
            for t in range(4): A(f"v_add_u32 v{VO+t}, {(t//2)*16384 + (t%2)*4096}, v4")
            A(f"s_lshl_b32 s{sOBASE}, s{sTB}, 17\ns_lshl_b32 s{sT0}, s{sW}, 15\ns_add_u32 s{sOBASE}, s{sOBASE}, s{sT0}\ns_add_u32 s{sOBASE}, s{sOBASE}, {KV_BASE}")
        elif ty == 'V':
            for t in range(4): A(f"v_add_u32 v{VO+t}, {(t%2)*16384}, v4")
            A(f"s_lshl_b32 s{sOBASE}, s{sTB}, 17\ns_lshl_b32 s{sT0}, s{sW}, 15\ns_add_u32 s{sOBASE}, s{sOBASE}, s{sT0}\ns_add_u32 s{sOBASE}, s{sOBASE}, {KV_BASE+8192}")
        else:
            for t in range(4): A(f"v_mov_b32 v{VO+t}, v4")
            A(f"s_lshl_b32 s{sT0}, s{sTB}, 2\ns_add_u32 s{sT0}, s{sT0}, s{sW}\ns_mul_i32 s{sOBASE}, s{sT0}, {A3_TB64}\ns_add_u32 s{sOBASE}, s{sOBASE}, {A3_BASE + 128*4096}")
        A(f"s_mov_b32 s{S_OUT+2}, 0")
        if ty == 'G':
            A(f"s_cmp_eq_u32 s{sJOB2}, 2\ns_cbranch_scc1 K1_WPRE_G")
        A(f"s_branch K1_STAGE_{'X' if ty in 'QG' else 'C'}")

    for ty in 'QKVG': setup(ty)

    def wpre(ty, slots):
        for q in slots:
            for tr in dma_slot(ty, q//4, q%4, q):
                for x in tr: A(x)

    def wpre_dispatch(tag, types):
        for ty in types[:-1]:
            A(f"s_cmp_eq_u32 s{sTYPE}, {'QKVG'.index(ty)}\ns_cbranch_scc1 K1_WP_{tag}_{ty}")
        wpre(types[-1], range(4))
        A(f"s_branch K1_WP_{tag}_DONE")
        for ty in types[:-1]:
            A.label(f"K1_WP_{tag}_{ty}")
            wpre(ty, range(4))
            if ty != types[-2]: A(f"s_branch K1_WP_{tag}_DONE")
        A.label(f"K1_WP_{tag}_DONE")

    A.label("K1_STAGE_C")
    A(f"v_lshrrev_b32 v4, 3, v0\nv_and_b32 v5, 7, v0\nv_lshrrev_b32 v6, 4, v0\nv_xor_b32 v5, v5, v6")
    A(f"v_lshlrev_b32 v4, 10, v4\nv_lshl_add_u32 v{T}, v5, 4, v4\nv_xor_b32 v{T+1}, 64, v{T}")
    A(f"v_and_b32 v4, 15, v0\nv_lshrrev_b32 v5, 1, v4\nv_xor_b32 v5, v5, v1\nv_lshlrev_b32 v4, 7, v4\nv_lshl_add_u32 v4, v5, 4, v4")
    A(f"v_add_u32 v{T+2}, s{sSTG}, v4\nv_xor_b32 v{T+3}, 64, v{T+2}")
    def c_round(r):
        for j in range(8):
            A(f"s_add_u32 m0, s{sSTG}, {(r%3)*8192 + j*1024}")
            A(f"s_add_u32 s{sT0}, s{sROW}, {j*8192 + r*128}")
            A(f"buffer_load_dwordx4 v{T+(j&1)}, s[{S_ACT}:{S_ACT+3}], s{sT0} offen lds")
    for r in range(3): c_round(r)
    wpre_dispatch('C', 'KV')
    for r in range(8):
        A(f"s_waitcnt vmcnt({[32,32,32,16,16,16,8,0][r]})")
        for t in range(4):
            for k2 in range(2):
                ks = 2*r + k2
                A(f"ds_read_b128 {ar((t*16+ks)*4, 4)}, v{T+2+k2} offset:{(r%3)*8192 + t*2048}")
        if r + 3 < 8:
            A("s_waitcnt lgkmcnt(0)")
            c_round(r+3)
    A("s_waitcnt lgkmcnt(0)\ns_barrier")
    A(f"s_cmp_eq_u32 s{sTYPE}, 1\ns_cbranch_scc1 K1_START_K\ns_branch K1_START_V")

    A.label("K1_STAGE_X")
    A(f"v_lshlrev_b32 v{T}, 4, v0")
    def x_round(r):
        for j in range(8):
            tok = (8*r + j) & 15
            A(f"v_xor_b32 v{T+1+(j&1)}, {tok*16}, v{T}")
            A(f"s_add_u32 m0, s{sSTG}, {(r%3)*8192 + j*1024}")
            A(f"s_add_u32 s{sT0}, s{sROW}, {(8*r+j)*1024}")
            A(f"buffer_load_dwordx4 v{T+1+(j&1)}, s[{S_ACT}:{S_ACT+3}], s{sT0} offen lds")
    for r in range(3): x_round(r)
    wpre_dispatch('X', 'QG')
    A(f"v_and_b32 v4, 15, v0\nv_and_b32 v5, 7, v0\nv_lshlrev_b32 v5, 10, v5\nv_and_b32 v6, 3, v0\nv_xor_b32 v6, v6, v1\nv_lshl_add_u32 v5, v6, 4, v5")
    A(f"v_add_u32 v5, s{sSTG}, v5\nv_lshrrev_b32 v6, 2, v4")
    for k in range(4):
        A(f"v_xor_b32 v7, {k}, v6\nv_lshl_add_u32 v{T+4+k}, v7, 6, v5")
    A(f"v_cmp_lt_u32 vcc, 7, v4")
    X = ACC[0]; L = ACC[1]
    for t in range(4):
        ba, bb = (2*t) % 3, (2*t+1) % 3
        A(f"v_mov_b32 v2, {ba*8192}\nv_mov_b32 v3, {bb*8192}\nv_cndmask_b32 v2, v2, v3, vcc")
        for k in range(4): A(f"v_add_u32 v{T+8+k}, v2, v{T+4+k}")
        A(f"s_waitcnt vmcnt({[24,8,8,0][t]})")
        for ks in range(16):
            A(f"ds_read_b128 {vr(X+4*ks,4)}, v{T+8+(ks&3)} offset:{(ks&12)*64}")
        for k in range(8): A(f"v_mov_b32 v{L+k}, 0")
        A("s_waitcnt lgkmcnt(0)")
        for r in ([3,4],[5,6],[7],[])[t]: x_round(r)
        for r in range(64):
            A(f"v_dot2_f32_bf16 v{L+r%4}, v{X+r}, s{sONES}, v{L+r%4}")
        A(f"s_nop 2\nv_add_f32 v{L}, v{L}, v{L+1}\nv_add_f32 v{L+2}, v{L+2}, v{L+3}\nv_add_f32 v{L}, v{L}, v{L+2}")
        A(f"v_mov_b32 v{L+1}, v{L}\ns_nop 1\nv_permlane16_swap_b32 v{L}, v{L+1}\nv_add_f32 v{L}, v{L}, v{L+1}")
        A(f"v_mov_b32 v{L+1}, v{L}\ns_nop 1\nv_permlane32_swap_b32 v{L}, v{L+1}\nv_add_f32 v{L}, v{L}, v{L+1}")
        A(f"v_mul_f32 v{L}, {hex(f32bits(-1.0/512))}, v{L}")
        for b in range(16):
            for i in range(4):
                A(f"v_dot2_f32_bf16 v{L+8+2*i}, v{X+4*b+i}, s{sSLO}, v{L}")
                A(f"v_dot2_f32_bf16 v{L+9+2*i}, v{X+4*b+i}, s{sSHI}, v{L}")
            for i in range(4):
                A(f"v_cvt_pk_bf16_f32 v{X+4*b+i}, v{L+8+2*i}, v{L+9+2*i}")
            for i in range(4):
                A(f"v_dot2_f32_bf16 v{L+4+i}, v{X+4*b+i}, v{X+4*b+i}, v{L+4+i}")
                A(f"v_accvgpr_write_b32 a{(t*16+b)*4+i}, v{X+4*b+i}")
        A(f"s_nop 2\nv_add_f32 v{L+4}, v{L+4}, v{L+5}\nv_add_f32 v{L+6}, v{L+6}, v{L+7}\nv_add_f32 v{L}, v{L+4}, v{L+6}")
        A(f"v_mov_b32 v{L+1}, v{L}\ns_nop 1\nv_permlane16_swap_b32 v{L}, v{L+1}\nv_add_f32 v{L}, v{L}, v{L+1}")
        A(f"v_mov_b32 v{L+1}, v{L}\ns_nop 1\nv_permlane32_swap_b32 v{L}, v{L+1}\nv_add_f32 v{L}, v{L}, v{L+1}")
        A(f"v_mov_b32 v{L+1}, {hex(f32bits(1e-5))}\nv_fmac_f32 v{L+1}, {hex(f32bits(1.0/512))}, v{L}")
        A(f"v_rsq_f32 v{RSTD+t}, v{L+1}")
    A("s_barrier")
    A(f"s_cmp_eq_u32 s{sTYPE}, 0\ns_cbranch_scc1 K1_START_Q\ns_branch K1_START_G")

    def epilogue_ops(ty, acc):
        ops = []
        blk = lambda nb, t: acc + (nb*4 + t)*4
        oq = 0
        def store(q, vo, off): return f"buffer_store_dwordx4 {vr(OUT+4*q,4)}, v{vo}, s[{S_OUT}:{S_OUT+3}], s{sOB} offen offset:{off}{store_flags}"
        if ty in 'QK':
            for pr in range(2):
                for t in range(4):
                    for h in range(2):
                        b = blk(2*pr+h, t)
                        if ty == 'Q':
                            for i in range(4): ops.append(f"v_mul_f32 v{b+i}, v{b+i}, v{SC+t}")
                        ops.append(f"v_cvt_pk_bf16_f32 v{OUT+4*oq+2*h}, v{b}, v{b+1}")
                        ops.append(f"v_cvt_pk_bf16_f32 v{OUT+4*oq+2*h+1}, v{b+2}, v{b+3}")
                    ops.append(store(oq, VO+t, pr*1024)); oq = (oq+1) % 3
        elif ty == 'V':
            for nb in range(4):
                for v in range(2):
                    for h in range(2):
                        b = blk(nb, 2*v+h)
                        ops.append(f"v_cvt_pk_bf16_f32 v{OUT+4*oq+2*h}, v{b}, v{b+1}")
                        ops.append(f"v_cvt_pk_bf16_f32 v{OUT+4*oq+2*h+1}, v{b+2}, v{b+3}")
                    ops.append(store(oq, VO+v, nb*1024)); oq = (oq+1) % 3
        else:
            for t in range(4):
                for h in range(2):
                    g = blk(h, t); u = blk(h+2, t)
                    for i in range(4): ops.append(f"v_max_f32 v{g+i}, 0, v{g+i}")
                    for i in range(4): ops.append(f"v_mul_f32 v{u+i}, v{u+i}, v{SC+t}")
                    for i in range(4): ops.append(f"v_mul_f32 v{g+i}, v{g+i}, v{u+i}")
                    ops.append(f"v_cvt_pk_bf16_f32 v{OUT+4*oq+2*h}, v{g}, v{g+1}")
                    ops.append(f"v_cvt_pk_bf16_f32 v{OUT+4*oq+2*h+1}, v{g+2}, v{g+3}")
                ops.append(store(oq, VO, t*1024)); oq = (oq+1) % 3
        return ops

    def ob_calc(ty, su_reg_delta):
        o = [f"s_add_u32 s{sT1}, s{sSU}, {su_reg_delta}"] if su_reg_delta >= 0 else [f"s_sub_u32 s{sT1}, s{sSU}, {-su_reg_delta}"]
        if ty == 'G':
            o += [f"s_lshl_b32 s{sT1}, s{sT1}, 12", f"s_add_u32 s{sOB}, s{sOBASE}, s{sT1}"]
        else:
            hs = 19 if ty == 'Q' else 20
            ls = 12 if ty == 'V' else 11
            o += [f"s_lshr_b32 s{sOB}, s{sT1}, 1", f"s_lshl_b32 s{sOB}, s{sOB}, {hs}", f"s_and_b32 s{sT1}, s{sT1}, 1", f"s_lshl_b32 s{sT1}, s{sT1}, {ls}",
                  f"s_add_u32 s{sOB}, s{sOB}, s{sT1}", f"s_add_u32 s{sOB}, s{sOB}, s{sOBASE}"]
        return o

    def trreads(fi, nb, slot_in_half, ks):
        off = slot_in_half*16384 + ks*4096
        return [f"ds_read_b64_tr_b16 {vr(WF+4*fi,2)}, v{TRA+2*nb} offset:{off}",
                f"ds_read_b64_tr_b16 {vr(WF+4*fi+2,2)}, v{TRA+2*nb+1} offset:{off}"]

    def body(ty, par):
        acc = ACC[par]; old = ACC[1-par]
        cs, ss, _ = dma_consts(ty)
        epi = epilogue_ops(ty, old)
        nfree = 4*16*3
        gaps = {}
        def G(q, m): return gaps.setdefault((q, m), {'mem': [], 'other': []})
        def room(q, m):
            g = G(q, m); return 2 - len(g['mem']) - len(g['other'])
        for q in range(4):
            G(q, 0)['other'] += ["s_waitcnt vmcnt(20)", "s_barrier"]
            tgt = (4*par + q + 7) % 8
            trip = dma_slot(ty, 1 if q == 0 else 2, (q+3) % 4, tgt)
            pre = []
            if q == 1:
                G(q, 1)['other'] += [f"s_add_u32 s{sT1}, s{sSU}, 2", f"s_cmp_ge_u32 s{sT1}, s{sEND}"]
                G(q, 2)['other'] += [f"s_cselect_b32 s{S_WA+2}, 0, s{S_WA+2}", f"s_cselect_b32 s{S_WB+2}, 0, s{S_WB+2}"]
            for j, tr in enumerate(trip):
                m = 8 + 12*j + 1
                G(q, m)['other'] += tr[:2]
                G(q, m+1)['mem'] += [tr[2]]
        oc = ob_calc(ty, -1)
        pos = [(0,1),(0,2),(0,4),(0,5)]
        k = 0
        for p in pos:
            while room(*p) > 0 and k < len(oc): G(*p)['other'].append(oc[k]); k += 1
        assert k == len(oc)
        for nb in range(4):
            m = 16 + 4*nb + 4
            G(3, m)['other'] += [f"v_xor_b32 v{TRA+2*nb}, 0x10000, v{TRA+2*nb}", f"v_xor_b32 v{TRA+2*nb+1}, 0x10000, v{TRA+2*nb+1}"]
        slots = [(q, m) for q in range(4) for m in range(64) if m % 4 != 3 and (q, m) >= (0, 6)]
        cap = [(s, room(*s)) for s in slots]
        tot = sum(c for _, c in cap)
        step = max(1.0, 0.8*tot/len(epi))
        flat = [s for s, c in cap for _ in range(c)]
        idx = 0.0
        for op in epi:
            s = flat[int(idx)]
            if op.startswith('buffer_store'):
                i2 = int(idx)
                while True:
                    s = flat[i2]
                    g = G(*s)
                    if not g['mem'] and not g['other']: break
                    i2 += 1
                idx = max(idx, i2)
                G(*s)['mem'].append(op)
            else:
                G(*s)['other'].append(op)
            idx += step
        G(3, 61)['other'] += [f"s_add_u32 s{sSU}, s{sSU}, 1", f"s_add_u32 s{sDMA}, s{sDMA}, {cs}"]
        G(3, 62)['other'] += [f"s_mov_b32 s{S_OUT+2}, {WS_USED}", f"s_cmp_ge_u32 s{sSU}, s{sEND}"]
        for q in range(4):
            for ks in range(4):
                for nb in range(4):
                    fi = (ks % 2)*4 + nb
                    grp = ks*4 + nb
                    if grp % 2 == 0: A("s_waitcnt lgkmcnt(12)")
                    for t in range(4):
                        m = grp*4 + t
                        d = acc + (nb*4+t)*4
                        kk = q*4 + ks
                        c = "0" if kk == 0 else vr(d, 4)
                        w = vr(WF+4*fi, 4); a = ar((t*16+kk)*4, 4)
                        A(f"{MF} {vr(d,4)}, {a}, {w}, {c}" if ty == 'V' else f"{MF} {vr(d,4)}, {w}, {a}, {c}")
                        if t == 3:
                            if ks < 2: rd = trreads(fi, nb, q, ks+2)
                            else: rd = trreads(fi, nb, (q+1) % 4, ks-2)
                            for x in rd: A(x)
                        g = G(q, m)
                        for x in g['mem']: A(x)
                        for x in g['other']: A(x)

    for ty in 'QKVG':
        if ty == 'G':
            A.label("K1_WPRE_G")
            wpre('G', range(4))
        A.label(f"K1_START_{ty}")
        wpre(ty, range(4, 7))
        if ty == 'Q':
            for t in range(4): A(f"v_mul_f32 v{SC+t}, {hex(f32bits(CSCALE))}, v{RSTD+t}")
        if ty == 'G':
            for t in range(4): A(f"v_mul_f32 v{SC+t}, v{RSTD+t}, v{RSTD+t}")
        A("s_waitcnt vmcnt(12)\ns_barrier")
        for ks in range(2):
            for nb in range(4):
                for x in trreads(ks*4+nb, nb, 0, ks): A(x)
        A(".p2align 6")
        A.label(f"K1_LOOP_{ty}")
        body(ty, 0)
        A(f"s_cbranch_scc1 K1_DRAIN0_{ty}")
        body(ty, 1)
        A(f"s_cbranch_scc0 K1_LOOP_{ty}")
        for par in (1, 0):
            A.label(f"K1_DRAIN{par}_{ty}")
            for x in ob_calc(ty, -1): A(x)
            A("s_nop 1")
            for x in epilogue_ops(ty, ACC[par]): A(x)
            if ty == 'Q':
                A(f"s_cmp_eq_u32 s{sJOB2}, 1\ns_cbranch_scc0 K1_END")
                A(f"s_mov_b32 s{sJOB2}, 2\ns_mov_b32 s{sSU}, 42\ns_mov_b32 s{sEND}, 43")
                A("s_waitcnt vmcnt(0) lgkmcnt(0)\ns_barrier\ns_branch K1_SETUP_G")
            else:
                A("s_endpgm")
    A.label("K1_END")
    A("s_endpgm")
    return dict(name="k1_kernel", vgpr=216+256, accum=216, sgpr=64, grid=256, block=256, lds=163840)
```

```python
from asmlib import *
from k1 import QF_BASE, KV_BASE, A3_BASE, A3_TB64, WS_USED, MF, f32bits

def gen_k2(A, store_flags="", thr=2.0**30):
    O = 0; S01 = 128; S23 = [144, 160]; P01 = [176, 184]; P23 = 192; CX = 200; E = 232; LS = 236; L = 240
    VK = 244; VV = 245; VD = 246; TMP = 247
    AQ = 0; KF = 64; VF = 96
    S_KV, S_WS = 8, 12
    sW, sH, sI, sT0, sT1, sOFF, sHALF, sCNT, sTHR, sNEG = 16, 17, 18, 19, 20, 21, 22, 23, 24, 25
    sMK = 26
    sRET = 34
    sP = 36; sOHI = 37; sOLO = 38
    P_WS = 40
    def Sreg(qp, kb, par): return (S01 + (qp*2+kb)*4) if qp < 2 else (S23[par] + ((qp-2)*2+kb)*4)
    def Preg(qp, par): return (P01[par] + qp*4) if qp < 2 else (P23 + (qp-2)*4)
    def Oreg(db, qb): return O + (db*4+qb)*4
    def CXr(qp, kb): return CX + (qp*2+kb)*4
    stubs = []
    uid = [0]
    def U(p): uid[0] += 1; return f"K2_{p}_{uid[0]}"

    A(".globl k2_kernel\n.p2align 8\n.type k2_kernel,@function")
    A.label("k2_kernel")
    A("s_cmp_ge_u32 s2, 256\ns_cbranch_scc1 K2_END")
    A(f"s_load_dwordx2 s[{P_WS}:{P_WS+1}], s[0:1], 96")
    A(f"v_lshrrev_b32 v{TMP}, 6, v0\nv_and_b32 v{TMP+1}, 63, v0\ns_nop 0\nv_readfirstlane_b32 s{sW}, v{TMP}")
    A(f"s_and_b32 s{sT0}, s2, 7\ns_lshr_b32 s{sT1}, s2, 3\ns_lshr_b32 s{sI}, s{sT1}, 2\ns_and_b32 s{sT1}, s{sT1}, 3\ns_lshl_b32 s{sH}, s{sT0}, 2\ns_add_u32 s{sH}, s{sH}, s{sT1}")
    A(f"s_mov_b32 s{S_KV+3}, 0x00020000\ns_mov_b32 s{S_WS+3}, 0x00020000\ns_mov_b32 s{S_WS+2}, {WS_USED}")
    A(f"s_lshl_b32 s{sT0}, s{sI}, 16\ns_sub_u32 s{S_KV+2}, 0x108000, s{sT0}")
    A(f"s_mov_b32 s{sTHR}, {hex(f32bits(thr))}\ns_mov_b32 s{sNEG}, 0xff800000")
    LN = TMP+1
    A(f"v_lshlrev_b32 v{VK}, 4, v{LN}\nv_add_u32 v{VV}, 0x10000, v{VK}")
    A(f"s_lshl_b32 s{sT0}, s{sW}, 12\nv_add_u32 v{VD}, s{sT0}, v{VK}")
    A(f"s_and_b32 s{sT0}, s{sW}, 1\ns_lshl_b32 s{sHALF}, s{sT0}, 12\ns_lshr_b32 s{sT0}, s{sW}, 1\ns_lshl_b32 s{sT1}, s{sT0}, 16\ns_add_u32 s{sHALF}, s{sHALF}, s{sT1}")
    A(f"s_lshl_b32 s{sT0}, s{sT0}, 15\ns_sub_u32 s{sOFF}, 0x8000, s{sT0}")
    A("s_waitcnt lgkmcnt(0)")
    A(f"s_mov_b32 s{S_WS}, s{P_WS}\ns_mov_b32 s{S_WS+1}, s{P_WS+1}")
    A(f"s_lshl_b32 s{sT0}, s{sH}, 20\ns_add_u32 s{sT0}, s{sT0}, {KV_BASE-0x8000}\ns_add_u32 s{S_KV}, s{P_WS}, s{sT0}\ns_addc_u32 s{S_KV+1}, s{P_WS+1}, 0")
    A(f"s_lshl_b32 s{sT0}, s{sH}, 19\ns_lshl_b32 s{sT1}, s{sW}, 13\ns_add_u32 s{sT0}, s{sT0}, s{sT1}\ns_add_u32 s{sT0}, s{sT0}, {QF_BASE}")
    A(f"s_lshl_b32 s{sT1}, s{sI}, 15\ns_add_u32 s{sOLO}, s{sT0}, s{sT1}\ns_sub_u32 s{sOHI}, {15 << 15}, s{sT1}\ns_add_u32 s{sOHI}, s{sOHI}, s{sT0}")
    for qb in range(4):
        base = sOHI if qb < 2 else sOLO
        A(f"s_add_u32 s{sT0}, s{base}, {(qb%2)*4096}")
        for ds in range(4):
            A(f"buffer_load_dwordx4 {ar(AQ+(qb*4+ds)*4,4)}, v{VK}, s[{S_WS}:{S_WS+3}], s{sT0} offen offset:{ds*1024}")
    def dma_group(c):
        pre = [f"s_add_u32 m0, s{sHALF}, {(c%4)*8192}"]
        d = [f"buffer_load_dwordx4 v{VD}, s[{S_KV}:{S_KV+3}], s{sOFF} offen offset:{j*1024} lds" for j in range(4)]
        post = [f"s_add_u32 s{sOFF}, s{sOFF}, 16384"]
        if c % 4 == 3: post.append(f"s_xor_b32 s{sHALF}, s{sHALF}, 0x8000")
        return pre, d, post
    for c in range(8):
        pre, d, post = dma_group(c)
        for x in pre + ["s_nop 0"] + d + post: A(x)
    A(f"s_lshr_b32 s{sT0}, s{sW}, 1\ns_lshl_b32 s{sT1}, s{sI}, 1\ns_add_u32 s{sOLO}, s{sT1}, s{sT0}\ns_sub_u32 s{sOHI}, 30, s{sT1}\ns_add_u32 s{sOHI}, s{sOHI}, s{sT0}")
    A(f"s_mul_i32 s{sOLO}, s{sOLO}, {A3_TB64}\ns_mul_i32 s{sOHI}, s{sOHI}, {A3_TB64}")
    A(f"s_lshl_b32 s{sT0}, s{sH}, 14\ns_and_b32 s{sT1}, s{sW}, 1\ns_lshl_b32 s{sT1}, s{sT1}, 11\ns_add_u32 s{sT0}, s{sT0}, s{sT1}\ns_add_u32 s{sT0}, s{sT0}, {A3_BASE}")
    A(f"s_add_u32 s{sOLO}, s{sOLO}, s{sT0}\ns_add_u32 s{sOHI}, s{sOHI}, s{sT0}")
    A(f"v_and_b32 v{TMP+2}, 15, v{LN}\nv_lshrrev_b32 v{TMP+3}, 4, v{LN}\nv_lshlrev_b32 v{TMP+3}, 2, v{TMP+3}\nv_sub_u32 v{TMP+2}, v{TMP+2}, v{TMP+3}")
    for i in range(4): A(f"v_cmp_le_i32 s[{sMK+2*i}:{sMK+2*i+1}], {i}, v{TMP+2}")
    for r in list(range(O, O+128)) + list(range(CX, CX+32)) + list(range(LS, LS+8)): A(f"v_mov_b32 v{r}, 0")
    A(f"v_mov_b32 v{TMP+8}, s{sNEG}")
    NEGV = TMP+8

    def Dpatch(q0):
        o = []
        for i in range(4): o.append(f"v_cndmask_b32 v{CXr(q0,0)+i}, v{NEGV}, v{CXr(q0,0)+i}, s[{sMK+2*i}:{sMK+2*i+1}]")
        for i in range(4): o.append(f"v_mov_b32 v{CXr(q0,1)+i}, v{NEGV}")
        for i in range(4): o.append(f"v_cndmask_b32 v{CXr(q0+1,1)+i}, v{NEGV}, v{CXr(q0+1,1)+i}, s[{sMK+2*i}:{sMK+2*i+1}]")
        return o
    def Fpatch(q0): return [f"v_mov_b32 v{CXr(q0,0)+i}, v{NEGV}" for i in range(16)]
    def patch(q0, j):
        o = []
        lD, lE = U("PD"), U("PE")
        o.append(f"s_cmp_gt_u32 s{sW}, {j}"); o.append(f"s_cbranch_scc1 {lE}")
        if j > 0:
            o.append(f"s_cmp_eq_u32 s{sW}, {j}"); o.append(f"s_cbranch_scc1 {lD}")
            o += Fpatch(q0); o.append(f"s_branch {lE}")
            o.append(lD + ":")
        o += Dpatch(q0)
        o.append(lE + ":")
        o.append("s_nop 1")
        return o

    def kread(f, unit4): return f"ds_read_b128 {ar(KF+4*f,4)}, v{VK} offset:{unit4*8192 + f*1024}"
    def vread(f, slot4): return f"ds_read_b128 {ar(VF+4*f,4)}, v{VV} offset:{slot4*8192 + f*1024}"

    def sm_gaps(qs, srcpar, dstpar, look, ladd):
        g = [[] for _ in range(32)]
        lsb = LS + (0 if qs[0] == 0 else 2)
        src = lambda k: Sreg(qs[k//4], (k % 4)//2, srcpar) + 2*(k % 2)
        for k in range(8):
            if k < 7: a, b = src(k+1), src(k+1)+1
            elif look: a, b = look
            else: a = None
            en = E + 2*((k+1) % 2); ec = E + 2*(k % 2)
            if a is not None:
                g[4*k].append(f"v_exp_f32 v{en}, v{a}"); g[4*k+2].append(f"v_exp_f32 v{en+1}, v{b}")
            ls = lsb + k//4
            if k % 4 == 0:
                g[4*k+1].append(f"v_add_f32 v{ls}, v{ec}, v{ec+1}")
                lr, lsr = ladd[k//4]
                g[4*k+1].append(f"v_add_f32 v{lr}, v{lr}, v{lsr}")
            else:
                g[4*k+1].append(f"v_add_f32 v{ls}, v{ls}, v{ec}"); g[4*k+1].append(f"v_add_f32 v{ls}, v{ls}, v{ec+1}")
            g[4*k+3].append(f"v_cvt_pk_bf16_f32 v{Preg(qs[k//4], dstpar) + k % 4}, v{ec}, v{ec+1}")
        g[30].append(f"v_max_f32 v{TMP}, v{lsb}, v{lsb+1}")
        g[31].append(f"v_cmp_lt_f32 vcc, s{sTHR}, v{TMP}")
        return g

    def rescale(rows, init=False):
        o = ["s_nop 7"]
        D, D2, F = TMP+1, TMP+2, TMP+3
        for r in rows:
            s0 = r['S']
            o.append(f"v_max3_f32 v{D}, v{s0}, v{s0+1}, v{s0+2}")
            o.append(f"v_max3_f32 v{D}, v{D}, v{s0+3}, v{s0+4}")
            o.append(f"v_max3_f32 v{D}, v{D}, v{s0+5}, v{s0+6}")
            o.append(f"v_max_f32 v{D}, v{D}, v{s0+7}")
            o += [f"v_mov_b32 v{D2}, v{D}", "s_nop 1", f"v_permlane16_swap_b32 v{D}, v{D2}", f"v_max_f32 v{D}, v{D}, v{D2}"]
            o += [f"v_mov_b32 v{D2}, v{D}", "s_nop 1", f"v_permlane32_swap_b32 v{D}, v{D2}", f"v_max_f32 v{D}, v{D}, v{D2}"]
            o.append(f"v_ceil_f32 v{D}, v{D}")
            if not init:
                o.append(f"v_max_f32 v{D}, 0, v{D}")
                o.append(f"v_exp_f32 v{F}, -v{D}")
            for b in [s0] + r['subs']:
                for i in range(8): o.append(f"v_sub_f32 v{b+i}, v{b+i}, v{D}")
            if not init:
                qb = r['qb']
                for db in range(8):
                    for i in range(4): o.append(f"v_mul_f32 v{Oreg(db,qb)+i}, v{Oreg(db,qb)+i}, v{F}")
                o.append(f"v_mul_f32 v{L+qb}, v{L+qb}, v{F}")
                for pr in r.get('Pscale', []):
                    o += [f"v_lshlrev_b32 v{D2}, 16, v{pr}", f"v_and_b32 v{pr}, 0xffff0000, v{pr}", f"v_mul_f32 v{D2}, v{D2}, v{F}", f"v_mul_f32 v{pr}, v{pr}, v{F}",
                          f"v_cvt_pk_bf16_f32 v{pr}, v{D2}, v{pr}"]
            if r.get('P') is not None:
                ls = r['ls']
                for k in range(4):
                    o += [f"v_exp_f32 v{E}, v{s0+2*k}", f"v_exp_f32 v{E+1}, v{s0+2*k+1}", "s_nop 0"]
                    if k == 0: o.append(f"v_add_f32 v{ls}, v{E}, v{E+1}")
                    else: o += [f"v_add_f32 v{ls}, v{ls}, v{E}", f"v_add_f32 v{ls}, v{ls}, v{E+1}"]
                    o.append(f"v_cvt_pk_bf16_f32 v{r['P']+k}, v{E}, v{E+1}")
        return o
    def relook(look):
        return [f"v_exp_f32 v{E}, v{look[0]}", f"v_exp_f32 v{E+1}, v{look[1]}", "s_nop 1"] if look else ["s_nop 1"]

    def check_site(code):
        ls, lb = U("SLOW"), U("BACK")
        A(f"s_cbranch_vccnz {ls}")
        A.label(lb)
        stubs.append([ls + ":"] + code + [f"s_branch {lb}"])

    def emit_half(mf, gaps, extra, waits):
        for g in range(32):
            if g in waits: A(waits[g])
            m, rd = mf[g]
            if m: A(m)
            if rd: A(rd)
            ex = extra.get(g, ([], []))
            for x in ex[0]: A(x)
            for x in ex[1]: A(x)
            for x in gaps[g]: A(x)

    def H1(par, mq, ms, ku, toggleK=None, vm=None, dmas=(), noqk=False, nosm=False, last=False):
        n = 1 - par
        mf = []
        if noqk: mf = [(None, None)]*32
        elif mq == 4:
            for f in range(8):
                kb, ds = f//4, f % 4
                for qp in range(4):
                    d = Sreg(qp, kb, n)
                    c = vr(CXr(qp, kb), 4) if ds == 0 else vr(d, 4)
                    mf.append((f"{MF} {vr(d,4)}, {ar(KF+4*f,4)}, {ar(AQ+(qp*4+ds)*4,4)}, {c}", kread(f, ku[0]) if qp == 3 else None))
        else:
            for j in range(16):
                sel, f = j//8, j % 8
                kb, ds = f//4, f % 4
                for qb in range(2):
                    qp = 2*sel + qb
                    d = Sreg(qp, kb, n)
                    c = vr(CXr(qp, kb), 4) if ds == 0 else vr(d, 4)
                    rd = None
                    if qb == 1 and not (last and sel == 1): rd = kread(f, ku[sel])
                    mf.append((f"{MF} {vr(d,4)}, {ar(KF+4*f,4)}, {ar(AQ+(qb*4+ds)*4,4)}, {c}", rd))
        look = None if noqk else (Sreg(0, 0, n), Sreg(0, 0, n)+1)
        if nosm:
            gaps = [[] for _ in range(32)]
        else:
            gaps = sm_gaps((2, 3), par, par, look, [(L+0, LS+0), (L+1, LS+1)])
        extra = {}
        waits = {}
        if not noqk:
            waits[0] = "s_waitcnt lgkmcnt(8)"
            if mq == 2: waits[16] = "s_waitcnt lgkmcnt(4)"; waits[24] = "s_waitcnt lgkmcnt(4)"
        if vm is not None:
            extra[0] = ([], [f"s_waitcnt vmcnt({vm})", "s_barrier"])
        if toggleK is not None:
            gi = 0 if toggleK == 0 else 16
            e = extra.setdefault(gi, ([], [])); e[1].append(f"v_xor_b32 v{VK}, 0x8000, v{VK}")
        place_dmas(extra, dmas)
        emit_half(mf, gaps, extra, waits)
        if not nosm:
            rows = []
            for qq in range(2):
                qp = 2 + qq
                r = dict(S=Sreg(qp, 0, par), P=Preg(qp, par), ls=LS+2+qq)
                if ms == 4:
                    r['qb'] = qp
                    r['subs'] = ([Sreg(qp, 0, n), CXr(qp, 0)] if (mq == 4 and not noqk) else [])
                else:
                    r['qb'] = qq
                    r['subs'] = [CXr(qq, 0), CXr(qp, 0)] + ([] if noqk else [Sreg(qq, 0, n), Sreg(qp, 0, n)])
                    r['Pscale'] = [Preg(qq, par)+k for k in range(4)]
                rows.append(r)
            check_site(rescale(rows) + relook(look))

    def place_dmas(extra, dmas):
        for c, g0 in dmas:
            pre, d, post = dma_group(c)
            e = extra.setdefault(g0, ([], [])); e[1].extend(pre)
            for j in range(4):
                e = extra.setdefault(g0+1+4*j if g0+1+4*j < 32 else 31, ([], [])); e[0].append(d[j])
            e = extra.setdefault(min(31, g0+2+12), ([], [])); e[1].extend(post)

    def H2(par, mp, mnext, vu, toggleV=None, dmas=(), nopv=False, nosm=False):
        n = 1 - par
        mf = []
        if nopv: mf = [(None, None)]*32
        elif mp == 4:
            for db in range(8):
                for qp in range(4):
                    d = Oreg(db, qp)
                    mf.append((f"{MF} {vr(d,4)}, {ar(VF+4*db,4)}, {vr(Preg(qp,par),4)}, {vr(d,4)}", vread(db, vu[0]) if qp == 3 else None))
        else:
            for j in range(16):
                sel, db = j//8, j % 8
                for qb in range(2):
                    d = Oreg(db, qb)
                    rd = None
                    if qb == 1 and not (nosm and sel == 1): rd = vread(db, vu[sel])
                    mf.append((f"{MF} {vr(d,4)}, {ar(VF+4*db,4)}, {vr(Preg(2*sel+qb,par),4)}, {vr(d,4)}", rd))
        look = (Sreg(2, 0, n), Sreg(2, 0, n)+1)
        lt = (L+2, L+3) if mp == 4 else (L+0, L+1)
        if nosm:
            gaps = [[] for _ in range(32)]
            gaps[1] = [f"v_add_f32 v{lt[0]}, v{lt[0]}, v{LS+2}", f"v_add_f32 v{lt[1]}, v{lt[1]}, v{LS+3}"]
        else:
            gaps = sm_gaps((0, 1), n, n, look, [(lt[0], LS+2), (lt[1], LS+3)])
        extra = {}
        waits = {}
        if not nopv:
            waits[0] = "s_waitcnt lgkmcnt(8)" if not nosm else "s_waitcnt lgkmcnt(0)"
            if mp == 2: waits[16] = "s_waitcnt lgkmcnt(4)"; waits[24] = "s_waitcnt lgkmcnt(4)" if not nosm else "s_waitcnt lgkmcnt(0)"
        if toggleV is not None:
            gi = 0 if toggleV == 0 else 16
            e = extra.setdefault(gi, ([], [])); e[1].append(f"v_xor_b32 v{VV}, 0x8000, v{VV}")
        place_dmas(extra, dmas)
        emit_half(mf, gaps, extra, waits)
        if not nosm and not nopv:
            rows = []
            for qb in range(2):
                r = dict(S=Sreg(qb, 0, n), P=Preg(qb, n), ls=LS+qb, qb=qb, subs=[CXr(qb, 0)])
                if mnext == 2: r['subs'] += [Sreg(qb+2, 0, n), CXr(qb+2, 0)]
                rows.append(r)
            check_site(rescale(rows) + relook(look))

    def hook(cond_reg, val, code):
        ls, lb = U("HOOK"), U("HB")
        A(f"s_cmp_eq_u32 s{cond_reg}, {val}\ns_cbranch_scc1 {ls}")
        A.label(lb)
        stubs.append([ls + ":"] + code + [f"s_branch {lb}"])

    hook(sI, 0, patch(2, 0))
    A("s_waitcnt vmcnt(20)\ns_barrier")
    for f in range(8): A(kread(f, 0))
    for f in range(8): A(vread(f, 2))
    H1(1, 4, 4, [1], nosm=True)
    rows = []
    for qp in range(4): rows.append(dict(S=Sreg(qp, 0, 0), subs=[CXr(qp, 0)], P=None))
    for x in rescale(rows, init=True): A(x)
    A(f"v_exp_f32 v{E}, v{Sreg(0,0,0)}\nv_exp_f32 v{E+1}, v{Sreg(0,0,0)+1}")
    H2(1, 4, 4, None, nopv=True)
    A(f"s_mov_b32 s{sCNT}, s{sI}")
    A("s_waitcnt lgkmcnt(0)")

    def period44(r, pre=None):
        par = r % 2
        if pre: pre()
        ku = (r+2) % 4; vu = (r+1+2) % 4
        H1(par, 4, 4, [ku], toggleK=0 if ku == 0 else None, vm=16, dmas=[(r, 8)])
        H2(par, 4, 4, [vu], toggleV=0 if vu == 0 else None)

    A(f"s_cmp_eq_u32 s{sCNT}, 0\ns_cbranch_scc1 K2_SPECIAL")
    A(".p2align 6")
    A.label("K2_LOOPA")
    for r in range(4):
        period44(r, pre=(lambda: hook(sCNT, 1, patch(2, 0))) if r == 3 else None)
    A(f"s_sub_u32 s{sCNT}, s{sCNT}, 1\ns_cmp_lg_u32 s{sCNT}, 0\ns_cbranch_scc1 K2_LOOPA")
    A.label("K2_SPECIAL")
    for r in range(3):
        period44(r, pre=lambda: [A(x) for x in patch(2, r+1)])
    for i in range(16): A(f"v_mov_b32 v{CXr(2,0)+i}, v{CXr(0,0)+i}")
    hook(sI, 7, patch(0, 0) + patch(2, 1))
    A("s_nop 1")
    H1(1, 2, 4, [1, 2], vm=16, dmas=[(3, 8)])
    H2(1, 4, 2, [2])
    A(f"s_lshl_b32 s{sT0}, s{sI}, 1\ns_sub_u32 s{sCNT}, 14, s{sT0}")
    def period22(r, last_qk=False):
        par = r
        ku = [3, 0] if r == 0 else [1, 2]
        vu = [3, 0] if r == 0 else [1, 2]
        c0 = 2*r
        H1(par, 2, 2, ku, toggleK=1 if r == 0 else None, vm=12, dmas=[(c0, 8)], last=last_qk)
        H2(par, 2, 2, vu, toggleV=1 if r == 0 else None, dmas=[(c0+1, 8)])
    A(f"s_cmp_eq_u32 s{sCNT}, 0\ns_cbranch_scc1 K2_TAIL")
    A(".p2align 6")
    A.label("K2_LOOPB")
    period22(0)
    hook(sCNT, 1, patch(0, 0) + patch(2, 1))
    period22(1)
    A(f"s_sub_u32 s{sCNT}, s{sCNT}, 1\ns_cmp_lg_u32 s{sCNT}, 0\ns_cbranch_scc1 K2_LOOPB")
    A.label("K2_TAIL")
    for x in patch(0, 2) + patch(2, 3): A(x)
    H1(0, 2, 2, [3, 0], toggleK=None, vm=12, last=True)
    H2(0, 2, 2, [3, 0], toggleV=1)
    H1(1, 2, 2, None, noqk=True, vm=0)
    H2(1, 2, 2, [1, 2], nosm=True)
    for qb in range(4):
        D, D2 = L+qb, TMP+1
        A(f"v_mov_b32 v{D2}, v{D}\ns_nop 1\nv_permlane16_swap_b32 v{D}, v{D2}\nv_add_f32 v{D}, v{D}, v{D2}")
        A(f"v_mov_b32 v{D2}, v{D}\ns_nop 1\nv_permlane32_swap_b32 v{D}, v{D2}\nv_add_f32 v{D}, v{D}, v{D2}")
        A(f"v_rcp_f32 v{D}, v{D}")
    A(f"v_and_b32 v{VK}, 0x3ff, v{VK}")
    oq = 0
    for qb in (2, 3, 0, 1):
        for ds in range(4):
            ob = S01 + 4*oq
            for h in range(2):
                b = Oreg(2*ds+h, qb)
                for i in range(4): A(f"v_mul_f32 v{b+i}, v{b+i}, v{L+qb}")
                A(f"v_cvt_pk_bf16_f32 v{ob+2*h}, v{b}, v{b+1}\nv_cvt_pk_bf16_f32 v{ob+2*h+1}, v{b+2}, v{b+3}")
            A(f"s_add_u32 s{sT0}, s{sOHI if qb < 2 else sOLO}, {ds*4096}")
            A(f"buffer_store_dwordx4 {vr(ob,4)}, v{VK}, s[{S_WS}:{S_WS+3}], s{sT0} offen offset:{(qb%2)*1024}{store_flags}")
            oq = (oq+1) % 4
    A.label("K2_END")
    A("s_endpgm")
    for st in stubs:
        for x in st: A(x)
    return dict(name="k2_kernel", vgpr=256+128, accum=256, sgpr=64, grid=256, block=256, lds=131072)
```

```python
from asmlib import *
from k1 import A3_BASE, A3_TB64, WS_USED, MF, f32bits
import math

def gen_k3(A, D=8):
    ACC = 0; ACT = 64; WF = ACT + 16*D; TRA = WF + 32; VW = TRA + 4; VL = VW + 4; XR = VL + 2; T = XR + 8
    assert T + 8 <= 256
    S_W, S_A, S_X, S_O = 8, 12, 16, 20
    sW, sT0, sT1, sTB, sNT, sWOFF, sAOFF, sM0 = 24, 25, 26, 27, 28, 29, 30, 31
    P_X, P_WO, P_WD, P_OUT, P_WS = 32, 34, 36, 38, 40
    NS = 43
    A(".globl k3_kernel\n.p2align 8\n.type k3_kernel,@function")
    A.label("k3_kernel")
    A("s_cmp_ge_u32 s2, 256\ns_cbranch_scc1 K3_END")
    A(f"s_load_dwordx2 s[{P_X}:{P_X+1}], s[0:1], 0\ns_load_dwordx2 s[{P_WO}:{P_WO+1}], s[0:1], 40\ns_load_dwordx2 s[{P_WD}:{P_WD+1}], s[0:1], 72")
    A(f"s_load_dwordx2 s[{P_OUT}:{P_OUT+1}], s[0:1], 80\ns_load_dwordx2 s[{P_WS}:{P_WS+1}], s[0:1], 96")
    A(f"v_lshrrev_b32 v{T}, 6, v0\nv_and_b32 v{T+1}, 63, v0\ns_nop 0\nv_readfirstlane_b32 s{sW}, v{T}")
    LN = T+1
    A(f"s_and_b32 s{sT0}, s2, 7\ns_lshr_b32 s{sT1}, s2, 3\ns_lshr_b32 s{sNT}, s{sT1}, 2\ns_and_b32 s{sT1}, s{sT1}, 3\ns_lshl_b32 s{sTB}, s{sT0}, 2\ns_add_u32 s{sTB}, s{sTB}, s{sT1}")
    for r in (S_W, S_A, S_X, S_O): A(f"s_mov_b32 s{r+3}, 0x00020000")
    A(f"s_mov_b32 s{S_A+2}, {WS_USED}\ns_mov_b32 s{S_X+2}, 0x200000\ns_mov_b32 s{S_O+2}, 0x200000")
    A(f"s_mul_i32 s{sT0}, s{sW}, 43\ns_cmp_eq_u32 s{sW}, 3\ns_cselect_b32 s{sT0}, 128, s{sT0}")
    A(f"s_cmp_eq_u32 s{sW}, 3\ns_cselect_b32 s{sT1}, 0, s{sT0}\ns_lshl_b32 s{sWOFF}, s{sT1}, 15")
    A(f"s_lshl_b32 s{sT0}, s{sT0}, 12\ns_mul_i32 s{sAOFF}, s{sTB}, {A3_TB64}\ns_add_u32 s{sAOFF}, s{sAOFF}, s{sT0}\ns_add_u32 s{sAOFF}, s{sAOFF}, {A3_BASE}")
    A(f"s_lshl_b32 s{sM0}, s{sW}, 15")
    A(f"v_lshlrev_b32 v{VL}, 4, v{LN}")
    A(f"v_lshrrev_b32 v{T+2}, 3, v{LN}\nv_and_b32 v{T+3}, 7, v{LN}\nv_lshrrev_b32 v{T+4}, 4, v{LN}\nv_lshlrev_b32 v{T+4}, 1, v{T+4}\nv_xor_b32 v{T+3}, v{T+3}, v{T+4}")
    A(f"v_lshlrev_b32 v{T+5}, 10, v{T+2}\nv_lshl_add_u32 v{T+5}, v{T+3}, 4, v{T+5}\ns_lshl_b32 s{sT0}, s{sNT}, 7\nv_add_u32 v{VW}, s{sT0}, v{T+5}")
    for j in range(1, 4): A(f"v_add_u32 v{VW+j}, {j*7168}, v{VW}")
    A(f"v_and_b32 v{T+3}, 7, v{LN}\nv_lshlrev_b32 v{T+5}, 10, v{T+2}\nv_lshl_add_u32 v{T+5}, v{T+3}, 4, v{T+5}")
    A(f"s_lshl_b32 s{sT1}, s{sTB}, 16\ns_add_u32 s{sT0}, s{sT0}, s{sT1}\ns_lshl_b32 s{sT1}, s{sW}, 14\ns_add_u32 s{sT0}, s{sT0}, s{sT1}\nv_add_u32 v{VL+1}, s{sT0}, v{T+5}")
    A(f"v_lshrrev_b32 v{T+4}, 2, v{LN}\nv_lshlrev_b32 v{T+4}, 7, v{T+4}\nv_and_b32 v{T+5}, 3, v{LN}\nv_lshl_add_u32 v{T+4}, v{T+5}, 3, v{T+4}\nv_add_u32 v{T+4}, s{sM0}, v{T+4}\nv_and_b32 v{T+5}, 3, v{T+2}")
    for nb in range(4): A(f"v_xor_b32 v{T+6}, {nb}, v{T+5}\nv_lshl_add_u32 v{TRA+nb}, v{T+6}, 5, v{T+4}")
    A("s_waitcnt lgkmcnt(0)")
    A(f"s_cmp_eq_u32 s{sW}, 3\ns_cselect_b32 s{S_W}, s{P_WD}, s{P_WO}\ns_cselect_b32 s{S_W+1}, s{P_WD+1}, s{P_WO+1}\ns_mov_b32 s{sT0}, {4096*1024}\ns_cselect_b32 s{S_W+2}, {1376*1024}, s{sT0}")
    A(f"s_mov_b32 s{S_A}, s{P_WS}\ns_mov_b32 s{S_A+1}, s{P_WS+1}\ns_mov_b32 s{S_X}, s{P_X}\ns_mov_b32 s{S_X+1}, s{P_X+1}\ns_mov_b32 s{S_O}, s{P_OUT}\ns_mov_b32 s{S_O+1}, s{P_OUT+1}")
    def loads(s):
        sl = s % D
        pre = [f"s_add_u32 m0, s{sM0}, {sl*4096}", f"s_add_u32 s{sT0}, s{sWOFF}, {s*32768}", f"s_add_u32 s{sT1}, s{sAOFF}, {s*4096}"]
        w = [f"buffer_load_dwordx4 v{VW+j}, s[{S_W}:{S_W+3}], s{sT0} offen offset:{j*1024} lds" for j in range(4)]
        a = [f"buffer_load_dwordx4 {vr(ACT+16*sl+4*t,4)}, v{VL}, s[{S_A}:{S_A+3}], s{sT1} offen offset:{t*1024}" for t in range(4)]
        return pre, w + a
    def trr(s):
        o = []
        for nb in range(4):
            b = WF + 16*(s % 2) + 4*nb
            o.append(f"ds_read_b64_tr_b16 {vr(b,2)}, v{TRA+nb} offset:{(s%D)*4096}")
            o.append(f"ds_read_b64_tr_b16 {vr(b+2,2)}, v{TRA+nb} offset:{(s%D)*4096+2048}")
        return o
    for s in range(D-1):
        pre, ld = loads(s)
        for x in pre + ld: A(x)
    A(f"buffer_load_dwordx4 {vr(XR,4)}, v{VL+1}, s[{S_X}:{S_X+3}], 0 offen")
    A(f"s_mov_b32 s{sT0}, 8192\nbuffer_load_dwordx4 {vr(XR+4,4)}, v{VL+1}, s[{S_X}:{S_X+3}], s{sT0} offen")
    issued = [('W', s) for s in []]
    seq = []
    for s in range(D-1): seq += [('W', s)]*4 + [('A', s)]*4
    seq += [('X', 0)]*2
    def vm_for(items):
        last = max(i for i, e in enumerate(seq) if e in items)
        return len(seq) - 1 - last
    A(f"s_waitcnt vmcnt({vm_for([('W',0)])})")
    for x in trr(0): A(x)
    for s in range(NS):
        need = [('A', s)] + ([('W', s+1)] if s+1 < NS else [])
        A(f"s_waitcnt vmcnt({vm_for(need)}) lgkmcnt(0)")
        mem = trr(s+1) if s+1 < NS else []
        pre, ld = ([], [])
        if s + D - 1 < NS:
            pre, ld = loads(s+D-1)
            seq += [('W', s+D-1)]*4 + [('A', s+D-1)]*4
        extra = {}
        for k, x in enumerate(mem): extra.setdefault(k//2, []).append(x)
        for k, x in enumerate(pre): extra.setdefault(4 + k//2, []).append(x)
        for k, x in enumerate(ld): extra.setdefault(6 + k, []).append(x)
        for nb in range(4):
            for t in range(4):
                g = nb*4 + t
                d = ACC + g*4
                c = "0" if s == 0 else vr(d, 4)
                A(f"{MF} {vr(d,4)}, {vr(WF+16*(s%2)+4*nb,4)}, {vr(ACT+16*(s%D)+4*t,4)}, {c}")
                for x in extra.get(g, []): A(x)
    A(f"v_and_b32 v{T+2}, 15, v{LN}\nv_lshrrev_b32 v{T+3}, 4, v{LN}\nv_mul_u32_u24 v{T+2}, 272, v{T+2}\nv_lshl_add_u32 v{T+2}, v{T+3}, 4, v{T+2}\nv_add_u32 v{T+2}, s{sM0}, v{T+2}")
    A(f"v_lshrrev_b32 v{T+3}, 3, v{LN}\ns_lshl_b32 s{sT0}, s{sW}, 4\nv_add_u32 v{T+3}, s{sT0}, v{T+3}\nv_mul_u32_u24 v{T+3}, 272, v{T+3}\nv_and_b32 v{T+4}, 7, v{LN}\nv_lshl_add_u32 v{T+3}, v{T+4}, 5, v{T+3}\nv_add_u32 v{T+4}, 0x10000, v{T+3}")
    for nb in range(4):
        for t in range(4):
            A(f"ds_write_b128 v{T+2}, {vr(ACC+(nb*4+t)*4,4)} offset:{t*4352 + nb*64}")
    A("s_waitcnt lgkmcnt(0)\ns_barrier")
    R = ACT
    for tt in range(2):
        for r in (3, 0, 1, 2):
            for h in range(2):
                A(f"ds_read_b128 {vr(R+(r*2+tt)*8+4*h,4)}, v{T+3+(r//2)} offset:{(r%2)*32768 + tt*2176 + h*16}")
    for tt in range(2):
        A(f"s_waitcnt lgkmcnt({8*(1-tt)+6})")
        dn = R + (3*2+tt)*8; G = WF + 8*tt
        for i in range(8): A(f"v_mul_f32 v{G+i}, {hex(f32bits(-math.log2(math.e)))}, v{dn+i}")
        for i in range(8): A(f"v_exp_f32 v{G+i}, v{G+i}")
        for i in range(8): A(f"v_add_f32 v{G+i}, 1.0, v{G+i}")
        for i in range(8): A(f"v_rcp_f32 v{G+i}, v{G+i}")
        for i in range(8): A(f"v_mul_f32 v{G+i}, v{G+i}, v{dn+i}")
        A(f"s_waitcnt vmcnt(0) lgkmcnt(8)" if tt == 0 else "s_waitcnt lgkmcnt(0)")
        p0, p1, p2 = R + (0*2+tt)*8, R + (1*2+tt)*8, R + (2*2+tt)*8
        for i in range(8): A(f"v_add_f32 v{p0+i}, v{p0+i}, v{p1+i}")
        for i in range(8): A(f"v_add_f32 v{p0+i}, v{p0+i}, v{p2+i}")
        for i in range(4):
            A(f"v_lshlrev_b32 v{p1+2*i}, 16, v{XR+4*tt+i}\nv_and_b32 v{p1+2*i+1}, 0xffff0000, v{XR+4*tt+i}")
        for i in range(8): A(f"v_fmac_f32 v{p1+i}, v{p0+i}, v{G+i}")
        for i in range(4): A(f"v_cvt_pk_bf16_f32 v{p2+i}, v{p1+2*i}, v{p1+2*i+1}")
        if tt == 0: A(f"buffer_store_dwordx4 {vr(p2,4)}, v{VL+1}, s[{S_O}:{S_O+3}], 0 offen")
        else: A(f"s_mov_b32 s{sT0}, 8192\nbuffer_store_dwordx4 {vr(p2,4)}, v{VL+1}, s[{S_O}:{S_O+3}], s{sT0} offen")
    A.label("K3_END")
    A("s_endpgm")
    return dict(name="k3_kernel", vgpr=256, accum=256, sgpr=48, grid=256, block=256, lds=131072)
```

```python
import sys
from asmlib import *
import k1
HEADER = open('recurrent_scan__compressed_kv_cla__glu_gated_reglu__prompt.s.ref').read().split('; Override')[0]
def build(kernels, check=True):
    A = Asm()
    infos = []
    for g in kernels:
        start = len(A.lines)
        infos.append(g(A))
    body = A.text()
    if check:
        check_hazards(A.lines)
    out = HEADER
    for i in infos:
        out += f"; @launch kernel={i['name']} grid=({i['grid']},1,1) block=({i['block']},1,1) lds={i['lds']}\n"
    out += '.amdgcn_target "amdgcn-amd-amdhsa--gfx950"\n.text\n' + body
    out += '.section .rodata,"a"\n'
    for i in infos:
        out += f""".p2align 6
.amdhsa_kernel {i['name']}
  .amdhsa_next_free_vgpr {i['vgpr']}
  .amdhsa_next_free_sgpr {i['sgpr']}
  .amdhsa_accum_offset {i['accum']}
  .amdhsa_group_segment_fixed_size 0
  .amdhsa_kernarg_size 104
  .amdhsa_user_sgpr_count 2
  .amdhsa_user_sgpr_kernarg_segment_ptr 1
  .amdhsa_system_sgpr_workgroup_id_x 1
.end_amdhsa_kernel
"""
    return out
if __name__ == '__main__':
    ks = [k1.gen_k1]
    try:
        import k2; ks.append(k2.gen_k2)
        import k3; ks.append(k3.gen_k3)
    except ImportError as e:
        print("partial:", e)
    s = build(ks)
    open(sys.argv[1] if len(sys.argv) > 1 else 'cur.s', 'w').write(s)
    print(len(s), "bytes")
```

```python
import re

def vr(b, n=1): return f"v{b}" if n == 1 else f"v[{b}:{b+n-1}]"
def ar(b, n=1): return f"a{b}" if n == 1 else f"a[{b}:{b+n-1}]"
def sr(b, n=1): return f"s{b}" if n == 1 else f"s[{b}:{b+n-1}]"

_REG = re.compile(r"^-?(?:abs\()?([vas])(?:(\d+)|\[(\d+):(\d+)\])\)?$")
def regs_of(tok):
    tok = tok.strip()
    if tok.startswith('|') and tok.endswith('|'): tok = tok[1:-1]
    m = _REG.match(tok)
    if m:
        k = m.group(1)
        if m.group(2) is not None: return {(k, int(m.group(2)))}
        return {(k, i) for i in range(int(m.group(3)), int(m.group(4))+1)}
    if tok == 'vcc': return {('s', 106), ('s', 107)}
    if tok == 'exec': return {('s', 126), ('s', 127)}
    if tok == 'm0': return {('s', 124)}
    return set()

TRANS = ('v_exp_f32','v_log_f32','v_rcp_f32','v_rsq_f32','v_sqrt_f32','v_sin_f32','v_cos_f32')

class Ins:
    __slots__ = ('text','op','w','r','kind','srcc','passes','ws')
    def __init__(self, text):
        self.text = text
        t = text.split(';')[0].strip()
        self.op = t.split()[0] if t else ''
        rest = t[len(self.op):].strip()
        ops = [x.strip() for x in rest.split(',')] if rest else []
        ops = [o.split()[0] if o else o for o in ops]
        self.w = set(); self.r = set(); self.srcc = set(); self.passes = 0; self.ws = 1
        op = self.op
        R = [regs_of(o) for o in ops]
        if op.endswith(':') or op.startswith('.') or op == '':
            self.kind = 'label'; self.ws = 0
        elif op.startswith('v_mfma'):
            self.kind = 'mfma'; self.w = R[0]; self.r = R[1] | R[2] | R[3]; self.srcc = R[3]
            self.passes = 4 if '16x16x32' in op else 8
        elif op.startswith('v_cmp'):
            self.kind = 'valu'; self.w = R[0]; self.r = set().union(*R[1:])
        elif op in ('v_readfirstlane_b32', 'v_readlane_b32'):
            self.kind = 'valu'; self.w = R[0]; self.r = set().union(*R[1:])
        elif op.startswith('v_permlane') and 'swap' in op:
            self.kind = 'valu'; self.w = R[0] | R[1]; self.r = R[0] | R[1]
        elif op.startswith('v_'):
            self.kind = 'valu'; self.w = set(R[0]); self.r = set().union(*R[1:]) if len(R) > 1 else set()
            if op.startswith('v_fmac') or op.startswith('v_dot2c'): self.r |= R[0]
            if op.startswith('v_cndmask') and len(R) == 3: self.r |= regs_of('vcc')
            if op.startswith('v_add_co') or op.startswith('v_sub_co'): self.w |= R[1]
        elif op.startswith('ds_read') :
            self.kind = 'ds'; self.w = R[0]; self.r = R[1]
        elif op.startswith('ds_write'):
            self.kind = 'ds'; self.r = set().union(*R)
        elif op.startswith('ds_bpermute') or op.startswith('ds_swizzle'):
            self.kind = 'ds'; self.w = R[0]; self.r = set().union(*R[1:])
        elif op.startswith('buffer_load'):
            self.kind = 'vmem'
            if ' lds' in t: self.r = set().union(*R) | regs_of('m0'); self.kind = 'dma'
            else: self.w = R[0]; self.r = set().union(*R[1:])
        elif op.startswith('buffer_store'):
            self.kind = 'store'; self.r = set().union(*R); self.srcc = R[0]
        elif op == 's_nop':
            self.kind = 'nop'; self.ws = int(ops[0], 0) + 1
        elif op.startswith('s_'):
            self.kind = 'salu'
            if op.startswith('s_cmp') or op.startswith('s_cbranch') or op in ('s_branch','s_barrier','s_waitcnt','s_endpgm','s_setprio','s_sleep','s_setpc_b64'):
                self.r = set().union(*R) if R else set()
            else:
                self.w = R[0] if R else set(); self.r = set().union(*R[1:]) if len(R) > 1 else set()
        else:
            raise ValueError("unknown op: " + text)

class Asm:
    def __init__(self):
        self.lines = []
    def __call__(self, text):
        for l in text.split('\n'):
            l = l.strip()
            if l: self.lines.append(l)
    def label(self, n): self.lines.append(n + ':')
    def text(self): return '\n'.join(('' if (l.endswith(':') or l.startswith('.') or l.startswith(';')) else ' ') + l for l in self.lines) + '\n'

def check_hazards(lines, verbose=True):
    ins = []
    for l in lines:
        if l.startswith(';') or l.startswith('.'): continue
        ins.append(Ins(l))
    probs = []
    n = len(ins)
    for i, c in enumerate(ins):
        if c.kind in ('label', 'nop'): continue
        dist = 0
        j = i - 1
        while j >= 0 and dist < 20:
            p = ins[j]
            if p.op in ('s_branch', 's_endpgm', 's_setpc_b64'): break
            need = 0
            vw = {x for x in p.w if x[0] in 'va'}
            sw = {x for x in p.w if x[0] == 's'}
            if p.kind == 'valu':
                if c.kind == 'mfma' and vw & c.r: need = max(need, 2)
                if c.op.startswith('v_permlane') and vw & c.r: need = max(need, 2)
                if c.op in ('v_readfirstlane_b32','v_readlane_b32') and vw & c.r: need = max(need, 1)
                if p.op in TRANS and c.kind in ('valu',) and c.op not in TRANS and vw & c.r: need = max(need, 1)
                if p.op in TRANS and c.kind in ('mfma','store','ds','vmem','dma') and vw & c.r: need = max(need, 2 if c.kind=='mfma' else 1)
                if sw:
                    if c.kind in ('vmem','dma','store') and sw & c.r: need = max(need, 5)
                    if c.kind == 'valu' and sw & c.r: need = max(need, 2)
                    if c.kind == 'salu' and sw & c.r and not c.op.startswith('s_cbranch'): need = max(need, 1)
                if 'dpp' in c.text and vw & c.r: need = max(need, 2)
                if p.op.startswith('v_dot'):
                    if c.op == p.op:
                        ab = set().union(*[regs_of(x.strip().split()[0]) for x in c.text.split(',')[1:3]])
                        if vw & ab: need = max(need, 3)
                    elif vw & (c.r | c.w): need = max(need, 3)
            if p.kind == 'mfma':
                ps = p.passes
                big = {4: 8, 8: 12}[ps]
                if c.kind == 'mfma':
                    ab = c.r - c.srcc
                    if p.w & ab: need = max(need, big)
                    if p.w & c.srcc:
                        if not (p.w == c.srcc and p.passes == c.passes): need = max(need, {4: 6, 8: 10}[ps])
                    if (p.w & c.w) and not (p.w & c.srcc): need = max(need, {4:6,8:10}[ps])
                elif c.kind in ('valu','ds','vmem','dma','store'):
                    if p.w & (c.r | c.w): need = max(need, big)
                    if c.kind == 'valu' and p.srcc & c.w: need = max(need, {4: 3, 8: 7}[ps])
            if p.kind == 'store' and p.op.endswith('x4'):
                if p.srcc & c.w: need = max(need, 2 if c.kind == 'valu' else 1)
            if p.kind == 'salu' and ('s', 124) in p.w and c.kind == 'dma': need = max(need, 1)
            if need > dist:
                probs.append(f"hazard need {need} have {dist}: [{p.text}] -> [{c.text}]")
            dist += p.ws
            j -= 1
    if verbose:
        for p in probs[:40]: print(p)
        print(f"hazard check: {len(probs)} problems over {n} instrs")
    return probs

STAMP = False
DBG_BASE = 120 << 20
def stamp(A, k):
    if STAMP: A(f"s_memrealtime s[{64+2*k}:{65+2*k}]")
def stamp_flush(A, kidx, n, pws, sw, v0=0):
    if not STAMP: return
    A(f"s_memrealtime s[{64+2*(n-1)}:{65+2*(n-1)}]")
    A(f"s_mov_b32 s80, s{pws}\ns_mov_b32 s81, s{pws+1}\ns_mov_b32 s82, 0x10000000\ns_mov_b32 s83, 0x00020000")
    A(f"s_lshl_b32 s84, s2, 2\ns_add_u32 s84, s84, s{sw}\ns_lshl_b32 s84, s84, 6\ns_add_u32 s84, s84, {DBG_BASE + kidx*0x10000}")
    A(f"v_mov_b32 v{v0+2}, 0\ns_waitcnt lgkmcnt(0)")
    for k in range(n):
        A(f"v_mov_b32 v{v0}, s{64+2*k}\nv_mov_b32 v{v0+1}, s{65+2*k}\nbuffer_store_dwordx2 v[{v0}:{v0+1}], v{v0+2}, s[80:83], s84 offen offset:{k*8}\ns_nop 1")
```

```python
from asmlib import *
import asmlib
import math

import os
WS_OFF = int(os.environ.get('WS_OFF', '0')) << 20
QF_BASE = WS_OFF
KV_BASE = WS_OFF + (16 << 20)
A3_BASE = WS_OFF + (48 << 20)
A3_TB64 = 171 * 4096
WS_USED = A3_BASE + 32 * A3_TB64
MF = "v_mfma_f32_16x16x32_bf16"
CSCALE = math.log2(math.e) / math.sqrt(128.0)

def f32bits(x):
    import struct
    return struct.unpack('<I', struct.pack('<f', x))[0]

def gen_k1(A, store_flags=""):
    ACC = [8, 72]; WF = 136; TRA = 168; VW = 176; VO = 178; OUT = 184; SC = 196; RSTD = 200; T = 204; GR = 216; SUM = 232; ONESV = 240; MU = 244; DUM = 245
    S_ACT, S_WA, S_WB, S_OUT = 8, 12, 16, 20
    sW, sTB, sCG, sSU, sEND, sDMA, sOB, sM0, sT0, sT1, sTYPE, sJOB2, sOBASE = 24, 25, 26, 27, 28, 29, 30, 31, 32, 33, 34, 35, 36
    sONES, sSLO, sSHI = 37, 38, 39
    P_X, P_CKV, P_WQ, P_WUK, P_WUV, P_WG, P_WU, P_WS = 40, 42, 44, 46, 48, 50, 52, 54
    sSTG = 56
    sROW = 57
    sCUR, sSS, sWRAP, sEX, sMK = 58, 59, 60, 84, 88

    A(".globl k1_kernel\n.p2align 8\n.type k1_kernel,@function")
    A.label("k1_kernel")
    A("s_cmp_ge_u32 s2, 256\ns_cbranch_scc1 K1_END")
    stamp(A, 0)
    A(f"s_load_dwordx4 s[{P_X}:{P_X+3}], s[0:1], 0")
    A(f"s_load_dwordx4 s[{P_WQ}:{P_WQ+3}], s[0:1], 16")
    A(f"s_load_dwordx2 s[{P_WUV}:{P_WUV+1}], s[0:1], 32")
    A(f"s_load_dwordx2 s[{P_WG}:{P_WG+1}], s[0:1], 56")
    A(f"s_load_dwordx2 s[{P_WU}:{P_WU+1}], s[0:1], 64")
    A(f"s_load_dwordx2 s[{P_WS}:{P_WS+1}], s[0:1], 96")
    A(f"v_lshrrev_b32 v1, 6, v0\nv_and_b32 v0, 63, v0\ns_nop 0\nv_readfirstlane_b32 s{sW}, v1")
    A(f"s_and_b32 s{sT0}, s2, 7\ns_lshr_b32 s{sT1}, s2, 3\ns_and_b32 s{sTB}, s{sT1}, 7\ns_lshr_b32 s{sT1}, s{sT1}, 3")
    A(f"s_lshl_b32 s{sCG}, s{sT0}, 2\ns_add_u32 s{sCG}, s{sCG}, s{sT1}")
    A(f"s_mov_b32 s{sONES}, 0x3f803f80\ns_mov_b32 s{sSLO}, 0x00003f80\ns_mov_b32 s{sSHI}, 0x3f800000")
    A(f"s_mov_b32 s{sJOB2}, 0")
    A(f"s_lshl_b32 s{sSTG}, s{sW}, 13")
    A(f"s_lshl_b32 s{sROW}, s{sTB}, 18\ns_lshl_b32 s{sT0}, s{sW}, 16\ns_add_u32 s{sROW}, s{sROW}, s{sT0}")
    for r in (S_ACT, S_WA, S_WB, S_OUT): A(f"s_mov_b32 s{r+3}, 0x00020000")
    A(f"s_mov_b32 s{S_ACT+2}, 0x200000")
    A("s_waitcnt lgkmcnt(0)")
    A(f"s_mov_b32 s{S_OUT}, s{P_WS}\ns_mov_b32 s{S_OUT+1}, s{P_WS+1}\ns_mov_b32 s{S_OUT+2}, 0")
    A(f"s_cmp_lt_u32 s{sCG}, 8\ns_cbranch_scc1 K1_DISP_K")
    A(f"s_cmp_lt_u32 s{sCG}, 16\ns_cbranch_scc1 K1_DISP_V")
    A(f"s_mov_b32 s{S_ACT}, s{P_X}\ns_mov_b32 s{S_ACT+1}, s{P_X+1}")
    A(f"s_cmp_lt_u32 s{sCG}, 25\ns_cbranch_scc1 K1_DISP_Q")
    A(f"s_cmp_lt_u32 s{sCG}, 31\ns_cbranch_scc1 K1_DISP_G")
    A(f"s_mov_b32 s{sSU}, 63\ns_mov_b32 s{sEND}, 64\ns_mov_b32 s{sJOB2}, 1\ns_branch K1_SETUP_Q")
    A.label("K1_DISP_Q")
    A(f"s_sub_u32 s{sT0}, s{sCG}, 16\ns_mul_i32 s{sSU}, s{sT0}, 7\ns_add_u32 s{sEND}, s{sSU}, 7\ns_branch K1_SETUP_Q")
    A.label("K1_DISP_G")
    A(f"s_sub_u32 s{sT0}, s{sCG}, 25\ns_mul_i32 s{sSU}, s{sT0}, 7\ns_add_u32 s{sEND}, s{sSU}, 7\ns_branch K1_SETUP_G")
    A.label("K1_DISP_K")
    A(f"s_mov_b32 s{S_ACT}, s{P_CKV}\ns_mov_b32 s{S_ACT+1}, s{P_CKV+1}")
    A(f"s_lshl_b32 s{sSU}, s{sCG}, 3\ns_add_u32 s{sEND}, s{sSU}, 8\ns_branch K1_SETUP_K")
    A.label("K1_DISP_V")
    A(f"s_mov_b32 s{S_ACT}, s{P_CKV}\ns_mov_b32 s{S_ACT+1}, s{P_CKV+1}")
    A(f"s_sub_u32 s{sT0}, s{sCG}, 8\ns_lshl_b32 s{sSU}, s{sT0}, 3\ns_add_u32 s{sEND}, s{sSU}, 8\ns_branch K1_SETUP_V")

    def dma_consts(ty):
        if ty == 'G':
            return 64, 128*2752, [(S_WA, 0, 0), (S_WA, 0, 16*2752), (S_WB, 0, 0), (S_WB, 0, 16*2752)]
        return 128, 128*8192, [(S_WA, 0, 0), (S_WA, 1, 8*8192), (S_WA, 0, 16*8192), (S_WA, 1, 24*8192)]

    def dma_slot(ty, su_rel, q, ringslot):
        cs, ss, pieces = dma_consts(ty)
        out = []
        for j, (srd, vi, ex) in enumerate(pieces):
            out.append([f"s_add_u32 m0, s{sM0}, {ringslot*16384 + j*1024}",
                        f"s_add_u32 s{sT0}, s{sDMA}, {su_rel*cs + q*ss + ex}",
                        f"buffer_load_dwordx4 v{VW+vi}, s[{srd}:{srd+3}], s{sT0} offen lds"])
        return out

    def setup(ty):
        A.label(f"K1_SETUP_{ty}")
        ptr = {'Q': P_WQ, 'K': P_WUK, 'V': P_WUV, 'G': P_WG}[ty]
        A(f"s_mov_b32 s{S_WA}, s{ptr}\ns_mov_b32 s{S_WA+1}, s{ptr+1}")
        pb = P_WU if ty == 'G' else ptr
        A(f"s_mov_b32 s{S_WB}, s{pb}\ns_mov_b32 s{S_WB+1}, s{pb+1}")
        wsz = 512*2752 if ty == 'G' else 512*8192
        A(f"s_mov_b32 s{S_WA+2}, {wsz}\ns_mov_b32 s{S_WB+2}, {wsz}")
        A(f"s_mov_b32 s{sTYPE}, {'QKVG'.index(ty)}")
        cs, ss, _ = dma_consts(ty)
        pitch = 2752 if ty == 'G' else 8192
        A(f"s_mul_i32 s{sDMA}, s{sSU}, {cs}\ns_mul_i32 s{sT0}, s{sW}, {32*pitch}\ns_add_u32 s{sDMA}, s{sDMA}, s{sT0}")
        A(f"s_lshl_b32 s{sM0}, s{sW}, 12")
        if ty in 'QG':
            A(f"s_mov_b32 s{sCUR}, s{sDMA}\ns_mov_b32 s{sSS}, {ss}\ns_mov_b32 s{sWRAP}, {(cs - 3*ss) & 0xffffffff}")
            for j, (_, _, ex) in enumerate(dma_consts(ty)[2]): A(f"s_mov_b32 s{sEX+j}, {ex}")
        A("v_lshrrev_b32 v1, 4, v0\nv_bfe_u32 v2, v0, 2, 2\nv_and_b32 v3, 3, v0")
        if ty != 'G':
            A("v_lshrrev_b32 v4, 3, v0\nv_and_b32 v5, 7, v0\nv_bfe_u32 v6, v0, 4, 1\nv_lshlrev_b32 v6, 1, v6\nv_xor_b32 v5, v5, v6")
            A(f"v_lshlrev_b32 v4, 13, v4\nv_lshl_add_u32 v{VW}, v5, 4, v4\nv_xor_b32 v{VW+1}, 64, v{VW}")
            A("v_lshrrev_b32 v4, 1, v2\nv_and_b32 v5, 1, v1\nv_lshl_add_u32 v4, v5, 1, v4")
            A("v_lshl_add_u32 v5, v1, 3, v2\nv_lshlrev_b32 v5, 7, v5\nv_lshl_add_u32 v5, v3, 3, v5")
            for nb in range(4):
                A(f"v_xor_b32 v6, {nb}, v4\nv_lshl_add_u32 v{TRA+2*nb}, v6, 5, v5\nv_add_u32 v{TRA+2*nb+1}, 512, v{TRA+2*nb}")
        else:
            A(f"v_lshrrev_b32 v4, 2, v0\nv_lshrrev_b32 v6, 5, v0\nv_lshlrev_b32 v6, 1, v6\nv_xor_b32 v5, v3, v6")
            A(f"v_mul_u32_u24 v4, 2752, v4\nv_lshl_add_u32 v{VW}, v5, 4, v4\nv_mov_b32 v{VW+1}, v{VW}")
            A("v_and_b32 v4, 1, v1")
            A("v_lshl_add_u32 v5, v1, 3, v2\nv_lshlrev_b32 v5, 6, v5\nv_lshl_add_u32 v5, v3, 3, v5")
            for nb in range(4):
                A(f"v_xor_b32 v6, {nb%2}, v4\nv_lshl_add_u32 v6, v6, 5, v5\nv_add_u32 v{TRA+2*nb}, {(nb//2)*2048}, v6\nv_add_u32 v{TRA+2*nb+1}, 256, v{TRA+2*nb}")
        A("v_lshlrev_b32 v4, 4, v0")
        if ty == 'Q':
            for t in range(4): A(f"v_add_u32 v{VO+t}, {t*4096}, v4")
            A(f"s_lshl_b32 s{sOBASE}, s{sTB}, 16\ns_lshl_b32 s{sT0}, s{sW}, 14\ns_add_u32 s{sOBASE}, s{sOBASE}, s{sT0}\ns_add_u32 s{sOBASE}, s{sOBASE}, {QF_BASE}")
        elif ty == 'K':
            for t in range(4): A(f"v_add_u32 v{VO+t}, {(t//2)*16384 + (t%2)*4096}, v4")
            A(f"s_lshl_b32 s{sOBASE}, s{sTB}, 17\ns_lshl_b32 s{sT0}, s{sW}, 15\ns_add_u32 s{sOBASE}, s{sOBASE}, s{sT0}\ns_add_u32 s{sOBASE}, s{sOBASE}, {KV_BASE}")
        elif ty == 'V':
            for t in range(4): A(f"v_add_u32 v{VO+t}, {(t%2)*16384}, v4")
            A(f"s_lshl_b32 s{sOBASE}, s{sTB}, 17\ns_lshl_b32 s{sT0}, s{sW}, 15\ns_add_u32 s{sOBASE}, s{sOBASE}, s{sT0}\ns_add_u32 s{sOBASE}, s{sOBASE}, {KV_BASE+8192}")
        else:
            for t in range(4): A(f"v_mov_b32 v{VO+t}, v4")
            A(f"s_lshl_b32 s{sT0}, s{sTB}, 2\ns_add_u32 s{sT0}, s{sT0}, s{sW}\ns_mul_i32 s{sOBASE}, s{sT0}, {A3_TB64}\ns_add_u32 s{sOBASE}, s{sOBASE}, {A3_BASE + 128*4096}")
        A(f"s_mov_b32 s{S_OUT+2}, {0 if ty in 'QG' else WS_USED}")
        if ty == 'G':
            A(f"s_cmp_eq_u32 s{sJOB2}, 2\ns_cbranch_scc1 K1_WPRE_G")
        A(f"s_branch {'K1_STAGE_X' if ty in 'QG' else 'K1_PRO_' + ty}")

    for ty in 'QKVG': setup(ty)

    def wpre(ty, slots):
        for q in slots:
            for tr in dma_slot(ty, q//4, q%4, q):
                for x in tr: A(x)

    def touch_ops(ty):
        pitch = 2752 if ty == 'G' else 8192
        cs, _, _ = dma_consts(ty)
        o = [f"s_lshl_b32 s{sT1}, s{sTB}, 2", f"s_add_u32 s{sT1}, s{sT1}, s{sW}", f"s_mul_i32 s{sT1}, s{sT1}, {16*pitch}", f"s_mul_i32 s{sT0}, s{sSU}, {cs}", f"s_add_u32 s{sT1}, s{sT1}, s{sT0}"]
        if ty == 'G':
            o += ["v_lshrrev_b32 v4, 2, v0", "v_and_b32 v5, 3, v0", "v_mul_u32_u24 v4, 2752, v4", f"v_add_u32 v4, s{sT1}, v4", "v_and_b32 v4, 0xffffff80, v4", "v_lshl_add_u32 v4, v5, 7, v4"]
            o += [f"buffer_load_dword v{DUM+j}, v4, s[{srd}:{srd+3}], 0 offen" for j, srd in enumerate((S_WA, S_WB))]
        else:
            o += ["v_lshrrev_b32 v4, 3, v0", "v_and_b32 v5, 7, v0", "v_lshlrev_b32 v4, 13, v4", "v_lshl_add_u32 v4, v5, 7, v4"]
            for j in range(2):
                o += [f"s_add_u32 s{sT0}, s{sT1}, {j*8*pitch}", f"buffer_load_dword v{DUM+j}, v4, s[{S_WA}:{S_WA+3}], s{sT0} offen"]
        return o

    BUF = [0, 1, 2, 3, 4, 2, 3, 4]
    A.label("K1_STAGE_X")
    A(f"v_lshlrev_b32 v{T}, 4, v0")
    def x_round(r):
        o = []
        for j in range(8):
            tok = (8*r + j) & 15
            o.append([f"v_xor_b32 v{T+1+(j&1)}, {tok*16}, v{T}", f"s_add_u32 m0, s{sSTG}, {BUF[r]*32768 + j*1024}", f"s_add_u32 s{sT0}, s{sROW}, {(8*r+j)*1024}",
                      f"buffer_load_dwordx4 v{T+1+(j&1)}, s[{S_ACT}:{S_ACT+3}], s{sT0} offen lds"])
        return o
    def gw_slot(n):
        o = []
        for j in range(4):
            srd = S_WA if j < 2 else S_WB
            it = [f"s_add_u32 m0, s{sM0}, {n*16384 + j*1024}", f"s_add_u32 s{sT0}, s{sCUR}, s{sEX+j}", f"buffer_load_dwordx4 v{VW+(j&1)}, s[{srd}:{srd+3}], s{sT0} offen lds"]
            if j == 3: it.append(f"s_add_u32 s{sCUR}, s{sCUR}, s{sSS if n != 3 else sWRAP}")
            o.append(it)
        return o
    for r in range(4):
        for it in x_round(r):
            for x in it: A(x)
    stamp(A, 1)
    A(f"v_and_b32 v4, 15, v0\nv_and_b32 v5, 7, v0\nv_lshlrev_b32 v5, 10, v5\nv_and_b32 v6, 3, v0\nv_xor_b32 v6, v6, v1\nv_lshl_add_u32 v5, v6, 4, v5")
    A(f"v_add_u32 v5, s{sSTG}, v5\nv_lshrrev_b32 v6, 2, v4")
    for k in range(4):
        A(f"v_xor_b32 v7, {k}, v6\nv_lshl_add_u32 v{T+4+k}, v7, 6, v5")
    A(f"v_cmp_lt_u32 vcc, 7, v4")
    A(f"v_lshlrev_b32 v5, 2, v1\nv_sub_u32 v5, v4, v5")
    for i in range(4): A(f"v_cmp_eq_u32 s[{sMK+2*i}:{sMK+2*i+1}], {i}, v5")
    for i in range(4): A(f"v_mov_b32 v{ONESV+i}, s{sONES}")
    L = WF
    def x_read(t, vm):
        X = ACC[t % 2]
        ba, bb = BUF[2*t], BUF[2*t+1]
        o = [f"v_mov_b32 v2, {ba*32768}", f"v_mov_b32 v3, {bb*32768}", "v_cndmask_b32 v2, v2, v3, vcc"]
        o += [f"v_add_u32 v{T+8+k}, v2, v{T+4+k}" for k in range(4)]
        o.append(f"s_waitcnt vmcnt({vm})")
        o += [f"ds_read_b128 {vr(X+4*ks,4)}, v{T+8+(ks&3)} offset:{(ks&12)*64}" for ks in range(16)]
        return o
    def sumx(t):
        d = SUM + 4*(t % 2); X = ACC[t % 2]
        return [[f"{MF} {vr(d,4)}, {vr(ONESV,4)}, {vr(X+4*ks,4)}, {'0' if ks == 0 else vr(d,4)}"] for ks in range(16)]
    def gram(t):
        d = GR + 4*t
        return [[f"{MF} {vr(d,4)}, {ar((t*16+ks)*4,4)}, {ar((t*16+ks)*4,4)}, {'0' if ks == 0 else vr(d,4)}"] for ks in range(16)]
    def ln_stream(t):
        X = ACC[t % 2]; mu = MU
        o = [f"v_mul_f32 v{mu}, {hex(f32bits(-1.0/512))}, v{SUM+4*(t%2)}"]
        for b in range(16):
            tb_ = L + 8*(b % 2)
            for i in range(4):
                o.append(f"v_lshlrev_b32 v{tb_+2*i}, 16, v{X+4*b+i}"); o.append(f"v_and_b32 v{tb_+2*i+1}, 0xffff0000, v{X+4*b+i}")
            for i in range(8): o.append(f"v_add_f32 v{tb_+i}, v{tb_+i}, v{mu}")
            for i in range(4): o.append(f"v_cvt_pk_bf16_f32 v{X+4*b+i}, v{tb_+2*i}, v{tb_+2*i+1}")
            for i in range(4): o.append(f"v_accvgpr_write_b32 a{(t*16+b)*4+i}, v{X+4*b+i}")
        return o
    def interleave(main, sides):
        n = len(main)
        ins = {}
        for f0, f1, items in sides:
            for k, it in enumerate(items):
                p = int(n*(f0 + (f1-f0)*(k+0.5)/len(items)))
                ins.setdefault(p, []).extend(it)
        for i, x in enumerate(main):
            for y in ins.get(i, []): A(y)
            A(x)
    for x in x_read(0, 16): A(x)
    A("s_waitcnt lgkmcnt(0)")
    stamp(A, 2)
    r4 = x_round(4)
    for k, it in enumerate(sumx(0)):
        for x in it: A(x)
        if k % 2 == 0:
            for x in r4[k//2]: A(x)
    for x in x_read(1, 8): A(x)
    stamp(A, 3)
    w03 = [it for n in range(4) for it in gw_slot(n)]
    interleave(ln_stream(0), [(0.10, 0.11, [["s_waitcnt lgkmcnt(0)", "s_barrier"]]), (0.12, 0.45, x_round(5) + x_round(6)), (0.45, 0.98, w03), (0.5, 0.9, sumx(1))])
    for x in x_read(2, 24): A(x)
    stamp(A, 4)
    interleave(ln_stream(1), [(0.05, 0.45, gram(0)), (0.15, 0.16, [["s_waitcnt lgkmcnt(0)"]]), (0.17, 0.4, x_round(7)), (0.5, 0.9, sumx(2))])
    for x in x_read(3, 0): A(x)
    w46 = [it for n in range(4, 7) for it in gw_slot(n)]
    interleave(ln_stream(2), [(0.05, 0.45, gram(1)), (0.15, 0.16, [["s_waitcnt lgkmcnt(0)", "s_barrier"]]), (0.17, 0.7, w46), (0.5, 0.9, sumx(3))])
    stamp(A, 5)
    interleave(ln_stream(3), [(0.05, 0.45, gram(2))])
    A("s_nop 1")
    for it in gram(3):
        for x in it: A(x)
    def extract(t):
        g = GR + 4*t; D, D2 = L, L+1
        A(f"v_cndmask_b32 v{D}, 0, v{g}, s[{sMK}:{sMK+1}]")
        for i in range(1, 4): A(f"v_cndmask_b32 v{D}, v{D}, v{g+i}, s[{sMK+2*i}:{sMK+2*i+1}]")
        A(f"v_mov_b32 v{D2}, v{D}\ns_nop 1\nv_permlane16_swap_b32 v{D}, v{D2}\nv_add_f32 v{D}, v{D}, v{D2}")
        A(f"v_mov_b32 v{D2}, v{D}\ns_nop 1\nv_permlane32_swap_b32 v{D}, v{D2}\nv_add_f32 v{D}, v{D}, v{D2}")
        A(f"v_mov_b32 v{D2}, {hex(f32bits(1e-5))}\nv_fmac_f32 v{D2}, {hex(f32bits(1.0/512))}, v{D}")
        A(f"v_rsq_f32 v{RSTD+t}, v{D2}")
    for t in range(4): extract(t)
    A(f"s_cmp_eq_u32 s{sTYPE}, 0\ns_cbranch_scc1 K1_START2_Q\ns_branch K1_START2_G")

    def epilogue_ops(ty, acc):
        ops = []
        blk = lambda nb, t: acc + (nb*4 + t)*4
        oq = 0
        def store(q, vo, off): return f"buffer_store_dwordx4 {vr(OUT+4*q,4)}, v{vo}, s[{S_OUT}:{S_OUT+3}], s{sOB} offen offset:{off}{store_flags}"
        if ty in 'QK':
            for pr in range(2):
                for t in range(4):
                    for h in range(2):
                        b = blk(2*pr+h, t)
                        if ty == 'Q':
                            for i in range(4): ops.append(f"v_mul_f32 v{b+i}, v{b+i}, v{SC+t}")
                        ops.append(f"v_cvt_pk_bf16_f32 v{OUT+4*oq+2*h}, v{b}, v{b+1}")
                        ops.append(f"v_cvt_pk_bf16_f32 v{OUT+4*oq+2*h+1}, v{b+2}, v{b+3}")
                    ops.append(store(oq, VO+t, pr*1024)); oq = (oq+1) % 3
        elif ty == 'V':
            for nb in range(4):
                for v in range(2):
                    for h in range(2):
                        b = blk(nb, 2*v+h)
                        ops.append(f"v_cvt_pk_bf16_f32 v{OUT+4*oq+2*h}, v{b}, v{b+1}")
                        ops.append(f"v_cvt_pk_bf16_f32 v{OUT+4*oq+2*h+1}, v{b+2}, v{b+3}")
                    ops.append(store(oq, VO+v, nb*1024)); oq = (oq+1) % 3
        else:
            for t in range(4):
                for h in range(2):
                    g = blk(h, t); u = blk(h+2, t)
                    for i in range(4): ops.append(f"v_max_f32 v{g+i}, 0, v{g+i}")
                    for i in range(4): ops.append(f"v_mul_f32 v{u+i}, v{u+i}, v{SC+t}")
                    for i in range(4): ops.append(f"v_mul_f32 v{g+i}, v{g+i}, v{u+i}")
                    ops.append(f"v_cvt_pk_bf16_f32 v{OUT+4*oq+2*h}, v{g}, v{g+1}")
                    ops.append(f"v_cvt_pk_bf16_f32 v{OUT+4*oq+2*h+1}, v{g+2}, v{g+3}")
                ops.append(store(oq, VO, t*1024)); oq = (oq+1) % 3
        return ops

    def ob_calc(ty, su_reg_delta):
        o = [f"s_add_u32 s{sT1}, s{sSU}, {su_reg_delta}"] if su_reg_delta >= 0 else [f"s_sub_u32 s{sT1}, s{sSU}, {-su_reg_delta}"]
        if ty == 'G':
            o += [f"s_lshl_b32 s{sT1}, s{sT1}, 12", f"s_add_u32 s{sOB}, s{sOBASE}, s{sT1}"]
        else:
            hs = 19 if ty == 'Q' else 20
            ls = 12 if ty == 'V' else 11
            o += [f"s_lshr_b32 s{sOB}, s{sT1}, 1", f"s_lshl_b32 s{sOB}, s{sOB}, {hs}", f"s_and_b32 s{sT1}, s{sT1}, 1", f"s_lshl_b32 s{sT1}, s{sT1}, {ls}",
                  f"s_add_u32 s{sOB}, s{sOB}, s{sT1}", f"s_add_u32 s{sOB}, s{sOB}, s{sOBASE}"]
        return o

    def trreads(fi, nb, slot_in_half, ks):
        off = slot_in_half*16384 + ks*4096
        return [f"ds_read_b64_tr_b16 {vr(WF+4*fi,2)}, v{TRA+2*nb} offset:{off}",
                f"ds_read_b64_tr_b16 {vr(WF+4*fi+2,2)}, v{TRA+2*nb+1} offset:{off}"]

    def c_round(r):
        return [[f"s_add_u32 m0, s{sSTG}, {98304 + (r%2)*32768 + j*1024}", f"s_add_u32 s{sT0}, s{sROW}, {j*8192 + r*128}",
                 f"buffer_load_dwordx4 v{T+(j&1)}, s[{S_ACT}:{S_ACT+3}], s{sT0} offen lds"] for j in range(8)]
    def c_reads(r):
        return [f"ds_read_b128 {ar((t*16+2*r+k2)*4, 4)}, v{T+2+k2} offset:{(r%2)*32768 + t*2048}" for t in range(4) for k2 in range(2)]

    def body(ty, par, first=False):
        acc = ACC[par]; old = ACC[1-par]
        cs, ss, _ = dma_consts(ty)
        gaps = {}
        def G(q, m): return gaps.setdefault((q, m), {'mem': [], 'other': []})
        def room(q, m):
            g = G(q, m); return 2 - len(g['mem']) - len(g['other'])
        prew = {}
        if not first:
            epi = epilogue_ops(ty, old)
            for q in range(4):
                G(q, 0)['other'] += ["s_waitcnt vmcnt(20)", "s_barrier"]
                tgt = (4*par + q + 7) % 8
                trip = dma_slot(ty, 1 if q == 0 else 2, (q+3) % 4, tgt)
                if q == 1:
                    G(q, 1)['other'] += [f"s_add_u32 s{sT1}, s{sSU}, 2", f"s_cmp_ge_u32 s{sT1}, s{sEND}"]
                    G(q, 2)['other'] += [f"s_cselect_b32 s{S_WA+2}, 0, s{S_WA+2}", f"s_cselect_b32 s{S_WB+2}, 0, s{S_WB+2}"]
                for j, tr in enumerate(trip):
                    m = 8 + 12*j + 1
                    G(q, m)['other'] += tr[:2]
                    G(q, m+1)['mem'] += [tr[2]]
            oc = ob_calc(ty, -1)
            pos = [(0,1),(0,2),(0,4),(0,5)]
            k = 0
            for p in pos:
                while room(*p) > 0 and k < len(oc): G(*p)['other'].append(oc[k]); k += 1
            assert k == len(oc)
        for nb in range(4):
            m = 16 + 4*nb + 4
            G(3, m)['other'] += [f"v_xor_b32 v{TRA+2*nb}, 0x10000, v{TRA+2*nb}", f"v_xor_b32 v{TRA+2*nb+1}, 0x10000, v{TRA+2*nb+1}"]
        if not first:
            slots = [(q, m) for q in range(4) for m in range(64) if m % 4 != 3 and (q, m) >= (0, 6)]
            cap = [(s_, room(*s_)) for s_ in slots]
            tot = sum(c for _, c in cap)
            step = max(1.0, 0.8*tot/len(epi))
            flat = [s_ for s_, c in cap for _ in range(c)]
            idx = 0.0
            for op in epi:
                s_ = flat[int(idx)]
                if op.startswith('buffer_store'):
                    i2 = int(idx)
                    while True:
                        s_ = flat[i2]
                        g = G(*s_)
                        if not g['mem'] and not g['other']: break
                        i2 += 1
                    idx = max(idx, i2)
                    G(*s_)['mem'].append(op)
                else:
                    G(*s_)['other'].append(op)
                idx += step
        else:
            seq = ['R0']*8 + ['W0']*4 + ['R1']*8 + ['W1']*4
            def vm(tag): return len(seq) - 1 - max(i for i, e in enumerate(seq) if e == tag)
            def put_triples(q, m0, trips, tag):
                m = m0
                for tr in trips:
                    G(q, m)['other'] += tr[:2]
                    m2 = m + 1 if (m + 1) % 4 != 3 else m + 2
                    G(q, m2)['mem'].append(tr[2]); seq.append(tag)
                    m = m2
                    if len(G(q, m)['other']) >= 1 or True:
                        pass
                return m
            for h in range(8):
                q = h // 2; base = 32*(h % 2)
                if h >= 1: prew[(q, base)] = ["s_waitcnt lgkmcnt(2)"]
                need = None
                if h == 1: need = 'W1'
                elif h in (2, 4, 6): need = f'W{q+1}'
                if need: G(q, base)['other'] += [f"s_waitcnt vmcnt({vm(need)})", "s_barrier"]
                if h == 7: G(q, base)['other'] += ["s_barrier"]
                m = base + 1
                if h + 2 <= 7: m = put_triples(q, m, c_round(h+2), f'R{h+2}')
                if h <= 3: m = put_triples(q, m, dma_slot(ty, (h+2)//4, (h+2) % 4, h+2), f'W{h+2}')
                if h == 7:
                    for n in range(6, 11): m = put_triples(q, m, dma_slot(ty, n//4, n % 4, n % 8), f'W{n}')
                    assert m < 64, m
                if h == 4:
                    to = touch_ops(ty)
                    for k, x in enumerate(to):
                        if x.startswith('buffer'): seq.append('T')
                        G(q, base + 16 + (k//4)*1 + (1 if (base+16+(k//4)) % 4 == 3 else 0))['other'].append(x)
                if h + 1 <= 7:
                    mm = base + 24
                    prew[(q, mm)] = [f"s_waitcnt vmcnt({vm(f'R{h+1}')})"]
                    rds = c_reads(h+1)
                    for k, p in enumerate((mm, mm+1, mm+2, mm+4)):
                        G(q, p)['mem'] += rds[2*k:2*k+2]
        G(3, 61)['other'] += [f"s_add_u32 s{sSU}, s{sSU}, 1", f"s_add_u32 s{sDMA}, s{sDMA}, {cs}"]
        G(3, 62)['other'] += [f"s_mov_b32 s{S_OUT+2}, {WS_USED}", f"s_cmp_ge_u32 s{sSU}, s{sEND}"]
        for q in range(4):
            for ks in range(4):
                for nb in range(4):
                    fi = (ks % 2)*4 + nb
                    grp = ks*4 + nb
                    if grp % 2 == 0: A("s_waitcnt lgkmcnt(12)")
                    for t in range(4):
                        m = grp*4 + t
                        for x in prew.get((q, m), []): A(x)
                        d = acc + (nb*4+t)*4
                        kk = q*4 + ks
                        c = "0" if kk == 0 else vr(d, 4)
                        w = vr(WF+4*fi, 4); a = ar((t*16+kk)*4, 4)
                        A(f"{MF} {vr(d,4)}, {a}, {w}, {c}" if ty == 'V' else f"{MF} {vr(d,4)}, {w}, {a}, {c}")
                        if t == 3:
                            if ks < 2: rd = trreads(fi, nb, q, ks+2)
                            else: rd = trreads(fi, nb, (q+1) % 4, ks-2)
                            for x in rd: A(x)
                        g = G(q, m)
                        for x in g['mem']: A(x)
                        for x in g['other']: A(x)

    for ty in 'QKVG':
        if ty in 'KV':
            A.label(f"K1_PRO_{ty}")
            A(f"v_lshrrev_b32 v4, 3, v0\nv_and_b32 v5, 7, v0\nv_lshrrev_b32 v6, 4, v0\nv_xor_b32 v5, v5, v6")
            A(f"v_lshlrev_b32 v4, 10, v4\nv_lshl_add_u32 v{T}, v5, 4, v4\nv_xor_b32 v{T+1}, 64, v{T}")
            for it in c_round(0) + dma_slot(ty, 0, 0, 0) + c_round(1) + dma_slot(ty, 0, 1, 1):
                for x in it: A(x)
            stamp(A, 1)
            A(f"v_and_b32 v4, 15, v0\nv_lshrrev_b32 v5, 1, v4\nv_xor_b32 v5, v5, v1\nv_lshlrev_b32 v4, 7, v4\nv_lshl_add_u32 v4, v5, 4, v4")
            A(f"s_add_u32 s{sT1}, s{sSTG}, 98304\nv_add_u32 v{T+2}, s{sT1}, v4\nv_xor_b32 v{T+3}, 64, v{T+2}")
            A("s_waitcnt vmcnt(12)\ns_barrier")
            stamp(A, 2)
            for x in c_reads(0): A(x)
            for ks in range(2):
                for nb in range(4):
                    for x in trreads(ks*4+nb, nb, 0, ks): A(x)
            body(ty, 0, first=True)
            stamp(A, 6)
            A(f"s_branch K1_MID_{ty}")
        else:
            if ty == 'G':
                A.label("K1_WPRE_G")
                wpre('G', range(7))
            A.label(f"K1_START2_{ty}")
            for x in touch_ops(ty): A(x)
            if ty == 'Q':
                for t in range(4): A(f"v_mul_f32 v{SC+t}, {hex(f32bits(CSCALE))}, v{RSTD+t}")
            if ty == 'G':
                for t in range(4): A(f"v_mul_f32 v{SC+t}, v{RSTD+t}, v{RSTD+t}")
            A("s_waitcnt vmcnt(14)\ns_barrier")
            stamp(A, 6)
            for ks in range(2):
                for nb in range(4):
                    for x in trreads(ks*4+nb, nb, 0, ks): A(x)
        A(".p2align 6")
        A.label(f"K1_LOOP_{ty}")
        body(ty, 0)
        A(f"s_cbranch_scc1 K1_DRAIN0_{ty}")
        A.label(f"K1_MID_{ty}")
        body(ty, 1)
        A(f"s_cbranch_scc0 K1_LOOP_{ty}")
        for par in (1, 0):
            A.label(f"K1_DRAIN{par}_{ty}")
            for x in ob_calc(ty, -1): A(x)
            A("s_nop 1")
            for x in epilogue_ops(ty, ACC[par]): A(x)
            if ty == 'Q':
                A(f"s_cmp_eq_u32 s{sJOB2}, 1\ns_cbranch_scc0 K1_FIN")
                A(f"s_mov_b32 s{sJOB2}, 2\ns_mov_b32 s{sSU}, 42\ns_mov_b32 s{sEND}, 43")
                A("s_waitcnt vmcnt(0) lgkmcnt(0)\ns_barrier\ns_branch K1_SETUP_G")
            else:
                A("s_branch K1_FIN")
    A.label("K1_FIN")
    if asmlib.STAMP:
        A("s_waitcnt vmcnt(0)")
        stamp_flush(A, 0, 8, P_WS, sW)
    A.label("K1_END")
    A("s_endpgm")
    return dict(name="k1_kernel", vgpr=248+256, accum=248, sgpr=96, grid=256, block=256, lds=163840)
```

```python
from asmlib import *
import asmlib
from k1 import QF_BASE, KV_BASE, A3_BASE, A3_TB64, WS_USED, MF, f32bits

def gen_k2(A, store_flags="", thr=2.0**30):
    O = 0; S01 = 128; S23 = [144, 160]; P01 = [176, 184]; P23 = 192; CX = 200; E = 232; LS = 236; L = 240
    VK = 244; VV = 245; VD = 246; TMP = 247
    AQ = 0; KF = 64; VF = 96
    S_KV, S_WS = 8, 12
    sW, sH, sI, sT0, sT1, sOFF, sHALF, sCNT, sTHR, sNEG = 16, 17, 18, 19, 20, 21, 22, 23, 24, 25
    sMK = 26
    sRET = 34
    sP = 36; sOHI = 37; sOLO = 38
    P_WS = 40
    def Sreg(qp, kb, par): return (S01 + (qp*2+kb)*4) if qp < 2 else (S23[par] + ((qp-2)*2+kb)*4)
    def Preg(qp, par): return (P01[par] + qp*4) if qp < 2 else (P23 + (qp-2)*4)
    def Oreg(db, qb): return O + (db*4+qb)*4
    def CXr(qp, kb): return CX + (qp*2+kb)*4
    stubs = []
    uid = [0]
    def U(p): uid[0] += 1; return f"K2_{p}_{uid[0]}"

    A(".globl k2_kernel\n.p2align 8\n.type k2_kernel,@function")
    A.label("k2_kernel")
    A("s_cmp_ge_u32 s2, 256\ns_cbranch_scc1 K2_END")
    stamp(A, 0)
    A(f"s_load_dwordx2 s[{P_WS}:{P_WS+1}], s[0:1], 96")
    A(f"v_lshrrev_b32 v{TMP}, 6, v0\nv_and_b32 v{TMP+1}, 63, v0\ns_nop 0\nv_readfirstlane_b32 s{sW}, v{TMP}")
    A(f"s_and_b32 s{sT0}, s2, 7\ns_lshr_b32 s{sT1}, s2, 3\ns_lshr_b32 s{sI}, s{sT1}, 2\ns_and_b32 s{sT1}, s{sT1}, 3\ns_lshl_b32 s{sH}, s{sT0}, 2\ns_add_u32 s{sH}, s{sH}, s{sT1}")
    A(f"s_mov_b32 s{S_KV+3}, 0x00020000\ns_mov_b32 s{S_WS+3}, 0x00020000\ns_mov_b32 s{S_WS+2}, {WS_USED}")
    A(f"s_lshl_b32 s{sT0}, s{sI}, 16\ns_sub_u32 s{S_KV+2}, 0x108000, s{sT0}")
    A(f"s_mov_b32 s{sTHR}, {hex(f32bits(thr))}\ns_mov_b32 s{sNEG}, 0xff800000")
    LN = TMP+1
    A(f"v_lshlrev_b32 v{VK}, 4, v{LN}\nv_add_u32 v{VV}, 0x10000, v{VK}")
    A(f"s_lshl_b32 s{sT0}, s{sW}, 12\nv_add_u32 v{VD}, s{sT0}, v{VK}")
    A(f"s_and_b32 s{sT0}, s{sW}, 1\ns_lshl_b32 s{sHALF}, s{sT0}, 12\ns_lshr_b32 s{sT0}, s{sW}, 1\ns_lshl_b32 s{sT1}, s{sT0}, 16\ns_add_u32 s{sHALF}, s{sHALF}, s{sT1}")
    A(f"s_lshl_b32 s{sT0}, s{sT0}, 15\ns_sub_u32 s{sOFF}, 0x8000, s{sT0}")
    A("s_waitcnt lgkmcnt(0)")
    stamp(A, 5)
    A(f"s_mov_b32 s{S_WS}, s{P_WS}\ns_mov_b32 s{S_WS+1}, s{P_WS+1}")
    A(f"s_lshl_b32 s{sT0}, s{sH}, 20\ns_add_u32 s{sT0}, s{sT0}, {KV_BASE-0x8000}\ns_add_u32 s{S_KV}, s{P_WS}, s{sT0}\ns_addc_u32 s{S_KV+1}, s{P_WS+1}, 0")
    A(f"s_lshl_b32 s{sT0}, s{sH}, 19\ns_lshl_b32 s{sT1}, s{sW}, 13\ns_add_u32 s{sT0}, s{sT0}, s{sT1}\ns_add_u32 s{sT0}, s{sT0}, {QF_BASE}")
    A(f"s_lshl_b32 s{sT1}, s{sI}, 15\ns_add_u32 s{sOLO}, s{sT0}, s{sT1}\ns_sub_u32 s{sOHI}, {15 << 15}, s{sT1}\ns_add_u32 s{sOHI}, s{sOHI}, s{sT0}")
    for qb in range(4):
        base = sOHI if qb < 2 else sOLO
        A(f"s_add_u32 s{sT0}, s{base}, {(qb%2)*4096}")
        for ds in range(4):
            A(f"buffer_load_dwordx4 {ar(AQ+(qb*4+ds)*4,4)}, v{VK}, s[{S_WS}:{S_WS+3}], s{sT0} offen offset:{ds*1024}")
    def dma_group(c):
        pre = [f"s_add_u32 m0, s{sHALF}, {(c%4)*8192}"]
        d = [f"buffer_load_dwordx4 v{VD}, s[{S_KV}:{S_KV+3}], s{sOFF} offen offset:{j*1024} lds" for j in range(4)]
        post = [f"s_add_u32 s{sOFF}, s{sOFF}, 16384"]
        if c % 4 == 3: post.append(f"s_xor_b32 s{sHALF}, s{sHALF}, 0x8000")
        return pre, d, post
    for c in range(8):
        pre, d, post = dma_group(c)
        for x in pre + ["s_nop 0"] + d + post: A(x)
    A(f"s_lshr_b32 s{sT0}, s{sW}, 1\ns_lshl_b32 s{sT1}, s{sI}, 1\ns_add_u32 s{sOLO}, s{sT1}, s{sT0}\ns_sub_u32 s{sOHI}, 30, s{sT1}\ns_add_u32 s{sOHI}, s{sOHI}, s{sT0}")
    A(f"s_mul_i32 s{sOLO}, s{sOLO}, {A3_TB64}\ns_mul_i32 s{sOHI}, s{sOHI}, {A3_TB64}")
    A(f"s_lshl_b32 s{sT0}, s{sH}, 14\ns_and_b32 s{sT1}, s{sW}, 1\ns_lshl_b32 s{sT1}, s{sT1}, 11\ns_add_u32 s{sT0}, s{sT0}, s{sT1}\ns_add_u32 s{sT0}, s{sT0}, {A3_BASE}")
    A(f"s_add_u32 s{sOLO}, s{sOLO}, s{sT0}\ns_add_u32 s{sOHI}, s{sOHI}, s{sT0}")
    A(f"v_and_b32 v{TMP+2}, 15, v{LN}\nv_lshrrev_b32 v{TMP+3}, 4, v{LN}\nv_lshlrev_b32 v{TMP+3}, 2, v{TMP+3}\nv_sub_u32 v{TMP+2}, v{TMP+2}, v{TMP+3}")
    for i in range(4): A(f"v_cmp_le_i32 s[{sMK+2*i}:{sMK+2*i+1}], {i}, v{TMP+2}")
    for r in list(range(O, O+128)) + list(range(CX, CX+32)) + list(range(LS, LS+8)): A(f"v_mov_b32 v{r}, 0")
    A(f"v_mov_b32 v{TMP+8}, s{sNEG}")
    NEGV = TMP+8

    def Dpatch(q0):
        o = []
        for i in range(4): o.append(f"v_cndmask_b32 v{CXr(q0,0)+i}, v{NEGV}, v{CXr(q0,0)+i}, s[{sMK+2*i}:{sMK+2*i+1}]")
        for i in range(4): o.append(f"v_mov_b32 v{CXr(q0,1)+i}, v{NEGV}")
        for i in range(4): o.append(f"v_cndmask_b32 v{CXr(q0+1,1)+i}, v{NEGV}, v{CXr(q0+1,1)+i}, s[{sMK+2*i}:{sMK+2*i+1}]")
        return o
    def Fpatch(q0): return [f"v_mov_b32 v{CXr(q0,0)+i}, v{NEGV}" for i in range(16)]
    def patch(q0, j):
        o = []
        lD, lE = U("PD"), U("PE")
        o.append(f"s_cmp_gt_u32 s{sW}, {j}"); o.append(f"s_cbranch_scc1 {lE}")
        if j > 0:
            o.append(f"s_cmp_eq_u32 s{sW}, {j}"); o.append(f"s_cbranch_scc1 {lD}")
            o += Fpatch(q0); o.append(f"s_branch {lE}")
            o.append(lD + ":")
        o += Dpatch(q0)
        o.append(lE + ":")
        o.append("s_nop 1")
        return o

    def kread(f, unit4): return f"ds_read_b128 {ar(KF+4*f,4)}, v{VK} offset:{unit4*8192 + f*1024}"
    def vread(f, slot4): return f"ds_read_b128 {ar(VF+4*f,4)}, v{VV} offset:{slot4*8192 + f*1024}"

    def sm_gaps(qs, srcpar, dstpar, look, ladd):
        g = [[] for _ in range(32)]
        lsb = LS + (0 if qs[0] == 0 else 2)
        src = lambda k: Sreg(qs[k//4], (k % 4)//2, srcpar) + 2*(k % 2)
        for k in range(8):
            if k < 7: a, b = src(k+1), src(k+1)+1
            elif look: a, b = look
            else: a = None
            en = E + 2*((k+1) % 2); ec = E + 2*(k % 2)
            if a is not None:
                g[4*k].append(f"v_exp_f32 v{en}, v{a}"); g[4*k+2].append(f"v_exp_f32 v{en+1}, v{b}")
            ls = lsb + k//4
            if k % 4 == 0:
                g[4*k+1].append(f"v_add_f32 v{ls}, v{ec}, v{ec+1}")
                lr, lsr = ladd[k//4]
                g[4*k+1].append(f"v_add_f32 v{lr}, v{lr}, v{lsr}")
            else:
                g[4*k+1].append(f"v_add_f32 v{ls}, v{ls}, v{ec}"); g[4*k+1].append(f"v_add_f32 v{ls}, v{ls}, v{ec+1}")
            g[4*k+3].append(f"v_cvt_pk_bf16_f32 v{Preg(qs[k//4], dstpar) + k % 4}, v{ec}, v{ec+1}")
        g[30].append(f"v_max_f32 v{TMP}, v{lsb}, v{lsb+1}")
        g[31].append(f"v_cmp_lt_f32 vcc, s{sTHR}, v{TMP}")
        return g

    def rescale(rows, init=False):
        o = ["s_nop 7"]
        D, D2, F = TMP+1, TMP+2, TMP+3
        for r in rows:
            s0 = r['S']
            o.append(f"v_max3_f32 v{D}, v{s0}, v{s0+1}, v{s0+2}")
            o.append(f"v_max3_f32 v{D}, v{D}, v{s0+3}, v{s0+4}")
            o.append(f"v_max3_f32 v{D}, v{D}, v{s0+5}, v{s0+6}")
            o.append(f"v_max_f32 v{D}, v{D}, v{s0+7}")
            o += [f"v_mov_b32 v{D2}, v{D}", "s_nop 1", f"v_permlane16_swap_b32 v{D}, v{D2}", f"v_max_f32 v{D}, v{D}, v{D2}"]
            o += [f"v_mov_b32 v{D2}, v{D}", "s_nop 1", f"v_permlane32_swap_b32 v{D}, v{D2}", f"v_max_f32 v{D}, v{D}, v{D2}"]
            o.append(f"v_ceil_f32 v{D}, v{D}")
            if not init:
                o.append(f"v_max_f32 v{D}, 0, v{D}")
                o.append(f"v_exp_f32 v{F}, -v{D}")
            for b in [s0] + r['subs']:
                for i in range(8): o.append(f"v_sub_f32 v{b+i}, v{b+i}, v{D}")
            if not init:
                qb = r['qb']
                for db in range(8):
                    for i in range(4): o.append(f"v_mul_f32 v{Oreg(db,qb)+i}, v{Oreg(db,qb)+i}, v{F}")
                o.append(f"v_mul_f32 v{L+qb}, v{L+qb}, v{F}")
                for pr in r.get('Pscale', []):
                    o += [f"v_lshlrev_b32 v{D2}, 16, v{pr}", f"v_and_b32 v{pr}, 0xffff0000, v{pr}", f"v_mul_f32 v{D2}, v{D2}, v{F}", f"v_mul_f32 v{pr}, v{pr}, v{F}",
                          f"v_cvt_pk_bf16_f32 v{pr}, v{D2}, v{pr}"]
            if r.get('P') is not None:
                ls = r['ls']
                for k in range(4):
                    o += [f"v_exp_f32 v{E}, v{s0+2*k}", f"v_exp_f32 v{E+1}, v{s0+2*k+1}", "s_nop 0"]
                    if k == 0: o.append(f"v_add_f32 v{ls}, v{E}, v{E+1}")
                    else: o += [f"v_add_f32 v{ls}, v{ls}, v{E}", f"v_add_f32 v{ls}, v{ls}, v{E+1}"]
                    o.append(f"v_cvt_pk_bf16_f32 v{r['P']+k}, v{E}, v{E+1}")
        return o
    def relook(look):
        return [f"v_exp_f32 v{E}, v{look[0]}", f"v_exp_f32 v{E+1}, v{look[1]}", "s_nop 1"] if look else ["s_nop 1"]

    def check_site(code):
        ls, lb = U("SLOW"), U("BACK")
        A(f"s_cbranch_vccnz {ls}")
        A.label(lb)
        stubs.append([ls + ":"] + code + [f"s_branch {lb}"])

    def emit_half(mf, gaps, extra, waits):
        for g in range(32):
            if g in waits: A(waits[g])
            m, rd = mf[g]
            if m: A(m)
            if rd: A(rd)
            ex = extra.get(g, ([], []))
            for x in ex[0]: A(x)
            for x in ex[1]: A(x)
            for x in gaps[g]: A(x)

    def H1(par, mq, ms, ku, toggleK=None, vm=None, dmas=(), noqk=False, nosm=False, last=False):
        n = 1 - par
        mf = []
        if noqk: mf = [(None, None)]*32
        elif mq == 4:
            for f in range(8):
                kb, ds = f//4, f % 4
                for qp in range(4):
                    d = Sreg(qp, kb, n)
                    c = vr(CXr(qp, kb), 4) if ds == 0 else vr(d, 4)
                    mf.append((f"{MF} {vr(d,4)}, {ar(KF+4*f,4)}, {ar(AQ+(qp*4+ds)*4,4)}, {c}", kread(f, ku[0]) if qp == 3 else None))
        else:
            for j in range(16):
                sel, f = j//8, j % 8
                kb, ds = f//4, f % 4
                for qb in range(2):
                    qp = 2*sel + qb
                    d = Sreg(qp, kb, n)
                    c = vr(CXr(qp, kb), 4) if ds == 0 else vr(d, 4)
                    rd = None
                    if qb == 1 and not (last and sel == 1): rd = kread(f, ku[sel])
                    mf.append((f"{MF} {vr(d,4)}, {ar(KF+4*f,4)}, {ar(AQ+(qb*4+ds)*4,4)}, {c}", rd))
        look = None if noqk else (Sreg(0, 0, n), Sreg(0, 0, n)+1)
        if nosm:
            gaps = [[] for _ in range(32)]
        else:
            gaps = sm_gaps((2, 3), par, par, look, [(L+0, LS+0), (L+1, LS+1)])
        extra = {}
        waits = {}
        if not noqk:
            waits[0] = "s_waitcnt lgkmcnt(8)"
            if mq == 2: waits[16] = "s_waitcnt lgkmcnt(4)"; waits[24] = "s_waitcnt lgkmcnt(4)"
        if vm is not None:
            extra[0] = ([], [f"s_waitcnt vmcnt({vm})", "s_barrier"])
        if toggleK is not None:
            gi = 0 if toggleK == 0 else 16
            e = extra.setdefault(gi, ([], [])); e[1].append(f"v_xor_b32 v{VK}, 0x8000, v{VK}")
        place_dmas(extra, dmas)
        emit_half(mf, gaps, extra, waits)
        if not nosm:
            rows = []
            for qq in range(2):
                qp = 2 + qq
                r = dict(S=Sreg(qp, 0, par), P=Preg(qp, par), ls=LS+2+qq)
                if ms == 4:
                    r['qb'] = qp
                    r['subs'] = ([Sreg(qp, 0, n), CXr(qp, 0)] if (mq == 4 and not noqk) else [])
                else:
                    r['qb'] = qq
                    r['subs'] = [CXr(qq, 0), CXr(qp, 0)] + ([] if noqk else [Sreg(qq, 0, n), Sreg(qp, 0, n)])
                    r['Pscale'] = [Preg(qq, par)+k for k in range(4)]
                rows.append(r)
            check_site(rescale(rows) + relook(look))

    def place_dmas(extra, dmas):
        for c, g0 in dmas:
            pre, d, post = dma_group(c)
            e = extra.setdefault(g0, ([], [])); e[1].extend(pre)
            for j in range(4):
                e = extra.setdefault(g0+1+4*j if g0+1+4*j < 32 else 31, ([], [])); e[0].append(d[j])
            e = extra.setdefault(min(31, g0+2+12), ([], [])); e[1].extend(post)

    def H2(par, mp, mnext, vu, toggleV=None, dmas=(), nopv=False, nosm=False):
        n = 1 - par
        mf = []
        if nopv: mf = [(None, None)]*32
        elif mp == 4:
            for db in range(8):
                for qp in range(4):
                    d = Oreg(db, qp)
                    mf.append((f"{MF} {vr(d,4)}, {ar(VF+4*db,4)}, {vr(Preg(qp,par),4)}, {vr(d,4)}", vread(db, vu[0]) if qp == 3 else None))
        else:
            for j in range(16):
                sel, db = j//8, j % 8
                for qb in range(2):
                    d = Oreg(db, qb)
                    rd = None
                    if qb == 1 and not (nosm and sel == 1): rd = vread(db, vu[sel])
                    mf.append((f"{MF} {vr(d,4)}, {ar(VF+4*db,4)}, {vr(Preg(2*sel+qb,par),4)}, {vr(d,4)}", rd))
        look = (Sreg(2, 0, n), Sreg(2, 0, n)+1)
        lt = (L+2, L+3) if mp == 4 else (L+0, L+1)
        if nosm:
            gaps = [[] for _ in range(32)]
            gaps[1] = [f"v_add_f32 v{lt[0]}, v{lt[0]}, v{LS+2}", f"v_add_f32 v{lt[1]}, v{lt[1]}, v{LS+3}"]
        else:
            gaps = sm_gaps((0, 1), n, n, look, [(lt[0], LS+2), (lt[1], LS+3)])
        extra = {}
        waits = {}
        if not nopv:
            waits[0] = "s_waitcnt lgkmcnt(8)" if not nosm else "s_waitcnt lgkmcnt(0)"
            if mp == 2: waits[16] = "s_waitcnt lgkmcnt(4)"; waits[24] = "s_waitcnt lgkmcnt(4)" if not nosm else "s_waitcnt lgkmcnt(0)"
        if toggleV is not None:
            gi = 0 if toggleV == 0 else 16
            e = extra.setdefault(gi, ([], [])); e[1].append(f"v_xor_b32 v{VV}, 0x8000, v{VV}")
        place_dmas(extra, dmas)
        emit_half(mf, gaps, extra, waits)
        if not nosm and not nopv:
            rows = []
            for qb in range(2):
                r = dict(S=Sreg(qb, 0, n), P=Preg(qb, n), ls=LS+qb, qb=qb, subs=[CXr(qb, 0)])
                if mnext == 2: r['subs'] += [Sreg(qb+2, 0, n), CXr(qb+2, 0)]
                rows.append(r)
            check_site(rescale(rows) + relook(look))

    def hook(cond_reg, val, code):
        ls, lb = U("HOOK"), U("HB")
        A(f"s_cmp_eq_u32 s{cond_reg}, {val}\ns_cbranch_scc1 {ls}")
        A.label(lb)
        stubs.append([ls + ":"] + code + [f"s_branch {lb}"])

    hook(sI, 0, patch(2, 0))
    stamp(A, 6)
    A("s_waitcnt vmcnt(20)\ns_barrier")
    stamp(A, 1)
    for f in range(8): A(kread(f, 0))
    for f in range(8): A(vread(f, 2))
    H1(1, 4, 4, [1], nosm=True)
    rows = []
    for qp in range(4): rows.append(dict(S=Sreg(qp, 0, 0), subs=[CXr(qp, 0)], P=None))
    for x in rescale(rows, init=True): A(x)
    A(f"v_exp_f32 v{E}, v{Sreg(0,0,0)}\nv_exp_f32 v{E+1}, v{Sreg(0,0,0)+1}")
    H2(1, 4, 4, None, nopv=True)
    stamp(A, 2)
    A(f"s_mov_b32 s{sCNT}, s{sI}")
    A("s_waitcnt lgkmcnt(0)")

    def period44(r, pre=None):
        par = r % 2
        if pre: pre()
        ku = (r+2) % 4; vu = (r+1+2) % 4
        H1(par, 4, 4, [ku], toggleK=0 if ku == 0 else None, vm=16, dmas=[(r, 8)])
        H2(par, 4, 4, [vu], toggleV=0 if vu == 0 else None)

    A(f"s_cmp_eq_u32 s{sCNT}, 0\ns_cbranch_scc1 K2_SPECIAL")
    A(".p2align 6")
    A.label("K2_LOOPA")
    for r in range(4):
        period44(r, pre=(lambda: hook(sCNT, 1, patch(2, 0))) if r == 3 else None)
    A(f"s_sub_u32 s{sCNT}, s{sCNT}, 1\ns_cmp_lg_u32 s{sCNT}, 0\ns_cbranch_scc1 K2_LOOPA")
    A.label("K2_SPECIAL")
    for r in range(3):
        period44(r, pre=lambda: [A(x) for x in patch(2, r+1)])
    for i in range(16): A(f"v_mov_b32 v{CXr(2,0)+i}, v{CXr(0,0)+i}")
    hook(sI, 7, patch(0, 0) + patch(2, 1))
    A("s_nop 1")
    H1(1, 2, 4, [1, 2], vm=16, dmas=[(3, 8)])
    H2(1, 4, 2, [2])
    stamp(A, 3)
    A(f"s_lshl_b32 s{sT0}, s{sI}, 1\ns_sub_u32 s{sCNT}, 14, s{sT0}")
    def period22(r, last_qk=False):
        par = r
        ku = [3, 0] if r == 0 else [1, 2]
        vu = [3, 0] if r == 0 else [1, 2]
        c0 = 2*r
        H1(par, 2, 2, ku, toggleK=1 if r == 0 else None, vm=12, dmas=[(c0, 8)], last=last_qk)
        H2(par, 2, 2, vu, toggleV=1 if r == 0 else None, dmas=[(c0+1, 8)])
    A(f"s_cmp_eq_u32 s{sCNT}, 0\ns_cbranch_scc1 K2_TAIL")
    A(".p2align 6")
    A.label("K2_LOOPB")
    period22(0)
    hook(sCNT, 1, patch(0, 0) + patch(2, 1))
    period22(1)
    A(f"s_sub_u32 s{sCNT}, s{sCNT}, 1\ns_cmp_lg_u32 s{sCNT}, 0\ns_cbranch_scc1 K2_LOOPB")
    A.label("K2_TAIL")
    for x in patch(0, 2) + patch(2, 3): A(x)
    H1(0, 2, 2, [3, 0], toggleK=None, vm=12, last=True)
    H2(0, 2, 2, [3, 0], toggleV=1)
    H1(1, 2, 2, None, noqk=True, vm=0)
    H2(1, 2, 2, [1, 2], nosm=True)
    stamp(A, 4)
    for qb in range(4):
        D, D2 = L+qb, TMP+1
        A(f"v_mov_b32 v{D2}, v{D}\ns_nop 1\nv_permlane16_swap_b32 v{D}, v{D2}\nv_add_f32 v{D}, v{D}, v{D2}")
        A(f"v_mov_b32 v{D2}, v{D}\ns_nop 1\nv_permlane32_swap_b32 v{D}, v{D2}\nv_add_f32 v{D}, v{D}, v{D2}")
        A(f"v_rcp_f32 v{D}, v{D}")
    A(f"v_and_b32 v{VK}, 0x3ff, v{VK}")
    oq = 0
    for qb in (2, 3, 0, 1):
        for ds in range(4):
            ob = S01 + 4*oq
            for h in range(2):
                b = Oreg(2*ds+h, qb)
                for i in range(4): A(f"v_mul_f32 v{b+i}, v{b+i}, v{L+qb}")
                A(f"v_cvt_pk_bf16_f32 v{ob+2*h}, v{b}, v{b+1}\nv_cvt_pk_bf16_f32 v{ob+2*h+1}, v{b+2}, v{b+3}")
            A(f"s_add_u32 s{sT0}, s{sOHI if qb < 2 else sOLO}, {ds*4096}")
            A(f"buffer_store_dwordx4 {vr(ob,4)}, v{VK}, s[{S_WS}:{S_WS+3}], s{sT0} offen offset:{(qb%2)*1024}{store_flags}")
            oq = (oq+1) % 4
    if asmlib.STAMP:
        A("s_waitcnt vmcnt(0)")
        stamp_flush(A, 1, 8, P_WS, sW)
    A.label("K2_END")
    A("s_endpgm")
    for st in stubs:
        for x in st: A(x)
    return dict(name="k2_kernel", vgpr=256+128, accum=256, sgpr=96, grid=256, block=256, lds=131072)
```

```python
from asmlib import *
import asmlib
from k1 import A3_BASE, A3_TB64, WS_USED, MF, f32bits
import math

def gen_k3(A, D=8):
    ACC = 0; ACT = 64; WF = ACT + 16*D; TRA = WF + 32; VW = TRA + 4; VL = VW + 4; XR = VL + 2; T = XR + 8
    assert T + 8 <= 256
    S_W, S_A, S_X, S_O = 8, 12, 16, 20
    sW, sT0, sT1, sTB, sNT, sWOFF, sAOFF, sM0 = 24, 25, 26, 27, 28, 29, 30, 31
    P_X, P_WO, P_WD, P_OUT, P_WS = 32, 34, 36, 38, 40
    NS = 43
    A(".globl k3_kernel\n.p2align 8\n.type k3_kernel,@function")
    A.label("k3_kernel")
    A("s_cmp_ge_u32 s2, 256\ns_cbranch_scc1 K3_END")
    stamp(A, 0)
    A(f"s_load_dwordx2 s[{P_X}:{P_X+1}], s[0:1], 0\ns_load_dwordx2 s[{P_WO}:{P_WO+1}], s[0:1], 40\ns_load_dwordx2 s[{P_WD}:{P_WD+1}], s[0:1], 72")
    A(f"s_load_dwordx2 s[{P_OUT}:{P_OUT+1}], s[0:1], 80\ns_load_dwordx2 s[{P_WS}:{P_WS+1}], s[0:1], 96")
    A(f"v_lshrrev_b32 v{T}, 6, v0\nv_and_b32 v{T+1}, 63, v0\ns_nop 0\nv_readfirstlane_b32 s{sW}, v{T}")
    LN = T+1
    A(f"s_and_b32 s{sT0}, s2, 7\ns_lshr_b32 s{sT1}, s2, 3\ns_lshr_b32 s{sNT}, s{sT1}, 2\ns_and_b32 s{sT1}, s{sT1}, 3\ns_lshl_b32 s{sTB}, s{sT0}, 2\ns_add_u32 s{sTB}, s{sTB}, s{sT1}")
    for r in (S_W, S_A, S_X, S_O): A(f"s_mov_b32 s{r+3}, 0x00020000")
    A(f"s_mov_b32 s{S_A+2}, {WS_USED}\ns_mov_b32 s{S_X+2}, 0x200000\ns_mov_b32 s{S_O+2}, 0x200000")
    A(f"s_mul_i32 s{sT0}, s{sW}, 43\ns_cmp_eq_u32 s{sW}, 3\ns_cselect_b32 s{sT0}, 128, s{sT0}")
    A(f"s_cmp_eq_u32 s{sW}, 3\ns_cselect_b32 s{sT1}, 0, s{sT0}\ns_lshl_b32 s{sWOFF}, s{sT1}, 15")
    A(f"s_lshl_b32 s{sT0}, s{sT0}, 12\ns_mul_i32 s{sAOFF}, s{sTB}, {A3_TB64}\ns_add_u32 s{sAOFF}, s{sAOFF}, s{sT0}\ns_add_u32 s{sAOFF}, s{sAOFF}, {A3_BASE}")
    A(f"s_lshl_b32 s{sM0}, s{sW}, 15")
    A(f"v_lshlrev_b32 v{VL}, 4, v{LN}")
    A(f"v_lshrrev_b32 v{T+2}, 3, v{LN}\nv_and_b32 v{T+3}, 7, v{LN}\nv_lshrrev_b32 v{T+4}, 4, v{LN}\nv_lshlrev_b32 v{T+4}, 1, v{T+4}\nv_xor_b32 v{T+3}, v{T+3}, v{T+4}")
    A(f"v_lshlrev_b32 v{T+5}, 10, v{T+2}\nv_lshl_add_u32 v{T+5}, v{T+3}, 4, v{T+5}\ns_lshl_b32 s{sT0}, s{sNT}, 7\nv_add_u32 v{VW}, s{sT0}, v{T+5}")
    for j in range(1, 4): A(f"v_add_u32 v{VW+j}, {j*7168}, v{VW}")
    A(f"v_and_b32 v{T+3}, 7, v{LN}\nv_lshlrev_b32 v{T+5}, 10, v{T+2}\nv_lshl_add_u32 v{T+5}, v{T+3}, 4, v{T+5}")
    A(f"s_lshl_b32 s{sT1}, s{sTB}, 16\ns_add_u32 s{sT0}, s{sT0}, s{sT1}\ns_lshl_b32 s{sT1}, s{sW}, 14\ns_add_u32 s{sT0}, s{sT0}, s{sT1}\nv_add_u32 v{VL+1}, s{sT0}, v{T+5}")
    A(f"v_lshrrev_b32 v{T+4}, 2, v{LN}\nv_lshlrev_b32 v{T+4}, 7, v{T+4}\nv_and_b32 v{T+5}, 3, v{LN}\nv_lshl_add_u32 v{T+4}, v{T+5}, 3, v{T+4}\nv_add_u32 v{T+4}, s{sM0}, v{T+4}\nv_and_b32 v{T+5}, 3, v{T+2}")
    for nb in range(4): A(f"v_xor_b32 v{T+6}, {nb}, v{T+5}\nv_lshl_add_u32 v{TRA+nb}, v{T+6}, 5, v{T+4}")
    A("s_waitcnt lgkmcnt(0)")
    A(f"s_cmp_eq_u32 s{sW}, 3\ns_cselect_b32 s{S_W}, s{P_WD}, s{P_WO}\ns_cselect_b32 s{S_W+1}, s{P_WD+1}, s{P_WO+1}\ns_mov_b32 s{sT0}, {4096*1024}\ns_cselect_b32 s{S_W+2}, {1376*1024}, s{sT0}")
    A(f"s_mov_b32 s{S_A}, s{P_WS}\ns_mov_b32 s{S_A+1}, s{P_WS+1}\ns_mov_b32 s{S_X}, s{P_X}\ns_mov_b32 s{S_X+1}, s{P_X+1}\ns_mov_b32 s{S_O}, s{P_OUT}\ns_mov_b32 s{S_O+1}, s{P_OUT+1}")
    def loads(s):
        sl = s % D
        pre = [f"s_add_u32 m0, s{sM0}, {sl*4096}", f"s_add_u32 s{sT0}, s{sWOFF}, {s*32768}", f"s_add_u32 s{sT1}, s{sAOFF}, {s*4096}"]
        w = [f"buffer_load_dwordx4 v{VW+j}, s[{S_W}:{S_W+3}], s{sT0} offen offset:{j*1024} lds" for j in range(4)]
        a = [f"buffer_load_dwordx4 {vr(ACT+16*sl+4*t,4)}, v{VL}, s[{S_A}:{S_A+3}], s{sT1} offen offset:{t*1024}" for t in range(4)]
        return pre, w + a
    def trr(s):
        o = []
        for nb in range(4):
            b = WF + 16*(s % 2) + 4*nb
            o.append(f"ds_read_b64_tr_b16 {vr(b,2)}, v{TRA+nb} offset:{(s%D)*4096}")
            o.append(f"ds_read_b64_tr_b16 {vr(b+2,2)}, v{TRA+nb} offset:{(s%D)*4096+2048}")
        return o
    for s in range(D-1):
        pre, ld = loads(s)
        for x in pre + ld: A(x)
    A(f"buffer_load_dwordx4 {vr(XR,4)}, v{VL+1}, s[{S_X}:{S_X+3}], 0 offen")
    A(f"s_mov_b32 s{sT0}, 8192\nbuffer_load_dwordx4 {vr(XR+4,4)}, v{VL+1}, s[{S_X}:{S_X+3}], s{sT0} offen")
    issued = [('W', s) for s in []]
    seq = []
    for s in range(D-1): seq += [('W', s)]*4 + [('A', s)]*4
    seq += [('X', 0)]*2
    def vm_for(items):
        last = max(i for i, e in enumerate(seq) if e in items)
        return len(seq) - 1 - last
    A(f"s_waitcnt vmcnt({vm_for([('W',0)])})")
    stamp(A, 1)
    for x in trr(0): A(x)
    for s in range(NS):
        if s == 21: stamp(A, 2)
        need = [('A', s)] + ([('W', s+1)] if s+1 < NS else [])
        A(f"s_waitcnt vmcnt({vm_for(need)}) lgkmcnt(0)")
        mem = trr(s+1) if s+1 < NS else []
        pre, ld = ([], [])
        if s + D - 1 < NS:
            pre, ld = loads(s+D-1)
            seq += [('W', s+D-1)]*4 + [('A', s+D-1)]*4
        extra = {}
        for k, x in enumerate(mem): extra.setdefault(k//2, []).append(x)
        for k, x in enumerate(pre): extra.setdefault(4 + k//2, []).append(x)
        for k, x in enumerate(ld): extra.setdefault(6 + k, []).append(x)
        for nb in range(4):
            for t in range(4):
                g = nb*4 + t
                d = ACC + g*4
                c = "0" if s == 0 else vr(d, 4)
                A(f"{MF} {vr(d,4)}, {vr(WF+16*(s%2)+4*nb,4)}, {vr(ACT+16*(s%D)+4*t,4)}, {c}")
                for x in extra.get(g, []): A(x)
    stamp(A, 3)
    A(f"v_and_b32 v{T+2}, 15, v{LN}\nv_lshrrev_b32 v{T+3}, 4, v{LN}\nv_mul_u32_u24 v{T+2}, 272, v{T+2}\nv_lshl_add_u32 v{T+2}, v{T+3}, 4, v{T+2}\nv_add_u32 v{T+2}, s{sM0}, v{T+2}")
    A(f"v_lshrrev_b32 v{T+3}, 3, v{LN}\ns_lshl_b32 s{sT0}, s{sW}, 4\nv_add_u32 v{T+3}, s{sT0}, v{T+3}\nv_mul_u32_u24 v{T+3}, 272, v{T+3}\nv_and_b32 v{T+4}, 7, v{LN}\nv_lshl_add_u32 v{T+3}, v{T+4}, 5, v{T+3}\nv_add_u32 v{T+4}, 0x10000, v{T+3}")
    for nb in range(4):
        for t in range(4):
            A(f"ds_write_b128 v{T+2}, {vr(ACC+(nb*4+t)*4,4)} offset:{t*4352 + nb*64}")
    A("s_waitcnt lgkmcnt(0)\ns_barrier")
    R = ACT
    for tt in range(2):
        for r in (3, 0, 1, 2):
            for h in range(2):
                A(f"ds_read_b128 {vr(R+(r*2+tt)*8+4*h,4)}, v{T+3+(r//2)} offset:{(r%2)*32768 + tt*2176 + h*16}")
    for tt in range(2):
        A(f"s_waitcnt lgkmcnt({8*(1-tt)+6})")
        dn = R + (3*2+tt)*8; G = WF + 8*tt
        for i in range(8): A(f"v_mul_f32 v{G+i}, {hex(f32bits(-math.log2(math.e)))}, v{dn+i}")
        for i in range(8): A(f"v_exp_f32 v{G+i}, v{G+i}")
        for i in range(8): A(f"v_add_f32 v{G+i}, 1.0, v{G+i}")
        for i in range(8): A(f"v_rcp_f32 v{G+i}, v{G+i}")
        for i in range(8): A(f"v_mul_f32 v{G+i}, v{G+i}, v{dn+i}")
        A(f"s_waitcnt vmcnt(0) lgkmcnt(8)" if tt == 0 else "s_waitcnt lgkmcnt(0)")
        p0, p1, p2 = R + (0*2+tt)*8, R + (1*2+tt)*8, R + (2*2+tt)*8
        for i in range(8): A(f"v_add_f32 v{p0+i}, v{p0+i}, v{p1+i}")
        for i in range(8): A(f"v_add_f32 v{p0+i}, v{p0+i}, v{p2+i}")
        for i in range(4):
            A(f"v_lshlrev_b32 v{p1+2*i}, 16, v{XR+4*tt+i}\nv_and_b32 v{p1+2*i+1}, 0xffff0000, v{XR+4*tt+i}")
        for i in range(8): A(f"v_fmac_f32 v{p1+i}, v{p0+i}, v{G+i}")
        for i in range(4): A(f"v_cvt_pk_bf16_f32 v{p2+i}, v{p1+2*i}, v{p1+2*i+1}")
        if tt == 0: A(f"buffer_store_dwordx4 {vr(p2,4)}, v{VL+1}, s[{S_O}:{S_O+3}], 0 offen")
        else: A(f"s_mov_b32 s{sT0}, 8192\nbuffer_store_dwordx4 {vr(p2,4)}, v{VL+1}, s[{S_O}:{S_O+3}], s{sT0} offen")
    if asmlib.STAMP:
        stamp(A, 4)
        A("s_waitcnt vmcnt(0)")
        stamp_flush(A, 2, 6, P_WS, sW)
    A.label("K3_END")
    A("s_endpgm")
    return dict(name="k3_kernel", vgpr=256, accum=256, sgpr=96, grid=256, block=256, lds=131072)
```

```python
from asmlib import *
import asmlib
from k1 import KV_BASE, A3_BASE, A3_TB64, WS_USED, MF, f32bits
import math
P_BASE = KV_BASE
P_END = P_BASE + (16 << 20)

def gen_k3(A, RING=10):
    ACC = 0; AF = 64; WF = 96; RA = 128; TRA = 131; VD = 143; VL = 147; T = 148
    S_L, S_O = 8, 12
    sW, sT0, sT1, sT2, sSP, sTM, sTN, sOFF, sSTR, sM0 = 16, 17, 18, 19, 20, 21, 22, 23, 24, 25
    P_WO, P_WD, P_WS = 32, 34, 36
    NS = 43
    A(".globl k3_kernel\n.p2align 8\n.type k3_kernel,@function")
    A.label("k3_kernel")
    A("s_cmp_ge_u32 s2, 256\ns_cbranch_scc1 K3_END")
    stamp(A, 0)
    A(f"s_load_dwordx2 s[{P_WO}:{P_WO+1}], s[0:1], 40\ns_load_dwordx2 s[{P_WD}:{P_WD+1}], s[0:1], 72\ns_load_dwordx2 s[{P_WS}:{P_WS+1}], s[0:1], 96")
    A(f"v_lshrrev_b32 v{T}, 6, v0\nv_and_b32 v{T+1}, 63, v0\ns_nop 0\nv_readfirstlane_b32 s{sW}, v{T}")
    LN = T+1
    A(f"s_and_b32 s{sSP}, s2, 3\ns_lshr_b32 s{sT0}, s2, 2\ns_and_b32 s{sT0}, s{sT0}, 1\ns_lshl_b32 s{sT0}, s{sT0}, 3\ns_lshr_b32 s{sT1}, s2, 3\ns_and_b32 s{sT1}, s{sT1}, 7\ns_add_u32 s{sTM}, s{sT0}, s{sT1}\ns_lshr_b32 s{sTN}, s2, 6")
    A(f"s_mov_b32 s{S_L+3}, 0x00020000\ns_mov_b32 s{S_O+3}, 0x00020000\ns_mov_b32 s{S_O+2}, {P_END}")
    A(f"s_mul_i32 s{sT0}, s{sSP}, 43\ns_cmp_eq_u32 s{sSP}, 3\ns_cselect_b32 s{sT0}, 128, s{sT0}\ns_cselect_b32 s{sT1}, 0, s{sT0}")
    A(f"s_lshl_b32 s{sM0}, s{sW}, 12")
    A(f"v_lshlrev_b32 v{VL}, 4, v{LN}")
    A(f"s_cmp_lt_u32 s{sW}, 2\ns_cbranch_scc0 K3_WSETUP")
    A(f"s_lshl_b32 s{sT2}, s{sTM}, 1\ns_add_u32 s{sT2}, s{sT2}, s{sW}\ns_mul_i32 s{sOFF}, s{sT2}, {A3_TB64}\ns_lshl_b32 s{sT0}, s{sT0}, 12\ns_add_u32 s{sOFF}, s{sOFF}, s{sT0}\ns_add_u32 s{sOFF}, s{sOFF}, {A3_BASE}")
    A(f"s_mov_b32 s{sSTR}, 4096\ns_mov_b32 s{S_L+2}, {WS_USED}")
    for j in range(4): A(f"v_mov_b32 v{VD+j}, v{VL}")
    A(f"s_waitcnt lgkmcnt(0)\ns_mov_b32 s{S_L}, s{P_WS}\ns_mov_b32 s{S_L+1}, s{P_WS+1}\ns_branch K3_SETUP_DONE")
    A.label("K3_WSETUP")
    A(f"s_lshl_b32 s{sOFF}, s{sT1}, 15\ns_sub_u32 s{sT2}, s{sW}, 2\ns_lshl_b32 s{sT2}, s{sT2}, 14\ns_add_u32 s{sOFF}, s{sOFF}, s{sT2}\ns_lshl_b32 s{sT2}, s{sTN}, 8\ns_add_u32 s{sOFF}, s{sOFF}, s{sT2}")
    A(f"s_mov_b32 s{sSTR}, 32768")
    A(f"v_lshrrev_b32 v{T+2}, 4, v{LN}\nv_and_b32 v{T+3}, 15, v{LN}\nv_lshlrev_b32 v{T+4}, 1, v{T+2}\nv_xor_b32 v{T+3}, v{T+3}, v{T+4}\nv_lshlrev_b32 v{T+2}, 10, v{T+2}\nv_lshl_add_u32 v{VD}, v{T+3}, 4, v{T+2}")
    A(f"v_xor_b32 v{T+2}, 128, v{VD}\nv_add_u32 v{VD+1}, 3072, v{T+2}\nv_add_u32 v{VD+2}, 6144, v{VD}\nv_add_u32 v{VD+3}, 9216, v{T+2}")
    A(f"s_cmp_eq_u32 s{sSP}, 3\ns_mov_b32 s{sT2}, {4096*1024}\ns_cselect_b32 s{S_L+2}, {1376*1024}, s{sT2}")
    A(f"s_waitcnt lgkmcnt(0)\ns_cselect_b32 s{S_L}, s{P_WD}, s{P_WO}\ns_cselect_b32 s{S_L+1}, s{P_WD+1}, s{P_WO+1}")
    A.label("K3_SETUP_DONE")
    def loads(s):
        pre = [f"s_add_u32 m0, s{sM0}, {(s % RING)*16384}"]
        d = [f"buffer_load_dwordx4 v{VD+j}, s[{S_L}:{S_L+3}], s{sOFF} offen offset:{j*1024} lds" for j in range(4)]
        post = [f"s_add_u32 s{sOFF}, s{sOFF}, s{sSTR}"]
        return pre, d, post
    NPRE = RING - 1
    for s in range(3):
        pre, d, post = loads(s)
        for x in pre + ["s_nop 0"] + d + post: A(x)
    A(f"s_and_b32 s{sT0}, s{sW}, 1\ns_lshl_b32 s{sT0}, s{sT0}, 12\nv_add_u32 v{RA}, s{sT0}, v{VL}")
    A(f"v_lshrrev_b32 v{T+2}, 2, v{LN}\nv_and_b32 v{T+3}, 7, v{T+2}\nv_lshlrev_b32 v{T+2}, 8, v{T+2}\nv_and_b32 v{T+4}, 3, v{LN}\nv_lshl_add_u32 v{T+2}, v{T+4}, 3, v{T+2}\nv_add_u32 v{T+2}, 8192, v{T+2}")
    A(f"s_lshr_b32 s{sT0}, s{sW}, 1\ns_lshl_b32 s{sT0}, s{sT0}, 2\nv_xor_b32 v{T+3}, s{sT0}, v{T+3}")
    for nb in range(4): A(f"v_xor_b32 v{T+4}, {nb}, v{T+3}\nv_lshl_add_u32 v{TRA+nb}, v{T+4}, 5, v{T+2}")
    for k in range(1, 3):
        A(f"v_add_u32 v{RA+k}, {k*65536}, v{RA}")
        for nb in range(4): A(f"v_add_u32 v{TRA+4*k+nb}, {k*65536}, v{TRA+nb}")
    A(f"s_lshl_b32 s{sT0}, s{sSP}, 22\ns_lshl_b32 s{sT1}, s{sTM}, 18\ns_add_u32 s{sT0}, s{sT0}, s{sT1}\ns_lshl_b32 s{sT1}, s{sTN}, 16\ns_add_u32 s{sT0}, s{sT0}, s{sT1}\ns_lshl_b32 s{sT1}, s{sW}, 14\ns_add_u32 s{sT0}, s{sT0}, s{sT1}\ns_add_u32 s{sTM}, s{sT0}, {P_BASE}")
    A(f"s_mov_b32 s{S_O}, s{P_WS}\ns_mov_b32 s{S_O+1}, s{P_WS+1}")
    for s in range(3, NPRE):
        pre, d, post = loads(s)
        for x in pre + ["s_nop 0"] + d + post: A(x)
    def reads(s):
        sl = s % RING; hi = (sl*16384) // 65536; off = (sl*16384) % 65536
        o = []
        for k in range(4):
            o.append(f"ds_read_b64_tr_b16 {vr(WF+16*(s%2)+4*k,2)}, v{TRA+4*hi+k} offset:{off}")
            o.append(f"ds_read_b64_tr_b16 {vr(WF+16*(s%2)+4*k+2,2)}, v{TRA+4*hi+k} offset:{off+4096}")
            o.append(f"ds_read_b128 {vr(AF+16*(s%2)+4*k,4)}, v{RA+hi} offset:{off+k*1024}")
        return o
    issued = NPRE
    A(f"s_waitcnt vmcnt({4*(issued-1)})\ns_barrier")
    stamp(A, 1)
    for x in reads(0): A(x)
    for s in range(NS):
        if s == 21: stamp(A, 2)
        A("s_waitcnt lgkmcnt(0)")
        extra = {}
        if s % 2 == 0:
            need = min(s+2, NS-1)
            extra[0] = [f"s_waitcnt vmcnt({4*(issued-1-need)})", "s_barrier"]
        rd = reads(s+1) if s+1 < NS else []
        for k, x in enumerate(rd): extra.setdefault(1 + k, []).insert(0, x)
        tgt = s + RING - 1
        if tgt < NS:
            pre, d, post = loads(tgt)
            extra.setdefault(2, []).extend(pre)
            for j in range(4): extra.setdefault(4 + 3*j, []).append(d[j])
            extra.setdefault(14, []).extend(post)
            issued += 1
        for nb in range(4):
            for t in range(4):
                g = nb*4 + t
                d_ = ACC + g*4
                c = "0" if s == 0 else vr(d_, 4)
                A(f"{MF} {vr(d_,4)}, {vr(WF+16*(s%2)+4*nb,4)}, {vr(AF+16*(s%2)+4*t,4)}, {c}")
                for x in extra.get(g, []): A(x)
    stamp(A, 3)
    A("s_nop 3")
    for g in range(16):
        if g % 4 == 0: A(f"s_add_u32 s{sT0}, s{sTM}, {g*1024}")
        A(f"buffer_store_dwordx4 {vr(ACC+4*g,4)}, v{VL}, s[{S_O}:{S_O+3}], s{sT0} offen offset:{(g%4)*1024} sc1")
    if asmlib.STAMP:
        stamp(A, 4)
        A("s_waitcnt vmcnt(0)")
        stamp_flush(A, 2, 6, P_WS, sW)
    A.label("K3_END")
    A("s_endpgm")
    return dict(name="k3_kernel", vgpr=160, accum=160, sgpr=96, grid=256, block=256, lds=RING*16384)

def gen_k4(A):
    S_P, S_X, S_O = 8, 12, 16
    sW, sT0, sT1, sT2 = 20, 21, 22, 23
    P_X, P_OUT, P_WS = 24, 26, 28
    R = 8; XR = 72; G = 80; VL = 2; VX = 3
    A(".globl k4_kernel\n.p2align 8\n.type k4_kernel,@function")
    A.label("k4_kernel")
    A("s_cmp_ge_u32 s2, 256\ns_cbranch_scc1 K4_END")
    stamp(A, 0)
    A(f"s_load_dwordx2 s[{P_X}:{P_X+1}], s[0:1], 0\ns_load_dwordx2 s[{P_OUT}:{P_OUT+1}], s[0:1], 80\ns_load_dwordx2 s[{P_WS}:{P_WS+1}], s[0:1], 96")
    A(f"v_lshrrev_b32 v1, 6, v0\nv_and_b32 v0, 63, v0\ns_nop 0\nv_readfirstlane_b32 s{sW}, v1")
    for r in (S_P, S_X, S_O): A(f"s_mov_b32 s{r+3}, 0x00020000")
    A(f"s_mov_b32 s{S_P+2}, {P_END}\ns_mov_b32 s{S_X+2}, 0x200000\ns_mov_b32 s{S_O+2}, 0x200000")
    A(f"v_lshlrev_b32 v{VL}, 4, v0")
    A(f"s_lshl_b32 s{sT0}, s2, 14\ns_lshl_b32 s{sT1}, s{sW}, 12\ns_add_u32 s{sT0}, s{sT0}, s{sT1}\ns_add_u32 s{sT0}, s{sT0}, {P_BASE}")
    A(f"s_lshr_b32 s{sT1}, s2, 4\ns_lshl_b32 s{sT1}, s{sT1}, 17\ns_and_b32 s{sT2}, s2, 1\ns_lshl_b32 s{sT2}, s{sT2}, 16\ns_add_u32 s{sT1}, s{sT1}, s{sT2}")
    A(f"s_lshr_b32 s{sT2}, s2, 1\ns_and_b32 s{sT2}, s{sT2}, 7\ns_lshl_b32 s{sT2}, s{sT2}, 7\ns_add_u32 s{sT1}, s{sT1}, s{sT2}\ns_lshl_b32 s{sT2}, s{sW}, 5\ns_add_u32 s{sT1}, s{sT1}, s{sT2}")
    A(f"v_and_b32 v4, 15, v0\nv_lshrrev_b32 v5, 4, v0\nv_lshlrev_b32 v4, 10, v4\nv_lshl_add_u32 v4, v5, 3, v4\nv_add_u32 v{VX}, s{sT1}, v4")
    A("s_waitcnt lgkmcnt(0)")
    A(f"s_mov_b32 s{S_P}, s{P_WS}\ns_mov_b32 s{S_P+1}, s{P_WS+1}\ns_mov_b32 s{S_X}, s{P_X}\ns_mov_b32 s{S_X+1}, s{P_X+1}\ns_mov_b32 s{S_O}, s{P_OUT}\ns_mov_b32 s{S_O+1}, s{P_OUT+1}")
    for sp in (3, 0, 1, 2):
        A(f"s_add_u32 s{sT1}, s{sT0}, {sp << 22}")
        for t in range(4): A(f"buffer_load_dwordx4 {vr(R+16*sp+4*t,4)}, v{VL}, s[{S_P}:{S_P+3}], s{sT1} offen offset:{t*1024}")
    for t in range(4):
        A(f"s_mov_b32 s{sT2}, {t*16384}\nbuffer_load_dwordx2 {vr(XR+2*t,2)}, v{VX}, s[{S_X}:{S_X+3}], s{sT2} offen")
    A("s_waitcnt vmcnt(16)")
    dn = R + 48
    for i in range(16): A(f"v_mul_f32 v{G+i}, {hex(f32bits(-math.log2(math.e)))}, v{dn+i}")
    for i in range(16): A(f"v_exp_f32 v{G+i}, v{G+i}")
    for i in range(16): A(f"v_add_f32 v{G+i}, 1.0, v{G+i}")
    for i in range(16): A(f"v_rcp_f32 v{G+i}, v{G+i}")
    for i in range(16): A(f"v_mul_f32 v{G+i}, v{G+i}, v{dn+i}")
    A("s_waitcnt vmcnt(8)")
    for i in range(16): A(f"v_add_f32 v{R+i}, v{R+i}, v{R+16+i}")
    A("s_waitcnt vmcnt(4)")
    for i in range(16): A(f"v_add_f32 v{R+i}, v{R+i}, v{R+32+i}")
    A("s_waitcnt vmcnt(0)")
    for i in range(8): A(f"v_lshlrev_b32 v{R+16+2*i}, 16, v{XR+i}\nv_and_b32 v{R+17+2*i}, 0xffff0000, v{XR+i}")
    for i in range(16): A(f"v_fmac_f32 v{R+16+i}, v{R+i}, v{G+i}")
    for i in range(8): A(f"v_cvt_pk_bf16_f32 v{R+32+i}, v{R+16+2*i}, v{R+17+2*i}")
    for t in range(4):
        A(f"s_mov_b32 s{sT2}, {t*16384}\nbuffer_store_dwordx2 {vr(R+32+2*t,2)}, v{VX}, s[{S_O}:{S_O+3}], s{sT2} offen")
    if asmlib.STAMP:
        stamp(A, 1)
        A("s_waitcnt vmcnt(0)")
        stamp_flush(A, 3, 3, P_WS, sW)
    A.label("K4_END")
    A("s_endpgm")
    return dict(name="k4_kernel", vgpr=96, accum=96, sgpr=96, grid=256, block=256, lds=0)
```

```python
import sys
from asmlib import *
import asmlib, os
asmlib.STAMP = os.environ.get('STAMP','0')=='1'
import k1
HEADER = open('recurrent_scan__compressed_kv_cla__glu_gated_reglu__prompt.s.ref').read().split('; Override')[0]
def build(kernels, check=True):
    A = Asm()
    infos = []
    for g in kernels:
        start = len(A.lines)
        infos.append(g(A))
    body = A.text()
    if check:
        check_hazards(A.lines)
    out = HEADER
    for i in infos:
        out += f"; @launch kernel={i['name']} grid=({i['grid']},1,1) block=({i['block']},1,1) lds={i['lds']}\n"
    MAC = {'v_mfma_f32_16x16x32_bf16': 'mf', 'ds_read_b64_tr_b16': 'trr', 'buffer_load_dwordx4': 'bl4', 'buffer_store_dwordx4': 'bs4', 'v_cvt_pk_bf16_f32': 'cvp',
           'ds_read_b128': 'dr4', 'v_accvgpr_write_b32': 'acw', 'v_exp_f32': 'vex', 'v_add_f32': 'vaf', 'v_mul_f32': 'vmf', 'v_sub_f32': 'vsf', 's_add_u32': 'sad', 's_waitcnt': 'swc'}
    mac = ''.join(f".macro {v} a:vararg\n {k} \\a\n.endm\n" for k, v in MAC.items())
    import re
    body = re.sub(r'(?m)^ (\w+) ', lambda m: ' ' + MAC.get(m.group(1), m.group(1)) + ' ', body)
    out += '.amdgcn_target "amdgcn-amd-amdhsa--gfx950"\n.text\n' + mac + body
    out += '.section .rodata,"a"\n'
    for i in infos:
        out += f""".p2align 6
.amdhsa_kernel {i['name']}
  .amdhsa_next_free_vgpr {i['vgpr']}
  .amdhsa_next_free_sgpr {i['sgpr']}
  .amdhsa_accum_offset {i['accum']}
  .amdhsa_group_segment_fixed_size 0
  .amdhsa_kernarg_size 104
  .amdhsa_user_sgpr_count 2
  .amdhsa_user_sgpr_kernarg_segment_ptr 1
  .amdhsa_system_sgpr_workgroup_id_x 1
.end_amdhsa_kernel
"""
    return out
if __name__ == '__main__':
    sf = os.environ.get('SF', '')
    sf = (' ' + sf) if sf else ''
    ks = [lambda A: k1.gen_k1(A, store_flags=sf)]
    try:
        import k2; ks.append(lambda A: k2.gen_k2(A, store_flags=sf))
        if os.environ.get('K3', 'b') == 'a':
            import k3; ks.append(k3.gen_k3)
        else:
            import k3b; ks.append(k3b.gen_k3); ks.append(k3b.gen_k4)
    except ImportError as e:
        print("partial:", e)
    s = build(ks)
    open(sys.argv[1] if len(sys.argv) > 1 else 'cur.s', 'w').write(s)
    print(len(s), "bytes")
```

```python
import re

def vr(b, n=1): return f"v{b}" if n == 1 else f"v[{b}:{b+n-1}]"
def ar(b, n=1): return f"a{b}" if n == 1 else f"a[{b}:{b+n-1}]"
def sr(b, n=1): return f"s{b}" if n == 1 else f"s[{b}:{b+n-1}]"

_REG = re.compile(r"^-?(?:abs\()?([vas])(?:(\d+)|\[(\d+):(\d+)\])\)?$")
def regs_of(tok):
    tok = tok.strip()
    if tok.startswith('|') and tok.endswith('|'): tok = tok[1:-1]
    m = _REG.match(tok)
    if m:
        k = m.group(1)
        if m.group(2) is not None: return {(k, int(m.group(2)))}
        return {(k, i) for i in range(int(m.group(3)), int(m.group(4))+1)}
    if tok == 'vcc': return {('s', 106), ('s', 107)}
    if tok == 'exec': return {('s', 126), ('s', 127)}
    if tok == 'm0': return {('s', 124)}
    return set()

TRANS = ('v_exp_f32','v_log_f32','v_rcp_f32','v_rsq_f32','v_sqrt_f32','v_sin_f32','v_cos_f32')

class Ins:
    __slots__ = ('text','op','w','r','kind','srcc','passes','ws')
    def __init__(self, text):
        self.text = text
        t = text.split(';')[0].strip()
        self.op = t.split()[0] if t else ''
        rest = t[len(self.op):].strip()
        ops = [x.strip() for x in rest.split(',')] if rest else []
        ops = [o.split()[0] if o else o for o in ops]
        self.w = set(); self.r = set(); self.srcc = set(); self.passes = 0; self.ws = 1
        op = self.op
        R = [regs_of(o) for o in ops]
        if op.endswith(':') or op.startswith('.') or op == '':
            self.kind = 'label'; self.ws = 0
        elif op.startswith('v_mfma'):
            self.kind = 'mfma'; self.w = R[0]; self.r = R[1] | R[2] | R[3]; self.srcc = R[3]
            self.passes = 4 if '16x16x32' in op else 8
        elif op.startswith('v_cmp'):
            self.kind = 'valu'; self.w = R[0]; self.r = set().union(*R[1:])
        elif op in ('v_readfirstlane_b32', 'v_readlane_b32'):
            self.kind = 'valu'; self.w = R[0]; self.r = set().union(*R[1:])
        elif op.startswith('v_permlane') and 'swap' in op:
            self.kind = 'valu'; self.w = R[0] | R[1]; self.r = R[0] | R[1]
        elif op.startswith('v_'):
            self.kind = 'valu'; self.w = set(R[0]); self.r = set().union(*R[1:]) if len(R) > 1 else set()
            if op.startswith('v_fmac') or op.startswith('v_dot2c'): self.r |= R[0]
            if op.startswith('v_cndmask') and len(R) == 3: self.r |= regs_of('vcc')
            if op.startswith('v_add_co') or op.startswith('v_sub_co'): self.w |= R[1]
        elif op.startswith('ds_read') :
            self.kind = 'ds'; self.w = R[0]; self.r = R[1]
        elif op.startswith('ds_write'):
            self.kind = 'ds'; self.r = set().union(*R)
        elif op.startswith('ds_bpermute') or op.startswith('ds_swizzle'):
            self.kind = 'ds'; self.w = R[0]; self.r = set().union(*R[1:])
        elif op.startswith('buffer_load'):
            self.kind = 'vmem'
            if ' lds' in t: self.r = set().union(*R) | regs_of('m0'); self.kind = 'dma'
            else: self.w = R[0]; self.r = set().union(*R[1:])
        elif op.startswith('buffer_store'):
            self.kind = 'store'; self.r = set().union(*R); self.srcc = R[0]
        elif op == 'buffer_wbl2':
            self.kind = 'salu'
        elif op == 's_nop':
            self.kind = 'nop'; self.ws = int(ops[0], 0) + 1
        elif op.startswith('s_'):
            self.kind = 'salu'
            if op.startswith('s_cmp') or op.startswith('s_cbranch') or op in ('s_branch','s_barrier','s_waitcnt','s_endpgm','s_setprio','s_sleep','s_setpc_b64'):
                self.r = set().union(*R) if R else set()
            else:
                self.w = R[0] if R else set(); self.r = set().union(*R[1:]) if len(R) > 1 else set()
        else:
            raise ValueError("unknown op: " + text)

class Asm:
    def __init__(self):
        self.lines = []
    def __call__(self, text):
        for l in text.split('\n'):
            l = l.strip()
            if l: self.lines.append(l)
    def label(self, n): self.lines.append(n + ':')
    def text(self): return '\n'.join(('' if (l.endswith(':') or l.startswith('.') or l.startswith(';')) else ' ') + l for l in self.lines) + '\n'

def check_hazards(lines, verbose=True):
    ins = []
    for l in lines:
        if l.startswith(';') or l.startswith('.'): continue
        ins.append(Ins(l))
    probs = []
    n = len(ins)
    for i, c in enumerate(ins):
        if c.kind in ('label', 'nop'): continue
        dist = 0
        j = i - 1
        while j >= 0 and dist < 20:
            p = ins[j]
            if p.op in ('s_branch', 's_endpgm', 's_setpc_b64'): break
            need = 0
            vw = {x for x in p.w if x[0] in 'va'}
            sw = {x for x in p.w if x[0] == 's'}
            if p.kind == 'valu':
                if c.kind == 'mfma' and vw & c.r: need = max(need, 2)
                if c.op.startswith('v_permlane') and vw & c.r: need = max(need, 2)
                if c.op in ('v_readfirstlane_b32','v_readlane_b32') and vw & c.r: need = max(need, 1)
                if p.op in TRANS and c.kind in ('valu',) and c.op not in TRANS and vw & c.r: need = max(need, 1)
                if p.op in TRANS and c.kind in ('mfma','store','ds','vmem','dma') and vw & c.r: need = max(need, 2 if c.kind=='mfma' else 1)
                if sw:
                    if c.kind in ('vmem','dma','store') and sw & c.r: need = max(need, 5)
                    if c.kind == 'valu' and sw & c.r: need = max(need, 2)
                    if c.kind == 'salu' and sw & c.r and not c.op.startswith('s_cbranch'): need = max(need, 1)
                if 'dpp' in c.text and vw & c.r: need = max(need, 2)
                if p.op.startswith('v_dot'):
                    if c.op == p.op:
                        ab = set().union(*[regs_of(x.strip().split()[0]) for x in c.text.split(',')[1:3]])
                        if vw & ab: need = max(need, 3)
                    elif vw & (c.r | c.w): need = max(need, 3)
            if p.kind == 'mfma':
                ps = p.passes
                big = {4: 8, 8: 12}[ps]
                if c.kind == 'mfma':
                    ab = c.r - c.srcc
                    if p.w & ab: need = max(need, big)
                    if p.w & c.srcc:
                        if not (p.w == c.srcc and p.passes == c.passes): need = max(need, {4: 6, 8: 10}[ps])
                    if (p.w & c.w) and not (p.w & c.srcc): need = max(need, {4:6,8:10}[ps])
                elif c.kind in ('valu','ds','vmem','dma','store'):
                    if p.w & (c.r | c.w): need = max(need, big)
                    if c.kind == 'valu' and p.srcc & c.w: need = max(need, {4: 3, 8: 7}[ps])
            if p.kind == 'store' and p.op.endswith('x4'):
                if p.srcc & c.w: need = max(need, 2 if c.kind == 'valu' else 1)
            if p.kind == 'salu' and ('s', 124) in p.w and c.kind == 'dma': need = max(need, 1)
            if need > dist:
                probs.append(f"hazard need {need} have {dist}: [{p.text}] -> [{c.text}]")
            dist += p.ws
            j -= 1
    if verbose:
        for p in probs[:40]: print(p)
        print(f"hazard check: {len(probs)} problems over {n} instrs")
    return probs

STAMP = False
DBG_BASE = 120 << 20
def stamp(A, k):
    if STAMP: A(f"s_memrealtime s[{64+2*k}:{65+2*k}]")
def stamp_flush(A, kidx, n, pws, sw, v0=0):
    if not STAMP: return
    A(f"s_memrealtime s[{64+2*(n-1)}:{65+2*(n-1)}]")
    A(f"s_mov_b32 s80, s{pws}\ns_mov_b32 s81, s{pws+1}\ns_mov_b32 s82, 0x10000000\ns_mov_b32 s83, 0x00020000")
    A(f"s_lshl_b32 s84, s2, 2\ns_add_u32 s84, s84, s{sw}\ns_lshl_b32 s84, s84, 6\ns_add_u32 s84, s84, {DBG_BASE + kidx*0x10000}")
    A(f"v_mov_b32 v{v0+2}, 0\ns_waitcnt lgkmcnt(0)")
    for k in range(n):
        A(f"v_mov_b32 v{v0}, s{64+2*k}\nv_mov_b32 v{v0+1}, s{65+2*k}\nbuffer_store_dwordx2 v[{v0}:{v0+1}], v{v0+2}, s[80:83], s84 offen offset:{k*8}\ns_nop 1")

def stampc(A, k):
    if STAMP: A(f"s_memtime s[{64+2*k}:{65+2*k}]")
```

```python
from asmlib import *
import asmlib
import math

import os
ACT_TOUCH = os.environ.get('ACT_TOUCH', '0') == '1'
W_TOUCH = os.environ.get('W_TOUCH', '1') == '1'
XFIRST = os.environ.get('XFIRST', '1') == '1'
KV_TOUCH = os.environ.get('KV_TOUCH', '0') == '1'
NOST = os.environ.get('NOST', '0') == '1'
SFD = os.environ.get('SFD', 'sc1')
WBL2 = os.environ.get('WBL2', '0') == '1'
HST = os.environ.get('HST', '0') == '1'
WEARLY = os.environ.get('WEARLY', '0') == '1'
PLAIN = os.environ.get('PLAIN', '')
XORD = os.environ.get('XORD', '0') == '1'
LGK = os.environ.get('LGK', '1') == '1'
EXACT = os.environ.get('EXACT', '1') == '1'
ROT = os.environ.get('ROT', '1') == '1'
WS_OFF = int(os.environ.get('WS_OFF', '0')) << 20
KV_BASE = WS_OFF + (1 << 20)
A3_BASE = WS_OFF + (33 << 20)
A3_TB64 = 171 * 4096
WS_USED = A3_BASE + 32 * A3_TB64
MF = "v_mfma_f32_16x16x32_bf16"
CSCALE = math.log2(math.e) / math.sqrt(128.0)

def f32bits(x):
    import struct
    return struct.unpack('<I', struct.pack('<f', x))[0]

def gen_k1(A, store_flags=""):
    ACC = [8, 72]; WF = 136; TRA = 168; VW = 176; VO = 178; OUT = 184; SC = 196; RSTD = 200; T = 204; GR = 216; SUM = 232; ONESV = 240; MU = 244; DUM = 245
    S_ACT, S_WA, S_WB, S_OUT = 8, 12, 16, 20
    sW, sTB, sCG, sSU, sEND, sDMA, sOB, sM0, sT0, sT1, sTYPE, sJOB2, sOBASE = 24, 25, 26, 27, 28, 29, 30, 31, 32, 33, 34, 35, 36
    sONES, sSLO, sSHI = 37, 38, 39
    P_X, P_CKV, P_WQ, P_WUK, P_WUV, P_WG, P_WU, P_WS = 40, 42, 44, 46, 48, 50, 52, 54
    sSTG = 56
    sROW = 57
    sEX2, sEX, sMK, sDQ, sROT, sOB2 = 58, 84, 88, 96, 62, 63
    sRQ = sEX; sXR = 40

    A(".globl k1_kernel\n.p2align 8\n.type k1_kernel,@function")
    A.label("k1_kernel")
    A("s_cmp_ge_u32 s2, 256\ns_cbranch_scc1 K1_END")
    stamp(A, 0)
    A(f"s_load_dwordx4 s[{P_X}:{P_X+3}], s[0:1], 0")
    A(f"s_load_dwordx4 s[{P_WQ}:{P_WQ+3}], s[0:1], 16")
    A(f"s_load_dwordx2 s[{P_WUV}:{P_WUV+1}], s[0:1], 32")
    A(f"s_load_dwordx2 s[{P_WG}:{P_WG+1}], s[0:1], 56")
    A(f"s_load_dwordx2 s[{P_WU}:{P_WU+1}], s[0:1], 64")
    A(f"s_load_dwordx2 s[{P_WS}:{P_WS+1}], s[0:1], 96")
    A(f"v_lshrrev_b32 v1, 6, v0\nv_and_b32 v0, 63, v0\ns_nop 0\nv_readfirstlane_b32 s{sW}, v1")
    A(f"s_and_b32 s{sT0}, s2, 7\ns_lshr_b32 s{sT1}, s2, 3\ns_and_b32 s{sTB}, s{sT1}, 7\ns_lshr_b32 s{sT1}, s{sT1}, 3")
    A(f"s_lshl_b32 s{sCG}, s{sT0}, 2\ns_add_u32 s{sCG}, s{sCG}, s{sT1}")
    if XFIRST: A(f"s_xor_b32 s{sCG}, s{sCG}, 16")
    A(f"s_mov_b32 s{sONES}, 0x3f803f80\ns_mov_b32 s{sSLO}, 0x00003f80\ns_mov_b32 s{sSHI}, 0x3f800000")
    A(f"s_mov_b32 s{sJOB2}, 0")
    A(f"s_lshl_b32 s{sSTG}, s{sW}, 13")
    A(f"s_lshl_b32 s{sROW}, s{sTB}, 18\ns_lshl_b32 s{sT0}, s{sW}, 16\ns_add_u32 s{sROW}, s{sROW}, s{sT0}")
    for r in (S_ACT, S_WA, S_WB, S_OUT): A(f"s_mov_b32 s{r+3}, 0x00020000")
    A(f"s_mov_b32 s{S_ACT+2}, 0x200000")
    code_touch(A, "k1_kernel", "K1_END", sW, 0, DUM, 80)
    A("s_waitcnt lgkmcnt(0)")
    A(f"s_mov_b32 s{S_OUT}, s{P_WS}\ns_mov_b32 s{S_OUT+1}, s{P_WS+1}\ns_mov_b32 s{S_OUT+2}, 0")
    A(f"s_cmp_lt_u32 s{sCG}, 8\ns_cbranch_scc1 K1_DISP_K")
    A(f"s_cmp_lt_u32 s{sCG}, 16\ns_cbranch_scc1 K1_DISP_V")
    A(f"s_mov_b32 s{S_ACT}, s{P_X}\ns_mov_b32 s{S_ACT+1}, s{P_X+1}")
    A(f"s_cmp_lt_u32 s{sCG}, 25\ns_cbranch_scc1 K1_DISP_Q")
    A(f"s_cmp_lt_u32 s{sCG}, 31\ns_cbranch_scc1 K1_DISP_G")
    A(f"s_mov_b32 s{sSU}, 63\ns_mov_b32 s{sEND}, 64\ns_mov_b32 s{sJOB2}, 1\ns_branch K1_SETUP_Q")
    A.label("K1_DISP_Q")
    A(f"s_sub_u32 s{sT0}, s{sCG}, 16\ns_mul_i32 s{sSU}, s{sT0}, 7\ns_add_u32 s{sEND}, s{sSU}, 7\ns_branch K1_SETUP_Q")
    A.label("K1_DISP_G")
    A(f"s_sub_u32 s{sT0}, s{sCG}, 25\ns_mul_i32 s{sSU}, s{sT0}, 7\ns_add_u32 s{sEND}, s{sSU}, 7\ns_branch K1_SETUP_G")
    A.label("K1_DISP_K")
    A(f"s_mov_b32 s{S_ACT}, s{P_CKV}\ns_mov_b32 s{S_ACT+1}, s{P_CKV+1}")
    A(f"s_lshl_b32 s{sSU}, s{sCG}, 3\ns_add_u32 s{sEND}, s{sSU}, 8\ns_branch K1_SETUP_K")
    A.label("K1_DISP_V")
    A(f"s_mov_b32 s{S_ACT}, s{P_CKV}\ns_mov_b32 s{S_ACT+1}, s{P_CKV+1}")
    A(f"s_sub_u32 s{sT0}, s{sCG}, 8\ns_lshl_b32 s{sSU}, s{sT0}, 3\ns_add_u32 s{sEND}, s{sSU}, 8\ns_branch K1_SETUP_V")

    def dma_consts(ty):
        if ty == 'G':
            return 64, 128*2752, [(S_WA, 0, 0), (S_WA, 0, 16*2752), (S_WB, 0, 0), (S_WB, 0, 16*2752)]
        return 128, 128*8192, [(S_WA, 0, 0), (S_WA, 1, 8*8192), (S_WA, 0, 16*8192), (S_WA, 1, 24*8192)]

    def dma_slot(ty, su_rel, q, ringslot):
        cs, ss, pieces = dma_consts(ty)
        out = []
        for j, (srd, vi, ex) in enumerate(pieces):
            out.append([f"s_add_u32 m0, s{sM0}, {ringslot*16384 + j*1024}",
                        f"s_add_u32 s{sT0}, s{sDQ+q}, {su_rel*cs + ex}",
                        f"buffer_load_dwordx4 v{VW+vi}, s[{srd}:{srd+3}], s{sT0} offen lds"])
        return out

    def setup(ty):
        A.label(f"K1_SETUP_{ty}")
        ptr = {'Q': P_WQ, 'K': P_WUK, 'V': P_WUV, 'G': P_WG}[ty]
        A(f"s_mov_b32 s{S_WA}, s{ptr}\ns_mov_b32 s{S_WA+1}, s{ptr+1}")
        pb = P_WU if ty == 'G' else ptr
        A(f"s_mov_b32 s{S_WB}, s{pb}\ns_mov_b32 s{S_WB+1}, s{pb+1}")
        wsz = 512*2752 if ty == 'G' else 512*8192
        A(f"s_mov_b32 s{S_WA+2}, {wsz}\ns_mov_b32 s{S_WB+2}, {wsz}")
        A(f"s_mov_b32 s{sTYPE}, {'QKVG'.index(ty)}")
        cs, ss, _ = dma_consts(ty)
        pitch = 2752 if ty == 'G' else 8192
        A(f"s_mul_i32 s{sDMA}, s{sSU}, {cs}\ns_mul_i32 s{sT0}, s{sW}, {32*pitch}\ns_add_u32 s{sDMA}, s{sDMA}, s{sT0}")
        A(f"s_lshl_b32 s{sM0}, s{sW}, 12")
        A(f"s_add_u32 s{sROT}, s{sCG}, s{sTB}\ns_and_b32 s{sROT}, s{sROT}, {3 if ROT else 0}")
        for q in range(4):
            A(f"s_add_u32 s{sT0}, s{sROT}, {q}\ns_and_b32 s{sT0}, s{sT0}, 3\ns_mul_i32 s{sT1}, s{sT0}, {ss}\ns_add_u32 s{sDQ+q}, s{sDMA}, s{sT1}")
            if ty in 'KV': A(f"s_lshl_b32 s{sT0}, s{sT0}, 8\ns_add_u32 s{sRQ+q}, s{sROW}, s{sT0}")
        if ty in 'QG':
            for j, (_, _, ex) in enumerate(dma_consts(ty)[2]): A(f"s_mov_b32 s{sEX+j}, {ex}\ns_mov_b32 s{sEX2+j}, {ex+cs}")
        A("v_lshrrev_b32 v1, 4, v0\nv_bfe_u32 v2, v0, 2, 2\nv_and_b32 v3, 3, v0")
        if ty != 'G':
            A("v_lshrrev_b32 v4, 3, v0\nv_and_b32 v5, 7, v0\nv_bfe_u32 v6, v0, 4, 1\nv_lshlrev_b32 v6, 1, v6\nv_xor_b32 v5, v5, v6")
            A(f"v_lshlrev_b32 v4, 13, v4\nv_lshl_add_u32 v{VW}, v5, 4, v4\nv_xor_b32 v{VW+1}, 64, v{VW}")
            A("v_lshrrev_b32 v4, 1, v2\nv_and_b32 v5, 1, v1\nv_lshl_add_u32 v4, v5, 1, v4")
            A("v_lshl_add_u32 v5, v1, 3, v2\nv_lshlrev_b32 v5, 7, v5\nv_lshl_add_u32 v5, v3, 3, v5")
            for nb in range(4):
                A(f"v_xor_b32 v6, {nb}, v4\nv_lshl_add_u32 v{TRA+2*nb}, v6, 5, v5\nv_add_u32 v{TRA+2*nb+1}, 512, v{TRA+2*nb}")
        else:
            A(f"v_lshrrev_b32 v4, 2, v0\nv_lshrrev_b32 v6, 5, v0\nv_lshlrev_b32 v6, 1, v6\nv_xor_b32 v5, v3, v6")
            A(f"v_mul_u32_u24 v4, 2752, v4\nv_lshl_add_u32 v{VW}, v5, 4, v4\nv_mov_b32 v{VW+1}, v{VW}")
            A("v_and_b32 v4, 1, v1")
            A("v_lshl_add_u32 v5, v1, 3, v2\nv_lshlrev_b32 v5, 6, v5\nv_lshl_add_u32 v5, v3, 3, v5")
            for nb in range(4):
                A(f"v_xor_b32 v6, {nb%2}, v4\nv_lshl_add_u32 v6, v6, 5, v5\nv_add_u32 v{TRA+2*nb}, {(nb//2)*2048}, v6\nv_add_u32 v{TRA+2*nb+1}, 256, v{TRA+2*nb}")
        A("v_lshlrev_b32 v4, 4, v0")
        if ty == 'Q':
            for t in range(4): A(f"s_add_u32 s{sT0}, s{sCG}, {t}\ns_and_b32 s{sT0}, s{sT0}, {3 if ROT else 0}\ns_lshl_b32 s{sT0}, s{sT0}, 10\nv_add_u32 v{VO+t}, s{sT0}, v4" if ROT else f"v_add_u32 v{VO+t}, {t*1024}, v4")
            A(f"s_lshl_b32 s{sT0}, s{sTB}, 2\ns_add_u32 s{sT0}, s{sT0}, s{sW}\ns_mul_i32 s{sOBASE}, s{sT0}, {A3_TB64}\ns_add_u32 s{sOBASE}, s{sOBASE}, {A3_BASE}")
        elif ty == 'K':
            for t in range(4): A(f"v_add_u32 v{VO+t}, {(t//2)*16384 + (t%2)*4096}, v4")
            A(f"s_lshl_b32 s{sOBASE}, s{sTB}, 17\ns_lshl_b32 s{sT0}, s{sW}, 15\ns_add_u32 s{sOBASE}, s{sOBASE}, s{sT0}\ns_add_u32 s{sOBASE}, s{sOBASE}, {KV_BASE}")
        elif ty == 'V':
            for t in range(4): A(f"v_add_u32 v{VO+t}, {(t%2)*16384}, v4")
            A(f"s_lshl_b32 s{sOBASE}, s{sTB}, 17\ns_lshl_b32 s{sT0}, s{sW}, 15\ns_add_u32 s{sOBASE}, s{sOBASE}, s{sT0}\ns_add_u32 s{sOBASE}, s{sOBASE}, {KV_BASE+8192}")
        else:
            for t in range(4): A(f"s_add_u32 s{sT0}, s{sCG}, {t}\ns_and_b32 s{sT0}, s{sT0}, {3 if ROT else 0}\ns_lshl_b32 s{sT0}, s{sT0}, 10\nv_add_u32 v{VO+t}, s{sT0}, v4" if ROT else f"v_add_u32 v{VO+t}, {t*1024}, v4")
            A(f"s_lshl_b32 s{sT0}, s{sTB}, 2\ns_add_u32 s{sT0}, s{sT0}, s{sW}\ns_mul_i32 s{sOBASE}, s{sT0}, {A3_TB64}\ns_add_u32 s{sOBASE}, s{sOBASE}, {A3_BASE + 128*4096}")
        A(f"s_mov_b32 s{S_OUT+2}, {0 if ty in 'QG' else WS_USED}")
        if ty == 'G':
            A(f"s_cmp_eq_u32 s{sJOB2}, 2\ns_cbranch_scc1 K1_WPRE_G")
        A(f"s_branch {'K1_STAGE_X' if ty in 'QG' else 'K1_PRO_' + ty}")

    for ty in 'QKVG': setup(ty)

    def wpre(ty, slots):
        for q in slots:
            for tr in dma_slot(ty, q//4, q%4, q):
                for x in tr: A(x)

    def act_touch():
        A(f"s_lshl_b32 s{sT1}, s{sTB}, 18\ns_and_b32 s{sT0}, s{sCG}, 3\ns_lshl_b32 s{sT0}, s{sT0}, 16\ns_add_u32 s{sT1}, s{sT1}, s{sT0}\ns_lshl_b32 s{sT0}, s{sW}, 14\ns_add_u32 s{sT1}, s{sT1}, s{sT0}")
        A(f"v_lshrrev_b32 v4, 3, v0\nv_and_b32 v5, 7, v0\nv_lshlrev_b32 v4, 10, v4\nv_lshl_add_u32 v4, v5, 7, v4\ns_add_u32 s{sT0}, s{sT1}, 8192")
        A(f"buffer_load_dword v{DUM}, v4, s[{S_ACT}:{S_ACT+3}], s{sT1} offen\nbuffer_load_dword v{DUM+1}, v4, s[{S_ACT}:{S_ACT+3}], s{sT0} offen")

    def touch_ops(ty):
        pitch = 2752 if ty == 'G' else 8192
        cs, _, _ = dma_consts(ty)
        o = [f"s_lshl_b32 s{sT1}, s{sTB}, 2", f"s_add_u32 s{sT1}, s{sT1}, s{sW}", f"s_mul_i32 s{sT1}, s{sT1}, {16*pitch}", f"s_mul_i32 s{sT0}, s{sSU}, {cs}", f"s_add_u32 s{sT1}, s{sT1}, s{sT0}"]
        if ty == 'G':
            o += ["v_lshrrev_b32 v4, 2, v0", "v_and_b32 v5, 3, v0", "v_mul_u32_u24 v4, 2752, v4", f"v_add_u32 v4, s{sT1}, v4", "v_and_b32 v4, 0xffffff80, v4", "v_lshl_add_u32 v4, v5, 7, v4"]
            o += [f"buffer_load_dword v{DUM+j}, v4, s[{srd}:{srd+3}], 0 offen" for j, srd in enumerate((S_WA, S_WB))]
        else:
            o += ["v_lshrrev_b32 v4, 3, v0", "v_and_b32 v5, 7, v0", "v_lshlrev_b32 v4, 13, v4", "v_lshl_add_u32 v4, v5, 7, v4"]
            for j in range(2):
                o += [f"s_add_u32 s{sT0}, s{sT1}, {j*8*pitch}", f"buffer_load_dword v{DUM+j}, v4, s[{S_WA}:{S_WA+3}], s{sT0} offen"]
        return o

    BUF = [0, 1, 2, 3, 4, 2, 3, 4]
    A.label("K1_STAGE_X")
    if ACT_TOUCH: act_touch()
    A(f"s_lshl_b32 s{sT0}, s{sROT}, 4\nv_add_u32 v{T}, s{sT0}, v0\nv_and_b32 v{T}, 63, v{T}\nv_lshlrev_b32 v{T}, 4, v{T}")
    for t in range(4):
        A(f"s_add_u32 s{sT0}, s{sCG}, {t}\ns_and_b32 s{sT0}, s{sT0}, 3\ns_lshl_b32 s{sT0}, s{sT0}, 14\ns_add_u32 s{sXR+t}, s{sROW}, s{sT0}" if ROT else f"s_add_u32 s{sXR+t}, s{sROW}, {t*16384}")
    def x_round(r):
        o = []
        for j in range(8):
            tok = (8*r + j) & 15
            o.append([f"v_xor_b32 v{T+1+(j&1)}, {tok*16}, v{T}", f"s_add_u32 m0, s{sSTG}, {BUF[r]*32768 + j*1024}", f"s_add_u32 s{sT0}, s{sXR+r//2}, {(8*(r%2)+j)*1024}",
                      f"buffer_load_dwordx4 v{T+1+(j&1)}, s[{S_ACT}:{S_ACT+3}], s{sT0} offen lds"])
        return o
    def gw_slot(n):
        o = []
        for j in range(4):
            srd = S_WA if j < 2 else S_WB
            it = [f"s_add_u32 m0, s{sM0}, {n*16384 + j*1024}", f"s_add_u32 s{sT0}, s{sDQ+n%4}, s{(sEX if n < 4 else sEX2)+j}", f"buffer_load_dwordx4 v{VW+(j&1)}, s[{srd}:{srd+3}], s{sT0} offen lds"]
            o.append(it)
        return o
    for r in range(2 if XORD else 4):
        for it in x_round(r):
            for x in it: A(x)
    stamp(A, 1)
    A(f"v_and_b32 v4, 15, v0\nv_and_b32 v5, 7, v0\nv_lshlrev_b32 v5, 10, v5\nv_and_b32 v6, 3, v0\nv_xor_b32 v6, v6, v1\nv_lshl_add_u32 v5, v6, 4, v5")
    A(f"v_add_u32 v5, s{sSTG}, v5\nv_lshrrev_b32 v6, 2, v4")
    for k in range(4):
        A(f"v_xor_b32 v7, {k}, v6\nv_lshl_add_u32 v{T+4+k}, v7, 6, v5")
    A(f"v_cmp_lt_u32 vcc, 7, v4")
    A(f"v_lshlrev_b32 v5, 2, v1\nv_sub_u32 v5, v4, v5")
    for i in range(4): A(f"v_cmp_eq_u32 s[{sMK+2*i}:{sMK+2*i+1}], {i}, v5")
    for i in range(4): A(f"v_mov_b32 v{ONESV+i}, s{sONES}")
    L = WF
    def x_read(t, vm):
        X = ACC[t % 2]
        ba, bb = BUF[2*t], BUF[2*t+1]
        o = [f"v_mov_b32 v2, {ba*32768}", f"v_mov_b32 v3, {bb*32768}", "v_cndmask_b32 v2, v2, v3, vcc"]
        o += [f"v_add_u32 v{T+8+k}, v2, v{T+4+k}" for k in range(4)]
        o.append(f"s_waitcnt vmcnt({vm})")
        o += [f"ds_read_b128 {vr(X+4*ks,4)}, v{T+8+(ks&3)} offset:{(ks&12)*64}" for ks in range(16)]
        return o
    def sumx(t):
        d = SUM + 4*(t % 2); X = ACC[t % 2]
        return [[f"{MF} {vr(d,4)}, {vr(ONESV,4)}, {vr(X+4*ks,4)}, {'0' if ks == 0 else vr(d,4)}"] for ks in range(16)]
    def gram(t):
        d = GR + 4*t
        return [[f"{MF} {vr(d,4)}, {ar((t*16+ks)*4,4)}, {ar((t*16+ks)*4,4)}, {'0' if ks == 0 else vr(d,4)}"] for ks in range(16)]
    def ln_stream(t):
        X = ACC[t % 2]; mu = MU
        o = [f"v_mul_f32 v{mu}, {hex(f32bits(-1.0/512))}, v{SUM+4*(t%2)}"]
        for b in range(16):
            tb_ = L + 8*(b % 2)
            for i in range(4):
                o.append(f"v_lshlrev_b32 v{tb_+2*i}, 16, v{X+4*b+i}"); o.append(f"v_and_b32 v{tb_+2*i+1}, 0xffff0000, v{X+4*b+i}")
            for i in range(8): o.append(f"v_add_f32 v{tb_+i}, v{tb_+i}, v{mu}")
            for i in range(4): o.append(f"v_cvt_pk_bf16_f32 v{X+4*b+i}, v{tb_+2*i}, v{tb_+2*i+1}")
            for i in range(4): o.append(f"v_accvgpr_write_b32 a{(t*16+b)*4+i}, v{X+4*b+i}")
        return o
    def interleave(main, sides):
        n = len(main)
        ins = {}
        for f0, f1, items in sides:
            for k, it in enumerate(items):
                p = int(n*(f0 + (f1-f0)*(k+0.5)/len(items)))
                ins.setdefault(p, []).extend(it)
        for i, x in enumerate(main):
            for y in ins.get(i, []): A(y)
            A(x)
    w03 = [it for n in range(4) for it in gw_slot(n)]
    if XORD:
        for x in x_read(0, 0): A(x)
        r23 = x_round(2) + x_round(3)
        for it in r23[:4]:
            for x in it: A(x)
        A("s_waitcnt lgkmcnt(0)")
        stamp(A, 2)
        for k, it in enumerate(sumx(0)):
            for x in it: A(x)
            if k < 12:
                for x in r23[4+k]: A(x)
        stamp(A, 3)
        interleave(ln_stream(0), [(0.01, 0.25, x_round(4)), (0.40, 0.41, [x_read(1, 8)]), (0.55, 0.56, [["s_waitcnt lgkmcnt(0)", "s_barrier"]]), (0.57, 0.8, x_round(5) + x_round(6)), (0.8, 0.99, w03), (0.6, 0.92, sumx(1))])
    else:
        for x in x_read(0, 16): A(x)
        A("s_waitcnt lgkmcnt(0)")
        stamp(A, 2)
        r4 = x_round(4)
        for k, it in enumerate(sumx(0)):
            for x in it: A(x)
            if k % 2 == 0:
                for x in r4[k//2]: A(x)
        for x in x_read(1, 8): A(x)
        stamp(A, 3)
        interleave(ln_stream(0), [(0.10, 0.11, [["s_waitcnt lgkmcnt(0)", "s_barrier"]]), (0.12, 0.45, x_round(5) + x_round(6)), (0.45, 0.98, w03), (0.5, 0.9, sumx(1))])
    for x in x_read(2, 24): A(x)
    stamp(A, 4)
    interleave(ln_stream(1), [(0.05, 0.45, gram(0)), (0.15, 0.16, [["s_waitcnt lgkmcnt(0)"]]), (0.17, 0.4, x_round(7)), (0.5, 0.9, sumx(2))])
    for x in x_read(3, 0): A(x)
    w46 = [it for n in range(4, 7) for it in gw_slot(n)]
    interleave(ln_stream(2), [(0.05, 0.45, gram(1)), (0.15, 0.16, [["s_waitcnt lgkmcnt(0)", "s_barrier"]]), (0.17, 0.7, w46), (0.5, 0.9, sumx(3))])
    stamp(A, 5)
    interleave(ln_stream(3), [(0.05, 0.45, gram(2))])
    A("s_nop 1")
    for it in gram(3):
        for x in it: A(x)
    def extract(t):
        g = GR + 4*t; D, D2 = L, L+1
        A(f"v_cndmask_b32 v{D}, 0, v{g}, s[{sMK}:{sMK+1}]")
        for i in range(1, 4): A(f"v_cndmask_b32 v{D}, v{D}, v{g+i}, s[{sMK+2*i}:{sMK+2*i+1}]")
        A(f"v_mov_b32 v{D2}, v{D}\ns_nop 1\nv_permlane16_swap_b32 v{D}, v{D2}\nv_add_f32 v{D}, v{D}, v{D2}")
        A(f"v_mov_b32 v{D2}, v{D}\ns_nop 1\nv_permlane32_swap_b32 v{D}, v{D2}\nv_add_f32 v{D}, v{D}, v{D2}")
        A(f"v_mov_b32 v{D2}, {hex(f32bits(1e-5))}\nv_fmac_f32 v{D2}, {hex(f32bits(1.0/512))}, v{D}")
        A(f"v_rsq_f32 v{RSTD+t}, v{D2}")
    for t in range(4): extract(t)
    A(f"s_cmp_eq_u32 s{sTYPE}, 0\ns_cbranch_scc1 K1_START2_Q\ns_branch K1_START2_G")

    def epilogue_ops(ty, acc, store_flags=store_flags):
        ops = []
        if ty in PLAIN: store_flags = ''
        blk = lambda nb, t: acc + (nb*4 + t)*4
        oq = 0
        def store(q, vo, off, so=sOB): return f"buffer_store_dwordx4 {vr(OUT+4*q,4)}, v{vo}, s[{S_OUT}:{S_OUT+3}], s{so} offen offset:{off}{store_flags}"
        if ty in 'QK':
            for pr in range(2):
                for t in range(4):
                    for h in range(2):
                        b = blk(2*pr+h, t)
                        if ty == 'Q':
                            for i in range(4): ops.append(f"v_mul_f32 v{b+i}, v{b+i}, v{SC+t}")
                        ops.append(f"v_cvt_pk_bf16_f32 v{OUT+4*oq+2*h}, v{b}, v{b+1}")
                        ops.append(f"v_cvt_pk_bf16_f32 v{OUT+4*oq+2*h+1}, v{b+2}, v{b+3}")
                    ops.append(store(oq, VO+t, pr*1024) if ty == 'K' else store(oq, VO+t, 0, sOB2 if pr else sOB)); oq = (oq+1) % 3
        elif ty == 'V':
            for nb in range(4):
                for v in range(2):
                    for h in range(2):
                        b = blk(nb, 2*v+h)
                        ops.append(f"v_cvt_pk_bf16_f32 v{OUT+4*oq+2*h}, v{b}, v{b+1}")
                        ops.append(f"v_cvt_pk_bf16_f32 v{OUT+4*oq+2*h+1}, v{b+2}, v{b+3}")
                    ops.append(store(oq, VO+v, nb*1024)); oq = (oq+1) % 3
        else:
            for t in range(4):
                for h in range(2):
                    g = blk(h, t); u = blk(h+2, t)
                    for i in range(4): ops.append(f"v_max_f32 v{g+i}, 0, v{g+i}")
                    for i in range(4): ops.append(f"v_mul_f32 v{u+i}, v{u+i}, v{SC+t}")
                    for i in range(4): ops.append(f"v_mul_f32 v{g+i}, v{g+i}, v{u+i}")
                    ops.append(f"v_cvt_pk_bf16_f32 v{OUT+4*oq+2*h}, v{g}, v{g+1}")
                    ops.append(f"v_cvt_pk_bf16_f32 v{OUT+4*oq+2*h+1}, v{g+2}, v{g+3}")
                ops.append(store(oq, VO+t, 0)); oq = (oq+1) % 3
        return ops

    def ob_calc(ty, su_reg_delta):
        o = [f"s_add_u32 s{sT1}, s{sSU}, {su_reg_delta}"] if su_reg_delta >= 0 else [f"s_sub_u32 s{sT1}, s{sSU}, {-su_reg_delta}"]
        if ty in 'GQ':
            o += [f"s_lshl_b32 s{sT1}, s{sT1}, {12 if ty == 'G' else 13}", f"s_add_u32 s{sOB}, s{sOBASE}, s{sT1}"]
            if ty == 'Q': o.append(f"s_add_u32 s{sOB2}, s{sOB}, 4096")
        else:
            hs = 19 if ty == 'Q' else 20
            ls = 12 if ty == 'V' else 11
            o += [f"s_lshr_b32 s{sOB}, s{sT1}, 1", f"s_lshl_b32 s{sOB}, s{sOB}, {hs}", f"s_and_b32 s{sT1}, s{sT1}, 1", f"s_lshl_b32 s{sT1}, s{sT1}, {ls}",
                  f"s_add_u32 s{sOB}, s{sOB}, s{sT1}", f"s_add_u32 s{sOB}, s{sOB}, s{sOBASE}"]
        return o

    def trreads(fi, nb, slot_in_half, ks):
        off = slot_in_half*16384 + ks*4096
        return [f"ds_read_b64_tr_b16 {vr(WF+4*fi,2)}, v{TRA+2*nb} offset:{off}",
                f"ds_read_b64_tr_b16 {vr(WF+4*fi+2,2)}, v{TRA+2*nb+1} offset:{off}"]

    def c_round(r):
        return [[f"s_add_u32 m0, s{sSTG}, {98304 + (r%2)*32768 + j*1024}", f"s_add_u32 s{sT0}, s{sRQ+r//2}, {j*8192 + (r%2)*128}",
                 f"buffer_load_dwordx4 v{T+(j&1)}, s[{S_ACT}:{S_ACT+3}], s{sT0} offen lds"] for j in range(8)]
    def c_reads(r):
        return [f"ds_read_b128 {ar((t*16+2*r+k2)*4, 4)}, v{T+2+k2} offset:{(r%2)*32768 + t*2048}" for t in range(4) for k2 in range(2)]

    def body(ty, par, first=False, vms=None, A=A):
        acc = ACC[par]; old = ACC[1-par]
        cs, ss, _ = dma_consts(ty)
        gaps = {}
        def G(q, m): return gaps.setdefault((q, m), {'mem': [], 'other': []})
        def room(q, m):
            g = G(q, m); return 2 - len(g['mem']) - len(g['other'])
        prew = {}
        if LGK:
            for q in range(4):
                for grp in range(1, 16, 2): G(q, grp*4 + 2)['other'].append("s_waitcnt lgkmcnt(10)")
        if not first:
            epi = epilogue_ops(ty, old)
            for q in range(4):
                G(q, 0)['other'] += [f"s_waitcnt vmcnt({vms[q]})", "s_barrier"]
                tgt = (4*par + q + 7) % 8
                trip = dma_slot(ty, 1 if q == 0 else 2, (q+3) % 4, tgt)
                if q == 1:
                    G(q, 1)['other'] += [f"s_add_u32 s{sT1}, s{sSU}, 2", f"s_cmp_ge_u32 s{sT1}, s{sEND}"]
                    G(q, 2)['other'] += [f"s_cselect_b32 s{S_WA+2}, 0, s{S_WA+2}", f"s_cselect_b32 s{S_WB+2}, 0, s{S_WB+2}"]
                for j, tr in enumerate(trip):
                    m = 8 + 12*j + 1
                    G(q, m)['other'] += tr[:2]
                    G(q, m+1)['mem'] += [tr[2]]
            oc = ob_calc(ty, -1)
            pos = [(0,1),(0,2),(0,4),(0,5)]
            k = 0
            for p in pos:
                while room(*p) > 0 and k < len(oc): G(*p)['other'].append(oc[k]); k += 1
            assert k == len(oc)
        for nb in range(4):
            m = 16 + 4*nb + 4
            G(3, m)['other'] += [f"v_xor_b32 v{TRA+2*nb}, 0x10000, v{TRA+2*nb}", f"v_xor_b32 v{TRA+2*nb+1}, 0x10000, v{TRA+2*nb+1}"]
        if not first:
            slots = [(q, m) for q in range(4) for m in range(64) if m % 4 != 3 and (q, m) >= (0, 6)]
            cap = [(s_, room(*s_)) for s_ in slots]
            tot = sum(c for _, c in cap)
            step = max(1.0, 0.8*tot/len(epi))
            flat = [s_ for s_, c in cap for _ in range(c)]
            idx = 0.0
            for op in epi:
                s_ = flat[int(idx)]
                if op.startswith('buffer_store'):
                    i2 = int(idx)
                    while True:
                        s_ = flat[i2]
                        g = G(*s_)
                        if not g['mem'] and not g['other']: break
                        i2 += 1
                    idx = max(idx, i2)
                    G(*s_)['mem'].append(op)
                else:
                    G(*s_)['other'].append(op)
                idx += step
        else:
            seq = ['R0']*8 + ['W0']*4 + ['R1']*8 + ['W1']*4
            def vm(tag): return len(seq) - 1 - max(i for i, e in enumerate(seq) if e == tag)
            def put_triples(q, m0, trips, tag):
                m = m0
                for tr in trips:
                    G(q, m)['other'] += tr[:2]
                    m2 = m + 1 if (m + 1) % 4 != 3 else m + 2
                    G(q, m2)['mem'].append(tr[2]); seq.append(tag)
                    m = m2
                    if len(G(q, m)['other']) >= 1 or True:
                        pass
                return m
            for h in range(8):
                q = h // 2; base = 32*(h % 2)
                if h >= 1: prew[(q, base)] = ["s_waitcnt lgkmcnt(2)"]
                need = None
                if h == 1: need = 'W1'
                elif h in (2, 4, 6): need = f'W{q+1}'
                if need: G(q, base)['other'] += [f"s_waitcnt vmcnt({vm(need)})", "s_barrier"]
                if h == 7: G(q, base)['other'] += ["s_barrier"]
                if HST and h in (2, 4, 6): G(q, base)['other'].append(f"s_memrealtime s[{64+2*(2+h//2)}:{65+2*(2+h//2)}]")
                m = base + 1
                if h + 2 <= 7: m = put_triples(q, m, c_round(h+2), f'R{h+2}')
                if WEARLY:
                    if h <= 1:
                        for n in (2*h+2, 2*h+3): m = put_triples(q, m, dma_slot(ty, n//4, n % 4, n), f'W{n}')
                elif h <= 3: m = put_triples(q, m, dma_slot(ty, (h+2)//4, (h+2) % 4, h+2), f'W{h+2}')
                if h == 7:
                    for n in range(6, 11): m = put_triples(q, m, dma_slot(ty, n//4, n % 4, n % 8), f'W{n}')
                    assert m <= 60, m
                if h == 4 and KV_TOUCH:
                    to = touch_ops(ty)
                    for k, x in enumerate(to):
                        if x.startswith('buffer'): seq.append('T')
                        G(q, base + 16 + (k//4)*1 + (1 if (base+16+(k//4)) % 4 == 3 else 0))['other'].append(x)
                if h + 1 <= 7:
                    mm = base + 24
                    prew[(q, mm)] = [f"s_waitcnt vmcnt({vm(f'R{h+1}')})"]
                    rds = c_reads(h+1)
                    for k, p in enumerate((mm, mm+1, mm+2, mm+4)):
                        G(q, p)['mem'] += rds[2*k:2*k+2]
        G(3, 60)['other'] += [f"s_add_u32 s{sDQ}, s{sDQ}, {cs}", f"s_add_u32 s{sDQ+1}, s{sDQ+1}, {cs}"]
        G(3, 61)['other'] += [f"s_add_u32 s{sDQ+2}, s{sDQ+2}, {cs}", f"s_add_u32 s{sDQ+3}, s{sDQ+3}, {cs}", f"s_add_u32 s{sSU}, s{sSU}, 1"]
        G(3, 62)['other'] += [f"s_mov_b32 s{S_OUT+2}, {0 if NOST else WS_USED}", f"s_cmp_ge_u32 s{sSU}, s{sEND}"]
        for q in range(4):
            for ks in range(4):
                for nb in range(4):
                    fi = (ks % 2)*4 + nb
                    grp = ks*4 + nb
                    if grp % 2 == 0 and not LGK: A("s_waitcnt lgkmcnt(12)")
                    for t in range(4):
                        m = grp*4 + t
                        for x in prew.get((q, m), []): A(x)
                        d = acc + (nb*4+t)*4
                        kk = q*4 + ks
                        c = "0" if kk == 0 else vr(d, 4)
                        w = vr(WF+4*fi, 4); a = ar((t*16+kk)*4, 4)
                        A(f"{MF} {vr(d,4)}, {a}, {w}, {c}" if ty == 'V' else f"{MF} {vr(d,4)}, {w}, {a}, {c}")
                        if t == 3:
                            if ks < 2: rd = trreads(fi, nb, q, ks+2)
                            else: rd = trreads(fi, nb, (q+1) % 4, ks-2)
                            for x in rd: A(x)
                        g = G(q, m)
                        for x in g['mem']: A(x)
                        for x in g['other']: A(x)

    def vm_table(ty):
        tmp = Asm(); body(ty, 0, vms=[0]*4, A=tmp)
        pat = []; q = -1
        for l in tmp.lines:
            if l == 's_barrier': q += 1; pat.append(('bar', q))
            elif l.startswith('buffer_load'): pat.append(('dma', q))
            elif l.startswith('buffer_store'): pat.append(('st', q))
        if ty in 'KV': seq = [5]*4 + [n for n in range(6, 11) for _ in range(4)]; c0 = 1
        else: seq = [n for n in range(4, 7) for _ in range(4)]; c0 = 0
        tab = {}
        for c in range(c0, 8):
            tab[c] = [0]*4
            for kind, q in pat:
                if kind == 'bar':
                    need = 4*c + q + 1
                    idx = [i for i, e in enumerate(seq) if e == need]
                    tab[c][q] = min(63, len(seq) - 1 - max(idx)) if idx else 63
                    if not EXACT: tab[c][q] = 20
                elif kind == 'dma': seq.append(4*c + q + 7)
                else: seq.append('s')
        return tab

    for ty in 'QKVG':
        VN = vm_table(ty)
        if ty in 'KV':
            A.label(f"K1_PRO_{ty}")
            if ACT_TOUCH: act_touch()
            A(f"v_lshrrev_b32 v4, 3, v0\nv_and_b32 v5, 7, v0\nv_lshrrev_b32 v6, 4, v0\nv_xor_b32 v5, v5, v6")
            A(f"v_lshlrev_b32 v4, 10, v4\nv_lshl_add_u32 v{T}, v5, 4, v4\nv_xor_b32 v{T+1}, 64, v{T}")
            for it in c_round(0) + dma_slot(ty, 0, 0, 0) + c_round(1) + dma_slot(ty, 0, 1, 1):
                for x in it: A(x)
            stamp(A, 1)
            A(f"v_and_b32 v4, 15, v0\nv_lshrrev_b32 v5, 1, v4\nv_xor_b32 v5, v5, v1\nv_lshlrev_b32 v4, 7, v4\nv_lshl_add_u32 v4, v5, 4, v4")
            A(f"s_add_u32 s{sT1}, s{sSTG}, 98304\nv_add_u32 v{T+2}, s{sT1}, v4\nv_xor_b32 v{T+3}, 64, v{T+2}")
            A("s_waitcnt vmcnt(12)\ns_barrier")
            stamp(A, 2)
            for x in c_reads(0): A(x)
            for ks in range(2):
                for nb in range(4):
                    for x in trreads(ks*4+nb, nb, 0, ks): A(x)
            A("s_waitcnt lgkmcnt(12)")
            body(ty, 0, first=True)
            stamp(A, 6)
            if not HST: stampc(A, 4)
            body(ty, 1, vms=VN[1])
            code_touch(A, "k2_kernel", "K2_END", sW, 0, DUM+1, 80)
            A(f"s_branch K1_LOOP_{ty}")
        else:
            if ty == 'G':
                A.label("K1_WPRE_G")
                wpre('G', range(7))
            A.label(f"K1_START2_{ty}")
            if W_TOUCH:
                for x in touch_ops(ty): A(x)
            if ty == 'Q':
                for t in range(4): A(f"v_mul_f32 v{SC+t}, {hex(f32bits(CSCALE))}, v{RSTD+t}")
            if ty == 'G':
                for t in range(4): A(f"v_mul_f32 v{SC+t}, v{RSTD+t}, v{RSTD+t}")
            A(f"s_waitcnt vmcnt({14 if W_TOUCH else 12})\ns_barrier")
            stamp(A, 6)
            for ks in range(2):
                for nb in range(4):
                    for x in trreads(ks*4+nb, nb, 0, ks): A(x)
            A("s_waitcnt lgkmcnt(12)")
        A(".p2align 6")
        A.label(f"K1_LOOP_{ty}")
        c0 = 2 if ty in 'KV' else 0
        body(ty, 0, vms=[min(VN[c][q] for c in range(c0, 8, 2)) for q in range(4)])
        A(f"s_cbranch_scc1 K1_DRAIN0_{ty}")
        body(ty, 1, vms=[min(VN[c][q] for c in range(c0+1, 8, 2)) for q in range(4)])
        A(f"s_cbranch_scc0 K1_LOOP_{ty}")
        for par in (1, 0):
            A.label(f"K1_DRAIN{par}_{ty}")
            if ty in 'KV' and not HST: stamp(A, 3); stampc(A, 5)
            for x in ob_calc(ty, -1): A(x)
            A("s_nop 1")
            if WBL2: A(f"s_cmp_lg_u32 s{sW}, 0\ns_cbranch_scc1 K1_NOWB{par}_{ty}\nbuffer_wbl2 sc1\nK1_NOWB{par}_{ty}:")
            for x in epilogue_ops(ty, ACC[par], (' ' + SFD) if SFD else ''): A(x)
            if ty == 'Q':
                A(f"s_cmp_eq_u32 s{sJOB2}, 1\ns_cbranch_scc0 K1_FIN")
                A(f"s_mov_b32 s{sJOB2}, 2\ns_mov_b32 s{sSU}, 42\ns_mov_b32 s{sEND}, 43")
                A("s_waitcnt vmcnt(0) lgkmcnt(0)\ns_barrier\ns_branch K1_SETUP_G")
            else:
                A("s_branch K1_FIN")
    A.label("K1_FIN")
    if asmlib.STAMP:
        A("s_waitcnt vmcnt(0)")
        stamp_flush(A, 0, 8, P_WS, sW)
    A.label("K1_END")
    A("s_endpgm")
    return dict(name="k1_kernel", vgpr=248+256, accum=248, sgpr=102, grid=256, block=256, lds=163840)
```

```python
from asmlib import *
import asmlib
from k1 import KV_BASE, A3_BASE, A3_TB64, WS_USED, MF, f32bits

def gen_k2(A, store_flags="", thr=2.0**30):
    O = 0; S01 = 128; S23 = [144, 160]; P01 = [176, 184]; P23 = 192; CX = 200; E = 232; LS = 236; L = 240
    VK = 244; VV = 245; VD = 246; TMP = 247
    AQ = 0; KF = 64; VF = 96
    S_KV, S_WS = 8, 12
    sW, sH, sI, sT0, sT1, sOFF, sHALF, sCNT, sTHR, sNEG = 16, 17, 18, 19, 20, 21, 22, 23, 24, 25
    sMK = 26
    sRET = 34
    sP = 36; sOHI = 37; sOLO = 38
    P_WS = 40; P_WO = 42; P_WD = 44; S_T = 48
    def Sreg(qp, kb, par): return (S01 + (qp*2+kb)*4) if qp < 2 else (S23[par] + ((qp-2)*2+kb)*4)
    def Preg(qp, par): return (P01[par] + qp*4) if qp < 2 else (P23 + (qp-2)*4)
    def Oreg(db, qb): return O + (db*4+qb)*4
    def CXr(qp, kb): return CX + (qp*2+kb)*4
    stubs = []
    uid = [0]
    def U(p): uid[0] += 1; return f"K2_{p}_{uid[0]}"

    A(".globl k2_kernel\n.p2align 8\n.type k2_kernel,@function")
    A.label("k2_kernel")
    A("s_cmp_ge_u32 s2, 256\ns_cbranch_scc1 K2_END")
    stamp(A, 0)
    A(f"s_load_dwordx2 s[{P_WS}:{P_WS+1}], s[0:1], 96\ns_load_dwordx2 s[{P_WO}:{P_WO+1}], s[0:1], 40\ns_load_dwordx2 s[{P_WD}:{P_WD+1}], s[0:1], 72\ns_mov_b32 s{S_T+3}, 0x00020000")
    A(f"v_lshrrev_b32 v{TMP}, 6, v0\nv_and_b32 v{TMP+1}, 63, v0\ns_nop 0\nv_readfirstlane_b32 s{sW}, v{TMP}")
    A(f"s_and_b32 s{sT0}, s2, 7\ns_lshr_b32 s{sT1}, s2, 3\ns_lshr_b32 s{sI}, s{sT1}, 2\ns_and_b32 s{sT1}, s{sT1}, 3\ns_lshl_b32 s{sH}, s{sT0}, 2\ns_add_u32 s{sH}, s{sH}, s{sT1}")
    A(f"s_mov_b32 s{S_KV+3}, 0x00020000\ns_mov_b32 s{S_WS+3}, 0x00020000\ns_mov_b32 s{S_WS+2}, {WS_USED}")
    A(f"s_lshl_b32 s{sT0}, s{sI}, 16\ns_sub_u32 s{S_KV+2}, 0x108000, s{sT0}")
    A(f"s_mov_b32 s{sTHR}, {hex(f32bits(thr))}\ns_mov_b32 s{sNEG}, 0xff800000")
    LN = TMP+1
    A(f"v_lshlrev_b32 v{VK}, 4, v{LN}\nv_add_u32 v{VV}, 0x10000, v{VK}")
    A(f"s_lshl_b32 s{sT0}, s{sW}, 12\nv_add_u32 v{VD}, s{sT0}, v{VK}")
    A(f"s_and_b32 s{sT0}, s{sW}, 1\ns_lshl_b32 s{sHALF}, s{sT0}, 12\ns_lshr_b32 s{sT0}, s{sW}, 1\ns_lshl_b32 s{sT1}, s{sT0}, 16\ns_add_u32 s{sHALF}, s{sHALF}, s{sT1}")
    A(f"s_lshl_b32 s{sT0}, s{sT0}, 15\ns_sub_u32 s{sOFF}, 0x8000, s{sT0}")
    code_touch(A, "k2_kernel", "K2_END", sW, LN, TMP+7, 80)
    A("s_waitcnt lgkmcnt(0)")
    stamp(A, 5)
    A(f"s_mov_b32 s{S_WS}, s{P_WS}\ns_mov_b32 s{S_WS+1}, s{P_WS+1}")
    A(f"s_lshl_b32 s{sT0}, s{sH}, 20\ns_add_u32 s{sT0}, s{sT0}, {KV_BASE-0x8000}\ns_add_u32 s{S_KV}, s{P_WS}, s{sT0}\ns_addc_u32 s{S_KV+1}, s{P_WS+1}, 0")
    A(f"s_lshr_b32 s{sT0}, s{sW}, 1\ns_lshl_b32 s{sT1}, s{sI}, 1\ns_add_u32 s{sOLO}, s{sT1}, s{sT0}\ns_sub_u32 s{sOHI}, 30, s{sT1}\ns_add_u32 s{sOHI}, s{sOHI}, s{sT0}")
    A(f"s_mul_i32 s{sOLO}, s{sOLO}, {A3_TB64}\ns_mul_i32 s{sOHI}, s{sOHI}, {A3_TB64}")
    A(f"s_lshl_b32 s{sT0}, s{sH}, 14\ns_and_b32 s{sT1}, s{sW}, 1\ns_lshl_b32 s{sT1}, s{sT1}, 11\ns_add_u32 s{sT0}, s{sT0}, s{sT1}\ns_add_u32 s{sT0}, s{sT0}, {A3_BASE}")
    A(f"s_add_u32 s{sOLO}, s{sOLO}, s{sT0}\ns_add_u32 s{sOHI}, s{sOHI}, s{sT0}")
    def qloads():
        for ds in range(4):
            for hl in range(2):
                A(f"s_add_u32 s{sT0}, s{sOHI if hl == 0 else sOLO}, {ds*4096}")
                for q2 in range(2):
                    qb = 2*hl + q2
                    A(f"buffer_load_dwordx4 {ar(AQ+(qb*4+ds)*4,4)}, v{VK}, s[{S_WS}:{S_WS+3}], s{sT0} offen offset:{q2*1024}")
    def dma_group(c):
        pre = [f"s_add_u32 m0, s{sHALF}, {(c%4)*8192}"]
        d = [f"buffer_load_dwordx4 v{VD}, s[{S_KV}:{S_KV+3}], s{sOFF} offen offset:{j*1024} lds" for j in range(4)]
        post = [f"s_add_u32 s{sOFF}, s{sOFF}, 16384"]
        if c % 4 == 3: post.append(f"s_xor_b32 s{sHALF}, s{sHALF}, 0x8000")
        return pre, d, post
    A(f"s_cmp_ge_u32 s{sW}, 2\ns_cbranch_scc1 K2_VSKIP")
    for c in range(2):
        pre, d, post = dma_group(c)
        for x in pre + ["s_nop 0"] + d + post: A(x)
    A(f"s_sub_u32 s{sOFF}, s{sOFF}, 32768")
    A.label("K2_VSKIP")
    A(f"s_add_u32 s{sOFF}, s{sOFF}, 32768")
    qloads()
    pre, d, post = dma_group(2)
    for x in pre + ["s_nop 0"] + d + post: A(x)
    A(f"v_and_b32 v{TMP+2}, 15, v{LN}\nv_lshrrev_b32 v{TMP+3}, 4, v{LN}\nv_lshlrev_b32 v{TMP+3}, 2, v{TMP+3}\nv_sub_u32 v{TMP+2}, v{TMP+2}, v{TMP+3}")
    for i in range(4): A(f"v_cmp_le_i32 s[{sMK+2*i}:{sMK+2*i+1}], {i}, v{TMP+2}")
    for r in list(range(O, O+128)) + list(range(CX, CX+32)) + list(range(LS, LS+8)): A(f"v_mov_b32 v{r}, 0")
    A(f"v_mov_b32 v{TMP+8}, s{sNEG}")
    NEGV = TMP+8

    def Dpatch(q0):
        o = []
        for i in range(4): o.append(f"v_cndmask_b32 v{CXr(q0,0)+i}, v{NEGV}, v{CXr(q0,0)+i}, s[{sMK+2*i}:{sMK+2*i+1}]")
        for i in range(4): o.append(f"v_mov_b32 v{CXr(q0,1)+i}, v{NEGV}")
        for i in range(4): o.append(f"v_cndmask_b32 v{CXr(q0+1,1)+i}, v{NEGV}, v{CXr(q0+1,1)+i}, s[{sMK+2*i}:{sMK+2*i+1}]")
        return o
    def Fpatch(q0): return [f"v_mov_b32 v{CXr(q0,0)+i}, v{NEGV}" for i in range(16)]
    def patch(q0, j):
        o = []
        lD, lE = U("PD"), U("PE")
        o.append(f"s_cmp_gt_u32 s{sW}, {j}"); o.append(f"s_cbranch_scc1 {lE}")
        if j > 0:
            o.append(f"s_cmp_eq_u32 s{sW}, {j}"); o.append(f"s_cbranch_scc1 {lD}")
            o += Fpatch(q0); o.append(f"s_branch {lE}")
            o.append(lD + ":")
        o += Dpatch(q0)
        o.append(lE + ":")
        o.append("s_nop 1")
        return o

    def kread(f, unit4): return f"ds_read_b128 {ar(KF+4*f,4)}, v{VK} offset:{unit4*8192 + f*1024}"
    def vread(f, slot4): return f"ds_read_b128 {ar(VF+4*f,4)}, v{VV} offset:{slot4*8192 + f*1024}"

    def sm_gaps(qs, srcpar, dstpar, look, ladd):
        g = [[] for _ in range(32)]
        lsb = LS + (0 if qs[0] == 0 else 2)
        src = lambda k: Sreg(qs[k//4], (k % 4)//2, srcpar) + 2*(k % 2)
        for k in range(8):
            if k < 7: a, b = src(k+1), src(k+1)+1
            elif look: a, b = look
            else: a = None
            en = E + 2*((k+1) % 2); ec = E + 2*(k % 2)
            if a is not None:
                g[4*k].append(f"v_exp_f32 v{en}, v{a}"); g[4*k+2].append(f"v_exp_f32 v{en+1}, v{b}")
            ls = lsb + k//4
            if k % 4 == 0:
                g[4*k+1].append(f"v_add_f32 v{ls}, v{ec}, v{ec+1}")
                lr, lsr = ladd[k//4]
                g[4*k+1].append(f"v_add_f32 v{lr}, v{lr}, v{lsr}")
            else:
                g[4*k+1].append(f"v_add_f32 v{ls}, v{ls}, v{ec}"); g[4*k+1].append(f"v_add_f32 v{ls}, v{ls}, v{ec+1}")
            g[4*k+3].append(f"v_cvt_pk_bf16_f32 v{Preg(qs[k//4], dstpar) + k % 4}, v{ec}, v{ec+1}")
        g[30].append(f"v_max_f32 v{TMP}, v{lsb}, v{lsb+1}")
        g[31].append(f"v_cmp_lt_f32 vcc, s{sTHR}, v{TMP}")
        return g

    def rescale(rows, init=False):
        o = ["s_nop 7"]
        D, D2, F = TMP+1, TMP+2, TMP+3
        for r in rows:
            s0 = r['S']
            o.append(f"v_max3_f32 v{D}, v{s0}, v{s0+1}, v{s0+2}")
            o.append(f"v_max3_f32 v{D}, v{D}, v{s0+3}, v{s0+4}")
            o.append(f"v_max3_f32 v{D}, v{D}, v{s0+5}, v{s0+6}")
            o.append(f"v_max_f32 v{D}, v{D}, v{s0+7}")
            o += [f"v_mov_b32 v{D2}, v{D}", "s_nop 1", f"v_permlane16_swap_b32 v{D}, v{D2}", f"v_max_f32 v{D}, v{D}, v{D2}"]
            o += [f"v_mov_b32 v{D2}, v{D}", "s_nop 1", f"v_permlane32_swap_b32 v{D}, v{D2}", f"v_max_f32 v{D}, v{D}, v{D2}"]
            o.append(f"v_ceil_f32 v{D}, v{D}")
            if not init:
                o.append(f"v_max_f32 v{D}, 0, v{D}")
                o.append(f"v_exp_f32 v{F}, -v{D}")
            for b in [s0] + r['subs']:
                for i in range(8): o.append(f"v_sub_f32 v{b+i}, v{b+i}, v{D}")
            if not init:
                qb = r['qb']
                for db in range(8):
                    for i in range(4): o.append(f"v_mul_f32 v{Oreg(db,qb)+i}, v{Oreg(db,qb)+i}, v{F}")
                o.append(f"v_mul_f32 v{L+qb}, v{L+qb}, v{F}")
                for pr in r.get('Pscale', []):
                    o += [f"v_lshlrev_b32 v{D2}, 16, v{pr}", f"v_and_b32 v{pr}, 0xffff0000, v{pr}", f"v_mul_f32 v{D2}, v{D2}, v{F}", f"v_mul_f32 v{pr}, v{pr}, v{F}",
                          f"v_cvt_pk_bf16_f32 v{pr}, v{D2}, v{pr}"]
            if r.get('P') is not None:
                ls = r['ls']
                for k in range(4):
                    o += [f"v_exp_f32 v{E}, v{s0+2*k}", f"v_exp_f32 v{E+1}, v{s0+2*k+1}", "s_nop 0"]
                    if k == 0: o.append(f"v_add_f32 v{ls}, v{E}, v{E+1}")
                    else: o += [f"v_add_f32 v{ls}, v{ls}, v{E}", f"v_add_f32 v{ls}, v{ls}, v{E+1}"]
                    o.append(f"v_cvt_pk_bf16_f32 v{r['P']+k}, v{E}, v{E+1}")
        return o
    def relook(look):
        return [f"v_exp_f32 v{E}, v{look[0]}", f"v_exp_f32 v{E+1}, v{look[1]}", "s_nop 1"] if look else ["s_nop 1"]

    def check_site(code):
        ls, lb = U("SLOW"), U("BACK")
        A(f"s_cbranch_vccnz {ls}")
        A.label(lb)
        stubs.append([ls + ":"] + code + [f"s_branch {lb}"])

    def emit_half(mf, gaps, extra, waits):
        for g in range(32):
            if g in waits: A(waits[g])
            m, rd = mf[g]
            if m: A(m)
            if rd: A(rd)
            ex = extra.get(g, ([], []))
            for x in ex[0]: A(x)
            for x in ex[1]: A(x)
            for x in gaps[g]: A(x)

    def H1(par, mq, ms, ku, toggleK=None, vm=None, dmas=(), noqk=False, nosm=False, last=False):
        n = 1 - par
        mf = []
        if noqk: mf = [(None, None)]*32
        elif mq == 4:
            for f in range(8):
                kb, ds = f//4, f % 4
                for qp in range(4):
                    d = Sreg(qp, kb, n)
                    c = vr(CXr(qp, kb), 4) if ds == 0 else vr(d, 4)
                    mf.append((f"{MF} {vr(d,4)}, {ar(KF+4*f,4)}, {ar(AQ+(qp*4+ds)*4,4)}, {c}", kread(f, ku[0]) if qp == 3 else None))
        else:
            for j in range(16):
                sel, f = j//8, j % 8
                kb, ds = f//4, f % 4
                for qb in range(2):
                    qp = 2*sel + qb
                    d = Sreg(qp, kb, n)
                    c = vr(CXr(qp, kb), 4) if ds == 0 else vr(d, 4)
                    rd = None
                    if qb == 1 and not (last and sel == 1): rd = kread(f, ku[sel])
                    mf.append((f"{MF} {vr(d,4)}, {ar(KF+4*f,4)}, {ar(AQ+(qb*4+ds)*4,4)}, {c}", rd))
        look = None if noqk else (Sreg(0, 0, n), Sreg(0, 0, n)+1)
        if nosm:
            gaps = [[] for _ in range(32)]
        else:
            gaps = sm_gaps((2, 3), par, par, look, [(L+0, LS+0), (L+1, LS+1)])
        extra = {}
        waits = {}
        if not noqk:
            waits[0] = "s_waitcnt lgkmcnt(8)"
            if mq == 2: waits[16] = "s_waitcnt lgkmcnt(4)"; waits[24] = "s_waitcnt lgkmcnt(4)"
        if vm is not None:
            extra[0] = ([], [f"s_waitcnt vmcnt({vm})", "s_barrier"])
        if toggleK is not None:
            gi = 0 if toggleK == 0 else 16
            e = extra.setdefault(gi, ([], [])); e[1].append(f"v_xor_b32 v{VK}, 0x8000, v{VK}")
        place_dmas(extra, dmas)
        emit_half(mf, gaps, extra, waits)
        if not nosm:
            rows = []
            for qq in range(2):
                qp = 2 + qq
                r = dict(S=Sreg(qp, 0, par), P=Preg(qp, par), ls=LS+2+qq)
                if ms == 4:
                    r['qb'] = qp
                    r['subs'] = ([Sreg(qp, 0, n), CXr(qp, 0)] if (mq == 4 and not noqk) else [])
                else:
                    r['qb'] = qq
                    r['subs'] = [CXr(qq, 0), CXr(qp, 0)] + ([] if noqk else [Sreg(qq, 0, n), Sreg(qp, 0, n)])
                    r['Pscale'] = [Preg(qq, par)+k for k in range(4)]
                rows.append(r)
            check_site(rescale(rows) + relook(look))

    def place_dmas(extra, dmas):
        for c, g0 in dmas:
            pre, d, post = dma_group(c)
            e = extra.setdefault(g0, ([], [])); e[1].extend(pre)
            for j in range(4):
                e = extra.setdefault(g0+1+4*j if g0+1+4*j < 32 else 31, ([], [])); e[0].append(d[j])
            e = extra.setdefault(min(31, g0+2+12), ([], [])); e[1].extend(post)

    def H2(par, mp, mnext, vu, toggleV=None, dmas=(), nopv=False, nosm=False):
        n = 1 - par
        mf = []
        if nopv: mf = [(None, None)]*32
        elif mp == 4:
            for db in range(8):
                for qp in range(4):
                    d = Oreg(db, qp)
                    mf.append((f"{MF} {vr(d,4)}, {ar(VF+4*db,4)}, {vr(Preg(qp,par),4)}, {vr(d,4)}", vread(db, vu[0]) if qp == 3 else None))
        else:
            for j in range(16):
                sel, db = j//8, j % 8
                for qb in range(2):
                    d = Oreg(db, qb)
                    rd = None
                    if qb == 1 and not (nosm and sel == 1): rd = vread(db, vu[sel])
                    mf.append((f"{MF} {vr(d,4)}, {ar(VF+4*db,4)}, {vr(Preg(2*sel+qb,par),4)}, {vr(d,4)}", rd))
        look = (Sreg(2, 0, n), Sreg(2, 0, n)+1)
        lt = (L+2, L+3) if mp == 4 else (L+0, L+1)
        if nosm:
            gaps = [[] for _ in range(32)]
            gaps[1] = [f"v_add_f32 v{lt[0]}, v{lt[0]}, v{LS+2}", f"v_add_f32 v{lt[1]}, v{lt[1]}, v{LS+3}"]
        else:
            gaps = sm_gaps((0, 1), n, n, look, [(lt[0], LS+2), (lt[1], LS+3)])
        extra = {}
        waits = {}
        if not nopv:
            waits[0] = "s_waitcnt lgkmcnt(8)" if not nosm else "s_waitcnt lgkmcnt(0)"
            if mp == 2: waits[16] = "s_waitcnt lgkmcnt(4)"; waits[24] = "s_waitcnt lgkmcnt(4)" if not nosm else "s_waitcnt lgkmcnt(0)"
        if toggleV is not None:
            gi = 0 if toggleV == 0 else 16
            e = extra.setdefault(gi, ([], [])); e[1].append(f"v_xor_b32 v{VV}, 0x8000, v{VV}")
        place_dmas(extra, dmas)
        emit_half(mf, gaps, extra, waits)
        if not nosm and not nopv:
            rows = []
            for qb in range(2):
                r = dict(S=Sreg(qb, 0, n), P=Preg(qb, n), ls=LS+qb, qb=qb, subs=[CXr(qb, 0)])
                if mnext == 2: r['subs'] += [Sreg(qb+2, 0, n), CXr(qb+2, 0)]
                rows.append(r)
            check_site(rescale(rows) + relook(look))

    def hook(cond_reg, val, code):
        ls, lb = U("HOOK"), U("HB")
        A(f"s_cmp_eq_u32 s{cond_reg}, {val}\ns_cbranch_scc1 {ls}")
        A.label(lb)
        stubs.append([ls + ":"] + code + [f"s_branch {lb}"])

    hook(sI, 0, patch(2, 0))
    stamp(A, 6)
    A("s_waitcnt vmcnt(0)\ns_barrier")
    stamp(A, 1)
    for f in range(8): A(kread(f, 0))
    for f in range(8): A(vread(f, 2))
    H1(1, 4, 4, [1], nosm=True, dmas=[(3, 0), (4, 15)])
    for c in range(5, 8):
        pre, d, post = dma_group(c)
        for x in pre + ["s_nop 0"] + d + post: A(x)
    rows = []
    for qp in range(4): rows.append(dict(S=Sreg(qp, 0, 0), subs=[CXr(qp, 0)], P=None))
    for x in rescale(rows, init=True): A(x)
    A(f"v_exp_f32 v{E}, v{Sreg(0,0,0)}\nv_exp_f32 v{E+1}, v{Sreg(0,0,0)+1}")
    H2(1, 4, 4, None, nopv=True)
    stamp(A, 2)
    A(f"s_mov_b32 s{sCNT}, s{sI}")
    A("s_waitcnt lgkmcnt(0)")

    def period44(r, pre=None):
        par = r % 2
        if pre: pre()
        ku = (r+2) % 4; vu = (r+1+2) % 4
        H1(par, 4, 4, [ku], toggleK=0 if ku == 0 else None, vm=16, dmas=[(r, 8)])
        H2(par, 4, 4, [vu], toggleV=0 if vu == 0 else None)

    A(f"s_cmp_eq_u32 s{sCNT}, 0\ns_cbranch_scc1 K2_SPECIAL")
    A(".p2align 6")
    A.label("K2_LOOPA")
    for r in range(4):
        period44(r, pre=(lambda: hook(sCNT, 1, patch(2, 0))) if r == 3 else None)
    A(f"s_sub_u32 s{sCNT}, s{sCNT}, 1\ns_cmp_lg_u32 s{sCNT}, 0\ns_cbranch_scc1 K2_LOOPA")
    A.label("K2_SPECIAL")
    for r in range(3):
        period44(r, pre=lambda: [A(x) for x in patch(2, r+1)])
    A(f"s_cmp_lt_u32 s{sW}, 2\ns_cselect_b32 s{S_T}, s{P_WO}, s{P_WD}\ns_cselect_b32 s{S_T+1}, s{P_WO+1}, s{P_WD+1}\ns_mov_b32 s{sT0}, {1376*1024}\ns_cselect_b32 s{S_T+2}, {4096*1024}, s{sT0}")
    A(f"s_mul_i32 s{sT0}, s2, {43*128}\ns_lshl_b32 s{sT1}, s2, 14\ns_cselect_b32 s{sT0}, s{sT1}, s{sT0}".replace("s_lshl_b32 s{sT1}, s2, 14".format(sT1=sT1), f"s_mul_i32 s{sT1}, s2, 16384"))
    A(f"s_and_b32 s{sT1}, s{sW}, 1\ns_lshl_b32 s{sT1}, s{sT1}, 13\ns_add_u32 s{sT0}, s{sT0}, s{sT1}\nv_and_b32 v{TMP+7}, 0x3ff, v{VK}\nv_lshlrev_b32 v{TMP+7}, 3, v{TMP+7}")
    A(f"buffer_load_dword v{TMP+7}, v{TMP+7}, s[{S_T}:{S_T+3}], s{sT0} offen")
    A(f"v_and_b32 v{TMP+6}, 0x3ff, v{VK}")
    code_touch(A, "k3_kernel", "K4_END", sW, TMP+6, TMP+6, 80, lane_shift=4)
    for i in range(16): A(f"v_mov_b32 v{CXr(2,0)+i}, v{CXr(0,0)+i}")
    hook(sI, 7, patch(0, 0) + patch(2, 1))
    A("s_nop 1")
    H1(1, 2, 4, [1, 2], vm=16, dmas=[(3, 8)])
    H2(1, 4, 2, [2])
    stamp(A, 3)
    A(f"s_lshl_b32 s{sT0}, s{sI}, 1\ns_sub_u32 s{sCNT}, 14, s{sT0}")
    def period22(r, last_qk=False):
        par = r
        ku = [3, 0] if r == 0 else [1, 2]
        vu = [3, 0] if r == 0 else [1, 2]
        c0 = 2*r
        H1(par, 2, 2, ku, toggleK=1 if r == 0 else None, vm=12, dmas=[(c0, 8)], last=last_qk)
        H2(par, 2, 2, vu, toggleV=1 if r == 0 else None, dmas=[(c0+1, 8)])
    A(f"s_cmp_eq_u32 s{sCNT}, 0\ns_cbranch_scc1 K2_TAIL")
    A(".p2align 6")
    A.label("K2_LOOPB")
    period22(0)
    hook(sCNT, 1, patch(0, 0) + patch(2, 1))
    period22(1)
    A(f"s_sub_u32 s{sCNT}, s{sCNT}, 1\ns_cmp_lg_u32 s{sCNT}, 0\ns_cbranch_scc1 K2_LOOPB")
    A.label("K2_TAIL")
    for x in patch(0, 2) + patch(2, 3): A(x)
    H1(0, 2, 2, [3, 0], toggleK=None, vm=12, last=True)
    H2(0, 2, 2, [3, 0], toggleV=1)
    H1(1, 2, 2, None, noqk=True, vm=0)
    H2(1, 2, 2, [1, 2], nosm=True)
    stamp(A, 4)
    for qb in range(4):
        D, D2 = L+qb, TMP+1
        A(f"v_mov_b32 v{D2}, v{D}\ns_nop 1\nv_permlane16_swap_b32 v{D}, v{D2}\nv_add_f32 v{D}, v{D}, v{D2}")
        A(f"v_mov_b32 v{D2}, v{D}\ns_nop 1\nv_permlane32_swap_b32 v{D}, v{D2}\nv_add_f32 v{D}, v{D}, v{D2}")
        A(f"v_rcp_f32 v{D}, v{D}")
    A(f"v_and_b32 v{VK}, 0x3ff, v{VK}")
    oq = 0
    for qb in (2, 3, 0, 1):
        for ds in range(4):
            ob = S01 + 4*oq
            for h in range(2):
                b = Oreg(2*ds+h, qb)
                for i in range(4): A(f"v_mul_f32 v{b+i}, v{b+i}, v{L+qb}")
                A(f"v_cvt_pk_bf16_f32 v{ob+2*h}, v{b}, v{b+1}\nv_cvt_pk_bf16_f32 v{ob+2*h+1}, v{b+2}, v{b+3}")
            A(f"s_add_u32 s{sT0}, s{sOHI if qb < 2 else sOLO}, {ds*4096}")
            A(f"buffer_store_dwordx4 {vr(ob,4)}, v{VK}, s[{S_WS}:{S_WS+3}], s{sT0} offen offset:{(qb%2)*1024}{store_flags}")
            oq = (oq+1) % 4
    if asmlib.STAMP:
        A("s_waitcnt vmcnt(0)")
        stamp_flush(A, 1, 8, P_WS, sW)
    A.label("K2_END")
    A("s_endpgm")
    for st in stubs:
        for x in st: A(x)
    return dict(name="k2_kernel", vgpr=256+128, accum=256, sgpr=96, grid=256, block=256, lds=131072)
```

```python
from asmlib import *
import asmlib
from k1 import KV_BASE, A3_BASE, A3_TB64, WS_USED, MF, f32bits
import math
P_BASE = KV_BASE
P_END = P_BASE + (8 << 20)

def gen_k3(A, RING=10):
    ACC = 0; AF = 64; WF = 96; RA = 128; TRA = 131; VD = 143; VL = 147; T = 148
    S_L, S_O = 8, 12
    sW, sT0, sT1, sT2, sSP, sTM, sTN, sOFF, sSTR, sM0 = 16, 17, 18, 19, 20, 21, 22, 23, 24, 25
    P_WO, P_WD, P_WS = 32, 34, 36
    NS = 43
    A(".globl k3_kernel\n.p2align 8\n.type k3_kernel,@function")
    A.label("k3_kernel")
    A("s_cmp_ge_u32 s2, 256\ns_cbranch_scc1 K3_END")
    stamp(A, 0)
    A(f"s_load_dwordx2 s[{P_WO}:{P_WO+1}], s[0:1], 40\ns_load_dwordx2 s[{P_WD}:{P_WD+1}], s[0:1], 72\ns_load_dwordx2 s[{P_WS}:{P_WS+1}], s[0:1], 96")
    A(f"v_lshrrev_b32 v{T}, 6, v0\nv_and_b32 v{T+1}, 63, v0\ns_nop 0\nv_readfirstlane_b32 s{sW}, v{T}")
    LN = T+1
    A(f"s_and_b32 s{sSP}, s2, 3\ns_lshr_b32 s{sT0}, s2, 2\ns_and_b32 s{sT0}, s{sT0}, 1\ns_lshl_b32 s{sT0}, s{sT0}, 3\ns_lshr_b32 s{sT1}, s2, 3\ns_and_b32 s{sT1}, s{sT1}, 7\ns_add_u32 s{sTM}, s{sT0}, s{sT1}\ns_lshr_b32 s{sTN}, s2, 6")
    A(f"s_mov_b32 s{S_L+3}, 0x00020000\ns_mov_b32 s{S_O+3}, 0x00020000\ns_mov_b32 s{S_O+2}, {P_END}")
    A(f"s_mul_i32 s{sT0}, s{sSP}, 43\ns_cmp_eq_u32 s{sSP}, 3\ns_cselect_b32 s{sT0}, 128, s{sT0}\ns_cselect_b32 s{sT1}, 0, s{sT0}")
    A(f"s_lshl_b32 s{sM0}, s{sW}, 12")
    A(f"v_lshlrev_b32 v{VL}, 4, v{LN}")
    A(f"s_cmp_lt_u32 s{sW}, 2\ns_cbranch_scc0 K3_WSETUP")
    A(f"s_lshl_b32 s{sT2}, s{sTM}, 1\ns_add_u32 s{sT2}, s{sT2}, s{sW}\ns_mul_i32 s{sOFF}, s{sT2}, {A3_TB64}\ns_lshl_b32 s{sT0}, s{sT0}, 12\ns_add_u32 s{sOFF}, s{sOFF}, s{sT0}\ns_add_u32 s{sOFF}, s{sOFF}, {A3_BASE}")
    A(f"s_mov_b32 s{sSTR}, 4096\ns_mov_b32 s{S_L+2}, {WS_USED}")
    for j in range(4): A(f"v_mov_b32 v{VD+j}, v{VL}")
    A(f"s_waitcnt lgkmcnt(0)\ns_mov_b32 s{S_L}, s{P_WS}\ns_mov_b32 s{S_L+1}, s{P_WS+1}\ns_branch K3_SETUP_DONE")
    A.label("K3_WSETUP")
    A(f"s_lshl_b32 s{sOFF}, s{sT1}, 15\ns_sub_u32 s{sT2}, s{sW}, 2\ns_lshl_b32 s{sT2}, s{sT2}, 14\ns_add_u32 s{sOFF}, s{sOFF}, s{sT2}\ns_lshl_b32 s{sT2}, s{sTN}, 8\ns_add_u32 s{sOFF}, s{sOFF}, s{sT2}")
    A(f"s_mov_b32 s{sSTR}, 32768")
    A(f"v_lshrrev_b32 v{T+2}, 4, v{LN}\nv_and_b32 v{T+3}, 15, v{LN}\nv_lshlrev_b32 v{T+4}, 1, v{T+2}\nv_xor_b32 v{T+3}, v{T+3}, v{T+4}\nv_lshlrev_b32 v{T+2}, 10, v{T+2}\nv_lshl_add_u32 v{VD}, v{T+3}, 4, v{T+2}")
    A(f"v_xor_b32 v{T+2}, 128, v{VD}\nv_add_u32 v{VD+1}, 3072, v{T+2}\nv_add_u32 v{VD+2}, 6144, v{VD}\nv_add_u32 v{VD+3}, 9216, v{T+2}")
    A(f"s_cmp_eq_u32 s{sSP}, 3\ns_mov_b32 s{sT2}, {4096*1024}\ns_cselect_b32 s{S_L+2}, {1376*1024}, s{sT2}")
    A(f"s_waitcnt lgkmcnt(0)\ns_cselect_b32 s{S_L}, s{P_WD}, s{P_WO}\ns_cselect_b32 s{S_L+1}, s{P_WD+1}, s{P_WO+1}")
    A.label("K3_SETUP_DONE")
    def loads(s):
        pre = [f"s_add_u32 m0, s{sM0}, {(s % RING)*16384}"]
        d = [f"buffer_load_dwordx4 v{VD+j}, s[{S_L}:{S_L+3}], s{sOFF} offen offset:{j*1024} lds" for j in range(4)]
        post = [f"s_add_u32 s{sOFF}, s{sOFF}, s{sSTR}"]
        return pre, d, post
    NPRE = RING - 1
    for s in range(3):
        pre, d, post = loads(s)
        for x in pre + ["s_nop 0"] + d + post: A(x)
    A(f"s_and_b32 s{sT0}, s{sW}, 1\ns_lshl_b32 s{sT0}, s{sT0}, 12\nv_add_u32 v{RA}, s{sT0}, v{VL}")
    A(f"v_lshrrev_b32 v{T+2}, 2, v{LN}\nv_and_b32 v{T+3}, 7, v{T+2}\nv_lshlrev_b32 v{T+2}, 8, v{T+2}\nv_and_b32 v{T+4}, 3, v{LN}\nv_lshl_add_u32 v{T+2}, v{T+4}, 3, v{T+2}\nv_add_u32 v{T+2}, 8192, v{T+2}")
    A(f"s_lshr_b32 s{sT0}, s{sW}, 1\ns_lshl_b32 s{sT0}, s{sT0}, 2\nv_xor_b32 v{T+3}, s{sT0}, v{T+3}")
    for nb in range(4): A(f"v_xor_b32 v{T+4}, {nb}, v{T+3}\nv_lshl_add_u32 v{TRA+nb}, v{T+4}, 5, v{T+2}")
    for k in range(1, 3):
        A(f"v_add_u32 v{RA+k}, {k*65536}, v{RA}")
        for nb in range(4): A(f"v_add_u32 v{TRA+4*k+nb}, {k*65536}, v{TRA+nb}")
    A(f"s_lshl_b32 s{sT0}, s{sSP}, 21\ns_lshl_b32 s{sT1}, s{sTM}, 17\ns_add_u32 s{sT0}, s{sT0}, s{sT1}\ns_lshl_b32 s{sT1}, s{sTN}, 15\ns_add_u32 s{sT0}, s{sT0}, s{sT1}\ns_lshl_b32 s{sT1}, s{sW}, 13\ns_add_u32 s{sT0}, s{sT0}, s{sT1}\ns_add_u32 s{sTM}, s{sT0}, {P_BASE}")
    A(f"s_mov_b32 s{S_O}, s{P_WS}\ns_mov_b32 s{S_O+1}, s{P_WS+1}")
    for s in range(3, NPRE):
        pre, d, post = loads(s)
        for x in pre + ["s_nop 0"] + d + post: A(x)
    def reads(s):
        sl = s % RING; hi = (sl*16384) // 65536; off = (sl*16384) % 65536
        o = []
        for k in range(4):
            o.append(f"ds_read_b64_tr_b16 {vr(WF+16*(s%2)+4*k,2)}, v{TRA+4*hi+k} offset:{off}")
            o.append(f"ds_read_b64_tr_b16 {vr(WF+16*(s%2)+4*k+2,2)}, v{TRA+4*hi+k} offset:{off+4096}")
            o.append(f"ds_read_b128 {vr(AF+16*(s%2)+4*k,4)}, v{RA+hi} offset:{off+k*1024}")
        return o
    issued = NPRE
    A(f"s_waitcnt vmcnt({4*(issued-1)})\ns_barrier")
    stamp(A, 1)
    for x in reads(0): A(x)
    for s in range(NS):
        if s == 21: stamp(A, 2)
        A("s_waitcnt lgkmcnt(0)")
        extra = {}
        if s % 2 == 0:
            need = min(s+2, NS-1)
            extra[0] = [f"s_waitcnt vmcnt({4*(issued-1-need)})", "s_barrier"]
        rd = reads(s+1) if s+1 < NS else []
        for k, x in enumerate(rd): extra.setdefault(1 + k, []).insert(0, x)
        tgt = s + RING - 1
        if tgt < NS:
            pre, d, post = loads(tgt)
            extra.setdefault(2, []).extend(pre)
            for j in range(4): extra.setdefault(4 + 3*j, []).append(d[j])
            extra.setdefault(14, []).extend(post)
            issued += 1
        for nb in range(4):
            for t in range(4):
                g = nb*4 + t
                d_ = ACC + g*4
                c = "0" if s == 0 else vr(d_, 4)
                A(f"{MF} {vr(d_,4)}, {vr(WF+16*(s%2)+4*nb,4)}, {vr(AF+16*(s%2)+4*t,4)}, {c}")
                for x in extra.get(g, []): A(x)
    stamp(A, 3)
    A("s_nop 7")
    for np_ in range(2):
        A(f"s_add_u32 s{sT0}, s{sTM}, {np_*4096}")
        for t in range(4):
            ob = AF + 4*(np_*4+t)
            for h in range(2):
                b_ = ACC + ((2*np_+h)*4 + t)*4
                A(f"v_cvt_pk_bf16_f32 v{ob+2*h}, v{b_}, v{b_+1}\nv_cvt_pk_bf16_f32 v{ob+2*h+1}, v{b_+2}, v{b_+3}")
            A(f"buffer_store_dwordx4 {vr(ob,4)}, v{VL}, s[{S_O}:{S_O+3}], s{sT0} offen offset:{t*1024} sc1")
    if asmlib.STAMP:
        stamp(A, 4)
        A("s_waitcnt vmcnt(0)")
        stamp_flush(A, 2, 6, P_WS, sW)
    A.label("K3_END")
    A("s_endpgm")
    return dict(name="k3_kernel", vgpr=160, accum=160, sgpr=96, grid=256, block=256, lds=RING*16384)

def gen_k4(A):
    S_P, S_X, S_O = 8, 12, 16
    sW, sT0, sT1, sT2 = 20, 21, 22, 23
    P_X, P_OUT, P_WS = 24, 26, 28
    R = 8; XR = 72; G = 80; VL = 2; VX = 3
    A(".globl k4_kernel\n.p2align 8\n.type k4_kernel,@function")
    A.label("k4_kernel")
    A("s_cmp_ge_u32 s2, 256\ns_cbranch_scc1 K4_END")
    stamp(A, 0)
    A(f"s_load_dwordx2 s[{P_X}:{P_X+1}], s[0:1], 0\ns_load_dwordx2 s[{P_OUT}:{P_OUT+1}], s[0:1], 80\ns_load_dwordx2 s[{P_WS}:{P_WS+1}], s[0:1], 96")
    A(f"v_lshrrev_b32 v1, 6, v0\nv_and_b32 v0, 63, v0\ns_nop 0\nv_readfirstlane_b32 s{sW}, v1")
    for r in (S_P, S_X, S_O): A(f"s_mov_b32 s{r+3}, 0x00020000")
    A(f"s_mov_b32 s{S_P+2}, {P_END}\ns_mov_b32 s{S_X+2}, 0x200000\ns_mov_b32 s{S_O+2}, 0x200000")
    A(f"v_lshlrev_b32 v{VL}, 4, v0")
    A(f"s_lshl_b32 s{sT0}, s2, 13\ns_lshl_b32 s{sT1}, s{sW}, 11\ns_add_u32 s{sT0}, s{sT0}, s{sT1}\ns_add_u32 s{sT0}, s{sT0}, {P_BASE}")
    A(f"s_lshr_b32 s{sT1}, s2, 4\ns_lshl_b32 s{sT1}, s{sT1}, 17\ns_and_b32 s{sT2}, s2, 1\ns_lshl_b32 s{sT2}, s{sT2}, 16\ns_add_u32 s{sT1}, s{sT1}, s{sT2}")
    A(f"s_lshr_b32 s{sT2}, s2, 1\ns_and_b32 s{sT2}, s{sT2}, 7\ns_lshl_b32 s{sT2}, s{sT2}, 7\ns_add_u32 s{sT1}, s{sT1}, s{sT2}")
    A(f"s_lshr_b32 s{sT2}, s{sW}, 1\ns_lshl_b32 s{sT2}, s{sT2}, 6\ns_add_u32 s{sT1}, s{sT1}, s{sT2}\ns_and_b32 s{sT2}, s{sW}, 1\ns_lshl_b32 s{sT2}, s{sT2}, 15\ns_add_u32 s{sT1}, s{sT1}, s{sT2}")
    A(f"v_and_b32 v4, 15, v0\nv_lshrrev_b32 v5, 4, v0\nv_lshlrev_b32 v4, 10, v4\nv_lshl_add_u32 v4, v5, 3, v4\nv_add_u32 v{VX}, s{sT1}, v4")
    A("s_waitcnt lgkmcnt(0)")
    A(f"s_mov_b32 s{S_P}, s{P_WS}\ns_mov_b32 s{S_P+1}, s{P_WS+1}\ns_mov_b32 s{S_X}, s{P_X}\ns_mov_b32 s{S_X+1}, s{P_X+1}\ns_mov_b32 s{S_O}, s{P_OUT}\ns_mov_b32 s{S_O+1}, s{P_OUT+1}")
    A(f"s_mov_b32 s{sT2}, 16384")
    PK = 96
    for sp in (3, 0, 1, 2):
        A(f"s_add_u32 s{sT1}, s{sT0}, {sp << 21}")
        for t in range(2): A(f"buffer_load_dwordx4 {vr(PK+8*sp+4*t,4)}, v{VL}, s[{S_P}:{S_P+3}], s{sT1} offen offset:{t*1024}")
    for t in range(2):
        for h in range(2):
            A(f"buffer_load_dwordx2 {vr(XR+4*t+2*h,2)}, v{VX}, s[{S_X}:{S_X+3}], {'s%d' % sT2 if t else '0'} offen offset:{h*32}")
    def unpack(dst, src):
        for i in range(8): A(f"v_lshlrev_b32 v{dst+2*i}, 16, v{src+i}\nv_and_b32 v{dst+2*i+1}, 0xffff0000, v{src+i}")
    A("s_waitcnt vmcnt(10)")
    dn = R + 48
    unpack(dn, PK+24)
    for i in range(16): A(f"v_mul_f32 v{G+i}, {hex(f32bits(-math.log2(math.e)))}, v{dn+i}")
    for i in range(16): A(f"v_exp_f32 v{G+i}, v{G+i}")
    for i in range(16): A(f"v_add_f32 v{G+i}, 1.0, v{G+i}")
    for i in range(16): A(f"v_rcp_f32 v{G+i}, v{G+i}")
    for i in range(16): A(f"v_mul_f32 v{G+i}, v{G+i}, v{dn+i}")
    A("s_waitcnt vmcnt(4)")
    unpack(R, PK); unpack(R+16, PK+8); unpack(R+32, PK+16)
    for i in range(16): A(f"v_add_f32 v{R+i}, v{R+i}, v{R+16+i}")
    for i in range(16): A(f"v_add_f32 v{R+i}, v{R+i}, v{R+32+i}")
    A("s_waitcnt vmcnt(0)")
    unpack(R+16, XR)
    for i in range(16): A(f"v_fmac_f32 v{R+16+i}, v{R+i}, v{G+i}")
    for i in range(8): A(f"v_cvt_pk_bf16_f32 v{R+32+i}, v{R+16+2*i}, v{R+17+2*i}")
    for t in range(2):
        for h in range(2):
            A(f"buffer_store_dwordx2 {vr(R+32+4*t+2*h,2)}, v{VX}, s[{S_O}:{S_O+3}], {'s%d' % sT2 if t else '0'} offen offset:{h*32}")
    if asmlib.STAMP:
        stamp(A, 1)
        A("s_waitcnt vmcnt(0)")
        stamp_flush(A, 3, 3, P_WS, sW)
    A.label("K4_END")
    A("s_endpgm")
    return dict(name="k4_kernel", vgpr=128, accum=128, sgpr=96, grid=256, block=256, lds=0)
```

```python
import sys
from asmlib import *
import asmlib, os
asmlib.STAMP = os.environ.get('STAMP','0')=='1'
import k1
HEADER = open('recurrent_scan__compressed_kv_cla__glu_gated_reglu__prompt.s.ref').read().split('; Override')[0]
def build(kernels, check=True):
    A = Asm()
    infos = []
    for g in kernels:
        start = len(A.lines)
        infos.append(g(A))
    body = A.text()
    if check:
        check_hazards(A.lines)
    out = HEADER
    for i in infos:
        out += f"; @launch kernel={i['name']} grid=({i['grid']},1,1) block=({i['block']},1,1) lds={i['lds']}\n"
    MAC = {'v_mfma_f32_16x16x32_bf16': 'mf', 'ds_read_b64_tr_b16': 'trr', 'buffer_load_dwordx4': 'bl4', 'buffer_store_dwordx4': 'bs4', 'v_cvt_pk_bf16_f32': 'cvp',
           'ds_read_b128': 'dr4', 'v_accvgpr_write_b32': 'acw', 'v_exp_f32': 'vex', 'v_add_f32': 'vaf', 'v_mul_f32': 'vmf', 'v_sub_f32': 'vsf', 's_add_u32': 'sad', 's_waitcnt': 'swc'}
    mac = ''.join(f".macro {v} a:vararg\n {k} \\a\n.endm\n" for k, v in MAC.items())
    import re
    body = re.sub(r'(?m)^ (\w+) ', lambda m: ' ' + MAC.get(m.group(1), m.group(1)) + ' ', body)
    out += '.amdgcn_target "amdgcn-amd-amdhsa--gfx950"\n.text\n' + mac + body
    out += '.section .rodata,"a"\n'
    for i in infos:
        out += f""".p2align 6
.amdhsa_kernel {i['name']}
  .amdhsa_next_free_vgpr {i['vgpr']}
  .amdhsa_next_free_sgpr {i['sgpr']}
  .amdhsa_accum_offset {i['accum']}
  .amdhsa_group_segment_fixed_size 0
  .amdhsa_kernarg_size 104
  .amdhsa_user_sgpr_count 2
  .amdhsa_user_sgpr_kernarg_segment_ptr 1
  .amdhsa_system_sgpr_workgroup_id_x 1
.end_amdhsa_kernel
"""
    return out
if __name__ == '__main__':
    sf = os.environ.get('SF', 'sc1')
    sf = (' ' + sf) if sf else ''
    sf1 = os.environ.get('SF1', sf.strip()); sf1 = (' ' + sf1) if sf1 else ''
    ks = [lambda A: k1.gen_k1(A, store_flags=sf1)]
    try:
        import k2; ks.append(lambda A: k2.gen_k2(A, store_flags=sf))
        if os.environ.get('K3', 'c') == 'a':
            import k3; ks.append(k3.gen_k3)
        elif os.environ.get('K3', 'c') == 'c':
            import k3c; ks.append(k3c.gen_k3); ks.append(k3c.gen_k4)
        else:
            import k3b; ks.append(k3b.gen_k3); ks.append(k3b.gen_k4)
    except ImportError as e:
        print("partial:", e)
    s = build(ks)
    open(sys.argv[1] if len(sys.argv) > 1 else 'cur.s', 'w').write(s)
    print(len(s), "bytes")
```

```python
import re

def vr(b, n=1): return f"v{b}" if n == 1 else f"v[{b}:{b+n-1}]"
def ar(b, n=1): return f"a{b}" if n == 1 else f"a[{b}:{b+n-1}]"
def sr(b, n=1): return f"s{b}" if n == 1 else f"s[{b}:{b+n-1}]"

_REG = re.compile(r"^-?(?:abs\()?([vas])(?:(\d+)|\[(\d+):(\d+)\])\)?$")
def regs_of(tok):
    tok = tok.strip()
    if tok.startswith('|') and tok.endswith('|'): tok = tok[1:-1]
    m = _REG.match(tok)
    if m:
        k = m.group(1)
        if m.group(2) is not None: return {(k, int(m.group(2)))}
        return {(k, i) for i in range(int(m.group(3)), int(m.group(4))+1)}
    if tok == 'vcc': return {('s', 106), ('s', 107)}
    if tok == 'exec': return {('s', 126), ('s', 127)}
    if tok == 'm0': return {('s', 124)}
    return set()

TRANS = ('v_exp_f32','v_log_f32','v_rcp_f32','v_rsq_f32','v_sqrt_f32','v_sin_f32','v_cos_f32')

class Ins:
    __slots__ = ('text','op','w','r','kind','srcc','passes','ws')
    def __init__(self, text):
        self.text = text
        t = text.split(';')[0].strip()
        self.op = t.split()[0] if t else ''
        rest = t[len(self.op):].strip()
        ops = [x.strip() for x in rest.split(',')] if rest else []
        ops = [o.split()[0] if o else o for o in ops]
        self.w = set(); self.r = set(); self.srcc = set(); self.passes = 0; self.ws = 1
        op = self.op
        R = [regs_of(o) for o in ops]
        if op.endswith(':') or op.startswith('.') or op == '':
            self.kind = 'label'; self.ws = 0
        elif op.startswith('v_mfma'):
            self.kind = 'mfma'; self.w = R[0]; self.r = R[1] | R[2] | R[3]; self.srcc = R[3]
            self.passes = 4 if '16x16x32' in op else 8
        elif op.startswith('v_cmp'):
            self.kind = 'valu'; self.w = R[0]; self.r = set().union(*R[1:])
        elif op in ('v_readfirstlane_b32', 'v_readlane_b32'):
            self.kind = 'valu'; self.w = R[0]; self.r = set().union(*R[1:])
        elif op.startswith('v_permlane') and 'swap' in op:
            self.kind = 'valu'; self.w = R[0] | R[1]; self.r = R[0] | R[1]
        elif op.startswith('v_'):
            self.kind = 'valu'; self.w = set(R[0]); self.r = set().union(*R[1:]) if len(R) > 1 else set()
            if op.startswith('v_fmac') or op.startswith('v_dot2c'): self.r |= R[0]
            if op.startswith('v_cndmask') and len(R) == 3: self.r |= regs_of('vcc')
            if op.startswith('v_add_co') or op.startswith('v_sub_co'): self.w |= R[1]
        elif op.startswith('ds_read') :
            self.kind = 'ds'; self.w = R[0]; self.r = R[1]
        elif op.startswith('ds_write'):
            self.kind = 'ds'; self.r = set().union(*R)
        elif op.startswith('ds_bpermute') or op.startswith('ds_swizzle'):
            self.kind = 'ds'; self.w = R[0]; self.r = set().union(*R[1:])
        elif op.startswith('buffer_load'):
            self.kind = 'vmem'
            if ' lds' in t: self.r = set().union(*R) | regs_of('m0'); self.kind = 'dma'
            else: self.w = R[0]; self.r = set().union(*R[1:])
        elif op.startswith('buffer_store'):
            self.kind = 'store'; self.r = set().union(*R); self.srcc = R[0]
        elif op.startswith('global_load'):
            self.kind = 'vmem'; self.w = R[0]; self.r = set().union(*R[1:])
        elif op.startswith('buffer_atomic'):
            self.kind = 'vmem'; self.r = set().union(*R)
        elif op in ('buffer_wbl2', 'buffer_inv'):
            self.kind = 'salu'
        elif op == 's_nop':
            self.kind = 'nop'; self.ws = int(ops[0], 0) + 1
        elif op.startswith('s_'):
            self.kind = 'salu'
            if op.startswith('s_cmp') or op.startswith('s_cbranch') or op in ('s_branch','s_barrier','s_waitcnt','s_endpgm','s_setprio','s_sleep','s_setpc_b64'):
                self.r = set().union(*R) if R else set()
            else:
                self.w = R[0] if R else set(); self.r = set().union(*R[1:]) if len(R) > 1 else set()
        else:
            raise ValueError("unknown op: " + text)

class Asm:
    def __init__(self):
        self.lines = []
    def __call__(self, text):
        for l in text.split('\n'):
            l = l.strip()
            if l: self.lines.append(l)
    def label(self, n): self.lines.append(n + ':')
    def text(self): return '\n'.join(('' if (l.endswith(':') or l.startswith('.') or l.startswith(';')) else ' ') + l for l in self.lines) + '\n'

def check_hazards(lines, verbose=True):
    ins = []
    for l in lines:
        if l.startswith(';') or l.startswith('.'): continue
        ins.append(Ins(l))
    probs = []
    n = len(ins)
    for i, c in enumerate(ins):
        if c.kind in ('label', 'nop'): continue
        dist = 0
        j = i - 1
        while j >= 0 and dist < 20:
            p = ins[j]
            if p.op in ('s_branch', 's_endpgm', 's_setpc_b64'): break
            need = 0
            vw = {x for x in p.w if x[0] in 'va'}
            sw = {x for x in p.w if x[0] == 's'}
            if p.kind == 'valu':
                if c.kind == 'mfma' and vw & c.r: need = max(need, 2)
                if c.op.startswith('v_permlane') and vw & c.r: need = max(need, 2)
                if c.op in ('v_readfirstlane_b32','v_readlane_b32') and vw & c.r: need = max(need, 1)
                if p.op in TRANS and c.kind in ('valu',) and c.op not in TRANS and vw & c.r: need = max(need, 1)
                if p.op in TRANS and c.kind in ('mfma','store','ds','vmem','dma') and vw & c.r: need = max(need, 2 if c.kind=='mfma' else 1)
                if sw:
                    if c.kind in ('vmem','dma','store') and sw & c.r: need = max(need, 5)
                    if c.kind == 'valu' and sw & c.r: need = max(need, 2)
                    if c.kind == 'salu' and sw & c.r and not c.op.startswith('s_cbranch'): need = max(need, 1)
                if 'dpp' in c.text and vw & c.r: need = max(need, 2)
                if p.op.startswith('v_dot'):
                    if c.op == p.op:
                        ab = set().union(*[regs_of(x.strip().split()[0]) for x in c.text.split(',')[1:3]])
                        if vw & ab: need = max(need, 3)
                    elif vw & (c.r | c.w): need = max(need, 3)
            if p.kind == 'mfma':
                ps = p.passes
                big = {4: 8, 8: 12}[ps]
                if c.kind == 'mfma':
                    ab = c.r - c.srcc
                    if p.w & ab: need = max(need, big)
                    if p.w & c.srcc:
                        if not (p.w == c.srcc and p.passes == c.passes): need = max(need, {4: 6, 8: 10}[ps])
                    if (p.w & c.w) and not (p.w & c.srcc): need = max(need, {4:6,8:10}[ps])
                elif c.kind in ('valu','ds','vmem','dma','store'):
                    if p.w & (c.r | c.w): need = max(need, big)
                    if c.kind == 'valu' and p.srcc & c.w: need = max(need, {4: 3, 8: 7}[ps])
            if p.kind == 'store' and p.op.endswith('x4'):
                if p.srcc & c.w: need = max(need, 2 if c.kind == 'valu' else 1)
            if p.kind == 'salu' and ('s', 124) in p.w and c.kind == 'dma': need = max(need, 1)
            if need > dist:
                probs.append(f"hazard need {need} have {dist}: [{p.text}] -> [{c.text}]")
            dist += p.ws
            j -= 1
    if verbose:
        for p in probs[:40]: print(p)
        print(f"hazard check: {len(probs)} problems over {n} instrs")
    return probs

STAMP = False
DBG_BASE = 120 << 20
def stamp(A, k):
    if STAMP: A(f"s_memrealtime s[{64+2*k}:{65+2*k}]")
def stamp_flush(A, kidx, n, pws, sw, v0=0):
    if not STAMP: return
    A(f"s_memrealtime s[{64+2*(n-1)}:{65+2*(n-1)}]")
    A(f"s_mov_b32 s80, s{pws}\ns_mov_b32 s81, s{pws+1}\ns_mov_b32 s82, 0x10000000\ns_mov_b32 s83, 0x00020000")
    A(f"s_lshl_b32 s84, s2, 2\ns_add_u32 s84, s84, s{sw}\ns_lshl_b32 s84, s84, 6\ns_add_u32 s84, s84, {DBG_BASE + kidx*0x10000}")
    A(f"v_mov_b32 v{v0+2}, 0\ns_waitcnt lgkmcnt(0)")
    for k in range(n):
        A(f"v_mov_b32 v{v0}, s{64+2*k}\nv_mov_b32 v{v0+1}, s{65+2*k}\nbuffer_store_dwordx2 v[{v0}:{v0+1}], v{v0+2}, s[80:83], s84 offen offset:{k*8}\ns_nop 1")

def stampc(A, k):
    if STAMP: A(f"s_memtime s[{64+2*k}:{65+2*k}]")

_ct = [0]
def code_touch(A, start, end, sw, vlane, vt, stmp, nshare=32, shift=3, lane_shift=0):
    A(f"s_getpc_b64 s[{stmp}:{stmp+1}]")
    _ct[0] += 1; lab = f"CT{_ct[0]}"
    A(f"{lab}:")
    A(f"s_add_u32 s{stmp}, s{stmp}, ({start}-{lab})&0xffffffff\ns_addc_u32 s{stmp+1}, s{stmp+1}, (({start}-{lab})>>32)&0xffffffff")
    A(f"s_lshr_b32 s{stmp+2}, s2, {shift}\ns_lshl_b32 s{stmp+2}, s{stmp+2}, 2\ns_add_u32 s{stmp+2}, s{stmp+2}, s{sw}")
    A(f"s_mul_i32 s{stmp+2}, s{stmp+2}, (({end}-{start}+{nshare*4*128-1})/{nshare*4*128})*128")
    A(f"v_lshlrev_b32 v{vt}, {7-lane_shift}, v{vlane}\nv_min_u32 v{vt}, (({end}-{start}+{nshare*4*128-1})/{nshare*4*128})*128-128, v{vt}\nv_add_u32 v{vt}, s{stmp+2}, v{vt}\nv_min_u32 v{vt}, {end}-{start}-4, v{vt}")
    A(f"global_load_dword v{vt}, v{vt}, s[{stmp}:{stmp+1}]")
```

```python
from asmlib import *
import asmlib
import math

import os
ACT_TOUCH = os.environ.get('ACT_TOUCH', '0') == '1'
W_TOUCH = os.environ.get('W_TOUCH', '1') == '1'
XFIRST = os.environ.get('XFIRST', '1') == '1'
KV_TOUCH = os.environ.get('KV_TOUCH', '0') == '1'
NOST = os.environ.get('NOST', '0') == '1'
SFD = os.environ.get('SFD', 'sc1')
WBL2 = os.environ.get('WBL2', '0') == '1'
HST = os.environ.get('HST', '0') == '1'
WEARLY = os.environ.get('WEARLY', '0') == '1'
WQ_TOUCH = os.environ.get('WQ_TOUCH', '1') == '1'
CODE_TOUCH = os.environ.get('CODE_TOUCH', '1') == '1'
CODE_TOUCH2 = os.environ.get('CODE_TOUCH2', '1') == '1'
XORD = os.environ.get('XORD', '0') == '1'
LGK = os.environ.get('LGK', '1') == '1'
EXACT = os.environ.get('EXACT', '1') == '1'
ROT = os.environ.get('ROT', '1') == '1'
WS_OFF = int(os.environ.get('WS_OFF', '0')) << 20
KV_BASE = WS_OFF + (1 << 20)
A3_BASE = WS_OFF + (33 << 20)
A3_TB64 = 171 * 4096
XC_BASE = WS_OFF + (56 << 20)
SCQ_BASE = WS_OFF + (58 << 20)
WS_USED = WS_OFF + (59 << 20)
MF = "v_mfma_f32_16x16x32_bf16"
CSCALE = math.log2(math.e) / math.sqrt(128.0)

def f32bits(x):
    import struct
    return struct.unpack('<I', struct.pack('<f', x))[0]

def gen_k1(A, store_flags=""):
    ACC = [8, 72]; WF = 136; TRA = 168; VW = 176; VO = 178; OUT = 184; SC = 196; RSTD = 200; T = 204; GR = 216; SUM = 232; ONESV = 240; MU = 244; DUM = 245; VLN = 247
    S_ACT, S_WA, S_WB, S_OUT = 8, 12, 16, 20
    sW, sTB, sCG, sSU, sEND, sDMA, sOB, sM0, sT0, sT1, sTYPE, sJOB2, sOBASE = 24, 25, 26, 27, 28, 29, 30, 31, 32, 33, 34, 35, 36
    sONES, sSLO, sSHI = 37, 38, 39
    P_X, P_CKV, P_WQ, P_WUK, P_WUV, P_WG, P_WU, P_WS = 40, 42, 44, 46, 48, 50, 52, 54
    sSTG = 56
    sROW = 57
    sEX2, sEX, sMK, sDQ, sROT, sOB2 = 58, 84, 88, 96, 62, 63
    S_XC = 4; sXQ = 44; sSCQ = 48
    sRQ = sEX; sXR = 40

    A(".globl k1_kernel\n.p2align 8\n.type k1_kernel,@function")
    A.label("k1_kernel")
    A("s_cmp_ge_u32 s2, 256\ns_cbranch_scc1 K1_END")
    stamp(A, 0)
    A(f"s_load_dwordx4 s[{P_X}:{P_X+3}], s[0:1], 0")
    A(f"s_load_dwordx4 s[{P_WQ}:{P_WQ+3}], s[0:1], 16")
    A(f"s_load_dwordx2 s[{P_WUV}:{P_WUV+1}], s[0:1], 32")
    A(f"s_load_dwordx2 s[{P_WG}:{P_WG+1}], s[0:1], 56")
    A(f"s_load_dwordx2 s[{P_WU}:{P_WU+1}], s[0:1], 64")
    A(f"s_load_dwordx2 s[{P_WS}:{P_WS+1}], s[0:1], 96")
    A(f"v_lshrrev_b32 v1, 6, v0\nv_and_b32 v0, 63, v0\ns_nop 0\nv_readfirstlane_b32 s{sW}, v1")
    A(f"s_and_b32 s{sT0}, s2, 7\ns_lshr_b32 s{sT1}, s2, 3\ns_and_b32 s{sTB}, s{sT1}, 7\ns_lshr_b32 s{sT1}, s{sT1}, 3")
    A(f"s_lshl_b32 s{sCG}, s{sT0}, 2\ns_add_u32 s{sCG}, s{sCG}, s{sT1}")
    A(f"s_mov_b32 s{sONES}, 0x3f803f80\ns_mov_b32 s{sSLO}, 0x00003f80\ns_mov_b32 s{sSHI}, 0x3f800000")
    A(f"s_mov_b32 s{sJOB2}, 0")
    A(f"s_lshl_b32 s{sSTG}, s{sW}, 13")
    A(f"s_lshl_b32 s{sROW}, s{sTB}, 18\ns_lshl_b32 s{sT0}, s{sW}, 16\ns_add_u32 s{sROW}, s{sROW}, s{sT0}")
    for r in (S_ACT, S_WA, S_WB, S_OUT): A(f"s_mov_b32 s{r+3}, 0x00020000")
    A(f"s_mov_b32 s{S_ACT+2}, 0x200000")
    if CODE_TOUCH: code_touch(A, "k1_kernel", "K1_END", sW, 0, DUM, 80)
    A("s_waitcnt lgkmcnt(0)")
    A(f"s_mov_b32 s{S_OUT}, s{P_WS}\ns_mov_b32 s{S_OUT+1}, s{P_WS+1}\ns_mov_b32 s{S_OUT+2}, 0")
    A(f"s_cmp_ge_u32 s{sCG}, 11\ns_cbranch_scc1 K1_DISP_C")
    A(f"s_mov_b32 s{S_ACT}, s{P_X}\ns_mov_b32 s{S_ACT+1}, s{P_X+1}")
    A(f"s_lshl_b32 s{sSU}, s{sCG}, 2\ns_add_u32 s{sEND}, s{sSU}, 4\ns_min_u32 s{sEND}, s{sEND}, 43\ns_branch K1_SETUP_G")
    A.label("K1_DISP_C")
    A(f"s_mov_b32 s{S_ACT}, s{P_CKV}\ns_mov_b32 s{S_ACT+1}, s{P_CKV+1}")
    A(f"s_cmp_ge_u32 s{sCG}, 21\ns_cbranch_scc1 K1_DISP_V")
    A(f"s_sub_u32 s{sT1}, s{sCG}, 11\ns_min_u32 s{sT0}, s{sT1}, 4\ns_mul_i32 s{sSU}, s{sT1}, 6\ns_add_u32 s{sSU}, s{sSU}, s{sT0}\ns_cmp_lt_u32 s{sT1}, 4\ns_cselect_b32 s{sT0}, 7, 6\ns_add_u32 s{sEND}, s{sSU}, s{sT0}\ns_branch K1_SETUP_K")
    A.label("K1_DISP_V")
    A(f"s_sub_u32 s{sT1}, s{sCG}, 21\ns_min_u32 s{sT0}, s{sT1}, 9\ns_mul_i32 s{sSU}, s{sT1}, 5\ns_add_u32 s{sSU}, s{sSU}, s{sT0}\ns_cmp_lt_u32 s{sT1}, 9\ns_cselect_b32 s{sT0}, 6, 5\ns_add_u32 s{sEND}, s{sSU}, s{sT0}\ns_branch K1_SETUP_V")

    def dma_consts(ty):
        if ty == 'G':
            return 64, 128*2752, [(S_WA, 0, 0), (S_WA, 0, 16*2752), (S_WB, 0, 0), (S_WB, 0, 16*2752)]
        return 128, 128*8192, [(S_WA, 0, 0), (S_WA, 1, 8*8192), (S_WA, 0, 16*8192), (S_WA, 1, 24*8192)]

    def dma_slot(ty, su_rel, q, ringslot):
        cs, ss, pieces = dma_consts(ty)
        out = []
        for j, (srd, vi, ex) in enumerate(pieces):
            out.append([f"s_add_u32 m0, s{sM0}, {ringslot*16384 + j*1024}",
                        f"s_add_u32 s{sT0}, s{sDQ+q}, {su_rel*cs + ex}",
                        f"buffer_load_dwordx4 v{VW+vi}, s[{srd}:{srd+3}], s{sT0} offen lds"])
        return out

    def setup(ty):
        A.label(f"K1_SETUP_{ty}")
        ptr = {'Q': P_WQ, 'K': P_WUK, 'V': P_WUV, 'G': P_WG}[ty]
        A(f"s_mov_b32 s{S_WA}, s{ptr}\ns_mov_b32 s{S_WA+1}, s{ptr+1}")
        pb = P_WU if ty == 'G' else ptr
        A(f"s_mov_b32 s{S_WB}, s{pb}\ns_mov_b32 s{S_WB+1}, s{pb+1}")
        wsz = 512*2752 if ty == 'G' else 512*8192
        A(f"s_mov_b32 s{S_WA+2}, {wsz}\ns_mov_b32 s{S_WB+2}, {wsz}")
        A(f"s_mov_b32 s{sTYPE}, {'QKVG'.index(ty)}")
        cs, ss, _ = dma_consts(ty)
        pitch = 2752 if ty == 'G' else 8192
        A(f"s_mul_i32 s{sDMA}, s{sSU}, {cs}\ns_mul_i32 s{sT0}, s{sW}, {32*pitch}\ns_add_u32 s{sDMA}, s{sDMA}, s{sT0}")
        A(f"s_lshl_b32 s{sM0}, s{sW}, 12")
        A(f"s_add_u32 s{sROT}, s{sCG}, s{sTB}\ns_and_b32 s{sROT}, s{sROT}, {3 if ROT else 0}")
        for q in range(4):
            A(f"s_add_u32 s{sT0}, s{sROT}, {q}\ns_and_b32 s{sT0}, s{sT0}, 3\ns_mul_i32 s{sT1}, s{sT0}, {ss}\ns_add_u32 s{sDQ+q}, s{sDMA}, s{sT1}")
            if ty in 'KV': A(f"s_lshl_b32 s{sT0}, s{sT0}, 8\ns_add_u32 s{sRQ+q}, s{sROW}, s{sT0}")
        if ty in 'QG':
            for j, (_, _, ex) in enumerate(dma_consts(ty)[2]): A(f"s_mov_b32 s{sEX+j}, {ex}\ns_mov_b32 s{sEX2+j}, {ex+cs}")
        A("v_lshrrev_b32 v1, 4, v0\nv_bfe_u32 v2, v0, 2, 2\nv_and_b32 v3, 3, v0")
        if ty != 'G':
            A("v_lshrrev_b32 v4, 3, v0\nv_and_b32 v5, 7, v0\nv_bfe_u32 v6, v0, 4, 1\nv_lshlrev_b32 v6, 1, v6\nv_xor_b32 v5, v5, v6")
            A(f"v_lshlrev_b32 v4, 13, v4\nv_lshl_add_u32 v{VW}, v5, 4, v4\nv_xor_b32 v{VW+1}, 64, v{VW}")
            A("v_lshrrev_b32 v4, 1, v2\nv_and_b32 v5, 1, v1\nv_lshl_add_u32 v4, v5, 1, v4")
            A("v_lshl_add_u32 v5, v1, 3, v2\nv_lshlrev_b32 v5, 7, v5\nv_lshl_add_u32 v5, v3, 3, v5")
            for nb in range(4):
                A(f"v_xor_b32 v6, {nb}, v4\nv_lshl_add_u32 v{TRA+2*nb}, v6, 5, v5\nv_add_u32 v{TRA+2*nb+1}, 512, v{TRA+2*nb}")
        else:
            A(f"v_lshrrev_b32 v4, 2, v0\nv_lshrrev_b32 v6, 5, v0\nv_lshlrev_b32 v6, 1, v6\nv_xor_b32 v5, v3, v6")
            A(f"v_mul_u32_u24 v4, 2752, v4\nv_lshl_add_u32 v{VW}, v5, 4, v4\nv_mov_b32 v{VW+1}, v{VW}")
            A("v_and_b32 v4, 1, v1")
            A("v_lshl_add_u32 v5, v1, 3, v2\nv_lshlrev_b32 v5, 6, v5\nv_lshl_add_u32 v5, v3, 3, v5")
            for nb in range(4):
                A(f"v_xor_b32 v6, {nb%2}, v4\nv_lshl_add_u32 v6, v6, 5, v5\nv_add_u32 v{TRA+2*nb}, {(nb//2)*2048}, v6\nv_add_u32 v{TRA+2*nb+1}, 256, v{TRA+2*nb}")
        A("v_lshlrev_b32 v4, 4, v0")
        if ty == 'Q':
            for t in range(4): A(f"s_add_u32 s{sT0}, s{sCG}, {t}\ns_and_b32 s{sT0}, s{sT0}, {3 if ROT else 0}\ns_lshl_b32 s{sT0}, s{sT0}, 10\nv_add_u32 v{VO+t}, s{sT0}, v4" if ROT else f"v_add_u32 v{VO+t}, {t*1024}, v4")
            A(f"s_lshl_b32 s{sT0}, s{sTB}, 2\ns_add_u32 s{sT0}, s{sT0}, s{sW}\ns_mul_i32 s{sOBASE}, s{sT0}, {A3_TB64}\ns_add_u32 s{sOBASE}, s{sOBASE}, {A3_BASE}")
        elif ty == 'K':
            for t in range(4): A(f"v_add_u32 v{VO+t}, {(t//2)*16384 + (t%2)*4096}, v4")
            A(f"s_lshl_b32 s{sOBASE}, s{sTB}, 17\ns_lshl_b32 s{sT0}, s{sW}, 15\ns_add_u32 s{sOBASE}, s{sOBASE}, s{sT0}\ns_add_u32 s{sOBASE}, s{sOBASE}, {KV_BASE}")
        elif ty == 'V':
            for t in range(4): A(f"v_add_u32 v{VO+t}, {(t%2)*16384}, v4")
            A(f"s_lshl_b32 s{sOBASE}, s{sTB}, 17\ns_lshl_b32 s{sT0}, s{sW}, 15\ns_add_u32 s{sOBASE}, s{sOBASE}, s{sT0}\ns_add_u32 s{sOBASE}, s{sOBASE}, {KV_BASE+8192}")
        else:
            for t in range(4): A(f"s_add_u32 s{sT0}, s{sCG}, {t}\ns_and_b32 s{sT0}, s{sT0}, {3 if ROT else 0}\ns_lshl_b32 s{sT0}, s{sT0}, 10\nv_add_u32 v{VO+t}, s{sT0}, v4" if ROT else f"v_add_u32 v{VO+t}, {t*1024}, v4")
            A(f"s_lshl_b32 s{sT0}, s{sTB}, 2\ns_add_u32 s{sT0}, s{sT0}, s{sW}\ns_mul_i32 s{sOBASE}, s{sT0}, {A3_TB64}\ns_add_u32 s{sOBASE}, s{sOBASE}, {A3_BASE + 128*4096}")
        A(f"s_mov_b32 s{S_OUT+2}, {0 if ty in 'QG' else WS_USED}")
        A(f"s_branch {'K1_STAGE_X' if ty in 'QG' else 'K1_PRO_' + ty}")

    for ty in 'KVG': setup(ty)

    def wpre(ty, slots):
        for q in slots:
            for tr in dma_slot(ty, q//4, q%4, q):
                for x in tr: A(x)

    def act_touch():
        A(f"s_lshl_b32 s{sT1}, s{sTB}, 18\ns_and_b32 s{sT0}, s{sCG}, 3\ns_lshl_b32 s{sT0}, s{sT0}, 16\ns_add_u32 s{sT1}, s{sT1}, s{sT0}\ns_lshl_b32 s{sT0}, s{sW}, 14\ns_add_u32 s{sT1}, s{sT1}, s{sT0}")
        A(f"v_lshrrev_b32 v4, 3, v0\nv_and_b32 v5, 7, v0\nv_lshlrev_b32 v4, 10, v4\nv_lshl_add_u32 v4, v5, 7, v4\ns_add_u32 s{sT0}, s{sT1}, 8192")
        A(f"buffer_load_dword v{DUM}, v4, s[{S_ACT}:{S_ACT+3}], s{sT1} offen\nbuffer_load_dword v{DUM+1}, v4, s[{S_ACT}:{S_ACT+3}], s{sT0} offen")

    def touch_ops(ty):
        pitch = 2752 if ty == 'G' else 8192
        cs, _, _ = dma_consts(ty)
        o = [f"s_lshl_b32 s{sT1}, s{sTB}, 2", f"s_add_u32 s{sT1}, s{sT1}, s{sW}", f"s_mul_i32 s{sT1}, s{sT1}, {16*pitch}", f"s_mul_i32 s{sT0}, s{sSU}, {cs}", f"s_add_u32 s{sT1}, s{sT1}, s{sT0}"]
        if ty == 'G':
            o += ["v_lshrrev_b32 v4, 2, v0", "v_and_b32 v5, 3, v0", "v_mul_u32_u24 v4, 2752, v4", f"v_add_u32 v4, s{sT1}, v4", "v_and_b32 v4, 0xffffff80, v4", "v_lshl_add_u32 v4, v5, 7, v4"]
            o += [f"buffer_load_dword v{DUM+j}, v4, s[{srd}:{srd+3}], 0 offen" for j, srd in enumerate((S_WA, S_WB))]
        else:
            o += ["v_lshrrev_b32 v4, 3, v0", "v_and_b32 v5, 7, v0", "v_lshlrev_b32 v4, 13, v4", "v_lshl_add_u32 v4, v5, 7, v4"]
            for j in range(2):
                o += [f"s_add_u32 s{sT0}, s{sT1}, {j*8*pitch}", f"buffer_load_dword v{DUM+j}, v4, s[{S_WA}:{S_WA+3}], s{sT0} offen"]
        return o

    BUF = [0, 1, 2, 3, 4, 2, 3, 4]
    A.label("K1_STAGE_X")
    A(f"s_mov_b32 s{S_XC}, s{P_WS}\ns_mov_b32 s{S_XC+1}, s{P_WS+1}\ns_mov_b32 s{S_XC+3}, 0x00020000\ns_cmp_ge_u32 s{sCG}, 7\ns_cselect_b32 s{S_XC+2}, {WS_USED}, 0")
    A(f"s_lshl_b32 s{sT1}, s{sTB}, 4\ns_lshl_b32 s{sT0}, s{sW}, 2\ns_add_u32 s{sT1}, s{sT1}, s{sT0}\ns_and_b32 s{sT0}, s{sCG}, {3 if ROT else 0}\ns_add_u32 s{sT1}, s{sT1}, s{sT0}")
    A(f"s_lshl_b32 s{sSCQ}, s{sT1}, 6\ns_add_u32 s{sSCQ}, s{sSCQ}, {SCQ_BASE}\ns_lshl_b32 s{sT1}, s{sT1}, 14\ns_add_u32 s{sT1}, s{sT1}, {XC_BASE}")
    for q in range(4): A(f"s_add_u32 s{sT0}, s{sROT}, {q}\ns_and_b32 s{sT0}, s{sT0}, 3\ns_lshl_b32 s{sT0}, s{sT0}, 12\ns_add_u32 s{sXQ+q}, s{sT1}, s{sT0}")
    A(f"v_lshlrev_b32 v{VLN}, 4, v0")
    if ACT_TOUCH: act_touch()
    A(f"s_lshl_b32 s{sT0}, s{sROT}, 4\nv_add_u32 v{T}, s{sT0}, v0\nv_and_b32 v{T}, 63, v{T}\nv_lshlrev_b32 v{T}, 4, v{T}")
    for t in range(4):
        A(f"s_add_u32 s{sT0}, s{sCG}, {t}\ns_and_b32 s{sT0}, s{sT0}, 3\ns_lshl_b32 s{sT0}, s{sT0}, 14\ns_add_u32 s{sXR+t}, s{sROW}, s{sT0}" if ROT else f"s_add_u32 s{sXR+t}, s{sROW}, {t*16384}")
    def x_round(r):
        o = []
        for j in range(8):
            tok = (8*r + j) & 15
            o.append([f"v_xor_b32 v{T+1+(j&1)}, {tok*16}, v{T}", f"s_add_u32 m0, s{sSTG}, {BUF[r]*32768 + j*1024}", f"s_add_u32 s{sT0}, s{sXR+r//2}, {(8*(r%2)+j)*1024}",
                      f"buffer_load_dwordx4 v{T+1+(j&1)}, s[{S_ACT}:{S_ACT+3}], s{sT0} offen lds"])
        return o
    def gw_slot(n):
        o = []
        for j in range(4):
            srd = S_WA if j < 2 else S_WB
            it = [f"s_add_u32 m0, s{sM0}, {n*16384 + j*1024}", f"s_add_u32 s{sT0}, s{sDQ+n%4}, s{(sEX if n < 4 else sEX2)+j}", f"buffer_load_dwordx4 v{VW+(j&1)}, s[{srd}:{srd+3}], s{sT0} offen lds"]
            o.append(it)
        return o
    for r in range(2 if XORD else 4):
        for it in x_round(r):
            for x in it: A(x)
    stamp(A, 1)
    A(f"v_and_b32 v4, 15, v0\nv_and_b32 v5, 7, v0\nv_lshlrev_b32 v5, 10, v5\nv_and_b32 v6, 3, v0\nv_xor_b32 v6, v6, v1\nv_lshl_add_u32 v5, v6, 4, v5")
    A(f"v_add_u32 v5, s{sSTG}, v5\nv_lshrrev_b32 v6, 2, v4")
    for k in range(4):
        A(f"v_xor_b32 v7, {k}, v6\nv_lshl_add_u32 v{T+4+k}, v7, 6, v5")
    A(f"v_cmp_lt_u32 vcc, 7, v4")
    A(f"v_lshlrev_b32 v5, 2, v1\nv_sub_u32 v5, v4, v5")
    for i in range(4): A(f"v_cmp_eq_u32 s[{sMK+2*i}:{sMK+2*i+1}], {i}, v5")
    for i in range(4): A(f"v_mov_b32 v{ONESV+i}, s{sONES}")
    L = WF
    def x_read(t, vm):
        X = ACC[t % 2]
        ba, bb = BUF[2*t], BUF[2*t+1]
        o = [f"v_mov_b32 v2, {ba*32768}", f"v_mov_b32 v3, {bb*32768}", "v_cndmask_b32 v2, v2, v3, vcc"]
        o += [f"v_add_u32 v{T+8+k}, v2, v{T+4+k}" for k in range(4)]
        o.append(f"s_waitcnt vmcnt({vm})")
        o += [f"ds_read_b128 {vr(X+4*ks,4)}, v{T+8+(ks&3)} offset:{(ks&12)*64}" for ks in range(16)]
        return o
    def sumx(t):
        d = SUM + 4*(t % 2); X = ACC[t % 2]
        return [[f"{MF} {vr(d,4)}, {vr(ONESV,4)}, {vr(X+4*ks,4)}, {'0' if ks == 0 else vr(d,4)}"] for ks in range(16)]
    def gram(t):
        d = GR + 4*t
        return [[f"{MF} {vr(d,4)}, {ar((t*16+ks)*4,4)}, {ar((t*16+ks)*4,4)}, {'0' if ks == 0 else vr(d,4)}"] for ks in range(16)]
    def ln_stream(t):
        X = ACC[t % 2]; mu = MU
        o = [f"v_mul_f32 v{mu}, {hex(f32bits(-1.0/512))}, v{SUM+4*(t%2)}"]
        for b in range(16):
            tb_ = L + 8*(b % 2)
            for i in range(4):
                o.append(f"v_lshlrev_b32 v{tb_+2*i}, 16, v{X+4*b+i}"); o.append(f"v_and_b32 v{tb_+2*i+1}, 0xffff0000, v{X+4*b+i}")
            for i in range(8): o.append(f"v_add_f32 v{tb_+i}, v{tb_+i}, v{mu}")
            for i in range(4): o.append(f"v_cvt_pk_bf16_f32 v{X+4*b+i}, v{tb_+2*i}, v{tb_+2*i+1}")
            for i in range(4): o.append(f"v_accvgpr_write_b32 a{(t*16+b)*4+i}, v{X+4*b+i}")
        return o
    def interleave(main, sides):
        n = len(main)
        ins = {}
        for f0, f1, items in sides:
            for k, it in enumerate(items):
                p = int(n*(f0 + (f1-f0)*(k+0.5)/len(items)))
                ins.setdefault(p, []).extend(it)
        for i, x in enumerate(main):
            for y in ins.get(i, []): A(y)
            A(x)
    w03 = [it for n in range(4) for it in gw_slot(n)]
    if XORD:
        for x in x_read(0, 0): A(x)
        r23 = x_round(2) + x_round(3)
        for it in r23[:4]:
            for x in it: A(x)
        A("s_waitcnt lgkmcnt(0)")
        stamp(A, 2)
        for k, it in enumerate(sumx(0)):
            for x in it: A(x)
            if k < 12:
                for x in r23[4+k]: A(x)
        stamp(A, 3)
        interleave(ln_stream(0), [(0.01, 0.25, x_round(4)), (0.40, 0.41, [x_read(1, 8)]), (0.55, 0.56, [["s_waitcnt lgkmcnt(0)", "s_barrier"]]), (0.57, 0.8, x_round(5) + x_round(6)), (0.8, 0.99, w03), (0.6, 0.92, sumx(1))])
    else:
        for x in x_read(0, 16): A(x)
        A("s_waitcnt lgkmcnt(0)")
        stamp(A, 2)
        r4 = x_round(4)
        for k, it in enumerate(sumx(0)):
            for x in it: A(x)
            if k % 2 == 0:
                for x in r4[k//2]: A(x)
        for x in x_read(1, 8): A(x)
        stamp(A, 3)
        interleave(ln_stream(0), [(0.10, 0.11, [["s_waitcnt lgkmcnt(0)", "s_barrier"]]), (0.12, 0.45, x_round(5) + x_round(6)), (0.45, 0.98, w03), (0.5, 0.9, sumx(1))])
    for x in x_read(2, 24): A(x)
    stamp(A, 4)
    interleave(ln_stream(1), [(0.05, 0.45, gram(0)), (0.15, 0.16, [["s_waitcnt lgkmcnt(0)"]]), (0.17, 0.4, x_round(7)), (0.5, 0.9, sumx(2))])
    for x in x_read(3, 0): A(x)
    w46 = [it for n in range(4, 7) for it in gw_slot(n)]
    interleave(ln_stream(2), [(0.05, 0.45, gram(1)), (0.15, 0.16, [["s_waitcnt lgkmcnt(0)", "s_barrier"]]), (0.17, 0.7, w46), (0.5, 0.9, sumx(3))])
    stamp(A, 5)
    xcst = [[f"buffer_store_dwordx4 {ar(b*4,4)}, v{VLN}, s[{S_XC}:{S_XC+3}], s{sXQ+b//4} offen offset:{(b%4)*1024} sc1"] for b in range(16)]
    interleave(ln_stream(3), [(0.05, 0.45, gram(2))])
    A("s_nop 1")
    for it in gram(3):
        for x in it: A(x)
    def extract(t):
        g = GR + 4*t; D, D2 = L, L+1
        A(f"v_cndmask_b32 v{D}, 0, v{g}, s[{sMK}:{sMK+1}]")
        for i in range(1, 4): A(f"v_cndmask_b32 v{D}, v{D}, v{g+i}, s[{sMK+2*i}:{sMK+2*i+1}]")
        A(f"v_mov_b32 v{D2}, v{D}\ns_nop 1\nv_permlane16_swap_b32 v{D}, v{D2}\nv_add_f32 v{D}, v{D}, v{D2}")
        A(f"v_mov_b32 v{D2}, v{D}\ns_nop 1\nv_permlane32_swap_b32 v{D}, v{D2}\nv_add_f32 v{D}, v{D}, v{D2}")
        A(f"v_mov_b32 v{D2}, {hex(f32bits(1e-5))}\nv_fmac_f32 v{D2}, {hex(f32bits(1.0/512))}, v{D}")
        A(f"v_rsq_f32 v{RSTD+t}, v{D2}")
    for t in range(4): extract(t)
    A(f"v_mul_f32 v{MU}, {hex(f32bits(CSCALE))}, v{RSTD}\nv_and_b32 v{SUM}, 15, v0\nv_lshlrev_b32 v{SUM}, 2, v{SUM}")
    A("s_branch K1_START2_G")

    def epilogue_ops(ty, acc, store_flags=store_flags):
        ops = []
        blk = lambda nb, t: acc + (nb*4 + t)*4
        oq = 0
        def store(q, vo, off, so=sOB): return f"buffer_store_dwordx4 {vr(OUT+4*q,4)}, v{vo}, s[{S_OUT}:{S_OUT+3}], s{so} offen offset:{off}{store_flags}"
        if ty in 'QK':
            for pr in range(2):
                for t in range(4):
                    for h in range(2):
                        b = blk(2*pr+h, t)
                        if ty == 'Q':
                            for i in range(4): ops.append(f"v_mul_f32 v{b+i}, v{b+i}, v{SC+t}")
                        ops.append(f"v_cvt_pk_bf16_f32 v{OUT+4*oq+2*h}, v{b}, v{b+1}")
                        ops.append(f"v_cvt_pk_bf16_f32 v{OUT+4*oq+2*h+1}, v{b+2}, v{b+3}")
                    ops.append(store(oq, VO+t, pr*1024) if ty == 'K' else store(oq, VO+t, 0, sOB2 if pr else sOB)); oq = (oq+1) % 3
        elif ty == 'V':
            for nb in range(4):
                for v in range(2):
                    for h in range(2):
                        b = blk(nb, 2*v+h)
                        ops.append(f"v_cvt_pk_bf16_f32 v{OUT+4*oq+2*h}, v{b}, v{b+1}")
                        ops.append(f"v_cvt_pk_bf16_f32 v{OUT+4*oq+2*h+1}, v{b+2}, v{b+3}")
                    ops.append(store(oq, VO+v, nb*1024)); oq = (oq+1) % 3
        else:
            for t in range(4):
                for h in range(2):
                    g = blk(h, t); u = blk(h+2, t)
                    for i in range(4): ops.append(f"v_max_f32 v{g+i}, 0, v{g+i}")
                    for i in range(4): ops.append(f"v_mul_f32 v{u+i}, v{u+i}, v{SC+t}")
                    for i in range(4): ops.append(f"v_mul_f32 v{g+i}, v{g+i}, v{u+i}")
                    ops.append(f"v_cvt_pk_bf16_f32 v{OUT+4*oq+2*h}, v{g}, v{g+1}")
                    ops.append(f"v_cvt_pk_bf16_f32 v{OUT+4*oq+2*h+1}, v{g+2}, v{g+3}")
                ops.append(store(oq, VO+t, 0)); oq = (oq+1) % 3
        return ops

    def ob_calc(ty, su_reg_delta):
        o = [f"s_add_u32 s{sT1}, s{sSU}, {su_reg_delta}"] if su_reg_delta >= 0 else [f"s_sub_u32 s{sT1}, s{sSU}, {-su_reg_delta}"]
        if ty in 'GQ':
            o += [f"s_lshl_b32 s{sT1}, s{sT1}, {12 if ty == 'G' else 13}", f"s_add_u32 s{sOB}, s{sOBASE}, s{sT1}"]
            if ty == 'Q': o.append(f"s_add_u32 s{sOB2}, s{sOB}, 4096")
        else:
            hs = 19 if ty == 'Q' else 20
            ls = 12 if ty == 'V' else 11
            o += [f"s_lshr_b32 s{sOB}, s{sT1}, 1", f"s_lshl_b32 s{sOB}, s{sOB}, {hs}", f"s_and_b32 s{sT1}, s{sT1}, 1", f"s_lshl_b32 s{sT1}, s{sT1}, {ls}",
                  f"s_add_u32 s{sOB}, s{sOB}, s{sT1}", f"s_add_u32 s{sOB}, s{sOB}, s{sOBASE}"]
        return o

    def trreads(fi, nb, slot_in_half, ks):
        off = slot_in_half*16384 + ks*4096
        return [f"ds_read_b64_tr_b16 {vr(WF+4*fi,2)}, v{TRA+2*nb} offset:{off}",
                f"ds_read_b64_tr_b16 {vr(WF+4*fi+2,2)}, v{TRA+2*nb+1} offset:{off}"]

    def c_round(r):
        return [[f"s_add_u32 m0, s{sSTG}, {98304 + (r%2)*32768 + j*1024}", f"s_add_u32 s{sT0}, s{sRQ+r//2}, {j*8192 + (r%2)*128}",
                 f"buffer_load_dwordx4 v{T+(j&1)}, s[{S_ACT}:{S_ACT+3}], s{sT0} offen lds"] for j in range(8)]
    def c_reads(r):
        return [f"ds_read_b128 {ar((t*16+2*r+k2)*4, 4)}, v{T+2+k2} offset:{(r%2)*32768 + t*2048}" for t in range(4) for k2 in range(2)]

    def body(ty, par, first=False, vms=None, A=A):
        acc = ACC[par]; old = ACC[1-par]
        cs, ss, _ = dma_consts(ty)
        gaps = {}
        def G(q, m): return gaps.setdefault((q, m), {'mem': [], 'other': []})
        def room(q, m):
            g = G(q, m); return 2 - len(g['mem']) - len(g['other'])
        prew = {}
        if LGK:
            for q in range(4):
                for grp in range(1, 16, 2): G(q, grp*4 + 2)['other'].append("s_waitcnt lgkmcnt(10)")
        if not first:
            epi = epilogue_ops(ty, old)
            if ty == 'G' and par == 1:
                ex = [x[0] for x in xcst] + [f"buffer_store_dword v{MU}, v{SUM}, s[{S_XC}:{S_XC+3}], s{sSCQ} offen sc1", f"s_mov_b32 s{S_XC+2}, 0"]
                e2 = []
                for k, x in enumerate(epi):
                    e2.append(x)
                    if k % 6 == 5 and ex: e2.append(ex.pop(0))
                epi = e2 + ex
            for q in range(4):
                G(q, 0)['other'] += [f"s_waitcnt vmcnt({vms[q]})", "s_barrier"]
                tgt = (4*par + q + 7) % 8
                trip = dma_slot(ty, 1 if q == 0 else 2, (q+3) % 4, tgt)
                if q == 1:
                    G(q, 1)['other'] += [f"s_add_u32 s{sT1}, s{sSU}, 2", f"s_cmp_ge_u32 s{sT1}, s{sEND}"]
                    G(q, 2)['other'] += [f"s_cselect_b32 s{S_WA+2}, 0, s{S_WA+2}", f"s_cselect_b32 s{S_WB+2}, 0, s{S_WB+2}"]
                for j, tr in enumerate(trip):
                    m = 8 + 12*j + 1
                    G(q, m)['other'] += tr[:2]
                    G(q, m+1)['mem'] += [tr[2]]
            oc = ob_calc(ty, -1)
            pos = [(0,1),(0,2),(0,4),(0,5)]
            k = 0
            for p in pos:
                while room(*p) > 0 and k < len(oc): G(*p)['other'].append(oc[k]); k += 1
            assert k == len(oc)
        for nb in range(4):
            m = 16 + 4*nb + 4
            G(3, m)['other'] += [f"v_xor_b32 v{TRA+2*nb}, 0x10000, v{TRA+2*nb}", f"v_xor_b32 v{TRA+2*nb+1}, 0x10000, v{TRA+2*nb+1}"]
        if not first:
            slots = [(q, m) for q in range(4) for m in range(64) if m % 4 != 3 and (q, m) >= (0, 6)]
            cap = [(s_, room(*s_)) for s_ in slots]
            tot = sum(c for _, c in cap)
            step = max(1.0, 0.8*tot/len(epi))
            flat = [s_ for s_, c in cap for _ in range(c)]
            idx = 0.0
            for op in epi:
                s_ = flat[int(idx)]
                if op.startswith('buffer_store'):
                    i2 = int(idx)
                    while True:
                        s_ = flat[i2]
                        g = G(*s_)
                        if not g['mem'] and not g['other']: break
                        i2 += 1
                    idx = max(idx, i2)
                    G(*s_)['mem'].append(op)
                else:
                    G(*s_)['other'].append(op)
                idx += step
        else:
            seq = ['R0']*8 + ['W0']*4 + ['R1']*8 + ['W1']*4
            def vm(tag): return len(seq) - 1 - max(i for i, e in enumerate(seq) if e == tag)
            def put_triples(q, m0, trips, tag):
                m = m0
                for tr in trips:
                    G(q, m)['other'] += tr[:2]
                    m2 = m + 1 if (m + 1) % 4 != 3 else m + 2
                    G(q, m2)['mem'].append(tr[2]); seq.append(tag)
                    m = m2
                    if len(G(q, m)['other']) >= 1 or True:
                        pass
                return m
            for h in range(8):
                q = h // 2; base = 32*(h % 2)
                if h >= 1: prew[(q, base)] = ["s_waitcnt lgkmcnt(2)"]
                need = None
                if h == 1: need = 'W1'
                elif h in (2, 4, 6): need = f'W{q+1}'
                if need: G(q, base)['other'] += [f"s_waitcnt vmcnt({vm(need)})", "s_barrier"]
                if h == 7: G(q, base)['other'] += ["s_barrier"]
                if HST and h in (2, 4, 6): G(q, base)['other'].append(f"s_memrealtime s[{64+2*(2+h//2)}:{65+2*(2+h//2)}]")
                m = base + 1
                if h + 2 <= 7: m = put_triples(q, m, c_round(h+2), f'R{h+2}')
                if WEARLY:
                    if h <= 1:
                        for n in (2*h+2, 2*h+3): m = put_triples(q, m, dma_slot(ty, n//4, n % 4, n), f'W{n}')
                elif h <= 3: m = put_triples(q, m, dma_slot(ty, (h+2)//4, (h+2) % 4, h+2), f'W{h+2}')
                if h == 7:
                    for n in range(6, 11): m = put_triples(q, m, dma_slot(ty, n//4, n % 4, n % 8), f'W{n}')
                    assert m <= 60, m
                if h == 4 and KV_TOUCH:
                    to = touch_ops(ty)
                    for k, x in enumerate(to):
                        if x.startswith('buffer'): seq.append('T')
                        G(q, base + 16 + (k//4)*1 + (1 if (base+16+(k//4)) % 4 == 3 else 0))['other'].append(x)
                if h + 1 <= 7:
                    mm = base + 24
                    prew[(q, mm)] = [f"s_waitcnt vmcnt({vm(f'R{h+1}')})"]
                    rds = c_reads(h+1)
                    for k, p in enumerate((mm, mm+1, mm+2, mm+4)):
                        G(q, p)['mem'] += rds[2*k:2*k+2]
        G(3, 60)['other'] += [f"s_add_u32 s{sDQ}, s{sDQ}, {cs}", f"s_add_u32 s{sDQ+1}, s{sDQ+1}, {cs}"]
        G(3, 61)['other'] += [f"s_add_u32 s{sDQ+2}, s{sDQ+2}, {cs}", f"s_add_u32 s{sDQ+3}, s{sDQ+3}, {cs}", f"s_add_u32 s{sSU}, s{sSU}, 1"]
        G(3, 62)['other'] += [f"s_mov_b32 s{S_OUT+2}, {0 if NOST else WS_USED}", f"s_cmp_ge_u32 s{sSU}, s{sEND}"]
        for q in range(4):
            for ks in range(4):
                for nb in range(4):
                    fi = (ks % 2)*4 + nb
                    grp = ks*4 + nb
                    if grp % 2 == 0 and not LGK: A("s_waitcnt lgkmcnt(12)")
                    for t in range(4):
                        m = grp*4 + t
                        for x in prew.get((q, m), []): A(x)
                        d = acc + (nb*4+t)*4
                        kk = q*4 + ks
                        c = "0" if kk == 0 else vr(d, 4)
                        w = vr(WF+4*fi, 4); a = ar((t*16+kk)*4, 4)
                        A(f"{MF} {vr(d,4)}, {a}, {w}, {c}" if ty == 'V' else f"{MF} {vr(d,4)}, {w}, {a}, {c}")
                        if t == 3:
                            if ks < 2: rd = trreads(fi, nb, q, ks+2)
                            else: rd = trreads(fi, nb, (q+1) % 4, ks-2)
                            for x in rd: A(x)
                        g = G(q, m)
                        for x in g['mem']: A(x)
                        for x in g['other']: A(x)

    def vm_table(ty):
        tmp = Asm(); body(ty, 0, vms=[0]*4, A=tmp)
        pat = []; q = -1
        for l in tmp.lines:
            if l == 's_barrier': q += 1; pat.append(('bar', q))
            elif l.startswith('buffer_load'): pat.append(('dma', q))
            elif l.startswith('buffer_store'): pat.append(('st', q))
        if ty in 'KV': seq = [5]*4 + [n for n in range(6, 11) for _ in range(4)]; c0 = 1
        else: seq = [n for n in range(4, 7) for _ in range(4)]; c0 = 0
        tab = {}
        for c in range(c0, 8):
            tab[c] = [0]*4
            for kind, q in pat:
                if kind == 'bar':
                    need = 4*c + q + 1
                    idx = [i for i, e in enumerate(seq) if e == need]
                    tab[c][q] = min(63, len(seq) - 1 - max(idx)) if idx else 63
                    if not EXACT: tab[c][q] = 20
                elif kind == 'dma': seq.append(4*c + q + 7)
                else: seq.append('s')
        return tab

    for ty in 'KVG':
        VN = vm_table(ty)
        if ty in 'KV':
            A.label(f"K1_PRO_{ty}")
            if ACT_TOUCH: act_touch()
            A(f"v_lshrrev_b32 v4, 3, v0\nv_and_b32 v5, 7, v0\nv_lshrrev_b32 v6, 4, v0\nv_xor_b32 v5, v5, v6")
            A(f"v_lshlrev_b32 v4, 10, v4\nv_lshl_add_u32 v{T}, v5, 4, v4\nv_xor_b32 v{T+1}, 64, v{T}")
            for it in c_round(0) + dma_slot(ty, 0, 0, 0) + c_round(1) + dma_slot(ty, 0, 1, 1):
                for x in it: A(x)
            stamp(A, 1)
            A(f"v_and_b32 v4, 15, v0\nv_lshrrev_b32 v5, 1, v4\nv_xor_b32 v5, v5, v1\nv_lshlrev_b32 v4, 7, v4\nv_lshl_add_u32 v4, v5, 4, v4")
            A(f"s_add_u32 s{sT1}, s{sSTG}, 98304\nv_add_u32 v{T+2}, s{sT1}, v4\nv_xor_b32 v{T+3}, 64, v{T+2}")
            A("s_waitcnt vmcnt(12)\ns_barrier")
            stamp(A, 2)
            for x in c_reads(0): A(x)
            for ks in range(2):
                for nb in range(4):
                    for x in trreads(ks*4+nb, nb, 0, ks): A(x)
            A("s_waitcnt lgkmcnt(12)")
            body(ty, 0, first=True)
            stamp(A, 6)
            if not HST: stampc(A, 4)
            body(ty, 1, vms=VN[1])
            if CODE_TOUCH2: code_touch(A, "k2_kernel", "K2_END", sW, 0, DUM+1, 80)
            if WQ_TOUCH:
                A(f"s_mov_b32 s4, s{P_WQ}\ns_mov_b32 s5, s{P_WQ+1}\ns_mov_b32 s6, {512*8192}\ns_mov_b32 s7, 0x00020000")
                A(f"s_sub_u32 s{sT1}, s{sCG}, 11\ns_lshl_b32 s{sT1}, s{sT1}, 3\ns_add_u32 s{sT1}, s{sT1}, s{sTB}\ns_mul_i32 s{sT1}, s{sT1}, {196*128}\ns_min_u32 s{sT0}, s{sW}, 3\ns_lshl_b32 s{sT0}, s{sT0}, 13\ns_add_u32 s{sT1}, s{sT1}, s{sT0}")
                A(f"v_lshlrev_b32 v4, 7, v0\nbuffer_load_dword v{DUM}, v4, s[4:7], s{sT1} offen")
            A(f"s_branch K1_LOOP_{ty}")
        else:
            A.label(f"K1_START2_{ty}")
            stamp(A, 2)
            if W_TOUCH:
                for x in touch_ops(ty): A(x)
            if ty == 'Q':
                for t in range(4): A(f"v_mul_f32 v{SC+t}, {hex(f32bits(CSCALE))}, v{RSTD+t}")
            if ty == 'G':
                for t in range(4): A(f"v_mul_f32 v{SC+t}, v{RSTD+t}, v{RSTD+t}")
            A(f"s_waitcnt vmcnt({14 if W_TOUCH else 12})\ns_barrier")
            stamp(A, 6)
            for ks in range(2):
                for nb in range(4):
                    for x in trreads(ks*4+nb, nb, 0, ks): A(x)
            A("s_waitcnt lgkmcnt(12)")
        A(".p2align 6")
        A.label(f"K1_LOOP_{ty}")
        c0 = 2 if ty in 'KV' else 0
        body(ty, 0, vms=[min(VN[c][q] for c in range(c0, 8, 2)) for q in range(4)])
        A(f"s_cbranch_scc1 K1_DRAIN0_{ty}")
        body(ty, 1, vms=[min(VN[c][q] for c in range(c0+1, 8, 2)) for q in range(4)])
        A(f"s_cbranch_scc0 K1_LOOP_{ty}")
        for par in (1, 0):
            A.label(f"K1_DRAIN{par}_{ty}")
            if ty in 'KV' and not HST: stamp(A, 3); stampc(A, 5)
            for x in ob_calc(ty, -1): A(x)
            A("s_nop 1")
            if WBL2: A(f"s_cmp_lg_u32 s{sW}, 0\ns_cbranch_scc1 K1_NOWB{par}_{ty}\nbuffer_wbl2 sc1\nK1_NOWB{par}_{ty}:")
            for x in epilogue_ops(ty, ACC[par], (' ' + SFD) if SFD else ''): A(x)
            A("s_branch K1_FIN")
    A.label("K1_FIN")
    if asmlib.STAMP:
        A("s_waitcnt vmcnt(0)")
        stamp_flush(A, 0, 8, P_WS, sW)
    A.label("K1_END")
    A("s_endpgm")
    return dict(name="k1_kernel", vgpr=248+256, accum=248, sgpr=102, grid=256, block=256, lds=163840)
```

```python
from asmlib import *
import asmlib
from k1q import KV_BASE, A3_BASE, A3_TB64, WS_USED, MF, f32bits, XC_BASE, SCQ_BASE

import os
QST = os.environ.get('QST', '0') == '1'
QPLAN = os.environ.get('QPLAN', '3')
CT = os.environ.get('CODE_TOUCH2', '1') == '1'
CTX_TOUCH = os.environ.get('CTX_TOUCH', '0') == '1'
def gen_k2(A, store_flags="", thr=2.0**30):
    O = 0; S01 = 128; S23 = [144, 160]; P01 = [176, 184]; P23 = 192; CX = 200; E = 232; LS = 236; L = 240
    VK = 244; VV = 245; VD = 246; TMP = 247
    AQ = 0; KF = 64; VF = 96
    S_KV, S_WS = 8, 12
    sW, sH, sI, sT0, sT1, sOFF, sHALF, sCNT, sTHR, sNEG = 16, 17, 18, 19, 20, 21, 22, 23, 24, 25
    sMK = 26
    sRET = 34
    sP = 36; sOHI = 37; sOLO = 38
    P_WS = 40; P_WO = 42; P_WD = 44; P_WQ = 46; S_T = 48; sXH = 52; sXL = 53; sWQ = 54; sMQ = 55
    def Sreg(qp, kb, par): return (S01 + (qp*2+kb)*4) if qp < 2 else (S23[par] + ((qp-2)*2+kb)*4)
    def Preg(qp, par): return (P01[par] + qp*4) if qp < 2 else (P23 + (qp-2)*4)
    def Oreg(db, qb): return O + (db*4+qb)*4
    def CXr(qp, kb): return CX + (qp*2+kb)*4
    stubs = []
    uid = [0]
    def U(p): uid[0] += 1; return f"K2_{p}_{uid[0]}"

    A(".globl k2_kernel\n.p2align 8\n.type k2_kernel,@function")
    A.label("k2_kernel")
    A("s_cmp_ge_u32 s2, 256\ns_cbranch_scc1 K2_END")
    stamp(A, 0)
    A(f"s_load_dwordx2 s[{P_WS}:{P_WS+1}], s[0:1], 96\ns_load_dwordx2 s[{P_WO}:{P_WO+1}], s[0:1], 40\ns_load_dwordx2 s[{P_WD}:{P_WD+1}], s[0:1], 72\ns_load_dwordx2 s[{P_WQ}:{P_WQ+1}], s[0:1], 16\ns_mov_b32 s{S_T+3}, 0x00020000")
    A(f"v_lshrrev_b32 v{TMP}, 6, v0\nv_and_b32 v{TMP+1}, 63, v0\ns_nop 0\nv_readfirstlane_b32 s{sW}, v{TMP}")
    A(f"s_and_b32 s{sT0}, s2, 7\ns_lshr_b32 s{sT1}, s2, 3\ns_lshr_b32 s{sI}, s{sT1}, 2\ns_and_b32 s{sT1}, s{sT1}, 3\ns_lshl_b32 s{sH}, s{sT0}, 2\ns_add_u32 s{sH}, s{sH}, s{sT1}")
    A(f"s_mov_b32 s{S_KV+3}, 0x00020000\ns_mov_b32 s{S_WS+3}, 0x00020000\ns_mov_b32 s{S_WS+2}, {WS_USED}")
    A(f"s_lshl_b32 s{sT0}, s{sI}, 16\ns_sub_u32 s{S_KV+2}, 0x108000, s{sT0}")
    A(f"s_mov_b32 s{sTHR}, {hex(f32bits(thr))}\ns_mov_b32 s{sNEG}, 0xff800000")
    LN = TMP+1
    A(f"v_lshlrev_b32 v{VK}, 4, v{LN}\nv_add_u32 v{VV}, 0x10000, v{VK}")
    A(f"s_lshl_b32 s{sT0}, s{sW}, 12\nv_add_u32 v{VD}, s{sT0}, v{VK}")
    A(f"s_and_b32 s{sT0}, s{sW}, 1\ns_lshl_b32 s{sHALF}, s{sT0}, 12\ns_lshr_b32 s{sT0}, s{sW}, 1\ns_lshl_b32 s{sT1}, s{sT0}, 16\ns_add_u32 s{sHALF}, s{sHALF}, s{sT1}")
    A(f"s_lshl_b32 s{sT0}, s{sT0}, 15\ns_sub_u32 s{sOFF}, 0x8000, s{sT0}")
    if CT: code_touch(A, "k2_kernel", "K2_END", sW, LN, TMP+7, 80)
    A("s_waitcnt lgkmcnt(0)")
    if not QST: stamp(A, 5)
    A(f"s_mov_b32 s{S_WS}, s{P_WS}\ns_mov_b32 s{S_WS+1}, s{P_WS+1}")
    A(f"s_lshl_b32 s{sT0}, s{sH}, 20\ns_add_u32 s{sT0}, s{sT0}, {KV_BASE-0x8000}\ns_add_u32 s{S_KV}, s{P_WS}, s{sT0}\ns_addc_u32 s{S_KV+1}, s{P_WS+1}, 0")
    A(f"s_lshr_b32 s{sT0}, s{sW}, 1\ns_lshl_b32 s{sT1}, s{sI}, 1\ns_add_u32 s{sOLO}, s{sT1}, s{sT0}\ns_sub_u32 s{sOHI}, 30, s{sT1}\ns_add_u32 s{sOHI}, s{sOHI}, s{sT0}")
    A(f"s_mul_i32 s{sOLO}, s{sOLO}, {A3_TB64}\ns_mul_i32 s{sOHI}, s{sOHI}, {A3_TB64}")
    A(f"s_lshl_b32 s{sT0}, s{sH}, 14\ns_and_b32 s{sT1}, s{sW}, 1\ns_lshl_b32 s{sT1}, s{sT1}, 11\ns_add_u32 s{sT0}, s{sT0}, s{sT1}\ns_add_u32 s{sT0}, s{sT0}, {A3_BASE}")
    A(f"s_add_u32 s{sOLO}, s{sOLO}, s{sT0}\ns_add_u32 s{sOHI}, s{sOHI}, s{sT0}")
    def kread(f, unit4): return f"ds_read_b128 {ar(KF+4*f,4)}, v{VK} offset:{unit4*8192 + f*1024}"
    def vread(f, slot4): return f"ds_read_b128 {ar(VF+4*f,4)}, v{VV} offset:{slot4*8192 + f*1024}"
    def dma_group(c):
        pre = [f"s_add_u32 m0, s{sHALF}, {(c%4)*8192}"]
        d = [f"buffer_load_dwordx4 v{VD}, s[{S_KV}:{S_KV+3}], s{sOFF} offen offset:{j*1024} lds" for j in range(4)]
        post = [f"s_add_u32 s{sOFF}, s{sOFF}, 16384"]
        if c % 4 == 3: post.append(f"s_xor_b32 s{sHALF}, s{sHALF}, 0x8000")
        return pre, d, post
    AR = 128; TRQ = S01; VQ = S01 + 8
    A(f"s_mov_b32 s{S_T}, s{P_WQ}\ns_mov_b32 s{S_T+1}, s{P_WQ+1}\ns_mov_b32 s{S_T+2}, {512*8192}")
    A(f"s_lshl_b32 s{sT0}, s{sI}, 3\ns_lshl_b32 s{sT1}, s{sW}, 1\ns_add_u32 s{sXL}, s{sT0}, s{sT1}\ns_sub_u32 s{sXH}, 120, s{sT0}\ns_add_u32 s{sXH}, s{sXH}, s{sT1}")
    A(f"s_lshl_b32 s{sP}, s{sXH}, 6\ns_add_u32 s{sP}, s{sP}, {SCQ_BASE}\ns_lshl_b32 s{sCNT}, s{sXL}, 6\ns_add_u32 s{sCNT}, s{sCNT}, {SCQ_BASE}")
    A(f"s_lshl_b32 s{sXH}, s{sXH}, 14\ns_add_u32 s{sXH}, s{sXH}, {XC_BASE}\ns_lshl_b32 s{sXL}, s{sXL}, 14\ns_add_u32 s{sXL}, s{sXL}, {XC_BASE}")
    A(f"s_lshl_b32 s{sWQ}, s{sH}, 8\ns_lshl_b32 s{sT0}, s{sW}, 16\ns_add_u32 s{sWQ}, s{sWQ}, s{sT0}\ns_lshl_b32 s{sMQ}, s{sW}, 11\ns_add_u32 s{sMQ}, s{sMQ}, 32768")
    A(f"v_lshrrev_b32 v{TMP+2}, 4, v{LN}\nv_and_b32 v{TMP+3}, 15, v{LN}\ns_and_b32 s{sT0}, s{sW}, 1\ns_lshl_b32 s{sT0}, s{sT0}, 2\nv_or_b32 v{TMP+4}, s{sT0}, v{TMP+2}\nv_lshlrev_b32 v{TMP+4}, 1, v{TMP+4}\nv_xor_b32 v{TMP+4}, v{TMP+4}, v{TMP+3}")
    A(f"v_lshlrev_b32 v{TMP+5}, 13, v{TMP+2}\nv_lshl_add_u32 v{VQ}, v{TMP+4}, 4, v{TMP+5}\nv_add_u32 v{VQ+1}, {4*8192-1024}, v{VQ}\nv_add_u32 v{VQ+2}, 16384, v{VK}")
    def w_loads(n):
        return [[f"s_add_u32 m0, s{sMQ}, {n*8192}", f"s_add_u32 s{sT0}, s{sWQ}, {n*32*8192}"],
                [f"buffer_load_dwordx4 v{VQ}, s[{S_T}:{S_T+3}], s{sT0} offen lds"], [f"buffer_load_dwordx4 v{VQ+1}, s[{S_T}:{S_T+3}], s{sT0} offen offset:1024 lds"]]
    def adst(n, t):
        if n < 8: return ar(AR+n*16+4*t, 4)
        if n < 12: return ar((n-8)*16+4*t, 4)
        if n < 14: return ar(96+(n-12)*16+4*t, 4)
        return vr(144+(n-14)*16+4*t, 4)
    def a_loads(n):
        o = []
        if n % 4 == 0 and n > 0: o.append([f"s_add_u32 s{sXH}, s{sXH}, 4096", f"s_add_u32 s{sXL}, s{sXL}, 4096"])
        for t in range(4):
            o.append([f"buffer_load_dwordx4 {adst(n,t)}, v{VQ+2 if t % 2 else VK}, s[{S_WS}:{S_WS+3}], s{sXH if t < 2 else sXL} offen offset:{(n%4)*1024}"])
        return o
    seq = []
    def mk(tags):
        its = []
        for k, n in tags:
            x = (w_loads if k == 'W' else a_loads)(n)
            for it in x:
                for y in it:
                    if y.startswith('buffer'): seq.append((k, n))
            its += x
        return its
    def vmq(tag): return min(63, len(seq) - 1 - max(i for i, e in enumerate(seq) if e == tag))
    def vmq_(tag): return len(seq) - 1 - max(i for i, e in enumerate(seq) if e == tag)
    for it in mk([('W',0),('A',0),('W',1),('W',2),('A',1),('A',2),('W',3),('W',4),('A',3)]):
        for x in it: A(x)
    A(f"v_lshlrev_b32 v{TMP+4}, 2, v{TMP+3}")
    A(f"v_bfe_u32 v{TMP+3}, v{LN}, 2, 2\nv_and_b32 v{TMP+6}, 1, v{TMP+2}\nv_lshl_add_u32 v{TMP+6}, v{TMP+6}, 2, v{TMP+3}\nv_lshl_add_u32 v{TMP+3}, v{TMP+2}, 3, v{TMP+3}\nv_lshlrev_b32 v{TMP+3}, 8, v{TMP+3}")
    A(f"v_and_b32 v{TMP+5}, 3, v{LN}\nv_lshl_add_u32 v{TMP+3}, v{TMP+5}, 3, v{TMP+3}\nv_add_u32 v{TMP+3}, 0x8000, v{TMP+3}")
    for nb in range(8): A(f"v_xor_b32 v{TMP+5}, {nb}, v{TMP+6}\nv_lshl_add_u32 v{TRQ+nb}, v{TMP+5}, 5, v{TMP+3}")
    def qtr(nb, ks): return [f"ds_read_b64_tr_b16 {ar(KF+4*nb,2)}, v{TRQ+nb} offset:{(ks%8)*8192}", f"ds_read_b64_tr_b16 {ar(KF+4*nb+2,2)}, v{TRQ+nb} offset:{(ks%8)*8192+1024}"]
    if not QST: stamp(A, 6)
    A(f"s_waitcnt vmcnt({vmq(('W', 0))})\ns_barrier")
    for nb in range(8):
        for x in qtr(nb, 0): A(x)
    A("s_waitcnt lgkmcnt(12)")
    plan = {0: [('A',4),('W',5),('A',5),('W',6),('A',6),('W',7)], 1: [('A',7),('W',8),('A',8),('W',9),('A',9),('W',10)], 2: [('A',10),('W',11),('A',11),('W',12),('A',12),('W',13)],
            3: [('A',13),('W',14),('A',14),('W',15),('A',15)]}
    if QPLAN == '2':
        plan = {0: [('A',4),('W',5),('W',6),('A',5),('W',7),('W',8)], 1: [('A',6),('W',9),('W',10),('A',7),('W',11),('W',12)], 2: [('A',8),('W',13),('W',14),('W',15),('A',9)]}
        for k_ in range(3, 9): plan[k_] = [('A', k_+7)]
    if QPLAN == '3':
        plan = {0: [('A',4),('W',5),('A',5)], 1: [('W',6),('A',6),('W',7),('A',7)], 2: [('W',8),('A',8),('W',9),('A',9)], 3: [('W',10),('A',10),('W',11)], 4: [('A',11),('W',12),('W',13)], 5: [('A',12),('W',14),('W',15)], 6: [('A',13)], 7: [('A',14)], 8: [('A',15)]}
    bars = {0: 2, 2: 4, 4: 8, 8: 15}
    NEGV = TMP+8
    misc = [f"v_mov_b32 v{r}, 0" for r in list(range(CX, CX+32)) + list(range(LS, LS+8))]
    misc += [f"v_and_b32 v{TMP+2}, 15, v{LN}", f"v_lshrrev_b32 v{TMP+3}, 4, v{LN}", f"v_lshlrev_b32 v{TMP+3}, 2, v{TMP+3}", f"v_sub_u32 v{TMP+2}, v{TMP+2}, v{TMP+3}"]
    misc += [f"v_cmp_le_i32 s[{sMK+2*i}:{sMK+2*i+1}], {i}, v{TMP+2}" for i in range(4)] + [f"v_mov_b32 v{NEGV}, s{sNEG}", "s_nop 0"]
    def q_epi(ds):
        o = []
        for qb in range(4):
            tq = QT + 4*(qb % 2)
            for h in range(2):
                b_ = Oreg(2*ds+h, qb)
                o += [f"v_mul_f32 v{b_+i}, v{b_+i}, v{E+qb}" for i in range(4)]
                o += [f"v_cvt_pk_bf16_f32 v{tq+2*h}, v{b_}, v{b_+1}", f"v_cvt_pk_bf16_f32 v{tq+2*h+1}, v{b_+2}, v{b_+3}"]
            o += [f"v_accvgpr_write_b32 a{AQ+(qb*4+ds)*4+i}, v{tq+i}" for i in range(4)]
        return o
    QT = P01[0]
    e0 = q_epi(0)
    for ks in range(16):
        gaps = {}
        def G(m): return gaps.setdefault(m, [])
        pre = [f"s_waitcnt vmcnt({vmq(('A', ks))})"]
        if ks in bars: G(0).extend([f"s_waitcnt vmcnt({vmq(('W', bars[ks]))})", "s_barrier"])
        if ks == 12: G(0).append("s_barrier")
        if ks == 15: G(0).extend(["s_waitcnt vmcnt(8)", "s_barrier"])
        its = mk(plan.get(ks, []))
        if ks == 8:
            for qb in range(4):
                its.append([f"buffer_load_dword v{E+qb}, v{TMP+4}, s[{S_WS}:{S_WS+3}], s{sP if qb < 2 else sCNT} offen offset:{(qb%2)*64}"]); seq.append(('S', 0))
        if ks >= 9:
            c = ks - 9
            p_, d_, po_ = dma_group(c)
            if c < 2:
                lab = U("KS")
                its += [[f"s_cmp_ge_u32 s{sW}, 2", f"s_cbranch_scc1 {lab}"] + p_ + ["s_nop 0"] + d_ + [lab + ":"] + po_]
            else:
                its += [p_] + [[x] for x in d_] + [po_]
                seq += [('KV', c)]*4
        if ks in (13, 14): its += [misc[(ks-13)*26+2*k:(ks-13)*26+2*k+2] for k in range(13)]
        if ks == 15: its += [[vread(2*k, 2), vread(2*k+1, 2)] for k in range(4)]
        m = 1
        for it in its:
            G(m).extend(it)
            m = m + 1 if (m + 1) % 4 != 3 else m + 2
        if ks == 15:
            while m < 31:
                G(m).extend(e0[:2]); e0 = e0[2:]
                m = m + 1 if (m + 1) % 4 != 3 else m + 2
        assert m < 33, m
        if ks < 15:
            for grp in range(1, 8, 2): G(grp*4+2).append("s_waitcnt lgkmcnt(10)")
        else:
            G(6).append("s_waitcnt lgkmcnt(8)"); G(14).append("s_waitcnt lgkmcnt(11)")
        for x in pre: A(x)
        if QST and ks in (1, 4, 8, 12): stamp(A, {1: 5, 4: 6, 8: 3, 12: 4}[ks])
        for nb in range(8):
            for t in range(4):
                d = Oreg(nb, t)
                A(f"{MF} {vr(d,4)}, {ar(KF+4*nb,4)}, {adst(ks,t)}, {'0' if ks == 0 else vr(d,4)}")
                if t == 3 and ks < 15:
                    if ks == 7: A(f"v_add_u32 v{TRQ+nb}, 0x10000, v{TRQ+nb}")
                    for x in qtr(nb, ks+1): A(x)
                if t == 3 and ks == 15: A(kread(nb, 0))
                for x in G(nb*4+t): A(x)
    stamp(A, 1)

    def Dpatch(q0):
        o = []
        for i in range(4): o.append(f"v_cndmask_b32 v{CXr(q0,0)+i}, v{NEGV}, v{CXr(q0,0)+i}, s[{sMK+2*i}:{sMK+2*i+1}]")
        for i in range(4): o.append(f"v_mov_b32 v{CXr(q0,1)+i}, v{NEGV}")
        for i in range(4): o.append(f"v_cndmask_b32 v{CXr(q0+1,1)+i}, v{NEGV}, v{CXr(q0+1,1)+i}, s[{sMK+2*i}:{sMK+2*i+1}]")
        return o
    def Fpatch(q0): return [f"v_mov_b32 v{CXr(q0,0)+i}, v{NEGV}" for i in range(16)]
    def patch(q0, j):
        o = []
        lD, lE = U("PD"), U("PE")
        o.append(f"s_cmp_gt_u32 s{sW}, {j}"); o.append(f"s_cbranch_scc1 {lE}")
        if j > 0:
            o.append(f"s_cmp_eq_u32 s{sW}, {j}"); o.append(f"s_cbranch_scc1 {lD}")
            o += Fpatch(q0); o.append(f"s_branch {lE}")
            o.append(lD + ":")
        o += Dpatch(q0)
        o.append(lE + ":")
        o.append("s_nop 1")
        return o


    def sm_gaps(qs, srcpar, dstpar, look, ladd):
        g = [[] for _ in range(32)]
        lsb = LS + (0 if qs[0] == 0 else 2)
        src = lambda k: Sreg(qs[k//4], (k % 4)//2, srcpar) + 2*(k % 2)
        for k in range(8):
            if k < 7: a, b = src(k+1), src(k+1)+1
            elif look: a, b = look
            else: a = None
            en = E + 2*((k+1) % 2); ec = E + 2*(k % 2)
            if a is not None:
                g[4*k].append(f"v_exp_f32 v{en}, v{a}"); g[4*k+2].append(f"v_exp_f32 v{en+1}, v{b}")
            ls = lsb + k//4
            if k % 4 == 0:
                g[4*k+1].append(f"v_add_f32 v{ls}, v{ec}, v{ec+1}")
                lr, lsr = ladd[k//4]
                g[4*k+1].append(f"v_add_f32 v{lr}, v{lr}, v{lsr}")
            else:
                g[4*k+1].append(f"v_add_f32 v{ls}, v{ls}, v{ec}"); g[4*k+1].append(f"v_add_f32 v{ls}, v{ls}, v{ec+1}")
            g[4*k+3].append(f"v_cvt_pk_bf16_f32 v{Preg(qs[k//4], dstpar) + k % 4}, v{ec}, v{ec+1}")
        g[30].append(f"v_max_f32 v{TMP}, v{lsb}, v{lsb+1}")
        g[31].append(f"v_cmp_lt_f32 vcc, s{sTHR}, v{TMP}")
        return g

    def rescale(rows, init=False):
        o = ["s_nop 7"]
        D, D2, F = TMP+1, TMP+2, TMP+3
        for r in rows:
            s0 = r['S']
            o.append(f"v_max3_f32 v{D}, v{s0}, v{s0+1}, v{s0+2}")
            o.append(f"v_max3_f32 v{D}, v{D}, v{s0+3}, v{s0+4}")
            o.append(f"v_max3_f32 v{D}, v{D}, v{s0+5}, v{s0+6}")
            o.append(f"v_max_f32 v{D}, v{D}, v{s0+7}")
            o += [f"v_mov_b32 v{D2}, v{D}", "s_nop 1", f"v_permlane16_swap_b32 v{D}, v{D2}", f"v_max_f32 v{D}, v{D}, v{D2}"]
            o += [f"v_mov_b32 v{D2}, v{D}", "s_nop 1", f"v_permlane32_swap_b32 v{D}, v{D2}", f"v_max_f32 v{D}, v{D}, v{D2}"]
            o.append(f"v_ceil_f32 v{D}, v{D}")
            if not init:
                o.append(f"v_max_f32 v{D}, 0, v{D}")
                o.append(f"v_exp_f32 v{F}, -v{D}")
            for b in [s0] + r['subs']:
                for i in range(8): o.append(f"v_sub_f32 v{b+i}, v{b+i}, v{D}")
            if not init:
                qb = r['qb']
                for db in range(8):
                    for i in range(4): o.append(f"v_mul_f32 v{Oreg(db,qb)+i}, v{Oreg(db,qb)+i}, v{F}")
                o.append(f"v_mul_f32 v{L+qb}, v{L+qb}, v{F}")
                for pr in r.get('Pscale', []):
                    o += [f"v_lshlrev_b32 v{D2}, 16, v{pr}", f"v_and_b32 v{pr}, 0xffff0000, v{pr}", f"v_mul_f32 v{D2}, v{D2}, v{F}", f"v_mul_f32 v{pr}, v{pr}, v{F}",
                          f"v_cvt_pk_bf16_f32 v{pr}, v{D2}, v{pr}"]
            if r.get('P') is not None:
                ls = r['ls']
                for k in range(4):
                    o += [f"v_exp_f32 v{E}, v{s0+2*k}", f"v_exp_f32 v{E+1}, v{s0+2*k+1}", "s_nop 0"]
                    if k == 0: o.append(f"v_add_f32 v{ls}, v{E}, v{E+1}")
                    else: o += [f"v_add_f32 v{ls}, v{ls}, v{E}", f"v_add_f32 v{ls}, v{ls}, v{E+1}"]
                    o.append(f"v_cvt_pk_bf16_f32 v{r['P']+k}, v{E}, v{E+1}")
        return o
    def relook(look):
        return [f"v_exp_f32 v{E}, v{look[0]}", f"v_exp_f32 v{E+1}, v{look[1]}", "s_nop 1"] if look else ["s_nop 1"]

    def check_site(code):
        ls, lb = U("SLOW"), U("BACK")
        A(f"s_cbranch_vccnz {ls}")
        A.label(lb)
        stubs.append([ls + ":"] + code + [f"s_branch {lb}"])

    def emit_half(mf, gaps, extra, waits):
        for g in range(32):
            if g in waits: A(waits[g])
            m, rd = mf[g]
            if m: A(m)
            if rd: A(rd)
            ex = extra.get(g, ([], []))
            for x in ex[0]: A(x)
            for x in ex[1]: A(x)
            for x in gaps[g]: A(x)

    def H1(par, mq, ms, ku, toggleK=None, vm=None, dmas=(), noqk=False, nosm=False, last=False, fill=None):
        n = 1 - par
        mf = []
        if noqk: mf = [(None, None)]*32
        elif mq == 4:
            for f in range(8):
                kb, ds = f//4, f % 4
                for qp in range(4):
                    d = Sreg(qp, kb, n)
                    c = vr(CXr(qp, kb), 4) if ds == 0 else vr(d, 4)
                    mf.append((f"{MF} {vr(d,4)}, {ar(KF+4*f,4)}, {ar(AQ+(qp*4+ds)*4,4)}, {c}", kread(f, ku[0]) if qp == 3 else None))
        else:
            for j in range(16):
                sel, f = j//8, j % 8
                kb, ds = f//4, f % 4
                for qb in range(2):
                    qp = 2*sel + qb
                    d = Sreg(qp, kb, n)
                    c = vr(CXr(qp, kb), 4) if ds == 0 else vr(d, 4)
                    rd = None
                    if qb == 1 and not (last and sel == 1): rd = kread(f, ku[sel])
                    mf.append((f"{MF} {vr(d,4)}, {ar(KF+4*f,4)}, {ar(AQ+(qb*4+ds)*4,4)}, {c}", rd))
        look = None if noqk else (Sreg(0, 0, n), Sreg(0, 0, n)+1)
        if nosm:
            gaps = [list(fill[2*g:2*g+2]) if fill else [] for g in range(32)]
        else:
            gaps = sm_gaps((2, 3), par, par, look, [(L+0, LS+0), (L+1, LS+1)])
        extra = {}
        waits = {}
        if not noqk:
            waits[0] = "s_waitcnt lgkmcnt(8)"
            if mq == 2: waits[16] = "s_waitcnt lgkmcnt(4)"; waits[24] = "s_waitcnt lgkmcnt(4)"
        if vm is not None:
            extra[0] = ([], [f"s_waitcnt vmcnt({vm})", "s_barrier"])
        if toggleK is not None:
            gi = 0 if toggleK == 0 else 16
            e = extra.setdefault(gi, ([], [])); e[1].append(f"v_xor_b32 v{VK}, 0x8000, v{VK}")
        place_dmas(extra, dmas)
        emit_half(mf, gaps, extra, waits)
        if not nosm:
            rows = []
            for qq in range(2):
                qp = 2 + qq
                r = dict(S=Sreg(qp, 0, par), P=Preg(qp, par), ls=LS+2+qq)
                if ms == 4:
                    r['qb'] = qp
                    r['subs'] = ([Sreg(qp, 0, n), CXr(qp, 0)] if (mq == 4 and not noqk) else [])
                else:
                    r['qb'] = qq
                    r['subs'] = [CXr(qq, 0), CXr(qp, 0)] + ([] if noqk else [Sreg(qq, 0, n), Sreg(qp, 0, n)])
                    r['Pscale'] = [Preg(qq, par)+k for k in range(4)]
                rows.append(r)
            check_site(rescale(rows) + relook(look))

    def place_dmas(extra, dmas):
        for c, g0 in dmas:
            pre, d, post = dma_group(c)
            e = extra.setdefault(g0, ([], [])); e[1].extend(pre)
            for j in range(4):
                e = extra.setdefault(g0+1+4*j if g0+1+4*j < 32 else 31, ([], [])); e[0].append(d[j])
            e = extra.setdefault(min(31, g0+2+12), ([], [])); e[1].extend(post)

    def H2(par, mp, mnext, vu, toggleV=None, dmas=(), nopv=False, nosm=False, czero=False):
        n = 1 - par
        mf = []
        if nopv: mf = [(None, None)]*32
        elif mp == 4:
            for db in range(8):
                for qp in range(4):
                    d = Oreg(db, qp)
                    mf.append((f"{MF} {vr(d,4)}, {ar(VF+4*db,4)}, {vr(Preg(qp,par),4)}, {'0' if czero else vr(d,4)}", vread(db, vu[0]) if qp == 3 else None))
        else:
            for j in range(16):
                sel, db = j//8, j % 8
                for qb in range(2):
                    d = Oreg(db, qb)
                    rd = None
                    if qb == 1 and not (nosm and sel == 1): rd = vread(db, vu[sel])
                    mf.append((f"{MF} {vr(d,4)}, {ar(VF+4*db,4)}, {vr(Preg(2*sel+qb,par),4)}, {vr(d,4)}", rd))
        look = (Sreg(2, 0, n), Sreg(2, 0, n)+1)
        lt = (L+2, L+3) if mp == 4 else (L+0, L+1)
        if nosm:
            gaps = [[] for _ in range(32)]
            gaps[1] = [f"v_add_f32 v{lt[0]}, v{lt[0]}, v{LS+2}", f"v_add_f32 v{lt[1]}, v{lt[1]}, v{LS+3}"]
        else:
            gaps = sm_gaps((0, 1), n, n, look, [(lt[0], LS+2), (lt[1], LS+3)])
        extra = {}
        waits = {}
        if not nopv:
            waits[0] = "s_waitcnt lgkmcnt(8)" if not nosm else "s_waitcnt lgkmcnt(0)"
            if mp == 2: waits[16] = "s_waitcnt lgkmcnt(4)"; waits[24] = "s_waitcnt lgkmcnt(4)" if not nosm else "s_waitcnt lgkmcnt(0)"
        if toggleV is not None:
            gi = 0 if toggleV == 0 else 16
            e = extra.setdefault(gi, ([], [])); e[1].append(f"v_xor_b32 v{VV}, 0x8000, v{VV}")
        place_dmas(extra, dmas)
        emit_half(mf, gaps, extra, waits)
        if not nosm and not nopv:
            rows = []
            for qb in range(2):
                r = dict(S=Sreg(qb, 0, n), P=Preg(qb, n), ls=LS+qb, qb=qb, subs=[CXr(qb, 0)])
                if mnext == 2: r['subs'] += [Sreg(qb+2, 0, n), CXr(qb+2, 0)]
                rows.append(r)
            check_site(rescale(rows) + relook(look))

    def hook(cond_reg, val, code):
        ls, lb = U("HOOK"), U("HB")
        A(f"s_cmp_eq_u32 s{cond_reg}, {val}\ns_cbranch_scc1 {ls}")
        A.label(lb)
        stubs.append([ls + ":"] + code + [f"s_branch {lb}"])

    hook(sI, 0, patch(2, 0))
    for x in e0: A(x)
    A("s_waitcnt lgkmcnt(0)")
    p_, d_, po_ = dma_group(7)
    for ds in range(4):
        ep = q_epi(ds+1) if ds < 3 else []
        mfs = []
        for kb in range(2):
            f = kb*4 + ds
            for qp in range(4):
                d = Sreg(qp, kb, 0)
                mfs.append([f"{MF} {vr(d,4)}, {ar(KF+4*f,4)}, {ar(AQ+(qp*4+ds)*4,4)}, {vr(CXr(qp,kb),4) if ds == 0 else vr(d,4)}"] + ([kread(f, 1)] if qp == 3 else []))
        if ds == 0: mfs[0] = p_ + ["s_nop 0"] + mfs[0]
        if ds == 0:
            for j in range(4): mfs[1+j] = mfs[1+j] + [d_[j]]
            mfs[6] = mfs[6] + po_
        if ds == 3: A("s_nop 1")
        for k in range(8):
            for x in mfs[k]: A(x)
            for x in ep[8*k:8*k+8]: A(x)
    rows = []
    for qp in range(4): rows.append(dict(S=Sreg(qp, 0, 0), subs=[CXr(qp, 0)], P=None))
    for x in rescale(rows, init=True): A(x)
    A(f"v_exp_f32 v{E}, v{Sreg(0,0,0)}\nv_exp_f32 v{E+1}, v{Sreg(0,0,0)+1}")
    H2(1, 4, 4, None, nopv=True)
    stamp(A, 2)
    A(f"s_mov_b32 s{sCNT}, s{sI}")
    A("s_waitcnt lgkmcnt(0)")

    def period44(r, pre=None, czero=False):
        par = r % 2
        if pre: pre()
        ku = (r+2) % 4; vu = (r+1+2) % 4
        H1(par, 4, 4, [ku], toggleK=0 if ku == 0 else None, vm=16, dmas=[(r, 8)])
        H2(par, 4, 4, [vu], toggleV=0 if vu == 0 else None, czero=czero)

    period44(0, pre=lambda: hook(sI, 0, patch(2, 1)), czero=True)
    A(f"s_cmp_eq_u32 s{sCNT}, 0\ns_cbranch_scc1 K2_SPECIAL_R1\ns_branch K2_LOOPA_R1")
    A(".p2align 6")
    A.label("K2_LOOPA")
    for r in range(4):
        if r == 1: A.label("K2_LOOPA_R1")
        period44(r, pre=(lambda: hook(sCNT, 1, patch(2, 0))) if r == 3 else None)
    A(f"s_sub_u32 s{sCNT}, s{sCNT}, 1\ns_cmp_lg_u32 s{sCNT}, 0\ns_cbranch_scc1 K2_LOOPA")
    A.label("K2_SPECIAL")
    for r in range(3):
        if r == 1: A.label("K2_SPECIAL_R1")
        period44(r, pre=lambda: [A(x) for x in patch(2, r+1)])
    A(f"s_cmp_lt_u32 s{sW}, 2\ns_cselect_b32 s{S_T}, s{P_WO}, s{P_WD}\ns_cselect_b32 s{S_T+1}, s{P_WO+1}, s{P_WD+1}\ns_mov_b32 s{sT0}, {1376*1024}\ns_cselect_b32 s{S_T+2}, {4096*1024}, s{sT0}")
    A(f"s_mul_i32 s{sT0}, s2, {43*128}\ns_lshl_b32 s{sT1}, s2, 14\ns_cselect_b32 s{sT0}, s{sT1}, s{sT0}".replace("s_lshl_b32 s{sT1}, s2, 14".format(sT1=sT1), f"s_mul_i32 s{sT1}, s2, 16384"))
    A(f"s_and_b32 s{sT1}, s{sW}, 1\ns_lshl_b32 s{sT1}, s{sT1}, 13\ns_add_u32 s{sT0}, s{sT0}, s{sT1}\nv_and_b32 v{TMP+7}, 0x3ff, v{VK}\nv_lshlrev_b32 v{TMP+7}, 3, v{TMP+7}")
    A(f"buffer_load_dword v{TMP+7}, v{TMP+7}, s[{S_T}:{S_T+3}], s{sT0} offen")
    if CT:
        A(f"v_and_b32 v{TMP+6}, 0x3ff, v{VK}")
        code_touch(A, "k3_kernel", "K4_END", sW, TMP+6, TMP+6, 80, lane_shift=4)
    if CTX_TOUCH:
        A(f"v_lshrrev_b32 v{TMP+6}, 8, v{VK}\nv_and_b32 v{TMP+6}, 3, v{TMP+6}\nv_lshlrev_b32 v{TMP+6}, 12, v{TMP+6}\nv_and_b32 v{TMP+5}, 0xf0, v{VK}\nv_lshl_add_u32 v{TMP+6}, v{TMP+5}, 3, v{TMP+6}")
        A(f"buffer_load_dword v{TMP+5}, v{TMP+6}, s[{S_WS}:{S_WS+3}], s{sOHI} offen\nbuffer_load_dword v{TMP+6}, v{TMP+6}, s[{S_WS}:{S_WS+3}], s{sOLO} offen")
    for i in range(16): A(f"v_mov_b32 v{CXr(2,0)+i}, v{CXr(0,0)+i}")
    hook(sI, 7, patch(0, 0) + patch(2, 1))
    A("s_nop 1")
    H1(1, 2, 4, [1, 2], vm=16, dmas=[(3, 8)])
    H2(1, 4, 2, [2])
    if not QST: stamp(A, 3)
    A(f"s_lshl_b32 s{sT0}, s{sI}, 1\ns_sub_u32 s{sCNT}, 14, s{sT0}")
    def period22(r, last_qk=False):
        par = r
        ku = [3, 0] if r == 0 else [1, 2]
        vu = [3, 0] if r == 0 else [1, 2]
        c0 = 2*r
        H1(par, 2, 2, ku, toggleK=1 if r == 0 else None, vm=12, dmas=[(c0, 8)], last=last_qk)
        H2(par, 2, 2, vu, toggleV=1 if r == 0 else None, dmas=[(c0+1, 8)])
    A(f"s_cmp_eq_u32 s{sCNT}, 0\ns_cbranch_scc1 K2_TAIL")
    A(".p2align 6")
    A.label("K2_LOOPB")
    period22(0)
    hook(sCNT, 1, patch(0, 0) + patch(2, 1))
    period22(1)
    A(f"s_sub_u32 s{sCNT}, s{sCNT}, 1\ns_cmp_lg_u32 s{sCNT}, 0\ns_cbranch_scc1 K2_LOOPB")
    A.label("K2_TAIL")
    for x in patch(0, 2) + patch(2, 3): A(x)
    H1(0, 2, 2, [3, 0], toggleK=None, vm=12, last=True)
    H2(0, 2, 2, [3, 0], toggleV=1)
    H1(1, 2, 2, None, noqk=True, vm=0)
    H2(1, 2, 2, [1, 2], nosm=True)
    if not QST: stamp(A, 4)
    for qb in range(4):
        D, D2 = L+qb, TMP+1
        A(f"v_mov_b32 v{D2}, v{D}\ns_nop 1\nv_permlane16_swap_b32 v{D}, v{D2}\nv_add_f32 v{D}, v{D}, v{D2}")
        A(f"v_mov_b32 v{D2}, v{D}\ns_nop 1\nv_permlane32_swap_b32 v{D}, v{D2}\nv_add_f32 v{D}, v{D}, v{D2}")
        A(f"v_rcp_f32 v{D}, v{D}")
    A(f"v_and_b32 v{VK}, 0x3ff, v{VK}")
    oq = 0
    for qb in (2, 3, 0, 1):
        for ds in range(4):
            ob = S01 + 4*oq
            for h in range(2):
                b = Oreg(2*ds+h, qb)
                for i in range(4): A(f"v_mul_f32 v{b+i}, v{b+i}, v{L+qb}")
                A(f"v_cvt_pk_bf16_f32 v{ob+2*h}, v{b}, v{b+1}\nv_cvt_pk_bf16_f32 v{ob+2*h+1}, v{b+2}, v{b+3}")
            A(f"s_add_u32 s{sT0}, s{sOHI if qb < 2 else sOLO}, {ds*4096}")
            A(f"buffer_store_dwordx4 {vr(ob,4)}, v{VK}, s[{S_WS}:{S_WS+3}], s{sT0} offen offset:{(qb%2)*1024}{store_flags}")
            oq = (oq+1) % 4
    if asmlib.STAMP:
        A("s_waitcnt vmcnt(0)")
        stamp_flush(A, 1, 8, P_WS, sW)
    A.label("K2_END")
    A("s_endpgm")
    for st in stubs:
        for x in st: A(x)
    return dict(name="k2_kernel", vgpr=512, accum=256, sgpr=96, grid=256, block=256, lds=163840)
```

```python
from asmlib import *
import asmlib
from k1 import KV_BASE, A3_BASE, A3_TB64, WS_USED, MF, f32bits
import math
P_BASE = KV_BASE
P_END = P_BASE + (8 << 20)

def gen_k3(A, RING=10):
    ACC = 0; AF = 64; WF = 96; RA = 128; TRA = 131; VD = 143; VL = 147; T = 148
    S_L, S_O = 8, 12
    sW, sT0, sT1, sT2, sSP, sTM, sTN, sOFF, sSTR, sM0 = 16, 17, 18, 19, 20, 21, 22, 23, 24, 25
    P_WO, P_WD, P_WS = 32, 34, 36
    NS = 43
    A(".globl k3_kernel\n.p2align 8\n.type k3_kernel,@function")
    A.label("k3_kernel")
    A("s_cmp_ge_u32 s2, 256\ns_cbranch_scc1 K3_END")
    stamp(A, 0)
    A(f"s_load_dwordx2 s[{P_WO}:{P_WO+1}], s[0:1], 40\ns_load_dwordx2 s[{P_WD}:{P_WD+1}], s[0:1], 72\ns_load_dwordx2 s[{P_WS}:{P_WS+1}], s[0:1], 96")
    A(f"v_lshrrev_b32 v{T}, 6, v0\nv_and_b32 v{T+1}, 63, v0\ns_nop 0\nv_readfirstlane_b32 s{sW}, v{T}")
    LN = T+1
    A(f"s_and_b32 s{sSP}, s2, 3\ns_lshr_b32 s{sT0}, s2, 2\ns_and_b32 s{sT0}, s{sT0}, 1\ns_lshl_b32 s{sT0}, s{sT0}, 3\ns_lshr_b32 s{sT1}, s2, 3\ns_and_b32 s{sT1}, s{sT1}, 7\ns_add_u32 s{sTM}, s{sT0}, s{sT1}\ns_lshr_b32 s{sTN}, s2, 6")
    A(f"s_mov_b32 s{S_L+3}, 0x00020000\ns_mov_b32 s{S_O+3}, 0x00020000\ns_mov_b32 s{S_O+2}, {P_END}")
    A(f"s_mul_i32 s{sT0}, s{sSP}, 43\ns_cmp_eq_u32 s{sSP}, 3\ns_cselect_b32 s{sT0}, 128, s{sT0}\ns_cselect_b32 s{sT1}, 0, s{sT0}")
    A(f"s_lshl_b32 s{sM0}, s{sW}, 12")
    A(f"v_lshlrev_b32 v{VL}, 4, v{LN}")
    code_touch(A, "k3_kernel", "K3_END", sW, LN, T+6, 80)
    A(f"s_cmp_lt_u32 s{sW}, 2\ns_cbranch_scc0 K3_WSETUP")
    A(f"s_lshl_b32 s{sT2}, s{sTM}, 1\ns_add_u32 s{sT2}, s{sT2}, s{sW}\ns_mul_i32 s{sOFF}, s{sT2}, {A3_TB64}\ns_lshl_b32 s{sT0}, s{sT0}, 12\ns_add_u32 s{sOFF}, s{sOFF}, s{sT0}\ns_add_u32 s{sOFF}, s{sOFF}, {A3_BASE}")
    A(f"s_mov_b32 s{sSTR}, 4096\ns_mov_b32 s{S_L+2}, {WS_USED}")
    for j in range(4): A(f"v_mov_b32 v{VD+j}, v{VL}")
    A(f"s_waitcnt lgkmcnt(0)\ns_mov_b32 s{S_L}, s{P_WS}\ns_mov_b32 s{S_L+1}, s{P_WS+1}\ns_branch K3_SETUP_DONE")
    A.label("K3_WSETUP")
    A(f"s_lshl_b32 s{sOFF}, s{sT1}, 15\ns_sub_u32 s{sT2}, s{sW}, 2\ns_lshl_b32 s{sT2}, s{sT2}, 14\ns_add_u32 s{sOFF}, s{sOFF}, s{sT2}\ns_lshl_b32 s{sT2}, s{sTN}, 8\ns_add_u32 s{sOFF}, s{sOFF}, s{sT2}")
    A(f"s_mov_b32 s{sSTR}, 32768")
    A(f"v_lshrrev_b32 v{T+2}, 4, v{LN}\nv_and_b32 v{T+3}, 15, v{LN}\nv_lshlrev_b32 v{T+4}, 1, v{T+2}\nv_xor_b32 v{T+3}, v{T+3}, v{T+4}\nv_lshlrev_b32 v{T+2}, 10, v{T+2}\nv_lshl_add_u32 v{VD}, v{T+3}, 4, v{T+2}")
    A(f"v_xor_b32 v{T+2}, 128, v{VD}\nv_add_u32 v{VD+1}, 3072, v{T+2}\nv_add_u32 v{VD+2}, 6144, v{VD}\nv_add_u32 v{VD+3}, 9216, v{T+2}")
    A(f"s_cmp_eq_u32 s{sSP}, 3\ns_mov_b32 s{sT2}, {4096*1024}\ns_cselect_b32 s{S_L+2}, {1376*1024}, s{sT2}")
    A(f"s_waitcnt lgkmcnt(0)\ns_cselect_b32 s{S_L}, s{P_WD}, s{P_WO}\ns_cselect_b32 s{S_L+1}, s{P_WD+1}, s{P_WO+1}")
    A.label("K3_SETUP_DONE")
    def loads(s):
        pre = [f"s_add_u32 m0, s{sM0}, {(s % RING)*16384}"]
        d = [f"buffer_load_dwordx4 v{VD+j}, s[{S_L}:{S_L+3}], s{sOFF} offen offset:{j*1024} lds" for j in range(4)]
        post = [f"s_add_u32 s{sOFF}, s{sOFF}, s{sSTR}"]
        return pre, d, post
    NPRE = RING - 1
    for s in range(3):
        pre, d, post = loads(s)
        for x in pre + ["s_nop 0"] + d + post: A(x)
    A(f"s_and_b32 s{sT0}, s{sW}, 1\ns_lshl_b32 s{sT0}, s{sT0}, 12\nv_add_u32 v{RA}, s{sT0}, v{VL}")
    A(f"v_lshrrev_b32 v{T+2}, 2, v{LN}\nv_and_b32 v{T+3}, 7, v{T+2}\nv_lshlrev_b32 v{T+2}, 8, v{T+2}\nv_and_b32 v{T+4}, 3, v{LN}\nv_lshl_add_u32 v{T+2}, v{T+4}, 3, v{T+2}\nv_add_u32 v{T+2}, 8192, v{T+2}")
    A(f"s_lshr_b32 s{sT0}, s{sW}, 1\ns_lshl_b32 s{sT0}, s{sT0}, 2\nv_xor_b32 v{T+3}, s{sT0}, v{T+3}")
    for nb in range(4): A(f"v_xor_b32 v{T+4}, {nb}, v{T+3}\nv_lshl_add_u32 v{TRA+nb}, v{T+4}, 5, v{T+2}")
    for k in range(1, 3):
        A(f"v_add_u32 v{RA+k}, {k*65536}, v{RA}")
        for nb in range(4): A(f"v_add_u32 v{TRA+4*k+nb}, {k*65536}, v{TRA+nb}")
    A(f"s_lshl_b32 s{sT0}, s{sSP}, 21\ns_lshl_b32 s{sT1}, s{sTM}, 17\ns_add_u32 s{sT0}, s{sT0}, s{sT1}\ns_lshl_b32 s{sT1}, s{sTN}, 15\ns_add_u32 s{sT0}, s{sT0}, s{sT1}\ns_lshl_b32 s{sT1}, s{sW}, 13\ns_add_u32 s{sT0}, s{sT0}, s{sT1}\ns_add_u32 s{sTM}, s{sT0}, {P_BASE}")
    A(f"s_mov_b32 s{S_O}, s{P_WS}\ns_mov_b32 s{S_O+1}, s{P_WS+1}")
    for s in range(3, NPRE):
        pre, d, post = loads(s)
        for x in pre + ["s_nop 0"] + d + post: A(x)
    def reads(s):
        sl = s % RING; hi = (sl*16384) // 65536; off = (sl*16384) % 65536
        o = []
        for k in range(4):
            o.append(f"ds_read_b64_tr_b16 {vr(WF+16*(s%2)+4*k,2)}, v{TRA+4*hi+k} offset:{off}")
            o.append(f"ds_read_b64_tr_b16 {vr(WF+16*(s%2)+4*k+2,2)}, v{TRA+4*hi+k} offset:{off+4096}")
            o.append(f"ds_read_b128 {vr(AF+16*(s%2)+4*k,4)}, v{RA+hi} offset:{off+k*1024}")
        return o
    issued = NPRE
    A(f"s_waitcnt vmcnt({4*(issued-1)})\ns_barrier")
    stamp(A, 1)
    for x in reads(0): A(x)
    for s in range(NS):
        if s == 21: stamp(A, 2)
        A("s_waitcnt lgkmcnt(0)")
        extra = {}
        if s % 2 == 0:
            need = min(s+2, NS-1)
            extra[0] = [f"s_waitcnt vmcnt({4*(issued-1-need)})", "s_barrier"]
        rd = reads(s+1) if s+1 < NS else []
        for k, x in enumerate(rd): extra.setdefault(1 + k, []).insert(0, x)
        tgt = s + RING - 1
        if tgt < NS:
            pre, d, post = loads(tgt)
            extra.setdefault(2, []).extend(pre)
            for j in range(4): extra.setdefault(4 + 3*j, []).append(d[j])
            extra.setdefault(14, []).extend(post)
            issued += 1
        for nb in range(4):
            for t in range(4):
                g = nb*4 + t
                d_ = ACC + g*4
                c = "0" if s == 0 else vr(d_, 4)
                A(f"{MF} {vr(d_,4)}, {vr(WF+16*(s%2)+4*nb,4)}, {vr(AF+16*(s%2)+4*t,4)}, {c}")
                for x in extra.get(g, []): A(x)
    stamp(A, 3)
    A("s_nop 7")
    for np_ in range(2):
        A(f"s_add_u32 s{sT0}, s{sTM}, {np_*4096}")
        for t in range(4):
            ob = AF + 4*(np_*4+t)
            for h in range(2):
                b_ = ACC + ((2*np_+h)*4 + t)*4
                A(f"v_cvt_pk_bf16_f32 v{ob+2*h}, v{b_}, v{b_+1}\nv_cvt_pk_bf16_f32 v{ob+2*h+1}, v{b_+2}, v{b_+3}")
            A(f"buffer_store_dwordx4 {vr(ob,4)}, v{VL}, s[{S_O}:{S_O+3}], s{sT0} offen offset:{t*1024} sc1")
    if asmlib.STAMP:
        stamp(A, 4)
        A("s_waitcnt vmcnt(0)")
        stamp_flush(A, 2, 6, P_WS, sW)
    A.label("K3_END")
    A("s_endpgm")
    return dict(name="k3_kernel", vgpr=160, accum=160, sgpr=96, grid=256, block=256, lds=RING*16384)

def gen_k4(A):
    S_P, S_X, S_O = 8, 12, 16
    sW, sT0, sT1, sT2 = 20, 21, 22, 23
    P_X, P_OUT, P_WS = 24, 26, 28
    R = 8; XR = 72; G = 80; VL = 2; VX = 3
    A(".globl k4_kernel\n.p2align 8\n.type k4_kernel,@function")
    A.label("k4_kernel")
    A("s_cmp_ge_u32 s2, 256\ns_cbranch_scc1 K4_END")
    stamp(A, 0)
    A(f"s_load_dwordx2 s[{P_X}:{P_X+1}], s[0:1], 0\ns_load_dwordx2 s[{P_OUT}:{P_OUT+1}], s[0:1], 80\ns_load_dwordx2 s[{P_WS}:{P_WS+1}], s[0:1], 96")
    A(f"v_lshrrev_b32 v1, 6, v0\nv_and_b32 v0, 63, v0\ns_nop 0\nv_readfirstlane_b32 s{sW}, v1")
    for r in (S_P, S_X, S_O): A(f"s_mov_b32 s{r+3}, 0x00020000")
    A(f"s_mov_b32 s{S_P+2}, {P_END}\ns_mov_b32 s{S_X+2}, 0x200000\ns_mov_b32 s{S_O+2}, 0x200000")
    A(f"v_lshlrev_b32 v{VL}, 4, v0")
    A(f"s_lshl_b32 s{sT0}, s2, 13\ns_lshl_b32 s{sT1}, s{sW}, 11\ns_add_u32 s{sT0}, s{sT0}, s{sT1}\ns_add_u32 s{sT0}, s{sT0}, {P_BASE}")
    A(f"s_lshr_b32 s{sT1}, s2, 4\ns_lshl_b32 s{sT1}, s{sT1}, 17\ns_and_b32 s{sT2}, s2, 1\ns_lshl_b32 s{sT2}, s{sT2}, 16\ns_add_u32 s{sT1}, s{sT1}, s{sT2}")
    A(f"s_lshr_b32 s{sT2}, s2, 1\ns_and_b32 s{sT2}, s{sT2}, 7\ns_lshl_b32 s{sT2}, s{sT2}, 7\ns_add_u32 s{sT1}, s{sT1}, s{sT2}")
    A(f"s_lshr_b32 s{sT2}, s{sW}, 1\ns_lshl_b32 s{sT2}, s{sT2}, 6\ns_add_u32 s{sT1}, s{sT1}, s{sT2}\ns_and_b32 s{sT2}, s{sW}, 1\ns_lshl_b32 s{sT2}, s{sT2}, 15\ns_add_u32 s{sT1}, s{sT1}, s{sT2}")
    A(f"v_and_b32 v4, 15, v0\nv_lshrrev_b32 v5, 4, v0\nv_lshlrev_b32 v4, 10, v4\nv_lshl_add_u32 v4, v5, 3, v4\nv_add_u32 v{VX}, s{sT1}, v4")
    A("s_waitcnt lgkmcnt(0)")
    A(f"s_mov_b32 s{S_P}, s{P_WS}\ns_mov_b32 s{S_P+1}, s{P_WS+1}\ns_mov_b32 s{S_X}, s{P_X}\ns_mov_b32 s{S_X+1}, s{P_X+1}\ns_mov_b32 s{S_O}, s{P_OUT}\ns_mov_b32 s{S_O+1}, s{P_OUT+1}")
    A(f"s_mov_b32 s{sT2}, 16384")
    PK = 96
    for sp in (3, 0, 1, 2):
        A(f"s_add_u32 s{sT1}, s{sT0}, {sp << 21}")
        for t in range(2): A(f"buffer_load_dwordx4 {vr(PK+8*sp+4*t,4)}, v{VL}, s[{S_P}:{S_P+3}], s{sT1} offen offset:{t*1024}")
    for t in range(2):
        for h in range(2):
            A(f"buffer_load_dwordx2 {vr(XR+4*t+2*h,2)}, v{VX}, s[{S_X}:{S_X+3}], {'s%d' % sT2 if t else '0'} offen offset:{h*32}")
    def unpack(dst, src):
        for i in range(8): A(f"v_lshlrev_b32 v{dst+2*i}, 16, v{src+i}\nv_and_b32 v{dst+2*i+1}, 0xffff0000, v{src+i}")
    A("s_waitcnt vmcnt(10)")
    stamp(A, 2)
    dn = R + 48
    unpack(dn, PK+24)
    for i in range(16): A(f"v_mul_f32 v{G+i}, {hex(f32bits(-math.log2(math.e)))}, v{dn+i}")
    for i in range(16): A(f"v_exp_f32 v{G+i}, v{G+i}")
    for i in range(16): A(f"v_add_f32 v{G+i}, 1.0, v{G+i}")
    for i in range(16): A(f"v_rcp_f32 v{G+i}, v{G+i}")
    for i in range(16): A(f"v_mul_f32 v{G+i}, v{G+i}, v{dn+i}")
    A("s_waitcnt vmcnt(4)")
    stamp(A, 3)
    unpack(R, PK); unpack(R+16, PK+8); unpack(R+32, PK+16)
    for i in range(16): A(f"v_add_f32 v{R+i}, v{R+i}, v{R+16+i}")
    for i in range(16): A(f"v_add_f32 v{R+i}, v{R+i}, v{R+32+i}")
    A("s_waitcnt vmcnt(0)")
    stamp(A, 4)
    unpack(R+16, XR)
    for i in range(16): A(f"v_fmac_f32 v{R+16+i}, v{R+i}, v{G+i}")
    for i in range(8): A(f"v_cvt_pk_bf16_f32 v{R+32+i}, v{R+16+2*i}, v{R+17+2*i}")
    for t in range(2):
        for h in range(2):
            A(f"buffer_store_dwordx2 {vr(R+32+4*t+2*h,2)}, v{VX}, s[{S_O}:{S_O+3}], {'s%d' % sT2 if t else '0'} offen offset:{h*32}")
    if asmlib.STAMP:
        stamp(A, 1)
        A("s_waitcnt vmcnt(0)")
        stamp_flush(A, 3, 6, P_WS, sW)
    A.label("K4_END")
    A("s_endpgm")
    return dict(name="k4_kernel", vgpr=128, accum=128, sgpr=96, grid=256, block=256, lds=0)
```

```python
from asmlib import *
import asmlib
from k1q import KV_BASE, A3_BASE, A3_TB64, WS_USED, MF, f32bits
import math
P_BASE = KV_BASE
P_END = P_BASE + (8 << 20)

import os
CT = os.environ.get('CODE_TOUCH2', '1') == '1'
def gen_k3(A, RING=10):
    ACC = 0; AF = 64; WF = 96; RA = 128; TRA = 131; VD = 143; VL = 147; T = 148
    S_L, S_O = 8, 12
    sW, sT0, sT1, sT2, sSP, sTM, sTN, sOFF, sSTR, sM0 = 16, 17, 18, 19, 20, 21, 22, 23, 24, 25
    P_WO, P_WD, P_WS = 32, 34, 36
    NS = 43
    A(".globl k3_kernel\n.p2align 8\n.type k3_kernel,@function")
    A.label("k3_kernel")
    A("s_cmp_ge_u32 s2, 256\ns_cbranch_scc1 K3_END")
    stamp(A, 0)
    A(f"s_load_dwordx2 s[{P_WO}:{P_WO+1}], s[0:1], 40\ns_load_dwordx2 s[{P_WD}:{P_WD+1}], s[0:1], 72\ns_load_dwordx2 s[{P_WS}:{P_WS+1}], s[0:1], 96")
    A(f"v_lshrrev_b32 v{T}, 6, v0\nv_and_b32 v{T+1}, 63, v0\ns_nop 0\nv_readfirstlane_b32 s{sW}, v{T}")
    LN = T+1
    A(f"s_and_b32 s{sSP}, s2, 3\ns_lshr_b32 s{sT0}, s2, 2\ns_and_b32 s{sT0}, s{sT0}, 1\ns_lshl_b32 s{sT0}, s{sT0}, 3\ns_lshr_b32 s{sT1}, s2, 3\ns_and_b32 s{sT1}, s{sT1}, 7\ns_add_u32 s{sTM}, s{sT0}, s{sT1}\ns_lshr_b32 s{sTN}, s2, 6")
    A(f"s_mov_b32 s{S_L+3}, 0x00020000\ns_mov_b32 s{S_O+3}, 0x00020000\ns_mov_b32 s{S_O+2}, {P_END}")
    A(f"s_mul_i32 s{sT0}, s{sSP}, 43\ns_cmp_eq_u32 s{sSP}, 3\ns_cselect_b32 s{sT0}, 128, s{sT0}\ns_cselect_b32 s{sT1}, 0, s{sT0}")
    A(f"s_lshl_b32 s{sM0}, s{sW}, 12")
    A(f"v_lshlrev_b32 v{VL}, 4, v{LN}")
    if CT: code_touch(A, "k3_kernel", "K3_END", sW, LN, T+6, 80)
    A(f"s_cmp_lt_u32 s{sW}, 2\ns_cbranch_scc0 K3_WSETUP")
    A(f"s_lshl_b32 s{sT2}, s{sTM}, 1\ns_add_u32 s{sT2}, s{sT2}, s{sW}\ns_mul_i32 s{sOFF}, s{sT2}, {A3_TB64}\ns_lshl_b32 s{sT0}, s{sT0}, 12\ns_add_u32 s{sOFF}, s{sOFF}, s{sT0}\ns_add_u32 s{sOFF}, s{sOFF}, {A3_BASE}")
    A(f"s_mov_b32 s{sSTR}, 4096\ns_mov_b32 s{S_L+2}, {WS_USED}")
    for j in range(4): A(f"v_mov_b32 v{VD+j}, v{VL}")
    A(f"s_waitcnt lgkmcnt(0)\ns_mov_b32 s{S_L}, s{P_WS}\ns_mov_b32 s{S_L+1}, s{P_WS+1}\ns_branch K3_SETUP_DONE")
    A.label("K3_WSETUP")
    A(f"s_lshl_b32 s{sOFF}, s{sT1}, 15\ns_sub_u32 s{sT2}, s{sW}, 2\ns_lshl_b32 s{sT2}, s{sT2}, 14\ns_add_u32 s{sOFF}, s{sOFF}, s{sT2}\ns_lshl_b32 s{sT2}, s{sTN}, 8\ns_add_u32 s{sOFF}, s{sOFF}, s{sT2}")
    A(f"s_mov_b32 s{sSTR}, 32768")
    A(f"v_lshrrev_b32 v{T+2}, 4, v{LN}\nv_and_b32 v{T+3}, 15, v{LN}\nv_lshlrev_b32 v{T+4}, 1, v{T+2}\nv_xor_b32 v{T+3}, v{T+3}, v{T+4}\nv_lshlrev_b32 v{T+2}, 10, v{T+2}\nv_lshl_add_u32 v{VD}, v{T+3}, 4, v{T+2}")
    A(f"v_xor_b32 v{T+2}, 128, v{VD}\nv_add_u32 v{VD+1}, 3072, v{T+2}\nv_add_u32 v{VD+2}, 6144, v{VD}\nv_add_u32 v{VD+3}, 9216, v{T+2}")
    A(f"s_cmp_eq_u32 s{sSP}, 3\ns_mov_b32 s{sT2}, {4096*1024}\ns_cselect_b32 s{S_L+2}, {1376*1024}, s{sT2}")
    A(f"s_waitcnt lgkmcnt(0)\ns_cselect_b32 s{S_L}, s{P_WD}, s{P_WO}\ns_cselect_b32 s{S_L+1}, s{P_WD+1}, s{P_WO+1}")
    A.label("K3_SETUP_DONE")
    def loads(s):
        pre = [f"s_add_u32 m0, s{sM0}, {(s % RING)*16384}"]
        d = [f"buffer_load_dwordx4 v{VD+j}, s[{S_L}:{S_L+3}], s{sOFF} offen offset:{j*1024} lds" for j in range(4)]
        post = [f"s_add_u32 s{sOFF}, s{sOFF}, s{sSTR}"]
        return pre, d, post
    NPRE = RING - 1
    for s in range(3):
        pre, d, post = loads(s)
        for x in pre + ["s_nop 0"] + d + post: A(x)
    A(f"s_and_b32 s{sT0}, s{sW}, 1\ns_lshl_b32 s{sT0}, s{sT0}, 12\nv_add_u32 v{RA}, s{sT0}, v{VL}")
    A(f"v_lshrrev_b32 v{T+2}, 2, v{LN}\nv_and_b32 v{T+3}, 7, v{T+2}\nv_lshlrev_b32 v{T+2}, 8, v{T+2}\nv_and_b32 v{T+4}, 3, v{LN}\nv_lshl_add_u32 v{T+2}, v{T+4}, 3, v{T+2}\nv_add_u32 v{T+2}, 8192, v{T+2}")
    A(f"s_lshr_b32 s{sT0}, s{sW}, 1\ns_lshl_b32 s{sT0}, s{sT0}, 2\nv_xor_b32 v{T+3}, s{sT0}, v{T+3}")
    for nb in range(4): A(f"v_xor_b32 v{T+4}, {nb}, v{T+3}\nv_lshl_add_u32 v{TRA+nb}, v{T+4}, 5, v{T+2}")
    for k in range(1, 3):
        A(f"v_add_u32 v{RA+k}, {k*65536}, v{RA}")
        for nb in range(4): A(f"v_add_u32 v{TRA+4*k+nb}, {k*65536}, v{TRA+nb}")
    A(f"s_lshl_b32 s{sT0}, s{sSP}, 21\ns_lshl_b32 s{sT1}, s{sTM}, 17\ns_add_u32 s{sT0}, s{sT0}, s{sT1}\ns_lshl_b32 s{sT1}, s{sTN}, 15\ns_add_u32 s{sT0}, s{sT0}, s{sT1}\ns_lshl_b32 s{sT1}, s{sW}, 13\ns_add_u32 s{sT0}, s{sT0}, s{sT1}\ns_add_u32 s{sTM}, s{sT0}, {P_BASE}")
    A(f"s_mov_b32 s{S_O}, s{P_WS}\ns_mov_b32 s{S_O+1}, s{P_WS+1}")
    for s in range(3, NPRE):
        pre, d, post = loads(s)
        for x in pre + ["s_nop 0"] + d + post: A(x)
    def reads(s):
        sl = s % RING; hi = (sl*16384) // 65536; off = (sl*16384) % 65536
        o = []
        for k in range(4):
            o.append(f"ds_read_b64_tr_b16 {vr(WF+16*(s%2)+4*k,2)}, v{TRA+4*hi+k} offset:{off}")
            o.append(f"ds_read_b64_tr_b16 {vr(WF+16*(s%2)+4*k+2,2)}, v{TRA+4*hi+k} offset:{off+4096}")
            o.append(f"ds_read_b128 {vr(AF+16*(s%2)+4*k,4)}, v{RA+hi} offset:{off+k*1024}")
        return o
    issued = NPRE
    A(f"s_waitcnt vmcnt({4*(issued-1)})\ns_barrier")
    stamp(A, 1)
    for x in reads(0): A(x)
    for s in range(NS):
        if s == 21: stamp(A, 2)
        A("s_waitcnt lgkmcnt(0)")
        extra = {}
        if s % 2 == 0:
            need = min(s+2, NS-1)
            extra[0] = [f"s_waitcnt vmcnt({4*(issued-1-need)})", "s_barrier"]
        rd = reads(s+1) if s+1 < NS else []
        for k, x in enumerate(rd): extra.setdefault(1 + k, []).insert(0, x)
        tgt = s + RING - 1
        if tgt < NS:
            pre, d, post = loads(tgt)
            extra.setdefault(2, []).extend(pre)
            for j in range(4): extra.setdefault(4 + 3*j, []).append(d[j])
            extra.setdefault(14, []).extend(post)
            issued += 1
        for nb in range(4):
            for t in range(4):
                g = nb*4 + t
                d_ = ACC + g*4
                c = "0" if s == 0 else vr(d_, 4)
                A(f"{MF} {vr(d_,4)}, {vr(WF+16*(s%2)+4*nb,4)}, {vr(AF+16*(s%2)+4*t,4)}, {c}")
                for x in extra.get(g, []): A(x)
    stamp(A, 3)
    A("s_nop 7")
    for np_ in range(2):
        A(f"s_add_u32 s{sT0}, s{sTM}, {np_*4096}")
        for t in range(4):
            ob = AF + 4*(np_*4+t)
            for h in range(2):
                b_ = ACC + ((2*np_+h)*4 + t)*4
                A(f"v_cvt_pk_bf16_f32 v{ob+2*h}, v{b_}, v{b_+1}\nv_cvt_pk_bf16_f32 v{ob+2*h+1}, v{b_+2}, v{b_+3}")
            A(f"buffer_store_dwordx4 {vr(ob,4)}, v{VL}, s[{S_O}:{S_O+3}], s{sT0} offen offset:{t*1024} sc1")
    if asmlib.STAMP:
        stamp(A, 4)
        A("s_waitcnt vmcnt(0)")
        stamp_flush(A, 2, 6, P_WS, sW)
    A.label("K3_END")
    A("s_endpgm")
    return dict(name="k3_kernel", vgpr=160, accum=160, sgpr=96, grid=256, block=256, lds=RING*16384)

def gen_k4(A):
    S_P, S_X, S_O = 8, 12, 16
    sW, sT0, sT1, sT2 = 20, 21, 22, 23
    P_X, P_OUT, P_WS = 24, 26, 28
    R = 8; XR = 72; G = 80; VL = 2; VX = 3
    A(".globl k4_kernel\n.p2align 8\n.type k4_kernel,@function")
    A.label("k4_kernel")
    A("s_cmp_ge_u32 s2, 256\ns_cbranch_scc1 K4_END")
    stamp(A, 0)
    A(f"s_load_dwordx2 s[{P_X}:{P_X+1}], s[0:1], 0\ns_load_dwordx2 s[{P_OUT}:{P_OUT+1}], s[0:1], 80\ns_load_dwordx2 s[{P_WS}:{P_WS+1}], s[0:1], 96")
    A(f"v_lshrrev_b32 v1, 6, v0\nv_and_b32 v0, 63, v0\ns_nop 0\nv_readfirstlane_b32 s{sW}, v1")
    for r in (S_P, S_X, S_O): A(f"s_mov_b32 s{r+3}, 0x00020000")
    A(f"s_mov_b32 s{S_P+2}, {P_END}\ns_mov_b32 s{S_X+2}, 0x200000\ns_mov_b32 s{S_O+2}, 0x200000")
    A(f"v_lshlrev_b32 v{VL}, 4, v0")
    A(f"s_lshl_b32 s{sT0}, s2, 13\ns_lshl_b32 s{sT1}, s{sW}, 11\ns_add_u32 s{sT0}, s{sT0}, s{sT1}\ns_add_u32 s{sT0}, s{sT0}, {P_BASE}")
    A(f"s_lshr_b32 s{sT1}, s2, 4\ns_lshl_b32 s{sT1}, s{sT1}, 17\ns_and_b32 s{sT2}, s2, 1\ns_lshl_b32 s{sT2}, s{sT2}, 16\ns_add_u32 s{sT1}, s{sT1}, s{sT2}")
    A(f"s_lshr_b32 s{sT2}, s2, 1\ns_and_b32 s{sT2}, s{sT2}, 7\ns_lshl_b32 s{sT2}, s{sT2}, 7\ns_add_u32 s{sT1}, s{sT1}, s{sT2}")
    A(f"s_lshr_b32 s{sT2}, s{sW}, 1\ns_lshl_b32 s{sT2}, s{sT2}, 6\ns_add_u32 s{sT1}, s{sT1}, s{sT2}\ns_and_b32 s{sT2}, s{sW}, 1\ns_lshl_b32 s{sT2}, s{sT2}, 15\ns_add_u32 s{sT1}, s{sT1}, s{sT2}")
    A(f"v_and_b32 v4, 15, v0\nv_lshrrev_b32 v5, 4, v0\nv_lshlrev_b32 v4, 10, v4\nv_lshl_add_u32 v4, v5, 3, v4\nv_add_u32 v{VX}, s{sT1}, v4")
    A("s_waitcnt lgkmcnt(0)")
    A(f"s_mov_b32 s{S_P}, s{P_WS}\ns_mov_b32 s{S_P+1}, s{P_WS+1}\ns_mov_b32 s{S_X}, s{P_X}\ns_mov_b32 s{S_X+1}, s{P_X+1}\ns_mov_b32 s{S_O}, s{P_OUT}\ns_mov_b32 s{S_O+1}, s{P_OUT+1}")
    A(f"s_mov_b32 s{sT2}, 16384")
    PK = 96
    for sp in (3, 0, 1, 2):
        A(f"s_add_u32 s{sT1}, s{sT0}, {sp << 21}")
        for t in range(2): A(f"buffer_load_dwordx4 {vr(PK+8*sp+4*t,4)}, v{VL}, s[{S_P}:{S_P+3}], s{sT1} offen offset:{t*1024}")
    for t in range(2):
        for h in range(2):
            A(f"buffer_load_dwordx2 {vr(XR+4*t+2*h,2)}, v{VX}, s[{S_X}:{S_X+3}], {'s%d' % sT2 if t else '0'} offen offset:{h*32}")
    def unpack(dst, src):
        for i in range(8): A(f"v_lshlrev_b32 v{dst+2*i}, 16, v{src+i}\nv_and_b32 v{dst+2*i+1}, 0xffff0000, v{src+i}")
    A("s_waitcnt vmcnt(10)")
    stamp(A, 2)
    dn = R + 48
    unpack(dn, PK+24)
    for i in range(16): A(f"v_mul_f32 v{G+i}, {hex(f32bits(-math.log2(math.e)))}, v{dn+i}")
    for i in range(16): A(f"v_exp_f32 v{G+i}, v{G+i}")
    for i in range(16): A(f"v_add_f32 v{G+i}, 1.0, v{G+i}")
    for i in range(16): A(f"v_rcp_f32 v{G+i}, v{G+i}")
    for i in range(16): A(f"v_mul_f32 v{G+i}, v{G+i}, v{dn+i}")
    A("s_waitcnt vmcnt(4)")
    stamp(A, 3)
    unpack(R, PK); unpack(R+16, PK+8); unpack(R+32, PK+16)
    for i in range(16): A(f"v_add_f32 v{R+i}, v{R+i}, v{R+16+i}")
    for i in range(16): A(f"v_add_f32 v{R+i}, v{R+i}, v{R+32+i}")
    A("s_waitcnt vmcnt(0)")
    stamp(A, 4)
    unpack(R+16, XR)
    for i in range(16): A(f"v_fmac_f32 v{R+16+i}, v{R+i}, v{G+i}")
    for i in range(8): A(f"v_cvt_pk_bf16_f32 v{R+32+i}, v{R+16+2*i}, v{R+17+2*i}")
    for t in range(2):
        for h in range(2):
            A(f"buffer_store_dwordx2 {vr(R+32+4*t+2*h,2)}, v{VX}, s[{S_O}:{S_O+3}], {'s%d' % sT2 if t else '0'} offen offset:{h*32}")
    if asmlib.STAMP:
        stamp(A, 1)
        A("s_waitcnt vmcnt(0)")
        stamp_flush(A, 3, 6, P_WS, sW)
    A.label("K4_END")
    A("s_endpgm")
    return dict(name="k4_kernel", vgpr=128, accum=128, sgpr=96, grid=256, block=256, lds=0)
```

```python
import sys
from asmlib import *
import asmlib, os
asmlib.STAMP = os.environ.get('STAMP','0')=='1'
import k1
HEADER = open('recurrent_scan__compressed_kv_cla__glu_gated_reglu__prompt.s.ref').read().split('; Override')[0]
def build(kernels, check=True):
    A = Asm()
    infos = []
    for g in kernels:
        start = len(A.lines)
        infos.append(g(A))
    body = A.text()
    if check:
        check_hazards(A.lines)
    out = HEADER
    for i in infos:
        out += f"; @launch kernel={i['name']} grid=({i['grid']},1,1) block=({i['block']},1,1) lds={i['lds']}\n"
    MAC = {'v_mfma_f32_16x16x32_bf16': 'mf', 'ds_read_b64_tr_b16': 'trr', 'buffer_load_dwordx4': 'bl4', 'buffer_store_dwordx4': 'bs4', 'v_cvt_pk_bf16_f32': 'cvp',
           'ds_read_b128': 'dr4', 'v_accvgpr_write_b32': 'acw', 'v_exp_f32': 'vex', 'v_add_f32': 'vaf', 'v_mul_f32': 'vmf', 'v_sub_f32': 'vsf', 's_add_u32': 'sad', 's_waitcnt': 'swc'}
    mac = ''.join(f".macro {v} a:vararg\n {k} \\a\n.endm\n" for k, v in MAC.items())
    import re
    body = re.sub(r'(?m)^ (\w+) ', lambda m: ' ' + MAC.get(m.group(1), m.group(1)) + ' ', body)
    out += '.amdgcn_target "amdgcn-amd-amdhsa--gfx950"\n.text\n' + mac + body
    out += '.section .rodata,"a"\n'
    for i in infos:
        out += f""".p2align 6
.amdhsa_kernel {i['name']}
  .amdhsa_next_free_vgpr {i['vgpr']}
  .amdhsa_next_free_sgpr {i['sgpr']}
  .amdhsa_accum_offset {i['accum']}
  .amdhsa_group_segment_fixed_size 0
  .amdhsa_kernarg_size 104
  .amdhsa_user_sgpr_count 2
  .amdhsa_user_sgpr_kernarg_segment_ptr 1
  .amdhsa_system_sgpr_workgroup_id_x 1
.end_amdhsa_kernel
"""
    return out
if __name__ == '__main__' and os.environ.get('QF', '1') == '1':
    import k1q, k2q, k3q
    s = build([lambda A: k1q.gen_k1(A, store_flags=' ' + os.environ.get('SF1', 'sc1')), lambda A: k2q.gen_k2(A, store_flags=' sc1'), k3q.gen_k3, k3q.gen_k4])
    open(sys.argv[1], 'w').write(s); print(len(s), "bytes")
elif __name__ == '__main__':
    sf = os.environ.get('SF', 'sc1')
    sf = (' ' + sf) if sf else ''
    sf1 = os.environ.get('SF1', sf.strip()); sf1 = (' ' + sf1) if sf1 else ''
    ks = [lambda A: k1.gen_k1(A, store_flags=sf1)]
    try:
        import k2; ks.append(lambda A: k2.gen_k2(A, store_flags=sf))
        if os.environ.get('K3', 'c') == 'a':
            import k3; ks.append(k3.gen_k3)
        elif os.environ.get('K3', 'c') == 'c':
            import k3c; ks.append(k3c.gen_k3); ks.append(k3c.gen_k4)
        else:
            import k3b; ks.append(k3b.gen_k3); ks.append(k3b.gen_k4)
    except ImportError as e:
        print("partial:", e)
    s = build(ks)
    open(sys.argv[1] if len(sys.argv) > 1 else 'cur.s', 'w').write(s)
    print(len(s), "bytes")
```

```python
from asmlib import *
import asmlib
import math

import os
ACT_TOUCH = os.environ.get('ACT_TOUCH', '0') == '1'
W_TOUCH = os.environ.get('W_TOUCH', '1') == '1'
XFIRST = os.environ.get('XFIRST', '1') == '1'
KV_TOUCH = os.environ.get('KV_TOUCH', '0') == '1'
NOST = os.environ.get('NOST', '0') == '1'
SFD = os.environ.get('SFD', 'sc1')
WBL2 = os.environ.get('WBL2', '0') == '1'
HST = os.environ.get('HST', '0') == '1'
WEARLY = os.environ.get('WEARLY', '0') == '1'
WQ_TOUCH = os.environ.get('WQ_TOUCH', '1') == '1'
CODE_TOUCH = os.environ.get('CODE_TOUCH', '1') == '1'
CODE_TOUCH2 = os.environ.get('CODE_TOUCH2', '1') == '1'
XORD = os.environ.get('XORD', '0') == '1'
LGK = os.environ.get('LGK', '1') == '1'
EXACT = os.environ.get('EXACT', '1') == '1'
ROT = os.environ.get('ROT', '1') == '1'
WS_OFF = int(os.environ.get('WS_OFF', '0')) << 20
KV_BASE = WS_OFF + (1 << 20)
A3_BASE = WS_OFF + (33 << 20)
A3_TB64 = 171 * 4096
XC_BASE = WS_OFF + (56 << 20)
SCQ_BASE = WS_OFF + (58 << 20)
WS_USED = WS_OFF + (59 << 20)
MF = "v_mfma_f32_16x16x32_bf16"
CSCALE = math.log2(math.e) / math.sqrt(128.0)

def f32bits(x):
    import struct
    return struct.unpack('<I', struct.pack('<f', x))[0]

def gen_k1(A, store_flags=""):
    ACC = [8, 72]; WF = 136; TRA = 168; VW = 176; VO = 178; OUT = 184; SC = 196; RSTD = 200; T = 204; GR = 216; SUM = 232; ONESV = 240; MU = 244; DUM = 245; VLN = 247
    S_ACT, S_WA, S_WB, S_OUT = 8, 12, 16, 20
    sW, sTB, sCG, sSU, sEND, sDMA, sOB, sM0, sT0, sT1, sTYPE, sJOB2, sOBASE = 24, 25, 26, 27, 28, 29, 30, 31, 32, 33, 34, 35, 36
    sONES, sSLO, sSHI = 37, 38, 39
    P_X, P_CKV, P_WQ, P_WUK, P_WUV, P_WG, P_WU, P_WS = 40, 42, 44, 46, 48, 50, 52, 54
    sSTG = 56
    sROW = 57
    sEX2, sEX, sMK, sDQ, sROT, sOB2 = 58, 84, 88, 96, 62, 63
    S_XC = 4; sXQ = 44; sSCQ = 48; sEND2 = sJOB2; sHD = 100; sOBH = 101; sIA = 38; sIB = 39
    sRQ = sEX; sXR = 40

    A(".globl k1_kernel\n.p2align 8\n.type k1_kernel,@function")
    A.label("k1_kernel")
    A("s_cmp_ge_u32 s2, 256\ns_cbranch_scc1 K1_END")
    stamp(A, 0)
    A(f"s_load_dwordx4 s[{P_X}:{P_X+3}], s[0:1], 0")
    A(f"s_load_dwordx4 s[{P_WQ}:{P_WQ+3}], s[0:1], 16")
    A(f"s_load_dwordx2 s[{P_WUV}:{P_WUV+1}], s[0:1], 32")
    A(f"s_load_dwordx2 s[{P_WG}:{P_WG+1}], s[0:1], 56")
    A(f"s_load_dwordx2 s[{P_WU}:{P_WU+1}], s[0:1], 64")
    A(f"s_load_dwordx2 s[{P_WS}:{P_WS+1}], s[0:1], 96")
    A(f"v_lshrrev_b32 v1, 6, v0\nv_and_b32 v0, 63, v0\ns_nop 0\nv_readfirstlane_b32 s{sW}, v1")
    A(f"s_and_b32 s{sT0}, s2, 7\ns_lshr_b32 s{sT1}, s2, 3\ns_and_b32 s{sTB}, s{sT1}, 7\ns_lshr_b32 s{sT1}, s{sT1}, 3")
    A(f"s_lshl_b32 s{sCG}, s{sT0}, 2\ns_add_u32 s{sCG}, s{sCG}, s{sT1}")
    A(f"s_mov_b32 s{sONES}, 0x3f803f80\ns_mov_b32 s{sSLO}, 0x00003f80\ns_mov_b32 s{sSHI}, 0x3f800000")
    A(f"s_lshl_b32 s{sSTG}, s{sW}, 13")
    A(f"s_lshl_b32 s{sROW}, s{sTB}, 18\ns_lshl_b32 s{sT0}, s{sW}, 16\ns_add_u32 s{sROW}, s{sROW}, s{sT0}")
    for r in (S_ACT, S_WA, S_WB, S_OUT): A(f"s_mov_b32 s{r+3}, 0x00020000")
    A(f"s_mov_b32 s{S_ACT+2}, 0x200000")
    if CODE_TOUCH: code_touch(A, "k1_kernel", "K1_END", sW, 0, DUM, 80)
    A("s_waitcnt lgkmcnt(0)")
    A(f"s_mov_b32 s{S_OUT}, s{P_WS}\ns_mov_b32 s{S_OUT+1}, s{P_WS+1}\ns_mov_b32 s{S_OUT+2}, 0")
    A(f"s_cmp_ge_u32 s{sCG}, 11\ns_cbranch_scc1 K1_DISP_C")
    A(f"s_mov_b32 s{S_ACT}, s{P_X}\ns_mov_b32 s{S_ACT+1}, s{P_X+1}")
    A(f"s_lshl_b32 s{sSU}, s{sCG}, 2\ns_add_u32 s{sEND}, s{sSU}, 4\ns_min_u32 s{sEND}, s{sEND}, 43\ns_mov_b32 s{sEND2}, s{sEND}\ns_branch K1_SETUP_G")
    A.label("K1_DISP_C")
    A(f"s_mov_b32 s{S_ACT}, s{P_CKV}\ns_mov_b32 s{S_ACT+1}, s{P_CKV+1}")
    A(f"s_cmp_ge_u32 s{sCG}, 22\ns_cbranch_scc1 K1_DISP_V")
    A(f"s_sub_u32 s{sT1}, s{sCG}, 11\ns_min_u32 s{sT0}, s{sT1}, 9\ns_mul_i32 s{sSU}, s{sT1}, 5\ns_add_u32 s{sSU}, s{sSU}, s{sT0}\ns_cmp_lt_u32 s{sT1}, 9\ns_cselect_b32 s{sT0}, 6, 5\ns_add_u32 s{sEND}, s{sSU}, s{sT0}\ns_mov_b32 s{sEND2}, s{sEND}\ns_branch K1_SETUP_K")
    A.label("K1_DISP_V")
    A(f"s_sub_u32 s{sT1}, s{sCG}, 22\ns_mul_i32 s{sSU}, s{sT1}, 6\ns_add_u32 s{sEND}, s{sSU}, 6\ns_cmp_lt_u32 s{sT1}, 8\ns_cselect_b32 s{sT0}, 1, 0\ns_add_u32 s{sEND2}, s{sEND}, s{sT0}")
    A(f"s_lshl_b32 s{sHD}, s{sT1}, 6\ns_add_u32 s{sHD}, s{sHD}, {61*128}\ns_lshl_b32 s{sT0}, s{sEND}, 7\ns_sub_u32 s{sHD}, s{sHD}, s{sT0}")
    A(f"s_lshl_b32 s{sT0}, s{sT1}, 1\ns_add_u32 s{sT0}, s{sT0}, 240\ns_lshr_b32 s{sOBH}, s{sT0}, 3\ns_lshl_b32 s{sOBH}, s{sOBH}, 20\ns_and_b32 s{sT0}, s{sT0}, 7\ns_lshl_b32 s{sT0}, s{sT0}, 10\ns_add_u32 s{sOBH}, s{sOBH}, s{sT0}\ns_branch K1_SETUP_V")

    def dma_consts(ty):
        if ty == 'G':
            return 64, 128*2752, [(S_WA, 0, 0), (S_WA, 0, 16*2752), (S_WB, 0, 0), (S_WB, 0, 16*2752)]
        return 128, 128*8192, [(S_WA, 0, 0), (S_WA, 1, 8*8192), (S_WA, 0, 16*8192), (S_WA, 1, 24*8192)]

    def dma_slot(ty, su_rel, q, ringslot):
        cs, ss, pieces = dma_consts(ty)
        out = []
        for j, (srd, vi, ex) in enumerate(pieces):
            out.append([f"s_add_u32 m0, s{sM0}, {ringslot*16384 + j*1024}",
                        f"s_add_u32 s{sT0}, s{sDQ+q}, {su_rel*cs + ex}",
                        f"buffer_load_dwordx4 v{VW+vi}, s[{srd}:{srd+3}], s{sT0} offen lds"])
        return out

    def setup(ty):
        A.label(f"K1_SETUP_{ty}")
        ptr = {'Q': P_WQ, 'K': P_WUK, 'V': P_WUV, 'G': P_WG}[ty]
        A(f"s_mov_b32 s{S_WA}, s{ptr}\ns_mov_b32 s{S_WA+1}, s{ptr+1}")
        pb = P_WU if ty == 'G' else ptr
        A(f"s_mov_b32 s{S_WB}, s{pb}\ns_mov_b32 s{S_WB+1}, s{pb+1}")
        wsz = 512*2752 if ty == 'G' else 512*8192
        A(f"s_mov_b32 s{S_WA+2}, {wsz}\ns_mov_b32 s{S_WB+2}, {wsz}")
        A(f"s_mov_b32 s{sTYPE}, {'QKVG'.index(ty)}")
        cs, ss, _ = dma_consts(ty)
        pitch = 2752 if ty == 'G' else 8192
        A(f"s_mul_i32 s{sDMA}, s{sSU}, {cs}\ns_mul_i32 s{sT0}, s{sW}, {32*pitch}\ns_add_u32 s{sDMA}, s{sDMA}, s{sT0}")
        A(f"s_lshl_b32 s{sM0}, s{sW}, 12")
        A(f"s_add_u32 s{sROT}, s{sCG}, s{sTB}\ns_and_b32 s{sROT}, s{sROT}, {3 if ROT else 0}")
        for q in range(4):
            A(f"s_add_u32 s{sT0}, s{sROT}, {q}\ns_and_b32 s{sT0}, s{sT0}, 3\ns_mul_i32 s{sT1}, s{sT0}, {ss}\ns_add_u32 s{sDQ+q}, s{sDMA}, s{sT1}")
            if ty in 'KV': A(f"s_lshl_b32 s{sT0}, s{sT0}, 8\ns_add_u32 s{sRQ+q}, s{sROW}, s{sT0}")
        if ty in 'QG':
            for j, (_, _, ex) in enumerate(dma_consts(ty)[2]): A(f"s_mov_b32 s{sEX+j}, {ex}\ns_mov_b32 s{sEX2+j}, {ex+cs}")
        A("v_lshrrev_b32 v1, 4, v0\nv_bfe_u32 v2, v0, 2, 2\nv_and_b32 v3, 3, v0")
        if ty != 'G':
            A("v_lshrrev_b32 v4, 3, v0\nv_and_b32 v5, 7, v0\nv_bfe_u32 v6, v0, 4, 1\nv_lshlrev_b32 v6, 1, v6\nv_xor_b32 v5, v5, v6")
            A(f"v_lshlrev_b32 v4, 13, v4\nv_lshl_add_u32 v{VW}, v5, 4, v4\nv_xor_b32 v{VW+1}, 64, v{VW}")
            A("v_lshrrev_b32 v4, 1, v2\nv_and_b32 v5, 1, v1\nv_lshl_add_u32 v4, v5, 1, v4")
            A("v_lshl_add_u32 v5, v1, 3, v2\nv_lshlrev_b32 v5, 7, v5\nv_lshl_add_u32 v5, v3, 3, v5")
            for nb in range(4):
                A(f"v_xor_b32 v6, {nb}, v4\nv_lshl_add_u32 v{TRA+2*nb}, v6, 5, v5\nv_add_u32 v{TRA+2*nb+1}, 512, v{TRA+2*nb}")
        else:
            A(f"v_lshrrev_b32 v4, 2, v0\nv_lshrrev_b32 v6, 5, v0\nv_lshlrev_b32 v6, 1, v6\nv_xor_b32 v5, v3, v6")
            A(f"v_mul_u32_u24 v4, 2752, v4\nv_lshl_add_u32 v{VW}, v5, 4, v4\nv_mov_b32 v{VW+1}, v{VW}")
            A("v_and_b32 v4, 1, v1")
            A("v_lshl_add_u32 v5, v1, 3, v2\nv_lshlrev_b32 v5, 6, v5\nv_lshl_add_u32 v5, v3, 3, v5")
            for nb in range(4):
                A(f"v_xor_b32 v6, {nb%2}, v4\nv_lshl_add_u32 v6, v6, 5, v5\nv_add_u32 v{TRA+2*nb}, {(nb//2)*2048}, v6\nv_add_u32 v{TRA+2*nb+1}, 256, v{TRA+2*nb}")
        A("v_lshlrev_b32 v4, 4, v0")
        if ty == 'Q':
            for t in range(4): A(f"s_add_u32 s{sT0}, s{sCG}, {t}\ns_and_b32 s{sT0}, s{sT0}, {3 if ROT else 0}\ns_lshl_b32 s{sT0}, s{sT0}, 10\nv_add_u32 v{VO+t}, s{sT0}, v4" if ROT else f"v_add_u32 v{VO+t}, {t*1024}, v4")
            A(f"s_lshl_b32 s{sT0}, s{sTB}, 2\ns_add_u32 s{sT0}, s{sT0}, s{sW}\ns_mul_i32 s{sOBASE}, s{sT0}, {A3_TB64}\ns_add_u32 s{sOBASE}, s{sOBASE}, {A3_BASE}")
        elif ty == 'K':
            for t in range(4): A(f"v_add_u32 v{VO+t}, {(t//2)*16384 + (t%2)*4096}, v4")
            A(f"s_lshl_b32 s{sOBASE}, s{sTB}, 17\ns_lshl_b32 s{sT0}, s{sW}, 15\ns_add_u32 s{sOBASE}, s{sOBASE}, s{sT0}\ns_add_u32 s{sOBASE}, s{sOBASE}, {KV_BASE}")
        elif ty == 'V':
            for t in range(4): A(f"v_add_u32 v{VO+t}, {(t%2)*16384}, v4")
            A(f"s_lshl_b32 s{sOBASE}, s{sTB}, 17\ns_lshl_b32 s{sT0}, s{sW}, 15\ns_add_u32 s{sOBASE}, s{sOBASE}, s{sT0}\ns_add_u32 s{sOBASE}, s{sOBASE}, {KV_BASE+8192}")
        else:
            for t in range(4): A(f"s_add_u32 s{sT0}, s{sCG}, {t}\ns_and_b32 s{sT0}, s{sT0}, {3 if ROT else 0}\ns_lshl_b32 s{sT0}, s{sT0}, 10\nv_add_u32 v{VO+t}, s{sT0}, v4" if ROT else f"v_add_u32 v{VO+t}, {t*1024}, v4")
            A(f"s_lshl_b32 s{sT0}, s{sTB}, 2\ns_add_u32 s{sT0}, s{sT0}, s{sW}\ns_mul_i32 s{sOBASE}, s{sT0}, {A3_TB64}\ns_add_u32 s{sOBASE}, s{sOBASE}, {A3_BASE + 128*4096}")
        A(f"s_mov_b32 s{S_OUT+2}, {0 if ty in 'QG' else WS_USED}")
        A(f"s_branch {'K1_STAGE_X' if ty in 'QG' else 'K1_PRO_' + ty}")

    for ty in 'KVG': setup(ty)

    def wpre(ty, slots):
        for q in slots:
            for tr in dma_slot(ty, q//4, q%4, q):
                for x in tr: A(x)

    def act_touch():
        A(f"s_lshl_b32 s{sT1}, s{sTB}, 18\ns_and_b32 s{sT0}, s{sCG}, 3\ns_lshl_b32 s{sT0}, s{sT0}, 16\ns_add_u32 s{sT1}, s{sT1}, s{sT0}\ns_lshl_b32 s{sT0}, s{sW}, 14\ns_add_u32 s{sT1}, s{sT1}, s{sT0}")
        A(f"v_lshrrev_b32 v4, 3, v0\nv_and_b32 v5, 7, v0\nv_lshlrev_b32 v4, 10, v4\nv_lshl_add_u32 v4, v5, 7, v4\ns_add_u32 s{sT0}, s{sT1}, 8192")
        A(f"buffer_load_dword v{DUM}, v4, s[{S_ACT}:{S_ACT+3}], s{sT1} offen\nbuffer_load_dword v{DUM+1}, v4, s[{S_ACT}:{S_ACT+3}], s{sT0} offen")

    def touch_ops(ty):
        pitch = 2752 if ty == 'G' else 8192
        cs, _, _ = dma_consts(ty)
        o = [f"s_lshl_b32 s{sT1}, s{sTB}, 2", f"s_add_u32 s{sT1}, s{sT1}, s{sW}", f"s_mul_i32 s{sT1}, s{sT1}, {16*pitch}", f"s_mul_i32 s{sT0}, s{sSU}, {cs}", f"s_add_u32 s{sT1}, s{sT1}, s{sT0}"]
        if ty == 'G':
            o += ["v_lshrrev_b32 v4, 2, v0", "v_and_b32 v5, 3, v0", "v_mul_u32_u24 v4, 2752, v4", f"v_add_u32 v4, s{sT1}, v4", "v_and_b32 v4, 0xffffff80, v4", "v_lshl_add_u32 v4, v5, 7, v4"]
            o += [f"buffer_load_dword v{DUM+j}, v4, s[{srd}:{srd+3}], 0 offen" for j, srd in enumerate((S_WA, S_WB))]
        else:
            o += ["v_lshrrev_b32 v4, 3, v0", "v_and_b32 v5, 7, v0", "v_lshlrev_b32 v4, 13, v4", "v_lshl_add_u32 v4, v5, 7, v4"]
            for j in range(2):
                o += [f"s_add_u32 s{sT0}, s{sT1}, {j*8*pitch}", f"buffer_load_dword v{DUM+j}, v4, s[{S_WA}:{S_WA+3}], s{sT0} offen"]
        return o

    BUF = [0, 1, 2, 3, 4, 2, 3, 4]
    A.label("K1_STAGE_X")
    A(f"s_mov_b32 s{S_XC}, s{P_WS}\ns_mov_b32 s{S_XC+1}, s{P_WS+1}\ns_mov_b32 s{S_XC+3}, 0x00020000\ns_cmp_ge_u32 s{sCG}, 7\ns_cselect_b32 s{S_XC+2}, {WS_USED}, 0")
    A(f"s_lshl_b32 s{sT1}, s{sTB}, 4\ns_lshl_b32 s{sT0}, s{sW}, 2\ns_add_u32 s{sT1}, s{sT1}, s{sT0}\ns_and_b32 s{sT0}, s{sCG}, {3 if ROT else 0}\ns_add_u32 s{sT1}, s{sT1}, s{sT0}")
    A(f"s_lshl_b32 s{sSCQ}, s{sT1}, 6\ns_add_u32 s{sSCQ}, s{sSCQ}, {SCQ_BASE}\ns_lshl_b32 s{sT1}, s{sT1}, 14\ns_add_u32 s{sT1}, s{sT1}, {XC_BASE}")
    for q in range(4): A(f"s_add_u32 s{sT0}, s{sROT}, {q}\ns_and_b32 s{sT0}, s{sT0}, 3\ns_lshl_b32 s{sT0}, s{sT0}, 12\ns_add_u32 s{sXQ+q}, s{sT1}, s{sT0}")
    A(f"v_lshlrev_b32 v{VLN}, 4, v0")
    if ACT_TOUCH: act_touch()
    A(f"s_lshl_b32 s{sT0}, s{sROT}, 4\nv_add_u32 v{T}, s{sT0}, v0\nv_and_b32 v{T}, 63, v{T}\nv_lshlrev_b32 v{T}, 4, v{T}")
    for t in range(4):
        A(f"s_add_u32 s{sT0}, s{sCG}, {t}\ns_and_b32 s{sT0}, s{sT0}, 3\ns_lshl_b32 s{sT0}, s{sT0}, 14\ns_add_u32 s{sXR+t}, s{sROW}, s{sT0}" if ROT else f"s_add_u32 s{sXR+t}, s{sROW}, {t*16384}")
    def x_round(r):
        o = []
        for j in range(8):
            tok = (8*r + j) & 15
            o.append([f"v_xor_b32 v{T+1+(j&1)}, {tok*16}, v{T}", f"s_add_u32 m0, s{sSTG}, {BUF[r]*32768 + j*1024}", f"s_add_u32 s{sT0}, s{sXR+r//2}, {(8*(r%2)+j)*1024}",
                      f"buffer_load_dwordx4 v{T+1+(j&1)}, s[{S_ACT}:{S_ACT+3}], s{sT0} offen lds"])
        return o
    def gw_slot(n):
        o = []
        for j in range(4):
            srd = S_WA if j < 2 else S_WB
            it = [f"s_add_u32 m0, s{sM0}, {n*16384 + j*1024}", f"s_add_u32 s{sT0}, s{sDQ+n%4}, s{(sEX if n < 4 else sEX2)+j}", f"buffer_load_dwordx4 v{VW+(j&1)}, s[{srd}:{srd+3}], s{sT0} offen lds"]
            o.append(it)
        return o
    for r in range(2 if XORD else 4):
        for it in x_round(r):
            for x in it: A(x)
    stamp(A, 1)
    A(f"v_and_b32 v4, 15, v0\nv_and_b32 v5, 7, v0\nv_lshlrev_b32 v5, 10, v5\nv_and_b32 v6, 3, v0\nv_xor_b32 v6, v6, v1\nv_lshl_add_u32 v5, v6, 4, v5")
    A(f"v_add_u32 v5, s{sSTG}, v5\nv_lshrrev_b32 v6, 2, v4")
    for k in range(4):
        A(f"v_xor_b32 v7, {k}, v6\nv_lshl_add_u32 v{T+4+k}, v7, 6, v5")
    A(f"v_cmp_lt_u32 vcc, 7, v4")
    A(f"v_lshlrev_b32 v5, 2, v1\nv_sub_u32 v5, v4, v5")
    for i in range(4): A(f"v_cmp_eq_u32 s[{sMK+2*i}:{sMK+2*i+1}], {i}, v5")
    for i in range(4): A(f"v_mov_b32 v{ONESV+i}, s{sONES}")
    L = WF
    def x_read(t, vm):
        X = ACC[t % 2]
        ba, bb = BUF[2*t], BUF[2*t+1]
        o = [f"v_mov_b32 v2, {ba*32768}", f"v_mov_b32 v3, {bb*32768}", "v_cndmask_b32 v2, v2, v3, vcc"]
        o += [f"v_add_u32 v{T+8+k}, v2, v{T+4+k}" for k in range(4)]
        o.append(f"s_waitcnt vmcnt({vm})")
        o += [f"ds_read_b128 {vr(X+4*ks,4)}, v{T+8+(ks&3)} offset:{(ks&12)*64}" for ks in range(16)]
        return o
    def sumx(t):
        d = SUM + 4*(t % 2); X = ACC[t % 2]
        return [[f"{MF} {vr(d,4)}, {vr(ONESV,4)}, {vr(X+4*ks,4)}, {'0' if ks == 0 else vr(d,4)}"] for ks in range(16)]
    def gram(t):
        d = GR + 4*t
        return [[f"{MF} {vr(d,4)}, {ar((t*16+ks)*4,4)}, {ar((t*16+ks)*4,4)}, {'0' if ks == 0 else vr(d,4)}"] for ks in range(16)]
    def ln_stream(t):
        X = ACC[t % 2]; mu = MU
        o = [f"v_mul_f32 v{mu}, {hex(f32bits(-1.0/512))}, v{SUM+4*(t%2)}"]
        for b in range(16):
            tb_ = L + 8*(b % 2)
            for i in range(4):
                o.append(f"v_lshlrev_b32 v{tb_+2*i}, 16, v{X+4*b+i}"); o.append(f"v_and_b32 v{tb_+2*i+1}, 0xffff0000, v{X+4*b+i}")
            for i in range(8): o.append(f"v_add_f32 v{tb_+i}, v{tb_+i}, v{mu}")
            for i in range(4): o.append(f"v_cvt_pk_bf16_f32 v{X+4*b+i}, v{tb_+2*i}, v{tb_+2*i+1}")
            for i in range(4): o.append(f"v_accvgpr_write_b32 a{(t*16+b)*4+i}, v{X+4*b+i}")
        return o
    def interleave(main, sides):
        n = len(main)
        ins = {}
        for f0, f1, items in sides:
            for k, it in enumerate(items):
                p = int(n*(f0 + (f1-f0)*(k+0.5)/len(items)))
                ins.setdefault(p, []).extend(it)
        for i, x in enumerate(main):
            for y in ins.get(i, []): A(y)
            A(x)
    w03 = [it for n in range(4) for it in gw_slot(n)]
    if XORD:
        for x in x_read(0, 0): A(x)
        r23 = x_round(2) + x_round(3)
        for it in r23[:4]:
            for x in it: A(x)
        A("s_waitcnt lgkmcnt(0)")
        stamp(A, 2)
        for k, it in enumerate(sumx(0)):
            for x in it: A(x)
            if k < 12:
                for x in r23[4+k]: A(x)
        stamp(A, 3)
        interleave(ln_stream(0), [(0.01, 0.25, x_round(4)), (0.40, 0.41, [x_read(1, 8)]), (0.55, 0.56, [["s_waitcnt lgkmcnt(0)", "s_barrier"]]), (0.57, 0.8, x_round(5) + x_round(6)), (0.8, 0.99, w03), (0.6, 0.92, sumx(1))])
    else:
        for x in x_read(0, 16): A(x)
        A("s_waitcnt lgkmcnt(0)")
        stamp(A, 2)
        r4 = x_round(4)
        for k, it in enumerate(sumx(0)):
            for x in it: A(x)
            if k % 2 == 0:
                for x in r4[k//2]: A(x)
        for x in x_read(1, 8): A(x)
        stamp(A, 3)
        interleave(ln_stream(0), [(0.10, 0.11, [["s_waitcnt lgkmcnt(0)", "s_barrier"]]), (0.12, 0.45, x_round(5) + x_round(6)), (0.45, 0.98, w03), (0.5, 0.9, sumx(1))])
    for x in x_read(2, 24): A(x)
    stamp(A, 4)
    interleave(ln_stream(1), [(0.05, 0.45, gram(0)), (0.15, 0.16, [["s_waitcnt lgkmcnt(0)"]]), (0.17, 0.4, x_round(7)), (0.5, 0.9, sumx(2))])
    for x in x_read(3, 0): A(x)
    w46 = [it for n in range(4, 7) for it in gw_slot(n)]
    interleave(ln_stream(2), [(0.05, 0.45, gram(1)), (0.15, 0.16, [["s_waitcnt lgkmcnt(0)", "s_barrier"]]), (0.17, 0.7, w46), (0.5, 0.9, sumx(3))])
    stamp(A, 5)
    xcst = [[f"buffer_store_dwordx4 {ar(b*4,4)}, v{VLN}, s[{S_XC}:{S_XC+3}], s{sXQ+b//4} offen offset:{(b%4)*1024} sc1"] for b in range(16)]
    interleave(ln_stream(3), [(0.05, 0.45, gram(2))])
    A("s_nop 1")
    for it in gram(3):
        for x in it: A(x)
    def extract(t):
        g = GR + 4*t; D, D2 = L, L+1
        A(f"v_cndmask_b32 v{D}, 0, v{g}, s[{sMK}:{sMK+1}]")
        for i in range(1, 4): A(f"v_cndmask_b32 v{D}, v{D}, v{g+i}, s[{sMK+2*i}:{sMK+2*i+1}]")
        A(f"v_mov_b32 v{D2}, v{D}\ns_nop 1\nv_permlane16_swap_b32 v{D}, v{D2}\nv_add_f32 v{D}, v{D}, v{D2}")
        A(f"v_mov_b32 v{D2}, v{D}\ns_nop 1\nv_permlane32_swap_b32 v{D}, v{D2}\nv_add_f32 v{D}, v{D}, v{D2}")
        A(f"v_mov_b32 v{D2}, {hex(f32bits(1e-5))}\nv_fmac_f32 v{D2}, {hex(f32bits(1.0/512))}, v{D}")
        A(f"v_rsq_f32 v{RSTD+t}, v{D2}")
    for t in range(4): extract(t)
    A(f"v_mul_f32 v{MU}, {hex(f32bits(CSCALE))}, v{RSTD}\nv_and_b32 v{SUM}, 15, v0\nv_lshlrev_b32 v{SUM}, 2, v{SUM}")
    A("s_branch K1_START2_G")

    def epilogue_ops(ty, acc, store_flags=store_flags):
        ops = []
        blk = lambda nb, t: acc + (nb*4 + t)*4
        oq = 0
        def store(q, vo, off, so=sOB): return f"buffer_store_dwordx4 {vr(OUT+4*q,4)}, v{vo}, s[{S_OUT}:{S_OUT+3}], s{so} offen offset:{off}{store_flags}"
        if ty in 'QK':
            for pr in range(2):
                for t in range(4):
                    for h in range(2):
                        b = blk(2*pr+h, t)
                        if ty == 'Q':
                            for i in range(4): ops.append(f"v_mul_f32 v{b+i}, v{b+i}, v{SC+t}")
                        ops.append(f"v_cvt_pk_bf16_f32 v{OUT+4*oq+2*h}, v{b}, v{b+1}")
                        ops.append(f"v_cvt_pk_bf16_f32 v{OUT+4*oq+2*h+1}, v{b+2}, v{b+3}")
                    ops.append(store(oq, VO+t, pr*1024) if ty == 'K' else store(oq, VO+t, 0, sOB2 if pr else sOB)); oq = (oq+1) % 3
        elif ty == 'V':
            for nb in range(4):
                for v in range(2):
                    for h in range(2):
                        b = blk(nb, 2*v+h)
                        ops.append(f"v_cvt_pk_bf16_f32 v{OUT+4*oq+2*h}, v{b}, v{b+1}")
                        ops.append(f"v_cvt_pk_bf16_f32 v{OUT+4*oq+2*h+1}, v{b+2}, v{b+3}")
                    ops.append(store(oq, VO+v, nb*1024)); oq = (oq+1) % 3
        else:
            for t in range(4):
                for h in range(2):
                    g = blk(h, t); u = blk(h+2, t)
                    for i in range(4): ops.append(f"v_max_f32 v{g+i}, 0, v{g+i}")
                    for i in range(4): ops.append(f"v_mul_f32 v{u+i}, v{u+i}, v{SC+t}")
                    for i in range(4): ops.append(f"v_mul_f32 v{g+i}, v{g+i}, v{u+i}")
                    ops.append(f"v_cvt_pk_bf16_f32 v{OUT+4*oq+2*h}, v{g}, v{g+1}")
                    ops.append(f"v_cvt_pk_bf16_f32 v{OUT+4*oq+2*h+1}, v{g+2}, v{g+3}")
                ops.append(store(oq, VO+t, 0)); oq = (oq+1) % 3
        return ops

    def ob_calc(ty, su_reg_delta):
        o = [f"s_add_u32 s{sT1}, s{sSU}, {su_reg_delta}"] if su_reg_delta >= 0 else [f"s_sub_u32 s{sT1}, s{sSU}, {-su_reg_delta}"]
        if ty in 'GQ':
            o += [f"s_lshl_b32 s{sT1}, s{sT1}, {12 if ty == 'G' else 13}", f"s_add_u32 s{sOB}, s{sOBASE}, s{sT1}"]
            if ty == 'Q': o.append(f"s_add_u32 s{sOB2}, s{sOB}, 4096")
        else:
            hs = 19 if ty == 'Q' else 20
            ls = 12 if ty == 'V' else 11
            o += [f"s_lshr_b32 s{sOB}, s{sT1}, 1", f"s_lshl_b32 s{sOB}, s{sOB}, {hs}", f"s_and_b32 s{sT1}, s{sT1}, 1", f"s_lshl_b32 s{sT1}, s{sT1}, {ls}",
                  f"s_add_u32 s{sOB}, s{sOB}, s{sT1}", f"s_add_u32 s{sOB}, s{sOB}, s{sOBASE}"]
        return o

    def trreads(fi, nb, slot_in_half, ks):
        off = slot_in_half*16384 + ks*4096
        return [f"ds_read_b64_tr_b16 {vr(WF+4*fi,2)}, v{TRA+2*nb} offset:{off}",
                f"ds_read_b64_tr_b16 {vr(WF+4*fi+2,2)}, v{TRA+2*nb+1} offset:{off}"]

    def c_round(r):
        return [[f"s_add_u32 m0, s{sSTG}, {98304 + (r%2)*32768 + j*1024}", f"s_add_u32 s{sT0}, s{sRQ+r//2}, {j*8192 + (r%2)*128}",
                 f"buffer_load_dwordx4 v{T+(j&1)}, s[{S_ACT}:{S_ACT+3}], s{sT0} offen lds"] for j in range(8)]
    def c_reads(r):
        return [f"ds_read_b128 {ar((t*16+2*r+k2)*4, 4)}, v{T+2+k2} offset:{(r%2)*32768 + t*2048}" for t in range(4) for k2 in range(2)]

    def body(ty, par, first=False, vms=None, A=A):
        acc = ACC[par]; old = ACC[1-par]
        cs, ss, _ = dma_consts(ty)
        gaps = {}
        def G(q, m): return gaps.setdefault((q, m), {'mem': [], 'other': []})
        def room(q, m):
            g = G(q, m); return 2 - len(g['mem']) - len(g['other'])
        prew = {}
        if LGK:
            for q in range(4):
                for grp in range(1, 16, 2): G(q, grp*4 + 2)['other'].append("s_waitcnt lgkmcnt(10)")
        if not first:
            epi = epilogue_ops(ty, old)
            if ty == 'G' and par == 1:
                ex = [x[0] for x in xcst] + [f"buffer_store_dword v{MU}, v{SUM}, s[{S_XC}:{S_XC+3}], s{sSCQ} offen sc1", f"s_mov_b32 s{S_XC+2}, 0"]
                e2 = []
                for k, x in enumerate(epi):
                    e2.append(x)
                    if k % 6 == 5 and ex: e2.append(ex.pop(0))
                epi = e2 + ex
            for q in range(4):
                G(q, 0)['other'] += [f"s_waitcnt vmcnt({vms[q]})", "s_barrier"]
                tgt = (4*par + q + 7) % 8
                trip = dma_slot(ty, 1 if q == 0 else 2, (q+3) % 4, tgt)
                if q == 1:
                    G(q, 1)['other'] += [f"s_add_u32 s{sT1}, s{sSU}, 2", f"s_cmp_ge_u32 s{sT1}, s{sEND2}"]
                    G(q, 2)['other'] += [f"s_cselect_b32 s{S_WA+2}, 0, s{S_WA+2}", f"s_cselect_b32 s{S_WB+2}, 0, s{S_WB+2}"]
                for j, tr in enumerate(trip):
                    m = 8 + 12*j + 1
                    G(q, m)['other'] += tr[:2]
                    G(q, m+1)['mem'] += [tr[2]]
            oc = ob_calc(ty, -1)
            pos = [(0,1),(0,2),(0,4),(0,5)]
            k = 0
            for p in pos:
                while room(*p) > 0 and k < len(oc): G(*p)['other'].append(oc[k]); k += 1
            assert k == len(oc)
        for nb in range(4):
            m = 16 + 4*nb + 4
            G(3, m)['other'] += [f"v_xor_b32 v{TRA+2*nb}, 0x10000, v{TRA+2*nb}", f"v_xor_b32 v{TRA+2*nb+1}, 0x10000, v{TRA+2*nb+1}"]
        if not first:
            slots = [(q, m) for q in range(4) for m in range(64) if m % 4 != 3 and (q, m) >= (0, 6)]
            cap = [(s_, room(*s_)) for s_ in slots]
            tot = sum(c for _, c in cap)
            step = max(1.0, 0.8*tot/len(epi))
            flat = [s_ for s_, c in cap for _ in range(c)]
            idx = 0.0
            for op in epi:
                s_ = flat[int(idx)]
                if op.startswith('buffer_store'):
                    i2 = int(idx)
                    while True:
                        s_ = flat[i2]
                        g = G(*s_)
                        if not g['mem'] and not g['other']: break
                        i2 += 1
                    idx = max(idx, i2)
                    G(*s_)['mem'].append(op)
                else:
                    G(*s_)['other'].append(op)
                idx += step
        else:
            seq = ['R0']*8 + ['W0']*4 + ['R1']*8 + ['W1']*4
            def vm(tag): return len(seq) - 1 - max(i for i, e in enumerate(seq) if e == tag)
            def put_triples(q, m0, trips, tag):
                m = m0
                for tr in trips:
                    G(q, m)['other'] += tr[:2]
                    m2 = m + 1 if (m + 1) % 4 != 3 else m + 2
                    G(q, m2)['mem'].append(tr[2]); seq.append(tag)
                    m = m2
                    if len(G(q, m)['other']) >= 1 or True:
                        pass
                return m
            for h in range(8):
                q = h // 2; base = 32*(h % 2)
                if h >= 1: prew[(q, base)] = ["s_waitcnt lgkmcnt(2)"]
                need = None
                if h == 1: need = 'W1'
                elif h in (2, 4, 6): need = f'W{q+1}'
                if need: G(q, base)['other'] += [f"s_waitcnt vmcnt({vm(need)})", "s_barrier"]
                if h == 7: G(q, base)['other'] += ["s_barrier"]
                if HST and h in (2, 4, 6): G(q, base)['other'].append(f"s_memrealtime s[{64+2*(2+h//2)}:{65+2*(2+h//2)}]")
                m = base + 1
                if h + 2 <= 7: m = put_triples(q, m, c_round(h+2), f'R{h+2}')
                if WEARLY:
                    if h <= 1:
                        for n in (2*h+2, 2*h+3): m = put_triples(q, m, dma_slot(ty, n//4, n % 4, n), f'W{n}')
                elif h <= 3: m = put_triples(q, m, dma_slot(ty, (h+2)//4, (h+2) % 4, h+2), f'W{h+2}')
                if h == 7:
                    for n in range(6, 11): m = put_triples(q, m, dma_slot(ty, n//4, n % 4, n % 8), f'W{n}')
                    assert m <= 60, m
                if h == 4 and KV_TOUCH:
                    to = touch_ops(ty)
                    for k, x in enumerate(to):
                        if x.startswith('buffer'): seq.append('T')
                        G(q, base + 16 + (k//4)*1 + (1 if (base+16+(k//4)) % 4 == 3 else 0))['other'].append(x)
                if h + 1 <= 7:
                    mm = base + 24
                    prew[(q, mm)] = [f"s_waitcnt vmcnt({vm(f'R{h+1}')})"]
                    rds = c_reads(h+1)
                    for k, p in enumerate((mm, mm+1, mm+2, mm+4)):
                        G(q, p)['mem'] += rds[2*k:2*k+2]
        if ty == 'V':
            G(3, 56)['other'] += [f"s_add_u32 s{sT1}, s{sSU}, 3", f"s_cmp_eq_u32 s{sT1}, s{sEND}", f"s_cselect_b32 s{sIA}, s{sHD}, {cs}"]
            G(3, 57)['other'] += [f"s_add_u32 s{sT1}, s{sSU}, 2", f"s_cmp_eq_u32 s{sT1}, s{sEND}", f"s_cselect_b32 s{sIB}, s{sHD}, {cs}"]
            ia, ib = f"s{sIA}", f"s{sIB}"
        else: ia = ib = f"{cs}"
        G(3, 60)['other'] += [f"s_add_u32 s{sDQ}, s{sDQ}, {ia}", f"s_add_u32 s{sDQ+1}, s{sDQ+1}, {ia}"]
        G(3, 61)['other'] += [f"s_add_u32 s{sDQ+2}, s{sDQ+2}, {ia}", f"s_add_u32 s{sDQ+3}, s{sDQ+3}, {ib}", f"s_add_u32 s{sSU}, s{sSU}, 1"]
        G(3, 62)['other'] += [f"s_mov_b32 s{S_OUT+2}, {0 if NOST else WS_USED}", f"s_cmp_ge_u32 s{sSU}, s{sEND}"]
        for q in range(4):
            for ks in range(4):
                for nb in range(4):
                    fi = (ks % 2)*4 + nb
                    grp = ks*4 + nb
                    if grp % 2 == 0 and not LGK: A("s_waitcnt lgkmcnt(12)")
                    for t in range(4):
                        m = grp*4 + t
                        for x in prew.get((q, m), []): A(x)
                        d = acc + (nb*4+t)*4
                        kk = q*4 + ks
                        c = "0" if kk == 0 else vr(d, 4)
                        w = vr(WF+4*fi, 4); a = ar((t*16+kk)*4, 4)
                        A(f"{MF} {vr(d,4)}, {a}, {w}, {c}" if ty == 'V' else f"{MF} {vr(d,4)}, {w}, {a}, {c}")
                        if t == 3:
                            if ks < 2: rd = trreads(fi, nb, q, ks+2)
                            else: rd = trreads(fi, nb, (q+1) % 4, ks-2)
                            for x in rd: A(x)
                        g = G(q, m)
                        for x in g['mem']: A(x)
                        for x in g['other']: A(x)

    def vm_table(ty):
        tmp = Asm(); body(ty, 0, vms=[0]*4, A=tmp)
        pat = []; q = -1
        for l in tmp.lines:
            if l == 's_barrier': q += 1; pat.append(('bar', q))
            elif l.startswith('buffer_load'): pat.append(('dma', q))
            elif l.startswith('buffer_store'): pat.append(('st', q))
        if ty in 'KV': seq = [5]*4 + [n for n in range(6, 11) for _ in range(4)]; c0 = 1
        else: seq = [n for n in range(4, 7) for _ in range(4)]; c0 = 0
        tab = {}
        for c in range(c0, 8):
            tab[c] = [0]*4
            for kind, q in pat:
                if kind == 'bar':
                    need = 4*c + q + 1
                    idx = [i for i, e in enumerate(seq) if e == need]
                    tab[c][q] = min(63, len(seq) - 1 - max(idx)) if idx else 63
                    if not EXACT: tab[c][q] = 20
                elif kind == 'dma': seq.append(4*c + q + 7)
                else: seq.append('s')
        return tab

    for ty in 'KVG':
        VN = vm_table(ty)
        if ty in 'KV':
            A.label(f"K1_PRO_{ty}")
            if ACT_TOUCH: act_touch()
            A(f"v_lshrrev_b32 v4, 3, v0\nv_and_b32 v5, 7, v0\nv_lshrrev_b32 v6, 4, v0\nv_xor_b32 v5, v5, v6")
            A(f"v_lshlrev_b32 v4, 10, v4\nv_lshl_add_u32 v{T}, v5, 4, v4\nv_xor_b32 v{T+1}, 64, v{T}")
            for it in c_round(0) + dma_slot(ty, 0, 0, 0) + c_round(1) + dma_slot(ty, 0, 1, 1):
                for x in it: A(x)
            stamp(A, 1)
            A(f"v_and_b32 v4, 15, v0\nv_lshrrev_b32 v5, 1, v4\nv_xor_b32 v5, v5, v1\nv_lshlrev_b32 v4, 7, v4\nv_lshl_add_u32 v4, v5, 4, v4")
            A(f"s_add_u32 s{sT1}, s{sSTG}, 98304\nv_add_u32 v{T+2}, s{sT1}, v4\nv_xor_b32 v{T+3}, 64, v{T+2}")
            A("s_waitcnt vmcnt(12)\ns_barrier")
            stamp(A, 2)
            for x in c_reads(0): A(x)
            for ks in range(2):
                for nb in range(4):
                    for x in trreads(ks*4+nb, nb, 0, ks): A(x)
            A("s_waitcnt lgkmcnt(12)")
            body(ty, 0, first=True)
            stamp(A, 6)
            if not HST: stampc(A, 4)
            body(ty, 1, vms=VN[1])
            if CODE_TOUCH2: code_touch(A, "k2_kernel", "K2_END", sW, 0, DUM+1, 80)
            if WQ_TOUCH:
                A(f"s_mov_b32 s4, s{P_WQ}\ns_mov_b32 s5, s{P_WQ+1}\ns_mov_b32 s6, {512*8192}\ns_mov_b32 s7, 0x00020000")
                A(f"s_sub_u32 s{sT1}, s{sCG}, 11\ns_lshl_b32 s{sT1}, s{sT1}, 3\ns_add_u32 s{sT1}, s{sT1}, s{sTB}\ns_mul_i32 s{sT1}, s{sT1}, {196*128}\ns_min_u32 s{sT0}, s{sW}, 3\ns_lshl_b32 s{sT0}, s{sT0}, 13\ns_add_u32 s{sT1}, s{sT1}, s{sT0}")
                A(f"v_lshlrev_b32 v4, 7, v0\nbuffer_load_dword v{DUM}, v4, s[4:7], s{sT1} offen")
            A(f"s_branch K1_LOOP_{ty}")
        else:
            A.label(f"K1_START2_{ty}")
            stamp(A, 2)
            if W_TOUCH:
                for x in touch_ops(ty): A(x)
            if ty == 'Q':
                for t in range(4): A(f"v_mul_f32 v{SC+t}, {hex(f32bits(CSCALE))}, v{RSTD+t}")
            if ty == 'G':
                for t in range(4): A(f"v_mul_f32 v{SC+t}, v{RSTD+t}, v{RSTD+t}")
            A(f"s_waitcnt vmcnt({14 if W_TOUCH else 12})\ns_barrier")
            stamp(A, 6)
            for ks in range(2):
                for nb in range(4):
                    for x in trreads(ks*4+nb, nb, 0, ks): A(x)
            A("s_waitcnt lgkmcnt(12)")
        A(".p2align 6")
        A.label(f"K1_LOOP_{ty}")
        c0 = 2 if ty in 'KV' else 0
        body(ty, 0, vms=[min(VN[c][q] for c in range(c0, 8, 2)) for q in range(4)])
        A(f"s_cbranch_scc1 K1_DRAIN0_{ty}")
        body(ty, 1, vms=[min(VN[c][q] for c in range(c0+1, 8, 2)) for q in range(4)])
        A(f"s_cbranch_scc0 K1_LOOP_{ty}")
        for par in (1, 0):
            A.label(f"K1_DRAIN{par}_{ty}")
            if ty == 'V' and par == 1: A(f"s_cmp_lg_u32 s{sEND}, s{sEND2}\ns_cbranch_scc1 K1_HALF_V")
            if ty in 'KV' and not HST: stamp(A, 3); stampc(A, 5)
            for x in ob_calc(ty, -1): A(x)
            A("s_nop 1")
            if WBL2: A(f"s_cmp_lg_u32 s{sW}, 0\ns_cbranch_scc1 K1_NOWB{par}_{ty}\nbuffer_wbl2 sc1\nK1_NOWB{par}_{ty}:")
            for x in epilogue_ops(ty, ACC[par], (' ' + SFD) if SFD else ''): A(x)
            A("s_branch K1_FIN")
    A.label("K1_HALF_V")
    epi = ob_calc('V', -1) + epilogue_ops('V', ACC[1])
    A("s_waitcnt vmcnt(12)")
    k = 0
    for q in range(4):
        for ks in range(4):
            A("s_waitcnt lgkmcnt(4)")
            for nb in range(2):
                fi = (ks % 2)*4 + nb
                for t in range(4):
                    d = ACC[0] + (nb*4+t)*4; kk = q*4 + ks
                    A(f"{MF} {vr(d,4)}, {ar((t*16+kk)*4,4)}, {vr(WF+4*fi,4)}, {'0' if kk == 0 else vr(d,4)}")
                    if kk == 0 and nb == 0 and t == 0: A("s_barrier")
                    if t == 3 and kk < 14:
                        for x in (trreads(fi, nb, q, ks+2) if ks < 2 else trreads(fi, nb, q+1, ks-2)): A(x)
                    elif t < 3 and kk >= 1 and k < len(epi):
                        A(epi[k]); k += 1
    assert k == len(epi), (k, len(epi))
    A(f"s_add_u32 s{sOB}, s{sOBH}, s{sOBASE}\ns_nop 4")
    for x in epilogue_ops('V', ACC[0])[:20]: A(x)
    A.label("K1_FIN")
    if asmlib.STAMP:
        A("s_waitcnt vmcnt(0)")
        stamp_flush(A, 0, 8, P_WS, sW)
    A.label("K1_END")
    A("s_endpgm")
    return dict(name="k1_kernel", vgpr=248+256, accum=248, sgpr=102, grid=256, block=256, lds=163840)
```

```python
from asmlib import *
import asmlib
from k1q import KV_BASE, A3_BASE, A3_TB64, WS_USED, MF, f32bits, XC_BASE, SCQ_BASE

import os
QST = os.environ.get('QST', '0') == '1'
QPLAN = os.environ.get('QPLAN', '3')
CT = os.environ.get('CODE_TOUCH2', '1') == '1'
QROT = int(os.environ.get('QROT', '2'))
LATEKV = os.environ.get('LATEKV', '1') == '1'
CTX_TOUCH = os.environ.get('CTX_TOUCH', '0') == '1'
def gen_k2(A, store_flags="", thr=2.0**30):
    O = 0; S01 = 128; S23 = [144, 160]; P01 = [176, 184]; P23 = 192; CX = 200; E = 232; LS = 236; L = 240
    VK = 244; VV = 245; VD = 246; TMP = 247
    AQ = 0; KF = 64; VF = 96
    S_KV, S_WS = 8, 12
    sW, sH, sI, sT0, sT1, sOFF, sHALF, sCNT, sTHR, sNEG = 16, 17, 18, 19, 20, 21, 22, 23, 24, 25
    sMK = 26
    sRET = 34
    sP = 36; sOHI = 37; sOLO = 38
    P_WS = 40; P_WO = 42; P_WD = 44; P_WQ = 46; S_T = 48; sXH = 52; sXL = 53; sWQ = 54; sMQ = 55
    def Sreg(qp, kb, par): return (S01 + (qp*2+kb)*4) if qp < 2 else (S23[par] + ((qp-2)*2+kb)*4)
    def Preg(qp, par): return (P01[par] + qp*4) if qp < 2 else (P23 + (qp-2)*4)
    def Oreg(db, qb): return O + (db*4+qb)*4
    def CXr(qp, kb): return CX + (qp*2+kb)*4
    stubs = []
    uid = [0]
    def U(p): uid[0] += 1; return f"K2_{p}_{uid[0]}"

    A(".globl k2_kernel\n.p2align 8\n.type k2_kernel,@function")
    A.label("k2_kernel")
    A("s_cmp_ge_u32 s2, 256\ns_cbranch_scc1 K2_END")
    stamp(A, 0)
    A(f"s_load_dwordx2 s[{P_WS}:{P_WS+1}], s[0:1], 96\ns_load_dwordx2 s[{P_WO}:{P_WO+1}], s[0:1], 40\ns_load_dwordx2 s[{P_WD}:{P_WD+1}], s[0:1], 72\ns_load_dwordx2 s[{P_WQ}:{P_WQ+1}], s[0:1], 16\ns_mov_b32 s{S_T+3}, 0x00020000")
    A(f"v_lshrrev_b32 v{TMP}, 6, v0\nv_and_b32 v{TMP+1}, 63, v0\ns_nop 0\nv_readfirstlane_b32 s{sW}, v{TMP}")
    A(f"s_and_b32 s{sT0}, s2, 7\ns_lshr_b32 s{sT1}, s2, 3\ns_lshr_b32 s{sI}, s{sT1}, 2\ns_and_b32 s{sT1}, s{sT1}, 3\ns_lshl_b32 s{sH}, s{sT0}, 2\ns_add_u32 s{sH}, s{sH}, s{sT1}")
    A(f"s_mov_b32 s{S_KV+3}, 0x00020000\ns_mov_b32 s{S_WS+3}, 0x00020000\ns_mov_b32 s{S_WS+2}, {WS_USED}")
    A(f"s_lshl_b32 s{sT0}, s{sI}, 16\ns_sub_u32 s{S_KV+2}, 0x108000, s{sT0}")
    A(f"s_mov_b32 s{sTHR}, {hex(f32bits(thr))}\ns_mov_b32 s{sNEG}, 0xff800000")
    LN = TMP+1
    A(f"v_lshlrev_b32 v{VK}, 4, v{LN}\nv_add_u32 v{VV}, 0x10000, v{VK}")
    A(f"s_lshl_b32 s{sT0}, s{sW}, 12\nv_add_u32 v{VD}, s{sT0}, v{VK}")
    A(f"s_and_b32 s{sT0}, s{sW}, 1\ns_lshl_b32 s{sHALF}, s{sT0}, 12\ns_lshr_b32 s{sT0}, s{sW}, 1\ns_lshl_b32 s{sT1}, s{sT0}, 16\ns_add_u32 s{sHALF}, s{sHALF}, s{sT1}")
    A(f"s_lshl_b32 s{sT0}, s{sT0}, 15\ns_sub_u32 s{sOFF}, 0x8000, s{sT0}")
    if CT: code_touch(A, "k2_kernel", "K2_END", sW, LN, TMP+7, 80)
    A("s_waitcnt lgkmcnt(0)")
    if not QST: stamp(A, 5)
    A(f"s_mov_b32 s{S_WS}, s{P_WS}\ns_mov_b32 s{S_WS+1}, s{P_WS+1}")
    A(f"s_lshl_b32 s{sT0}, s{sH}, 20\ns_add_u32 s{sT0}, s{sT0}, {KV_BASE-0x8000}\ns_add_u32 s{S_KV}, s{P_WS}, s{sT0}\ns_addc_u32 s{S_KV+1}, s{P_WS+1}, 0")
    A(f"s_lshr_b32 s{sT0}, s{sW}, 1\ns_lshl_b32 s{sT1}, s{sI}, 1\ns_add_u32 s{sOLO}, s{sT1}, s{sT0}\ns_sub_u32 s{sOHI}, 30, s{sT1}\ns_add_u32 s{sOHI}, s{sOHI}, s{sT0}")
    A(f"s_mul_i32 s{sOLO}, s{sOLO}, {A3_TB64}\ns_mul_i32 s{sOHI}, s{sOHI}, {A3_TB64}")
    A(f"s_lshl_b32 s{sT0}, s{sH}, 14\ns_and_b32 s{sT1}, s{sW}, 1\ns_lshl_b32 s{sT1}, s{sT1}, 11\ns_add_u32 s{sT0}, s{sT0}, s{sT1}\ns_add_u32 s{sT0}, s{sT0}, {A3_BASE}")
    A(f"s_add_u32 s{sOLO}, s{sOLO}, s{sT0}\ns_add_u32 s{sOHI}, s{sOHI}, s{sT0}")
    def kread(f, unit4): return f"ds_read_b128 {ar(KF+4*f,4)}, v{VK} offset:{unit4*8192 + f*1024}"
    def vread(f, slot4): return f"ds_read_b128 {ar(VF+4*f,4)}, v{VV} offset:{slot4*8192 + f*1024}"
    def dma_group(c):
        pre = [f"s_add_u32 m0, s{sHALF}, {(c%4)*8192}"]
        d = [f"buffer_load_dwordx4 v{VD}, s[{S_KV}:{S_KV+3}], s{sOFF} offen offset:{j*1024} lds" for j in range(4)]
        post = [f"s_add_u32 s{sOFF}, s{sOFF}, 16384"]
        if c % 4 == 3: post.append(f"s_xor_b32 s{sHALF}, s{sHALF}, 0x8000")
        return pre, d, post
    AR = 128; TRQ = S01; VQ = S01 + 8
    A(f"s_mov_b32 s{S_T}, s{P_WQ}\ns_mov_b32 s{S_T+1}, s{P_WQ+1}\ns_mov_b32 s{S_T+2}, {512*8192}")
    A(f"s_lshl_b32 s{sT0}, s{sI}, 3\ns_lshl_b32 s{sT1}, s{sW}, 1\ns_add_u32 s{sXL}, s{sT0}, s{sT1}\ns_sub_u32 s{sXH}, 120, s{sT0}\ns_add_u32 s{sXH}, s{sXH}, s{sT1}")
    A(f"s_lshl_b32 s{sP}, s{sXH}, 6\ns_add_u32 s{sP}, s{sP}, {SCQ_BASE}\ns_lshl_b32 s{sCNT}, s{sXL}, 6\ns_add_u32 s{sCNT}, s{sCNT}, {SCQ_BASE}")
    A(f"s_lshl_b32 s{sXH}, s{sXH}, 14\ns_add_u32 s{sXH}, s{sXH}, {XC_BASE}\ns_lshl_b32 s{sXL}, s{sXL}, 14\ns_add_u32 s{sXL}, s{sXL}, {XC_BASE}")
    A(f"s_lshl_b32 s{sWQ}, s{sH}, 8\ns_lshl_b32 s{sT0}, s{sW}, 16\ns_add_u32 s{sWQ}, s{sWQ}, s{sT0}\ns_lshl_b32 s{sMQ}, s{sW}, 11\ns_add_u32 s{sMQ}, s{sMQ}, 32768")
    A(f"v_lshrrev_b32 v{TMP+2}, 4, v{LN}\nv_and_b32 v{TMP+3}, 15, v{LN}\ns_and_b32 s{sT0}, s{sW}, 1\ns_lshl_b32 s{sT0}, s{sT0}, 2\nv_or_b32 v{TMP+4}, s{sT0}, v{TMP+2}\nv_lshlrev_b32 v{TMP+4}, 1, v{TMP+4}\nv_xor_b32 v{TMP+4}, v{TMP+4}, v{TMP+3}")
    A(f"v_lshlrev_b32 v{TMP+5}, 13, v{TMP+2}\nv_lshl_add_u32 v{VQ}, v{TMP+4}, 4, v{TMP+5}\nv_add_u32 v{VQ+1}, {4*8192-1024}, v{VQ}\nv_add_u32 v{VQ+2}, 16384, v{VK}")
    sQO, sWQQ, sXH1, sXL1 = 56, 60, 84, 85
    rsrc = {0: "0", 1: f"s{sH}", 2: f"s{sI}"}[QROT if QROT < 3 else 1]
    if QROT == 3: A(f"s_add_u32 s{sT1}, s{sH}, s{sI}"); rsrc = f"s{sT1}"
    for q in range(4):
        A(f"s_add_u32 s{sT0}, {rsrc}, {q}\ns_and_b32 s{sT0}, s{sT0}, 3\ns_lshl_b32 s{sQO+q}, s{sT0}, 12\ns_lshl_b32 s{sT0}, s{sT0}, 20\ns_add_u32 s{sWQQ+q}, s{sWQ}, s{sT0}")
    def w_loads(n):
        return [[f"s_add_u32 m0, s{sMQ}, {n*8192}", f"s_add_u32 s{sT0}, s{sWQQ+n//4}, {(n%4)*32*8192}"],
                [f"buffer_load_dwordx4 v{VQ}, s[{S_T}:{S_T+3}], s{sT0} offen lds"], [f"buffer_load_dwordx4 v{VQ+1}, s[{S_T}:{S_T+3}], s{sT0} offen offset:1024 lds"]]
    def adst(n, t):
        if n < 8: return ar(AR+n*16+4*t, 4)
        if n < 12: return ar((n-8)*16+4*t, 4)
        if n < 14: return ar(96+(n-12)*16+4*t, 4)
        return vr(144+(n-14)*16+4*t, 4)
    def a_loads(n):
        o = []
        if n % 4 == 0: o.append([f"s_add_u32 s{sXH1}, s{sXH}, s{sQO+n//4}", f"s_add_u32 s{sXL1}, s{sXL}, s{sQO+n//4}"])
        for t in range(4):
            o.append([f"buffer_load_dwordx4 {adst(n,t)}, v{VQ+2 if t % 2 else VK}, s[{S_WS}:{S_WS+3}], s{sXH1 if t < 2 else sXL1} offen offset:{(n%4)*1024}"])
        return o
    seq = []
    def mk(tags):
        its = []
        for k, n in tags:
            x = (w_loads if k == 'W' else a_loads)(n)
            for it in x:
                for y in it:
                    if y.startswith('buffer'): seq.append((k, n))
            its += x
        return its
    def vmq(tag): return min(63, len(seq) - 1 - max(i for i, e in enumerate(seq) if e == tag))
    def vmq_(tag): return len(seq) - 1 - max(i for i, e in enumerate(seq) if e == tag)
    for it in mk([('W',0),('A',0),('W',1),('W',2),('A',1),('A',2),('W',3),('W',4),('A',3)]):
        for x in it: A(x)
    A(f"v_lshlrev_b32 v{TMP+4}, 2, v{TMP+3}")
    A(f"v_bfe_u32 v{TMP+3}, v{LN}, 2, 2\nv_and_b32 v{TMP+6}, 1, v{TMP+2}\nv_lshl_add_u32 v{TMP+6}, v{TMP+6}, 2, v{TMP+3}\nv_lshl_add_u32 v{TMP+3}, v{TMP+2}, 3, v{TMP+3}\nv_lshlrev_b32 v{TMP+3}, 8, v{TMP+3}")
    A(f"v_and_b32 v{TMP+5}, 3, v{LN}\nv_lshl_add_u32 v{TMP+3}, v{TMP+5}, 3, v{TMP+3}\nv_add_u32 v{TMP+3}, 0x8000, v{TMP+3}")
    for nb in range(8): A(f"v_xor_b32 v{TMP+5}, {nb}, v{TMP+6}\nv_lshl_add_u32 v{TRQ+nb}, v{TMP+5}, 5, v{TMP+3}")
    def qtr(nb, ks): return [f"ds_read_b64_tr_b16 {ar(KF+4*nb,2)}, v{TRQ+nb} offset:{(ks%8)*8192}", f"ds_read_b64_tr_b16 {ar(KF+4*nb+2,2)}, v{TRQ+nb} offset:{(ks%8)*8192+1024}"]
    if not QST: stamp(A, 6)
    A(f"s_waitcnt vmcnt({vmq(('W', 0))})\ns_barrier")
    for nb in range(8):
        for x in qtr(nb, 0): A(x)
    A("s_waitcnt lgkmcnt(12)")
    plan = {0: [('A',4),('W',5),('A',5),('W',6),('A',6),('W',7)], 1: [('A',7),('W',8),('A',8),('W',9),('A',9),('W',10)], 2: [('A',10),('W',11),('A',11),('W',12),('A',12),('W',13)],
            3: [('A',13),('W',14),('A',14),('W',15),('A',15)]}
    if QPLAN == '2':
        plan = {0: [('A',4),('W',5),('W',6),('A',5),('W',7),('W',8)], 1: [('A',6),('W',9),('W',10),('A',7),('W',11),('W',12)], 2: [('A',8),('W',13),('W',14),('W',15),('A',9)]}
        for k_ in range(3, 9): plan[k_] = [('A', k_+7)]
    if QPLAN == '3':
        plan = {0: [('A',4),('W',5),('A',5)], 1: [('W',6),('A',6),('W',7),('A',7)], 2: [('W',8),('A',8),('W',9),('A',9)], 3: [('W',10),('A',10),('W',11)], 4: [('A',11),('W',12),('W',13)], 5: [('A',12),('W',14),('W',15)], 6: [('A',13)], 7: [('A',14)], 8: [('A',15)]}
    bars = {0: 2, 2: 4, 4: 8, 8: 15}
    NEGV = TMP+8
    misc = [f"v_mov_b32 v{r}, 0" for r in list(range(CX, CX+32)) + list(range(LS, LS+8))]
    misc += [f"v_and_b32 v{TMP+2}, 15, v{LN}", f"v_lshrrev_b32 v{TMP+3}, 4, v{LN}", f"v_lshlrev_b32 v{TMP+3}, 2, v{TMP+3}", f"v_sub_u32 v{TMP+2}, v{TMP+2}, v{TMP+3}"]
    misc += [f"v_cmp_le_i32 s[{sMK+2*i}:{sMK+2*i+1}], {i}, v{TMP+2}" for i in range(4)] + [f"v_mov_b32 v{NEGV}, s{sNEG}", "s_nop 0"]
    def q_epi(ds):
        o = []
        for qb in range(4):
            tq = QT + 4*(qb % 2)
            for h in range(2):
                b_ = Oreg(2*ds+h, qb)
                o += [f"v_mul_f32 v{b_+i}, v{b_+i}, v{E+qb}" for i in range(4)]
                o += [f"v_cvt_pk_bf16_f32 v{tq+2*h}, v{b_}, v{b_+1}", f"v_cvt_pk_bf16_f32 v{tq+2*h+1}, v{b_+2}, v{b_+3}"]
            o += [f"v_accvgpr_write_b32 a{AQ+(qb*4+ds)*4+i}, v{tq+i}" for i in range(4)]
        return o
    QT = P01[0]
    e0 = q_epi(0)
    for ks in range(16):
        gaps = {}
        def G(m): return gaps.setdefault(m, [])
        pre = [f"s_waitcnt vmcnt({vmq(('A', ks))})"]
        if ks in bars: G(0).extend([f"s_waitcnt vmcnt({vmq(('W', bars[ks]))})", "s_barrier"])
        if ks == 12: G(0).append("s_barrier")
        if ks == 15: G(0).extend([f"s_waitcnt vmcnt({0 if LATEKV else 8})", "s_barrier"])
        its = mk(plan.get(ks, []))
        if ks == 8:
            for qb in range(4):
                its.append([f"buffer_load_dword v{E+qb}, v{TMP+4}, s[{S_WS}:{S_WS+3}], s{sP if qb < 2 else sCNT} offen offset:{(qb%2)*64}"]); seq.append(('S', 0))
        if ks >= 9 and (ks <= 12 or not LATEKV):
            c = ks - 9
            p_, d_, po_ = dma_group(c)
            if c < 2:
                lab = U("KS")
                its += [[f"s_cmp_ge_u32 s{sW}, 2", f"s_cbranch_scc1 {lab}"] + p_ + ["s_nop 0"] + d_ + [lab + ":"] + po_]
            else:
                its += [p_] + [[x] for x in d_] + [po_]
                seq += [('KV', c)]*4
        if ks in (13, 14): its += [misc[(ks-13)*26+2*k:(ks-13)*26+2*k+2] for k in range(13)]
        if ks == 15: its += [[vread(2*k, 2), vread(2*k+1, 2)] for k in range(4)]
        m = 1
        for it in its:
            G(m).extend(it)
            m = m + 1 if (m + 1) % 4 != 3 else m + 2
        if ks == 15:
            while m < 31:
                G(m).extend(e0[:2]); e0 = e0[2:]
                m = m + 1 if (m + 1) % 4 != 3 else m + 2
        assert m < 33, m
        if ks < 15:
            for grp in range(1, 8, 2): G(grp*4+2).append("s_waitcnt lgkmcnt(10)")
        else:
            G(6).append("s_waitcnt lgkmcnt(8)"); G(14).append("s_waitcnt lgkmcnt(11)")
        for x in pre: A(x)
        if QST and ks in (1, 4, 8, 12): stamp(A, {1: 5, 4: 6, 8: 3, 12: 4}[ks])
        for nb in range(8):
            for t in range(4):
                d = Oreg(nb, t)
                A(f"{MF} {vr(d,4)}, {ar(KF+4*nb,4)}, {adst(ks,t)}, {'0' if ks == 0 else vr(d,4)}")
                if t == 3 and ks < 15:
                    if ks == 7: A(f"v_add_u32 v{TRQ+nb}, 0x10000, v{TRQ+nb}")
                    for x in qtr(nb, ks+1): A(x)
                if t == 3 and ks == 15: A(kread(nb, 0))
                for x in G(nb*4+t): A(x)
    stamp(A, 1)

    def Dpatch(q0):
        o = []
        for i in range(4): o.append(f"v_cndmask_b32 v{CXr(q0,0)+i}, v{NEGV}, v{CXr(q0,0)+i}, s[{sMK+2*i}:{sMK+2*i+1}]")
        for i in range(4): o.append(f"v_mov_b32 v{CXr(q0,1)+i}, v{NEGV}")
        for i in range(4): o.append(f"v_cndmask_b32 v{CXr(q0+1,1)+i}, v{NEGV}, v{CXr(q0+1,1)+i}, s[{sMK+2*i}:{sMK+2*i+1}]")
        return o
    def Fpatch(q0): return [f"v_mov_b32 v{CXr(q0,0)+i}, v{NEGV}" for i in range(16)]
    def patch(q0, j):
        o = []
        lD, lE = U("PD"), U("PE")
        o.append(f"s_cmp_gt_u32 s{sW}, {j}"); o.append(f"s_cbranch_scc1 {lE}")
        if j > 0:
            o.append(f"s_cmp_eq_u32 s{sW}, {j}"); o.append(f"s_cbranch_scc1 {lD}")
            o += Fpatch(q0); o.append(f"s_branch {lE}")
            o.append(lD + ":")
        o += Dpatch(q0)
        o.append(lE + ":")
        o.append("s_nop 1")
        return o


    def sm_gaps(qs, srcpar, dstpar, look, ladd):
        g = [[] for _ in range(32)]
        lsb = LS + (0 if qs[0] == 0 else 2)
        src = lambda k: Sreg(qs[k//4], (k % 4)//2, srcpar) + 2*(k % 2)
        for k in range(8):
            if k < 7: a, b = src(k+1), src(k+1)+1
            elif look: a, b = look
            else: a = None
            en = E + 2*((k+1) % 2); ec = E + 2*(k % 2)
            if a is not None:
                g[4*k].append(f"v_exp_f32 v{en}, v{a}"); g[4*k+2].append(f"v_exp_f32 v{en+1}, v{b}")
            ls = lsb + k//4
            if k % 4 == 0:
                g[4*k+1].append(f"v_add_f32 v{ls}, v{ec}, v{ec+1}")
                lr, lsr = ladd[k//4]
                g[4*k+1].append(f"v_add_f32 v{lr}, v{lr}, v{lsr}")
            else:
                g[4*k+1].append(f"v_add_f32 v{ls}, v{ls}, v{ec}"); g[4*k+1].append(f"v_add_f32 v{ls}, v{ls}, v{ec+1}")
            g[4*k+3].append(f"v_cvt_pk_bf16_f32 v{Preg(qs[k//4], dstpar) + k % 4}, v{ec}, v{ec+1}")
        g[30].append(f"v_max_f32 v{TMP}, v{lsb}, v{lsb+1}")
        g[31].append(f"v_cmp_lt_f32 vcc, s{sTHR}, v{TMP}")
        return g

    def rescale(rows, init=False):
        o = ["s_nop 7"]
        D, D2, F = TMP+1, TMP+2, TMP+3
        for r in rows:
            s0 = r['S']
            o.append(f"v_max3_f32 v{D}, v{s0}, v{s0+1}, v{s0+2}")
            o.append(f"v_max3_f32 v{D}, v{D}, v{s0+3}, v{s0+4}")
            o.append(f"v_max3_f32 v{D}, v{D}, v{s0+5}, v{s0+6}")
            o.append(f"v_max_f32 v{D}, v{D}, v{s0+7}")
            o += [f"v_mov_b32 v{D2}, v{D}", "s_nop 1", f"v_permlane16_swap_b32 v{D}, v{D2}", f"v_max_f32 v{D}, v{D}, v{D2}"]
            o += [f"v_mov_b32 v{D2}, v{D}", "s_nop 1", f"v_permlane32_swap_b32 v{D}, v{D2}", f"v_max_f32 v{D}, v{D}, v{D2}"]
            o.append(f"v_ceil_f32 v{D}, v{D}")
            if not init:
                o.append(f"v_max_f32 v{D}, 0, v{D}")
                o.append(f"v_exp_f32 v{F}, -v{D}")
            for b in [s0] + r['subs']:
                for i in range(8): o.append(f"v_sub_f32 v{b+i}, v{b+i}, v{D}")
            if not init:
                qb = r['qb']
                for db in range(8):
                    for i in range(4): o.append(f"v_mul_f32 v{Oreg(db,qb)+i}, v{Oreg(db,qb)+i}, v{F}")
                o.append(f"v_mul_f32 v{L+qb}, v{L+qb}, v{F}")
                for pr in r.get('Pscale', []):
                    o += [f"v_lshlrev_b32 v{D2}, 16, v{pr}", f"v_and_b32 v{pr}, 0xffff0000, v{pr}", f"v_mul_f32 v{D2}, v{D2}, v{F}", f"v_mul_f32 v{pr}, v{pr}, v{F}",
                          f"v_cvt_pk_bf16_f32 v{pr}, v{D2}, v{pr}"]
            if r.get('P') is not None:
                ls = r['ls']
                for k in range(4):
                    o += [f"v_exp_f32 v{E}, v{s0+2*k}", f"v_exp_f32 v{E+1}, v{s0+2*k+1}", "s_nop 0"]
                    if k == 0: o.append(f"v_add_f32 v{ls}, v{E}, v{E+1}")
                    else: o += [f"v_add_f32 v{ls}, v{ls}, v{E}", f"v_add_f32 v{ls}, v{ls}, v{E+1}"]
                    o.append(f"v_cvt_pk_bf16_f32 v{r['P']+k}, v{E}, v{E+1}")
        return o
    def relook(look):
        return [f"v_exp_f32 v{E}, v{look[0]}", f"v_exp_f32 v{E+1}, v{look[1]}", "s_nop 1"] if look else ["s_nop 1"]

    def check_site(code):
        ls, lb = U("SLOW"), U("BACK")
        A(f"s_cbranch_vccnz {ls}")
        A.label(lb)
        stubs.append([ls + ":"] + code + [f"s_branch {lb}"])

    def emit_half(mf, gaps, extra, waits):
        for g in range(32):
            if g in waits: A(waits[g])
            m, rd = mf[g]
            if m: A(m)
            if rd: A(rd)
            ex = extra.get(g, ([], []))
            for x in ex[0]: A(x)
            for x in ex[1]: A(x)
            for x in gaps[g]: A(x)

    def H1(par, mq, ms, ku, toggleK=None, vm=None, dmas=(), noqk=False, nosm=False, last=False, fill=None):
        n = 1 - par
        mf = []
        if noqk: mf = [(None, None)]*32
        elif mq == 4:
            for f in range(8):
                kb, ds = f//4, f % 4
                for qp in range(4):
                    d = Sreg(qp, kb, n)
                    c = vr(CXr(qp, kb), 4) if ds == 0 else vr(d, 4)
                    mf.append((f"{MF} {vr(d,4)}, {ar(KF+4*f,4)}, {ar(AQ+(qp*4+ds)*4,4)}, {c}", kread(f, ku[0]) if qp == 3 else None))
        else:
            for j in range(16):
                sel, f = j//8, j % 8
                kb, ds = f//4, f % 4
                for qb in range(2):
                    qp = 2*sel + qb
                    d = Sreg(qp, kb, n)
                    c = vr(CXr(qp, kb), 4) if ds == 0 else vr(d, 4)
                    rd = None
                    if qb == 1 and not (last and sel == 1): rd = kread(f, ku[sel])
                    mf.append((f"{MF} {vr(d,4)}, {ar(KF+4*f,4)}, {ar(AQ+(qb*4+ds)*4,4)}, {c}", rd))
        look = None if noqk else (Sreg(0, 0, n), Sreg(0, 0, n)+1)
        if nosm:
            gaps = [list(fill[2*g:2*g+2]) if fill else [] for g in range(32)]
        else:
            gaps = sm_gaps((2, 3), par, par, look, [(L+0, LS+0), (L+1, LS+1)])
        extra = {}
        waits = {}
        if not noqk:
            waits[0] = "s_waitcnt lgkmcnt(8)"
            if mq == 2: waits[16] = "s_waitcnt lgkmcnt(4)"; waits[24] = "s_waitcnt lgkmcnt(4)"
        if vm is not None:
            extra[0] = ([], [f"s_waitcnt vmcnt({vm})", "s_barrier"])
        if toggleK is not None:
            gi = 0 if toggleK == 0 else 16
            e = extra.setdefault(gi, ([], [])); e[1].append(f"v_xor_b32 v{VK}, 0x8000, v{VK}")
        place_dmas(extra, dmas)
        emit_half(mf, gaps, extra, waits)
        if not nosm:
            rows = []
            for qq in range(2):
                qp = 2 + qq
                r = dict(S=Sreg(qp, 0, par), P=Preg(qp, par), ls=LS+2+qq)
                if ms == 4:
                    r['qb'] = qp
                    r['subs'] = ([Sreg(qp, 0, n), CXr(qp, 0)] if (mq == 4 and not noqk) else [])
                else:
                    r['qb'] = qq
                    r['subs'] = [CXr(qq, 0), CXr(qp, 0)] + ([] if noqk else [Sreg(qq, 0, n), Sreg(qp, 0, n)])
                    r['Pscale'] = [Preg(qq, par)+k for k in range(4)]
                rows.append(r)
            check_site(rescale(rows) + relook(look))

    def place_dmas(extra, dmas):
        for c, g0 in dmas:
            pre, d, post = dma_group(c)
            e = extra.setdefault(g0, ([], [])); e[1].extend(pre)
            for j in range(4):
                e = extra.setdefault(g0+1+4*j if g0+1+4*j < 32 else 31, ([], [])); e[0].append(d[j])
            e = extra.setdefault(min(31, g0+2+12), ([], [])); e[1].extend(post)

    def H2(par, mp, mnext, vu, toggleV=None, dmas=(), nopv=False, nosm=False, czero=False):
        n = 1 - par
        mf = []
        if nopv: mf = [(None, None)]*32
        elif mp == 4:
            for db in range(8):
                for qp in range(4):
                    d = Oreg(db, qp)
                    mf.append((f"{MF} {vr(d,4)}, {ar(VF+4*db,4)}, {vr(Preg(qp,par),4)}, {'0' if czero else vr(d,4)}", vread(db, vu[0]) if qp == 3 else None))
        else:
            for j in range(16):
                sel, db = j//8, j % 8
                for qb in range(2):
                    d = Oreg(db, qb)
                    rd = None
                    if qb == 1 and not (nosm and sel == 1): rd = vread(db, vu[sel])
                    mf.append((f"{MF} {vr(d,4)}, {ar(VF+4*db,4)}, {vr(Preg(2*sel+qb,par),4)}, {vr(d,4)}", rd))
        look = (Sreg(2, 0, n), Sreg(2, 0, n)+1)
        lt = (L+2, L+3) if mp == 4 else (L+0, L+1)
        if nosm:
            gaps = [[] for _ in range(32)]
            gaps[1] = [f"v_add_f32 v{lt[0]}, v{lt[0]}, v{LS+2}", f"v_add_f32 v{lt[1]}, v{lt[1]}, v{LS+3}"]
        else:
            gaps = sm_gaps((0, 1), n, n, look, [(lt[0], LS+2), (lt[1], LS+3)])
        extra = {}
        waits = {}
        if not nopv:
            waits[0] = "s_waitcnt lgkmcnt(8)" if not nosm else "s_waitcnt lgkmcnt(0)"
            if mp == 2: waits[16] = "s_waitcnt lgkmcnt(4)"; waits[24] = "s_waitcnt lgkmcnt(4)" if not nosm else "s_waitcnt lgkmcnt(0)"
        if toggleV is not None:
            gi = 0 if toggleV == 0 else 16
            e = extra.setdefault(gi, ([], [])); e[1].append(f"v_xor_b32 v{VV}, 0x8000, v{VV}")
        place_dmas(extra, dmas)
        emit_half(mf, gaps, extra, waits)
        if not nosm and not nopv:
            rows = []
            for qb in range(2):
                r = dict(S=Sreg(qb, 0, n), P=Preg(qb, n), ls=LS+qb, qb=qb, subs=[CXr(qb, 0)])
                if mnext == 2: r['subs'] += [Sreg(qb+2, 0, n), CXr(qb+2, 0)]
                rows.append(r)
            check_site(rescale(rows) + relook(look))

    def hook(cond_reg, val, code):
        ls, lb = U("HOOK"), U("HB")
        A(f"s_cmp_eq_u32 s{cond_reg}, {val}\ns_cbranch_scc1 {ls}")
        A.label(lb)
        stubs.append([ls + ":"] + code + [f"s_branch {lb}"])

    hook(sI, 0, patch(2, 0))
    for x in e0: A(x)
    A("s_waitcnt lgkmcnt(0)")
    for ds in range(4):
        p_, d_, po_ = dma_group(4 + ds if LATEKV else 7)
        ep = q_epi(ds+1) if ds < 3 else []
        mfs = []
        for kb in range(2):
            f = kb*4 + ds
            for qp in range(4):
                d = Sreg(qp, kb, 0)
                mfs.append([f"{MF} {vr(d,4)}, {ar(KF+4*f,4)}, {ar(AQ+(qp*4+ds)*4,4)}, {vr(CXr(qp,kb),4) if ds == 0 else vr(d,4)}"] + ([kread(f, 1)] if qp == 3 else []))
        if ds == 0 or LATEKV: mfs[0] = p_ + ["s_nop 0"] + mfs[0]
        if ds == 0 or LATEKV:
            for j in range(4): mfs[1+j] = mfs[1+j] + [d_[j]]
            mfs[6] = mfs[6] + po_
        if ds == 3: A("s_nop 1")
        for k in range(8):
            for x in mfs[k]: A(x)
            for x in ep[8*k:8*k+8]: A(x)
    rows = []
    for qp in range(4): rows.append(dict(S=Sreg(qp, 0, 0), subs=[CXr(qp, 0)], P=None))
    for x in rescale(rows, init=True): A(x)
    A(f"v_exp_f32 v{E}, v{Sreg(0,0,0)}\nv_exp_f32 v{E+1}, v{Sreg(0,0,0)+1}")
    H2(1, 4, 4, None, nopv=True)
    stamp(A, 2)
    A(f"s_mov_b32 s{sCNT}, s{sI}")
    A("s_waitcnt lgkmcnt(0)")

    def period44(r, pre=None, czero=False):
        par = r % 2
        if pre: pre()
        ku = (r+2) % 4; vu = (r+1+2) % 4
        H1(par, 4, 4, [ku], toggleK=0 if ku == 0 else None, vm=16, dmas=[(r, 8)])
        H2(par, 4, 4, [vu], toggleV=0 if vu == 0 else None, czero=czero)

    period44(0, pre=lambda: hook(sI, 0, patch(2, 1)), czero=True)
    A(f"s_cmp_eq_u32 s{sCNT}, 0\ns_cbranch_scc1 K2_SPECIAL_R1\ns_branch K2_LOOPA_R1")
    A(".p2align 6")
    A.label("K2_LOOPA")
    for r in range(4):
        if r == 1: A.label("K2_LOOPA_R1")
        period44(r, pre=(lambda: hook(sCNT, 1, patch(2, 0))) if r == 3 else None)
    A(f"s_sub_u32 s{sCNT}, s{sCNT}, 1\ns_cmp_lg_u32 s{sCNT}, 0\ns_cbranch_scc1 K2_LOOPA")
    A.label("K2_SPECIAL")
    for r in range(3):
        if r == 1: A.label("K2_SPECIAL_R1")
        period44(r, pre=lambda: [A(x) for x in patch(2, r+1)])
    A(f"s_cmp_lt_u32 s{sW}, 2\ns_cselect_b32 s{S_T}, s{P_WO}, s{P_WD}\ns_cselect_b32 s{S_T+1}, s{P_WO+1}, s{P_WD+1}\ns_mov_b32 s{sT0}, {1376*1024}\ns_cselect_b32 s{S_T+2}, {4096*1024}, s{sT0}")
    A(f"s_mul_i32 s{sT0}, s2, {43*128}\ns_lshl_b32 s{sT1}, s2, 14\ns_cselect_b32 s{sT0}, s{sT1}, s{sT0}".replace("s_lshl_b32 s{sT1}, s2, 14".format(sT1=sT1), f"s_mul_i32 s{sT1}, s2, 16384"))
    A(f"s_and_b32 s{sT1}, s{sW}, 1\ns_lshl_b32 s{sT1}, s{sT1}, 13\ns_add_u32 s{sT0}, s{sT0}, s{sT1}\nv_and_b32 v{TMP+7}, 0x3ff, v{VK}\nv_lshlrev_b32 v{TMP+7}, 3, v{TMP+7}")
    A(f"buffer_load_dword v{TMP+7}, v{TMP+7}, s[{S_T}:{S_T+3}], s{sT0} offen")
    if CT:
        A(f"v_and_b32 v{TMP+6}, 0x3ff, v{VK}")
        code_touch(A, "k3_kernel", "K4_END", sW, TMP+6, TMP+6, 80, lane_shift=4)
    if CTX_TOUCH:
        A(f"v_lshrrev_b32 v{TMP+6}, 8, v{VK}\nv_and_b32 v{TMP+6}, 3, v{TMP+6}\nv_lshlrev_b32 v{TMP+6}, 12, v{TMP+6}\nv_and_b32 v{TMP+5}, 0xf0, v{VK}\nv_lshl_add_u32 v{TMP+6}, v{TMP+5}, 3, v{TMP+6}")
        A(f"buffer_load_dword v{TMP+5}, v{TMP+6}, s[{S_WS}:{S_WS+3}], s{sOHI} offen\nbuffer_load_dword v{TMP+6}, v{TMP+6}, s[{S_WS}:{S_WS+3}], s{sOLO} offen")
    for i in range(16): A(f"v_mov_b32 v{CXr(2,0)+i}, v{CXr(0,0)+i}")
    hook(sI, 7, patch(0, 0) + patch(2, 1))
    A("s_nop 1")
    H1(1, 2, 4, [1, 2], vm=16, dmas=[(3, 8)])
    H2(1, 4, 2, [2])
    if not QST: stamp(A, 3)
    A(f"s_lshl_b32 s{sT0}, s{sI}, 1\ns_sub_u32 s{sCNT}, 14, s{sT0}")
    def period22(r, last_qk=False):
        par = r
        ku = [3, 0] if r == 0 else [1, 2]
        vu = [3, 0] if r == 0 else [1, 2]
        c0 = 2*r
        H1(par, 2, 2, ku, toggleK=1 if r == 0 else None, vm=12, dmas=[(c0, 8)], last=last_qk)
        H2(par, 2, 2, vu, toggleV=1 if r == 0 else None, dmas=[(c0+1, 8)])
    A(f"s_cmp_eq_u32 s{sCNT}, 0\ns_cbranch_scc1 K2_TAIL")
    A(".p2align 6")
    A.label("K2_LOOPB")
    period22(0)
    hook(sCNT, 1, patch(0, 0) + patch(2, 1))
    period22(1)
    A(f"s_sub_u32 s{sCNT}, s{sCNT}, 1\ns_cmp_lg_u32 s{sCNT}, 0\ns_cbranch_scc1 K2_LOOPB")
    A.label("K2_TAIL")
    for x in patch(0, 2) + patch(2, 3): A(x)
    H1(0, 2, 2, [3, 0], toggleK=None, vm=12, last=True)
    H2(0, 2, 2, [3, 0], toggleV=1)
    H1(1, 2, 2, None, noqk=True, vm=0)
    H2(1, 2, 2, [1, 2], nosm=True)
    if not QST: stamp(A, 4)
    for qb in range(4):
        D, D2 = L+qb, TMP+1
        A(f"v_mov_b32 v{D2}, v{D}\ns_nop 1\nv_permlane16_swap_b32 v{D}, v{D2}\nv_add_f32 v{D}, v{D}, v{D2}")
        A(f"v_mov_b32 v{D2}, v{D}\ns_nop 1\nv_permlane32_swap_b32 v{D}, v{D2}\nv_add_f32 v{D}, v{D}, v{D2}")
        A(f"v_rcp_f32 v{D}, v{D}")
    A(f"v_and_b32 v{VK}, 0x3ff, v{VK}")
    oq = 0
    for qb in (2, 3, 0, 1):
        for ds in range(4):
            ob = S01 + 4*oq
            for h in range(2):
                b = Oreg(2*ds+h, qb)
                for i in range(4): A(f"v_mul_f32 v{b+i}, v{b+i}, v{L+qb}")
                A(f"v_cvt_pk_bf16_f32 v{ob+2*h}, v{b}, v{b+1}\nv_cvt_pk_bf16_f32 v{ob+2*h+1}, v{b+2}, v{b+3}")
            A(f"s_add_u32 s{sT0}, s{sOHI if qb < 2 else sOLO}, {ds*4096}")
            A(f"buffer_store_dwordx4 {vr(ob,4)}, v{VK}, s[{S_WS}:{S_WS+3}], s{sT0} offen offset:{(qb%2)*1024}{store_flags}")
            oq = (oq+1) % 4
    if asmlib.STAMP:
        A("s_waitcnt vmcnt(0)")
        stamp_flush(A, 1, 8, P_WS, sW)
    A.label("K2_END")
    A("s_endpgm")
    for st in stubs:
        for x in st: A(x)
    return dict(name="k2_kernel", vgpr=512, accum=256, sgpr=96, grid=256, block=256, lds=163840)
```

```python
from asmlib import *
import asmlib
from k1 import KV_BASE, A3_BASE, A3_TB64, WS_USED, MF, f32bits
import math
P_BASE = KV_BASE
P_END = P_BASE + (8 << 20)

import os
K3T = os.environ.get('K3T', '0') == '1'
K3S = os.environ.get('K3S', '1') == '1'
def gen_k3(A, RING=10):
    ACC = 0; AF = 64; WF = 96; RA = 128; TRA = 131; VD = 143; VL = 147; T = 148; VT = 156; DT = 157
    S_L, S_O = 8, 12
    sW, sT0, sT1, sT2, sSP, sTM, sTN, sOFF, sSTR, sM0, sTO, sTS = 16, 17, 18, 19, 20, 21, 22, 23, 24, 25, 26, 27
    P_WO, P_WD, P_WS = 32, 34, 36
    NS = 43
    TS = eval(os.environ.get('K3TS', '(4, 12, 20, 28)'))
    A(".globl k3_kernel\n.p2align 8\n.type k3_kernel,@function")
    A.label("k3_kernel")
    A("s_cmp_ge_u32 s2, 256\ns_cbranch_scc1 K3_END")
    stamp(A, 0)
    A(f"s_load_dwordx2 s[{P_WO}:{P_WO+1}], s[0:1], 40\ns_load_dwordx2 s[{P_WD}:{P_WD+1}], s[0:1], 72\ns_load_dwordx2 s[{P_WS}:{P_WS+1}], s[0:1], 96")
    A(f"v_lshrrev_b32 v{T}, 6, v0\nv_and_b32 v{T+1}, 63, v0\ns_nop 0\nv_readfirstlane_b32 s{sW}, v{T}")
    LN = T+1
    A(f"s_and_b32 s{sSP}, s2, 3\ns_lshr_b32 s{sT0}, s2, 2\ns_and_b32 s{sT0}, s{sT0}, 1\ns_lshl_b32 s{sT0}, s{sT0}, 3\ns_lshr_b32 s{sT1}, s2, 3\ns_and_b32 s{sT1}, s{sT1}, 7\ns_add_u32 s{sTM}, s{sT0}, s{sT1}\ns_lshr_b32 s{sTN}, s2, 6")
    A(f"s_mov_b32 s{S_L+3}, 0x00020000\ns_mov_b32 s{S_O+3}, 0x00020000\ns_mov_b32 s{S_O+2}, {P_END}")
    A(f"s_mul_i32 s{sT0}, s{sSP}, 43\ns_cmp_eq_u32 s{sSP}, 3\ns_cselect_b32 s{sT0}, 128, s{sT0}\ns_cselect_b32 s{sT1}, 0, s{sT0}")
    A(f"s_lshl_b32 s{sM0}, s{sW}, 12")
    A(f"v_lshlrev_b32 v{VL}, 4, v{LN}")
    code_touch(A, "k3_kernel", "K3_END", sW, LN, T+6, 80)
    A(f"s_cmp_lt_u32 s{sW}, 2\ns_cbranch_scc0 K3_WSETUP")
    A(f"s_lshl_b32 s{sT2}, s{sTM}, 1\ns_add_u32 s{sT2}, s{sT2}, s{sW}\ns_mul_i32 s{sOFF}, s{sT2}, {A3_TB64}\ns_lshl_b32 s{sT0}, s{sT0}, 12\ns_add_u32 s{sOFF}, s{sOFF}, s{sT0}\ns_add_u32 s{sOFF}, s{sOFF}, {A3_BASE}")
    A(f"s_mov_b32 s{sSTR}, 4096\ns_mov_b32 s{S_L+2}, {WS_USED}")
    for j in range(4): A(f"v_mov_b32 v{VD+j}, v{VL}")
    A(f"v_lshrrev_b32 v{T+2}, 3, v{LN}\nv_and_b32 v{T+3}, 7, v{LN}\nv_lshlrev_b32 v{T+2}, 12, v{T+2}\nv_lshl_add_u32 v{T+2}, v{T+3}, 7, v{T+2}\ns_lshl_b32 s{sT2}, s{sTN}, 10\nv_add_u32 v{VT}, s{sT2}, v{T+2}")
    A(f"s_waitcnt lgkmcnt(0)\ns_mov_b32 s{S_L}, s{P_WS}\ns_mov_b32 s{S_L+1}, s{P_WS+1}\ns_branch K3_SETUP_DONE")
    A.label("K3_WSETUP")
    A(f"s_lshl_b32 s{sOFF}, s{sT1}, 15\ns_sub_u32 s{sT2}, s{sW}, 2\ns_lshl_b32 s{sT2}, s{sT2}, 14\ns_add_u32 s{sOFF}, s{sOFF}, s{sT2}\ns_lshl_b32 s{sT2}, s{sTN}, 8\ns_add_u32 s{sOFF}, s{sOFF}, s{sT2}")
    A(f"s_mov_b32 s{sSTR}, 32768")
    A(f"v_lshrrev_b32 v{T+2}, 4, v{LN}\nv_and_b32 v{T+3}, 15, v{LN}\nv_lshlrev_b32 v{T+4}, 1, v{T+2}\nv_xor_b32 v{T+3}, v{T+3}, v{T+4}\nv_lshlrev_b32 v{T+2}, 10, v{T+2}\nv_lshl_add_u32 v{VD}, v{T+3}, 4, v{T+2}")
    A(f"v_xor_b32 v{T+2}, 128, v{VD}\nv_add_u32 v{VD+1}, 3072, v{T+2}\nv_add_u32 v{VD+2}, 6144, v{VD}\nv_add_u32 v{VD+3}, 9216, v{T+2}")
    A(f"v_bfe_u32 v{T+2}, v{LN}, 2, 3\nv_lshlrev_b32 v{T+2}, 15, v{T+2}\nv_bfe_u32 v{T+3}, v{LN}, 1, 1\nv_lshl_add_u32 v{T+2}, v{T+3}, 10, v{T+2}\nv_and_b32 v{T+3}, 1, v{LN}\nv_lshl_add_u32 v{T+2}, v{T+3}, 7, v{T+2}")
    A(f"s_and_b32 s{sT2}, s{sTM}, 7\ns_lshl_b32 s{sT2}, s{sT2}, 11\nv_add_u32 v{VT}, s{sT2}, v{T+2}")
    A(f"s_cmp_eq_u32 s{sSP}, 3\ns_mov_b32 s{sT2}, {4096*1024}\ns_cselect_b32 s{S_L+2}, {1376*1024}, s{sT2}")
    A(f"s_waitcnt lgkmcnt(0)\ns_cselect_b32 s{S_L}, s{P_WD}, s{P_WO}\ns_cselect_b32 s{S_L+1}, s{P_WD+1}, s{P_WO+1}")
    A.label("K3_SETUP_DONE")
    A(f"s_lshl_b32 s{sTS}, s{sSTR}, 3\ns_mul_i32 s{sTO}, s{sSTR}, {RING-1}\ns_add_u32 s{sTO}, s{sTO}, s{sOFF}")
    def touch(): return [f"buffer_load_dword v{DT}, v{VT}, s[{S_L}:{S_L+3}], s{sTO} offen", f"s_add_u32 s{sTO}, s{sTO}, s{sTS}"]
    def loads(s):
        pre = [f"s_add_u32 m0, s{sM0}, {(s % RING)*16384}"]
        d = [f"buffer_load_dwordx4 v{VD+j}, s[{S_L}:{S_L+3}], s{sOFF} offen offset:{j*1024} lds" for j in range(4)]
        post = [f"s_add_u32 s{sOFF}, s{sOFF}, s{sSTR}"]
        return pre, d, post
    NPRE = RING - 1
    for s in range(3):
        pre, d, post = loads(s)
        for x in pre + ["s_nop 0"] + d + post: A(x)
    A(f"s_and_b32 s{sT0}, s{sW}, 1\ns_lshl_b32 s{sT0}, s{sT0}, 12\nv_add_u32 v{RA}, s{sT0}, v{VL}")
    A(f"v_lshrrev_b32 v{T+2}, 2, v{LN}\nv_and_b32 v{T+3}, 7, v{T+2}\nv_lshlrev_b32 v{T+2}, 8, v{T+2}\nv_and_b32 v{T+4}, 3, v{LN}\nv_lshl_add_u32 v{T+2}, v{T+4}, 3, v{T+2}\nv_add_u32 v{T+2}, 8192, v{T+2}")
    A(f"s_lshr_b32 s{sT0}, s{sW}, 1\ns_lshl_b32 s{sT0}, s{sT0}, 2\nv_xor_b32 v{T+3}, s{sT0}, v{T+3}")
    for nb in range(4): A(f"v_xor_b32 v{T+4}, {nb}, v{T+3}\nv_lshl_add_u32 v{TRA+nb}, v{T+4}, 5, v{T+2}")
    for k in range(1, 3):
        A(f"v_add_u32 v{RA+k}, {k*65536}, v{RA}")
        for nb in range(4): A(f"v_add_u32 v{TRA+4*k+nb}, {k*65536}, v{TRA+nb}")
    A(f"s_lshl_b32 s{sT0}, s{sSP}, 21\ns_lshl_b32 s{sT1}, s{sTM}, 17\ns_add_u32 s{sT0}, s{sT0}, s{sT1}\ns_lshl_b32 s{sT1}, s{sTN}, 15\ns_add_u32 s{sT0}, s{sT0}, s{sT1}\ns_lshl_b32 s{sT1}, s{sW}, 13\ns_add_u32 s{sT0}, s{sT0}, s{sT1}\ns_add_u32 s{sTM}, s{sT0}, {P_BASE}")
    A(f"s_mov_b32 s{S_O}, s{P_WS}\ns_mov_b32 s{S_O+1}, s{P_WS+1}")
    for s in range(3, NPRE):
        pre, d, post = loads(s)
        for x in pre + ["s_nop 0"] + d + post: A(x)
    def reads(s):
        sl = s % RING; hi = (sl*16384) // 65536; off = (sl*16384) % 65536
        o = []
        for k in range(4):
            o.append(f"ds_read_b64_tr_b16 {vr(WF+16*(s%2)+4*k,2)}, v{TRA+4*hi+k} offset:{off}")
            o.append(f"ds_read_b64_tr_b16 {vr(WF+16*(s%2)+4*k+2,2)}, v{TRA+4*hi+k} offset:{off+4096}")
            o.append(f"ds_read_b128 {vr(AF+16*(s%2)+4*k,4)}, v{RA+hi} offset:{off+k*1024}")
        return o
    seq = [n for n in range(NPRE) for _ in range(4)]
    def vmn(n): return len(seq) - 1 - max(i for i, e in enumerate(seq) if e == n)
    if K3T:
        for x in touch(): A(x)
        seq.append('t')
    A(f"s_waitcnt vmcnt({vmn(0)})\ns_barrier")
    stamp(A, 1)
    for x in reads(0): A(x)
    for s in range(NS):
        if s == 21: stamp(A, 2)
        extra = {}
        if K3S and s > 0 or not K3S: pass
        if not (K3S and s > 0): A("s_waitcnt lgkmcnt(0)")
        if K3S: extra[15] = ["s_waitcnt lgkmcnt(0)"]
        if s % 2 == 0:
            need = min(s+2, NS-1)
            extra[0] = [f"s_waitcnt vmcnt({vmn(need)})", "s_barrier"]
        rd = reads(s+1) if s+1 < NS else []
        for k, x in enumerate(rd):
            if K3S: extra.setdefault(1 + k//2, []).append(x)
            else: extra.setdefault(1 + k, []).insert(0, x)
        tgt = s + RING - 1
        if tgt < NS:
            pre, d, post = loads(tgt)
            if K3S:
                extra.setdefault(7, []).extend(pre)
                for j in range(4): extra.setdefault(8 + 2*j, []).append(d[j])
                extra.setdefault(14, []).extend(post)
            else:
                extra.setdefault(2, []).extend(pre)
                for j in range(4): extra.setdefault(4 + 3*j, []).append(d[j])
                extra.setdefault(14, []).extend(post)
            seq += [tgt]*4
        if K3T and s in TS:
            extra.setdefault(15, []).extend(touch()); seq.append('t')
        for nb in range(4):
            for t in range(4):
                g = nb*4 + t
                d_ = ACC + g*4
                c = "0" if s == 0 else vr(d_, 4)
                A(f"{MF} {vr(d_,4)}, {vr(WF+16*(s%2)+4*nb,4)}, {vr(AF+16*(s%2)+4*t,4)}, {c}")
                for x in extra.get(g, []): A(x)
    stamp(A, 3)
    A("s_nop 7")
    for np_ in range(2):
        A(f"s_add_u32 s{sT0}, s{sTM}, {np_*4096}")
        for t in range(4):
            ob = AF + 4*(np_*4+t)
            for h in range(2):
                b_ = ACC + ((2*np_+h)*4 + t)*4
                A(f"v_cvt_pk_bf16_f32 v{ob+2*h}, v{b_}, v{b_+1}\nv_cvt_pk_bf16_f32 v{ob+2*h+1}, v{b_+2}, v{b_+3}")
            A(f"buffer_store_dwordx4 {vr(ob,4)}, v{VL}, s[{S_O}:{S_O+3}], s{sT0} offen offset:{t*1024} sc1")
    if asmlib.STAMP:
        stamp(A, 4)
        A("s_waitcnt vmcnt(0)")
        stamp_flush(A, 2, 6, P_WS, sW)
    A.label("K3_END")
    A("s_endpgm")
    return dict(name="k3_kernel", vgpr=160, accum=160, sgpr=96, grid=256, block=256, lds=RING*16384)

def gen_k4(A):
    S_P, S_X, S_O = 8, 12, 16
    sW, sT0, sT1, sT2 = 20, 21, 22, 23
    P_X, P_OUT, P_WS = 24, 26, 28
    R = 8; XR = 72; G = 80; VL = 2; VX = 3
    A(".globl k4_kernel\n.p2align 8\n.type k4_kernel,@function")
    A.label("k4_kernel")
    A("s_cmp_ge_u32 s2, 256\ns_cbranch_scc1 K4_END")
    stamp(A, 0)
    A(f"s_load_dwordx2 s[{P_X}:{P_X+1}], s[0:1], 0\ns_load_dwordx2 s[{P_OUT}:{P_OUT+1}], s[0:1], 80\ns_load_dwordx2 s[{P_WS}:{P_WS+1}], s[0:1], 96")
    A(f"v_lshrrev_b32 v1, 6, v0\nv_and_b32 v0, 63, v0\ns_nop 0\nv_readfirstlane_b32 s{sW}, v1")
    for r in (S_P, S_X, S_O): A(f"s_mov_b32 s{r+3}, 0x00020000")
    A(f"s_mov_b32 s{S_P+2}, {P_END}\ns_mov_b32 s{S_X+2}, 0x200000\ns_mov_b32 s{S_O+2}, 0x200000")
    A(f"v_lshlrev_b32 v{VL}, 4, v0")
    A(f"s_lshl_b32 s{sT0}, s2, 13\ns_lshl_b32 s{sT1}, s{sW}, 11\ns_add_u32 s{sT0}, s{sT0}, s{sT1}\ns_add_u32 s{sT0}, s{sT0}, {P_BASE}")
    A(f"s_lshr_b32 s{sT1}, s2, 4\ns_lshl_b32 s{sT1}, s{sT1}, 17\ns_and_b32 s{sT2}, s2, 1\ns_lshl_b32 s{sT2}, s{sT2}, 16\ns_add_u32 s{sT1}, s{sT1}, s{sT2}")
    A(f"s_lshr_b32 s{sT2}, s2, 1\ns_and_b32 s{sT2}, s{sT2}, 7\ns_lshl_b32 s{sT2}, s{sT2}, 7\ns_add_u32 s{sT1}, s{sT1}, s{sT2}")
    A(f"s_lshr_b32 s{sT2}, s{sW}, 1\ns_lshl_b32 s{sT2}, s{sT2}, 6\ns_add_u32 s{sT1}, s{sT1}, s{sT2}\ns_and_b32 s{sT2}, s{sW}, 1\ns_lshl_b32 s{sT2}, s{sT2}, 15\ns_add_u32 s{sT1}, s{sT1}, s{sT2}")
    A(f"v_and_b32 v4, 15, v0\nv_lshrrev_b32 v5, 4, v0\nv_lshlrev_b32 v4, 10, v4\nv_lshl_add_u32 v4, v5, 3, v4\nv_add_u32 v{VX}, s{sT1}, v4")
    A("s_waitcnt lgkmcnt(0)")
    A(f"s_mov_b32 s{S_P}, s{P_WS}\ns_mov_b32 s{S_P+1}, s{P_WS+1}\ns_mov_b32 s{S_X}, s{P_X}\ns_mov_b32 s{S_X+1}, s{P_X+1}\ns_mov_b32 s{S_O}, s{P_OUT}\ns_mov_b32 s{S_O+1}, s{P_OUT+1}")
    A(f"s_mov_b32 s{sT2}, 16384")
    PK = 96
    for sp in (3, 0, 1, 2):
        A(f"s_add_u32 s{sT1}, s{sT0}, {sp << 21}")
        for t in range(2): A(f"buffer_load_dwordx4 {vr(PK+8*sp+4*t,4)}, v{VL}, s[{S_P}:{S_P+3}], s{sT1} offen offset:{t*1024}")
    for t in range(2):
        for h in range(2):
            A(f"buffer_load_dwordx2 {vr(XR+4*t+2*h,2)}, v{VX}, s[{S_X}:{S_X+3}], {'s%d' % sT2 if t else '0'} offen offset:{h*32}")
    def unpack(dst, src):
        for i in range(8): A(f"v_lshlrev_b32 v{dst+2*i}, 16, v{src+i}\nv_and_b32 v{dst+2*i+1}, 0xffff0000, v{src+i}")
    A("s_waitcnt vmcnt(10)")
    stamp(A, 2)
    dn = R + 48
    unpack(dn, PK+24)
    for i in range(16): A(f"v_mul_f32 v{G+i}, {hex(f32bits(-math.log2(math.e)))}, v{dn+i}")
    for i in range(16): A(f"v_exp_f32 v{G+i}, v{G+i}")
    for i in range(16): A(f"v_add_f32 v{G+i}, 1.0, v{G+i}")
    for i in range(16): A(f"v_rcp_f32 v{G+i}, v{G+i}")
    for i in range(16): A(f"v_mul_f32 v{G+i}, v{G+i}, v{dn+i}")
    A("s_waitcnt vmcnt(4)")
    stamp(A, 3)
    unpack(R, PK); unpack(R+16, PK+8); unpack(R+32, PK+16)
    for i in range(16): A(f"v_add_f32 v{R+i}, v{R+i}, v{R+16+i}")
    for i in range(16): A(f"v_add_f32 v{R+i}, v{R+i}, v{R+32+i}")
    A("s_waitcnt vmcnt(0)")
    stamp(A, 4)
    unpack(R+16, XR)
    for i in range(16): A(f"v_fmac_f32 v{R+16+i}, v{R+i}, v{G+i}")
    for i in range(8): A(f"v_cvt_pk_bf16_f32 v{R+32+i}, v{R+16+2*i}, v{R+17+2*i}")
    for t in range(2):
        for h in range(2):
            A(f"buffer_store_dwordx2 {vr(R+32+4*t+2*h,2)}, v{VX}, s[{S_O}:{S_O+3}], {'s%d' % sT2 if t else '0'} offen offset:{h*32}")
    if asmlib.STAMP:
        stamp(A, 1)
        A("s_waitcnt vmcnt(0)")
        stamp_flush(A, 3, 6, P_WS, sW)
    A.label("K4_END")
    A("s_endpgm")
    return dict(name="k4_kernel", vgpr=128, accum=128, sgpr=96, grid=256, block=256, lds=0)
```

```python
from asmlib import *
import asmlib
from k1 import KV_BASE, A3_BASE, A3_TB64, WS_USED, MF, f32bits
import math
P_BASE = KV_BASE
P_END = P_BASE + (8 << 20)

import os
K3T = os.environ.get('K3T', '0') == '1'
K3S = os.environ.get('K3S', '1') == '1'
def gen_k3(A, RING=14, AD=12):
    ACC = 0; WF = 64; AR = 96; TRA = AR + 8*AD; VD = TRA + 16; VL = VD + 2; T = VL + 1
    S_W, S_A = 8, 12
    sW, sT0, sT1, sT2, sSP, sTM, sTN, sWO, sAO, sM0, sOB = 16, 17, 18, 19, 20, 21, 22, 23, 24, 25, 26
    P_WO, P_WD, P_WS = 32, 34, 36
    NS = 43
    A(".globl k3_kernel\n.p2align 8\n.type k3_kernel,@function")
    A.label("k3_kernel")
    A("s_cmp_ge_u32 s2, 256\ns_cbranch_scc1 K3_END")
    stamp(A, 0)
    A(f"s_load_dwordx2 s[{P_WO}:{P_WO+1}], s[0:1], 40\ns_load_dwordx2 s[{P_WD}:{P_WD+1}], s[0:1], 72\ns_load_dwordx2 s[{P_WS}:{P_WS+1}], s[0:1], 96")
    A(f"v_lshrrev_b32 v{T}, 6, v0\nv_and_b32 v{T+1}, 63, v0\ns_nop 0\nv_readfirstlane_b32 s{sW}, v{T}")
    LN = T+1
    A(f"s_and_b32 s{sSP}, s2, 3\ns_lshr_b32 s{sT0}, s2, 2\ns_and_b32 s{sT0}, s{sT0}, 1\ns_lshl_b32 s{sT0}, s{sT0}, 3\ns_lshr_b32 s{sT1}, s2, 3\ns_and_b32 s{sT1}, s{sT1}, 7\ns_add_u32 s{sTM}, s{sT0}, s{sT1}\ns_lshr_b32 s{sTN}, s2, 6")
    A(f"s_mov_b32 s{S_W+3}, 0x00020000\ns_mov_b32 s{S_A+3}, 0x00020000\ns_mov_b32 s{S_A+2}, {WS_USED}")
    A(f"s_mul_i32 s{sT0}, s{sSP}, 43\ns_cmp_eq_u32 s{sSP}, 3\ns_cselect_b32 s{sT0}, 128, s{sT0}\ns_cselect_b32 s{sT1}, 0, s{sT0}")
    A(f"s_lshl_b32 s{sT2}, s{sTM}, 1\ns_lshr_b32 s{sAO}, s{sW}, 1\ns_add_u32 s{sT2}, s{sT2}, s{sAO}\ns_mul_i32 s{sAO}, s{sT2}, {A3_TB64}\ns_lshl_b32 s{sT0}, s{sT0}, 12\ns_add_u32 s{sAO}, s{sAO}, s{sT0}")
    A(f"s_and_b32 s{sT2}, s{sW}, 1\ns_lshl_b32 s{sT2}, s{sT2}, 11\ns_add_u32 s{sAO}, s{sAO}, s{sT2}\ns_add_u32 s{sAO}, s{sAO}, {A3_BASE}")
    A(f"s_lshl_b32 s{sWO}, s{sT1}, 15\ns_lshl_b32 s{sT2}, s{sW}, 13\ns_add_u32 s{sWO}, s{sWO}, s{sT2}\ns_lshl_b32 s{sT2}, s{sTN}, 8\ns_add_u32 s{sWO}, s{sWO}, s{sT2}")
    A(f"s_lshl_b32 s{sM0}, s{sW}, 11")
    A(f"v_lshlrev_b32 v{VL}, 4, v{LN}")
    A(f"v_lshrrev_b32 v{T+2}, 4, v{LN}\nv_and_b32 v{T+3}, 15, v{LN}\nv_lshlrev_b32 v{T+4}, 1, v{T+2}\nv_xor_b32 v{T+3}, v{T+3}, v{T+4}\nv_lshlrev_b32 v{T+2}, 10, v{T+2}\nv_lshl_add_u32 v{VD}, v{T+3}, 4, v{T+2}")
    A(f"v_xor_b32 v{T+2}, 128, v{VD}\nv_add_u32 v{VD+1}, 3072, v{T+2}")
    code_touch(A, "k3_kernel", "K3_END", sW, LN, T+6, 80)
    A(f"s_cmp_eq_u32 s{sSP}, 3\ns_mov_b32 s{sT2}, {4096*1024}\ns_cselect_b32 s{S_W+2}, {1376*1024}, s{sT2}")
    A(f"s_waitcnt lgkmcnt(0)\ns_cselect_b32 s{S_W}, s{P_WD}, s{P_WO}\ns_cselect_b32 s{S_W+1}, s{P_WD+1}, s{P_WO+1}\ns_mov_b32 s{S_A}, s{P_WS}\ns_mov_b32 s{S_A+1}, s{P_WS+1}")
    seq = []
    def wl(s):
        seq.extend([('W', s)]*2)
        return [[f"s_add_u32 m0, s{sM0}, {(s % RING)*8192}", f"s_add_u32 s{sT0}, s{sWO}, {s*32768}"],
                [f"buffer_load_dwordx4 v{VD}, s[{S_W}:{S_W+3}], s{sT0} offen lds"], [f"buffer_load_dwordx4 v{VD+1}, s[{S_W}:{S_W+3}], s{sT0} offen offset:1024 lds"]]
    def al(s):
        seq.extend([('A', s)]*2)
        return [[f"s_add_u32 s{sT1}, s{sAO}, {s*4096}"]] + [[f"buffer_load_dwordx4 {vr(AR+(s%AD)*8+4*t,4)}, v{VL}, s[{S_A}:{S_A+3}], s{sT1} offen offset:{t*1024}"] for t in range(2)]
    def vmn(tag): return min(63, len(seq) - 1 - max(i for i, e in enumerate(seq) if e == tag))
    LEAD = AD - 1
    def emit(its):
        for it in its:
            for x in it: A(x)
    for s in range(4): emit(wl(s)); emit(al(s))
    A(f"v_lshrrev_b32 v{T+2}, 2, v{LN}\nv_and_b32 v{T+3}, 7, v{T+2}\nv_lshlrev_b32 v{T+2}, 8, v{T+2}\nv_and_b32 v{T+4}, 3, v{LN}\nv_lshl_add_u32 v{T+2}, v{T+4}, 3, v{T+2}")
    for nb in range(8): A(f"v_xor_b32 v{T+4}, {nb}, v{T+3}\nv_lshl_add_u32 v{TRA+nb}, v{T+4}, 5, v{T+2}\nv_add_u32 v{TRA+8+nb}, 0x10000, v{TRA+nb}")
    A(f"s_lshl_b32 s{sT0}, s{sSP}, 21\ns_lshl_b32 s{sT1}, s{sTM}, 17\ns_add_u32 s{sT0}, s{sT0}, s{sT1}\ns_lshl_b32 s{sT1}, s{sTN}, 15\ns_add_u32 s{sT0}, s{sT0}, s{sT1}\ns_lshl_b32 s{sT1}, s{sW}, 13\ns_add_u32 s{sT0}, s{sT0}, s{sT1}\ns_add_u32 s{sOB}, s{sT0}, {P_BASE}")
    for s in range(4, LEAD): emit(wl(s)); emit(al(s))
    def tr(nb, s):
        off = (s % RING)*8192; hi = off // 65536; off %= 65536
        return [f"ds_read_b64_tr_b16 {vr(WF+4*nb,2)}, v{TRA+8*hi+nb} offset:{off}", f"ds_read_b64_tr_b16 {vr(WF+4*nb+2,2)}, v{TRA+8*hi+nb} offset:{off+4096}"]
    A(f"s_waitcnt vmcnt({vmn(('W', 0))})\ns_barrier")
    stamp(A, 1)
    for nb in range(8):
        for x in tr(nb, 0): A(x)
    BE = 2
    for s in range(NS):
        if s == 21: stamp(A, 2)
        extra = {}
        A(f"s_waitcnt vmcnt({vmn(('A', s))}) lgkmcnt(8)")
        if s % BE == 0:
            extra[0] = [f"s_waitcnt vmcnt({vmn(('W', min(s+BE, NS-1)))})", "s_barrier"]
        extra[6] = ["s_waitcnt lgkmcnt(6)"]
        tgt = s + LEAD
        if tgt < NS:
            its = wl(tgt) + al(tgt)
            for k, it in enumerate(its): extra.setdefault(2 + 2*k if k < 2 else 4 + 2*k, []).extend(it)
        for nb in range(8):
            for t in range(2):
                g = nb*2 + t
                d_ = ACC + g*4
                A(f"{MF} {vr(d_,4)}, {vr(WF+4*nb,4)}, {vr(AR+(s%AD)*8+4*t,4)}, {'0' if s == 0 else vr(d_,4)}")
                if t == 1 and s + 1 < NS:
                    for x in tr(nb, s+1): A(x)
                for x in extra.get(g, []): A(x)
    stamp(A, 3)
    A("s_nop 7")
    for np_ in range(4):
        if np_ % 2 == 0: A(f"s_add_u32 s{sT0}, s{sOB}, {np_*2048}")
        for t in range(2):
            ob = AR + 4*(np_*2+t)
            for h in range(2):
                b_ = ACC + ((2*np_+h)*2 + t)*4
                A(f"v_cvt_pk_bf16_f32 v{ob+2*h}, v{b_}, v{b_+1}\nv_cvt_pk_bf16_f32 v{ob+2*h+1}, v{b_+2}, v{b_+3}")
            A(f"buffer_store_dwordx4 {vr(ob,4)}, v{VL}, s[{S_A}:{S_A+3}], s{sT0} offen offset:{(np_%2)*2048 + t*1024} sc1")
    if asmlib.STAMP:
        stamp(A, 4)
        A("s_waitcnt vmcnt(0)")
        stamp_flush(A, 2, 6, P_WS, sW)
    A.label("K3_END")
    A("s_endpgm")
    return dict(name="k3_kernel", vgpr=T+8, accum=(T+8+3)//4*4, sgpr=96, grid=256, block=256, lds=RING*8192)

def gen_k4(A):
    S_P, S_X, S_O = 8, 12, 16
    sW, sT0, sT1, sT2 = 20, 21, 22, 23
    P_X, P_OUT, P_WS = 24, 26, 28
    R = 8; XR = 72; G = 80; VL = 2; VX = 3
    A(".globl k4_kernel\n.p2align 8\n.type k4_kernel,@function")
    A.label("k4_kernel")
    A("s_cmp_ge_u32 s2, 256\ns_cbranch_scc1 K4_END")
    stamp(A, 0)
    A(f"s_load_dwordx2 s[{P_X}:{P_X+1}], s[0:1], 0\ns_load_dwordx2 s[{P_OUT}:{P_OUT+1}], s[0:1], 80\ns_load_dwordx2 s[{P_WS}:{P_WS+1}], s[0:1], 96")
    A(f"v_lshrrev_b32 v1, 6, v0\nv_and_b32 v0, 63, v0\ns_nop 0\nv_readfirstlane_b32 s{sW}, v1")
    for r in (S_P, S_X, S_O): A(f"s_mov_b32 s{r+3}, 0x00020000")
    A(f"s_mov_b32 s{S_P+2}, {P_END}\ns_mov_b32 s{S_X+2}, 0x200000\ns_mov_b32 s{S_O+2}, 0x200000")
    A(f"v_lshlrev_b32 v{VL}, 4, v0")
    A(f"s_lshl_b32 s{sT0}, s2, 13\ns_lshl_b32 s{sT1}, s{sW}, 11\ns_add_u32 s{sT0}, s{sT0}, s{sT1}\ns_add_u32 s{sT0}, s{sT0}, {P_BASE}")
    A(f"s_lshr_b32 s{sT1}, s2, 4\ns_lshl_b32 s{sT1}, s{sT1}, 17\ns_and_b32 s{sT2}, s2, 3\ns_lshl_b32 s{sT2}, s{sT2}, 15\ns_add_u32 s{sT1}, s{sT1}, s{sT2}")
    A(f"s_lshr_b32 s{sT2}, s2, 2\ns_and_b32 s{sT2}, s{sT2}, 3\ns_lshl_b32 s{sT2}, s{sT2}, 8\ns_add_u32 s{sT1}, s{sT1}, s{sT2}\ns_lshl_b32 s{sT2}, s{sW}, 6\ns_add_u32 s{sT1}, s{sT1}, s{sT2}")
    A(f"v_and_b32 v4, 15, v0\nv_lshrrev_b32 v5, 4, v0\nv_lshlrev_b32 v4, 10, v4\nv_lshl_add_u32 v4, v5, 3, v4\nv_add_u32 v{VX}, s{sT1}, v4")
    A("s_waitcnt lgkmcnt(0)")
    A(f"s_mov_b32 s{S_P}, s{P_WS}\ns_mov_b32 s{S_P+1}, s{P_WS+1}\ns_mov_b32 s{S_X}, s{P_X}\ns_mov_b32 s{S_X+1}, s{P_X+1}\ns_mov_b32 s{S_O}, s{P_OUT}\ns_mov_b32 s{S_O+1}, s{P_OUT+1}")
    A(f"s_mov_b32 s{sT2}, 16384")
    PK = 96
    for sp in (3, 0, 1, 2):
        A(f"s_add_u32 s{sT1}, s{sT0}, {sp << 21}")
        for t in range(2): A(f"buffer_load_dwordx4 {vr(PK+8*sp+4*t,4)}, v{VL}, s[{S_P}:{S_P+3}], s{sT1} offen offset:{t*1024}")
    for t in range(2):
        for h in range(2):
            A(f"buffer_load_dwordx2 {vr(XR+4*t+2*h,2)}, v{VX}, s[{S_X}:{S_X+3}], {'s%d' % sT2 if t else '0'} offen offset:{h*32}")
    def unpack(dst, src):
        for i in range(8): A(f"v_lshlrev_b32 v{dst+2*i}, 16, v{src+i}\nv_and_b32 v{dst+2*i+1}, 0xffff0000, v{src+i}")
    A("s_waitcnt vmcnt(10)")
    stamp(A, 2)
    dn = R + 48
    unpack(dn, PK+24)
    for i in range(16): A(f"v_mul_f32 v{G+i}, {hex(f32bits(-math.log2(math.e)))}, v{dn+i}")
    for i in range(16): A(f"v_exp_f32 v{G+i}, v{G+i}")
    for i in range(16): A(f"v_add_f32 v{G+i}, 1.0, v{G+i}")
    for i in range(16): A(f"v_rcp_f32 v{G+i}, v{G+i}")
    for i in range(16): A(f"v_mul_f32 v{G+i}, v{G+i}, v{dn+i}")
    A("s_waitcnt vmcnt(4)")
    stamp(A, 3)
    unpack(R, PK); unpack(R+16, PK+8); unpack(R+32, PK+16)
    for i in range(16): A(f"v_add_f32 v{R+i}, v{R+i}, v{R+16+i}")
    for i in range(16): A(f"v_add_f32 v{R+i}, v{R+i}, v{R+32+i}")
    A("s_waitcnt vmcnt(0)")
    stamp(A, 4)
    unpack(R+16, XR)
    for i in range(16): A(f"v_fmac_f32 v{R+16+i}, v{R+i}, v{G+i}")
    for i in range(8): A(f"v_cvt_pk_bf16_f32 v{R+32+i}, v{R+16+2*i}, v{R+17+2*i}")
    for t in range(2):
        for h in range(2):
            A(f"buffer_store_dwordx2 {vr(R+32+4*t+2*h,2)}, v{VX}, s[{S_O}:{S_O+3}], {'s%d' % sT2 if t else '0'} offen offset:{h*32}")
    if asmlib.STAMP:
        stamp(A, 1)
        A("s_waitcnt vmcnt(0)")
        stamp_flush(A, 3, 6, P_WS, sW)
    A.label("K4_END")
    A("s_endpgm")
    return dict(name="k4_kernel", vgpr=128, accum=128, sgpr=96, grid=256, block=256, lds=0)
```

```python
from asmlib import *
import asmlib
from k1q import KV_BASE, A3_BASE, A3_TB64, WS_USED, MF, f32bits
import math
P_BASE = KV_BASE
P_END = P_BASE + (8 << 20)

import os
K3T = os.environ.get('K3T', '0') == '1'
K3S = os.environ.get('K3S', '1') == '1'
def gen_k3(A, RING=10):
    ACC = 0; AF = 64; WF = 96; RA = 128; TRA = 131; VD = 143; VL = 147; T = 148; VT = 156; DT = 157
    S_L, S_O = 8, 12
    sW, sT0, sT1, sT2, sSP, sTM, sTN, sOFF, sSTR, sM0, sTO, sTS = 16, 17, 18, 19, 20, 21, 22, 23, 24, 25, 26, 27
    P_WO, P_WD, P_WS = 32, 34, 36
    NS = 43
    TS = eval(os.environ.get('K3TS', '(4, 12, 20, 28)'))
    A(".globl k3_kernel\n.p2align 8\n.type k3_kernel,@function")
    A.label("k3_kernel")
    A("s_cmp_ge_u32 s2, 256\ns_cbranch_scc1 K3_END")
    stamp(A, 0)
    A(f"s_load_dwordx2 s[{P_WO}:{P_WO+1}], s[0:1], 40\ns_load_dwordx2 s[{P_WD}:{P_WD+1}], s[0:1], 72\ns_load_dwordx2 s[{P_WS}:{P_WS+1}], s[0:1], 96")
    A(f"v_lshrrev_b32 v{T}, 6, v0\nv_and_b32 v{T+1}, 63, v0\ns_nop 0\nv_readfirstlane_b32 s{sW}, v{T}")
    LN = T+1
    A(f"s_and_b32 s{sSP}, s2, 3\ns_lshr_b32 s{sT0}, s2, 2\ns_and_b32 s{sT0}, s{sT0}, 1\ns_lshl_b32 s{sT0}, s{sT0}, 3\ns_lshr_b32 s{sT1}, s2, 3\ns_and_b32 s{sT1}, s{sT1}, 7\ns_add_u32 s{sTM}, s{sT0}, s{sT1}\ns_lshr_b32 s{sTN}, s2, 6")
    A(f"s_mov_b32 s{S_L+3}, 0x00020000\ns_mov_b32 s{S_O+3}, 0x00020000\ns_mov_b32 s{S_O+2}, {P_END}")
    A(f"s_mul_i32 s{sT0}, s{sSP}, 43\ns_cmp_eq_u32 s{sSP}, 3\ns_cselect_b32 s{sT0}, 128, s{sT0}\ns_cselect_b32 s{sT1}, 0, s{sT0}")
    A(f"s_lshl_b32 s{sM0}, s{sW}, 12")
    A(f"v_lshlrev_b32 v{VL}, 4, v{LN}")
    code_touch(A, "k3_kernel", "K3_END", sW, LN, T+6, 80)
    A(f"s_cmp_lt_u32 s{sW}, 2\ns_cbranch_scc0 K3_WSETUP")
    A(f"s_lshl_b32 s{sT2}, s{sTM}, 1\ns_add_u32 s{sT2}, s{sT2}, s{sW}\ns_mul_i32 s{sOFF}, s{sT2}, {A3_TB64}\ns_lshl_b32 s{sT0}, s{sT0}, 12\ns_add_u32 s{sOFF}, s{sOFF}, s{sT0}\ns_add_u32 s{sOFF}, s{sOFF}, {A3_BASE}")
    A(f"s_mov_b32 s{sSTR}, 4096\ns_mov_b32 s{S_L+2}, {WS_USED}")
    for j in range(4): A(f"v_mov_b32 v{VD+j}, v{VL}")
    A(f"v_lshrrev_b32 v{T+2}, 3, v{LN}\nv_and_b32 v{T+3}, 7, v{LN}\nv_lshlrev_b32 v{T+2}, 12, v{T+2}\nv_lshl_add_u32 v{T+2}, v{T+3}, 7, v{T+2}\ns_lshl_b32 s{sT2}, s{sTN}, 10\nv_add_u32 v{VT}, s{sT2}, v{T+2}")
    A(f"s_waitcnt lgkmcnt(0)\ns_mov_b32 s{S_L}, s{P_WS}\ns_mov_b32 s{S_L+1}, s{P_WS+1}\ns_branch K3_SETUP_DONE")
    A.label("K3_WSETUP")
    A(f"s_lshl_b32 s{sOFF}, s{sT1}, 15\ns_sub_u32 s{sT2}, s{sW}, 2\ns_lshl_b32 s{sT2}, s{sT2}, 14\ns_add_u32 s{sOFF}, s{sOFF}, s{sT2}\ns_lshl_b32 s{sT2}, s{sTN}, 8\ns_add_u32 s{sOFF}, s{sOFF}, s{sT2}")
    A(f"s_mov_b32 s{sSTR}, 32768")
    A(f"v_lshrrev_b32 v{T+2}, 4, v{LN}\nv_and_b32 v{T+3}, 15, v{LN}\nv_lshlrev_b32 v{T+4}, 1, v{T+2}\nv_xor_b32 v{T+3}, v{T+3}, v{T+4}\nv_lshlrev_b32 v{T+2}, 10, v{T+2}\nv_lshl_add_u32 v{VD}, v{T+3}, 4, v{T+2}")
    A(f"v_xor_b32 v{T+2}, 128, v{VD}\nv_add_u32 v{VD+1}, 3072, v{T+2}\nv_add_u32 v{VD+2}, 6144, v{VD}\nv_add_u32 v{VD+3}, 9216, v{T+2}")
    A(f"v_bfe_u32 v{T+2}, v{LN}, 2, 3\nv_lshlrev_b32 v{T+2}, 15, v{T+2}\nv_bfe_u32 v{T+3}, v{LN}, 1, 1\nv_lshl_add_u32 v{T+2}, v{T+3}, 10, v{T+2}\nv_and_b32 v{T+3}, 1, v{LN}\nv_lshl_add_u32 v{T+2}, v{T+3}, 7, v{T+2}")
    A(f"s_and_b32 s{sT2}, s{sTM}, 7\ns_lshl_b32 s{sT2}, s{sT2}, 11\nv_add_u32 v{VT}, s{sT2}, v{T+2}")
    A(f"s_cmp_eq_u32 s{sSP}, 3\ns_mov_b32 s{sT2}, {4096*1024}\ns_cselect_b32 s{S_L+2}, {1376*1024}, s{sT2}")
    A(f"s_waitcnt lgkmcnt(0)\ns_cselect_b32 s{S_L}, s{P_WD}, s{P_WO}\ns_cselect_b32 s{S_L+1}, s{P_WD+1}, s{P_WO+1}")
    A.label("K3_SETUP_DONE")
    A(f"s_lshl_b32 s{sTS}, s{sSTR}, 3\ns_mul_i32 s{sTO}, s{sSTR}, {RING-1}\ns_add_u32 s{sTO}, s{sTO}, s{sOFF}")
    def touch(): return [f"buffer_load_dword v{DT}, v{VT}, s[{S_L}:{S_L+3}], s{sTO} offen", f"s_add_u32 s{sTO}, s{sTO}, s{sTS}"]
    def loads(s):
        pre = [f"s_add_u32 m0, s{sM0}, {(s % RING)*16384}"]
        d = [f"buffer_load_dwordx4 v{VD+j}, s[{S_L}:{S_L+3}], s{sOFF} offen offset:{j*1024} lds" for j in range(4)]
        post = [f"s_add_u32 s{sOFF}, s{sOFF}, s{sSTR}"]
        return pre, d, post
    NPRE = RING - 1
    for s in range(3):
        pre, d, post = loads(s)
        for x in pre + ["s_nop 0"] + d + post: A(x)
    A(f"s_and_b32 s{sT0}, s{sW}, 1\ns_lshl_b32 s{sT0}, s{sT0}, 12\nv_add_u32 v{RA}, s{sT0}, v{VL}")
    A(f"v_lshrrev_b32 v{T+2}, 2, v{LN}\nv_and_b32 v{T+3}, 7, v{T+2}\nv_lshlrev_b32 v{T+2}, 8, v{T+2}\nv_and_b32 v{T+4}, 3, v{LN}\nv_lshl_add_u32 v{T+2}, v{T+4}, 3, v{T+2}\nv_add_u32 v{T+2}, 8192, v{T+2}")
    A(f"s_lshr_b32 s{sT0}, s{sW}, 1\ns_lshl_b32 s{sT0}, s{sT0}, 2\nv_xor_b32 v{T+3}, s{sT0}, v{T+3}")
    for nb in range(4): A(f"v_xor_b32 v{T+4}, {nb}, v{T+3}\nv_lshl_add_u32 v{TRA+nb}, v{T+4}, 5, v{T+2}")
    for k in range(1, 3):
        A(f"v_add_u32 v{RA+k}, {k*65536}, v{RA}")
        for nb in range(4): A(f"v_add_u32 v{TRA+4*k+nb}, {k*65536}, v{TRA+nb}")
    A(f"s_lshl_b32 s{sT0}, s{sSP}, 21\ns_lshl_b32 s{sT1}, s{sTM}, 17\ns_add_u32 s{sT0}, s{sT0}, s{sT1}\ns_lshl_b32 s{sT1}, s{sTN}, 15\ns_add_u32 s{sT0}, s{sT0}, s{sT1}\ns_lshl_b32 s{sT1}, s{sW}, 13\ns_add_u32 s{sT0}, s{sT0}, s{sT1}\ns_add_u32 s{sTM}, s{sT0}, {P_BASE}")
    A(f"s_mov_b32 s{S_O}, s{P_WS}\ns_mov_b32 s{S_O+1}, s{P_WS+1}")
    for s in range(3, NPRE):
        pre, d, post = loads(s)
        for x in pre + ["s_nop 0"] + d + post: A(x)
    def reads(s):
        sl = s % RING; hi = (sl*16384) // 65536; off = (sl*16384) % 65536
        o = []
        for k in range(4):
            o.append(f"ds_read_b64_tr_b16 {vr(WF+16*(s%2)+4*k,2)}, v{TRA+4*hi+k} offset:{off}")
            o.append(f"ds_read_b64_tr_b16 {vr(WF+16*(s%2)+4*k+2,2)}, v{TRA+4*hi+k} offset:{off+4096}")
            o.append(f"ds_read_b128 {vr(AF+16*(s%2)+4*k,4)}, v{RA+hi} offset:{off+k*1024}")
        return o
    seq = [n for n in range(NPRE) for _ in range(4)]
    def vmn(n): return len(seq) - 1 - max(i for i, e in enumerate(seq) if e == n)
    if K3T:
        for x in touch(): A(x)
        seq.append('t')
    A(f"s_waitcnt vmcnt({vmn(0)})\ns_barrier")
    stamp(A, 1)
    for x in reads(0): A(x)
    for s in range(NS):
        if s == 21: stamp(A, 2)
        extra = {}
        if K3S and s > 0 or not K3S: pass
        if not (K3S and s > 0): A("s_waitcnt lgkmcnt(0)")
        if K3S: extra[15] = ["s_waitcnt lgkmcnt(0)"]
        if s % 2 == 0:
            need = min(s+2, NS-1)
            extra[0] = [f"s_waitcnt vmcnt({vmn(need)})", "s_barrier"]
        rd = reads(s+1) if s+1 < NS else []
        for k, x in enumerate(rd):
            if K3S: extra.setdefault(1 + k//2, []).append(x)
            else: extra.setdefault(1 + k, []).insert(0, x)
        tgt = s + RING - 1
        if tgt < NS:
            pre, d, post = loads(tgt)
            if K3S:
                extra.setdefault(7, []).extend(pre)
                for j in range(4): extra.setdefault(8 + 2*j, []).append(d[j])
                extra.setdefault(14, []).extend(post)
            else:
                extra.setdefault(2, []).extend(pre)
                for j in range(4): extra.setdefault(4 + 3*j, []).append(d[j])
                extra.setdefault(14, []).extend(post)
            seq += [tgt]*4
        if K3T and s in TS:
            extra.setdefault(15, []).extend(touch()); seq.append('t')
        for nb in range(4):
            for t in range(4):
                g = nb*4 + t
                d_ = ACC + g*4
                c = "0" if s == 0 else vr(d_, 4)
                A(f"{MF} {vr(d_,4)}, {vr(WF+16*(s%2)+4*nb,4)}, {vr(AF+16*(s%2)+4*t,4)}, {c}")
                for x in extra.get(g, []): A(x)
    stamp(A, 3)
    A("s_nop 7")
    for np_ in range(2):
        A(f"s_add_u32 s{sT0}, s{sTM}, {np_*4096}")
        for t in range(4):
            ob = AF + 4*(np_*4+t)
            for h in range(2):
                b_ = ACC + ((2*np_+h)*4 + t)*4
                A(f"v_cvt_pk_bf16_f32 v{ob+2*h}, v{b_}, v{b_+1}\nv_cvt_pk_bf16_f32 v{ob+2*h+1}, v{b_+2}, v{b_+3}")
            A(f"buffer_store_dwordx4 {vr(ob,4)}, v{VL}, s[{S_O}:{S_O+3}], s{sT0} offen offset:{t*1024} sc1")
    if asmlib.STAMP:
        stamp(A, 4)
        A("s_waitcnt vmcnt(0)")
        stamp_flush(A, 2, 6, P_WS, sW)
    A.label("K3_END")
    A("s_endpgm")
    return dict(name="k3_kernel", vgpr=160, accum=160, sgpr=96, grid=256, block=256, lds=RING*16384)

def gen_k4(A):
    S_P, S_X, S_O = 8, 12, 16
    sW, sT0, sT1, sT2 = 20, 21, 22, 23
    P_X, P_OUT, P_WS = 24, 26, 28
    R = 8; XR = 72; G = 80; VL = 2; VX = 3
    A(".globl k4_kernel\n.p2align 8\n.type k4_kernel,@function")
    A.label("k4_kernel")
    A("s_cmp_ge_u32 s2, 256\ns_cbranch_scc1 K4_END")
    stamp(A, 0)
    A(f"s_load_dwordx2 s[{P_X}:{P_X+1}], s[0:1], 0\ns_load_dwordx2 s[{P_OUT}:{P_OUT+1}], s[0:1], 80\ns_load_dwordx2 s[{P_WS}:{P_WS+1}], s[0:1], 96")
    A(f"v_lshrrev_b32 v1, 6, v0\nv_and_b32 v0, 63, v0\ns_nop 0\nv_readfirstlane_b32 s{sW}, v1")
    for r in (S_P, S_X, S_O): A(f"s_mov_b32 s{r+3}, 0x00020000")
    A(f"s_mov_b32 s{S_P+2}, {P_END}\ns_mov_b32 s{S_X+2}, 0x200000\ns_mov_b32 s{S_O+2}, 0x200000")
    A(f"v_lshlrev_b32 v{VL}, 4, v0")
    A(f"s_lshl_b32 s{sT0}, s2, 13\ns_lshl_b32 s{sT1}, s{sW}, 11\ns_add_u32 s{sT0}, s{sT0}, s{sT1}\ns_add_u32 s{sT0}, s{sT0}, {P_BASE}")
    A(f"s_lshr_b32 s{sT1}, s2, 4\ns_lshl_b32 s{sT1}, s{sT1}, 17\ns_and_b32 s{sT2}, s2, 1\ns_lshl_b32 s{sT2}, s{sT2}, 16\ns_add_u32 s{sT1}, s{sT1}, s{sT2}")
    A(f"s_lshr_b32 s{sT2}, s2, 1\ns_and_b32 s{sT2}, s{sT2}, 7\ns_lshl_b32 s{sT2}, s{sT2}, 7\ns_add_u32 s{sT1}, s{sT1}, s{sT2}")
    A(f"s_lshr_b32 s{sT2}, s{sW}, 1\ns_lshl_b32 s{sT2}, s{sT2}, 6\ns_add_u32 s{sT1}, s{sT1}, s{sT2}\ns_and_b32 s{sT2}, s{sW}, 1\ns_lshl_b32 s{sT2}, s{sT2}, 15\ns_add_u32 s{sT1}, s{sT1}, s{sT2}")
    A(f"v_and_b32 v4, 15, v0\nv_lshrrev_b32 v5, 4, v0\nv_lshlrev_b32 v4, 10, v4\nv_lshl_add_u32 v4, v5, 3, v4\nv_add_u32 v{VX}, s{sT1}, v4")
    A("s_waitcnt lgkmcnt(0)")
    A(f"s_mov_b32 s{S_P}, s{P_WS}\ns_mov_b32 s{S_P+1}, s{P_WS+1}\ns_mov_b32 s{S_X}, s{P_X}\ns_mov_b32 s{S_X+1}, s{P_X+1}\ns_mov_b32 s{S_O}, s{P_OUT}\ns_mov_b32 s{S_O+1}, s{P_OUT+1}")
    A(f"s_mov_b32 s{sT2}, 16384")
    PK = 96
    for sp in (3, 0, 1, 2):
        A(f"s_add_u32 s{sT1}, s{sT0}, {sp << 21}")
        for t in range(2): A(f"buffer_load_dwordx4 {vr(PK+8*sp+4*t,4)}, v{VL}, s[{S_P}:{S_P+3}], s{sT1} offen offset:{t*1024}")
    for t in range(2):
        for h in range(2):
            A(f"buffer_load_dwordx2 {vr(XR+4*t+2*h,2)}, v{VX}, s[{S_X}:{S_X+3}], {'s%d' % sT2 if t else '0'} offen offset:{h*32}")
    def unpack(dst, src):
        for i in range(8): A(f"v_lshlrev_b32 v{dst+2*i}, 16, v{src+i}\nv_and_b32 v{dst+2*i+1}, 0xffff0000, v{src+i}")
    A("s_waitcnt vmcnt(10)")
    stamp(A, 2)
    dn = R + 48
    unpack(dn, PK+24)
    for i in range(16): A(f"v_mul_f32 v{G+i}, {hex(f32bits(-math.log2(math.e)))}, v{dn+i}")
    for i in range(16): A(f"v_exp_f32 v{G+i}, v{G+i}")
    for i in range(16): A(f"v_add_f32 v{G+i}, 1.0, v{G+i}")
    for i in range(16): A(f"v_rcp_f32 v{G+i}, v{G+i}")
    for i in range(16): A(f"v_mul_f32 v{G+i}, v{G+i}, v{dn+i}")
    A("s_waitcnt vmcnt(4)")
    stamp(A, 3)
    unpack(R, PK); unpack(R+16, PK+8); unpack(R+32, PK+16)
    for i in range(16): A(f"v_add_f32 v{R+i}, v{R+i}, v{R+16+i}")
    for i in range(16): A(f"v_add_f32 v{R+i}, v{R+i}, v{R+32+i}")
    A("s_waitcnt vmcnt(0)")
    stamp(A, 4)
    unpack(R+16, XR)
    for i in range(16): A(f"v_fmac_f32 v{R+16+i}, v{R+i}, v{G+i}")
    for i in range(8): A(f"v_cvt_pk_bf16_f32 v{R+32+i}, v{R+16+2*i}, v{R+17+2*i}")
    for t in range(2):
        for h in range(2):
            A(f"buffer_store_dwordx2 {vr(R+32+4*t+2*h,2)}, v{VX}, s[{S_O}:{S_O+3}], {'s%d' % sT2 if t else '0'} offen offset:{h*32}")
    if asmlib.STAMP:
        stamp(A, 1)
        A("s_waitcnt vmcnt(0)")
        stamp_flush(A, 3, 6, P_WS, sW)
    A.label("K4_END")
    A("s_endpgm")
    return dict(name="k4_kernel", vgpr=128, accum=128, sgpr=96, grid=256, block=256, lds=0)
```

```python
import sys
from asmlib import *
import asmlib, os
asmlib.STAMP = os.environ.get('STAMP','0')=='1'
import k1
HEADER = open('recurrent_scan__compressed_kv_cla__glu_gated_reglu__prompt.s.ref').read().split('; Override')[0]
def build(kernels, check=True):
    A = Asm()
    infos = []
    for g in kernels:
        start = len(A.lines)
        infos.append(g(A))
    body = A.text()
    if check:
        check_hazards(A.lines)
    out = HEADER
    for i in infos:
        out += f"; @launch kernel={i['name']} grid=({i['grid']},1,1) block=({i['block']},1,1) lds={i['lds']}\n"
    MAC = {'v_mfma_f32_16x16x32_bf16': 'mf', 'ds_read_b64_tr_b16': 'trr', 'buffer_load_dwordx4': 'bl4', 'buffer_store_dwordx4': 'bs4', 'v_cvt_pk_bf16_f32': 'cvp',
           'ds_read_b128': 'dr4', 'v_accvgpr_write_b32': 'acw', 'v_exp_f32': 'vex', 'v_add_f32': 'vaf', 'v_mul_f32': 'vmf', 'v_sub_f32': 'vsf', 's_add_u32': 'sad', 's_waitcnt': 'swc'}
    mac = ''.join(f".macro {v} a:vararg\n {k} \\a\n.endm\n" for k, v in MAC.items())
    import re
    body = re.sub(r'(?m)^ (\w+) ', lambda m: ' ' + MAC.get(m.group(1), m.group(1)) + ' ', body)
    out += '.amdgcn_target "amdgcn-amd-amdhsa--gfx950"\n.text\n' + mac + body
    out += '.section .rodata,"a"\n'
    for i in infos:
        out += f""".p2align 6
.amdhsa_kernel {i['name']}
  .amdhsa_next_free_vgpr {i['vgpr']}
  .amdhsa_next_free_sgpr {i['sgpr']}
  .amdhsa_accum_offset {i['accum']}
  .amdhsa_group_segment_fixed_size 0
  .amdhsa_kernarg_size 104
  .amdhsa_user_sgpr_count 2
  .amdhsa_user_sgpr_kernarg_segment_ptr 1
  .amdhsa_system_sgpr_workgroup_id_x 1
.end_amdhsa_kernel
"""
    return out
if __name__ == '__main__' and os.environ.get('QF', '0') == '1':
    import k1q, k2q, k3q
    s = build([lambda A: k1q.gen_k1(A, store_flags=' ' + os.environ.get('SF1', 'sc1')), lambda A: k2q.gen_k2(A, store_flags=' sc1'), k3q.gen_k3, k3q.gen_k4])
    open(sys.argv[1], 'w').write(s); print(len(s), "bytes")
elif __name__ == '__main__':
    sf = os.environ.get('SF', 'sc1')
    sf = (' ' + sf) if sf else ''
    sf1 = os.environ.get('SF1', sf.strip()); sf1 = (' ' + sf1) if sf1 else ''
    ks = [lambda A: k1.gen_k1(A, store_flags=sf1)]
    try:
        import k2; ks.append(lambda A: k2.gen_k2(A, store_flags=sf))
        if os.environ.get('K3', 'd') == 'a':
            import k3; ks.append(k3.gen_k3)
        elif os.environ.get('K3', 'd') == 'd':
            import k3d; ks.append(k3d.gen_k3); ks.append(k3d.gen_k4)
        elif os.environ.get('K3', 'c') == 'c':
            import k3c; ks.append(k3c.gen_k3); ks.append(k3c.gen_k4)
        else:
            import k3b; ks.append(k3b.gen_k3); ks.append(k3b.gen_k4)
    except ImportError as e:
        print("partial:", e)
    s = build(ks)
    open(sys.argv[1] if len(sys.argv) > 1 else 'cur.s', 'w').write(s)
    print(len(s), "bytes")
```

```python
from asmlib import *
import asmlib
import math

import os
ACT_TOUCH = os.environ.get('ACT_TOUCH', '0') == '1'
W_TOUCH = os.environ.get('W_TOUCH', '1') == '1'
XFIRST = os.environ.get('XFIRST', '1') == '1'
KV_TOUCH = os.environ.get('KV_TOUCH', '0') == '1'
NOST = os.environ.get('NOST', '0') == '1'
SFD = os.environ.get('SFD', 'sc1')
WBL2 = os.environ.get('WBL2', '0') == '1'
HST = os.environ.get('HST', '0') == '1'
WEARLY = os.environ.get('WEARLY', '0') == '1'
WQ_TOUCH = os.environ.get('WQ_TOUCH', '1') == '1'
CODE_TOUCH = os.environ.get('CODE_TOUCH', '1') == '1'
CODE_TOUCH2 = os.environ.get('CODE_TOUCH2', '1') == '1'
XSP = os.environ.get('XSP', '1') == '1'
PART = os.environ.get('PART', 'A')
XORD = os.environ.get('XORD', '0') == '1'
LGK = os.environ.get('LGK', '1') == '1'
EXACT = os.environ.get('EXACT', '1') == '1'
ROT = os.environ.get('ROT', '1') == '1'
WS_OFF = int(os.environ.get('WS_OFF', '0')) << 20
KV_BASE = WS_OFF + (1 << 20)
A3_BASE = WS_OFF + (33 << 20)
A3_TB64 = 171 * 4096
XC_BASE = WS_OFF + (56 << 20)
SCQ_BASE = WS_OFF + (58 << 20)
WS_USED = WS_OFF + (59 << 20)
MF = "v_mfma_f32_16x16x32_bf16"
CSCALE = math.log2(math.e) / math.sqrt(128.0)

def f32bits(x):
    import struct
    return struct.unpack('<I', struct.pack('<f', x))[0]

def gen_k1(A, store_flags=""):
    ACC = [8, 72]; WF = 136; TRA = 168; VW = 176; VO = 178; OUT = 184; SC = 196; RSTD = 200; T = 204; GR = 216; SUM = 232; ONESV = 240; MU = 244; DUM = 245; VLN = 247
    S_ACT, S_WA, S_WB, S_OUT = 8, 12, 16, 20
    sW, sTB, sCG, sSU, sEND, sDMA, sOB, sM0, sT0, sT1, sTYPE, sJOB2, sOBASE = 24, 25, 26, 27, 28, 29, 30, 31, 32, 33, 34, 35, 36
    sONES, sSLO, sSHI = 37, 38, 39
    P_X, P_CKV, P_WQ, P_WUK, P_WUV, P_WG, P_WU, P_WS = 40, 42, 44, 46, 48, 50, 52, 54
    sSTG = 56
    sROW = 57
    sEX2, sEX, sMK, sDQ, sROT, sOB2 = 58, 84, 88, 96, 62, 63
    S_XC = 4; sXQ = 44; sSCQ = 48; sEND2 = sJOB2; sHD = 100; sOBH = 101; sIA = 38; sIB = 39; sXS = 61
    sRQ = sEX; sXR = 40

    A(".globl k12_kernel\n.p2align 8\n.type k12_kernel,@function")
    A.label("k12_kernel")
    A("s_cmp_ge_u32 s2, 256\ns_cbranch_scc1 K2_END")
    stamp(A, 0)
    A(f"s_load_dwordx4 s[{P_X}:{P_X+3}], s[0:1], 0")
    A(f"s_load_dwordx4 s[{P_WQ}:{P_WQ+3}], s[0:1], 16")
    A(f"s_load_dwordx2 s[{P_WUV}:{P_WUV+1}], s[0:1], 32")
    A(f"s_load_dwordx2 s[{P_WG}:{P_WG+1}], s[0:1], 56")
    A(f"s_load_dwordx2 s[{P_WU}:{P_WU+1}], s[0:1], 64")
    A(f"s_load_dwordx2 s[{P_WS}:{P_WS+1}], s[0:1], 96\ns_load_dwordx2 s[78:79], s[0:1], 88\ns_mov_b32 s{sXS}, 0")
    A(f"v_lshrrev_b32 v1, 6, v0\nv_and_b32 v0, 63, v0\ns_nop 0\nv_readfirstlane_b32 s{sW}, v1")
    A(f"s_and_b32 s{sT0}, s2, 7\ns_lshr_b32 s{sT1}, s2, 3\ns_and_b32 s{sTB}, s{sT1}, 7\ns_lshr_b32 s{sT1}, s{sT1}, 3")
    A(f"s_lshl_b32 s{sCG}, s{sT0}, 2\ns_add_u32 s{sCG}, s{sCG}, s{sT1}")
    A(f"s_mov_b32 s{sONES}, 0x3f803f80\ns_mov_b32 s{sSLO}, 0x00003f80\ns_mov_b32 s{sSHI}, 0x3f800000")
    A(f"s_lshl_b32 s{sSTG}, s{sW}, 13")
    A(f"s_lshl_b32 s{sROW}, s{sTB}, 18\ns_lshl_b32 s{sT0}, s{sW}, 16\ns_add_u32 s{sROW}, s{sROW}, s{sT0}")
    for r in (S_ACT, S_WA, S_WB, S_OUT): A(f"s_mov_b32 s{r+3}, 0x00020000")
    A(f"s_mov_b32 s{S_ACT+2}, 0x200000")
    if CODE_TOUCH: code_touch(A, "k12_kernel", "K1_FIN", sW, 0, DUM, 80)
    A("s_waitcnt lgkmcnt(0)")
    A(f"s_mov_b32 s{S_OUT}, s{P_WS}\ns_mov_b32 s{S_OUT+1}, s{P_WS+1}\ns_mov_b32 s{S_OUT+2}, 0")
    if PART == 'A':
        A(f"s_cmp_ge_u32 s{sCG}, 11\ns_cbranch_scc1 K1_DISP_C")
        A(f"s_mov_b32 s{S_ACT}, s{P_X}\ns_mov_b32 s{S_ACT+1}, s{P_X+1}")
        A(f"s_lshl_b32 s{sSU}, s{sCG}, 2\ns_add_u32 s{sEND}, s{sSU}, 4\ns_min_u32 s{sEND}, s{sEND}, 43\ns_mov_b32 s{sEND2}, s{sEND}\ns_branch K1_SETUP_G")
        A.label("K1_DISP_C")
        A(f"s_mov_b32 s{S_ACT}, s{P_CKV}\ns_mov_b32 s{S_ACT+1}, s{P_CKV+1}")
        A(f"s_cmp_ge_u32 s{sCG}, 22\ns_cbranch_scc1 K1_DISP_V")
        A(f"s_sub_u32 s{sT1}, s{sCG}, 11\ns_min_u32 s{sT0}, s{sT1}, 9\ns_mul_i32 s{sSU}, s{sT1}, 5\ns_add_u32 s{sSU}, s{sSU}, s{sT0}\ns_cmp_lt_u32 s{sT1}, 9\ns_cselect_b32 s{sT0}, 6, 5\ns_add_u32 s{sEND}, s{sSU}, s{sT0}\ns_mov_b32 s{sEND2}, s{sEND}\ns_branch K1_SETUP_K")
        A.label("K1_DISP_V")
        A(f"s_sub_u32 s{sT1}, s{sCG}, 22\ns_mul_i32 s{sSU}, s{sT1}, 6\ns_add_u32 s{sEND}, s{sSU}, 6\ns_cmp_lt_u32 s{sT1}, 8\ns_cselect_b32 s{sT0}, 1, 0\ns_add_u32 s{sEND2}, s{sEND}, s{sT0}")
        A(f"s_lshl_b32 s{sHD}, s{sT1}, 6\ns_add_u32 s{sHD}, s{sHD}, {61*128}\ns_lshl_b32 s{sT0}, s{sEND}, 7\ns_sub_u32 s{sHD}, s{sHD}, s{sT0}")
        A(f"s_lshl_b32 s{sT0}, s{sT1}, 1\ns_add_u32 s{sT0}, s{sT0}, 240\ns_lshr_b32 s{sOBH}, s{sT0}, 3\ns_lshl_b32 s{sOBH}, s{sOBH}, 20\ns_and_b32 s{sT0}, s{sT0}, 7\ns_lshl_b32 s{sT0}, s{sT0}, 10\ns_add_u32 s{sOBH}, s{sOBH}, s{sT0}\ns_branch K1_SETUP_V")

    else:
        A(f"s_cmp_ge_u32 s{sCG}, 10\ns_cbranch_scc1 K1_DISP_C")
        A(f"s_mov_b32 s{S_ACT}, s{P_X}\ns_mov_b32 s{S_ACT+1}, s{P_X+1}")
        A(f"s_min_u32 s{sT0}, s{sCG}, 3\ns_lshl_b32 s{sSU}, s{sCG}, 2\ns_add_u32 s{sSU}, s{sSU}, s{sT0}\ns_cmp_lt_u32 s{sCG}, 3\ns_cselect_b32 s{sT0}, 5, 4\ns_add_u32 s{sEND}, s{sSU}, s{sT0}\ns_mov_b32 s{sEND2}, s{sEND}\ns_branch K1_SETUP_G")
        A.label("K1_DISP_C")
        A(f"s_mov_b32 s{S_ACT}, s{P_CKV}\ns_mov_b32 s{S_ACT+1}, s{P_CKV+1}\ns_mov_b32 s{sHD}, 128\ns_mov_b32 s{sOBH}, 0")
        A(f"s_cmp_ge_u32 s{sCG}, 21\ns_cselect_b32 s{sT0}, 21, 10\ns_sub_u32 s{sT1}, s{sCG}, s{sT0}")
        A(f"s_min_u32 s{sT0}, s{sT1}, 9\ns_mul_i32 s{sSU}, s{sT1}, 5\ns_add_u32 s{sSU}, s{sSU}, s{sT0}\ns_cmp_lt_u32 s{sT1}, 9\ns_cselect_b32 s{sT0}, 6, 5\ns_add_u32 s{sEND}, s{sSU}, s{sT0}\ns_mov_b32 s{sEND2}, s{sEND}")
        A(f"s_cmp_ge_u32 s{sCG}, 21\ns_cbranch_scc1 K1_SETUP_V\ns_branch K1_SETUP_K")

    def dma_consts(ty):
        if ty == 'G':
            return 64, 128*2752, [(S_WA, 0, 0), (S_WA, 0, 16*2752), (S_WB, 0, 0), (S_WB, 0, 16*2752)]
        return 128, 128*8192, [(S_WA, 0, 0), (S_WA, 1, 8*8192), (S_WA, 0, 16*8192), (S_WA, 1, 24*8192)]

    def dma_slot(ty, su_rel, q, ringslot):
        cs, ss, pieces = dma_consts(ty)
        out = []
        for j, (srd, vi, ex) in enumerate(pieces):
            out.append([f"s_add_u32 m0, s{sM0}, {ringslot*16384 + j*1024}",
                        f"s_add_u32 s{sT0}, s{sDQ+q}, {su_rel*cs + ex}",
                        f"buffer_load_dwordx4 v{VW+vi}, s[{srd}:{srd+3}], s{sT0} offen lds"])
        return out

    def setup(ty):
        A.label(f"K1_SETUP_{ty}")
        ptr = {'Q': P_WQ, 'K': P_WUK, 'V': P_WUV, 'G': P_WG}[ty]
        A(f"s_mov_b32 s{S_WA}, s{ptr}\ns_mov_b32 s{S_WA+1}, s{ptr+1}")
        pb = P_WU if ty == 'G' else ptr
        A(f"s_mov_b32 s{S_WB}, s{pb}\ns_mov_b32 s{S_WB+1}, s{pb+1}")
        wsz = 512*2752 if ty == 'G' else 512*8192
        A(f"s_mov_b32 s{S_WA+2}, {wsz}\ns_mov_b32 s{S_WB+2}, {wsz}")
        A(f"s_mov_b32 s{sTYPE}, {'QKVG'.index(ty)}")
        cs, ss, _ = dma_consts(ty)
        pitch = 2752 if ty == 'G' else 8192
        A(f"s_mul_i32 s{sDMA}, s{sSU}, {cs}\ns_mul_i32 s{sT0}, s{sW}, {32*pitch}\ns_add_u32 s{sDMA}, s{sDMA}, s{sT0}")
        A(f"s_lshl_b32 s{sM0}, s{sW}, 12")
        A(f"s_add_u32 s{sROT}, s{sCG}, s{sTB}\ns_and_b32 s{sROT}, s{sROT}, {3 if ROT else 0}")
        for q in range(4):
            A(f"s_add_u32 s{sT0}, s{sROT}, {q}\ns_and_b32 s{sT0}, s{sT0}, 3\ns_mul_i32 s{sT1}, s{sT0}, {ss}\ns_add_u32 s{sDQ+q}, s{sDMA}, s{sT1}")
            if ty in 'KV': A(f"s_lshl_b32 s{sT0}, s{sT0}, 8\ns_add_u32 s{sRQ+q}, s{sROW}, s{sT0}")
        if ty in 'QG':
            for j, (_, _, ex) in enumerate(dma_consts(ty)[2]): A(f"s_mov_b32 s{sEX+j}, {ex}\ns_mov_b32 s{sEX2+j}, {ex+cs}")
        A("v_lshrrev_b32 v1, 4, v0\nv_bfe_u32 v2, v0, 2, 2\nv_and_b32 v3, 3, v0")
        if ty != 'G':
            A("v_lshrrev_b32 v4, 3, v0\nv_and_b32 v5, 7, v0\nv_bfe_u32 v6, v0, 4, 1\nv_lshlrev_b32 v6, 1, v6\nv_xor_b32 v5, v5, v6")
            A(f"v_lshlrev_b32 v4, 13, v4\nv_lshl_add_u32 v{VW}, v5, 4, v4\nv_xor_b32 v{VW+1}, 64, v{VW}")
            A("v_lshrrev_b32 v4, 1, v2\nv_and_b32 v5, 1, v1\nv_lshl_add_u32 v4, v5, 1, v4")
            A("v_lshl_add_u32 v5, v1, 3, v2\nv_lshlrev_b32 v5, 7, v5\nv_lshl_add_u32 v5, v3, 3, v5")
            for nb in range(4):
                A(f"v_xor_b32 v6, {nb}, v4\nv_lshl_add_u32 v{TRA+2*nb}, v6, 5, v5\nv_add_u32 v{TRA+2*nb+1}, 512, v{TRA+2*nb}")
        else:
            A(f"v_lshrrev_b32 v4, 2, v0\nv_lshrrev_b32 v6, 5, v0\nv_lshlrev_b32 v6, 1, v6\nv_xor_b32 v5, v3, v6")
            A(f"v_mul_u32_u24 v4, 2752, v4\nv_lshl_add_u32 v{VW}, v5, 4, v4\nv_mov_b32 v{VW+1}, v{VW}")
            A("v_and_b32 v4, 1, v1")
            A("v_lshl_add_u32 v5, v1, 3, v2\nv_lshlrev_b32 v5, 6, v5\nv_lshl_add_u32 v5, v3, 3, v5")
            for nb in range(4):
                A(f"v_xor_b32 v6, {nb%2}, v4\nv_lshl_add_u32 v6, v6, 5, v5\nv_add_u32 v{TRA+2*nb}, {(nb//2)*2048}, v6\nv_add_u32 v{TRA+2*nb+1}, 256, v{TRA+2*nb}")
        A("v_lshlrev_b32 v4, 4, v0")
        if ty == 'Q':
            for t in range(4): A(f"s_add_u32 s{sT0}, s{sCG}, {t}\ns_and_b32 s{sT0}, s{sT0}, {3 if ROT else 0}\ns_lshl_b32 s{sT0}, s{sT0}, 10\nv_add_u32 v{VO+t}, s{sT0}, v4" if ROT else f"v_add_u32 v{VO+t}, {t*1024}, v4")
            A(f"s_lshl_b32 s{sT0}, s{sTB}, 2\ns_add_u32 s{sT0}, s{sT0}, s{sW}\ns_mul_i32 s{sOBASE}, s{sT0}, {A3_TB64}\ns_add_u32 s{sOBASE}, s{sOBASE}, {A3_BASE}")
        elif ty == 'K':
            for t in range(4): A(f"v_add_u32 v{VO+t}, {(t//2)*16384 + (t%2)*4096}, v4")
            A(f"s_lshl_b32 s{sOBASE}, s{sTB}, 17\ns_lshl_b32 s{sT0}, s{sW}, 15\ns_add_u32 s{sOBASE}, s{sOBASE}, s{sT0}\ns_add_u32 s{sOBASE}, s{sOBASE}, {KV_BASE}")
        elif ty == 'V':
            for t in range(4): A(f"v_add_u32 v{VO+t}, {(t%2)*16384}, v4")
            A(f"s_lshl_b32 s{sOBASE}, s{sTB}, 17\ns_lshl_b32 s{sT0}, s{sW}, 15\ns_add_u32 s{sOBASE}, s{sOBASE}, s{sT0}\ns_add_u32 s{sOBASE}, s{sOBASE}, {KV_BASE+8192}")
        else:
            for t in range(4): A(f"s_add_u32 s{sT0}, s{sCG}, {t}\ns_and_b32 s{sT0}, s{sT0}, {3 if ROT else 0}\ns_lshl_b32 s{sT0}, s{sT0}, 10\nv_add_u32 v{VO+t}, s{sT0}, v4" if ROT else f"v_add_u32 v{VO+t}, {t*1024}, v4")
            A(f"s_lshl_b32 s{sT0}, s{sTB}, 2\ns_add_u32 s{sT0}, s{sT0}, s{sW}\ns_mul_i32 s{sOBASE}, s{sT0}, {A3_TB64}\ns_add_u32 s{sOBASE}, s{sOBASE}, {A3_BASE + 128*4096}")
        A(f"s_mov_b32 s{S_OUT+2}, {0 if ty in 'QG' else WS_USED}")
        A(f"s_branch {'K1_STAGE_X' if ty in 'QG' else 'K1_PRO_' + ty}")

    for ty in 'KVG': setup(ty)

    def wpre(ty, slots):
        for q in slots:
            for tr in dma_slot(ty, q//4, q%4, q):
                for x in tr: A(x)

    def act_touch():
        A(f"s_lshl_b32 s{sT1}, s{sTB}, 18\ns_and_b32 s{sT0}, s{sCG}, 3\ns_lshl_b32 s{sT0}, s{sT0}, 16\ns_add_u32 s{sT1}, s{sT1}, s{sT0}\ns_lshl_b32 s{sT0}, s{sW}, 14\ns_add_u32 s{sT1}, s{sT1}, s{sT0}")
        A(f"v_lshrrev_b32 v4, 3, v0\nv_and_b32 v5, 7, v0\nv_lshlrev_b32 v4, 10, v4\nv_lshl_add_u32 v4, v5, 7, v4\ns_add_u32 s{sT0}, s{sT1}, 8192")
        A(f"buffer_load_dword v{DUM}, v4, s[{S_ACT}:{S_ACT+3}], s{sT1} offen\nbuffer_load_dword v{DUM+1}, v4, s[{S_ACT}:{S_ACT+3}], s{sT0} offen")

    def touch_ops(ty):
        pitch = 2752 if ty == 'G' else 8192
        cs, _, _ = dma_consts(ty)
        o = [f"s_lshl_b32 s{sT1}, s{sTB}, 2", f"s_add_u32 s{sT1}, s{sT1}, s{sW}", f"s_mul_i32 s{sT1}, s{sT1}, {16*pitch}", f"s_mul_i32 s{sT0}, s{sSU}, {cs}", f"s_add_u32 s{sT1}, s{sT1}, s{sT0}"]
        if ty == 'G':
            o += ["v_lshrrev_b32 v4, 2, v0", "v_and_b32 v5, 3, v0", "v_mul_u32_u24 v4, 2752, v4", f"v_add_u32 v4, s{sT1}, v4", "v_and_b32 v4, 0xffffff80, v4", "v_lshl_add_u32 v4, v5, 7, v4"]
            o += [f"buffer_load_dword v{DUM+j}, v4, s[{srd}:{srd+3}], 0 offen" for j, srd in enumerate((S_WA, S_WB))]
        else:
            o += ["v_lshrrev_b32 v4, 3, v0", "v_and_b32 v5, 7, v0", "v_lshlrev_b32 v4, 13, v4", "v_lshl_add_u32 v4, v5, 7, v4"]
            for j in range(2):
                o += [f"s_add_u32 s{sT0}, s{sT1}, {j*8*pitch}", f"buffer_load_dword v{DUM+j}, v4, s[{S_WA}:{S_WA+3}], s{sT0} offen"]
        return o

    BUF = [0, 1, 2, 3, 4, 2, 3, 4]
    A.label("K1_STAGE_X")
    A(f"s_mov_b32 s{S_XC}, s{P_WS}\ns_mov_b32 s{S_XC+1}, s{P_WS+1}\ns_mov_b32 s{S_XC+3}, 0x00020000\ns_cmp_ge_u32 s{sCG}, {7 if PART == 'A' else 6}\ns_cselect_b32 s{S_XC+2}, {WS_USED}, 0")
    A(f"s_lshl_b32 s{sT1}, s{sTB}, 4\ns_lshl_b32 s{sT0}, s{sW}, 2\ns_add_u32 s{sT1}, s{sT1}, s{sT0}\ns_and_b32 s{sT0}, s{sCG}, {3 if ROT else 0}\ns_add_u32 s{sT1}, s{sT1}, s{sT0}")
    A(f"s_lshl_b32 s{sSCQ}, s{sT1}, 6\ns_add_u32 s{sSCQ}, s{sSCQ}, {SCQ_BASE}\ns_lshl_b32 s{sT1}, s{sT1}, 14\ns_add_u32 s{sT1}, s{sT1}, {XC_BASE}")
    for q in range(4): A(f"s_add_u32 s{sT0}, s{sROT}, {q}\ns_and_b32 s{sT0}, s{sT0}, 3\ns_lshl_b32 s{sT0}, s{sT0}, 12\ns_add_u32 s{sXQ+q}, s{sT1}, s{sT0}")
    A(f"v_lshlrev_b32 v{VLN}, 4, v0")
    if ACT_TOUCH: act_touch()
    A(f"s_lshl_b32 s{sT0}, s{sROT}, 4\nv_add_u32 v{T}, s{sT0}, v0\nv_and_b32 v{T}, 63, v{T}\nv_lshlrev_b32 v{T}, 4, v{T}")
    for t in range(4):
        A(f"s_add_u32 s{sT0}, s{sCG}, {t}\ns_and_b32 s{sT0}, s{sT0}, 3\ns_lshl_b32 s{sT0}, s{sT0}, 14\ns_add_u32 s{sXR+t}, s{sROW}, s{sT0}" if ROT else f"s_add_u32 s{sXR+t}, s{sROW}, {t*16384}")
    def x_round(r):
        o = []
        for j in range(8):
            tok = (8*r + j) & 15
            o.append([f"v_xor_b32 v{T+1+(j&1)}, {tok*16}, v{T}", f"s_add_u32 m0, s{sSTG}, {BUF[r]*32768 + j*1024}", f"s_add_u32 s{sT0}, s{sXR+r//2}, {(8*(r%2)+j)*1024}",
                      f"buffer_load_dwordx4 v{T+1+(j&1)}, s[{S_ACT}:{S_ACT+3}], s{sT0} offen lds"])
        return o
    def gw_slot(n):
        o = []
        for j in range(4):
            srd = S_WA if j < 2 else S_WB
            it = [f"s_add_u32 m0, s{sM0}, {n*16384 + j*1024}", f"s_add_u32 s{sT0}, s{sDQ+n%4}, s{(sEX if n < 4 else sEX2)+j}", f"buffer_load_dwordx4 v{VW+(j&1)}, s[{srd}:{srd+3}], s{sT0} offen lds"]
            o.append(it)
        return o
    for r in range(2 if XORD else 4):
        for it in x_round(r):
            for x in it: A(x)
    A(f"v_and_b32 v4, 15, v0\nv_and_b32 v5, 7, v0\nv_lshlrev_b32 v5, 10, v5\nv_and_b32 v6, 3, v0\nv_xor_b32 v6, v6, v1\nv_lshl_add_u32 v5, v6, 4, v5")
    A(f"v_add_u32 v5, s{sSTG}, v5\nv_lshrrev_b32 v6, 2, v4")
    for k in range(4):
        A(f"v_xor_b32 v7, {k}, v6\nv_lshl_add_u32 v{T+4+k}, v7, 6, v5")
    A(f"v_cmp_lt_u32 vcc, 7, v4")
    A(f"v_lshlrev_b32 v5, 2, v1\nv_sub_u32 v5, v4, v5")
    for i in range(4): A(f"v_cmp_eq_u32 s[{sMK+2*i}:{sMK+2*i+1}], {i}, v5")
    for i in range(4): A(f"v_mov_b32 v{ONESV+i}, s{sONES}")
    L = WF
    def x_read(t, vm):
        X = ACC[t % 2]
        ba, bb = BUF[2*t], BUF[2*t+1]
        o = [f"v_mov_b32 v2, {ba*32768}", f"v_mov_b32 v3, {bb*32768}", "v_cndmask_b32 v2, v2, v3, vcc"]
        o += [f"v_add_u32 v{T+8+k}, v2, v{T+4+k}" for k in range(4)]
        o.append(f"s_waitcnt vmcnt({vm})")
        o += [f"ds_read_b128 {vr(X+4*ks,4)}, v{T+8+(ks&3)} offset:{(ks&12)*64}" for ks in range(16)]
        return o
    def sumx(t):
        d = SUM + 4*(t % 2); X = ACC[t % 2]
        return [[f"{MF} {vr(d,4)}, {vr(ONESV,4)}, {vr(X+4*ks,4)}, {'0' if ks == 0 else vr(d,4)}"] for ks in range(16)]
    def gram(t):
        d = GR + 4*t
        return [[f"{MF} {vr(d,4)}, {ar((t*16+ks)*4,4)}, {ar((t*16+ks)*4,4)}, {'0' if ks == 0 else vr(d,4)}"] for ks in range(16)]
    def ln_stream(t):
        X = ACC[t % 2]; mu = MU
        o = [f"v_mul_f32 v{mu}, {hex(f32bits(-1.0/512))}, v{SUM+4*(t%2)}"]
        for b in range(16):
            tb_ = L + 8*(b % 2)
            for i in range(4):
                o.append(f"v_lshlrev_b32 v{tb_+2*i}, 16, v{X+4*b+i}"); o.append(f"v_and_b32 v{tb_+2*i+1}, 0xffff0000, v{X+4*b+i}")
            for i in range(8): o.append(f"v_add_f32 v{tb_+i}, v{tb_+i}, v{mu}")
            for i in range(4): o.append(f"v_cvt_pk_bf16_f32 v{X+4*b+i}, v{tb_+2*i}, v{tb_+2*i+1}")
            for i in range(4): o.append(f"v_accvgpr_write_b32 a{(t*16+b)*4+i}, v{X+4*b+i}")
        return o
    def interleave(main, sides):
        n = len(main)
        ins = {}
        for f0, f1, items in sides:
            for k, it in enumerate(items or []):
                p = int(n*(f0 + (f1-f0)*(k+0.5)/len(items)))
                ins.setdefault(p, []).extend(it)
        for i, x in enumerate(main):
            for y in ins.get(i, []): A(y)
            A(x)
    w03 = [it for n in range(4) for it in gw_slot(n)]
    if XORD:
        for x in x_read(0, 0): A(x)
        r23 = x_round(2) + x_round(3)
        for it in r23[:4]:
            for x in it: A(x)
        A("s_waitcnt lgkmcnt(0)")
        for k, it in enumerate(sumx(0)):
            for x in it: A(x)
            if k < 12:
                for x in r23[4+k]: A(x)
        interleave(ln_stream(0), [(0.01, 0.25, x_round(4)), (0.40, 0.41, [x_read(1, 8)]), (0.55, 0.56, [["s_waitcnt lgkmcnt(0)", "s_barrier"]]), (0.57, 0.8, x_round(5) + x_round(6)), (0.8, 0.99, w03), (0.6, 0.92, sumx(1))])
    else:
        for x in x_read(0, 16): A(x)
        A("s_waitcnt lgkmcnt(0)")
        r4 = x_round(4)
        for k, it in enumerate(sumx(0)):
            for x in it: A(x)
            if k % 2 == 0:
                for x in r4[k//2]: A(x)
        for x in x_read(1, 8): A(x)
        interleave(ln_stream(0), [(0.10, 0.11, [["s_waitcnt lgkmcnt(0)", "s_barrier"]]), (0.12, 0.45 if not XSP else 0.95, x_round(5) + x_round(6)), (0.45, 0.98, w03 if not XSP else []), (0.5, 0.9, sumx(1))])
    w46 = [it for n in range(4, 7) for it in gw_slot(n)]
    if XSP:
        for x in x_read(2, 8): A(x)
        interleave(ln_stream(1), [(0.05, 0.45, gram(0)), (0.15, 0.16, [["s_waitcnt lgkmcnt(0)"]]), (0.17, 0.5, x_round(7)), (0.5, 0.98, w03[:8]), (0.5, 0.9, sumx(2))])
        for x in x_read(3, 8): A(x)
        interleave(ln_stream(2), [(0.05, 0.45, gram(1)), (0.02, 0.6, w03[8:]), (0.15, 0.16, [["s_waitcnt lgkmcnt(0)"]]), (0.62, 0.63, [["s_barrier"]]), (0.65, 0.98, w46[:4]), (0.5, 0.9, sumx(3))])
        w46 = w46[4:]
    else:
        for x in x_read(2, 24): A(x)
        interleave(ln_stream(1), [(0.05, 0.45, gram(0)), (0.15, 0.16, [["s_waitcnt lgkmcnt(0)"]]), (0.17, 0.4, x_round(7)), (0.5, 0.9, sumx(2))])
        for x in x_read(3, 0): A(x)
        interleave(ln_stream(2), [(0.05, 0.45, gram(1)), (0.15, 0.16, [["s_waitcnt lgkmcnt(0)", "s_barrier"]]), (0.17, 0.7, w46), (0.5, 0.9, sumx(3))])
        w46 = []
    xcst = [[f"buffer_store_dwordx4 {ar(b*4,4)}, v{VLN}, s[{S_XC}:{S_XC+3}], s{sXQ+b//4} offen offset:{(b%4)*1024} sc1"] for b in range(16)]
    interleave(ln_stream(3), [(0.05, 0.45, gram(2)), (0.05, 0.8, w46)])
    A("s_nop 1")
    for it in gram(3):
        for x in it: A(x)
    def extract(t):
        g = GR + 4*t; D, D2 = L, L+1
        A(f"v_cndmask_b32 v{D}, 0, v{g}, s[{sMK}:{sMK+1}]")
        for i in range(1, 4): A(f"v_cndmask_b32 v{D}, v{D}, v{g+i}, s[{sMK+2*i}:{sMK+2*i+1}]")
        A(f"v_mov_b32 v{D2}, v{D}\ns_nop 1\nv_permlane16_swap_b32 v{D}, v{D2}\nv_add_f32 v{D}, v{D}, v{D2}")
        A(f"v_mov_b32 v{D2}, v{D}\ns_nop 1\nv_permlane32_swap_b32 v{D}, v{D2}\nv_add_f32 v{D}, v{D}, v{D2}")
        A(f"v_mov_b32 v{D2}, {hex(f32bits(1e-5))}\nv_fmac_f32 v{D2}, {hex(f32bits(1.0/512))}, v{D}")
        A(f"v_rsq_f32 v{RSTD+t}, v{D2}")
    for t in range(4): extract(t)
    A(f"v_mul_f32 v{MU}, {hex(f32bits(CSCALE))}, v{RSTD}\nv_and_b32 v{SUM}, 15, v0\nv_lshlrev_b32 v{SUM}, 2, v{SUM}")
    A("s_branch K1_START2_G")

    def epilogue_ops(ty, acc, store_flags=store_flags):
        ops = []
        blk = lambda nb, t: acc + (nb*4 + t)*4
        oq = 0
        def store(q, vo, off, so=sOB): return f"buffer_store_dwordx4 {vr(OUT+4*q,4)}, v{vo}, s[{S_OUT}:{S_OUT+3}], s{so} offen offset:{off}{store_flags}"
        if ty in 'QK':
            for pr in range(2):
                for t in range(4):
                    for h in range(2):
                        b = blk(2*pr+h, t)
                        if ty == 'Q':
                            for i in range(4): ops.append(f"v_mul_f32 v{b+i}, v{b+i}, v{SC+t}")
                        ops.append(f"v_cvt_pk_bf16_f32 v{OUT+4*oq+2*h}, v{b}, v{b+1}")
                        ops.append(f"v_cvt_pk_bf16_f32 v{OUT+4*oq+2*h+1}, v{b+2}, v{b+3}")
                    ops.append(store(oq, VO+t, pr*1024) if ty == 'K' else store(oq, VO+t, 0, sOB2 if pr else sOB)); oq = (oq+1) % 3
        elif ty == 'V':
            for nb in range(4):
                for v in range(2):
                    for h in range(2):
                        b = blk(nb, 2*v+h)
                        ops.append(f"v_cvt_pk_bf16_f32 v{OUT+4*oq+2*h}, v{b}, v{b+1}")
                        ops.append(f"v_cvt_pk_bf16_f32 v{OUT+4*oq+2*h+1}, v{b+2}, v{b+3}")
                    ops.append(store(oq, VO+v, nb*1024)); oq = (oq+1) % 3
        else:
            for t in range(4):
                for h in range(2):
                    g = blk(h, t); u = blk(h+2, t)
                    for i in range(4): ops.append(f"v_max_f32 v{g+i}, 0, v{g+i}")
                    for i in range(4): ops.append(f"v_mul_f32 v{u+i}, v{u+i}, v{SC+t}")
                    for i in range(4): ops.append(f"v_mul_f32 v{g+i}, v{g+i}, v{u+i}")
                    ops.append(f"v_cvt_pk_bf16_f32 v{OUT+4*oq+2*h}, v{g}, v{g+1}")
                    ops.append(f"v_cvt_pk_bf16_f32 v{OUT+4*oq+2*h+1}, v{g+2}, v{g+3}")
                ops.append(store(oq, VO+t, 0)); oq = (oq+1) % 3
        return ops

    def ob_calc(ty, su_reg_delta):
        o = [f"s_add_u32 s{sT1}, s{sSU}, {su_reg_delta}"] if su_reg_delta >= 0 else [f"s_sub_u32 s{sT1}, s{sSU}, {-su_reg_delta}"]
        if ty in 'GQ':
            o += [f"s_lshl_b32 s{sT1}, s{sT1}, {12 if ty == 'G' else 13}", f"s_add_u32 s{sOB}, s{sOBASE}, s{sT1}"]
            if ty == 'Q': o.append(f"s_add_u32 s{sOB2}, s{sOB}, 4096")
        else:
            hs = 19 if ty == 'Q' else 20
            ls = 12 if ty == 'V' else 11
            o += [f"s_lshr_b32 s{sOB}, s{sT1}, 1", f"s_lshl_b32 s{sOB}, s{sOB}, {hs}", f"s_and_b32 s{sT1}, s{sT1}, 1", f"s_lshl_b32 s{sT1}, s{sT1}, {ls}",
                  f"s_add_u32 s{sOB}, s{sOB}, s{sT1}", f"s_add_u32 s{sOB}, s{sOB}, s{sOBASE}"]
        return o

    def trreads(fi, nb, slot_in_half, ks):
        off = slot_in_half*16384 + ks*4096
        return [f"ds_read_b64_tr_b16 {vr(WF+4*fi,2)}, v{TRA+2*nb} offset:{off}",
                f"ds_read_b64_tr_b16 {vr(WF+4*fi+2,2)}, v{TRA+2*nb+1} offset:{off}"]

    def c_round(r):
        return [[f"s_add_u32 m0, s{sSTG}, {98304 + (r%2)*32768 + j*1024}", f"s_add_u32 s{sT0}, s{sRQ+r//2}, {j*8192 + (r%2)*128}",
                 f"buffer_load_dwordx4 v{T+(j&1)}, s[{S_ACT}:{S_ACT+3}], s{sT0} offen lds"] for j in range(8)]
    def c_reads(r):
        return [f"ds_read_b128 {ar((t*16+2*r+k2)*4, 4)}, v{T+2+k2} offset:{(r%2)*32768 + t*2048}" for t in range(4) for k2 in range(2)]

    def body(ty, par, first=False, vms=None, A=A):
        acc = ACC[par]; old = ACC[1-par]
        cs, ss, _ = dma_consts(ty)
        gaps = {}
        def G(q, m): return gaps.setdefault((q, m), {'mem': [], 'other': []})
        def room(q, m):
            g = G(q, m); return 2 - len(g['mem']) - len(g['other'])
        prew = {}
        if LGK:
            for q in range(4):
                for grp in range(1, 16, 2): G(q, grp*4 + 2)['other'].append("s_waitcnt lgkmcnt(10)")
        if not first:
            epi = epilogue_ops(ty, old)
            if ty == 'G' and par == 1:
                ex = [x[0] for x in xcst] + [f"buffer_store_dword v{MU}, v{SUM}, s[{S_XC}:{S_XC+3}], s{sSCQ} offen sc1", f"s_cmp_lg_u32 s{S_XC+2}, 0\ns_cselect_b32 s{sXS}, 1, s{sXS}\ns_mov_b32 s{S_XC+2}, 0"]
                e2 = []
                for k, x in enumerate(epi):
                    e2.append(x)
                    if k % 4 == 3 and ex: e2.append(ex.pop(0))
                epi = e2 + ex
            for q in range(4):
                G(q, 0)['other'] += [f"s_waitcnt vmcnt({vms[q]})", "s_barrier"]
                if ty == 'G' and par == 0 and q == 3: G(q, 1)['other'] += [f"s_cmp_eq_u32 s{sXS}, 1\ns_cbranch_scc1 K1_XSIG\nK1_XSIG_B:"]
                tgt = (4*par + q + 7) % 8
                trip = dma_slot(ty, 1 if q == 0 else 2, (q+3) % 4, tgt)
                if q == 1:
                    G(q, 1)['other'] += [f"s_add_u32 s{sT1}, s{sSU}, 2", f"s_cmp_ge_u32 s{sT1}, s{sEND2}"]
                    G(q, 2)['other'] += [f"s_cselect_b32 s{S_WA+2}, 0, s{S_WA+2}", f"s_cselect_b32 s{S_WB+2}, 0, s{S_WB+2}"]
                for j, tr in enumerate(trip):
                    m = 8 + 12*j + 1
                    G(q, m)['other'] += tr[:2]
                    G(q, m+1)['mem'] += [tr[2]]
            oc = ob_calc(ty, -1)
            pos = [(0,1),(0,2),(0,4),(0,5)]
            k = 0
            for p in pos:
                while room(*p) > 0 and k < len(oc): G(*p)['other'].append(oc[k]); k += 1
            assert k == len(oc)
        for nb in range(4):
            m = 16 + 4*nb + 4
            G(3, m)['other'] += [f"v_xor_b32 v{TRA+2*nb}, 0x10000, v{TRA+2*nb}", f"v_xor_b32 v{TRA+2*nb+1}, 0x10000, v{TRA+2*nb+1}"]
        if not first:
            slots = [(q, m) for q in range(4) for m in range(64) if m % 4 != 3 and (q, m) >= (0, 6)]
            cap = [(s_, room(*s_)) for s_ in slots]
            tot = sum(c for _, c in cap)
            step = max(1.0, 0.8*tot/len(epi))
            flat = [s_ for s_, c in cap for _ in range(c)]
            idx = 0.0
            for op in epi:
                s_ = flat[int(idx)]
                if op.startswith('buffer_store'):
                    i2 = int(idx)
                    while True:
                        s_ = flat[i2]
                        g = G(*s_)
                        if not g['mem'] and not g['other']: break
                        i2 += 1
                    idx = max(idx, i2)
                    G(*s_)['mem'].append(op)
                else:
                    G(*s_)['other'].append(op)
                idx += step
        else:
            seq = ['R0']*8 + ['W0']*4 + ['R1']*8 + ['W1']*4
            def vm(tag): return len(seq) - 1 - max(i for i, e in enumerate(seq) if e == tag)
            def put_triples(q, m0, trips, tag):
                m = m0
                for tr in trips:
                    G(q, m)['other'] += tr[:2]
                    m2 = m + 1 if (m + 1) % 4 != 3 else m + 2
                    G(q, m2)['mem'].append(tr[2]); seq.append(tag)
                    m = m2
                    if len(G(q, m)['other']) >= 1 or True:
                        pass
                return m
            for h in range(8):
                q = h // 2; base = 32*(h % 2)
                if h >= 1: prew[(q, base)] = ["s_waitcnt lgkmcnt(2)"]
                need = None
                if h == 1: need = 'W1'
                elif h in (2, 4, 6): need = f'W{q+1}'
                if need: G(q, base)['other'] += [f"s_waitcnt vmcnt({vm(need)})", "s_barrier"]
                if h == 7: G(q, base)['other'] += ["s_barrier"]
                if HST and h in (2, 4, 6): G(q, base)['other'].append(f"s_memrealtime s[{64+2*(2+h//2)}:{65+2*(2+h//2)}]")
                m = base + 1
                if h + 2 <= 7: m = put_triples(q, m, c_round(h+2), f'R{h+2}')
                if WEARLY:
                    if h <= 1:
                        for n in (2*h+2, 2*h+3): m = put_triples(q, m, dma_slot(ty, n//4, n % 4, n), f'W{n}')
                elif h <= 3: m = put_triples(q, m, dma_slot(ty, (h+2)//4, (h+2) % 4, h+2), f'W{h+2}')
                if h == 7:
                    for n in range(6, 11): m = put_triples(q, m, dma_slot(ty, n//4, n % 4, n % 8), f'W{n}')
                    assert m <= 60, m
                if h == 4 and KV_TOUCH:
                    to = touch_ops(ty)
                    for k, x in enumerate(to):
                        if x.startswith('buffer'): seq.append('T')
                        G(q, base + 16 + (k//4)*1 + (1 if (base+16+(k//4)) % 4 == 3 else 0))['other'].append(x)
                if h + 1 <= 7:
                    mm = base + 24
                    prew[(q, mm)] = [f"s_waitcnt vmcnt({vm(f'R{h+1}')})"]
                    rds = c_reads(h+1)
                    for k, p in enumerate((mm, mm+1, mm+2, mm+4)):
                        G(q, p)['mem'] += rds[2*k:2*k+2]
        if ty == 'V':
            G(3, 56)['other'] += [f"s_add_u32 s{sT1}, s{sSU}, 3", f"s_cmp_eq_u32 s{sT1}, s{sEND}", f"s_cselect_b32 s{sIA}, s{sHD}, {cs}"]
            G(3, 57)['other'] += [f"s_add_u32 s{sT1}, s{sSU}, 2", f"s_cmp_eq_u32 s{sT1}, s{sEND}", f"s_cselect_b32 s{sIB}, s{sHD}, {cs}"]
            ia, ib = f"s{sIA}", f"s{sIB}"
        else: ia = ib = f"{cs}"
        G(3, 60)['other'] += [f"s_add_u32 s{sDQ}, s{sDQ}, {ia}", f"s_add_u32 s{sDQ+1}, s{sDQ+1}, {ia}"]
        G(3, 61)['other'] += [f"s_add_u32 s{sDQ+2}, s{sDQ+2}, {ia}", f"s_add_u32 s{sDQ+3}, s{sDQ+3}, {ib}", f"s_add_u32 s{sSU}, s{sSU}, 1"]
        G(3, 62)['other'] += [f"s_mov_b32 s{S_OUT+2}, {0 if NOST else WS_USED}", f"s_cmp_ge_u32 s{sSU}, s{sEND}"]
        for q in range(4):
            for ks in range(4):
                for nb in range(4):
                    fi = (ks % 2)*4 + nb
                    grp = ks*4 + nb
                    if grp % 2 == 0 and not LGK: A("s_waitcnt lgkmcnt(12)")
                    for t in range(4):
                        m = grp*4 + t
                        for x in prew.get((q, m), []): A(x)
                        d = acc + (nb*4+t)*4
                        kk = q*4 + ks
                        c = "0" if kk == 0 else vr(d, 4)
                        w = vr(WF+4*fi, 4); a = ar((t*16+kk)*4, 4)
                        A(f"{MF} {vr(d,4)}, {a}, {w}, {c}" if ty == 'V' else f"{MF} {vr(d,4)}, {w}, {a}, {c}")
                        if t == 3:
                            if ks < 2: rd = trreads(fi, nb, q, ks+2)
                            else: rd = trreads(fi, nb, (q+1) % 4, ks-2)
                            for x in rd: A(x)
                        g = G(q, m)
                        for x in g['mem']: A(x)
                        for x in g['other']: A(x)

    def vm_table(ty):
        tmp = Asm(); body(ty, 0, vms=[0]*4, A=tmp)
        pat = []; q = -1
        for l in tmp.lines:
            if l == 's_barrier': q += 1; pat.append(('bar', q))
            elif l.startswith('buffer_load'): pat.append(('dma', q))
            elif l.startswith('buffer_store'): pat.append(('st', q))
        if ty in 'KV': seq = [5]*4 + [n for n in range(6, 11) for _ in range(4)]; c0 = 1
        else: seq = [n for n in range(4, 7) for _ in range(4)]; c0 = 0
        tab = {}
        for c in range(c0, 8):
            tab[c] = [0]*4
            for kind, q in pat:
                if kind == 'bar':
                    need = 4*c + q + 1
                    idx = [i for i, e in enumerate(seq) if e == need]
                    tab[c][q] = min(63, len(seq) - 1 - max(idx)) if idx else 63
                    if not EXACT: tab[c][q] = 20
                elif kind == 'dma': seq.append(4*c + q + 7)
                else: seq.append('s')
        return tab

    for ty in 'KVG':
        VN = vm_table(ty)
        if ty in 'KV':
            A.label(f"K1_PRO_{ty}")
            if ACT_TOUCH: act_touch()
            A(f"v_lshrrev_b32 v4, 3, v0\nv_and_b32 v5, 7, v0\nv_lshrrev_b32 v6, 4, v0\nv_xor_b32 v5, v5, v6")
            A(f"v_lshlrev_b32 v4, 10, v4\nv_lshl_add_u32 v{T}, v5, 4, v4\nv_xor_b32 v{T+1}, 64, v{T}")
            for it in c_round(0) + dma_slot(ty, 0, 0, 0) + c_round(1) + dma_slot(ty, 0, 1, 1):
                for x in it: A(x)
            A(f"v_and_b32 v4, 15, v0\nv_lshrrev_b32 v5, 1, v4\nv_xor_b32 v5, v5, v1\nv_lshlrev_b32 v4, 7, v4\nv_lshl_add_u32 v4, v5, 4, v4")
            A(f"s_add_u32 s{sT1}, s{sSTG}, 98304\nv_add_u32 v{T+2}, s{sT1}, v4\nv_xor_b32 v{T+3}, 64, v{T+2}")
            A("s_waitcnt vmcnt(12)\ns_barrier")
            for x in c_reads(0): A(x)
            for ks in range(2):
                for nb in range(4):
                    for x in trreads(ks*4+nb, nb, 0, ks): A(x)
            A("s_waitcnt lgkmcnt(12)")
            body(ty, 0, first=True)
            body(ty, 1, vms=VN[1])
            if CODE_TOUCH2: code_touch(A, "K1_FIN", "K2_END", sW, 0, DUM+1, 80)
            if WQ_TOUCH:
                A(f"s_mov_b32 s4, s{P_WQ}\ns_mov_b32 s5, s{P_WQ+1}\ns_mov_b32 s6, {512*8192}\ns_mov_b32 s7, 0x00020000")
                A(f"s_sub_u32 s{sT1}, s{sCG}, {11 if PART == 'A' else 10}\ns_lshl_b32 s{sT1}, s{sT1}, 3\ns_add_u32 s{sT1}, s{sT1}, s{sTB}\ns_mul_i32 s{sT1}, s{sT1}, {196*128}\ns_min_u32 s{sT0}, s{sW}, 3\ns_lshl_b32 s{sT0}, s{sT0}, 13\ns_add_u32 s{sT1}, s{sT1}, s{sT0}")
                A(f"v_lshlrev_b32 v4, 7, v0\nbuffer_load_dword v{DUM}, v4, s[4:7], s{sT1} offen")
            A(f"s_branch K1_LOOP_{ty}")
        else:
            A.label(f"K1_START2_{ty}")
            if W_TOUCH:
                for x in touch_ops(ty): A(x)
            if ty == 'Q':
                for t in range(4): A(f"v_mul_f32 v{SC+t}, {hex(f32bits(CSCALE))}, v{RSTD+t}")
            if ty == 'G':
                for t in range(4): A(f"v_mul_f32 v{SC+t}, v{RSTD+t}, v{RSTD+t}")
            A(f"s_waitcnt vmcnt({14 if W_TOUCH else 12})\ns_barrier")
            for ks in range(2):
                for nb in range(4):
                    for x in trreads(ks*4+nb, nb, 0, ks): A(x)
            A("s_waitcnt lgkmcnt(12)")
        A(".p2align 6")
        A.label(f"K1_LOOP_{ty}")
        c0 = 2 if ty in 'KV' else 0
        v0_ = [min(VN[c][q] for c in range(c0, 8, 2)) for q in range(4)]
        if ty == 'G':
            t1 = Asm(); body(ty, 1, vms=[0]*4, A=t1); t0 = Asm(); body(ty, 0, vms=[0]*4, A=t0)
            vm1 = [l for l in t1.lines if l.startswith('buffer')]
            last = max(i for i, l in enumerate(vm1) if f"s[{S_XC}:{S_XC+3}]" in l)
            nb_ = [i for i, l in enumerate(t0.lines) if l == 's_barrier'][3]
            cnt = len(vm1) - 1 - last + sum(1 for l in t0.lines[:nb_] if l.startswith('buffer'))
            v0_[3] = min(v0_[3], cnt); print("XC signal wait", cnt, v0_)
        body(ty, 0, vms=v0_)
        A(f"s_cbranch_scc1 K1_DRAIN0_{ty}")
        body(ty, 1, vms=[min(VN[c][q] for c in range(c0+1, 8, 2)) for q in range(4)])
        A(f"s_cbranch_scc0 K1_LOOP_{ty}")
        for par in (1, 0):
            A.label(f"K1_DRAIN{par}_{ty}")
            if ty == 'V' and par == 1: A(f"s_cmp_lg_u32 s{sEND}, s{sEND2}\ns_cbranch_scc1 K1_HALF_V")
            A(f"s_mov_b32 s80, s78\ns_mov_b32 s81, s79\ns_mov_b32 s82, 256\ns_mov_b32 s83, 0x00020000\nv_and_b32 v{DUM}, 7, v0\nv_lshlrev_b32 v{DUM}, 2, v{DUM}\nbuffer_load_dword v{DUM+1}, v{DUM}, s[80:83], 0 offen offset:64 sc1")
            for x in ob_calc(ty, -1): A(x)
            A("s_nop 1")
            if WBL2: A(f"s_cmp_lg_u32 s{sW}, 0\ns_cbranch_scc1 K1_NOWB{par}_{ty}\nbuffer_wbl2 sc1\nK1_NOWB{par}_{ty}:")
            for x in epilogue_ops(ty, ACC[par], (' ' + SFD) if SFD else ''): A(x)
            A(f"s_waitcnt vmcnt({4 if ty == 'G' else 8}) lgkmcnt(0)\ns_branch K1_FIN")
    A.label("K1_XSIG")
    A(f"s_mov_b32 s{sXS}, 0\ns_cmp_lg_u32 s{sW}, 0\ns_cbranch_scc1 K1_XSIG_B")
    A(f"s_mov_b32 s80, s78\ns_mov_b32 s81, s79\ns_mov_b32 s82, 256\ns_mov_b32 s83, 0x00020000\ns_lshl_b32 s{sT1}, s{sTB}, 2\nv_mov_b32 v{DUM}, s{sT1}\nv_mov_b32 v{DUM+1}, 1")
    A(f"s_mov_b64 exec, 1\nbuffer_atomic_add v{DUM+1}, v{DUM}, s[80:83], 0 offen offset:64 sc1\ns_mov_b64 exec, -1\ns_branch K1_XSIG_B")
    A.label("K1_HALF_V")
    epi = ob_calc('V', -1) + epilogue_ops('V', ACC[1])
    A("s_waitcnt vmcnt(12)")
    k = 0
    for q in range(4):
        for ks in range(4):
            A("s_waitcnt lgkmcnt(4)")
            for nb in range(2):
                fi = (ks % 2)*4 + nb
                for t in range(4):
                    d = ACC[0] + (nb*4+t)*4; kk = q*4 + ks
                    A(f"{MF} {vr(d,4)}, {ar((t*16+kk)*4,4)}, {vr(WF+4*fi,4)}, {'0' if kk == 0 else vr(d,4)}")
                    if kk == 0 and nb == 0 and t == 0: A("s_barrier")
                    if t == 3 and kk < 14:
                        for x in (trreads(fi, nb, q, ks+2) if ks < 2 else trreads(fi, nb, q+1, ks-2)): A(x)
                    elif t < 3 and kk >= 1 and k < len(epi):
                        A(epi[k]); k += 1
    assert k == len(epi), (k, len(epi))
    A(f"s_mov_b32 s80, s78\ns_mov_b32 s81, s79\ns_mov_b32 s82, 256\ns_mov_b32 s83, 0x00020000\nv_and_b32 v{DUM}, 7, v0\nv_lshlrev_b32 v{DUM}, 2, v{DUM}\nbuffer_load_dword v{DUM+1}, v{DUM}, s[80:83], 0 offen offset:64 sc1")
    A(f"s_add_u32 s{sOB}, s{sOBH}, s{sOBASE}\ns_nop 4")
    for x in epilogue_ops('V', ACC[0])[:20]: A(x)
    A("s_waitcnt vmcnt(4) lgkmcnt(0)")
    A.label("K1_FIN")
    stamp(A, 1)
    return dict(sW=sW, XP=DUM+1, XO=DUM)
```

```python
from asmlib import *
import asmlib
import math

import os
ACT_TOUCH = os.environ.get('ACT_TOUCH', '0') == '1'
W_TOUCH = os.environ.get('W_TOUCH', '1') == '1'
XFIRST = os.environ.get('XFIRST', '1') == '1'
KV_TOUCH = os.environ.get('KV_TOUCH', '0') == '1'
NOST = os.environ.get('NOST', '0') == '1'
SFD = os.environ.get('SFD', 'sc1')
WBL2 = os.environ.get('WBL2', '0') == '1'
HST = os.environ.get('HST', '0') == '1'
WEARLY = os.environ.get('WEARLY', '0') == '1'
WQ_TOUCH = os.environ.get('WQ_TOUCH', '1') == '1'
CODE_TOUCH = os.environ.get('CODE_TOUCH', '1') == '1'
CODE_TOUCH2 = os.environ.get('CODE_TOUCH2', '1') == '1'
XSP = os.environ.get('XSP', '1') == '1'
PART = os.environ.get('PART', 'A')
XORD = os.environ.get('XORD', '0') == '1'
LGK = os.environ.get('LGK', '1') == '1'
EXACT = os.environ.get('EXACT', '1') == '1'
ROT = os.environ.get('ROT', '1') == '1'
WS_OFF = int(os.environ.get('WS_OFF', '0')) << 20
KV_BASE = WS_OFF + (1 << 20)
A3_BASE = WS_OFF + (33 << 20)
A3_TB64 = 171 * 4096
XC_BASE = WS_OFF + (56 << 20)
SCQ_BASE = WS_OFF + (58 << 20)
WS_USED = WS_OFF + (59 << 20)
MF = "v_mfma_f32_16x16x32_bf16"
CSCALE = math.log2(math.e) / math.sqrt(128.0)

def f32bits(x):
    import struct
    return struct.unpack('<I', struct.pack('<f', x))[0]

def gen_k1(A, store_flags=""):
    ACC = [8, 72]; WF = 136; TRA = 168; VW = 176; VO = 178; OUT = 184; SC = 196; RSTD = 200; T = 204; GR = 216; SUM = 232; ONESV = 240; MU = 244; DUM = 245; VLN = 247
    S_ACT, S_WA, S_WB, S_OUT = 8, 12, 16, 20
    sW, sTB, sCG, sSU, sEND, sDMA, sOB, sM0, sT0, sT1, sTYPE, sJOB2, sOBASE = 24, 25, 26, 27, 28, 29, 30, 31, 32, 33, 34, 35, 36
    sONES, sSLO, sSHI = 37, 38, 39
    P_X, P_CKV, P_WQ, P_WUK, P_WUV, P_WG, P_WU, P_WS = 40, 42, 44, 46, 48, 50, 52, 54
    sSTG = 56
    sROW = 57
    sEX2, sEX, sMK, sDQ, sROT, sOB2 = 58, 84, 88, 96, 62, 63
    S_XC = 4; sXQ = 44; sSCQ = 48; sEND2 = sJOB2; sHD = 100; sOBH = 101; sIA = 38; sIB = 39
    sRQ = sEX; sXR = 40

    A(".globl k1_kernel\n.p2align 8\n.type k1_kernel,@function")
    A.label("k1_kernel")
    A("s_cmp_ge_u32 s2, 256\ns_cbranch_scc1 K1_END")
    stamp(A, 0)
    A(f"s_load_dwordx4 s[{P_X}:{P_X+3}], s[0:1], 0")
    A(f"s_load_dwordx4 s[{P_WQ}:{P_WQ+3}], s[0:1], 16")
    A(f"s_load_dwordx2 s[{P_WUV}:{P_WUV+1}], s[0:1], 32")
    A(f"s_load_dwordx2 s[{P_WG}:{P_WG+1}], s[0:1], 56")
    A(f"s_load_dwordx2 s[{P_WU}:{P_WU+1}], s[0:1], 64")
    A(f"s_load_dwordx2 s[{P_WS}:{P_WS+1}], s[0:1], 96")
    A(f"v_lshrrev_b32 v1, 6, v0\nv_and_b32 v0, 63, v0\ns_nop 0\nv_readfirstlane_b32 s{sW}, v1")
    A(f"s_and_b32 s{sT0}, s2, 7\ns_lshr_b32 s{sT1}, s2, 3\ns_and_b32 s{sTB}, s{sT1}, 7\ns_lshr_b32 s{sT1}, s{sT1}, 3")
    A(f"s_lshl_b32 s{sCG}, s{sT0}, 2\ns_add_u32 s{sCG}, s{sCG}, s{sT1}")
    A(f"s_mov_b32 s{sONES}, 0x3f803f80\ns_mov_b32 s{sSLO}, 0x00003f80\ns_mov_b32 s{sSHI}, 0x3f800000")
    A(f"s_lshl_b32 s{sSTG}, s{sW}, 13")
    A(f"s_lshl_b32 s{sROW}, s{sTB}, 18\ns_lshl_b32 s{sT0}, s{sW}, 16\ns_add_u32 s{sROW}, s{sROW}, s{sT0}")
    for r in (S_ACT, S_WA, S_WB, S_OUT): A(f"s_mov_b32 s{r+3}, 0x00020000")
    A(f"s_mov_b32 s{S_ACT+2}, 0x200000")
    if CODE_TOUCH: code_touch(A, "k1_kernel", "K1_END", sW, 0, DUM, 80)
    A("s_waitcnt lgkmcnt(0)")
    A(f"s_mov_b32 s{S_OUT}, s{P_WS}\ns_mov_b32 s{S_OUT+1}, s{P_WS+1}\ns_mov_b32 s{S_OUT+2}, 0")
    if PART == 'A':
        A(f"s_cmp_ge_u32 s{sCG}, 11\ns_cbranch_scc1 K1_DISP_C")
        A(f"s_mov_b32 s{S_ACT}, s{P_X}\ns_mov_b32 s{S_ACT+1}, s{P_X+1}")
        A(f"s_lshl_b32 s{sSU}, s{sCG}, 2\ns_add_u32 s{sEND}, s{sSU}, 4\ns_min_u32 s{sEND}, s{sEND}, 43\ns_mov_b32 s{sEND2}, s{sEND}\ns_branch K1_SETUP_G")
        A.label("K1_DISP_C")
        A(f"s_mov_b32 s{S_ACT}, s{P_CKV}\ns_mov_b32 s{S_ACT+1}, s{P_CKV+1}")
        A(f"s_cmp_ge_u32 s{sCG}, 22\ns_cbranch_scc1 K1_DISP_V")
        A(f"s_sub_u32 s{sT1}, s{sCG}, 11\ns_min_u32 s{sT0}, s{sT1}, 9\ns_mul_i32 s{sSU}, s{sT1}, 5\ns_add_u32 s{sSU}, s{sSU}, s{sT0}\ns_cmp_lt_u32 s{sT1}, 9\ns_cselect_b32 s{sT0}, 6, 5\ns_add_u32 s{sEND}, s{sSU}, s{sT0}\ns_mov_b32 s{sEND2}, s{sEND}\ns_branch K1_SETUP_K")
        A.label("K1_DISP_V")
        A(f"s_sub_u32 s{sT1}, s{sCG}, 22\ns_mul_i32 s{sSU}, s{sT1}, 6\ns_add_u32 s{sEND}, s{sSU}, 6\ns_cmp_lt_u32 s{sT1}, 8\ns_cselect_b32 s{sT0}, 1, 0\ns_add_u32 s{sEND2}, s{sEND}, s{sT0}")
        A(f"s_lshl_b32 s{sHD}, s{sT1}, 6\ns_add_u32 s{sHD}, s{sHD}, {61*128}\ns_lshl_b32 s{sT0}, s{sEND}, 7\ns_sub_u32 s{sHD}, s{sHD}, s{sT0}")
        A(f"s_lshl_b32 s{sT0}, s{sT1}, 1\ns_add_u32 s{sT0}, s{sT0}, 240\ns_lshr_b32 s{sOBH}, s{sT0}, 3\ns_lshl_b32 s{sOBH}, s{sOBH}, 20\ns_and_b32 s{sT0}, s{sT0}, 7\ns_lshl_b32 s{sT0}, s{sT0}, 10\ns_add_u32 s{sOBH}, s{sOBH}, s{sT0}\ns_branch K1_SETUP_V")

    else:
        A(f"s_cmp_ge_u32 s{sCG}, 10\ns_cbranch_scc1 K1_DISP_C")
        A(f"s_mov_b32 s{S_ACT}, s{P_X}\ns_mov_b32 s{S_ACT+1}, s{P_X+1}")
        A(f"s_min_u32 s{sT0}, s{sCG}, 3\ns_lshl_b32 s{sSU}, s{sCG}, 2\ns_add_u32 s{sSU}, s{sSU}, s{sT0}\ns_cmp_lt_u32 s{sCG}, 3\ns_cselect_b32 s{sT0}, 5, 4\ns_add_u32 s{sEND}, s{sSU}, s{sT0}\ns_mov_b32 s{sEND2}, s{sEND}\ns_branch K1_SETUP_G")
        A.label("K1_DISP_C")
        A(f"s_mov_b32 s{S_ACT}, s{P_CKV}\ns_mov_b32 s{S_ACT+1}, s{P_CKV+1}\ns_mov_b32 s{sHD}, 128\ns_mov_b32 s{sOBH}, 0")
        A(f"s_cmp_ge_u32 s{sCG}, 21\ns_cselect_b32 s{sT0}, 21, 10\ns_sub_u32 s{sT1}, s{sCG}, s{sT0}")
        A(f"s_min_u32 s{sT0}, s{sT1}, 9\ns_mul_i32 s{sSU}, s{sT1}, 5\ns_add_u32 s{sSU}, s{sSU}, s{sT0}\ns_cmp_lt_u32 s{sT1}, 9\ns_cselect_b32 s{sT0}, 6, 5\ns_add_u32 s{sEND}, s{sSU}, s{sT0}\ns_mov_b32 s{sEND2}, s{sEND}")
        A(f"s_cmp_ge_u32 s{sCG}, 21\ns_cbranch_scc1 K1_SETUP_V\ns_branch K1_SETUP_K")

    def dma_consts(ty):
        if ty == 'G':
            return 64, 128*2752, [(S_WA, 0, 0), (S_WA, 0, 16*2752), (S_WB, 0, 0), (S_WB, 0, 16*2752)]
        return 128, 128*8192, [(S_WA, 0, 0), (S_WA, 1, 8*8192), (S_WA, 0, 16*8192), (S_WA, 1, 24*8192)]

    def dma_slot(ty, su_rel, q, ringslot):
        cs, ss, pieces = dma_consts(ty)
        out = []
        for j, (srd, vi, ex) in enumerate(pieces):
            out.append([f"s_add_u32 m0, s{sM0}, {ringslot*16384 + j*1024}",
                        f"s_add_u32 s{sT0}, s{sDQ+q}, {su_rel*cs + ex}",
                        f"buffer_load_dwordx4 v{VW+vi}, s[{srd}:{srd+3}], s{sT0} offen lds"])
        return out

    def setup(ty):
        A.label(f"K1_SETUP_{ty}")
        ptr = {'Q': P_WQ, 'K': P_WUK, 'V': P_WUV, 'G': P_WG}[ty]
        A(f"s_mov_b32 s{S_WA}, s{ptr}\ns_mov_b32 s{S_WA+1}, s{ptr+1}")
        pb = P_WU if ty == 'G' else ptr
        A(f"s_mov_b32 s{S_WB}, s{pb}\ns_mov_b32 s{S_WB+1}, s{pb+1}")
        wsz = 512*2752 if ty == 'G' else 512*8192
        A(f"s_mov_b32 s{S_WA+2}, {wsz}\ns_mov_b32 s{S_WB+2}, {wsz}")
        A(f"s_mov_b32 s{sTYPE}, {'QKVG'.index(ty)}")
        cs, ss, _ = dma_consts(ty)
        pitch = 2752 if ty == 'G' else 8192
        A(f"s_mul_i32 s{sDMA}, s{sSU}, {cs}\ns_mul_i32 s{sT0}, s{sW}, {32*pitch}\ns_add_u32 s{sDMA}, s{sDMA}, s{sT0}")
        A(f"s_lshl_b32 s{sM0}, s{sW}, 12")
        A(f"s_add_u32 s{sROT}, s{sCG}, s{sTB}\ns_and_b32 s{sROT}, s{sROT}, {3 if ROT else 0}")
        for q in range(4):
            A(f"s_add_u32 s{sT0}, s{sROT}, {q}\ns_and_b32 s{sT0}, s{sT0}, 3\ns_mul_i32 s{sT1}, s{sT0}, {ss}\ns_add_u32 s{sDQ+q}, s{sDMA}, s{sT1}")
            if ty in 'KV': A(f"s_lshl_b32 s{sT0}, s{sT0}, 8\ns_add_u32 s{sRQ+q}, s{sROW}, s{sT0}")
        if ty in 'QG':
            for j, (_, _, ex) in enumerate(dma_consts(ty)[2]): A(f"s_mov_b32 s{sEX+j}, {ex}\ns_mov_b32 s{sEX2+j}, {ex+cs}")
        A("v_lshrrev_b32 v1, 4, v0\nv_bfe_u32 v2, v0, 2, 2\nv_and_b32 v3, 3, v0")
        if ty != 'G':
            A("v_lshrrev_b32 v4, 3, v0\nv_and_b32 v5, 7, v0\nv_bfe_u32 v6, v0, 4, 1\nv_lshlrev_b32 v6, 1, v6\nv_xor_b32 v5, v5, v6")
            A(f"v_lshlrev_b32 v4, 13, v4\nv_lshl_add_u32 v{VW}, v5, 4, v4\nv_xor_b32 v{VW+1}, 64, v{VW}")
            A("v_lshrrev_b32 v4, 1, v2\nv_and_b32 v5, 1, v1\nv_lshl_add_u32 v4, v5, 1, v4")
            A("v_lshl_add_u32 v5, v1, 3, v2\nv_lshlrev_b32 v5, 7, v5\nv_lshl_add_u32 v5, v3, 3, v5")
            for nb in range(4):
                A(f"v_xor_b32 v6, {nb}, v4\nv_lshl_add_u32 v{TRA+2*nb}, v6, 5, v5\nv_add_u32 v{TRA+2*nb+1}, 512, v{TRA+2*nb}")
        else:
            A(f"v_lshrrev_b32 v4, 2, v0\nv_lshrrev_b32 v6, 5, v0\nv_lshlrev_b32 v6, 1, v6\nv_xor_b32 v5, v3, v6")
            A(f"v_mul_u32_u24 v4, 2752, v4\nv_lshl_add_u32 v{VW}, v5, 4, v4\nv_mov_b32 v{VW+1}, v{VW}")
            A("v_and_b32 v4, 1, v1")
            A("v_lshl_add_u32 v5, v1, 3, v2\nv_lshlrev_b32 v5, 6, v5\nv_lshl_add_u32 v5, v3, 3, v5")
            for nb in range(4):
                A(f"v_xor_b32 v6, {nb%2}, v4\nv_lshl_add_u32 v6, v6, 5, v5\nv_add_u32 v{TRA+2*nb}, {(nb//2)*2048}, v6\nv_add_u32 v{TRA+2*nb+1}, 256, v{TRA+2*nb}")
        A("v_lshlrev_b32 v4, 4, v0")
        if ty == 'Q':
            for t in range(4): A(f"s_add_u32 s{sT0}, s{sCG}, {t}\ns_and_b32 s{sT0}, s{sT0}, {3 if ROT else 0}\ns_lshl_b32 s{sT0}, s{sT0}, 10\nv_add_u32 v{VO+t}, s{sT0}, v4" if ROT else f"v_add_u32 v{VO+t}, {t*1024}, v4")
            A(f"s_lshl_b32 s{sT0}, s{sTB}, 2\ns_add_u32 s{sT0}, s{sT0}, s{sW}\ns_mul_i32 s{sOBASE}, s{sT0}, {A3_TB64}\ns_add_u32 s{sOBASE}, s{sOBASE}, {A3_BASE}")
        elif ty == 'K':
            for t in range(4): A(f"v_add_u32 v{VO+t}, {(t//2)*16384 + (t%2)*4096}, v4")
            A(f"s_lshl_b32 s{sOBASE}, s{sTB}, 17\ns_lshl_b32 s{sT0}, s{sW}, 15\ns_add_u32 s{sOBASE}, s{sOBASE}, s{sT0}\ns_add_u32 s{sOBASE}, s{sOBASE}, {KV_BASE}")
        elif ty == 'V':
            for t in range(4): A(f"v_add_u32 v{VO+t}, {(t%2)*16384}, v4")
            A(f"s_lshl_b32 s{sOBASE}, s{sTB}, 17\ns_lshl_b32 s{sT0}, s{sW}, 15\ns_add_u32 s{sOBASE}, s{sOBASE}, s{sT0}\ns_add_u32 s{sOBASE}, s{sOBASE}, {KV_BASE+8192}")
        else:
            for t in range(4): A(f"s_add_u32 s{sT0}, s{sCG}, {t}\ns_and_b32 s{sT0}, s{sT0}, {3 if ROT else 0}\ns_lshl_b32 s{sT0}, s{sT0}, 10\nv_add_u32 v{VO+t}, s{sT0}, v4" if ROT else f"v_add_u32 v{VO+t}, {t*1024}, v4")
            A(f"s_lshl_b32 s{sT0}, s{sTB}, 2\ns_add_u32 s{sT0}, s{sT0}, s{sW}\ns_mul_i32 s{sOBASE}, s{sT0}, {A3_TB64}\ns_add_u32 s{sOBASE}, s{sOBASE}, {A3_BASE + 128*4096}")
        A(f"s_mov_b32 s{S_OUT+2}, {0 if ty in 'QG' else WS_USED}")
        A(f"s_branch {'K1_STAGE_X' if ty in 'QG' else 'K1_PRO_' + ty}")

    for ty in 'KVG': setup(ty)

    def wpre(ty, slots):
        for q in slots:
            for tr in dma_slot(ty, q//4, q%4, q):
                for x in tr: A(x)

    def act_touch():
        A(f"s_lshl_b32 s{sT1}, s{sTB}, 18\ns_and_b32 s{sT0}, s{sCG}, 3\ns_lshl_b32 s{sT0}, s{sT0}, 16\ns_add_u32 s{sT1}, s{sT1}, s{sT0}\ns_lshl_b32 s{sT0}, s{sW}, 14\ns_add_u32 s{sT1}, s{sT1}, s{sT0}")
        A(f"v_lshrrev_b32 v4, 3, v0\nv_and_b32 v5, 7, v0\nv_lshlrev_b32 v4, 10, v4\nv_lshl_add_u32 v4, v5, 7, v4\ns_add_u32 s{sT0}, s{sT1}, 8192")
        A(f"buffer_load_dword v{DUM}, v4, s[{S_ACT}:{S_ACT+3}], s{sT1} offen\nbuffer_load_dword v{DUM+1}, v4, s[{S_ACT}:{S_ACT+3}], s{sT0} offen")

    def touch_ops(ty):
        pitch = 2752 if ty == 'G' else 8192
        cs, _, _ = dma_consts(ty)
        o = [f"s_lshl_b32 s{sT1}, s{sTB}, 2", f"s_add_u32 s{sT1}, s{sT1}, s{sW}", f"s_mul_i32 s{sT1}, s{sT1}, {16*pitch}", f"s_mul_i32 s{sT0}, s{sSU}, {cs}", f"s_add_u32 s{sT1}, s{sT1}, s{sT0}"]
        if ty == 'G':
            o += ["v_lshrrev_b32 v4, 2, v0", "v_and_b32 v5, 3, v0", "v_mul_u32_u24 v4, 2752, v4", f"v_add_u32 v4, s{sT1}, v4", "v_and_b32 v4, 0xffffff80, v4", "v_lshl_add_u32 v4, v5, 7, v4"]
            o += [f"buffer_load_dword v{DUM+j}, v4, s[{srd}:{srd+3}], 0 offen" for j, srd in enumerate((S_WA, S_WB))]
        else:
            o += ["v_lshrrev_b32 v4, 3, v0", "v_and_b32 v5, 7, v0", "v_lshlrev_b32 v4, 13, v4", "v_lshl_add_u32 v4, v5, 7, v4"]
            for j in range(2):
                o += [f"s_add_u32 s{sT0}, s{sT1}, {j*8*pitch}", f"buffer_load_dword v{DUM+j}, v4, s[{S_WA}:{S_WA+3}], s{sT0} offen"]
        return o

    BUF = [0, 1, 2, 3, 4, 2, 3, 4]
    A.label("K1_STAGE_X")
    A(f"s_mov_b32 s{S_XC}, s{P_WS}\ns_mov_b32 s{S_XC+1}, s{P_WS+1}\ns_mov_b32 s{S_XC+3}, 0x00020000\ns_cmp_ge_u32 s{sCG}, {7 if PART == 'A' else 6}\ns_cselect_b32 s{S_XC+2}, {WS_USED}, 0")
    A(f"s_lshl_b32 s{sT1}, s{sTB}, 4\ns_lshl_b32 s{sT0}, s{sW}, 2\ns_add_u32 s{sT1}, s{sT1}, s{sT0}\ns_and_b32 s{sT0}, s{sCG}, {3 if ROT else 0}\ns_add_u32 s{sT1}, s{sT1}, s{sT0}")
    A(f"s_lshl_b32 s{sSCQ}, s{sT1}, 6\ns_add_u32 s{sSCQ}, s{sSCQ}, {SCQ_BASE}\ns_lshl_b32 s{sT1}, s{sT1}, 14\ns_add_u32 s{sT1}, s{sT1}, {XC_BASE}")
    for q in range(4): A(f"s_add_u32 s{sT0}, s{sROT}, {q}\ns_and_b32 s{sT0}, s{sT0}, 3\ns_lshl_b32 s{sT0}, s{sT0}, 12\ns_add_u32 s{sXQ+q}, s{sT1}, s{sT0}")
    A(f"v_lshlrev_b32 v{VLN}, 4, v0")
    if ACT_TOUCH: act_touch()
    A(f"s_lshl_b32 s{sT0}, s{sROT}, 4\nv_add_u32 v{T}, s{sT0}, v0\nv_and_b32 v{T}, 63, v{T}\nv_lshlrev_b32 v{T}, 4, v{T}")
    for t in range(4):
        A(f"s_add_u32 s{sT0}, s{sCG}, {t}\ns_and_b32 s{sT0}, s{sT0}, 3\ns_lshl_b32 s{sT0}, s{sT0}, 14\ns_add_u32 s{sXR+t}, s{sROW}, s{sT0}" if ROT else f"s_add_u32 s{sXR+t}, s{sROW}, {t*16384}")
    def x_round(r):
        o = []
        for j in range(8):
            tok = (8*r + j) & 15
            o.append([f"v_xor_b32 v{T+1+(j&1)}, {tok*16}, v{T}", f"s_add_u32 m0, s{sSTG}, {BUF[r]*32768 + j*1024}", f"s_add_u32 s{sT0}, s{sXR+r//2}, {(8*(r%2)+j)*1024}",
                      f"buffer_load_dwordx4 v{T+1+(j&1)}, s[{S_ACT}:{S_ACT+3}], s{sT0} offen lds"])
        return o
    def gw_slot(n):
        o = []
        for j in range(4):
            srd = S_WA if j < 2 else S_WB
            it = [f"s_add_u32 m0, s{sM0}, {n*16384 + j*1024}", f"s_add_u32 s{sT0}, s{sDQ+n%4}, s{(sEX if n < 4 else sEX2)+j}", f"buffer_load_dwordx4 v{VW+(j&1)}, s[{srd}:{srd+3}], s{sT0} offen lds"]
            o.append(it)
        return o
    for r in range(2 if XORD else 4):
        for it in x_round(r):
            for x in it: A(x)
    stamp(A, 1)
    A(f"v_and_b32 v4, 15, v0\nv_and_b32 v5, 7, v0\nv_lshlrev_b32 v5, 10, v5\nv_and_b32 v6, 3, v0\nv_xor_b32 v6, v6, v1\nv_lshl_add_u32 v5, v6, 4, v5")
    A(f"v_add_u32 v5, s{sSTG}, v5\nv_lshrrev_b32 v6, 2, v4")
    for k in range(4):
        A(f"v_xor_b32 v7, {k}, v6\nv_lshl_add_u32 v{T+4+k}, v7, 6, v5")
    A(f"v_cmp_lt_u32 vcc, 7, v4")
    A(f"v_lshlrev_b32 v5, 2, v1\nv_sub_u32 v5, v4, v5")
    for i in range(4): A(f"v_cmp_eq_u32 s[{sMK+2*i}:{sMK+2*i+1}], {i}, v5")
    for i in range(4): A(f"v_mov_b32 v{ONESV+i}, s{sONES}")
    L = WF
    def x_read(t, vm):
        X = ACC[t % 2]
        ba, bb = BUF[2*t], BUF[2*t+1]
        o = [f"v_mov_b32 v2, {ba*32768}", f"v_mov_b32 v3, {bb*32768}", "v_cndmask_b32 v2, v2, v3, vcc"]
        o += [f"v_add_u32 v{T+8+k}, v2, v{T+4+k}" for k in range(4)]
        o.append(f"s_waitcnt vmcnt({vm})")
        o += [f"ds_read_b128 {vr(X+4*ks,4)}, v{T+8+(ks&3)} offset:{(ks&12)*64}" for ks in range(16)]
        return o
    def sumx(t):
        d = SUM + 4*(t % 2); X = ACC[t % 2]
        return [[f"{MF} {vr(d,4)}, {vr(ONESV,4)}, {vr(X+4*ks,4)}, {'0' if ks == 0 else vr(d,4)}"] for ks in range(16)]
    def gram(t):
        d = GR + 4*t
        return [[f"{MF} {vr(d,4)}, {ar((t*16+ks)*4,4)}, {ar((t*16+ks)*4,4)}, {'0' if ks == 0 else vr(d,4)}"] for ks in range(16)]
    def ln_stream(t):
        X = ACC[t % 2]; mu = MU
        o = [f"v_mul_f32 v{mu}, {hex(f32bits(-1.0/512))}, v{SUM+4*(t%2)}"]
        for b in range(16):
            tb_ = L + 8*(b % 2)
            for i in range(4):
                o.append(f"v_lshlrev_b32 v{tb_+2*i}, 16, v{X+4*b+i}"); o.append(f"v_and_b32 v{tb_+2*i+1}, 0xffff0000, v{X+4*b+i}")
            for i in range(8): o.append(f"v_add_f32 v{tb_+i}, v{tb_+i}, v{mu}")
            for i in range(4): o.append(f"v_cvt_pk_bf16_f32 v{X+4*b+i}, v{tb_+2*i}, v{tb_+2*i+1}")
            for i in range(4): o.append(f"v_accvgpr_write_b32 a{(t*16+b)*4+i}, v{X+4*b+i}")
        return o
    def interleave(main, sides):
        n = len(main)
        ins = {}
        for f0, f1, items in sides:
            for k, it in enumerate(items or []):
                p = int(n*(f0 + (f1-f0)*(k+0.5)/len(items)))
                ins.setdefault(p, []).extend(it)
        for i, x in enumerate(main):
            for y in ins.get(i, []): A(y)
            A(x)
    w03 = [it for n in range(4) for it in gw_slot(n)]
    if XORD:
        for x in x_read(0, 0): A(x)
        r23 = x_round(2) + x_round(3)
        for it in r23[:4]:
            for x in it: A(x)
        A("s_waitcnt lgkmcnt(0)")
        stamp(A, 2)
        for k, it in enumerate(sumx(0)):
            for x in it: A(x)
            if k < 12:
                for x in r23[4+k]: A(x)
        stamp(A, 3)
        interleave(ln_stream(0), [(0.01, 0.25, x_round(4)), (0.40, 0.41, [x_read(1, 8)]), (0.55, 0.56, [["s_waitcnt lgkmcnt(0)", "s_barrier"]]), (0.57, 0.8, x_round(5) + x_round(6)), (0.8, 0.99, w03), (0.6, 0.92, sumx(1))])
    else:
        for x in x_read(0, 16): A(x)
        A("s_waitcnt lgkmcnt(0)")
        stamp(A, 2)
        r4 = x_round(4)
        for k, it in enumerate(sumx(0)):
            for x in it: A(x)
            if k % 2 == 0:
                for x in r4[k//2]: A(x)
        for x in x_read(1, 8): A(x)
        stamp(A, 3)
        interleave(ln_stream(0), [(0.10, 0.11, [["s_waitcnt lgkmcnt(0)", "s_barrier"]]), (0.12, 0.45 if not XSP else 0.95, x_round(5) + x_round(6)), (0.45, 0.98, w03 if not XSP else []), (0.5, 0.9, sumx(1))])
    w46 = [it for n in range(4, 7) for it in gw_slot(n)]
    if XSP:
        for x in x_read(2, 8): A(x)
        stamp(A, 4)
        interleave(ln_stream(1), [(0.05, 0.45, gram(0)), (0.15, 0.16, [["s_waitcnt lgkmcnt(0)"]]), (0.17, 0.5, x_round(7)), (0.5, 0.98, w03[:8]), (0.5, 0.9, sumx(2))])
        for x in x_read(3, 8): A(x)
        interleave(ln_stream(2), [(0.05, 0.45, gram(1)), (0.02, 0.6, w03[8:]), (0.15, 0.16, [["s_waitcnt lgkmcnt(0)"]]), (0.62, 0.63, [["s_barrier"]]), (0.65, 0.98, w46[:4]), (0.5, 0.9, sumx(3))])
        w46 = w46[4:]
    else:
        for x in x_read(2, 24): A(x)
        stamp(A, 4)
        interleave(ln_stream(1), [(0.05, 0.45, gram(0)), (0.15, 0.16, [["s_waitcnt lgkmcnt(0)"]]), (0.17, 0.4, x_round(7)), (0.5, 0.9, sumx(2))])
        for x in x_read(3, 0): A(x)
        interleave(ln_stream(2), [(0.05, 0.45, gram(1)), (0.15, 0.16, [["s_waitcnt lgkmcnt(0)", "s_barrier"]]), (0.17, 0.7, w46), (0.5, 0.9, sumx(3))])
        w46 = []
    stamp(A, 5)
    xcst = [[f"buffer_store_dwordx4 {ar(b*4,4)}, v{VLN}, s[{S_XC}:{S_XC+3}], s{sXQ+b//4} offen offset:{(b%4)*1024} sc1"] for b in range(16)]
    interleave(ln_stream(3), [(0.05, 0.45, gram(2)), (0.05, 0.8, w46)])
    A("s_nop 1")
    for it in gram(3):
        for x in it: A(x)
    def extract(t):
        g = GR + 4*t; D, D2 = L, L+1
        A(f"v_cndmask_b32 v{D}, 0, v{g}, s[{sMK}:{sMK+1}]")
        for i in range(1, 4): A(f"v_cndmask_b32 v{D}, v{D}, v{g+i}, s[{sMK+2*i}:{sMK+2*i+1}]")
        A(f"v_mov_b32 v{D2}, v{D}\ns_nop 1\nv_permlane16_swap_b32 v{D}, v{D2}\nv_add_f32 v{D}, v{D}, v{D2}")
        A(f"v_mov_b32 v{D2}, v{D}\ns_nop 1\nv_permlane32_swap_b32 v{D}, v{D2}\nv_add_f32 v{D}, v{D}, v{D2}")
        A(f"v_mov_b32 v{D2}, {hex(f32bits(1e-5))}\nv_fmac_f32 v{D2}, {hex(f32bits(1.0/512))}, v{D}")
        A(f"v_rsq_f32 v{RSTD+t}, v{D2}")
    for t in range(4): extract(t)
    A(f"v_mul_f32 v{MU}, {hex(f32bits(CSCALE))}, v{RSTD}\nv_and_b32 v{SUM}, 15, v0\nv_lshlrev_b32 v{SUM}, 2, v{SUM}")
    A("s_branch K1_START2_G")

    def epilogue_ops(ty, acc, store_flags=store_flags):
        ops = []
        blk = lambda nb, t: acc + (nb*4 + t)*4
        oq = 0
        def store(q, vo, off, so=sOB): return f"buffer_store_dwordx4 {vr(OUT+4*q,4)}, v{vo}, s[{S_OUT}:{S_OUT+3}], s{so} offen offset:{off}{store_flags}"
        if ty in 'QK':
            for pr in range(2):
                for t in range(4):
                    for h in range(2):
                        b = blk(2*pr+h, t)
                        if ty == 'Q':
                            for i in range(4): ops.append(f"v_mul_f32 v{b+i}, v{b+i}, v{SC+t}")
                        ops.append(f"v_cvt_pk_bf16_f32 v{OUT+4*oq+2*h}, v{b}, v{b+1}")
                        ops.append(f"v_cvt_pk_bf16_f32 v{OUT+4*oq+2*h+1}, v{b+2}, v{b+3}")
                    ops.append(store(oq, VO+t, pr*1024) if ty == 'K' else store(oq, VO+t, 0, sOB2 if pr else sOB)); oq = (oq+1) % 3
        elif ty == 'V':
            for nb in range(4):
                for v in range(2):
                    for h in range(2):
                        b = blk(nb, 2*v+h)
                        ops.append(f"v_cvt_pk_bf16_f32 v{OUT+4*oq+2*h}, v{b}, v{b+1}")
                        ops.append(f"v_cvt_pk_bf16_f32 v{OUT+4*oq+2*h+1}, v{b+2}, v{b+3}")
                    ops.append(store(oq, VO+v, nb*1024)); oq = (oq+1) % 3
        else:
            for t in range(4):
                for h in range(2):
                    g = blk(h, t); u = blk(h+2, t)
                    for i in range(4): ops.append(f"v_max_f32 v{g+i}, 0, v{g+i}")
                    for i in range(4): ops.append(f"v_mul_f32 v{u+i}, v{u+i}, v{SC+t}")
                    for i in range(4): ops.append(f"v_mul_f32 v{g+i}, v{g+i}, v{u+i}")
                    ops.append(f"v_cvt_pk_bf16_f32 v{OUT+4*oq+2*h}, v{g}, v{g+1}")
                    ops.append(f"v_cvt_pk_bf16_f32 v{OUT+4*oq+2*h+1}, v{g+2}, v{g+3}")
                ops.append(store(oq, VO+t, 0)); oq = (oq+1) % 3
        return ops

    def ob_calc(ty, su_reg_delta):
        o = [f"s_add_u32 s{sT1}, s{sSU}, {su_reg_delta}"] if su_reg_delta >= 0 else [f"s_sub_u32 s{sT1}, s{sSU}, {-su_reg_delta}"]
        if ty in 'GQ':
            o += [f"s_lshl_b32 s{sT1}, s{sT1}, {12 if ty == 'G' else 13}", f"s_add_u32 s{sOB}, s{sOBASE}, s{sT1}"]
            if ty == 'Q': o.append(f"s_add_u32 s{sOB2}, s{sOB}, 4096")
        else:
            hs = 19 if ty == 'Q' else 20
            ls = 12 if ty == 'V' else 11
            o += [f"s_lshr_b32 s{sOB}, s{sT1}, 1", f"s_lshl_b32 s{sOB}, s{sOB}, {hs}", f"s_and_b32 s{sT1}, s{sT1}, 1", f"s_lshl_b32 s{sT1}, s{sT1}, {ls}",
                  f"s_add_u32 s{sOB}, s{sOB}, s{sT1}", f"s_add_u32 s{sOB}, s{sOB}, s{sOBASE}"]
        return o

    def trreads(fi, nb, slot_in_half, ks):
        off = slot_in_half*16384 + ks*4096
        return [f"ds_read_b64_tr_b16 {vr(WF+4*fi,2)}, v{TRA+2*nb} offset:{off}",
                f"ds_read_b64_tr_b16 {vr(WF+4*fi+2,2)}, v{TRA+2*nb+1} offset:{off}"]

    def c_round(r):
        return [[f"s_add_u32 m0, s{sSTG}, {98304 + (r%2)*32768 + j*1024}", f"s_add_u32 s{sT0}, s{sRQ+r//2}, {j*8192 + (r%2)*128}",
                 f"buffer_load_dwordx4 v{T+(j&1)}, s[{S_ACT}:{S_ACT+3}], s{sT0} offen lds"] for j in range(8)]
    def c_reads(r):
        return [f"ds_read_b128 {ar((t*16+2*r+k2)*4, 4)}, v{T+2+k2} offset:{(r%2)*32768 + t*2048}" for t in range(4) for k2 in range(2)]

    def body(ty, par, first=False, vms=None, A=A):
        acc = ACC[par]; old = ACC[1-par]
        cs, ss, _ = dma_consts(ty)
        gaps = {}
        def G(q, m): return gaps.setdefault((q, m), {'mem': [], 'other': []})
        def room(q, m):
            g = G(q, m); return 2 - len(g['mem']) - len(g['other'])
        prew = {}
        if LGK:
            for q in range(4):
                for grp in range(1, 16, 2): G(q, grp*4 + 2)['other'].append("s_waitcnt lgkmcnt(10)")
        if not first:
            epi = epilogue_ops(ty, old)
            if ty == 'G' and par == 1:
                ex = [x[0] for x in xcst] + [f"buffer_store_dword v{MU}, v{SUM}, s[{S_XC}:{S_XC+3}], s{sSCQ} offen sc1", f"s_mov_b32 s{S_XC+2}, 0"]
                e2 = []
                for k, x in enumerate(epi):
                    e2.append(x)
                    if k % 6 == 5 and ex: e2.append(ex.pop(0))
                epi = e2 + ex
            for q in range(4):
                G(q, 0)['other'] += [f"s_waitcnt vmcnt({vms[q]})", "s_barrier"]
                tgt = (4*par + q + 7) % 8
                trip = dma_slot(ty, 1 if q == 0 else 2, (q+3) % 4, tgt)
                if q == 1:
                    G(q, 1)['other'] += [f"s_add_u32 s{sT1}, s{sSU}, 2", f"s_cmp_ge_u32 s{sT1}, s{sEND2}"]
                    G(q, 2)['other'] += [f"s_cselect_b32 s{S_WA+2}, 0, s{S_WA+2}", f"s_cselect_b32 s{S_WB+2}, 0, s{S_WB+2}"]
                for j, tr in enumerate(trip):
                    m = 8 + 12*j + 1
                    G(q, m)['other'] += tr[:2]
                    G(q, m+1)['mem'] += [tr[2]]
            oc = ob_calc(ty, -1)
            pos = [(0,1),(0,2),(0,4),(0,5)]
            k = 0
            for p in pos:
                while room(*p) > 0 and k < len(oc): G(*p)['other'].append(oc[k]); k += 1
            assert k == len(oc)
        for nb in range(4):
            m = 16 + 4*nb + 4
            G(3, m)['other'] += [f"v_xor_b32 v{TRA+2*nb}, 0x10000, v{TRA+2*nb}", f"v_xor_b32 v{TRA+2*nb+1}, 0x10000, v{TRA+2*nb+1}"]
        if not first:
            slots = [(q, m) for q in range(4) for m in range(64) if m % 4 != 3 and (q, m) >= (0, 6)]
            cap = [(s_, room(*s_)) for s_ in slots]
            tot = sum(c for _, c in cap)
            step = max(1.0, 0.8*tot/len(epi))
            flat = [s_ for s_, c in cap for _ in range(c)]
            idx = 0.0
            for op in epi:
                s_ = flat[int(idx)]
                if op.startswith('buffer_store'):
                    i2 = int(idx)
                    while True:
                        s_ = flat[i2]
                        g = G(*s_)
                        if not g['mem'] and not g['other']: break
                        i2 += 1
                    idx = max(idx, i2)
                    G(*s_)['mem'].append(op)
                else:
                    G(*s_)['other'].append(op)
                idx += step
        else:
            seq = ['R0']*8 + ['W0']*4 + ['R1']*8 + ['W1']*4
            def vm(tag): return len(seq) - 1 - max(i for i, e in enumerate(seq) if e == tag)
            def put_triples(q, m0, trips, tag):
                m = m0
                for tr in trips:
                    G(q, m)['other'] += tr[:2]
                    m2 = m + 1 if (m + 1) % 4 != 3 else m + 2
                    G(q, m2)['mem'].append(tr[2]); seq.append(tag)
                    m = m2
                    if len(G(q, m)['other']) >= 1 or True:
                        pass
                return m
            for h in range(8):
                q = h // 2; base = 32*(h % 2)
                if h >= 1: prew[(q, base)] = ["s_waitcnt lgkmcnt(2)"]
                need = None
                if h == 1: need = 'W1'
                elif h in (2, 4, 6): need = f'W{q+1}'
                if need: G(q, base)['other'] += [f"s_waitcnt vmcnt({vm(need)})", "s_barrier"]
                if h == 7: G(q, base)['other'] += ["s_barrier"]
                if HST and h in (2, 4, 6): G(q, base)['other'].append(f"s_memrealtime s[{64+2*(2+h//2)}:{65+2*(2+h//2)}]")
                m = base + 1
                if h + 2 <= 7: m = put_triples(q, m, c_round(h+2), f'R{h+2}')
                if WEARLY:
                    if h <= 1:
                        for n in (2*h+2, 2*h+3): m = put_triples(q, m, dma_slot(ty, n//4, n % 4, n), f'W{n}')
                elif h <= 3: m = put_triples(q, m, dma_slot(ty, (h+2)//4, (h+2) % 4, h+2), f'W{h+2}')
                if h == 7:
                    for n in range(6, 11): m = put_triples(q, m, dma_slot(ty, n//4, n % 4, n % 8), f'W{n}')
                    assert m <= 60, m
                if h == 4 and KV_TOUCH:
                    to = touch_ops(ty)
                    for k, x in enumerate(to):
                        if x.startswith('buffer'): seq.append('T')
                        G(q, base + 16 + (k//4)*1 + (1 if (base+16+(k//4)) % 4 == 3 else 0))['other'].append(x)
                if h + 1 <= 7:
                    mm = base + 24
                    prew[(q, mm)] = [f"s_waitcnt vmcnt({vm(f'R{h+1}')})"]
                    rds = c_reads(h+1)
                    for k, p in enumerate((mm, mm+1, mm+2, mm+4)):
                        G(q, p)['mem'] += rds[2*k:2*k+2]
        if ty == 'V':
            G(3, 56)['other'] += [f"s_add_u32 s{sT1}, s{sSU}, 3", f"s_cmp_eq_u32 s{sT1}, s{sEND}", f"s_cselect_b32 s{sIA}, s{sHD}, {cs}"]
            G(3, 57)['other'] += [f"s_add_u32 s{sT1}, s{sSU}, 2", f"s_cmp_eq_u32 s{sT1}, s{sEND}", f"s_cselect_b32 s{sIB}, s{sHD}, {cs}"]
            ia, ib = f"s{sIA}", f"s{sIB}"
        else: ia = ib = f"{cs}"
        G(3, 60)['other'] += [f"s_add_u32 s{sDQ}, s{sDQ}, {ia}", f"s_add_u32 s{sDQ+1}, s{sDQ+1}, {ia}"]
        G(3, 61)['other'] += [f"s_add_u32 s{sDQ+2}, s{sDQ+2}, {ia}", f"s_add_u32 s{sDQ+3}, s{sDQ+3}, {ib}", f"s_add_u32 s{sSU}, s{sSU}, 1"]
        G(3, 62)['other'] += [f"s_mov_b32 s{S_OUT+2}, {0 if NOST else WS_USED}", f"s_cmp_ge_u32 s{sSU}, s{sEND}"]
        for q in range(4):
            for ks in range(4):
                for nb in range(4):
                    fi = (ks % 2)*4 + nb
                    grp = ks*4 + nb
                    if grp % 2 == 0 and not LGK: A("s_waitcnt lgkmcnt(12)")
                    for t in range(4):
                        m = grp*4 + t
                        for x in prew.get((q, m), []): A(x)
                        d = acc + (nb*4+t)*4
                        kk = q*4 + ks
                        c = "0" if kk == 0 else vr(d, 4)
                        w = vr(WF+4*fi, 4); a = ar((t*16+kk)*4, 4)
                        A(f"{MF} {vr(d,4)}, {a}, {w}, {c}" if ty == 'V' else f"{MF} {vr(d,4)}, {w}, {a}, {c}")
                        if t == 3:
                            if ks < 2: rd = trreads(fi, nb, q, ks+2)
                            else: rd = trreads(fi, nb, (q+1) % 4, ks-2)
                            for x in rd: A(x)
                        g = G(q, m)
                        for x in g['mem']: A(x)
                        for x in g['other']: A(x)

    def vm_table(ty):
        tmp = Asm(); body(ty, 0, vms=[0]*4, A=tmp)
        pat = []; q = -1
        for l in tmp.lines:
            if l == 's_barrier': q += 1; pat.append(('bar', q))
            elif l.startswith('buffer_load'): pat.append(('dma', q))
            elif l.startswith('buffer_store'): pat.append(('st', q))
        if ty in 'KV': seq = [5]*4 + [n for n in range(6, 11) for _ in range(4)]; c0 = 1
        else: seq = [n for n in range(4, 7) for _ in range(4)]; c0 = 0
        tab = {}
        for c in range(c0, 8):
            tab[c] = [0]*4
            for kind, q in pat:
                if kind == 'bar':
                    need = 4*c + q + 1
                    idx = [i for i, e in enumerate(seq) if e == need]
                    tab[c][q] = min(63, len(seq) - 1 - max(idx)) if idx else 63
                    if not EXACT: tab[c][q] = 20
                elif kind == 'dma': seq.append(4*c + q + 7)
                else: seq.append('s')
        return tab

    for ty in 'KVG':
        VN = vm_table(ty)
        if ty in 'KV':
            A.label(f"K1_PRO_{ty}")
            if ACT_TOUCH: act_touch()
            A(f"v_lshrrev_b32 v4, 3, v0\nv_and_b32 v5, 7, v0\nv_lshrrev_b32 v6, 4, v0\nv_xor_b32 v5, v5, v6")
            A(f"v_lshlrev_b32 v4, 10, v4\nv_lshl_add_u32 v{T}, v5, 4, v4\nv_xor_b32 v{T+1}, 64, v{T}")
            for it in c_round(0) + dma_slot(ty, 0, 0, 0) + c_round(1) + dma_slot(ty, 0, 1, 1):
                for x in it: A(x)
            stamp(A, 1)
            A(f"v_and_b32 v4, 15, v0\nv_lshrrev_b32 v5, 1, v4\nv_xor_b32 v5, v5, v1\nv_lshlrev_b32 v4, 7, v4\nv_lshl_add_u32 v4, v5, 4, v4")
            A(f"s_add_u32 s{sT1}, s{sSTG}, 98304\nv_add_u32 v{T+2}, s{sT1}, v4\nv_xor_b32 v{T+3}, 64, v{T+2}")
            A("s_waitcnt vmcnt(12)\ns_barrier")
            stamp(A, 2)
            for x in c_reads(0): A(x)
            for ks in range(2):
                for nb in range(4):
                    for x in trreads(ks*4+nb, nb, 0, ks): A(x)
            A("s_waitcnt lgkmcnt(12)")
            body(ty, 0, first=True)
            stamp(A, 6)
            if not HST: stampc(A, 4)
            body(ty, 1, vms=VN[1])
            if CODE_TOUCH2: code_touch(A, "k2_kernel", "K2_END", sW, 0, DUM+1, 80)
            if WQ_TOUCH:
                A(f"s_mov_b32 s4, s{P_WQ}\ns_mov_b32 s5, s{P_WQ+1}\ns_mov_b32 s6, {512*8192}\ns_mov_b32 s7, 0x00020000")
                A(f"s_sub_u32 s{sT1}, s{sCG}, {11 if PART == 'A' else 10}\ns_lshl_b32 s{sT1}, s{sT1}, 3\ns_add_u32 s{sT1}, s{sT1}, s{sTB}\ns_mul_i32 s{sT1}, s{sT1}, {196*128}\ns_min_u32 s{sT0}, s{sW}, 3\ns_lshl_b32 s{sT0}, s{sT0}, 13\ns_add_u32 s{sT1}, s{sT1}, s{sT0}")
                A(f"v_lshlrev_b32 v4, 7, v0\nbuffer_load_dword v{DUM}, v4, s[4:7], s{sT1} offen")
            A(f"s_branch K1_LOOP_{ty}")
        else:
            A.label(f"K1_START2_{ty}")
            stamp(A, 2)
            if W_TOUCH:
                for x in touch_ops(ty): A(x)
            if ty == 'Q':
                for t in range(4): A(f"v_mul_f32 v{SC+t}, {hex(f32bits(CSCALE))}, v{RSTD+t}")
            if ty == 'G':
                for t in range(4): A(f"v_mul_f32 v{SC+t}, v{RSTD+t}, v{RSTD+t}")
            A(f"s_waitcnt vmcnt({14 if W_TOUCH else 12})\ns_barrier")
            stamp(A, 6)
            for ks in range(2):
                for nb in range(4):
                    for x in trreads(ks*4+nb, nb, 0, ks): A(x)
            A("s_waitcnt lgkmcnt(12)")
        A(".p2align 6")
        A.label(f"K1_LOOP_{ty}")
        c0 = 2 if ty in 'KV' else 0
        body(ty, 0, vms=[min(VN[c][q] for c in range(c0, 8, 2)) for q in range(4)])
        A(f"s_cbranch_scc1 K1_DRAIN0_{ty}")
        body(ty, 1, vms=[min(VN[c][q] for c in range(c0+1, 8, 2)) for q in range(4)])
        A(f"s_cbranch_scc0 K1_LOOP_{ty}")
        for par in (1, 0):
            A.label(f"K1_DRAIN{par}_{ty}")
            if ty == 'V' and par == 1: A(f"s_cmp_lg_u32 s{sEND}, s{sEND2}\ns_cbranch_scc1 K1_HALF_V")
            if ty in 'KV' and not HST: stamp(A, 3); stampc(A, 5)
            for x in ob_calc(ty, -1): A(x)
            A("s_nop 1")
            if WBL2: A(f"s_cmp_lg_u32 s{sW}, 0\ns_cbranch_scc1 K1_NOWB{par}_{ty}\nbuffer_wbl2 sc1\nK1_NOWB{par}_{ty}:")
            for x in epilogue_ops(ty, ACC[par], (' ' + SFD) if SFD else ''): A(x)
            A("s_branch K1_FIN")
    A.label("K1_HALF_V")
    epi = ob_calc('V', -1) + epilogue_ops('V', ACC[1])
    A("s_waitcnt vmcnt(12)")
    k = 0
    for q in range(4):
        for ks in range(4):
            A("s_waitcnt lgkmcnt(4)")
            for nb in range(2):
                fi = (ks % 2)*4 + nb
                for t in range(4):
                    d = ACC[0] + (nb*4+t)*4; kk = q*4 + ks
                    A(f"{MF} {vr(d,4)}, {ar((t*16+kk)*4,4)}, {vr(WF+4*fi,4)}, {'0' if kk == 0 else vr(d,4)}")
                    if kk == 0 and nb == 0 and t == 0: A("s_barrier")
                    if t == 3 and kk < 14:
                        for x in (trreads(fi, nb, q, ks+2) if ks < 2 else trreads(fi, nb, q+1, ks-2)): A(x)
                    elif t < 3 and kk >= 1 and k < len(epi):
                        A(epi[k]); k += 1
    assert k == len(epi), (k, len(epi))
    A(f"s_add_u32 s{sOB}, s{sOBH}, s{sOBASE}\ns_nop 4")
    for x in epilogue_ops('V', ACC[0])[:20]: A(x)
    A.label("K1_FIN")
    if asmlib.STAMP:
        A("s_waitcnt vmcnt(0)")
        stamp_flush(A, 0, 8, P_WS, sW)
    A.label("K1_END")
    A("s_endpgm")
    return dict(name="k1_kernel", vgpr=248+256, accum=248, sgpr=102, grid=256, block=256, lds=163840)
```

```python
from asmlib import *
import asmlib
from k1f import KV_BASE, A3_BASE, A3_TB64, WS_USED, MF, f32bits, XC_BASE, SCQ_BASE

import os
QST = os.environ.get('QST', '0') == '1'
QPLAN = os.environ.get('QPLAN', '3')
CT = os.environ.get('CODE_TOUCH2', '1') == '1'
QROT = int(os.environ.get('QROT', '2'))
LATEKV = os.environ.get('LATEKV', '1') == '1'
NOBAR = os.environ.get('NOBAR', '0') == '1'
BARPOS = int(os.environ.get('BARPOS', '0'))
NOCHK = os.environ.get('NOCHK', '0') == '1'
CHKE = os.environ.get('CHKE', '1') == '1'
ONES = os.environ.get('ONES', '1') == '1'
BIAS = 24.0
PCHK = int(os.environ.get('PCHK', '9'))
CTX_TOUCH = os.environ.get('CTX_TOUCH', '0') == '1'
def gen_k2(A, k1i, store_flags="", thr=2.0**30):
    O = 0; S01 = 128; S23 = [144, 160]; P01 = [176, 184]; P23 = 192; CX = 200; E = 232; LS = 236; L = 240
    VK = 244; VV = 245; VD = 246; TMP = 247
    AQ = 0; KF = 64; VF = 96; AL = 128; AO = 144
    NG = 34 if ONES else 32
    S_KV, S_WS = 8, 12
    sW, sH, sI, sT0, sT1, sOFF, sHALF, sCNT, sTHR, sNEG = 16, 17, 18, 19, 20, 21, 22, 23, 24, 25
    sMK = 26
    sRET = 34
    sP = 36; sOHI = 37; sOLO = 38
    P_WS = 40; P_WO = 42; P_WD = 44; P_WQ = 46; S_T = 48; sXH = 52; sXL = 53; sWQ = 54; sMQ = 55
    def Sreg(qp, kb, par): return (S01 + (qp*2+kb)*4) if qp < 2 else (S23[par] + ((qp-2)*2+kb)*4)
    def Preg(qp, par): return (P01[par] + qp*4) if qp < 2 else (P23 + (qp-2)*4)
    def Oreg(db, qb): return O + (db*4+qb)*4
    def CXr(qp, kb): return CX + (qp*2+kb)*4
    stubs = []
    uid = [0]
    def U(p): uid[0] += 1; return f"K2_{p}_{uid[0]}"

    def spin(lab, vp, vo, off, expect):
        stubs.append([f"{lab}:", f"s_mov_b32 s{sT1}, 0", f"{lab}_L:", "s_sleep 8", f"buffer_load_dword v{vp}, v{vo}, s[80:83], 0 offen offset:{off} sc1", "s_waitcnt vmcnt(0)",
                      f"v_cmp_ne_u32 vcc, {expect}, v{vp}", f"s_add_u32 s{sT1}, s{sT1}, 1", f"s_cmp_ge_u32 s{sT1}, 0x8000", f"s_cbranch_scc1 {lab}_B", f"s_cbranch_vccnz {lab}_L", f"s_branch {lab}_B"])
    A(f"s_mov_b32 s{sW}, s{k1i['sW']}\nv_mov_b32 v{TMP+1}, v0")
    A(f"s_load_dwordx2 s[{P_WS}:{P_WS+1}], s[0:1], 96\ns_load_dwordx2 s[{P_WO}:{P_WO+1}], s[0:1], 40\ns_load_dwordx2 s[{P_WD}:{P_WD+1}], s[0:1], 72\ns_load_dwordx2 s[{P_WQ}:{P_WQ+1}], s[0:1], 16\ns_mov_b32 s{S_T+3}, 0x00020000")
    A(f"v_cmp_ne_u32 vcc, 4, v{k1i['XP']}\ns_barrier\ns_cbranch_vccnz K2_XSPIN")
    A.label("K2_XSPIN_B")
    spin("K2_XSPIN", k1i['XP'], k1i['XO'], 64, 4)
    A(f"s_and_b32 s{sT0}, s2, 7\ns_lshr_b32 s{sT1}, s2, 3\ns_lshr_b32 s{sI}, s{sT1}, 2\ns_and_b32 s{sT1}, s{sT1}, 3\ns_lshl_b32 s{sH}, s{sT0}, 2\ns_add_u32 s{sH}, s{sH}, s{sT1}")
    A(f"s_mov_b32 s{S_KV+3}, 0x00020000\ns_mov_b32 s{S_WS+3}, 0x00020000\ns_mov_b32 s{S_WS+2}, {WS_USED}")
    A(f"s_lshl_b32 s{sT0}, s{sI}, 16\ns_sub_u32 s{S_KV+2}, 0x108000, s{sT0}")
    A(f"s_mov_b32 s{sTHR}, {hex(0x40000000 if ONES else f32bits(thr))}\ns_mov_b32 s{sNEG}, 0xff800000")
    LN = TMP+1
    A(f"v_lshlrev_b32 v{VK}, 4, v{LN}\nv_add_u32 v{VV}, 0x10000, v{VK}")
    A(f"s_lshl_b32 s{sT0}, s{sW}, 12\nv_add_u32 v{VD}, s{sT0}, v{VK}")
    A(f"s_and_b32 s{sT0}, s{sW}, 1\ns_lshl_b32 s{sHALF}, s{sT0}, 12\ns_lshr_b32 s{sT0}, s{sW}, 1\ns_lshl_b32 s{sT1}, s{sT0}, 16\ns_add_u32 s{sHALF}, s{sHALF}, s{sT1}")
    A(f"s_lshl_b32 s{sT0}, s{sT0}, 15\ns_sub_u32 s{sOFF}, 0x8000, s{sT0}")
    A("s_waitcnt lgkmcnt(0)")
    A(f"s_mov_b32 s{S_WS}, s{P_WS}\ns_mov_b32 s{S_WS+1}, s{P_WS+1}")
    A(f"s_lshl_b32 s{sT0}, s{sH}, 20\ns_add_u32 s{sT0}, s{sT0}, {KV_BASE-0x8000}\ns_add_u32 s{S_KV}, s{P_WS}, s{sT0}\ns_addc_u32 s{S_KV+1}, s{P_WS+1}, 0")
    A(f"s_lshr_b32 s{sT0}, s{sW}, 1\ns_lshl_b32 s{sT1}, s{sI}, 1\ns_add_u32 s{sOLO}, s{sT1}, s{sT0}\ns_sub_u32 s{sOHI}, 30, s{sT1}\ns_add_u32 s{sOHI}, s{sOHI}, s{sT0}")
    A(f"s_mul_i32 s{sOLO}, s{sOLO}, {A3_TB64}\ns_mul_i32 s{sOHI}, s{sOHI}, {A3_TB64}")
    A(f"s_lshl_b32 s{sT0}, s{sH}, 14\ns_and_b32 s{sT1}, s{sW}, 1\ns_lshl_b32 s{sT1}, s{sT1}, 11\ns_add_u32 s{sT0}, s{sT0}, s{sT1}\ns_add_u32 s{sT0}, s{sT0}, {A3_BASE}")
    A(f"s_add_u32 s{sOLO}, s{sOLO}, s{sT0}\ns_add_u32 s{sOHI}, s{sOHI}, s{sT0}")
    def kread(f, unit4): return f"ds_read_b128 {ar(KF+4*f,4)}, v{VK} offset:{unit4*8192 + f*1024}"
    def vread(f, slot4): return f"ds_read_b128 {ar(VF+4*f,4)}, v{VV} offset:{slot4*8192 + f*1024}"
    def dma_group(c):
        pre = [f"s_add_u32 m0, s{sHALF}, {(c%4)*8192}"]
        d = [f"buffer_load_dwordx4 v{VD}, s[{S_KV}:{S_KV+3}], s{sOFF} offen offset:{j*1024} lds" for j in range(4)]
        post = [f"s_add_u32 s{sOFF}, s{sOFF}, 16384"]
        if c % 4 == 3: post.append(f"s_xor_b32 s{sHALF}, s{sHALF}, 0x8000")
        return pre, d, post
    AR = 128; TRQ = S01; VQ = S01 + 8
    A(f"s_mov_b32 s{S_T}, s{P_WQ}\ns_mov_b32 s{S_T+1}, s{P_WQ+1}\ns_mov_b32 s{S_T+2}, {512*8192}")
    A(f"s_lshl_b32 s{sT0}, s{sI}, 3\ns_lshl_b32 s{sT1}, s{sW}, 1\ns_add_u32 s{sXL}, s{sT0}, s{sT1}\ns_sub_u32 s{sXH}, 120, s{sT0}\ns_add_u32 s{sXH}, s{sXH}, s{sT1}")
    A(f"s_lshl_b32 s{sP}, s{sXH}, 6\ns_add_u32 s{sP}, s{sP}, {SCQ_BASE}\ns_lshl_b32 s{sCNT}, s{sXL}, 6\ns_add_u32 s{sCNT}, s{sCNT}, {SCQ_BASE}")
    A(f"s_lshl_b32 s{sXH}, s{sXH}, 14\ns_add_u32 s{sXH}, s{sXH}, {XC_BASE}\ns_lshl_b32 s{sXL}, s{sXL}, 14\ns_add_u32 s{sXL}, s{sXL}, {XC_BASE}")
    A(f"s_lshl_b32 s{sWQ}, s{sH}, 8\ns_lshl_b32 s{sT0}, s{sW}, 16\ns_add_u32 s{sWQ}, s{sWQ}, s{sT0}\ns_lshl_b32 s{sMQ}, s{sW}, 11\ns_add_u32 s{sMQ}, s{sMQ}, 32768")
    A(f"v_lshrrev_b32 v{TMP+2}, 4, v{LN}\nv_and_b32 v{TMP+3}, 15, v{LN}\ns_and_b32 s{sT0}, s{sW}, 1\ns_lshl_b32 s{sT0}, s{sT0}, 2\nv_or_b32 v{TMP+4}, s{sT0}, v{TMP+2}\nv_lshlrev_b32 v{TMP+4}, 1, v{TMP+4}\nv_xor_b32 v{TMP+4}, v{TMP+4}, v{TMP+3}")
    A(f"v_lshlrev_b32 v{TMP+5}, 13, v{TMP+2}\nv_lshl_add_u32 v{VQ}, v{TMP+4}, 4, v{TMP+5}\nv_add_u32 v{VQ+1}, {4*8192-1024}, v{VQ}\nv_add_u32 v{VQ+2}, 16384, v{VK}")
    sQO, sWQQ, sXH1, sXL1 = 56, 60, 84, 85
    rsrc = {0: "0", 1: f"s{sH}", 2: f"s{sI}"}[QROT if QROT < 3 else 1]
    if QROT == 3: A(f"s_add_u32 s{sT1}, s{sH}, s{sI}"); rsrc = f"s{sT1}"
    for q in range(4):
        A(f"s_add_u32 s{sT0}, {rsrc}, {q}\ns_and_b32 s{sT0}, s{sT0}, 3\ns_lshl_b32 s{sQO+q}, s{sT0}, 12\ns_lshl_b32 s{sT0}, s{sT0}, 20\ns_add_u32 s{sWQQ+q}, s{sWQ}, s{sT0}")
    def w_loads(n):
        return [[f"s_add_u32 m0, s{sMQ}, {n*8192}", f"s_add_u32 s{sT0}, s{sWQQ+n//4}, {(n%4)*32*8192}"],
                [f"buffer_load_dwordx4 v{VQ}, s[{S_T}:{S_T+3}], s{sT0} offen lds"], [f"buffer_load_dwordx4 v{VQ+1}, s[{S_T}:{S_T+3}], s{sT0} offen offset:1024 lds"]]
    def adst(n, t):
        if n < 8: return ar(AR+n*16+4*t, 4)
        if n < 12: return ar((n-8)*16+4*t, 4)
        if n < 14: return ar(96+(n-12)*16+4*t, 4)
        return vr(144+(n-14)*16+4*t, 4)
    def a_loads(n):
        o = []
        if n % 4 == 0: o.append([f"s_add_u32 s{sXH1}, s{sXH}, s{sQO+n//4}", f"s_add_u32 s{sXL1}, s{sXL}, s{sQO+n//4}"])
        for t in range(4):
            o.append([f"buffer_load_dwordx4 {adst(n,t)}, v{VQ+2 if t % 2 else VK}, s[{S_WS}:{S_WS+3}], s{sXH1 if t < 2 else sXL1} offen offset:{(n%4)*1024} sc1"])
        return o
    seq = []
    def mk(tags):
        its = []
        for k, n in tags:
            x = (w_loads if k == 'W' else a_loads)(n)
            for it in x:
                for y in it:
                    if y.startswith('buffer'): seq.append((k, n))
            its += x
        return its
    def vmq(tag): return min(63, len(seq) - 1 - max(i for i, e in enumerate(seq) if e == tag))
    def vmq_(tag): return len(seq) - 1 - max(i for i, e in enumerate(seq) if e == tag)
    for it in mk([('W',0),('A',0),('W',1),('W',2),('A',1),('A',2),('W',3),('W',4),('A',3)]):
        for x in it: A(x)
    A(f"v_lshlrev_b32 v{TMP+4}, 2, v{TMP+3}")
    A(f"v_bfe_u32 v{TMP+3}, v{LN}, 2, 2\nv_and_b32 v{TMP+6}, 1, v{TMP+2}\nv_lshl_add_u32 v{TMP+6}, v{TMP+6}, 2, v{TMP+3}\nv_lshl_add_u32 v{TMP+3}, v{TMP+2}, 3, v{TMP+3}\nv_lshlrev_b32 v{TMP+3}, 8, v{TMP+3}")
    A(f"v_and_b32 v{TMP+5}, 3, v{LN}\nv_lshl_add_u32 v{TMP+3}, v{TMP+5}, 3, v{TMP+3}\nv_add_u32 v{TMP+3}, 0x8000, v{TMP+3}")
    for nb in range(8): A(f"v_xor_b32 v{TMP+5}, {nb}, v{TMP+6}\nv_lshl_add_u32 v{TRQ+nb}, v{TMP+5}, 5, v{TMP+3}")
    def qtr(nb, ks): return [f"ds_read_b64_tr_b16 {ar(KF+4*nb,2)}, v{TRQ+nb} offset:{(ks%8)*8192}", f"ds_read_b64_tr_b16 {ar(KF+4*nb+2,2)}, v{TRQ+nb} offset:{(ks%8)*8192+1024}"]
    A(f"s_and_b32 s{sT0}, s2, 15\ns_lshl_b32 s{sT0}, s{sT0}, 2\nv_mov_b32 v{TMP+5}, s{sT0}\nv_mov_b32 v{TMP+6}, 1")
    A(f"s_waitcnt vmcnt({vmq(('W', 0))})\ns_barrier")
    A(f"s_cmp_lg_u32 s{sW}, 0\ns_cbranch_scc1 K2_NOSIG\ns_mov_b64 exec, 1\nbuffer_atomic_add v{TMP+6}, v{TMP+5}, s[80:83], 0 offen sc1\ns_mov_b64 exec, -1")
    A.label("K2_NOSIG")
    for nb in range(8):
        for x in qtr(nb, 0): A(x)
    A("s_waitcnt lgkmcnt(12)")
    plan = {0: [('A',4),('W',5),('A',5),('W',6),('A',6),('W',7)], 1: [('A',7),('W',8),('A',8),('W',9),('A',9),('W',10)], 2: [('A',10),('W',11),('A',11),('W',12),('A',12),('W',13)],
            3: [('A',13),('W',14),('A',14),('W',15),('A',15)]}
    if QPLAN == '2':
        plan = {0: [('A',4),('W',5),('W',6),('A',5),('W',7),('W',8)], 1: [('A',6),('W',9),('W',10),('A',7),('W',11),('W',12)], 2: [('A',8),('W',13),('W',14),('W',15),('A',9)]}
        for k_ in range(3, 9): plan[k_] = [('A', k_+7)]
    if QPLAN == '3':
        plan = {0: [('A',4),('W',5),('A',5)], 1: [('W',6),('A',6),('W',7),('A',7)], 2: [('W',8),('A',8),('W',9),('A',9)], 3: [('W',10),('A',10),('W',11)], 4: [('A',11),('W',12),('W',13)], 5: [('A',12),('W',14),('W',15)], 6: [('A',13)], 7: [('A',14)], 8: [('A',15)]}
    bars = {0: 2, 2: 4, 4: 8, 8: 15}
    NEGV = TMP+8
    misc = [f"v_mov_b32 v{r}, 0" for r in list(range(CX, CX+32)) + list(range(LS, LS+8))]
    misc += [f"v_and_b32 v{TMP+2}, 15, v{LN}", f"v_lshrrev_b32 v{TMP+3}, 4, v{LN}", f"v_lshlrev_b32 v{TMP+3}, 2, v{TMP+3}", f"v_sub_u32 v{TMP+2}, v{TMP+2}, v{TMP+3}"]
    misc += [f"v_cmp_le_i32 s[{sMK+2*i}:{sMK+2*i+1}], {i}, v{TMP+2}" for i in range(4)] + [f"v_mov_b32 v{NEGV}, s{sNEG}", "s_nop 0"]
    def q_epi(ds):
        o = []
        for qb in range(4):
            tq = QT + 4*(qb % 2)
            for h in range(2):
                b_ = Oreg(2*ds+h, qb)
                o += [f"v_mul_f32 v{b_+i}, v{b_+i}, v{E+qb}" for i in range(4)]
                o += [f"v_cvt_pk_bf16_f32 v{tq+2*h}, v{b_}, v{b_+1}", f"v_cvt_pk_bf16_f32 v{tq+2*h+1}, v{b_+2}, v{b_+3}"]
            o += [f"v_accvgpr_write_b32 a{AQ+(qb*4+ds)*4+i}, v{tq+i}" for i in range(4)]
        return o
    QT = P01[0]
    e0 = q_epi(0)
    for ks in range(16):
        gaps = {}
        def G(m): return gaps.setdefault(m, [])
        pre = [f"s_waitcnt vmcnt({vmq(('A', ks))})"]
        if ks in bars: G(0).extend([f"s_waitcnt vmcnt({vmq(('W', bars[ks]))})", "s_barrier"])
        if ks == 12: G(0).extend(["s_waitcnt vmcnt(0)", "s_barrier"])
        if ks == 15: G(0).extend(["s_waitcnt vmcnt(4)", "s_barrier"])
        if ks == PCHK:
            G(1).extend([f"s_waitcnt vmcnt({vmq(('P', 0))})", f"v_cmp_ne_u32 vcc, 16, v{TMP+7}"])
            G(4).extend(["s_cbranch_vccnz K2_KSPIN", "K2_KSPIN_B:", f"s_cmp_lg_u32 s{sW}, 0", "s_cbranch_scc1 K2_NOINV", "buffer_inv sc1", "K2_NOINV:"] + (["s_memrealtime s[68:69]"] if asmlib.STAMP else []))
            spin("K2_KSPIN", TMP+7, TMP+4, 0, 16)
        its = mk(plan.get(ks, []))
        if ks == PCHK - 2:
            its.append([f"buffer_load_dword v{TMP+7}, v{TMP+4}, s[80:83], 0 offen sc1"]); seq.append(('P', 0))
        if ks == 7:
            for qb in range(4):
                its.append([f"buffer_load_dword v{E+qb}, v{TMP+4}, s[{S_WS}:{S_WS+3}], s{sP if qb < 2 else sCNT} offen offset:{(qb%2)*64} sc1"]); seq.append(('S', 0))
        for c in {12: (0, 1), 13: (2,), 14: (3,)}.get(ks, ()):
            p_, d_, po_ = dma_group(c)
            if c < 2:
                lab = U("KS")
                its += [[f"s_cmp_ge_u32 s{sW}, 2", f"s_cbranch_scc1 {lab}"] + p_ + ["s_nop 0"] + d_ + [lab + ":"] + po_]
            else:
                its += [p_] + [[x] for x in d_] + [po_]
                seq += [('KV', c)]*4
        if ks in (13, 14): its += [misc[(ks-13)*26+2*k:(ks-13)*26+2*k+2] for k in range(13)]
        if ks == 15: its += [[vread(2*k, 2), vread(2*k+1, 2)] for k in range(4)]
        m = 1 if ks != PCHK else 5
        for it in its:
            G(m).extend(it)
            m = m + 1 if (m + 1) % 4 != 3 else m + 2
        if ks == 15:
            while m < 31:
                G(m).extend(e0[:2]); e0 = e0[2:]
                m = m + 1 if (m + 1) % 4 != 3 else m + 2
        assert m < 33, m
        if ks < 15:
            for grp in range(1, 8, 2): G(grp*4+2).append("s_waitcnt lgkmcnt(10)")
        else:
            G(6).append("s_waitcnt lgkmcnt(8)"); G(14).append("s_waitcnt lgkmcnt(11)")
        for x in pre: A(x)
        for nb in range(8):
            for t in range(4):
                d = Oreg(nb, t)
                A(f"{MF} {vr(d,4)}, {ar(KF+4*nb,4)}, {adst(ks,t)}, {'0' if ks == 0 else vr(d,4)}")
                if t == 3 and ks < 15:
                    if ks == 7: A(f"v_add_u32 v{TRQ+nb}, 0x10000, v{TRQ+nb}")
                    for x in qtr(nb, ks+1): A(x)
                if t == 3 and ks == 15: A(kread(nb, 0))
                for x in G(nb*4+t): A(x)
    stamp(A, 3)

    def Dpatch(q0):
        o = []
        for i in range(4): o.append(f"v_cndmask_b32 v{CXr(q0,0)+i}, v{NEGV}, v{CXr(q0,0)+i}, s[{sMK+2*i}:{sMK+2*i+1}]")
        for i in range(4): o.append(f"v_mov_b32 v{CXr(q0,1)+i}, v{NEGV}")
        for i in range(4): o.append(f"v_cndmask_b32 v{CXr(q0+1,1)+i}, v{NEGV}, v{CXr(q0+1,1)+i}, s[{sMK+2*i}:{sMK+2*i+1}]")
        return o
    def Fpatch(q0): return [f"v_mov_b32 v{CXr(q0,0)+i}, v{NEGV}" for i in range(16)]
    def patch(q0, j):
        o = []
        lD, lE = U("PD"), U("PE")
        o.append(f"s_cmp_gt_u32 s{sW}, {j}"); o.append(f"s_cbranch_scc1 {lE}")
        if j > 0:
            o.append(f"s_cmp_eq_u32 s{sW}, {j}"); o.append(f"s_cbranch_scc1 {lD}")
            o += Fpatch(q0); o.append(f"s_branch {lE}")
            o.append(lD + ":")
        o += Dpatch(q0)
        o.append(lE + ":")
        o.append("s_nop 1")
        return o


    def sm_gaps1(qs, srcpar, dstpar, look):
        g = [[] for _ in range(34)]
        src = lambda k: Sreg(qs[k//4], (k % 4)//2, srcpar) + 2*(k % 2)
        pr = lambda k: Preg(qs[k//4], dstpar) + k % 4
        for k in range(8):
            en = E + 2*((k+1) % 2); ec = E + 2*(k % 2)
            cv = f"v_cvt_pk_bf16_f32 v{pr(k)}, v{ec}, v{ec+1}"
            orr = None
            if k % 2 == 1: orr = f"v_or_b32 v{TMP}, v{pr(0)}, v{pr(1)}" if k == 1 else f"v_or3_b32 v{TMP}, v{TMP}, v{pr(k-1)}, v{pr(k)}"
            if k < 7:
                g[4*k].append(f"v_exp_f32 v{en}, v{src(k+1)}"); g[4*k+2].append(f"v_exp_f32 v{en+1}, v{src(k+1)+1}")
                g[4*k+1].append(cv)
                if orr: g[4*k+3].append(orr)
            else:
                g[28] += [cv, orr]
                g[29].append(f"v_lshl_or_b32 v{TMP}, v{TMP}, 16, v{TMP}")
                g[30].append(f"v_cmp_le_u32 vcc, s{sTHR}, v{TMP}")
                if look: g[32].append(f"v_exp_f32 v{en}, v{look[0]}"); g[33].append(f"v_exp_f32 v{en+1}, v{look[1]}")
        return g
    def lmf(qps, rows, par, czero):
        return [(f"{MF} {ar(AL+4*r,4)}, {ar(AO,4)}, {vr(Preg(qp,par),4)}, {'0' if czero else ar(AL+4*r,4)}", None) for qp, r in zip(qps, rows)]

    def sm_gaps(qs, srcpar, dstpar, look, ladd):
        g = [[] for _ in range(32)]
        lsb = LS + (0 if qs[0] == 0 else 2)
        src = lambda k: Sreg(qs[k//4], (k % 4)//2, srcpar) + 2*(k % 2)
        for k in range(8):
            if k < 7: a, b = src(k+1), src(k+1)+1
            elif look: a, b = look
            else: a = None
            en = E + 2*((k+1) % 2); ec = E + 2*(k % 2)
            if a is not None:
                g[4*k].append(f"v_exp_f32 v{en}, v{a}"); g[4*k+2].append(f"v_exp_f32 v{en+1}, v{b}")
            ls = lsb + k//4
            if k % 4 == 0:
                g[4*k+1].append(f"v_add_f32 v{ls}, v{ec}, v{ec+1}")
                lr, lsr = ladd[k//4]
                g[4*k+1].append(f"v_add_f32 v{lr}, v{lr}, v{lsr}")
            else:
                g[4*k+1].append(f"v_add_f32 v{ls}, v{ls}, v{ec}"); g[4*k+1].append(f"v_add_f32 v{ls}, v{ls}, v{ec+1}")
            g[4*k+3].append(f"v_cvt_pk_bf16_f32 v{Preg(qs[k//4], dstpar) + k % 4}, v{ec}, v{ec+1}")
        if not NOCHK:
            if CHKE:
                e_a = g[28]; adds = g[29]; e_b = g[30]
                g[28] = adds; g[29] = [f"v_max_f32 v{TMP}, v{lsb}, v{lsb+1}", f"v_cmp_lt_f32 vcc, s{sTHR}, v{TMP}"]
                g[30] = e_a; g[31] = g[31] + e_b
            else:
                g[30].append(f"v_max_f32 v{TMP}, v{lsb}, v{lsb+1}")
                g[31].append(f"v_cmp_lt_f32 vcc, s{sTHR}, v{TMP}")
        return g

    def rescale(rows, init=False):
        o = ["s_nop 7"]
        D, D2, F = TMP+1, TMP+2, TMP+3
        for r in rows:
            s0 = r['S']
            o.append(f"v_max3_f32 v{D}, v{s0}, v{s0+1}, v{s0+2}")
            o.append(f"v_max3_f32 v{D}, v{D}, v{s0+3}, v{s0+4}")
            o.append(f"v_max3_f32 v{D}, v{D}, v{s0+5}, v{s0+6}")
            o.append(f"v_max_f32 v{D}, v{D}, v{s0+7}")
            o += [f"v_mov_b32 v{D2}, v{D}", "s_nop 1", f"v_permlane16_swap_b32 v{D}, v{D2}", f"v_max_f32 v{D}, v{D}, v{D2}"]
            o += [f"v_mov_b32 v{D2}, v{D}", "s_nop 1", f"v_permlane32_swap_b32 v{D}, v{D2}", f"v_max_f32 v{D}, v{D}, v{D2}"]
            o.append(f"v_ceil_f32 v{D}, v{D}")
            if ONES: o.append(f"v_add_f32 v{D}, {hex(f32bits(BIAS))}, v{D}")
            if not init:
                o.append(f"v_max_f32 v{D}, 0, v{D}")
                o.append(f"v_exp_f32 v{F}, -v{D}")
            for b in [s0] + r['subs']:
                for i in range(8): o.append(f"v_sub_f32 v{b+i}, v{b+i}, v{D}")
            if not init:
                qb = r['qb']
                for db in range(8):
                    for i in range(4): o.append(f"v_mul_f32 v{Oreg(db,qb)+i}, v{Oreg(db,qb)+i}, v{F}")
                if ONES:
                    for i in range(4): o += [f"v_accvgpr_read_b32 v{D2}, a{AL+4*qb+i}", f"v_mul_f32 v{D2}, v{D2}, v{F}", f"v_accvgpr_write_b32 a{AL+4*qb+i}, v{D2}"]
                else: o.append(f"v_mul_f32 v{L+qb}, v{L+qb}, v{F}")
                for pr in r.get('Pscale', []):
                    o += [f"v_lshlrev_b32 v{D2}, 16, v{pr}", f"v_and_b32 v{pr}, 0xffff0000, v{pr}", f"v_mul_f32 v{D2}, v{D2}, v{F}", f"v_mul_f32 v{pr}, v{pr}, v{F}",
                          f"v_cvt_pk_bf16_f32 v{pr}, v{D2}, v{pr}"]
            if r.get('P') is not None:
                ls = r['ls']
                for k in range(4):
                    o += [f"v_exp_f32 v{E}, v{s0+2*k}", f"v_exp_f32 v{E+1}, v{s0+2*k+1}", "s_nop 0"]
                    if ONES: pass
                    elif k == 0: o.append(f"v_add_f32 v{ls}, v{E}, v{E+1}")
                    else: o += [f"v_add_f32 v{ls}, v{ls}, v{E}", f"v_add_f32 v{ls}, v{ls}, v{E+1}"]
                    o.append(f"v_cvt_pk_bf16_f32 v{r['P']+k}, v{E}, v{E+1}")
        return o
    def relook(look):
        return [f"v_exp_f32 v{E}, v{look[0]}", f"v_exp_f32 v{E+1}, v{look[1]}", "s_nop 1"] if look else ["s_nop 1"]

    def check_site(code):
        ls, lb = U("SLOW"), U("BACK")
        if not NOCHK: A(f"s_cbranch_vccnz {ls}")
        A.label(lb)
        stubs.append([ls + ":"] + code + [f"s_branch {lb}"])

    def emit_half(mf, gaps, extra, waits):
        for g in range(len(mf)):
            if g in waits: A(waits[g])
            m, rd = mf[g]
            if m: A(m)
            elif g == 28: A("s_nop 0")
            if rd: A(rd)
            ex = extra.get(g, ([], []))
            for x in ex[0]: A(x)
            for x in ex[1]: A(x)
            for x in gaps[g]: A(x)

    def H1(par, mq, ms, ku, toggleK=None, vm=None, dmas=(), noqk=False, nosm=False, last=False, fill=None, czero=False):
        n = 1 - par
        mf = []
        if noqk: mf = [(None, None)]*32
        elif mq == 4:
            for f in range(8):
                kb, ds = f//4, f % 4
                for qp in range(4):
                    d = Sreg(qp, kb, n)
                    c = vr(CXr(qp, kb), 4) if ds == 0 else vr(d, 4)
                    mf.append((f"{MF} {vr(d,4)}, {ar(KF+4*f,4)}, {ar(AQ+(qp*4+ds)*4,4)}, {c}", kread(f, ku[0]) if qp == 3 else None))
        else:
            for j in range(16):
                sel, f = j//8, j % 8
                kb, ds = f//4, f % 4
                for qb in range(2):
                    qp = 2*sel + qb
                    d = Sreg(qp, kb, n)
                    c = vr(CXr(qp, kb), 4) if ds == 0 else vr(d, 4)
                    rd = None
                    if qb == 1 and not (last and sel == 1): rd = kread(f, ku[sel])
                    mf.append((f"{MF} {vr(d,4)}, {ar(KF+4*f,4)}, {ar(AQ+(qb*4+ds)*4,4)}, {c}", rd))
        look = None if noqk else (Sreg(0, 0, n), Sreg(0, 0, n)+1)
        if nosm:
            gaps = [list(fill[2*g:2*g+2]) if fill else [] for g in range(32)]
        else:
            if ONES:
                gaps = sm_gaps1((2, 3), par, par, look); mf = list(mf) + lmf((0, 1), (0, 1), par, czero)
            else: gaps = sm_gaps((2, 3), par, par, look, [(L+0, LS+0), (L+1, LS+1)])
        extra = {}
        waits = {}
        if not noqk:
            waits[0] = "s_waitcnt lgkmcnt(8)"
            if mq == 2: waits[16] = "s_waitcnt lgkmcnt(4)"; waits[24] = "s_waitcnt lgkmcnt(4)"
        if vm is not None:
            extra[BARPOS] = ([], [f"s_waitcnt vmcnt({vm})"] + ([] if NOBAR else ["s_barrier"]))
        if toggleK is not None:
            gi = 0 if toggleK == 0 else 16
            e = extra.setdefault(gi, ([], [])); e[1].append(f"v_xor_b32 v{VK}, 0x8000, v{VK}")
        place_dmas(extra, dmas)
        emit_half(mf, gaps, extra, waits)
        if not nosm:
            rows = []
            for qq in range(2):
                qp = 2 + qq
                r = dict(S=Sreg(qp, 0, par), P=Preg(qp, par), ls=LS+2+qq)
                if ms == 4:
                    r['qb'] = qp
                    r['subs'] = ([Sreg(qp, 0, n), CXr(qp, 0)] if (mq == 4 and not noqk) else [])
                else:
                    r['qb'] = qq
                    r['subs'] = [CXr(qq, 0), CXr(qp, 0)] + ([] if noqk else [Sreg(qq, 0, n), Sreg(qp, 0, n)])
                    r['Pscale'] = [Preg(qq, par)+k for k in range(4)]
                rows.append(r)
            check_site(rescale(rows) + relook(look))

    def place_dmas(extra, dmas):
        for c, g0 in dmas:
            pre, d, post = dma_group(c)
            if ONES:
                for j in range(4): extra.setdefault(3 + 8*j, ([], []))[0].append(d[j])
                extra.setdefault(30, ([], []))[1].extend(post[:1])
                extra.setdefault(31, ([], []))[1].extend(post[1:] + dma_group(c+1)[0])
                continue
            e = extra.setdefault(g0, ([], [])); e[1].extend(pre)
            for j in range(4):
                e = extra.setdefault(g0+1+4*j if g0+1+4*j < 32 else 31, ([], [])); e[0].append(d[j])
            e = extra.setdefault(min(31, g0+2+12), ([], [])); e[1].extend(post)

    def H2(par, mp, mnext, vu, toggleV=None, dmas=(), nopv=False, nosm=False, czero=False):
        n = 1 - par
        mf = []
        if nopv: mf = [(None, None)]*32
        elif mp == 4:
            for db in range(8):
                for qp in range(4):
                    d = Oreg(db, qp)
                    mf.append((f"{MF} {vr(d,4)}, {ar(VF+4*db,4)}, {vr(Preg(qp,par),4)}, {'0' if czero else vr(d,4)}", vread(db, vu[0]) if qp == 3 else None))
        else:
            for j in range(16):
                sel, db = j//8, j % 8
                for qb in range(2):
                    d = Oreg(db, qb)
                    rd = None
                    if qb == 1 and not (nosm and sel == 1): rd = vread(db, vu[sel])
                    mf.append((f"{MF} {vr(d,4)}, {ar(VF+4*db,4)}, {vr(Preg(2*sel+qb,par),4)}, {vr(d,4)}", rd))
        look = (Sreg(2, 0, n), Sreg(2, 0, n)+1)
        lt = (L+2, L+3) if mp == 4 else (L+0, L+1)
        if nosm:
            gaps = [[] for _ in range(34)]
            if not ONES: gaps[1] = [f"v_add_f32 v{lt[0]}, v{lt[0]}, v{LS+2}", f"v_add_f32 v{lt[1]}, v{lt[1]}, v{LS+3}"]
        elif ONES: gaps = sm_gaps1((0, 1), n, n, look)
        else:
            gaps = sm_gaps((0, 1), n, n, look, [(lt[0], LS+2), (lt[1], LS+3)])
        if ONES: mf = list(mf) + (lmf((2, 3), (2, 3) if mp == 4 else (0, 1), par, czero) if not nopv else [(None, None)]*2)
        extra = {}
        waits = {}
        if not nopv:
            waits[0] = "s_waitcnt lgkmcnt(8)" if not nosm else "s_waitcnt lgkmcnt(0)"
            if mp == 2: waits[16] = "s_waitcnt lgkmcnt(4)"; waits[24] = "s_waitcnt lgkmcnt(4)" if not nosm else "s_waitcnt lgkmcnt(0)"
        if toggleV is not None:
            gi = 0 if toggleV == 0 else 16
            e = extra.setdefault(gi, ([], [])); e[1].append(f"v_xor_b32 v{VV}, 0x8000, v{VV}")
        place_dmas(extra, dmas)
        emit_half(mf, gaps, extra, waits)
        if not nosm and not nopv:
            rows = []
            for qb in range(2):
                r = dict(S=Sreg(qb, 0, n), P=Preg(qb, n), ls=LS+qb, qb=qb, subs=[CXr(qb, 0)])
                if mnext == 2: r['subs'] += [Sreg(qb+2, 0, n), CXr(qb+2, 0)]
                rows.append(r)
            check_site(rescale(rows) + relook(look))

    def hook(cond_reg, val, code):
        ls, lb = U("HOOK"), U("HB")
        A(f"s_cmp_eq_u32 s{cond_reg}, {val}\ns_cbranch_scc1 {ls}")
        A.label(lb)
        stubs.append([ls + ":"] + code + [f"s_branch {lb}"])

    hook(sI, 0, patch(2, 0))
    if ONES:
        A(f"v_mov_b32 v{TMP}, 0x3f803f80")
        for i in range(4): A(f"v_accvgpr_write_b32 a{AO+i}, v{TMP}")
    for x in e0: A(x)
    A("s_waitcnt lgkmcnt(0)")
    for ds in range(4):
        p_, d_, po_ = dma_group(4 + ds if LATEKV else 7)
        ep = q_epi(ds+1) if ds < 3 else []
        mfs = []
        for kb in range(2):
            f = kb*4 + ds
            for qp in range(4):
                d = Sreg(qp, kb, 0)
                mfs.append([f"{MF} {vr(d,4)}, {ar(KF+4*f,4)}, {ar(AQ+(qp*4+ds)*4,4)}, {vr(CXr(qp,kb),4) if ds == 0 else vr(d,4)}"] + ([kread(f, 1)] if qp == 3 else []))
        if ds == 0 or LATEKV: mfs[0] = p_ + ["s_nop 0"] + mfs[0]
        if ds == 0 or LATEKV:
            for j in range(4): mfs[1+j] = mfs[1+j] + [d_[j]]
            mfs[6] = mfs[6] + po_
        if ds == 3: A("s_nop 1")
        for k in range(8):
            for x in mfs[k]: A(x)
            for x in ep[8*k:8*k+8]: A(x)
    rows = []
    for qp in range(4): rows.append(dict(S=Sreg(qp, 0, 0), subs=[CXr(qp, 0)], P=None))
    for x in rescale(rows, init=True): A(x)
    A(f"v_exp_f32 v{E}, v{Sreg(0,0,0)}\nv_exp_f32 v{E+1}, v{Sreg(0,0,0)+1}")
    H2(1, 4, 4, None, nopv=True)
    stamp(A, 4)
    A(f"s_mov_b32 s{sCNT}, s{sI}")
    if ONES: A(dma_group(8)[0][0])
    A("s_waitcnt lgkmcnt(0)")

    def period44(r, pre=None, czero=False):
        par = r % 2
        if pre: pre()
        ku = (r+2) % 4; vu = (r+1+2) % 4
        H1(par, 4, 4, [ku], toggleK=0 if ku == 0 else None, vm=16, dmas=[(r, 8)], czero=czero)
        H2(par, 4, 4, [vu], toggleV=0 if vu == 0 else None, czero=czero)

    period44(0, pre=lambda: hook(sI, 0, patch(2, 1)), czero=True)
    A(f"s_cmp_eq_u32 s{sCNT}, 0\ns_cbranch_scc1 K2_SPECIAL_R1\ns_branch K2_LOOPA_R1")
    A(".p2align 6")
    A.label("K2_LOOPA")
    for r in range(4):
        if r == 1: A.label("K2_LOOPA_R1")
        period44(r, pre=(lambda: hook(sCNT, 1, patch(2, 0))) if r == 3 else None)
    A(f"s_sub_u32 s{sCNT}, s{sCNT}, 1\ns_cmp_lg_u32 s{sCNT}, 0\ns_cbranch_scc1 K2_LOOPA")
    A.label("K2_SPECIAL")
    for r in range(3):
        if r == 1: A.label("K2_SPECIAL_R1")
        period44(r, pre=lambda: [A(x) for x in patch(2, r+1)])
    A(f"s_cmp_lt_u32 s{sW}, 2\ns_cselect_b32 s{S_T}, s{P_WO}, s{P_WD}\ns_cselect_b32 s{S_T+1}, s{P_WO+1}, s{P_WD+1}\ns_mov_b32 s{sT0}, {1376*1024}\ns_cselect_b32 s{S_T+2}, {4096*1024}, s{sT0}")
    A(f"s_mul_i32 s{sT0}, s2, {43*128}\ns_lshl_b32 s{sT1}, s2, 14\ns_cselect_b32 s{sT0}, s{sT1}, s{sT0}".replace("s_lshl_b32 s{sT1}, s2, 14".format(sT1=sT1), f"s_mul_i32 s{sT1}, s2, 16384"))
    A(f"s_and_b32 s{sT1}, s{sW}, 1\ns_lshl_b32 s{sT1}, s{sT1}, 13\ns_add_u32 s{sT0}, s{sT0}, s{sT1}\nv_and_b32 v{TMP+7}, 0x3ff, v{VK}\nv_lshlrev_b32 v{TMP+7}, 3, v{TMP+7}")
    A(f"buffer_load_dword v{TMP+7}, v{TMP+7}, s[{S_T}:{S_T+3}], s{sT0} offen")
    if CT:
        A(f"v_and_b32 v{TMP+6}, 0x3ff, v{VK}")
        code_touch(A, "k3_kernel", "K4_END", sW, TMP+6, TMP+6, 80, lane_shift=4)
    if CTX_TOUCH:
        A(f"v_lshrrev_b32 v{TMP+6}, 8, v{VK}\nv_and_b32 v{TMP+6}, 3, v{TMP+6}\nv_lshlrev_b32 v{TMP+6}, 12, v{TMP+6}\nv_and_b32 v{TMP+5}, 0xf0, v{VK}\nv_lshl_add_u32 v{TMP+6}, v{TMP+5}, 3, v{TMP+6}")
        A(f"buffer_load_dword v{TMP+5}, v{TMP+6}, s[{S_WS}:{S_WS+3}], s{sOHI} offen\nbuffer_load_dword v{TMP+6}, v{TMP+6}, s[{S_WS}:{S_WS+3}], s{sOLO} offen")
    for i in range(16): A(f"v_mov_b32 v{CXr(2,0)+i}, v{CXr(0,0)+i}")
    hook(sI, 7, patch(0, 0) + patch(2, 1))
    A("s_nop 1")
    H1(1, 2, 4, [1, 2], vm=16, dmas=[(3, 8)])
    H2(1, 4, 2, [2])
    stamp(A, 5)
    A(f"s_lshl_b32 s{sT0}, s{sI}, 1\ns_sub_u32 s{sCNT}, 14, s{sT0}")
    def period22(r, last_qk=False):
        par = r
        ku = [3, 0] if r == 0 else [1, 2]
        vu = [3, 0] if r == 0 else [1, 2]
        c0 = 2*r
        H1(par, 2, 2, ku, toggleK=1 if r == 0 else None, vm=12, dmas=[(c0, 8)], last=last_qk)
        H2(par, 2, 2, vu, toggleV=1 if r == 0 else None, dmas=[(c0+1, 8)])
    A(f"s_cmp_eq_u32 s{sCNT}, 0\ns_cbranch_scc1 K2_TAIL")
    A(".p2align 6")
    A.label("K2_LOOPB")
    period22(0)
    hook(sCNT, 1, patch(0, 0) + patch(2, 1))
    period22(1)
    A(f"s_sub_u32 s{sCNT}, s{sCNT}, 1\ns_cmp_lg_u32 s{sCNT}, 0\ns_cbranch_scc1 K2_LOOPB")
    A.label("K2_TAIL")
    for x in patch(0, 2) + patch(2, 3): A(x)
    H1(0, 2, 2, [3, 0], toggleK=None, vm=12, last=True)
    H2(0, 2, 2, [3, 0], toggleV=1)
    H1(1, 2, 2, None, noqk=True, vm=0)
    H2(1, 2, 2, [1, 2], nosm=True)
    stamp(A, 6)
    if ONES:
        A("s_nop 7")
        for qb in range(4): A(f"v_accvgpr_read_b32 v{L+qb}, a{AL+4*qb}")
        for qb in range(4): A(f"v_rcp_f32 v{L+qb}, v{L+qb}")
    else:
        for qb in range(4):
            D, D2 = L+qb, TMP+1
            A(f"v_mov_b32 v{D2}, v{D}\ns_nop 1\nv_permlane16_swap_b32 v{D}, v{D2}\nv_add_f32 v{D}, v{D}, v{D2}")
            A(f"v_mov_b32 v{D2}, v{D}\ns_nop 1\nv_permlane32_swap_b32 v{D}, v{D2}\nv_add_f32 v{D}, v{D}, v{D2}")
            A(f"v_rcp_f32 v{D}, v{D}")
    A(f"v_and_b32 v{VK}, 0x3ff, v{VK}")
    oq = 0
    for qb in (2, 3, 0, 1):
        for ds in range(4):
            ob = S01 + 4*oq
            for h in range(2):
                b = Oreg(2*ds+h, qb)
                for i in range(4): A(f"v_mul_f32 v{b+i}, v{b+i}, v{L+qb}")
                A(f"v_cvt_pk_bf16_f32 v{ob+2*h}, v{b}, v{b+1}\nv_cvt_pk_bf16_f32 v{ob+2*h+1}, v{b+2}, v{b+3}")
            A(f"s_add_u32 s{sT0}, s{sOHI if qb < 2 else sOLO}, {ds*4096}")
            A(f"buffer_store_dwordx4 {vr(ob,4)}, v{VK}, s[{S_WS}:{S_WS+3}], s{sT0} offen offset:{(qb%2)*1024}{store_flags}")
            oq = (oq+1) % 4
    if asmlib.STAMP:
        A("s_waitcnt vmcnt(0)")
        stamp_flush(A, 0, 8, P_WS, sW)
    A.label("K2_END")
    A("s_endpgm")
    for st in stubs:
        for x in st: A(x)
    return dict(name="k12_kernel", vgpr=512, accum=256, sgpr=102, grid=256, block=256, lds=163840)
```

```python
from asmlib import *
import asmlib
from k1q import KV_BASE, A3_BASE, A3_TB64, WS_USED, MF, f32bits, XC_BASE, SCQ_BASE

import os
QST = os.environ.get('QST', '0') == '1'
QPLAN = os.environ.get('QPLAN', '3')
CT = os.environ.get('CODE_TOUCH2', '1') == '1'
QROT = int(os.environ.get('QROT', '2'))
LATEKV = os.environ.get('LATEKV', '1') == '1'
NOBAR = os.environ.get('NOBAR', '0') == '1'
BARPOS = int(os.environ.get('BARPOS', '0'))
NOCHK = os.environ.get('NOCHK', '0') == '1'
CHKE = os.environ.get('CHKE', '1') == '1'
ONES = os.environ.get('ONES', '0') == '1'
BIAS = 24.0
CTX_TOUCH = os.environ.get('CTX_TOUCH', '0') == '1'
def gen_k2(A, store_flags="", thr=2.0**30):
    O = 0; S01 = 128; S23 = [144, 160]; P01 = [176, 184]; P23 = 192; CX = 200; E = 232; LS = 236; L = 240
    VK = 244; VV = 245; VD = 246; TMP = 247
    AQ = 0; KF = 64; VF = 96; AL = 128; AO = 144
    NG = 34 if ONES else 32
    S_KV, S_WS = 8, 12
    sW, sH, sI, sT0, sT1, sOFF, sHALF, sCNT, sTHR, sNEG = 16, 17, 18, 19, 20, 21, 22, 23, 24, 25
    sMK = 26
    sRET = 34
    sP = 36; sOHI = 37; sOLO = 38
    P_WS = 40; P_WO = 42; P_WD = 44; P_WQ = 46; S_T = 48; sXH = 52; sXL = 53; sWQ = 54; sMQ = 55
    def Sreg(qp, kb, par): return (S01 + (qp*2+kb)*4) if qp < 2 else (S23[par] + ((qp-2)*2+kb)*4)
    def Preg(qp, par): return (P01[par] + qp*4) if qp < 2 else (P23 + (qp-2)*4)
    def Oreg(db, qb): return O + (db*4+qb)*4
    def CXr(qp, kb): return CX + (qp*2+kb)*4
    stubs = []
    uid = [0]
    def U(p): uid[0] += 1; return f"K2_{p}_{uid[0]}"

    A(".globl k2_kernel\n.p2align 8\n.type k2_kernel,@function")
    A.label("k2_kernel")
    A("s_cmp_ge_u32 s2, 256\ns_cbranch_scc1 K2_END")
    stamp(A, 0)
    A(f"s_load_dwordx2 s[{P_WS}:{P_WS+1}], s[0:1], 96\ns_load_dwordx2 s[{P_WO}:{P_WO+1}], s[0:1], 40\ns_load_dwordx2 s[{P_WD}:{P_WD+1}], s[0:1], 72\ns_load_dwordx2 s[{P_WQ}:{P_WQ+1}], s[0:1], 16\ns_mov_b32 s{S_T+3}, 0x00020000")
    A(f"v_lshrrev_b32 v{TMP}, 6, v0\nv_and_b32 v{TMP+1}, 63, v0\ns_nop 0\nv_readfirstlane_b32 s{sW}, v{TMP}")
    A(f"s_and_b32 s{sT0}, s2, 7\ns_lshr_b32 s{sT1}, s2, 3\ns_lshr_b32 s{sI}, s{sT1}, 2\ns_and_b32 s{sT1}, s{sT1}, 3\ns_lshl_b32 s{sH}, s{sT0}, 2\ns_add_u32 s{sH}, s{sH}, s{sT1}")
    A(f"s_mov_b32 s{S_KV+3}, 0x00020000\ns_mov_b32 s{S_WS+3}, 0x00020000\ns_mov_b32 s{S_WS+2}, {WS_USED}")
    A(f"s_lshl_b32 s{sT0}, s{sI}, 16\ns_sub_u32 s{S_KV+2}, 0x108000, s{sT0}")
    A(f"s_mov_b32 s{sTHR}, {hex(0x40000000 if ONES else f32bits(thr))}\ns_mov_b32 s{sNEG}, 0xff800000")
    LN = TMP+1
    A(f"v_lshlrev_b32 v{VK}, 4, v{LN}\nv_add_u32 v{VV}, 0x10000, v{VK}")
    A(f"s_lshl_b32 s{sT0}, s{sW}, 12\nv_add_u32 v{VD}, s{sT0}, v{VK}")
    A(f"s_and_b32 s{sT0}, s{sW}, 1\ns_lshl_b32 s{sHALF}, s{sT0}, 12\ns_lshr_b32 s{sT0}, s{sW}, 1\ns_lshl_b32 s{sT1}, s{sT0}, 16\ns_add_u32 s{sHALF}, s{sHALF}, s{sT1}")
    A(f"s_lshl_b32 s{sT0}, s{sT0}, 15\ns_sub_u32 s{sOFF}, 0x8000, s{sT0}")
    if CT: code_touch(A, "k2_kernel", "K2_END", sW, LN, TMP+7, 80)
    A("s_waitcnt lgkmcnt(0)")
    if not QST: stamp(A, 5)
    A(f"s_mov_b32 s{S_WS}, s{P_WS}\ns_mov_b32 s{S_WS+1}, s{P_WS+1}")
    A(f"s_lshl_b32 s{sT0}, s{sH}, 20\ns_add_u32 s{sT0}, s{sT0}, {KV_BASE-0x8000}\ns_add_u32 s{S_KV}, s{P_WS}, s{sT0}\ns_addc_u32 s{S_KV+1}, s{P_WS+1}, 0")
    A(f"s_lshr_b32 s{sT0}, s{sW}, 1\ns_lshl_b32 s{sT1}, s{sI}, 1\ns_add_u32 s{sOLO}, s{sT1}, s{sT0}\ns_sub_u32 s{sOHI}, 30, s{sT1}\ns_add_u32 s{sOHI}, s{sOHI}, s{sT0}")
    A(f"s_mul_i32 s{sOLO}, s{sOLO}, {A3_TB64}\ns_mul_i32 s{sOHI}, s{sOHI}, {A3_TB64}")
    A(f"s_lshl_b32 s{sT0}, s{sH}, 14\ns_and_b32 s{sT1}, s{sW}, 1\ns_lshl_b32 s{sT1}, s{sT1}, 11\ns_add_u32 s{sT0}, s{sT0}, s{sT1}\ns_add_u32 s{sT0}, s{sT0}, {A3_BASE}")
    A(f"s_add_u32 s{sOLO}, s{sOLO}, s{sT0}\ns_add_u32 s{sOHI}, s{sOHI}, s{sT0}")
    def kread(f, unit4): return f"ds_read_b128 {ar(KF+4*f,4)}, v{VK} offset:{unit4*8192 + f*1024}"
    def vread(f, slot4): return f"ds_read_b128 {ar(VF+4*f,4)}, v{VV} offset:{slot4*8192 + f*1024}"
    def dma_group(c):
        pre = [f"s_add_u32 m0, s{sHALF}, {(c%4)*8192}"]
        d = [f"buffer_load_dwordx4 v{VD}, s[{S_KV}:{S_KV+3}], s{sOFF} offen offset:{j*1024} lds" for j in range(4)]
        post = [f"s_add_u32 s{sOFF}, s{sOFF}, 16384"]
        if c % 4 == 3: post.append(f"s_xor_b32 s{sHALF}, s{sHALF}, 0x8000")
        return pre, d, post
    AR = 128; TRQ = S01; VQ = S01 + 8
    A(f"s_mov_b32 s{S_T}, s{P_WQ}\ns_mov_b32 s{S_T+1}, s{P_WQ+1}\ns_mov_b32 s{S_T+2}, {512*8192}")
    A(f"s_lshl_b32 s{sT0}, s{sI}, 3\ns_lshl_b32 s{sT1}, s{sW}, 1\ns_add_u32 s{sXL}, s{sT0}, s{sT1}\ns_sub_u32 s{sXH}, 120, s{sT0}\ns_add_u32 s{sXH}, s{sXH}, s{sT1}")
    A(f"s_lshl_b32 s{sP}, s{sXH}, 6\ns_add_u32 s{sP}, s{sP}, {SCQ_BASE}\ns_lshl_b32 s{sCNT}, s{sXL}, 6\ns_add_u32 s{sCNT}, s{sCNT}, {SCQ_BASE}")
    A(f"s_lshl_b32 s{sXH}, s{sXH}, 14\ns_add_u32 s{sXH}, s{sXH}, {XC_BASE}\ns_lshl_b32 s{sXL}, s{sXL}, 14\ns_add_u32 s{sXL}, s{sXL}, {XC_BASE}")
    A(f"s_lshl_b32 s{sWQ}, s{sH}, 8\ns_lshl_b32 s{sT0}, s{sW}, 16\ns_add_u32 s{sWQ}, s{sWQ}, s{sT0}\ns_lshl_b32 s{sMQ}, s{sW}, 11\ns_add_u32 s{sMQ}, s{sMQ}, 32768")
    A(f"v_lshrrev_b32 v{TMP+2}, 4, v{LN}\nv_and_b32 v{TMP+3}, 15, v{LN}\ns_and_b32 s{sT0}, s{sW}, 1\ns_lshl_b32 s{sT0}, s{sT0}, 2\nv_or_b32 v{TMP+4}, s{sT0}, v{TMP+2}\nv_lshlrev_b32 v{TMP+4}, 1, v{TMP+4}\nv_xor_b32 v{TMP+4}, v{TMP+4}, v{TMP+3}")
    A(f"v_lshlrev_b32 v{TMP+5}, 13, v{TMP+2}\nv_lshl_add_u32 v{VQ}, v{TMP+4}, 4, v{TMP+5}\nv_add_u32 v{VQ+1}, {4*8192-1024}, v{VQ}\nv_add_u32 v{VQ+2}, 16384, v{VK}")
    sQO, sWQQ, sXH1, sXL1 = 56, 60, 84, 85
    rsrc = {0: "0", 1: f"s{sH}", 2: f"s{sI}"}[QROT if QROT < 3 else 1]
    if QROT == 3: A(f"s_add_u32 s{sT1}, s{sH}, s{sI}"); rsrc = f"s{sT1}"
    for q in range(4):
        A(f"s_add_u32 s{sT0}, {rsrc}, {q}\ns_and_b32 s{sT0}, s{sT0}, 3\ns_lshl_b32 s{sQO+q}, s{sT0}, 12\ns_lshl_b32 s{sT0}, s{sT0}, 20\ns_add_u32 s{sWQQ+q}, s{sWQ}, s{sT0}")
    def w_loads(n):
        return [[f"s_add_u32 m0, s{sMQ}, {n*8192}", f"s_add_u32 s{sT0}, s{sWQQ+n//4}, {(n%4)*32*8192}"],
                [f"buffer_load_dwordx4 v{VQ}, s[{S_T}:{S_T+3}], s{sT0} offen lds"], [f"buffer_load_dwordx4 v{VQ+1}, s[{S_T}:{S_T+3}], s{sT0} offen offset:1024 lds"]]
    def adst(n, t):
        if n < 8: return ar(AR+n*16+4*t, 4)
        if n < 12: return ar((n-8)*16+4*t, 4)
        if n < 14: return ar(96+(n-12)*16+4*t, 4)
        return vr(144+(n-14)*16+4*t, 4)
    def a_loads(n):
        o = []
        if n % 4 == 0: o.append([f"s_add_u32 s{sXH1}, s{sXH}, s{sQO+n//4}", f"s_add_u32 s{sXL1}, s{sXL}, s{sQO+n//4}"])
        for t in range(4):
            o.append([f"buffer_load_dwordx4 {adst(n,t)}, v{VQ+2 if t % 2 else VK}, s[{S_WS}:{S_WS+3}], s{sXH1 if t < 2 else sXL1} offen offset:{(n%4)*1024}"])
        return o
    seq = []
    def mk(tags):
        its = []
        for k, n in tags:
            x = (w_loads if k == 'W' else a_loads)(n)
            for it in x:
                for y in it:
                    if y.startswith('buffer'): seq.append((k, n))
            its += x
        return its
    def vmq(tag): return min(63, len(seq) - 1 - max(i for i, e in enumerate(seq) if e == tag))
    def vmq_(tag): return len(seq) - 1 - max(i for i, e in enumerate(seq) if e == tag)
    for it in mk([('W',0),('A',0),('W',1),('W',2),('A',1),('A',2),('W',3),('W',4),('A',3)]):
        for x in it: A(x)
    A(f"v_lshlrev_b32 v{TMP+4}, 2, v{TMP+3}")
    A(f"v_bfe_u32 v{TMP+3}, v{LN}, 2, 2\nv_and_b32 v{TMP+6}, 1, v{TMP+2}\nv_lshl_add_u32 v{TMP+6}, v{TMP+6}, 2, v{TMP+3}\nv_lshl_add_u32 v{TMP+3}, v{TMP+2}, 3, v{TMP+3}\nv_lshlrev_b32 v{TMP+3}, 8, v{TMP+3}")
    A(f"v_and_b32 v{TMP+5}, 3, v{LN}\nv_lshl_add_u32 v{TMP+3}, v{TMP+5}, 3, v{TMP+3}\nv_add_u32 v{TMP+3}, 0x8000, v{TMP+3}")
    for nb in range(8): A(f"v_xor_b32 v{TMP+5}, {nb}, v{TMP+6}\nv_lshl_add_u32 v{TRQ+nb}, v{TMP+5}, 5, v{TMP+3}")
    def qtr(nb, ks): return [f"ds_read_b64_tr_b16 {ar(KF+4*nb,2)}, v{TRQ+nb} offset:{(ks%8)*8192}", f"ds_read_b64_tr_b16 {ar(KF+4*nb+2,2)}, v{TRQ+nb} offset:{(ks%8)*8192+1024}"]
    if not QST: stamp(A, 6)
    A(f"s_waitcnt vmcnt({vmq(('W', 0))})\ns_barrier")
    for nb in range(8):
        for x in qtr(nb, 0): A(x)
    A("s_waitcnt lgkmcnt(12)")
    plan = {0: [('A',4),('W',5),('A',5),('W',6),('A',6),('W',7)], 1: [('A',7),('W',8),('A',8),('W',9),('A',9),('W',10)], 2: [('A',10),('W',11),('A',11),('W',12),('A',12),('W',13)],
            3: [('A',13),('W',14),('A',14),('W',15),('A',15)]}
    if QPLAN == '2':
        plan = {0: [('A',4),('W',5),('W',6),('A',5),('W',7),('W',8)], 1: [('A',6),('W',9),('W',10),('A',7),('W',11),('W',12)], 2: [('A',8),('W',13),('W',14),('W',15),('A',9)]}
        for k_ in range(3, 9): plan[k_] = [('A', k_+7)]
    if QPLAN == '3':
        plan = {0: [('A',4),('W',5),('A',5)], 1: [('W',6),('A',6),('W',7),('A',7)], 2: [('W',8),('A',8),('W',9),('A',9)], 3: [('W',10),('A',10),('W',11)], 4: [('A',11),('W',12),('W',13)], 5: [('A',12),('W',14),('W',15)], 6: [('A',13)], 7: [('A',14)], 8: [('A',15)]}
    bars = {0: 2, 2: 4, 4: 8, 8: 15}
    NEGV = TMP+8
    misc = [f"v_mov_b32 v{r}, 0" for r in list(range(CX, CX+32)) + list(range(LS, LS+8))]
    misc += [f"v_and_b32 v{TMP+2}, 15, v{LN}", f"v_lshrrev_b32 v{TMP+3}, 4, v{LN}", f"v_lshlrev_b32 v{TMP+3}, 2, v{TMP+3}", f"v_sub_u32 v{TMP+2}, v{TMP+2}, v{TMP+3}"]
    misc += [f"v_cmp_le_i32 s[{sMK+2*i}:{sMK+2*i+1}], {i}, v{TMP+2}" for i in range(4)] + [f"v_mov_b32 v{NEGV}, s{sNEG}", "s_nop 0"]
    def q_epi(ds):
        o = []
        for qb in range(4):
            tq = QT + 4*(qb % 2)
            for h in range(2):
                b_ = Oreg(2*ds+h, qb)
                o += [f"v_mul_f32 v{b_+i}, v{b_+i}, v{E+qb}" for i in range(4)]
                o += [f"v_cvt_pk_bf16_f32 v{tq+2*h}, v{b_}, v{b_+1}", f"v_cvt_pk_bf16_f32 v{tq+2*h+1}, v{b_+2}, v{b_+3}"]
            o += [f"v_accvgpr_write_b32 a{AQ+(qb*4+ds)*4+i}, v{tq+i}" for i in range(4)]
        return o
    QT = P01[0]
    e0 = q_epi(0)
    for ks in range(16):
        gaps = {}
        def G(m): return gaps.setdefault(m, [])
        pre = [f"s_waitcnt vmcnt({vmq(('A', ks))})"]
        if ks in bars: G(0).extend([f"s_waitcnt vmcnt({vmq(('W', bars[ks]))})", "s_barrier"])
        if ks == 12: G(0).append("s_barrier")
        if ks == 15: G(0).extend([f"s_waitcnt vmcnt({0 if LATEKV else 8})", "s_barrier"])
        its = mk(plan.get(ks, []))
        if ks == 8:
            for qb in range(4):
                its.append([f"buffer_load_dword v{E+qb}, v{TMP+4}, s[{S_WS}:{S_WS+3}], s{sP if qb < 2 else sCNT} offen offset:{(qb%2)*64}"]); seq.append(('S', 0))
        if ks >= 9 and (ks <= 12 or not LATEKV):
            c = ks - 9
            p_, d_, po_ = dma_group(c)
            if c < 2:
                lab = U("KS")
                its += [[f"s_cmp_ge_u32 s{sW}, 2", f"s_cbranch_scc1 {lab}"] + p_ + ["s_nop 0"] + d_ + [lab + ":"] + po_]
            else:
                its += [p_] + [[x] for x in d_] + [po_]
                seq += [('KV', c)]*4
        if ks in (13, 14): its += [misc[(ks-13)*26+2*k:(ks-13)*26+2*k+2] for k in range(13)]
        if ks == 15: its += [[vread(2*k, 2), vread(2*k+1, 2)] for k in range(4)]
        m = 1
        for it in its:
            G(m).extend(it)
            m = m + 1 if (m + 1) % 4 != 3 else m + 2
        if ks == 15:
            while m < 31:
                G(m).extend(e0[:2]); e0 = e0[2:]
                m = m + 1 if (m + 1) % 4 != 3 else m + 2
        assert m < 33, m
        if ks < 15:
            for grp in range(1, 8, 2): G(grp*4+2).append("s_waitcnt lgkmcnt(10)")
        else:
            G(6).append("s_waitcnt lgkmcnt(8)"); G(14).append("s_waitcnt lgkmcnt(11)")
        for x in pre: A(x)
        if QST and ks in (1, 4, 8, 12): stamp(A, {1: 5, 4: 6, 8: 3, 12: 4}[ks])
        for nb in range(8):
            for t in range(4):
                d = Oreg(nb, t)
                A(f"{MF} {vr(d,4)}, {ar(KF+4*nb,4)}, {adst(ks,t)}, {'0' if ks == 0 else vr(d,4)}")
                if t == 3 and ks < 15:
                    if ks == 7: A(f"v_add_u32 v{TRQ+nb}, 0x10000, v{TRQ+nb}")
                    for x in qtr(nb, ks+1): A(x)
                if t == 3 and ks == 15: A(kread(nb, 0))
                for x in G(nb*4+t): A(x)
    stamp(A, 1)

    def Dpatch(q0):
        o = []
        for i in range(4): o.append(f"v_cndmask_b32 v{CXr(q0,0)+i}, v{NEGV}, v{CXr(q0,0)+i}, s[{sMK+2*i}:{sMK+2*i+1}]")
        for i in range(4): o.append(f"v_mov_b32 v{CXr(q0,1)+i}, v{NEGV}")
        for i in range(4): o.append(f"v_cndmask_b32 v{CXr(q0+1,1)+i}, v{NEGV}, v{CXr(q0+1,1)+i}, s[{sMK+2*i}:{sMK+2*i+1}]")
        return o
    def Fpatch(q0): return [f"v_mov_b32 v{CXr(q0,0)+i}, v{NEGV}" for i in range(16)]
    def patch(q0, j):
        o = []
        lD, lE = U("PD"), U("PE")
        o.append(f"s_cmp_gt_u32 s{sW}, {j}"); o.append(f"s_cbranch_scc1 {lE}")
        if j > 0:
            o.append(f"s_cmp_eq_u32 s{sW}, {j}"); o.append(f"s_cbranch_scc1 {lD}")
            o += Fpatch(q0); o.append(f"s_branch {lE}")
            o.append(lD + ":")
        o += Dpatch(q0)
        o.append(lE + ":")
        o.append("s_nop 1")
        return o


    def sm_gaps1(qs, srcpar, dstpar, look):
        g = [[] for _ in range(34)]
        src = lambda k: Sreg(qs[k//4], (k % 4)//2, srcpar) + 2*(k % 2)
        pr = lambda k: Preg(qs[k//4], dstpar) + k % 4
        for k in range(8):
            en = E + 2*((k+1) % 2); ec = E + 2*(k % 2)
            cv = f"v_cvt_pk_bf16_f32 v{pr(k)}, v{ec}, v{ec+1}"
            orr = None
            if k % 2 == 1: orr = f"v_or_b32 v{TMP}, v{pr(0)}, v{pr(1)}" if k == 1 else f"v_or3_b32 v{TMP}, v{TMP}, v{pr(k-1)}, v{pr(k)}"
            if k < 7:
                g[4*k].append(f"v_exp_f32 v{en}, v{src(k+1)}"); g[4*k+2].append(f"v_exp_f32 v{en+1}, v{src(k+1)+1}")
                g[4*k+1].append(cv)
                if orr: g[4*k+3].append(orr)
            else:
                g[28] += [cv, orr]
                g[29].append(f"v_lshl_or_b32 v{TMP}, v{TMP}, 16, v{TMP}")
                g[30].append(f"v_cmp_le_u32 vcc, s{sTHR}, v{TMP}")
                if look: g[32].append(f"v_exp_f32 v{en}, v{look[0]}"); g[33].append(f"v_exp_f32 v{en+1}, v{look[1]}")
        return g
    def lmf(qps, rows, par, czero):
        return [(f"{MF} {ar(AL+4*r,4)}, {ar(AO,4)}, {vr(Preg(qp,par),4)}, {'0' if czero else ar(AL+4*r,4)}", None) for qp, r in zip(qps, rows)]

    def sm_gaps(qs, srcpar, dstpar, look, ladd):
        g = [[] for _ in range(32)]
        lsb = LS + (0 if qs[0] == 0 else 2)
        src = lambda k: Sreg(qs[k//4], (k % 4)//2, srcpar) + 2*(k % 2)
        for k in range(8):
            if k < 7: a, b = src(k+1), src(k+1)+1
            elif look: a, b = look
            else: a = None
            en = E + 2*((k+1) % 2); ec = E + 2*(k % 2)
            if a is not None:
                g[4*k].append(f"v_exp_f32 v{en}, v{a}"); g[4*k+2].append(f"v_exp_f32 v{en+1}, v{b}")
            ls = lsb + k//4
            if k % 4 == 0:
                g[4*k+1].append(f"v_add_f32 v{ls}, v{ec}, v{ec+1}")
                lr, lsr = ladd[k//4]
                g[4*k+1].append(f"v_add_f32 v{lr}, v{lr}, v{lsr}")
            else:
                g[4*k+1].append(f"v_add_f32 v{ls}, v{ls}, v{ec}"); g[4*k+1].append(f"v_add_f32 v{ls}, v{ls}, v{ec+1}")
            g[4*k+3].append(f"v_cvt_pk_bf16_f32 v{Preg(qs[k//4], dstpar) + k % 4}, v{ec}, v{ec+1}")
        if not NOCHK:
            if CHKE:
                e_a = g[28]; adds = g[29]; e_b = g[30]
                g[28] = adds; g[29] = [f"v_max_f32 v{TMP}, v{lsb}, v{lsb+1}", f"v_cmp_lt_f32 vcc, s{sTHR}, v{TMP}"]
                g[30] = e_a; g[31] = g[31] + e_b
            else:
                g[30].append(f"v_max_f32 v{TMP}, v{lsb}, v{lsb+1}")
                g[31].append(f"v_cmp_lt_f32 vcc, s{sTHR}, v{TMP}")
        return g

    def rescale(rows, init=False):
        o = ["s_nop 7"]
        D, D2, F = TMP+1, TMP+2, TMP+3
        for r in rows:
            s0 = r['S']
            o.append(f"v_max3_f32 v{D}, v{s0}, v{s0+1}, v{s0+2}")
            o.append(f"v_max3_f32 v{D}, v{D}, v{s0+3}, v{s0+4}")
            o.append(f"v_max3_f32 v{D}, v{D}, v{s0+5}, v{s0+6}")
            o.append(f"v_max_f32 v{D}, v{D}, v{s0+7}")
            o += [f"v_mov_b32 v{D2}, v{D}", "s_nop 1", f"v_permlane16_swap_b32 v{D}, v{D2}", f"v_max_f32 v{D}, v{D}, v{D2}"]
            o += [f"v_mov_b32 v{D2}, v{D}", "s_nop 1", f"v_permlane32_swap_b32 v{D}, v{D2}", f"v_max_f32 v{D}, v{D}, v{D2}"]
            o.append(f"v_ceil_f32 v{D}, v{D}")
            if ONES: o.append(f"v_add_f32 v{D}, {hex(f32bits(BIAS))}, v{D}")
            if not init:
                o.append(f"v_max_f32 v{D}, 0, v{D}")
                o.append(f"v_exp_f32 v{F}, -v{D}")
            for b in [s0] + r['subs']:
                for i in range(8): o.append(f"v_sub_f32 v{b+i}, v{b+i}, v{D}")
            if not init:
                qb = r['qb']
                for db in range(8):
                    for i in range(4): o.append(f"v_mul_f32 v{Oreg(db,qb)+i}, v{Oreg(db,qb)+i}, v{F}")
                if ONES:
                    for i in range(4): o += [f"v_accvgpr_read_b32 v{D2}, a{AL+4*qb+i}", f"v_mul_f32 v{D2}, v{D2}, v{F}", f"v_accvgpr_write_b32 a{AL+4*qb+i}, v{D2}"]
                else: o.append(f"v_mul_f32 v{L+qb}, v{L+qb}, v{F}")
                for pr in r.get('Pscale', []):
                    o += [f"v_lshlrev_b32 v{D2}, 16, v{pr}", f"v_and_b32 v{pr}, 0xffff0000, v{pr}", f"v_mul_f32 v{D2}, v{D2}, v{F}", f"v_mul_f32 v{pr}, v{pr}, v{F}",
                          f"v_cvt_pk_bf16_f32 v{pr}, v{D2}, v{pr}"]
            if r.get('P') is not None:
                ls = r['ls']
                for k in range(4):
                    o += [f"v_exp_f32 v{E}, v{s0+2*k}", f"v_exp_f32 v{E+1}, v{s0+2*k+1}", "s_nop 0"]
                    if ONES: pass
                    elif k == 0: o.append(f"v_add_f32 v{ls}, v{E}, v{E+1}")
                    else: o += [f"v_add_f32 v{ls}, v{ls}, v{E}", f"v_add_f32 v{ls}, v{ls}, v{E+1}"]
                    o.append(f"v_cvt_pk_bf16_f32 v{r['P']+k}, v{E}, v{E+1}")
        return o
    def relook(look):
        return [f"v_exp_f32 v{E}, v{look[0]}", f"v_exp_f32 v{E+1}, v{look[1]}", "s_nop 1"] if look else ["s_nop 1"]

    def check_site(code):
        ls, lb = U("SLOW"), U("BACK")
        if not NOCHK: A(f"s_cbranch_vccnz {ls}")
        A.label(lb)
        stubs.append([ls + ":"] + code + [f"s_branch {lb}"])

    def emit_half(mf, gaps, extra, waits):
        for g in range(len(mf)):
            if g in waits: A(waits[g])
            m, rd = mf[g]
            if m: A(m)
            elif g == 28: A("s_nop 0")
            if rd: A(rd)
            ex = extra.get(g, ([], []))
            for x in ex[0]: A(x)
            for x in ex[1]: A(x)
            for x in gaps[g]: A(x)

    def H1(par, mq, ms, ku, toggleK=None, vm=None, dmas=(), noqk=False, nosm=False, last=False, fill=None, czero=False):
        n = 1 - par
        mf = []
        if noqk: mf = [(None, None)]*32
        elif mq == 4:
            for f in range(8):
                kb, ds = f//4, f % 4
                for qp in range(4):
                    d = Sreg(qp, kb, n)
                    c = vr(CXr(qp, kb), 4) if ds == 0 else vr(d, 4)
                    mf.append((f"{MF} {vr(d,4)}, {ar(KF+4*f,4)}, {ar(AQ+(qp*4+ds)*4,4)}, {c}", kread(f, ku[0]) if qp == 3 else None))
        else:
            for j in range(16):
                sel, f = j//8, j % 8
                kb, ds = f//4, f % 4
                for qb in range(2):
                    qp = 2*sel + qb
                    d = Sreg(qp, kb, n)
                    c = vr(CXr(qp, kb), 4) if ds == 0 else vr(d, 4)
                    rd = None
                    if qb == 1 and not (last and sel == 1): rd = kread(f, ku[sel])
                    mf.append((f"{MF} {vr(d,4)}, {ar(KF+4*f,4)}, {ar(AQ+(qb*4+ds)*4,4)}, {c}", rd))
        look = None if noqk else (Sreg(0, 0, n), Sreg(0, 0, n)+1)
        if nosm:
            gaps = [list(fill[2*g:2*g+2]) if fill else [] for g in range(32)]
        else:
            if ONES:
                gaps = sm_gaps1((2, 3), par, par, look); mf = list(mf) + lmf((0, 1), (0, 1), par, czero)
            else: gaps = sm_gaps((2, 3), par, par, look, [(L+0, LS+0), (L+1, LS+1)])
        extra = {}
        waits = {}
        if not noqk:
            waits[0] = "s_waitcnt lgkmcnt(8)"
            if mq == 2: waits[16] = "s_waitcnt lgkmcnt(4)"; waits[24] = "s_waitcnt lgkmcnt(4)"
        if vm is not None:
            extra[BARPOS] = ([], [f"s_waitcnt vmcnt({vm})"] + ([] if NOBAR else ["s_barrier"]))
        if toggleK is not None:
            gi = 0 if toggleK == 0 else 16
            e = extra.setdefault(gi, ([], [])); e[1].append(f"v_xor_b32 v{VK}, 0x8000, v{VK}")
        place_dmas(extra, dmas)
        emit_half(mf, gaps, extra, waits)
        if not nosm:
            rows = []
            for qq in range(2):
                qp = 2 + qq
                r = dict(S=Sreg(qp, 0, par), P=Preg(qp, par), ls=LS+2+qq)
                if ms == 4:
                    r['qb'] = qp
                    r['subs'] = ([Sreg(qp, 0, n), CXr(qp, 0)] if (mq == 4 and not noqk) else [])
                else:
                    r['qb'] = qq
                    r['subs'] = [CXr(qq, 0), CXr(qp, 0)] + ([] if noqk else [Sreg(qq, 0, n), Sreg(qp, 0, n)])
                    r['Pscale'] = [Preg(qq, par)+k for k in range(4)]
                rows.append(r)
            check_site(rescale(rows) + relook(look))

    def place_dmas(extra, dmas):
        for c, g0 in dmas:
            pre, d, post = dma_group(c)
            if ONES:
                for j in range(4): extra.setdefault(3 + 8*j, ([], []))[0].append(d[j])
                extra.setdefault(30, ([], []))[1].extend(post[:1])
                extra.setdefault(31, ([], []))[1].extend(post[1:] + dma_group(c+1)[0])
                continue
            e = extra.setdefault(g0, ([], [])); e[1].extend(pre)
            for j in range(4):
                e = extra.setdefault(g0+1+4*j if g0+1+4*j < 32 else 31, ([], [])); e[0].append(d[j])
            e = extra.setdefault(min(31, g0+2+12), ([], [])); e[1].extend(post)

    def H2(par, mp, mnext, vu, toggleV=None, dmas=(), nopv=False, nosm=False, czero=False):
        n = 1 - par
        mf = []
        if nopv: mf = [(None, None)]*32
        elif mp == 4:
            for db in range(8):
                for qp in range(4):
                    d = Oreg(db, qp)
                    mf.append((f"{MF} {vr(d,4)}, {ar(VF+4*db,4)}, {vr(Preg(qp,par),4)}, {'0' if czero else vr(d,4)}", vread(db, vu[0]) if qp == 3 else None))
        else:
            for j in range(16):
                sel, db = j//8, j % 8
                for qb in range(2):
                    d = Oreg(db, qb)
                    rd = None
                    if qb == 1 and not (nosm and sel == 1): rd = vread(db, vu[sel])
                    mf.append((f"{MF} {vr(d,4)}, {ar(VF+4*db,4)}, {vr(Preg(2*sel+qb,par),4)}, {vr(d,4)}", rd))
        look = (Sreg(2, 0, n), Sreg(2, 0, n)+1)
        lt = (L+2, L+3) if mp == 4 else (L+0, L+1)
        if nosm:
            gaps = [[] for _ in range(34)]
            if not ONES: gaps[1] = [f"v_add_f32 v{lt[0]}, v{lt[0]}, v{LS+2}", f"v_add_f32 v{lt[1]}, v{lt[1]}, v{LS+3}"]
        elif ONES: gaps = sm_gaps1((0, 1), n, n, look)
        else:
            gaps = sm_gaps((0, 1), n, n, look, [(lt[0], LS+2), (lt[1], LS+3)])
        if ONES: mf = list(mf) + (lmf((2, 3), (2, 3) if mp == 4 else (0, 1), par, czero) if not nopv else [(None, None)]*2)
        extra = {}
        waits = {}
        if not nopv:
            waits[0] = "s_waitcnt lgkmcnt(8)" if not nosm else "s_waitcnt lgkmcnt(0)"
            if mp == 2: waits[16] = "s_waitcnt lgkmcnt(4)"; waits[24] = "s_waitcnt lgkmcnt(4)" if not nosm else "s_waitcnt lgkmcnt(0)"
        if toggleV is not None:
            gi = 0 if toggleV == 0 else 16
            e = extra.setdefault(gi, ([], [])); e[1].append(f"v_xor_b32 v{VV}, 0x8000, v{VV}")
        place_dmas(extra, dmas)
        emit_half(mf, gaps, extra, waits)
        if not nosm and not nopv:
            rows = []
            for qb in range(2):
                r = dict(S=Sreg(qb, 0, n), P=Preg(qb, n), ls=LS+qb, qb=qb, subs=[CXr(qb, 0)])
                if mnext == 2: r['subs'] += [Sreg(qb+2, 0, n), CXr(qb+2, 0)]
                rows.append(r)
            check_site(rescale(rows) + relook(look))

    def hook(cond_reg, val, code):
        ls, lb = U("HOOK"), U("HB")
        A(f"s_cmp_eq_u32 s{cond_reg}, {val}\ns_cbranch_scc1 {ls}")
        A.label(lb)
        stubs.append([ls + ":"] + code + [f"s_branch {lb}"])

    hook(sI, 0, patch(2, 0))
    if ONES:
        A(f"v_mov_b32 v{TMP}, 0x3f803f80")
        for i in range(4): A(f"v_accvgpr_write_b32 a{AO+i}, v{TMP}")
    for x in e0: A(x)
    A("s_waitcnt lgkmcnt(0)")
    for ds in range(4):
        p_, d_, po_ = dma_group(4 + ds if LATEKV else 7)
        ep = q_epi(ds+1) if ds < 3 else []
        mfs = []
        for kb in range(2):
            f = kb*4 + ds
            for qp in range(4):
                d = Sreg(qp, kb, 0)
                mfs.append([f"{MF} {vr(d,4)}, {ar(KF+4*f,4)}, {ar(AQ+(qp*4+ds)*4,4)}, {vr(CXr(qp,kb),4) if ds == 0 else vr(d,4)}"] + ([kread(f, 1)] if qp == 3 else []))
        if ds == 0 or LATEKV: mfs[0] = p_ + ["s_nop 0"] + mfs[0]
        if ds == 0 or LATEKV:
            for j in range(4): mfs[1+j] = mfs[1+j] + [d_[j]]
            mfs[6] = mfs[6] + po_
        if ds == 3: A("s_nop 1")
        for k in range(8):
            for x in mfs[k]: A(x)
            for x in ep[8*k:8*k+8]: A(x)
    rows = []
    for qp in range(4): rows.append(dict(S=Sreg(qp, 0, 0), subs=[CXr(qp, 0)], P=None))
    for x in rescale(rows, init=True): A(x)
    A(f"v_exp_f32 v{E}, v{Sreg(0,0,0)}\nv_exp_f32 v{E+1}, v{Sreg(0,0,0)+1}")
    H2(1, 4, 4, None, nopv=True)
    stamp(A, 2)
    A(f"s_mov_b32 s{sCNT}, s{sI}")
    if ONES: A(dma_group(8)[0][0])
    A("s_waitcnt lgkmcnt(0)")

    def period44(r, pre=None, czero=False):
        par = r % 2
        if pre: pre()
        ku = (r+2) % 4; vu = (r+1+2) % 4
        H1(par, 4, 4, [ku], toggleK=0 if ku == 0 else None, vm=16, dmas=[(r, 8)], czero=czero)
        H2(par, 4, 4, [vu], toggleV=0 if vu == 0 else None, czero=czero)

    period44(0, pre=lambda: hook(sI, 0, patch(2, 1)), czero=True)
    A(f"s_cmp_eq_u32 s{sCNT}, 0\ns_cbranch_scc1 K2_SPECIAL_R1\ns_branch K2_LOOPA_R1")
    A(".p2align 6")
    A.label("K2_LOOPA")
    for r in range(4):
        if r == 1: A.label("K2_LOOPA_R1")
        period44(r, pre=(lambda: hook(sCNT, 1, patch(2, 0))) if r == 3 else None)
    A(f"s_sub_u32 s{sCNT}, s{sCNT}, 1\ns_cmp_lg_u32 s{sCNT}, 0\ns_cbranch_scc1 K2_LOOPA")
    A.label("K2_SPECIAL")
    for r in range(3):
        if r == 1: A.label("K2_SPECIAL_R1")
        period44(r, pre=lambda: [A(x) for x in patch(2, r+1)])
    A(f"s_cmp_lt_u32 s{sW}, 2\ns_cselect_b32 s{S_T}, s{P_WO}, s{P_WD}\ns_cselect_b32 s{S_T+1}, s{P_WO+1}, s{P_WD+1}\ns_mov_b32 s{sT0}, {1376*1024}\ns_cselect_b32 s{S_T+2}, {4096*1024}, s{sT0}")
    A(f"s_mul_i32 s{sT0}, s2, {43*128}\ns_lshl_b32 s{sT1}, s2, 14\ns_cselect_b32 s{sT0}, s{sT1}, s{sT0}".replace("s_lshl_b32 s{sT1}, s2, 14".format(sT1=sT1), f"s_mul_i32 s{sT1}, s2, 16384"))
    A(f"s_and_b32 s{sT1}, s{sW}, 1\ns_lshl_b32 s{sT1}, s{sT1}, 13\ns_add_u32 s{sT0}, s{sT0}, s{sT1}\nv_and_b32 v{TMP+7}, 0x3ff, v{VK}\nv_lshlrev_b32 v{TMP+7}, 3, v{TMP+7}")
    A(f"buffer_load_dword v{TMP+7}, v{TMP+7}, s[{S_T}:{S_T+3}], s{sT0} offen")
    if CT:
        A(f"v_and_b32 v{TMP+6}, 0x3ff, v{VK}")
        code_touch(A, "k3_kernel", "K4_END", sW, TMP+6, TMP+6, 80, lane_shift=4)
    if CTX_TOUCH:
        A(f"v_lshrrev_b32 v{TMP+6}, 8, v{VK}\nv_and_b32 v{TMP+6}, 3, v{TMP+6}\nv_lshlrev_b32 v{TMP+6}, 12, v{TMP+6}\nv_and_b32 v{TMP+5}, 0xf0, v{VK}\nv_lshl_add_u32 v{TMP+6}, v{TMP+5}, 3, v{TMP+6}")
        A(f"buffer_load_dword v{TMP+5}, v{TMP+6}, s[{S_WS}:{S_WS+3}], s{sOHI} offen\nbuffer_load_dword v{TMP+6}, v{TMP+6}, s[{S_WS}:{S_WS+3}], s{sOLO} offen")
    for i in range(16): A(f"v_mov_b32 v{CXr(2,0)+i}, v{CXr(0,0)+i}")
    hook(sI, 7, patch(0, 0) + patch(2, 1))
    A("s_nop 1")
    H1(1, 2, 4, [1, 2], vm=16, dmas=[(3, 8)])
    H2(1, 4, 2, [2])
    if not QST: stamp(A, 3)
    A(f"s_lshl_b32 s{sT0}, s{sI}, 1\ns_sub_u32 s{sCNT}, 14, s{sT0}")
    def period22(r, last_qk=False):
        par = r
        ku = [3, 0] if r == 0 else [1, 2]
        vu = [3, 0] if r == 0 else [1, 2]
        c0 = 2*r
        H1(par, 2, 2, ku, toggleK=1 if r == 0 else None, vm=12, dmas=[(c0, 8)], last=last_qk)
        H2(par, 2, 2, vu, toggleV=1 if r == 0 else None, dmas=[(c0+1, 8)])
    A(f"s_cmp_eq_u32 s{sCNT}, 0\ns_cbranch_scc1 K2_TAIL")
    A(".p2align 6")
    A.label("K2_LOOPB")
    period22(0)
    hook(sCNT, 1, patch(0, 0) + patch(2, 1))
    period22(1)
    A(f"s_sub_u32 s{sCNT}, s{sCNT}, 1\ns_cmp_lg_u32 s{sCNT}, 0\ns_cbranch_scc1 K2_LOOPB")
    A.label("K2_TAIL")
    for x in patch(0, 2) + patch(2, 3): A(x)
    H1(0, 2, 2, [3, 0], toggleK=None, vm=12, last=True)
    H2(0, 2, 2, [3, 0], toggleV=1)
    H1(1, 2, 2, None, noqk=True, vm=0)
    H2(1, 2, 2, [1, 2], nosm=True)
    if not QST: stamp(A, 4)
    if ONES:
        A("s_nop 7")
        for qb in range(4): A(f"v_accvgpr_read_b32 v{L+qb}, a{AL+4*qb}")
        for qb in range(4): A(f"v_rcp_f32 v{L+qb}, v{L+qb}")
    else:
        for qb in range(4):
            D, D2 = L+qb, TMP+1
            A(f"v_mov_b32 v{D2}, v{D}\ns_nop 1\nv_permlane16_swap_b32 v{D}, v{D2}\nv_add_f32 v{D}, v{D}, v{D2}")
            A(f"v_mov_b32 v{D2}, v{D}\ns_nop 1\nv_permlane32_swap_b32 v{D}, v{D2}\nv_add_f32 v{D}, v{D}, v{D2}")
            A(f"v_rcp_f32 v{D}, v{D}")
    A(f"v_and_b32 v{VK}, 0x3ff, v{VK}")
    oq = 0
    for qb in (2, 3, 0, 1):
        for ds in range(4):
            ob = S01 + 4*oq
            for h in range(2):
                b = Oreg(2*ds+h, qb)
                for i in range(4): A(f"v_mul_f32 v{b+i}, v{b+i}, v{L+qb}")
                A(f"v_cvt_pk_bf16_f32 v{ob+2*h}, v{b}, v{b+1}\nv_cvt_pk_bf16_f32 v{ob+2*h+1}, v{b+2}, v{b+3}")
            A(f"s_add_u32 s{sT0}, s{sOHI if qb < 2 else sOLO}, {ds*4096}")
            A(f"buffer_store_dwordx4 {vr(ob,4)}, v{VK}, s[{S_WS}:{S_WS+3}], s{sT0} offen offset:{(qb%2)*1024}{store_flags}")
            oq = (oq+1) % 4
    if asmlib.STAMP:
        A("s_waitcnt vmcnt(0)")
        stamp_flush(A, 1, 8, P_WS, sW)
    A.label("K2_END")
    A("s_endpgm")
    for st in stubs:
        for x in st: A(x)
    return dict(name="k2_kernel", vgpr=512, accum=256, sgpr=96, grid=256, block=256, lds=163840)
```

```python
from asmlib import *
import asmlib
from k1f import KV_BASE, A3_BASE, A3_TB64, WS_USED, MF, f32bits
import math
P_BASE = KV_BASE
P_END = P_BASE + (8 << 20)

import os
K3T = os.environ.get('K3T', '0') == '1'
K3S = os.environ.get('K3S', '1') == '1'
def gen_k3(A, RING=10):
    ACC = 0; AF = 64; WF = 96; RA = 128; TRA = 131; VD = 143; VL = 147; T = 148; VT = 156; DT = 157
    S_L, S_O = 8, 12
    sW, sT0, sT1, sT2, sSP, sTM, sTN, sOFF, sSTR, sM0, sTO, sTS = 16, 17, 18, 19, 20, 21, 22, 23, 24, 25, 26, 27
    P_WO, P_WD, P_WS = 32, 34, 36
    NS = 43
    TS = eval(os.environ.get('K3TS', '(4, 12, 20, 28)'))
    A(".globl k3_kernel\n.p2align 8\n.type k3_kernel,@function")
    A.label("k3_kernel")
    A("s_cmp_ge_u32 s2, 256\ns_cbranch_scc1 K3_END")
    stamp(A, 0)
    A(f"s_load_dwordx2 s[{P_WO}:{P_WO+1}], s[0:1], 40\ns_load_dwordx2 s[{P_WD}:{P_WD+1}], s[0:1], 72\ns_load_dwordx2 s[{P_WS}:{P_WS+1}], s[0:1], 96")
    A(f"v_lshrrev_b32 v{T}, 6, v0\nv_and_b32 v{T+1}, 63, v0\ns_nop 0\nv_readfirstlane_b32 s{sW}, v{T}")
    LN = T+1
    A(f"s_and_b32 s{sSP}, s2, 3\ns_lshr_b32 s{sT0}, s2, 2\ns_and_b32 s{sT0}, s{sT0}, 1\ns_lshl_b32 s{sT0}, s{sT0}, 3\ns_lshr_b32 s{sT1}, s2, 3\ns_and_b32 s{sT1}, s{sT1}, 7\ns_add_u32 s{sTM}, s{sT0}, s{sT1}\ns_lshr_b32 s{sTN}, s2, 6")
    A(f"s_mov_b32 s{S_L+3}, 0x00020000\ns_mov_b32 s{S_O+3}, 0x00020000\ns_mov_b32 s{S_O+2}, {P_END}")
    A(f"s_mul_i32 s{sT0}, s{sSP}, 43\ns_cmp_eq_u32 s{sSP}, 3\ns_cselect_b32 s{sT0}, 128, s{sT0}\ns_cselect_b32 s{sT1}, 0, s{sT0}")
    A(f"s_lshl_b32 s{sM0}, s{sW}, 12")
    A(f"v_lshlrev_b32 v{VL}, 4, v{LN}")
    code_touch(A, "k3_kernel", "K3_END", sW, LN, T+6, 80)
    A(f"s_cmp_lt_u32 s{sW}, 2\ns_cbranch_scc0 K3_WSETUP")
    A(f"s_lshl_b32 s{sT2}, s{sTM}, 1\ns_add_u32 s{sT2}, s{sT2}, s{sW}\ns_mul_i32 s{sOFF}, s{sT2}, {A3_TB64}\ns_lshl_b32 s{sT0}, s{sT0}, 12\ns_add_u32 s{sOFF}, s{sOFF}, s{sT0}\ns_add_u32 s{sOFF}, s{sOFF}, {A3_BASE}")
    A(f"s_mov_b32 s{sSTR}, 4096\ns_mov_b32 s{S_L+2}, {WS_USED}")
    for j in range(4): A(f"v_mov_b32 v{VD+j}, v{VL}")
    A(f"v_lshrrev_b32 v{T+2}, 3, v{LN}\nv_and_b32 v{T+3}, 7, v{LN}\nv_lshlrev_b32 v{T+2}, 12, v{T+2}\nv_lshl_add_u32 v{T+2}, v{T+3}, 7, v{T+2}\ns_lshl_b32 s{sT2}, s{sTN}, 10\nv_add_u32 v{VT}, s{sT2}, v{T+2}")
    A(f"s_waitcnt lgkmcnt(0)\ns_mov_b32 s{S_L}, s{P_WS}\ns_mov_b32 s{S_L+1}, s{P_WS+1}\ns_branch K3_SETUP_DONE")
    A.label("K3_WSETUP")
    A(f"s_lshl_b32 s{sOFF}, s{sT1}, 15\ns_sub_u32 s{sT2}, s{sW}, 2\ns_lshl_b32 s{sT2}, s{sT2}, 14\ns_add_u32 s{sOFF}, s{sOFF}, s{sT2}\ns_lshl_b32 s{sT2}, s{sTN}, 8\ns_add_u32 s{sOFF}, s{sOFF}, s{sT2}")
    A(f"s_mov_b32 s{sSTR}, 32768")
    A(f"v_lshrrev_b32 v{T+2}, 4, v{LN}\nv_and_b32 v{T+3}, 15, v{LN}\nv_lshlrev_b32 v{T+4}, 1, v{T+2}\nv_xor_b32 v{T+3}, v{T+3}, v{T+4}\nv_lshlrev_b32 v{T+2}, 10, v{T+2}\nv_lshl_add_u32 v{VD}, v{T+3}, 4, v{T+2}")
    A(f"v_xor_b32 v{T+2}, 128, v{VD}\nv_add_u32 v{VD+1}, 3072, v{T+2}\nv_add_u32 v{VD+2}, 6144, v{VD}\nv_add_u32 v{VD+3}, 9216, v{T+2}")
    A(f"v_bfe_u32 v{T+2}, v{LN}, 2, 3\nv_lshlrev_b32 v{T+2}, 15, v{T+2}\nv_bfe_u32 v{T+3}, v{LN}, 1, 1\nv_lshl_add_u32 v{T+2}, v{T+3}, 10, v{T+2}\nv_and_b32 v{T+3}, 1, v{LN}\nv_lshl_add_u32 v{T+2}, v{T+3}, 7, v{T+2}")
    A(f"s_and_b32 s{sT2}, s{sTM}, 7\ns_lshl_b32 s{sT2}, s{sT2}, 11\nv_add_u32 v{VT}, s{sT2}, v{T+2}")
    A(f"s_cmp_eq_u32 s{sSP}, 3\ns_mov_b32 s{sT2}, {4096*1024}\ns_cselect_b32 s{S_L+2}, {1376*1024}, s{sT2}")
    A(f"s_waitcnt lgkmcnt(0)\ns_cselect_b32 s{S_L}, s{P_WD}, s{P_WO}\ns_cselect_b32 s{S_L+1}, s{P_WD+1}, s{P_WO+1}")
    A.label("K3_SETUP_DONE")
    A(f"s_lshl_b32 s{sTS}, s{sSTR}, 3\ns_mul_i32 s{sTO}, s{sSTR}, {RING-1}\ns_add_u32 s{sTO}, s{sTO}, s{sOFF}")
    def touch(): return [f"buffer_load_dword v{DT}, v{VT}, s[{S_L}:{S_L+3}], s{sTO} offen", f"s_add_u32 s{sTO}, s{sTO}, s{sTS}"]
    def loads(s):
        pre = [f"s_add_u32 m0, s{sM0}, {(s % RING)*16384}"]
        d = [f"buffer_load_dwordx4 v{VD+j}, s[{S_L}:{S_L+3}], s{sOFF} offen offset:{j*1024} lds" for j in range(4)]
        post = [f"s_add_u32 s{sOFF}, s{sOFF}, s{sSTR}"]
        return pre, d, post
    NPRE = RING - 1
    for s in range(3):
        pre, d, post = loads(s)
        for x in pre + ["s_nop 0"] + d + post: A(x)
    A(f"s_and_b32 s{sT0}, s{sW}, 1\ns_lshl_b32 s{sT0}, s{sT0}, 12\nv_add_u32 v{RA}, s{sT0}, v{VL}")
    A(f"v_lshrrev_b32 v{T+2}, 2, v{LN}\nv_and_b32 v{T+3}, 7, v{T+2}\nv_lshlrev_b32 v{T+2}, 8, v{T+2}\nv_and_b32 v{T+4}, 3, v{LN}\nv_lshl_add_u32 v{T+2}, v{T+4}, 3, v{T+2}\nv_add_u32 v{T+2}, 8192, v{T+2}")
    A(f"s_lshr_b32 s{sT0}, s{sW}, 1\ns_lshl_b32 s{sT0}, s{sT0}, 2\nv_xor_b32 v{T+3}, s{sT0}, v{T+3}")
    for nb in range(4): A(f"v_xor_b32 v{T+4}, {nb}, v{T+3}\nv_lshl_add_u32 v{TRA+nb}, v{T+4}, 5, v{T+2}")
    for k in range(1, 3):
        A(f"v_add_u32 v{RA+k}, {k*65536}, v{RA}")
        for nb in range(4): A(f"v_add_u32 v{TRA+4*k+nb}, {k*65536}, v{TRA+nb}")
    A(f"s_lshl_b32 s{sT0}, s{sSP}, 21\ns_lshl_b32 s{sT1}, s{sTM}, 17\ns_add_u32 s{sT0}, s{sT0}, s{sT1}\ns_lshl_b32 s{sT1}, s{sTN}, 15\ns_add_u32 s{sT0}, s{sT0}, s{sT1}\ns_lshl_b32 s{sT1}, s{sW}, 13\ns_add_u32 s{sT0}, s{sT0}, s{sT1}\ns_add_u32 s{sTM}, s{sT0}, {P_BASE}")
    A(f"s_mov_b32 s{S_O}, s{P_WS}\ns_mov_b32 s{S_O+1}, s{P_WS+1}")
    for s in range(3, NPRE):
        pre, d, post = loads(s)
        for x in pre + ["s_nop 0"] + d + post: A(x)
    def reads(s):
        sl = s % RING; hi = (sl*16384) // 65536; off = (sl*16384) % 65536
        o = []
        for k in range(4):
            o.append(f"ds_read_b64_tr_b16 {vr(WF+16*(s%2)+4*k,2)}, v{TRA+4*hi+k} offset:{off}")
            o.append(f"ds_read_b64_tr_b16 {vr(WF+16*(s%2)+4*k+2,2)}, v{TRA+4*hi+k} offset:{off+4096}")
            o.append(f"ds_read_b128 {vr(AF+16*(s%2)+4*k,4)}, v{RA+hi} offset:{off+k*1024}")
        return o
    seq = [n for n in range(NPRE) for _ in range(4)]
    def vmn(n): return len(seq) - 1 - max(i for i, e in enumerate(seq) if e == n)
    if K3T:
        for x in touch(): A(x)
        seq.append('t')
    A(f"s_waitcnt vmcnt({vmn(0)})\ns_barrier")
    stamp(A, 1)
    for x in reads(0): A(x)
    for s in range(NS):
        if s == 21: stamp(A, 2)
        extra = {}
        if K3S and s > 0 or not K3S: pass
        if not (K3S and s > 0): A("s_waitcnt lgkmcnt(0)")
        if K3S: extra[15] = ["s_waitcnt lgkmcnt(0)"]
        if s % 2 == 0:
            need = min(s+2, NS-1)
            extra[0] = [f"s_waitcnt vmcnt({vmn(need)})", "s_barrier"]
        rd = reads(s+1) if s+1 < NS else []
        for k, x in enumerate(rd):
            if K3S: extra.setdefault(1 + k//2, []).append(x)
            else: extra.setdefault(1 + k, []).insert(0, x)
        tgt = s + RING - 1
        if tgt < NS:
            pre, d, post = loads(tgt)
            if K3S:
                extra.setdefault(7, []).extend(pre)
                for j in range(4): extra.setdefault(8 + 2*j, []).append(d[j])
                extra.setdefault(14, []).extend(post)
            else:
                extra.setdefault(2, []).extend(pre)
                for j in range(4): extra.setdefault(4 + 3*j, []).append(d[j])
                extra.setdefault(14, []).extend(post)
            seq += [tgt]*4
        if K3T and s in TS:
            extra.setdefault(15, []).extend(touch()); seq.append('t')
        for nb in range(4):
            for t in range(4):
                g = nb*4 + t
                d_ = ACC + g*4
                c = "0" if s == 0 else vr(d_, 4)
                A(f"{MF} {vr(d_,4)}, {vr(WF+16*(s%2)+4*nb,4)}, {vr(AF+16*(s%2)+4*t,4)}, {c}")
                for x in extra.get(g, []): A(x)
    stamp(A, 3)
    A("s_nop 7")
    for np_ in range(2):
        A(f"s_add_u32 s{sT0}, s{sTM}, {np_*4096}")
        for t in range(4):
            ob = AF + 4*(np_*4+t)
            for h in range(2):
                b_ = ACC + ((2*np_+h)*4 + t)*4
                A(f"v_cvt_pk_bf16_f32 v{ob+2*h}, v{b_}, v{b_+1}\nv_cvt_pk_bf16_f32 v{ob+2*h+1}, v{b_+2}, v{b_+3}")
            A(f"buffer_store_dwordx4 {vr(ob,4)}, v{VL}, s[{S_O}:{S_O+3}], s{sT0} offen offset:{t*1024} sc1")
    if asmlib.STAMP:
        stamp(A, 4)
        A("s_waitcnt vmcnt(0)")
        stamp_flush(A, 2, 6, P_WS, sW)
    A.label("K3_END")
    A("s_endpgm")
    return dict(name="k3_kernel", vgpr=160, accum=160, sgpr=96, grid=256, block=256, lds=RING*16384)

def gen_k4(A):
    S_P, S_X, S_O = 8, 12, 16
    sW, sT0, sT1, sT2 = 20, 21, 22, 23
    P_X, P_OUT, P_WS = 24, 26, 28
    R = 8; XR = 72; G = 80; VL = 2; VX = 3
    A(".globl k4_kernel\n.p2align 8\n.type k4_kernel,@function")
    A.label("k4_kernel")
    A("s_cmp_ge_u32 s2, 256\ns_cbranch_scc1 K4_END")
    stamp(A, 0)
    A(f"s_load_dwordx2 s[{P_X}:{P_X+1}], s[0:1], 0\ns_load_dwordx2 s[{P_OUT}:{P_OUT+1}], s[0:1], 80\ns_load_dwordx2 s[{P_WS}:{P_WS+1}], s[0:1], 96")
    A(f"v_lshrrev_b32 v1, 6, v0\nv_and_b32 v0, 63, v0\ns_nop 0\nv_readfirstlane_b32 s{sW}, v1")
    for r in (S_P, S_X, S_O): A(f"s_mov_b32 s{r+3}, 0x00020000")
    A(f"s_mov_b32 s{S_P+2}, {P_END}\ns_mov_b32 s{S_X+2}, 0x200000\ns_mov_b32 s{S_O+2}, 0x200000")
    A(f"v_lshlrev_b32 v{VL}, 4, v0")
    A(f"s_lshl_b32 s{sT0}, s2, 13\ns_lshl_b32 s{sT1}, s{sW}, 11\ns_add_u32 s{sT0}, s{sT0}, s{sT1}\ns_add_u32 s{sT0}, s{sT0}, {P_BASE}")
    A(f"s_lshr_b32 s{sT1}, s2, 4\ns_lshl_b32 s{sT1}, s{sT1}, 17\ns_and_b32 s{sT2}, s2, 1\ns_lshl_b32 s{sT2}, s{sT2}, 16\ns_add_u32 s{sT1}, s{sT1}, s{sT2}")
    A(f"s_lshr_b32 s{sT2}, s2, 1\ns_and_b32 s{sT2}, s{sT2}, 7\ns_lshl_b32 s{sT2}, s{sT2}, 7\ns_add_u32 s{sT1}, s{sT1}, s{sT2}")
    A(f"s_lshr_b32 s{sT2}, s{sW}, 1\ns_lshl_b32 s{sT2}, s{sT2}, 6\ns_add_u32 s{sT1}, s{sT1}, s{sT2}\ns_and_b32 s{sT2}, s{sW}, 1\ns_lshl_b32 s{sT2}, s{sT2}, 15\ns_add_u32 s{sT1}, s{sT1}, s{sT2}")
    A(f"v_and_b32 v4, 15, v0\nv_lshrrev_b32 v5, 4, v0\nv_lshlrev_b32 v4, 10, v4\nv_lshl_add_u32 v4, v5, 3, v4\nv_add_u32 v{VX}, s{sT1}, v4")
    A("s_waitcnt lgkmcnt(0)")
    A(f"s_mov_b32 s{S_P}, s{P_WS}\ns_mov_b32 s{S_P+1}, s{P_WS+1}\ns_mov_b32 s{S_X}, s{P_X}\ns_mov_b32 s{S_X+1}, s{P_X+1}\ns_mov_b32 s{S_O}, s{P_OUT}\ns_mov_b32 s{S_O+1}, s{P_OUT+1}")
    A(f"s_mov_b32 s{sT2}, 16384")
    PK = 96
    for sp in (3, 0, 1, 2):
        A(f"s_add_u32 s{sT1}, s{sT0}, {sp << 21}")
        for t in range(2): A(f"buffer_load_dwordx4 {vr(PK+8*sp+4*t,4)}, v{VL}, s[{S_P}:{S_P+3}], s{sT1} offen offset:{t*1024}")
    for t in range(2):
        for h in range(2):
            A(f"buffer_load_dwordx2 {vr(XR+4*t+2*h,2)}, v{VX}, s[{S_X}:{S_X+3}], {'s%d' % sT2 if t else '0'} offen offset:{h*32}")
    def unpack(dst, src):
        for i in range(8): A(f"v_lshlrev_b32 v{dst+2*i}, 16, v{src+i}\nv_and_b32 v{dst+2*i+1}, 0xffff0000, v{src+i}")
    A("s_waitcnt vmcnt(10)")
    stamp(A, 2)
    dn = R + 48
    unpack(dn, PK+24)
    for i in range(16): A(f"v_mul_f32 v{G+i}, {hex(f32bits(-math.log2(math.e)))}, v{dn+i}")
    for i in range(16): A(f"v_exp_f32 v{G+i}, v{G+i}")
    for i in range(16): A(f"v_add_f32 v{G+i}, 1.0, v{G+i}")
    for i in range(16): A(f"v_rcp_f32 v{G+i}, v{G+i}")
    for i in range(16): A(f"v_mul_f32 v{G+i}, v{G+i}, v{dn+i}")
    A("s_waitcnt vmcnt(4)")
    stamp(A, 3)
    unpack(R, PK); unpack(R+16, PK+8); unpack(R+32, PK+16)
    for i in range(16): A(f"v_add_f32 v{R+i}, v{R+i}, v{R+16+i}")
    for i in range(16): A(f"v_add_f32 v{R+i}, v{R+i}, v{R+32+i}")
    A("s_waitcnt vmcnt(0)")
    stamp(A, 4)
    unpack(R+16, XR)
    for i in range(16): A(f"v_fmac_f32 v{R+16+i}, v{R+i}, v{G+i}")
    for i in range(8): A(f"v_cvt_pk_bf16_f32 v{R+32+i}, v{R+16+2*i}, v{R+17+2*i}")
    for t in range(2):
        for h in range(2):
            A(f"buffer_store_dwordx2 {vr(R+32+4*t+2*h,2)}, v{VX}, s[{S_O}:{S_O+3}], {'s%d' % sT2 if t else '0'} offen offset:{h*32}")
    if asmlib.STAMP:
        stamp(A, 1)
        A("s_waitcnt vmcnt(0)")
        stamp_flush(A, 3, 6, P_WS, sW)
    A.label("K4_END")
    A("s_endpgm")
    return dict(name="k4_kernel", vgpr=128, accum=128, sgpr=96, grid=256, block=256, lds=0)
```

```python
import sys
from asmlib import *
import asmlib, os
asmlib.STAMP = os.environ.get('STAMP','0')=='1'
import k1
HEADER = open('recurrent_scan__compressed_kv_cla__glu_gated_reglu__prompt.s.ref').read().split('; Override')[0]
def build(kernels, check=True):
    A = Asm()
    infos = []
    for g in kernels:
        start = len(A.lines)
        infos.append(g(A))
    body = A.text()
    if check:
        check_hazards(A.lines)
    out = HEADER
    for i in infos:
        out += f"; @launch kernel={i['name']} grid=({i['grid']},1,1) block=({i['block']},1,1) lds={i['lds']}\n"
    MAC = {'v_mfma_f32_16x16x32_bf16': 'mf', 'ds_read_b64_tr_b16': 'trr', 'buffer_load_dwordx4': 'bl4', 'buffer_store_dwordx4': 'bs4', 'v_cvt_pk_bf16_f32': 'cvp',
           'ds_read_b128': 'dr4', 'v_accvgpr_write_b32': 'acw', 'v_exp_f32': 'vex', 'v_add_f32': 'vaf', 'v_mul_f32': 'vmf', 'v_sub_f32': 'vsf', 's_add_u32': 'sad', 's_waitcnt': 'swc'}
    mac = ''.join(f".macro {v} a:vararg\n {k} \\a\n.endm\n" for k, v in MAC.items())
    import re
    body = re.sub(r'(?m)^ (\w+) ', lambda m: ' ' + MAC.get(m.group(1), m.group(1)) + ' ', body)
    out += '.amdgcn_target "amdgcn-amd-amdhsa--gfx950"\n.text\n' + mac + body
    out += '.section .rodata,"a"\n'
    for i in infos:
        out += f""".p2align 6
.amdhsa_kernel {i['name']}
  .amdhsa_next_free_vgpr {i['vgpr']}
  .amdhsa_next_free_sgpr {i['sgpr']}
  .amdhsa_accum_offset {i['accum']}
  .amdhsa_group_segment_fixed_size 0
  .amdhsa_kernarg_size 104
  .amdhsa_user_sgpr_count 2
  .amdhsa_user_sgpr_kernarg_segment_ptr 1
  .amdhsa_system_sgpr_workgroup_id_x 1
.end_amdhsa_kernel
"""
    return out
if __name__ == '__main__' and os.environ.get('FUSE', '0') == '1':
    import k1f, k2f, k3f
    s = build([lambda A: k2f.gen_k2(A, k1f.gen_k1(A, store_flags=' sc1'), store_flags=' sc1')] + ([] if k2f.FULL else [k3f.gen_k3, k3f.gen_k4]))
    open(sys.argv[1], 'w').write(s); print(len(s), "bytes")
elif __name__ == '__main__' and os.environ.get('QF', '1') == '1':
    import k1q, k2q, k3q
    if os.environ.get('K3E'): import k3e as k3q
    s = build([lambda A: k1q.gen_k1(A, store_flags=' ' + os.environ.get('SF1', 'sc1')), lambda A: k2q.gen_k2(A, store_flags=' sc1'), k3q.gen_k3, k3q.gen_k4])
    open(sys.argv[1], 'w').write(s); print(len(s), "bytes")
elif __name__ == '__main__':
    sf = os.environ.get('SF', 'sc1')
    sf = (' ' + sf) if sf else ''
    sf1 = os.environ.get('SF1', sf.strip()); sf1 = (' ' + sf1) if sf1 else ''
    ks = [lambda A: k1.gen_k1(A, store_flags=sf1)]
    try:
        import k2; ks.append(lambda A: k2.gen_k2(A, store_flags=sf))
        if os.environ.get('K3', 'd') == 'a':
            import k3; ks.append(k3.gen_k3)
        elif os.environ.get('K3', 'd') == 'd':
            import k3d; ks.append(k3d.gen_k3); ks.append(k3d.gen_k4)
        elif os.environ.get('K3', 'c') == 'c':
            import k3c; ks.append(k3c.gen_k3); ks.append(k3c.gen_k4)
        else:
            import k3b; ks.append(k3b.gen_k3); ks.append(k3b.gen_k4)
    except ImportError as e:
        print("partial:", e)
    s = build(ks)
    open(sys.argv[1] if len(sys.argv) > 1 else 'cur.s', 'w').write(s)
    print(len(s), "bytes")
```

```python
from asmlib import *
import asmlib
import math

import os
ACT_TOUCH = os.environ.get('ACT_TOUCH', '0') == '1'
W_TOUCH = os.environ.get('W_TOUCH', '1') == '1'
XFIRST = os.environ.get('XFIRST', '1') == '1'
KV_TOUCH = os.environ.get('KV_TOUCH', '0') == '1'
NOST = os.environ.get('NOST', '0') == '1'
SFD = os.environ.get('SFD', 'sc1')
WBL2 = os.environ.get('WBL2', '0') == '1'
HST = os.environ.get('HST', '0') == '1'
WEARLY = os.environ.get('WEARLY', '0') == '1'
WQ_TOUCH = os.environ.get('WQ_TOUCH', '1') == '1'
CODE_TOUCH = os.environ.get('CODE_TOUCH', '1') == '1'
CODE_TOUCH2 = os.environ.get('CODE_TOUCH2', '1') == '1'
XSP = os.environ.get('XSP', '1') == '1'
PART = os.environ.get('PART', 'A')
B4 = os.environ.get('B4', '0') == '1'
MAP48 = os.environ.get('MAP48', '0') == '1'
XORD = os.environ.get('XORD', '0') == '1'
LGK = os.environ.get('LGK', '1') == '1'
EXACT = os.environ.get('EXACT', '1') == '1'
ROT = os.environ.get('ROT', '1') == '1'
WS_OFF = int(os.environ.get('WS_OFF', '0')) << 20
KV_BASE = WS_OFF + (1 << 20)
A3_BASE = WS_OFF + (33 << 20)
A3_TB64 = 171 * 4096
XC_BASE = WS_OFF + (56 << 20)
SCQ_BASE = WS_OFF + (58 << 20)
WS_USED = WS_OFF + (59 << 20)
MF = "v_mfma_f32_16x16x32_bf16"
CSCALE = math.log2(math.e) / math.sqrt(128.0)

def f32bits(x):
    import struct
    return struct.unpack('<I', struct.pack('<f', x))[0]

def gen_k1(A, store_flags=""):
    ACC = [8, 72]; WF = 136; TRA = 168; VW = 176; VO = 178; OUT = 184; SC = 196; RSTD = 200; T = 204; GR = 216; SUM = 232; ONESV = 240; MU = 244; DUM = 245; VLN = 247
    S_ACT, S_WA, S_WB, S_OUT = 8, 12, 16, 20
    sW, sTB, sCG, sSU, sEND, sDMA, sOB, sM0, sT0, sT1, sTYPE, sJOB2, sOBASE = 24, 25, 26, 27, 28, 29, 30, 31, 32, 33, 34, 35, 36
    sONES, sSLO, sSHI = 37, 38, 39
    P_X, P_CKV, P_WQ, P_WUK, P_WUV, P_WG, P_WU, P_WS = 40, 42, 44, 46, 48, 50, 52, 54
    sSTG = 56
    sROW = 57
    sEX2, sEX, sMK, sDQ, sROT, sOB2 = 58, 84, 88, 96, 62, 63
    S_XC = 4; sXQ = 44; sSCQ = 48; sEND2 = sJOB2; sHD = 100; sOBH = 101; sIA = 38; sIB = 39
    sRQ = sEX; sXR = 40

    A(".globl k1_kernel\n.p2align 8\n.type k1_kernel,@function")
    A.label("k1_kernel")
    A("s_cmp_ge_u32 s2, 256\ns_cbranch_scc1 K1_END")
    stamp(A, 0)
    A(f"s_load_dwordx4 s[{P_X}:{P_X+3}], s[0:1], 0")
    A(f"s_load_dwordx4 s[{P_WQ}:{P_WQ+3}], s[0:1], 16")
    A(f"s_load_dwordx2 s[{P_WUV}:{P_WUV+1}], s[0:1], 32")
    A(f"s_load_dwordx2 s[{P_WG}:{P_WG+1}], s[0:1], 56")
    A(f"s_load_dwordx2 s[{P_WU}:{P_WU+1}], s[0:1], 64")
    A(f"s_load_dwordx2 s[{P_WS}:{P_WS+1}], s[0:1], 96")
    A(f"v_lshrrev_b32 v1, 6, v0\nv_and_b32 v0, 63, v0\ns_nop 0\nv_readfirstlane_b32 s{sW}, v1")
    if MAP48:
        A(f"s_and_b32 s{sT0}, s2, 1\ns_lshl_b32 s{sT0}, s{sT0}, 2\ns_lshr_b32 s{sT1}, s2, 3\ns_and_b32 s{sTB}, s{sT1}, 3\ns_add_u32 s{sTB}, s{sTB}, s{sT0}")
        A(f"s_lshr_b32 s{sT1}, s{sT1}, 2\ns_and_b32 s{sT0}, s2, 6\ns_lshl_b32 s{sCG}, s{sT0}, 2\ns_add_u32 s{sCG}, s{sCG}, s{sT1}")
    else:
        A(f"s_and_b32 s{sT0}, s2, 7\ns_lshr_b32 s{sT1}, s2, 3\ns_and_b32 s{sTB}, s{sT1}, 7\ns_lshr_b32 s{sT1}, s{sT1}, 3")
        A(f"s_lshl_b32 s{sCG}, s{sT0}, 2\ns_add_u32 s{sCG}, s{sCG}, s{sT1}")
    A(f"s_mov_b32 s{sONES}, 0x3f803f80\ns_mov_b32 s{sSLO}, 0x00003f80\ns_mov_b32 s{sSHI}, 0x3f800000")
    A(f"s_lshl_b32 s{sSTG}, s{sW}, 13")
    A(f"s_lshl_b32 s{sROW}, s{sTB}, 18\ns_lshl_b32 s{sT0}, s{sW}, 16\ns_add_u32 s{sROW}, s{sROW}, s{sT0}")
    for r in (S_ACT, S_WA, S_WB, S_OUT): A(f"s_mov_b32 s{r+3}, 0x00020000")
    A(f"s_mov_b32 s{S_ACT+2}, 0x200000")
    if CODE_TOUCH: code_touch(A, "k1_kernel", "K1_END", sW, 0, DUM, 80)
    A("s_waitcnt lgkmcnt(0)")
    A(f"s_mov_b32 s{S_OUT}, s{P_WS}\ns_mov_b32 s{S_OUT+1}, s{P_WS+1}\ns_mov_b32 s{S_OUT+2}, 0")
    if PART == 'A':
        A(f"s_cmp_ge_u32 s{sCG}, 11\ns_cbranch_scc1 K1_DISP_C")
        A(f"s_mov_b32 s{S_ACT}, s{P_X}\ns_mov_b32 s{S_ACT+1}, s{P_X+1}")
        A(f"s_lshl_b32 s{sSU}, s{sCG}, 2\ns_add_u32 s{sEND}, s{sSU}, 4\ns_min_u32 s{sEND}, s{sEND}, 43\ns_mov_b32 s{sEND2}, s{sEND}\ns_branch K1_SETUP_G")
        A.label("K1_DISP_C")
        A(f"s_mov_b32 s{S_ACT}, s{P_CKV}\ns_mov_b32 s{S_ACT+1}, s{P_CKV+1}")
        A(f"s_cmp_ge_u32 s{sCG}, 22\ns_cbranch_scc1 K1_DISP_V")
        A(f"s_sub_u32 s{sT1}, s{sCG}, 11\ns_min_u32 s{sT0}, s{sT1}, 9\ns_mul_i32 s{sSU}, s{sT1}, 5\ns_add_u32 s{sSU}, s{sSU}, s{sT0}\ns_cmp_lt_u32 s{sT1}, 9\ns_cselect_b32 s{sT0}, 6, 5\ns_add_u32 s{sEND}, s{sSU}, s{sT0}\ns_mov_b32 s{sEND2}, s{sEND}\ns_branch K1_SETUP_K")
        A.label("K1_DISP_V")
        A(f"s_sub_u32 s{sT1}, s{sCG}, 22\ns_mul_i32 s{sSU}, s{sT1}, 6\ns_add_u32 s{sEND}, s{sSU}, 6\ns_cmp_lt_u32 s{sT1}, 8\ns_cselect_b32 s{sT0}, 1, 0\ns_add_u32 s{sEND2}, s{sEND}, s{sT0}")
        A(f"s_lshl_b32 s{sHD}, s{sT1}, 6\ns_add_u32 s{sHD}, s{sHD}, {61*128}\ns_lshl_b32 s{sT0}, s{sEND}, 7\ns_sub_u32 s{sHD}, s{sHD}, s{sT0}")
        A(f"s_lshl_b32 s{sT0}, s{sT1}, 1\ns_add_u32 s{sT0}, s{sT0}, 240\ns_lshr_b32 s{sOBH}, s{sT0}, 3\ns_lshl_b32 s{sOBH}, s{sOBH}, 20\ns_and_b32 s{sT0}, s{sT0}, 7\ns_lshl_b32 s{sT0}, s{sT0}, 10\ns_add_u32 s{sOBH}, s{sOBH}, s{sT0}\ns_branch K1_SETUP_V")

    else:
        A(f"s_cmp_ge_u32 s{sCG}, 10\ns_cbranch_scc1 K1_DISP_C")
        A(f"s_mov_b32 s{S_ACT}, s{P_X}\ns_mov_b32 s{S_ACT+1}, s{P_X+1}")
        A(f"s_min_u32 s{sT0}, s{sCG}, 3\ns_lshl_b32 s{sSU}, s{sCG}, 2\ns_add_u32 s{sSU}, s{sSU}, s{sT0}\ns_cmp_lt_u32 s{sCG}, 3\ns_cselect_b32 s{sT0}, 5, 4\ns_add_u32 s{sEND}, s{sSU}, s{sT0}\ns_mov_b32 s{sEND2}, s{sEND}\ns_branch K1_SETUP_G")
        A.label("K1_DISP_C")
        A(f"s_mov_b32 s{S_ACT}, s{P_CKV}\ns_mov_b32 s{S_ACT+1}, s{P_CKV+1}\ns_mov_b32 s{sHD}, 128\ns_mov_b32 s{sOBH}, 0")
        A(f"s_cmp_ge_u32 s{sCG}, 21\ns_cselect_b32 s{sT0}, 21, 10\ns_sub_u32 s{sT1}, s{sCG}, s{sT0}")
        A(f"s_min_u32 s{sT0}, s{sT1}, 9\ns_mul_i32 s{sSU}, s{sT1}, 5\ns_add_u32 s{sSU}, s{sSU}, s{sT0}\ns_cmp_lt_u32 s{sT1}, 9\ns_cselect_b32 s{sT0}, 6, 5\ns_add_u32 s{sEND}, s{sSU}, s{sT0}\ns_mov_b32 s{sEND2}, s{sEND}")
        A(f"s_cmp_ge_u32 s{sCG}, 21\ns_cbranch_scc1 K1_SETUP_V\ns_branch K1_SETUP_K")

    def dma_consts(ty):
        if ty == 'G':
            return 64, 128*2752, [(S_WA, 0, 0), (S_WA, 0, 16*2752), (S_WB, 0, 0), (S_WB, 0, 16*2752)]
        return 128, 128*8192, [(S_WA, 0, 0), (S_WA, 1, 8*8192), (S_WA, 0, 16*8192), (S_WA, 1, 24*8192)]

    def dma_slot(ty, su_rel, q, ringslot):
        cs, ss, pieces = dma_consts(ty)
        out = []
        for j, (srd, vi, ex) in enumerate(pieces):
            out.append([f"s_add_u32 m0, s{sM0}, {ringslot*16384 + j*1024}",
                        f"s_add_u32 s{sT0}, s{sDQ+q}, {su_rel*cs + ex}",
                        f"buffer_load_dwordx4 v{VW+vi}, s[{srd}:{srd+3}], s{sT0} offen lds"])
        return out

    def setup(ty):
        A.label(f"K1_SETUP_{ty}")
        ptr = {'Q': P_WQ, 'K': P_WUK, 'V': P_WUV, 'G': P_WG}[ty]
        A(f"s_mov_b32 s{S_WA}, s{ptr}\ns_mov_b32 s{S_WA+1}, s{ptr+1}")
        pb = P_WU if ty == 'G' else ptr
        A(f"s_mov_b32 s{S_WB}, s{pb}\ns_mov_b32 s{S_WB+1}, s{pb+1}")
        wsz = 512*2752 if ty == 'G' else 512*8192
        A(f"s_mov_b32 s{S_WA+2}, {wsz}\ns_mov_b32 s{S_WB+2}, {wsz}")
        A(f"s_mov_b32 s{sTYPE}, {'QKVG'.index(ty)}")
        cs, ss, _ = dma_consts(ty)
        pitch = 2752 if ty == 'G' else 8192
        A(f"s_mul_i32 s{sDMA}, s{sSU}, {cs}\ns_mul_i32 s{sT0}, s{sW}, {32*pitch}\ns_add_u32 s{sDMA}, s{sDMA}, s{sT0}")
        A(f"s_lshl_b32 s{sM0}, s{sW}, 12")
        A(f"s_add_u32 s{sROT}, s{sCG}, s{sTB}\ns_and_b32 s{sROT}, s{sROT}, {3 if ROT else 0}")
        for q in range(4):
            A(f"s_add_u32 s{sT0}, s{sROT}, {q}\ns_and_b32 s{sT0}, s{sT0}, 3\ns_mul_i32 s{sT1}, s{sT0}, {ss}\ns_add_u32 s{sDQ+q}, s{sDMA}, s{sT1}")
            if ty in 'KV': A(f"s_lshl_b32 s{sT0}, s{sT0}, 8\ns_add_u32 s{sRQ+q}, s{sROW}, s{sT0}")
        if ty in 'QG':
            for j, (_, _, ex) in enumerate(dma_consts(ty)[2]): A(f"s_mov_b32 s{sEX+j}, {ex}\ns_mov_b32 s{sEX2+j}, {ex+cs}")
        A("v_lshrrev_b32 v1, 4, v0\nv_bfe_u32 v2, v0, 2, 2\nv_and_b32 v3, 3, v0")
        if ty != 'G':
            A("v_lshrrev_b32 v4, 3, v0\nv_and_b32 v5, 7, v0\nv_bfe_u32 v6, v0, 4, 1\nv_lshlrev_b32 v6, 1, v6\nv_xor_b32 v5, v5, v6")
            A(f"v_lshlrev_b32 v4, 13, v4\nv_lshl_add_u32 v{VW}, v5, 4, v4\nv_xor_b32 v{VW+1}, 64, v{VW}")
            A("v_lshrrev_b32 v4, 1, v2\nv_and_b32 v5, 1, v1\nv_lshl_add_u32 v4, v5, 1, v4")
            A("v_lshl_add_u32 v5, v1, 3, v2\nv_lshlrev_b32 v5, 7, v5\nv_lshl_add_u32 v5, v3, 3, v5")
            for nb in range(4):
                A(f"v_xor_b32 v6, {nb}, v4\nv_lshl_add_u32 v{TRA+2*nb}, v6, 5, v5\nv_add_u32 v{TRA+2*nb+1}, 512, v{TRA+2*nb}")
        else:
            A(f"v_lshrrev_b32 v4, 2, v0\nv_lshrrev_b32 v6, 5, v0\nv_lshlrev_b32 v6, 1, v6\nv_xor_b32 v5, v3, v6")
            A(f"v_mul_u32_u24 v4, 2752, v4\nv_lshl_add_u32 v{VW}, v5, 4, v4\nv_mov_b32 v{VW+1}, v{VW}")
            A("v_and_b32 v4, 1, v1")
            A("v_lshl_add_u32 v5, v1, 3, v2\nv_lshlrev_b32 v5, 6, v5\nv_lshl_add_u32 v5, v3, 3, v5")
            for nb in range(4):
                A(f"v_xor_b32 v6, {nb%2}, v4\nv_lshl_add_u32 v6, v6, 5, v5\nv_add_u32 v{TRA+2*nb}, {(nb//2)*2048}, v6\nv_add_u32 v{TRA+2*nb+1}, 256, v{TRA+2*nb}")
        A("v_lshlrev_b32 v4, 4, v0")
        if ty == 'Q':
            for t in range(4): A(f"s_add_u32 s{sT0}, s{sCG}, {t}\ns_and_b32 s{sT0}, s{sT0}, {3 if ROT else 0}\ns_lshl_b32 s{sT0}, s{sT0}, 10\nv_add_u32 v{VO+t}, s{sT0}, v4" if ROT else f"v_add_u32 v{VO+t}, {t*1024}, v4")
            A(f"s_lshl_b32 s{sT0}, s{sTB}, 2\ns_add_u32 s{sT0}, s{sT0}, s{sW}\ns_mul_i32 s{sOBASE}, s{sT0}, {A3_TB64}\ns_add_u32 s{sOBASE}, s{sOBASE}, {A3_BASE}")
        elif ty == 'K':
            for t in range(4): A(f"v_add_u32 v{VO+t}, {(t//2)*16384 + (t%2)*4096}, v4")
            A(f"s_lshl_b32 s{sOBASE}, s{sTB}, 17\ns_lshl_b32 s{sT0}, s{sW}, 15\ns_add_u32 s{sOBASE}, s{sOBASE}, s{sT0}\ns_add_u32 s{sOBASE}, s{sOBASE}, {KV_BASE}")
        elif ty == 'V':
            for t in range(4): A(f"v_add_u32 v{VO+t}, {(t%2)*16384}, v4")
            A(f"s_lshl_b32 s{sOBASE}, s{sTB}, 17\ns_lshl_b32 s{sT0}, s{sW}, 15\ns_add_u32 s{sOBASE}, s{sOBASE}, s{sT0}\ns_add_u32 s{sOBASE}, s{sOBASE}, {KV_BASE+8192}")
        else:
            for t in range(4): A(f"s_add_u32 s{sT0}, s{sCG}, {t}\ns_and_b32 s{sT0}, s{sT0}, {3 if ROT else 0}\ns_lshl_b32 s{sT0}, s{sT0}, 10\nv_add_u32 v{VO+t}, s{sT0}, v4" if ROT else f"v_add_u32 v{VO+t}, {t*1024}, v4")
            A(f"s_lshl_b32 s{sT0}, s{sTB}, 2\ns_add_u32 s{sT0}, s{sT0}, s{sW}\ns_mul_i32 s{sOBASE}, s{sT0}, {A3_TB64}\ns_add_u32 s{sOBASE}, s{sOBASE}, {A3_BASE + 128*4096}")
        A(f"s_mov_b32 s{S_OUT+2}, {0 if ty in 'QG' else WS_USED}")
        A(f"s_branch {'K1_STAGE_X' if ty in 'QG' else 'K1_PRO_' + ty}")

    for ty in 'KVG': setup(ty)

    def wpre(ty, slots):
        for q in slots:
            for tr in dma_slot(ty, q//4, q%4, q):
                for x in tr: A(x)

    def act_touch():
        A(f"s_lshl_b32 s{sT1}, s{sTB}, 18\ns_and_b32 s{sT0}, s{sCG}, 3\ns_lshl_b32 s{sT0}, s{sT0}, 16\ns_add_u32 s{sT1}, s{sT1}, s{sT0}\ns_lshl_b32 s{sT0}, s{sW}, 14\ns_add_u32 s{sT1}, s{sT1}, s{sT0}")
        A(f"v_lshrrev_b32 v4, 3, v0\nv_and_b32 v5, 7, v0\nv_lshlrev_b32 v4, 10, v4\nv_lshl_add_u32 v4, v5, 7, v4\ns_add_u32 s{sT0}, s{sT1}, 8192")
        A(f"buffer_load_dword v{DUM}, v4, s[{S_ACT}:{S_ACT+3}], s{sT1} offen\nbuffer_load_dword v{DUM+1}, v4, s[{S_ACT}:{S_ACT+3}], s{sT0} offen")

    def touch_ops(ty):
        pitch = 2752 if ty == 'G' else 8192
        cs, _, _ = dma_consts(ty)
        o = [f"s_lshl_b32 s{sT1}, s{sTB}, 2", f"s_add_u32 s{sT1}, s{sT1}, s{sW}", f"s_mul_i32 s{sT1}, s{sT1}, {16*pitch}", f"s_mul_i32 s{sT0}, s{sSU}, {cs}", f"s_add_u32 s{sT1}, s{sT1}, s{sT0}"]
        if ty == 'G':
            o += ["v_lshrrev_b32 v4, 2, v0", "v_and_b32 v5, 3, v0", "v_mul_u32_u24 v4, 2752, v4", f"v_add_u32 v4, s{sT1}, v4", "v_and_b32 v4, 0xffffff80, v4", "v_lshl_add_u32 v4, v5, 7, v4"]
            o += [f"buffer_load_dword v{DUM+j}, v4, s[{srd}:{srd+3}], 0 offen" for j, srd in enumerate((S_WA, S_WB))]
        else:
            o += ["v_lshrrev_b32 v4, 3, v0", "v_and_b32 v5, 7, v0", "v_lshlrev_b32 v4, 13, v4", "v_lshl_add_u32 v4, v5, 7, v4"]
            for j in range(2):
                o += [f"s_add_u32 s{sT0}, s{sT1}, {j*8*pitch}", f"buffer_load_dword v{DUM+j}, v4, s[{S_WA}:{S_WA+3}], s{sT0} offen"]
        return o

    BUF = [0, 1, 2, 3, 4, 2, 3, 4]
    A.label("K1_STAGE_X")
    A(f"s_mov_b32 s{S_XC}, s{P_WS}\ns_mov_b32 s{S_XC+1}, s{P_WS+1}\ns_mov_b32 s{S_XC+3}, 0x00020000\ns_cmp_ge_u32 s{sCG}, {7 if PART == 'A' else 6}\ns_cselect_b32 s{S_XC+2}, {WS_USED}, 0")
    A(f"s_lshl_b32 s{sT1}, s{sTB}, 4\ns_lshl_b32 s{sT0}, s{sW}, 2\ns_add_u32 s{sT1}, s{sT1}, s{sT0}\ns_and_b32 s{sT0}, s{sCG}, {3 if ROT else 0}\ns_add_u32 s{sT1}, s{sT1}, s{sT0}")
    A(f"s_lshl_b32 s{sSCQ}, s{sT1}, 6\ns_add_u32 s{sSCQ}, s{sSCQ}, {SCQ_BASE}\ns_lshl_b32 s{sT1}, s{sT1}, 14\ns_add_u32 s{sT1}, s{sT1}, {XC_BASE}")
    for q in range(4): A(f"s_add_u32 s{sT0}, s{sROT}, {q}\ns_and_b32 s{sT0}, s{sT0}, 3\ns_lshl_b32 s{sT0}, s{sT0}, 12\ns_add_u32 s{sXQ+q}, s{sT1}, s{sT0}")
    A(f"v_lshlrev_b32 v{VLN}, 4, v0")
    if ACT_TOUCH: act_touch()
    A(f"s_lshl_b32 s{sT0}, s{sROT}, 4\nv_add_u32 v{T}, s{sT0}, v0\nv_and_b32 v{T}, 63, v{T}\nv_lshlrev_b32 v{T}, 4, v{T}")
    for t in range(4):
        A(f"s_add_u32 s{sT0}, s{sCG}, {t}\ns_and_b32 s{sT0}, s{sT0}, 3\ns_lshl_b32 s{sT0}, s{sT0}, 14\ns_add_u32 s{sXR+t}, s{sROW}, s{sT0}" if ROT else f"s_add_u32 s{sXR+t}, s{sROW}, {t*16384}")
    def x_round(r):
        o = []
        for j in range(8):
            tok = (8*r + j) & 15
            o.append([f"v_xor_b32 v{T+1+(j&1)}, {tok*16}, v{T}", f"s_add_u32 m0, s{sSTG}, {BUF[r]*32768 + j*1024}", f"s_add_u32 s{sT0}, s{sXR+r//2}, {(8*(r%2)+j)*1024}",
                      f"buffer_load_dwordx4 v{T+1+(j&1)}, s[{S_ACT}:{S_ACT+3}], s{sT0} offen lds"])
        return o
    def gw_slot(n):
        o = []
        for j in range(4):
            srd = S_WA if j < 2 else S_WB
            it = [f"s_add_u32 m0, s{sM0}, {n*16384 + j*1024}", f"s_add_u32 s{sT0}, s{sDQ+n%4}, s{(sEX if n < 4 else sEX2)+j}", f"buffer_load_dwordx4 v{VW+(j&1)}, s[{srd}:{srd+3}], s{sT0} offen lds"]
            o.append(it)
        return o
    for r in range(2 if XORD else 4):
        for it in x_round(r):
            for x in it: A(x)
    stamp(A, 1)
    A(f"v_and_b32 v4, 15, v0\nv_and_b32 v5, 7, v0\nv_lshlrev_b32 v5, 10, v5\nv_and_b32 v6, 3, v0\nv_xor_b32 v6, v6, v1\nv_lshl_add_u32 v5, v6, 4, v5")
    A(f"v_add_u32 v5, s{sSTG}, v5\nv_lshrrev_b32 v6, 2, v4")
    for k in range(4):
        A(f"v_xor_b32 v7, {k}, v6\nv_lshl_add_u32 v{T+4+k}, v7, 6, v5")
    A(f"v_cmp_lt_u32 vcc, 7, v4")
    A(f"v_lshlrev_b32 v5, 2, v1\nv_sub_u32 v5, v4, v5")
    for i in range(4): A(f"v_cmp_eq_u32 s[{sMK+2*i}:{sMK+2*i+1}], {i}, v5")
    for i in range(4): A(f"v_mov_b32 v{ONESV+i}, s{sONES}")
    L = WF
    def x_read(t, vm):
        X = ACC[t % 2]
        ba, bb = BUF[2*t], BUF[2*t+1]
        o = [f"v_mov_b32 v2, {ba*32768}", f"v_mov_b32 v3, {bb*32768}", "v_cndmask_b32 v2, v2, v3, vcc"]
        o += [f"v_add_u32 v{T+8+k}, v2, v{T+4+k}" for k in range(4)]
        o.append(f"s_waitcnt vmcnt({vm})")
        o += [f"ds_read_b128 {vr(X+4*ks,4)}, v{T+8+(ks&3)} offset:{(ks&12)*64}" for ks in range(16)]
        return o
    def sumx(t):
        d = SUM + 4*(t % 2); X = ACC[t % 2]
        return [[f"{MF} {vr(d,4)}, {vr(ONESV,4)}, {vr(X+4*ks,4)}, {'0' if ks == 0 else vr(d,4)}"] for ks in range(16)]
    def gram(t):
        d = GR + 4*t
        return [[f"{MF} {vr(d,4)}, {ar((t*16+ks)*4,4)}, {ar((t*16+ks)*4,4)}, {'0' if ks == 0 else vr(d,4)}"] for ks in range(16)]
    def ln_stream(t):
        X = ACC[t % 2]; mu = MU
        o = [f"v_mul_f32 v{mu}, {hex(f32bits(-1.0/512))}, v{SUM+4*(t%2)}"]
        for b in range(16):
            tb_ = L + 8*(b % 2)
            for i in range(4):
                o.append(f"v_lshlrev_b32 v{tb_+2*i}, 16, v{X+4*b+i}"); o.append(f"v_and_b32 v{tb_+2*i+1}, 0xffff0000, v{X+4*b+i}")
            for i in range(8): o.append(f"v_add_f32 v{tb_+i}, v{tb_+i}, v{mu}")
            for i in range(4): o.append(f"v_cvt_pk_bf16_f32 v{X+4*b+i}, v{tb_+2*i}, v{tb_+2*i+1}")
            for i in range(4): o.append(f"v_accvgpr_write_b32 a{(t*16+b)*4+i}, v{X+4*b+i}")
        return o
    def interleave(main, sides):
        n = len(main)
        ins = {}
        for f0, f1, items in sides:
            for k, it in enumerate(items or []):
                p = int(n*(f0 + (f1-f0)*(k+0.5)/len(items)))
                ins.setdefault(p, []).extend(it)
        for i, x in enumerate(main):
            for y in ins.get(i, []): A(y)
            A(x)
    w03 = [it for n in range(4) for it in gw_slot(n)]
    if XORD:
        for x in x_read(0, 0): A(x)
        r23 = x_round(2) + x_round(3)
        for it in r23[:4]:
            for x in it: A(x)
        A("s_waitcnt lgkmcnt(0)")
        stamp(A, 2)
        for k, it in enumerate(sumx(0)):
            for x in it: A(x)
            if k < 12:
                for x in r23[4+k]: A(x)
        stamp(A, 3)
        interleave(ln_stream(0), [(0.01, 0.25, x_round(4)), (0.40, 0.41, [x_read(1, 8)]), (0.55, 0.56, [["s_waitcnt lgkmcnt(0)", "s_barrier"]]), (0.57, 0.8, x_round(5) + x_round(6)), (0.8, 0.99, w03), (0.6, 0.92, sumx(1))])
    else:
        for x in x_read(0, 16): A(x)
        A("s_waitcnt lgkmcnt(0)")
        stamp(A, 2)
        r4 = x_round(4)
        for k, it in enumerate(sumx(0)):
            for x in it: A(x)
            if k % 2 == 0:
                for x in r4[k//2]: A(x)
        for x in x_read(1, 8): A(x)
        stamp(A, 3)
        interleave(ln_stream(0), [(0.10, 0.11, [["s_waitcnt lgkmcnt(0)", "s_barrier"]]), (0.12, 0.45 if not XSP else 0.95, x_round(5) + x_round(6)), (0.45, 0.98, w03 if not XSP else []), (0.5, 0.9, sumx(1))])
    w46 = [it for n in range(4, 7) for it in gw_slot(n)]
    if XSP:
        for x in x_read(2, 8): A(x)
        stamp(A, 4)
        interleave(ln_stream(1), [(0.05, 0.45, gram(0)), (0.15, 0.16, [["s_waitcnt lgkmcnt(0)"]]), (0.17, 0.5, x_round(7)), (0.5, 0.98, w03[:8]), (0.5, 0.9, sumx(2))])
        for x in x_read(3, 8): A(x)
        interleave(ln_stream(2), [(0.05, 0.45, gram(1)), (0.02, 0.6, w03[8:]), (0.15, 0.16, [["s_waitcnt lgkmcnt(0)"]]), (0.62, 0.63, [["s_barrier"]]), (0.65, 0.98, w46[:4]), (0.5, 0.9, sumx(3))])
        w46 = w46[4:]
    else:
        for x in x_read(2, 24): A(x)
        stamp(A, 4)
        interleave(ln_stream(1), [(0.05, 0.45, gram(0)), (0.15, 0.16, [["s_waitcnt lgkmcnt(0)"]]), (0.17, 0.4, x_round(7)), (0.5, 0.9, sumx(2))])
        for x in x_read(3, 0): A(x)
        interleave(ln_stream(2), [(0.05, 0.45, gram(1)), (0.15, 0.16, [["s_waitcnt lgkmcnt(0)", "s_barrier"]]), (0.17, 0.7, w46), (0.5, 0.9, sumx(3))])
        w46 = []
    stamp(A, 5)
    xcst = [[f"buffer_store_dwordx4 {ar(b*4,4)}, v{VLN}, s[{S_XC}:{S_XC+3}], s{sXQ+b//4} offen offset:{(b%4)*1024} sc1"] for b in range(16)]
    interleave(ln_stream(3), [(0.05, 0.45, gram(2)), (0.05, 0.8, w46)])
    A("s_nop 1")
    for it in gram(3):
        for x in it: A(x)
    def extract(t):
        g = GR + 4*t; D, D2 = L, L+1
        A(f"v_cndmask_b32 v{D}, 0, v{g}, s[{sMK}:{sMK+1}]")
        for i in range(1, 4): A(f"v_cndmask_b32 v{D}, v{D}, v{g+i}, s[{sMK+2*i}:{sMK+2*i+1}]")
        A(f"v_mov_b32 v{D2}, v{D}\ns_nop 1\nv_permlane16_swap_b32 v{D}, v{D2}\nv_add_f32 v{D}, v{D}, v{D2}")
        A(f"v_mov_b32 v{D2}, v{D}\ns_nop 1\nv_permlane32_swap_b32 v{D}, v{D2}\nv_add_f32 v{D}, v{D}, v{D2}")
        A(f"v_mov_b32 v{D2}, {hex(f32bits(1e-5))}\nv_fmac_f32 v{D2}, {hex(f32bits(1.0/512))}, v{D}")
        A(f"v_rsq_f32 v{RSTD+t}, v{D2}")
    for t in range(4): extract(t)
    A(f"v_mul_f32 v{MU}, {hex(f32bits(CSCALE))}, v{RSTD}\nv_and_b32 v{SUM}, 15, v0\nv_lshlrev_b32 v{SUM}, 2, v{SUM}")
    A("s_branch K1_START2_G")

    def epilogue_ops(ty, acc, store_flags=store_flags):
        ops = []
        blk = lambda nb, t: acc + (nb*4 + t)*4
        oq = 0
        def store(q, vo, off, so=sOB): return f"buffer_store_dwordx4 {vr(OUT+4*q,4)}, v{vo}, s[{S_OUT}:{S_OUT+3}], s{so} offen offset:{off}{store_flags}"
        if ty in 'QK':
            for pr in range(2):
                for t in range(4):
                    for h in range(2):
                        b = blk(2*pr+h, t)
                        if ty == 'Q':
                            for i in range(4): ops.append(f"v_mul_f32 v{b+i}, v{b+i}, v{SC+t}")
                        ops.append(f"v_cvt_pk_bf16_f32 v{OUT+4*oq+2*h}, v{b}, v{b+1}")
                        ops.append(f"v_cvt_pk_bf16_f32 v{OUT+4*oq+2*h+1}, v{b+2}, v{b+3}")
                    ops.append(store(oq, VO+t, pr*1024) if ty == 'K' else store(oq, VO+t, 0, sOB2 if pr else sOB)); oq = (oq+1) % 3
        elif ty == 'V':
            for nb in range(4):
                for v in range(2):
                    for h in range(2):
                        b = blk(nb, 2*v+h)
                        ops.append(f"v_cvt_pk_bf16_f32 v{OUT+4*oq+2*h}, v{b}, v{b+1}")
                        ops.append(f"v_cvt_pk_bf16_f32 v{OUT+4*oq+2*h+1}, v{b+2}, v{b+3}")
                    ops.append(store(oq, VO+v, nb*1024)); oq = (oq+1) % 3
        else:
            for t in range(4):
                for h in range(2):
                    g = blk(h, t); u = blk(h+2, t)
                    for i in range(4): ops.append(f"v_max_f32 v{g+i}, 0, v{g+i}")
                    for i in range(4): ops.append(f"v_mul_f32 v{u+i}, v{u+i}, v{SC+t}")
                    for i in range(4): ops.append(f"v_mul_f32 v{g+i}, v{g+i}, v{u+i}")
                    ops.append(f"v_cvt_pk_bf16_f32 v{OUT+4*oq+2*h}, v{g}, v{g+1}")
                    ops.append(f"v_cvt_pk_bf16_f32 v{OUT+4*oq+2*h+1}, v{g+2}, v{g+3}")
                ops.append(store(oq, VO+t, 0)); oq = (oq+1) % 3
        return ops

    def ob_calc(ty, su_reg_delta):
        o = [f"s_add_u32 s{sT1}, s{sSU}, {su_reg_delta}"] if su_reg_delta >= 0 else [f"s_sub_u32 s{sT1}, s{sSU}, {-su_reg_delta}"]
        if ty in 'GQ':
            o += [f"s_lshl_b32 s{sT1}, s{sT1}, {12 if ty == 'G' else 13}", f"s_add_u32 s{sOB}, s{sOBASE}, s{sT1}"]
            if ty == 'Q': o.append(f"s_add_u32 s{sOB2}, s{sOB}, 4096")
        else:
            hs = 19 if ty == 'Q' else 20
            ls = 12 if ty == 'V' else 11
            o += [f"s_lshr_b32 s{sOB}, s{sT1}, 1", f"s_lshl_b32 s{sOB}, s{sOB}, {hs}", f"s_and_b32 s{sT1}, s{sT1}, 1", f"s_lshl_b32 s{sT1}, s{sT1}, {ls}",
                  f"s_add_u32 s{sOB}, s{sOB}, s{sT1}", f"s_add_u32 s{sOB}, s{sOB}, s{sOBASE}"]
        return o

    def trreads(fi, nb, slot_in_half, ks):
        off = slot_in_half*16384 + ks*4096
        return [f"ds_read_b64_tr_b16 {vr(WF+4*fi,2)}, v{TRA+2*nb} offset:{off}",
                f"ds_read_b64_tr_b16 {vr(WF+4*fi+2,2)}, v{TRA+2*nb+1} offset:{off}"]

    CB = [32768, 65536, 98304, 131072, 98304, 131072, 98304, 131072] if B4 else [98304 + (r % 2)*32768 for r in range(8)]
    def c_round(r):
        return [[f"s_add_u32 m0, s{sSTG}, {CB[r] + j*1024}", f"s_add_u32 s{sT0}, s{sRQ+r//2}, {j*8192 + (r%2)*128}",
                 f"buffer_load_dwordx4 v{T+(j&1)}, s[{S_ACT}:{S_ACT+3}], s{sT0} offen lds"] for j in range(8)]
    def c_reads(r):
        base, o = (T+2, CB[r] - 98304) if CB[r] >= 98304 else (T+4, CB[r] - 32768)
        return [f"ds_read_b128 {ar((t*16+2*r+k2)*4, 4)}, v{base+k2} offset:{o + t*2048}" for t in range(4) for k2 in range(2)]

    def body(ty, par, first=False, vms=None, A=A):
        acc = ACC[par]; old = ACC[1-par]
        cs, ss, _ = dma_consts(ty)
        gaps = {}
        def G(q, m): return gaps.setdefault((q, m), {'mem': [], 'other': []})
        def room(q, m):
            g = G(q, m); return 2 - len(g['mem']) - len(g['other'])
        prew = {}
        if LGK:
            for q in range(4):
                for grp in range(1, 16, 2): G(q, grp*4 + 2)['other'].append("s_waitcnt lgkmcnt(10)")
        if not first:
            epi = epilogue_ops(ty, old)
            if ty == 'G' and par == 1:
                ex = [x[0] for x in xcst] + [f"buffer_store_dword v{MU}, v{SUM}, s[{S_XC}:{S_XC+3}], s{sSCQ} offen sc1", f"s_mov_b32 s{S_XC+2}, 0"]
                e2 = []
                for k, x in enumerate(epi):
                    e2.append(x)
                    if k % 6 == 5 and ex: e2.append(ex.pop(0))
                epi = e2 + ex
            for q in range(4):
                G(q, 0)['other'] += [f"s_waitcnt vmcnt({vms[q]})", "s_barrier"]
                tgt = (4*par + q + 7) % 8
                trip = dma_slot(ty, 1 if q == 0 else 2, (q+3) % 4, tgt)
                if q == 1:
                    G(q, 1)['other'] += [f"s_add_u32 s{sT1}, s{sSU}, 2", f"s_cmp_ge_u32 s{sT1}, s{sEND2}"]
                    G(q, 2)['other'] += [f"s_cselect_b32 s{S_WA+2}, 0, s{S_WA+2}", f"s_cselect_b32 s{S_WB+2}, 0, s{S_WB+2}"]
                for j, tr in enumerate(trip):
                    m = 8 + 12*j + 1
                    G(q, m)['other'] += tr[:2]
                    G(q, m+1)['mem'] += [tr[2]]
            oc = ob_calc(ty, -1)
            pos = [(0,1),(0,2),(0,4),(0,5)]
            k = 0
            for p in pos:
                while room(*p) > 0 and k < len(oc): G(*p)['other'].append(oc[k]); k += 1
            assert k == len(oc)
        for nb in range(4):
            m = 16 + 4*nb + 4
            G(3, m)['other'] += [f"v_xor_b32 v{TRA+2*nb}, 0x10000, v{TRA+2*nb}", f"v_xor_b32 v{TRA+2*nb+1}, 0x10000, v{TRA+2*nb+1}"]
        if not first:
            slots = [(q, m) for q in range(4) for m in range(64) if m % 4 != 3 and (q, m) >= (0, 6)]
            cap = [(s_, room(*s_)) for s_ in slots]
            tot = sum(c for _, c in cap)
            step = max(1.0, 0.8*tot/len(epi))
            flat = [s_ for s_, c in cap for _ in range(c)]
            idx = 0.0
            for op in epi:
                s_ = flat[int(idx)]
                if op.startswith('buffer_store'):
                    i2 = int(idx)
                    while True:
                        s_ = flat[i2]
                        g = G(*s_)
                        if not g['mem'] and not g['other']: break
                        i2 += 1
                    idx = max(idx, i2)
                    G(*s_)['mem'].append(op)
                else:
                    G(*s_)['other'].append(op)
                idx += step
        else:
            seq = ['R0']*8 + ['W0']*4 + ['R1']*8 + ['W1']*4
            def vm(tag): return len(seq) - 1 - max(i for i, e in enumerate(seq) if e == tag)
            def put_triples(q, m0, trips, tag):
                m = m0
                for tr in trips:
                    G(q, m)['other'] += tr[:2]
                    m2 = m + 1 if (m + 1) % 4 != 3 else m + 2
                    G(q, m2)['mem'].append(tr[2]); seq.append(tag)
                    m = m2
                    if len(G(q, m)['other']) >= 1 or True:
                        pass
                return m
            if B4:
                seq += ['R2']*8 + ['R3']*8
                def nxt(m): return m + 1 if (m + 1) % 4 != 3 else m + 2
                def put_reads(q, mm, r):
                    prew.setdefault((q, mm), []).append(f"s_waitcnt vmcnt({vm(f'R{r}')})")
                    rds = c_reads(r)
                    for k in range(4):
                        G(q, mm)['mem'] += rds[2*k:2*k+2]; mm = nxt(mm)
                    return mm
                W = lambda n: dma_slot(ty, n//4, n % 4, n % 8)
                for h in range(8):
                    q = h // 2; base = 32*(h % 2)
                    if h in (1, 3, 5): prew[(q, base)] = ["s_waitcnt lgkmcnt(2)"]
                    if h % 2 == 1: G(q, base)['other'] += [f"s_waitcnt vmcnt({vm(f'W{q+1}')})", "s_barrier"]
                    m = base + 1
                    if h == 0:
                        put_reads(q, 8, 1); put_reads(q, 16, 2); put_reads(q, 24, 3)
                    if h == 1:
                        m = put_triples(q, m, c_round(4), 'R4'); m = put_triples(q, m, W(2), 'W2'); m = put_triples(q, m, c_round(5), 'R5')
                    if h == 2:
                        for n in (3, 4, 5): m = put_triples(q, m, W(n), f'W{n}')
                        put_reads(q, base+18, 4); put_reads(q, base+24, 5)
                    if h == 3:
                        m = put_triples(q, m, c_round(6), 'R6'); m = put_triples(q, m, c_round(7), 'R7')
                    if h == 4:
                        put_reads(q, base+18, 6); put_reads(q, base+24, 7)
                    if h == 5:
                        for n in (6, 7): m = put_triples(q, m, W(n), f'W{n}')
                    if h == 6:
                        for n in (8, 9): m = put_triples(q, m, W(n), f'W{n}')
                    if h == 7: m = put_triples(q, m, W(10), 'W10')
                    assert m < base + 31 and (h != 2 or m < base + 18), (h, m)
            else:
                for h in range(8):
                    q = h // 2; base = 32*(h % 2)
                    if h >= 1: prew[(q, base)] = ["s_waitcnt lgkmcnt(2)"]
                    need = None
                    if h == 1: need = 'W1'
                    elif h in (2, 4, 6): need = f'W{q+1}'
                    if need: G(q, base)['other'] += [f"s_waitcnt vmcnt({vm(need)})", "s_barrier"]
                    if h == 7: G(q, base)['other'] += ["s_barrier"]
                    if HST and h in (2, 4, 6): G(q, base)['other'].append(f"s_memrealtime s[{64+2*(2+h//2)}:{65+2*(2+h//2)}]")
                    m = base + 1
                    if h + 2 <= 7: m = put_triples(q, m, c_round(h+2), f'R{h+2}')
                    if WEARLY:
                        if h <= 1:
                            for n in (2*h+2, 2*h+3): m = put_triples(q, m, dma_slot(ty, n//4, n % 4, n), f'W{n}')
                    elif h <= 3: m = put_triples(q, m, dma_slot(ty, (h+2)//4, (h+2) % 4, h+2), f'W{h+2}')
                    if h == 7:
                        for n in range(6, 11): m = put_triples(q, m, dma_slot(ty, n//4, n % 4, n % 8), f'W{n}')
                        assert m <= 60, m
                    if h == 4 and KV_TOUCH:
                        to = touch_ops(ty)
                        for k, x in enumerate(to):
                            if x.startswith('buffer'): seq.append('T')
                            G(q, base + 16 + (k//4)*1 + (1 if (base+16+(k//4)) % 4 == 3 else 0))['other'].append(x)
                    if h + 1 <= 7:
                        mm = base + 24
                        prew[(q, mm)] = [f"s_waitcnt vmcnt({vm(f'R{h+1}')})"]
                        rds = c_reads(h+1)
                        for k, p in enumerate((mm, mm+1, mm+2, mm+4)):
                            G(q, p)['mem'] += rds[2*k:2*k+2]
        if ty == 'V':
            G(3, 56)['other'] += [f"s_add_u32 s{sT1}, s{sSU}, 3", f"s_cmp_eq_u32 s{sT1}, s{sEND}", f"s_cselect_b32 s{sIA}, s{sHD}, {cs}"]
            G(3, 57)['other'] += [f"s_add_u32 s{sT1}, s{sSU}, 2", f"s_cmp_eq_u32 s{sT1}, s{sEND}", f"s_cselect_b32 s{sIB}, s{sHD}, {cs}"]
            ia, ib = f"s{sIA}", f"s{sIB}"
        else: ia = ib = f"{cs}"
        G(3, 60)['other'] += [f"s_add_u32 s{sDQ}, s{sDQ}, {ia}", f"s_add_u32 s{sDQ+1}, s{sDQ+1}, {ia}"]
        G(3, 61)['other'] += [f"s_add_u32 s{sDQ+2}, s{sDQ+2}, {ia}", f"s_add_u32 s{sDQ+3}, s{sDQ+3}, {ib}", f"s_add_u32 s{sSU}, s{sSU}, 1"]
        G(3, 62)['other'] += [f"s_mov_b32 s{S_OUT+2}, {0 if NOST else WS_USED}", f"s_cmp_ge_u32 s{sSU}, s{sEND}"]
        for q in range(4):
            for ks in range(4):
                for nb in range(4):
                    fi = (ks % 2)*4 + nb
                    grp = ks*4 + nb
                    if grp % 2 == 0 and not LGK: A("s_waitcnt lgkmcnt(12)")
                    for t in range(4):
                        m = grp*4 + t
                        for x in prew.get((q, m), []): A(x)
                        d = acc + (nb*4+t)*4
                        kk = q*4 + ks
                        c = "0" if kk == 0 else vr(d, 4)
                        w = vr(WF+4*fi, 4); a = ar((t*16+kk)*4, 4)
                        A(f"{MF} {vr(d,4)}, {a}, {w}, {c}" if ty == 'V' else f"{MF} {vr(d,4)}, {w}, {a}, {c}")
                        if t == 3:
                            if ks < 2: rd = trreads(fi, nb, q, ks+2)
                            else: rd = trreads(fi, nb, (q+1) % 4, ks-2)
                            for x in rd: A(x)
                        g = G(q, m)
                        for x in g['mem']: A(x)
                        for x in g['other']: A(x)

    def vm_table(ty):
        tmp = Asm(); body(ty, 0, vms=[0]*4, A=tmp)
        pat = []; q = -1
        for l in tmp.lines:
            if l == 's_barrier': q += 1; pat.append(('bar', q))
            elif l.startswith('buffer_load'): pat.append(('dma', q))
            elif l.startswith('buffer_store'): pat.append(('st', q))
        if ty in 'KV': seq = [5]*4 + [n for n in range(6, 11) for _ in range(4)]; c0 = 1
        else: seq = [n for n in range(4, 7) for _ in range(4)]; c0 = 0
        tab = {}
        for c in range(c0, 8):
            tab[c] = [0]*4
            for kind, q in pat:
                if kind == 'bar':
                    need = 4*c + q + 1
                    idx = [i for i, e in enumerate(seq) if e == need]
                    tab[c][q] = min(63, len(seq) - 1 - max(idx)) if idx else 63
                    if not EXACT: tab[c][q] = 20
                elif kind == 'dma': seq.append(4*c + q + 7)
                else: seq.append('s')
        return tab

    for ty in 'KVG':
        VN = vm_table(ty)
        if ty in 'KV':
            A.label(f"K1_PRO_{ty}")
            if ACT_TOUCH: act_touch()
            A(f"v_lshrrev_b32 v4, 3, v0\nv_and_b32 v5, 7, v0\nv_lshrrev_b32 v6, 4, v0\nv_xor_b32 v5, v5, v6")
            A(f"v_lshlrev_b32 v4, 10, v4\nv_lshl_add_u32 v{T}, v5, 4, v4\nv_xor_b32 v{T+1}, 64, v{T}")
            for it in c_round(0) + dma_slot(ty, 0, 0, 0) + c_round(1) + dma_slot(ty, 0, 1, 1) + (c_round(2) + c_round(3) if B4 else []):
                for x in it: A(x)
            stamp(A, 1)
            A(f"v_and_b32 v4, 15, v0\nv_lshrrev_b32 v5, 1, v4\nv_xor_b32 v5, v5, v1\nv_lshlrev_b32 v4, 7, v4\nv_lshl_add_u32 v4, v5, 4, v4")
            A(f"s_add_u32 s{sT1}, s{sSTG}, 98304\nv_add_u32 v{T+2}, s{sT1}, v4\nv_xor_b32 v{T+3}, 64, v{T+2}\nv_subrev_u32 v{T+4}, 0x10000, v{T+2}\nv_subrev_u32 v{T+5}, 0x10000, v{T+3}")
            A(f"s_waitcnt vmcnt({28 if B4 else 12})\ns_barrier")
            stamp(A, 2)
            for x in c_reads(0): A(x)
            for ks in range(2):
                for nb in range(4):
                    for x in trreads(ks*4+nb, nb, 0, ks): A(x)
            A("s_waitcnt lgkmcnt(12)")
            body(ty, 0, first=True)
            stamp(A, 6)
            if not HST: stampc(A, 4)
            body(ty, 1, vms=VN[1])
            if CODE_TOUCH2: code_touch(A, "k2_kernel", "K2_END", sW, 0, DUM+1, 80)
            if WQ_TOUCH:
                A(f"s_mov_b32 s4, s{P_WQ}\ns_mov_b32 s5, s{P_WQ+1}\ns_mov_b32 s6, {512*8192}\ns_mov_b32 s7, 0x00020000")
                A(f"s_sub_u32 s{sT1}, s{sCG}, {11 if PART == 'A' else 10}\ns_lshl_b32 s{sT1}, s{sT1}, 3\ns_add_u32 s{sT1}, s{sT1}, s{sTB}\ns_mul_i32 s{sT1}, s{sT1}, {196*128}\ns_min_u32 s{sT0}, s{sW}, 3\ns_lshl_b32 s{sT0}, s{sT0}, 13\ns_add_u32 s{sT1}, s{sT1}, s{sT0}")
                A(f"v_lshlrev_b32 v4, 7, v0\nbuffer_load_dword v{DUM}, v4, s[4:7], s{sT1} offen")
            A(f"s_branch K1_LOOP_{ty}")
        else:
            A.label(f"K1_START2_{ty}")
            stamp(A, 2)
            if W_TOUCH:
                for x in touch_ops(ty): A(x)
            if ty == 'Q':
                for t in range(4): A(f"v_mul_f32 v{SC+t}, {hex(f32bits(CSCALE))}, v{RSTD+t}")
            if ty == 'G':
                for t in range(4): A(f"v_mul_f32 v{SC+t}, v{RSTD+t}, v{RSTD+t}")
            A(f"s_waitcnt vmcnt({14 if W_TOUCH else 12})\ns_barrier")
            stamp(A, 6)
            for ks in range(2):
                for nb in range(4):
                    for x in trreads(ks*4+nb, nb, 0, ks): A(x)
            A("s_waitcnt lgkmcnt(12)")
        A(".p2align 6")
        A.label(f"K1_LOOP_{ty}")
        c0 = 2 if ty in 'KV' else 0
        body(ty, 0, vms=[min(VN[c][q] for c in range(c0, 8, 2)) for q in range(4)])
        A(f"s_cbranch_scc1 K1_DRAIN0_{ty}")
        body(ty, 1, vms=[min(VN[c][q] for c in range(c0+1, 8, 2)) for q in range(4)])
        A(f"s_cbranch_scc0 K1_LOOP_{ty}")
        for par in (1, 0):
            A.label(f"K1_DRAIN{par}_{ty}")
            if ty == 'V' and par == 1: A(f"s_cmp_lg_u32 s{sEND}, s{sEND2}\ns_cbranch_scc1 K1_HALF_V")
            if ty in 'KV' and not HST: stamp(A, 3); stampc(A, 5)
            for x in ob_calc(ty, -1): A(x)
            A("s_nop 1")
            if WBL2: A(f"s_cmp_lg_u32 s{sW}, 0\ns_cbranch_scc1 K1_NOWB{par}_{ty}\nbuffer_wbl2 sc1\nK1_NOWB{par}_{ty}:")
            for x in epilogue_ops(ty, ACC[par], (' ' + SFD) if SFD else ''): A(x)
            A("s_branch K1_FIN")
    A.label("K1_HALF_V")
    epi = ob_calc('V', -1) + epilogue_ops('V', ACC[1])
    A("s_waitcnt vmcnt(12)")
    k = 0
    for q in range(4):
        for ks in range(4):
            A("s_waitcnt lgkmcnt(4)")
            for nb in range(2):
                fi = (ks % 2)*4 + nb
                for t in range(4):
                    d = ACC[0] + (nb*4+t)*4; kk = q*4 + ks
                    A(f"{MF} {vr(d,4)}, {ar((t*16+kk)*4,4)}, {vr(WF+4*fi,4)}, {'0' if kk == 0 else vr(d,4)}")
                    if kk == 0 and nb == 0 and t == 0: A("s_barrier")
                    if t == 3 and kk < 14:
                        for x in (trreads(fi, nb, q, ks+2) if ks < 2 else trreads(fi, nb, q+1, ks-2)): A(x)
                    elif t < 3 and kk >= 1 and k < len(epi):
                        A(epi[k]); k += 1
    assert k == len(epi), (k, len(epi))
    A(f"s_add_u32 s{sOB}, s{sOBH}, s{sOBASE}\ns_nop 4")
    for x in epilogue_ops('V', ACC[0])[:20]: A(x)
    A.label("K1_FIN")
    if asmlib.STAMP:
        A("s_waitcnt vmcnt(0)")
        stamp_flush(A, 0, 8, P_WS, sW)
    A.label("K1_END")
    A("s_endpgm")
    return dict(name="k1_kernel", vgpr=248+256, accum=248, sgpr=102, grid=256, block=256, lds=163840)
```

```python
from asmlib import *
import asmlib
import math

import os
ACT_TOUCH = os.environ.get('ACT_TOUCH', '0') == '1'
W_TOUCH = os.environ.get('W_TOUCH', '0') == '1'
XFIRST = os.environ.get('XFIRST', '1') == '1'
KV_TOUCH = os.environ.get('KV_TOUCH', '0') == '1'
NOST = os.environ.get('NOST', '0') == '1'
SFD = os.environ.get('SFD', 'sc1')
WBL2 = os.environ.get('WBL2', '0') == '1'
HST = os.environ.get('HST', '0') == '1'
WEARLY = os.environ.get('WEARLY', '0') == '1'
WQ_TOUCH = os.environ.get('WQ_TOUCH', '1') == '1'
CODE_TOUCH = os.environ.get('CODE_TOUCH', '1') == '1'
CODE_TOUCH2 = os.environ.get('CODE_TOUCH2', '1') == '1'
XSP = os.environ.get('XSP', '1') == '1'
PART = os.environ.get('PART', 'A')
B4 = os.environ.get('B4', '0') == '1'
MAP48 = os.environ.get('MAP48', '1') == '1'
CHAIN = os.environ.get('CHAIN', '1') == '1'
MIX = os.environ.get('MIX', '1') == '1'
XORD = os.environ.get('XORD', '0') == '1'
LGK = os.environ.get('LGK', '1') == '1'
EXACT = os.environ.get('EXACT', '1') == '1'
ROT = os.environ.get('ROT', '1') == '1'
WS_OFF = int(os.environ.get('WS_OFF', '0')) << 20
KV_BASE = WS_OFF + (1 << 20)
A3_BASE = WS_OFF + (33 << 20)
A3_TB64 = 171 * 4096
XC_BASE = WS_OFF + (56 << 20)
SCQ_BASE = WS_OFF + (58 << 20)
WS_USED = WS_OFF + (59 << 20)
MF = "v_mfma_f32_16x16x32_bf16"
CSCALE = math.log2(math.e) / math.sqrt(128.0)

def f32bits(x):
    import struct
    return struct.unpack('<I', struct.pack('<f', x))[0]

def gen_k1(A, store_flags=""):
    ACC = [8, 72]; WF = 136; TRA = 168; VW = 176; VO = 178; OUT = 184; SC = 196; RSTD = 200; T = 204; GR = 216; SUM = 232; ONESV = 240; MU = 244; DUM = 245; VLN = 247
    S_ACT, S_WA, S_WB, S_OUT = 8, 12, 16, 20
    sW, sTB, sCG, sSU, sEND, sDMA, sOB, sM0, sT0, sT1, sTYPE, sJOB2, sOBASE = 24, 25, 26, 27, 28, 29, 30, 31, 32, 33, 34, 35, 36
    sONES, sSLO, sSHI = 37, 38, 39
    P_X, P_CKV, P_WQ, P_WUK, P_WUV, P_WG, P_WU, P_WS = 40, 42, 44, 46, 48, 50, 52, 54
    sSTG = 56
    sROW = 57
    sEX2, sEX, sMK, sDQ, sROT, sOB2 = 58, 84, 88, 96, 62, 63
    S_XC = 4; sXQ = 44; sSCQ = 48; sEND2 = sJOB2; sHD = 100; sOBH = 101; sIA = 38; sIB = 39; sXS = 3; sRC = 34
    sRQ = sEX; sXR = 40

    A(".globl k12_kernel\n.p2align 8\n.type k12_kernel,@function")
    A.label("k12_kernel")
    A("s_cmp_ge_u32 s2, 256\ns_cbranch_scc1 K2_END")
    stamp(A, 0)
    A(f"s_load_dwordx4 s[{P_X}:{P_X+3}], s[0:1], 0")
    A(f"s_load_dwordx4 s[{P_WQ}:{P_WQ+3}], s[0:1], 16")
    A(f"s_load_dwordx2 s[{P_WUV}:{P_WUV+1}], s[0:1], 32")
    A(f"s_load_dwordx2 s[{P_WG}:{P_WG+1}], s[0:1], 56")
    A(f"s_load_dwordx2 s[{P_WU}:{P_WU+1}], s[0:1], 64")
    A(f"s_load_dwordx2 s[{P_WS}:{P_WS+1}], s[0:1], 96\ns_load_dwordx2 s[78:79], s[0:1], 88\ns_mov_b32 s{sXS}, 0")
    A(f"v_lshrrev_b32 v1, 6, v0\nv_and_b32 v0, 63, v0\ns_nop 0\nv_readfirstlane_b32 s{sW}, v1")
    if MAP48:
        A(f"s_and_b32 s{sT0}, s2, 1\ns_lshl_b32 s{sT0}, s{sT0}, 2\ns_lshr_b32 s{sT1}, s2, 3\ns_and_b32 s{sTB}, s{sT1}, 3\ns_add_u32 s{sTB}, s{sTB}, s{sT0}")
        if MIX: A(f"s_and_b32 s{sT1}, s{sT1}, 28\ns_lshr_b32 s{sT0}, s2, 1\ns_and_b32 s{sT0}, s{sT0}, 3\ns_add_u32 s{sCG}, s{sT0}, s{sT1}\ns_lshr_b32 s{sRC}, s{sCG}, 2")
        else: A(f"s_lshr_b32 s{sT1}, s{sT1}, 2\ns_and_b32 s{sT0}, s2, 6\ns_lshl_b32 s{sCG}, s{sT0}, 2\ns_add_u32 s{sCG}, s{sCG}, s{sT1}\ns_mov_b32 s{sRC}, s{sCG}")
    else:
        A(f"s_and_b32 s{sT0}, s2, 7\ns_lshr_b32 s{sT1}, s2, 3\ns_and_b32 s{sTB}, s{sT1}, 7\ns_lshr_b32 s{sT1}, s{sT1}, 3")
        A(f"s_lshl_b32 s{sCG}, s{sT0}, 2\ns_add_u32 s{sCG}, s{sCG}, s{sT1}")
    A(f"s_mov_b32 s{sONES}, 0x3f803f80\ns_mov_b32 s{sSLO}, 0x00003f80\ns_mov_b32 s{sSHI}, 0x3f800000")
    A(f"s_lshl_b32 s{sSTG}, s{sW}, 13")
    A(f"s_lshl_b32 s{sROW}, s{sTB}, 18\ns_lshl_b32 s{sT0}, s{sW}, 16\ns_add_u32 s{sROW}, s{sROW}, s{sT0}")
    for r in (S_ACT, S_WA, S_WB, S_OUT): A(f"s_mov_b32 s{r+3}, 0x00020000")
    A(f"s_mov_b32 s{S_ACT+2}, 0x200000")
    if CODE_TOUCH: code_touch(A, "k12_kernel", "K1_FIN", sW, 0, DUM, 80)
    A("s_waitcnt lgkmcnt(0)")
    A(f"s_mov_b32 s{S_OUT}, s{P_WS}\ns_mov_b32 s{S_OUT+1}, s{P_WS+1}\ns_mov_b32 s{S_OUT+2}, 0")
    if PART == 'A':
        A(f"s_cmp_ge_u32 s{sCG}, 11\ns_cbranch_scc1 K1_DISP_C")
        A(f"s_mov_b32 s{S_ACT}, s{P_X}\ns_mov_b32 s{S_ACT+1}, s{P_X+1}")
        A(f"s_lshl_b32 s{sSU}, s{sCG}, 2\ns_add_u32 s{sEND}, s{sSU}, 4\ns_min_u32 s{sEND}, s{sEND}, 43\ns_mov_b32 s{sEND2}, s{sEND}\ns_branch K1_SETUP_G")
        A.label("K1_DISP_C")
        A(f"s_mov_b32 s{S_ACT}, s{P_CKV}\ns_mov_b32 s{S_ACT+1}, s{P_CKV+1}")
        A(f"s_cmp_ge_u32 s{sCG}, 22\ns_cbranch_scc1 K1_DISP_V")
        A(f"s_sub_u32 s{sT1}, s{sCG}, 11\ns_min_u32 s{sT0}, s{sT1}, 9\ns_mul_i32 s{sSU}, s{sT1}, 5\ns_add_u32 s{sSU}, s{sSU}, s{sT0}\ns_cmp_lt_u32 s{sT1}, 9\ns_cselect_b32 s{sT0}, 6, 5\ns_add_u32 s{sEND}, s{sSU}, s{sT0}\ns_mov_b32 s{sEND2}, s{sEND}\ns_branch K1_SETUP_K")
        A.label("K1_DISP_V")
        A(f"s_sub_u32 s{sT1}, s{sCG}, 22\ns_mul_i32 s{sSU}, s{sT1}, 6\ns_add_u32 s{sEND}, s{sSU}, 6\ns_cmp_lt_u32 s{sT1}, 8\ns_cselect_b32 s{sT0}, 1, 0\ns_add_u32 s{sEND2}, s{sEND}, s{sT0}")
        A(f"s_lshl_b32 s{sHD}, s{sT1}, 6\ns_add_u32 s{sHD}, s{sHD}, {61*128}\ns_lshl_b32 s{sT0}, s{sEND}, 7\ns_sub_u32 s{sHD}, s{sHD}, s{sT0}")
        A(f"s_lshl_b32 s{sT0}, s{sT1}, 1\ns_add_u32 s{sT0}, s{sT0}, 240\ns_lshr_b32 s{sOBH}, s{sT0}, 3\ns_lshl_b32 s{sOBH}, s{sOBH}, 20\ns_and_b32 s{sT0}, s{sT0}, 7\ns_lshl_b32 s{sT0}, s{sT0}, 10\ns_add_u32 s{sOBH}, s{sOBH}, s{sT0}\ns_branch K1_SETUP_V")

    else:
        A(f"s_cmp_ge_u32 s{sCG}, 10\ns_cbranch_scc1 K1_DISP_C")
        A(f"s_mov_b32 s{S_ACT}, s{P_X}\ns_mov_b32 s{S_ACT+1}, s{P_X+1}")
        A(f"s_min_u32 s{sT0}, s{sCG}, 3\ns_lshl_b32 s{sSU}, s{sCG}, 2\ns_add_u32 s{sSU}, s{sSU}, s{sT0}\ns_cmp_lt_u32 s{sCG}, 3\ns_cselect_b32 s{sT0}, 5, 4\ns_add_u32 s{sEND}, s{sSU}, s{sT0}\ns_mov_b32 s{sEND2}, s{sEND}\ns_branch K1_SETUP_G")
        A.label("K1_DISP_C")
        A(f"s_mov_b32 s{S_ACT}, s{P_CKV}\ns_mov_b32 s{S_ACT+1}, s{P_CKV+1}\ns_mov_b32 s{sHD}, 128\ns_mov_b32 s{sOBH}, 0")
        A(f"s_cmp_ge_u32 s{sCG}, 21\ns_cselect_b32 s{sT0}, 21, 10\ns_sub_u32 s{sT1}, s{sCG}, s{sT0}")
        A(f"s_min_u32 s{sT0}, s{sT1}, 9\ns_mul_i32 s{sSU}, s{sT1}, 5\ns_add_u32 s{sSU}, s{sSU}, s{sT0}\ns_cmp_lt_u32 s{sT1}, 9\ns_cselect_b32 s{sT0}, 6, 5\ns_add_u32 s{sEND}, s{sSU}, s{sT0}\ns_mov_b32 s{sEND2}, s{sEND}")
        A(f"s_cmp_ge_u32 s{sCG}, 21\ns_cbranch_scc1 K1_SETUP_V\ns_branch K1_SETUP_K")

    def dma_consts(ty):
        if ty == 'G':
            return 64, 128*2752, [(S_WA, 0, 0), (S_WA, 0, 16*2752), (S_WB, 0, 0), (S_WB, 0, 16*2752)]
        return 128, 128*8192, [(S_WA, 0, 0), (S_WA, 1, 8*8192), (S_WA, 0, 16*8192), (S_WA, 1, 24*8192)]

    def dma_slot(ty, su_rel, q, ringslot):
        cs, ss, pieces = dma_consts(ty)
        out = []
        for j, (srd, vi, ex) in enumerate(pieces):
            out.append([f"s_add_u32 m0, s{sM0}, {ringslot*16384 + j*1024}",
                        f"s_add_u32 s{sT0}, s{sDQ+q}, {su_rel*cs + ex}",
                        f"buffer_load_dwordx4 v{VW+vi}, s[{srd}:{srd+3}], s{sT0} offen lds"])
        return out

    def setup(ty):
        A.label(f"K1_SETUP_{ty}")
        ptr = {'Q': P_WQ, 'K': P_WUK, 'V': P_WUV, 'G': P_WG}[ty]
        A(f"s_mov_b32 s{S_WA}, s{ptr}\ns_mov_b32 s{S_WA+1}, s{ptr+1}")
        pb = P_WU if ty == 'G' else ptr
        A(f"s_mov_b32 s{S_WB}, s{pb}\ns_mov_b32 s{S_WB+1}, s{pb+1}")
        wsz = 512*2752 if ty == 'G' else 512*8192
        A(f"s_mov_b32 s{S_WA+2}, {wsz}\ns_mov_b32 s{S_WB+2}, {wsz}")
        cs, ss, _ = dma_consts(ty)
        pitch = 2752 if ty == 'G' else 8192
        A(f"s_mul_i32 s{sDMA}, s{sSU}, {cs}\ns_mul_i32 s{sT0}, s{sW}, {32*pitch}\ns_add_u32 s{sDMA}, s{sDMA}, s{sT0}")
        A(f"s_lshl_b32 s{sM0}, s{sW}, 12")
        A(f"s_add_u32 s{sROT}, s{sRC}, s{sTB}\ns_and_b32 s{sROT}, s{sROT}, {3 if ROT else 0}")
        for q in range(4):
            A(f"s_add_u32 s{sT0}, s{sROT}, {q}\ns_and_b32 s{sT0}, s{sT0}, 3\ns_mul_i32 s{sT1}, s{sT0}, {ss}\ns_add_u32 s{sDQ+q}, s{sDMA}, s{sT1}")
            if ty in 'KV': A(f"s_lshl_b32 s{sT0}, s{sT0}, 8\ns_add_u32 s{sRQ+q}, s{sROW}, s{sT0}")
        if ty in 'QG':
            for j, (_, _, ex) in enumerate(dma_consts(ty)[2]): A(f"s_mov_b32 s{sEX+j}, {ex}\ns_mov_b32 s{sEX2+j}, {ex+cs}")
        A("v_lshrrev_b32 v1, 4, v0\nv_bfe_u32 v2, v0, 2, 2\nv_and_b32 v3, 3, v0")
        if ty != 'G':
            A("v_lshrrev_b32 v4, 3, v0\nv_and_b32 v5, 7, v0\nv_bfe_u32 v6, v0, 4, 1\nv_lshlrev_b32 v6, 1, v6\nv_xor_b32 v5, v5, v6")
            A(f"v_lshlrev_b32 v4, 13, v4\nv_lshl_add_u32 v{VW}, v5, 4, v4\nv_xor_b32 v{VW+1}, 64, v{VW}")
            A("v_lshrrev_b32 v4, 1, v2\nv_and_b32 v5, 1, v1\nv_lshl_add_u32 v4, v5, 1, v4")
            A("v_lshl_add_u32 v5, v1, 3, v2\nv_lshlrev_b32 v5, 7, v5\nv_lshl_add_u32 v5, v3, 3, v5")
            for nb in range(4):
                A(f"v_xor_b32 v6, {nb}, v4\nv_lshl_add_u32 v{TRA+2*nb}, v6, 5, v5\nv_add_u32 v{TRA+2*nb+1}, 512, v{TRA+2*nb}")
        else:
            A(f"v_lshrrev_b32 v4, 2, v0\nv_lshrrev_b32 v6, 5, v0\nv_lshlrev_b32 v6, 1, v6\nv_xor_b32 v5, v3, v6")
            A(f"v_mul_u32_u24 v4, 2752, v4\nv_lshl_add_u32 v{VW}, v5, 4, v4\nv_mov_b32 v{VW+1}, v{VW}")
            A("v_and_b32 v4, 1, v1")
            A("v_lshl_add_u32 v5, v1, 3, v2\nv_lshlrev_b32 v5, 6, v5\nv_lshl_add_u32 v5, v3, 3, v5")
            for nb in range(4):
                A(f"v_xor_b32 v6, {nb%2}, v4\nv_lshl_add_u32 v6, v6, 5, v5\nv_add_u32 v{TRA+2*nb}, {(nb//2)*2048}, v6\nv_add_u32 v{TRA+2*nb+1}, 256, v{TRA+2*nb}")
        A("v_lshlrev_b32 v4, 4, v0")
        if ty == 'Q':
            for t in range(4): A(f"s_add_u32 s{sT0}, s{sCG}, {t}\ns_and_b32 s{sT0}, s{sT0}, {3 if ROT else 0}\ns_lshl_b32 s{sT0}, s{sT0}, 10\nv_add_u32 v{VO+t}, s{sT0}, v4" if ROT else f"v_add_u32 v{VO+t}, {t*1024}, v4")
            A(f"s_lshl_b32 s{sT0}, s{sTB}, 2\ns_add_u32 s{sT0}, s{sT0}, s{sW}\ns_mul_i32 s{sOBASE}, s{sT0}, {A3_TB64}\ns_add_u32 s{sOBASE}, s{sOBASE}, {A3_BASE}")
        elif ty == 'K':
            for t in range(4): A(f"v_add_u32 v{VO+t}, {(t//2)*16384 + (t%2)*4096}, v4")
            A(f"s_lshl_b32 s{sOBASE}, s{sTB}, 17\ns_lshl_b32 s{sT0}, s{sW}, 15\ns_add_u32 s{sOBASE}, s{sOBASE}, s{sT0}\ns_add_u32 s{sOBASE}, s{sOBASE}, {KV_BASE}")
        elif ty == 'V':
            for t in range(4): A(f"v_add_u32 v{VO+t}, {(t%2)*16384}, v4")
            A(f"s_lshl_b32 s{sOBASE}, s{sTB}, 17\ns_lshl_b32 s{sT0}, s{sW}, 15\ns_add_u32 s{sOBASE}, s{sOBASE}, s{sT0}\ns_add_u32 s{sOBASE}, s{sOBASE}, {KV_BASE+8192}")
        else:
            for t in range(4): A(f"s_add_u32 s{sT0}, s{sCG}, {t}\ns_and_b32 s{sT0}, s{sT0}, {3 if ROT else 0}\ns_lshl_b32 s{sT0}, s{sT0}, 10\nv_add_u32 v{VO+t}, s{sT0}, v4" if ROT else f"v_add_u32 v{VO+t}, {t*1024}, v4")
            A(f"s_lshl_b32 s{sT0}, s{sTB}, 2\ns_add_u32 s{sT0}, s{sT0}, s{sW}\ns_mul_i32 s{sOBASE}, s{sT0}, {A3_TB64}\ns_add_u32 s{sOBASE}, s{sOBASE}, {A3_BASE + 128*4096}")
        A(f"s_mov_b32 s{S_OUT+2}, {0 if ty in 'QG' else WS_USED}")
        A(f"s_branch {'K1_STAGE_X' if ty in 'QG' else 'K1_PRO_' + ty}")

    for ty in 'KVG': setup(ty)

    def wpre(ty, slots):
        for q in slots:
            for tr in dma_slot(ty, q//4, q%4, q):
                for x in tr: A(x)

    def act_touch():
        A(f"s_lshl_b32 s{sT1}, s{sTB}, 18\ns_and_b32 s{sT0}, s{sCG}, 3\ns_lshl_b32 s{sT0}, s{sT0}, 16\ns_add_u32 s{sT1}, s{sT1}, s{sT0}\ns_lshl_b32 s{sT0}, s{sW}, 14\ns_add_u32 s{sT1}, s{sT1}, s{sT0}")
        A(f"v_lshrrev_b32 v4, 3, v0\nv_and_b32 v5, 7, v0\nv_lshlrev_b32 v4, 10, v4\nv_lshl_add_u32 v4, v5, 7, v4\ns_add_u32 s{sT0}, s{sT1}, 8192")
        A(f"buffer_load_dword v{DUM}, v4, s[{S_ACT}:{S_ACT+3}], s{sT1} offen\nbuffer_load_dword v{DUM+1}, v4, s[{S_ACT}:{S_ACT+3}], s{sT0} offen")

    def touch_ops(ty):
        pitch = 2752 if ty == 'G' else 8192
        cs, _, _ = dma_consts(ty)
        o = [f"s_lshl_b32 s{sT1}, s{sTB}, 2", f"s_add_u32 s{sT1}, s{sT1}, s{sW}", f"s_mul_i32 s{sT1}, s{sT1}, {16*pitch}", f"s_mul_i32 s{sT0}, s{sSU}, {cs}", f"s_add_u32 s{sT1}, s{sT1}, s{sT0}"]
        if ty == 'G':
            o += ["v_lshrrev_b32 v4, 2, v0", "v_and_b32 v5, 3, v0", "v_mul_u32_u24 v4, 2752, v4", f"v_add_u32 v4, s{sT1}, v4", "v_and_b32 v4, 0xffffff80, v4", "v_lshl_add_u32 v4, v5, 7, v4"]
            o += [f"buffer_load_dword v{DUM+j}, v4, s[{srd}:{srd+3}], 0 offen" for j, srd in enumerate((S_WA, S_WB))]
        else:
            o += ["v_lshrrev_b32 v4, 3, v0", "v_and_b32 v5, 7, v0", "v_lshlrev_b32 v4, 13, v4", "v_lshl_add_u32 v4, v5, 7, v4"]
            for j in range(2):
                o += [f"s_add_u32 s{sT0}, s{sT1}, {j*8*pitch}", f"buffer_load_dword v{DUM+j}, v4, s[{S_WA}:{S_WA+3}], s{sT0} offen"]
        return o

    BUF = [0, 1, 2, 3, 4, 2, 3, 4]
    A.label("K1_STAGE_X")
    A(f"s_mov_b32 s{S_XC}, s{P_WS}\ns_mov_b32 s{S_XC+1}, s{P_WS+1}\ns_mov_b32 s{S_XC+3}, 0x00020000\ns_cmp_ge_u32 s{sCG}, {7 if PART == 'A' else 6}\ns_cselect_b32 s{S_XC+2}, {WS_USED}, 0")
    A(f"s_lshl_b32 s{sT1}, s{sTB}, 4\ns_lshl_b32 s{sT0}, s{sW}, 2\ns_add_u32 s{sT1}, s{sT1}, s{sT0}\ns_and_b32 s{sT0}, s{sCG}, {3 if ROT else 0}\ns_add_u32 s{sT1}, s{sT1}, s{sT0}")
    A(f"s_lshl_b32 s{sSCQ}, s{sT1}, 6\ns_add_u32 s{sSCQ}, s{sSCQ}, {SCQ_BASE}\ns_lshl_b32 s{sT1}, s{sT1}, 14\ns_add_u32 s{sT1}, s{sT1}, {XC_BASE}")
    for q in range(4): A(f"s_add_u32 s{sT0}, s{sROT}, {q}\ns_and_b32 s{sT0}, s{sT0}, 3\ns_lshl_b32 s{sT0}, s{sT0}, 12\ns_add_u32 s{sXQ+q}, s{sT1}, s{sT0}")
    A(f"v_lshlrev_b32 v{VLN}, 4, v0")
    if ACT_TOUCH: act_touch()
    A(f"s_lshl_b32 s{sT0}, s{sROT}, 4\nv_add_u32 v{T}, s{sT0}, v0\nv_and_b32 v{T}, 63, v{T}\nv_lshlrev_b32 v{T}, 4, v{T}")
    for t in range(4):
        A(f"s_add_u32 s{sT0}, s{sCG}, {t}\ns_and_b32 s{sT0}, s{sT0}, 3\ns_lshl_b32 s{sT0}, s{sT0}, 14\ns_add_u32 s{sXR+t}, s{sROW}, s{sT0}" if ROT else f"s_add_u32 s{sXR+t}, s{sROW}, {t*16384}")
    def x_round(r):
        o = []
        for j in range(8):
            tok = (8*r + j) & 15
            o.append([f"v_xor_b32 v{T+1+(j&1)}, {tok*16}, v{T}", f"s_add_u32 m0, s{sSTG}, {BUF[r]*32768 + j*1024}", f"s_add_u32 s{sT0}, s{sXR+r//2}, {(8*(r%2)+j)*1024}",
                      f"buffer_load_dwordx4 v{T+1+(j&1)}, s[{S_ACT}:{S_ACT+3}], s{sT0} offen lds"])
        return o
    def gw_slot(n):
        o = []
        for j in range(4):
            srd = S_WA if j < 2 else S_WB
            it = [f"s_add_u32 m0, s{sM0}, {n*16384 + j*1024}", f"s_add_u32 s{sT0}, s{sDQ+n%4}, s{(sEX if n < 4 else sEX2)+j}", f"buffer_load_dwordx4 v{VW+(j&1)}, s[{srd}:{srd+3}], s{sT0} offen lds"]
            o.append(it)
        return o
    for r in range(2 if XORD else 4):
        for it in x_round(r):
            for x in it: A(x)
    A(f"v_and_b32 v4, 15, v0\nv_and_b32 v5, 7, v0\nv_lshlrev_b32 v5, 10, v5\nv_and_b32 v6, 3, v0\nv_xor_b32 v6, v6, v1\nv_lshl_add_u32 v5, v6, 4, v5")
    A(f"v_add_u32 v5, s{sSTG}, v5\nv_lshrrev_b32 v6, 2, v4")
    for k in range(4):
        A(f"v_xor_b32 v7, {k}, v6\nv_lshl_add_u32 v{T+4+k}, v7, 6, v5")
    A(f"v_cmp_lt_u32 vcc, 7, v4")
    A(f"v_lshlrev_b32 v5, 2, v1\nv_sub_u32 v5, v4, v5")
    for i in range(4): A(f"v_cmp_eq_u32 s[{sMK+2*i}:{sMK+2*i+1}], {i}, v5")
    for i in range(4): A(f"v_mov_b32 v{ONESV+i}, s{sONES}")
    L = WF
    def x_read(t, vm):
        X = ACC[t % 2]
        ba, bb = BUF[2*t], BUF[2*t+1]
        o = [f"v_mov_b32 v2, {ba*32768}", f"v_mov_b32 v3, {bb*32768}", "v_cndmask_b32 v2, v2, v3, vcc"]
        o += [f"v_add_u32 v{T+8+k}, v2, v{T+4+k}" for k in range(4)]
        o.append(f"s_waitcnt vmcnt({vm})")
        o += [f"ds_read_b128 {vr(X+4*ks,4)}, v{T+8+(ks&3)} offset:{(ks&12)*64}" for ks in range(16)]
        return o
    def sumx(t):
        d = SUM + 4*(t % 2); X = ACC[t % 2]
        return [[f"{MF} {vr(d,4)}, {vr(ONESV,4)}, {vr(X+4*ks,4)}, {'0' if ks == 0 else vr(d,4)}"] for ks in range(16)]
    def gram(t):
        d = GR + 4*t
        return [[f"{MF} {vr(d,4)}, {ar((t*16+ks)*4,4)}, {ar((t*16+ks)*4,4)}, {'0' if ks == 0 else vr(d,4)}"] for ks in range(16)]
    def ln_stream(t):
        X = ACC[t % 2]; mu = MU
        o = [f"v_mul_f32 v{mu}, {hex(f32bits(-1.0/512))}, v{SUM+4*(t%2)}"]
        for b in range(16):
            tb_ = L + 8*(b % 2)
            for i in range(4):
                o.append(f"v_lshlrev_b32 v{tb_+2*i}, 16, v{X+4*b+i}"); o.append(f"v_and_b32 v{tb_+2*i+1}, 0xffff0000, v{X+4*b+i}")
            for i in range(8): o.append(f"v_add_f32 v{tb_+i}, v{tb_+i}, v{mu}")
            for i in range(4): o.append(f"v_cvt_pk_bf16_f32 v{X+4*b+i}, v{tb_+2*i}, v{tb_+2*i+1}")
            for i in range(4): o.append(f"v_accvgpr_write_b32 a{(t*16+b)*4+i}, v{X+4*b+i}")
        return o
    def interleave(main, sides):
        n = len(main)
        ins = {}
        for f0, f1, items in sides:
            for k, it in enumerate(items or []):
                p = int(n*(f0 + (f1-f0)*(k+0.5)/len(items)))
                ins.setdefault(p, []).extend(it)
        for i, x in enumerate(main):
            for y in ins.get(i, []): A(y)
            A(x)
    w03 = [it for n in range(4) for it in gw_slot(n)]
    if XORD:
        for x in x_read(0, 0): A(x)
        r23 = x_round(2) + x_round(3)
        for it in r23[:4]:
            for x in it: A(x)
        A("s_waitcnt lgkmcnt(0)")
        for k, it in enumerate(sumx(0)):
            for x in it: A(x)
            if k < 12:
                for x in r23[4+k]: A(x)
        interleave(ln_stream(0), [(0.01, 0.25, x_round(4)), (0.40, 0.41, [x_read(1, 8)]), (0.55, 0.56, [["s_waitcnt lgkmcnt(0)", "s_barrier"]]), (0.57, 0.8, x_round(5) + x_round(6)), (0.8, 0.99, w03), (0.6, 0.92, sumx(1))])
    else:
        for x in x_read(0, 16): A(x)
        A("s_waitcnt lgkmcnt(0)")
        r4 = x_round(4)
        for k, it in enumerate(sumx(0)):
            for x in it: A(x)
            if k % 2 == 0:
                for x in r4[k//2]: A(x)
        for x in x_read(1, 8): A(x)
        interleave(ln_stream(0), [(0.10, 0.11, [["s_waitcnt lgkmcnt(0)", "s_barrier"]]), (0.12, 0.45 if not XSP else 0.95, x_round(5) + x_round(6)), (0.45, 0.98, w03 if not XSP else []), (0.5, 0.9, sumx(1))])
    w46 = [it for n in range(4, 7) for it in gw_slot(n)]
    if XSP:
        for x in x_read(2, 8): A(x)
        interleave(ln_stream(1), [(0.05, 0.45, gram(0)), (0.15, 0.16, [["s_waitcnt lgkmcnt(0)"]]), (0.17, 0.5, x_round(7)), (0.5, 0.98, w03[:8]), (0.5, 0.9, sumx(2))])
        for x in x_read(3, 8): A(x)
        interleave(ln_stream(2), [(0.05, 0.45, gram(1)), (0.02, 0.6, w03[8:]), (0.15, 0.16, [["s_waitcnt lgkmcnt(0)"]]), (0.62, 0.63, [["s_barrier"]]), (0.65, 0.98, w46[:4]), (0.5, 0.9, sumx(3))])
        w46 = w46[4:]
    else:
        for x in x_read(2, 24): A(x)
        interleave(ln_stream(1), [(0.05, 0.45, gram(0)), (0.15, 0.16, [["s_waitcnt lgkmcnt(0)"]]), (0.17, 0.4, x_round(7)), (0.5, 0.9, sumx(2))])
        for x in x_read(3, 0): A(x)
        interleave(ln_stream(2), [(0.05, 0.45, gram(1)), (0.15, 0.16, [["s_waitcnt lgkmcnt(0)", "s_barrier"]]), (0.17, 0.7, w46), (0.5, 0.9, sumx(3))])
        w46 = []
    xcst = [[f"buffer_store_dwordx4 {ar(b*4,4)}, v{VLN}, s[{S_XC}:{S_XC+3}], s{sXQ+b//4} offen offset:{(b%4)*1024} sc1"] for b in range(16)]
    interleave(ln_stream(3), [(0.05, 0.45, gram(2)), (0.05, 0.8, w46)])
    A("s_nop 1")
    for it in gram(3):
        for x in it: A(x)
    def extract(t):
        g = GR + 4*t; D, D2 = L, L+1
        A(f"v_cndmask_b32 v{D}, 0, v{g}, s[{sMK}:{sMK+1}]")
        for i in range(1, 4): A(f"v_cndmask_b32 v{D}, v{D}, v{g+i}, s[{sMK+2*i}:{sMK+2*i+1}]")
        A(f"v_mov_b32 v{D2}, v{D}\ns_nop 1\nv_permlane16_swap_b32 v{D}, v{D2}\nv_add_f32 v{D}, v{D}, v{D2}")
        A(f"v_mov_b32 v{D2}, v{D}\ns_nop 1\nv_permlane32_swap_b32 v{D}, v{D2}\nv_add_f32 v{D}, v{D}, v{D2}")
        A(f"v_mov_b32 v{D2}, {hex(f32bits(1e-5))}\nv_fmac_f32 v{D2}, {hex(f32bits(1.0/512))}, v{D}")
        A(f"v_rsq_f32 v{RSTD+t}, v{D2}")
    for t in range(4): extract(t)
    A(f"v_mul_f32 v{MU}, {hex(f32bits(CSCALE))}, v{RSTD}\nv_and_b32 v{SUM}, 15, v0\nv_lshlrev_b32 v{SUM}, 2, v{SUM}")
    A("s_branch K1_START2_G")

    def epilogue_ops(ty, acc, store_flags=store_flags):
        ops = []
        blk = lambda nb, t: acc + (nb*4 + t)*4
        oq = 0
        def store(q, vo, off, so=sOB): return f"buffer_store_dwordx4 {vr(OUT+4*q,4)}, v{vo}, s[{S_OUT}:{S_OUT+3}], s{so} offen offset:{off}{store_flags}"
        if ty in 'QK':
            for pr in range(2):
                for t in range(4):
                    for h in range(2):
                        b = blk(2*pr+h, t)
                        if ty == 'Q':
                            for i in range(4): ops.append(f"v_mul_f32 v{b+i}, v{b+i}, v{SC+t}")
                        ops.append(f"v_cvt_pk_bf16_f32 v{OUT+4*oq+2*h}, v{b}, v{b+1}")
                        ops.append(f"v_cvt_pk_bf16_f32 v{OUT+4*oq+2*h+1}, v{b+2}, v{b+3}")
                    ops.append(store(oq, VO+t, pr*1024) if ty == 'K' else store(oq, VO+t, 0, sOB2 if pr else sOB)); oq = (oq+1) % 3
        elif ty == 'V':
            for nb in range(4):
                for v in range(2):
                    for h in range(2):
                        b = blk(nb, 2*v+h)
                        ops.append(f"v_cvt_pk_bf16_f32 v{OUT+4*oq+2*h}, v{b}, v{b+1}")
                        ops.append(f"v_cvt_pk_bf16_f32 v{OUT+4*oq+2*h+1}, v{b+2}, v{b+3}")
                    ops.append(store(oq, VO+v, nb*1024)); oq = (oq+1) % 3
        else:
            for t in range(4):
                for h in range(2):
                    g = blk(h, t); u = blk(h+2, t)
                    for i in range(4): ops.append(f"v_max_f32 v{g+i}, 0, v{g+i}")
                    for i in range(4): ops.append(f"v_mul_f32 v{u+i}, v{u+i}, v{SC+t}")
                    for i in range(4): ops.append(f"v_mul_f32 v{g+i}, v{g+i}, v{u+i}")
                    ops.append(f"v_cvt_pk_bf16_f32 v{OUT+4*oq+2*h}, v{g}, v{g+1}")
                    ops.append(f"v_cvt_pk_bf16_f32 v{OUT+4*oq+2*h+1}, v{g+2}, v{g+3}")
                ops.append(store(oq, VO+t, 0)); oq = (oq+1) % 3
        return ops

    def ob_calc(ty, su_reg_delta):
        o = [f"s_add_u32 s{sT1}, s{sSU}, {su_reg_delta}"] if su_reg_delta >= 0 else [f"s_sub_u32 s{sT1}, s{sSU}, {-su_reg_delta}"]
        if ty in 'GQ':
            o += [f"s_lshl_b32 s{sT1}, s{sT1}, {12 if ty == 'G' else 13}", f"s_add_u32 s{sOB}, s{sOBASE}, s{sT1}"]
            if ty == 'Q': o.append(f"s_add_u32 s{sOB2}, s{sOB}, 4096")
        else:
            hs = 19 if ty == 'Q' else 20
            ls = 12 if ty == 'V' else 11
            o += [f"s_lshr_b32 s{sOB}, s{sT1}, 1", f"s_lshl_b32 s{sOB}, s{sOB}, {hs}", f"s_and_b32 s{sT1}, s{sT1}, 1", f"s_lshl_b32 s{sT1}, s{sT1}, {ls}",
                  f"s_add_u32 s{sOB}, s{sOB}, s{sT1}", f"s_add_u32 s{sOB}, s{sOB}, s{sOBASE}"]
        return o

    def trreads(fi, nb, slot_in_half, ks):
        off = slot_in_half*16384 + ks*4096
        return [f"ds_read_b64_tr_b16 {vr(WF+4*fi,2)}, v{TRA+2*nb} offset:{off}",
                f"ds_read_b64_tr_b16 {vr(WF+4*fi+2,2)}, v{TRA+2*nb+1} offset:{off}"]

    CB = [32768, 65536, 98304, 131072, 98304, 131072, 98304, 131072] if B4 else [98304 + (r % 2)*32768 for r in range(8)]
    def c_round(r):
        return [[f"s_add_u32 m0, s{sSTG}, {CB[r] + j*1024}", f"s_add_u32 s{sT0}, s{sRQ+r//2}, {j*8192 + (r%2)*128}",
                 f"buffer_load_dwordx4 v{T+(j&1)}, s[{S_ACT}:{S_ACT+3}], s{sT0} offen lds"] for j in range(8)]
    def c_reads(r):
        base, o = (T+2, CB[r] - 98304) if CB[r] >= 98304 else (T+4, CB[r] - 32768)
        return [f"ds_read_b128 {ar((t*16+2*r+k2)*4, 4)}, v{base+k2} offset:{o + t*2048}" for t in range(4) for k2 in range(2)]

    def body(ty, par, first=False, vms=None, A=A):
        acc = ACC[par]; old = ACC[1-par]
        cs, ss, _ = dma_consts(ty)
        gaps = {}
        def G(q, m): return gaps.setdefault((q, m), {'mem': [], 'other': []})
        def room(q, m):
            g = G(q, m); return 2 - len(g['mem']) - len(g['other'])
        prew = {}
        CH = CHAIN and not first
        if CH:
            for q in range(4):
                for nb in range(4): G(q, nb*16 + 11)['other'].append("s_waitcnt lgkmcnt(0)")
        elif LGK:
            for q in range(4):
                for grp in range(1, 16, 2): G(q, grp*4 + 2)['other'].append(f"s_waitcnt lgkmcnt({6 if (CHAIN and q == 3 and grp == 15) else 10})")
        if not first:
            epi = epilogue_ops(ty, old)
            if ty == 'G' and par == 1:
                ex = [x[0] for x in xcst] + [f"buffer_store_dword v{MU}, v{SUM}, s[{S_XC}:{S_XC+3}], s{sSCQ} offen sc1", f"s_cmp_lg_u32 s{S_XC+2}, 0\ns_cselect_b32 s{sXS}, 1, s{sXS}\ns_mov_b32 s{S_XC+2}, 0"]
                e2 = []
                for k, x in enumerate(epi):
                    e2.append(x)
                    if k % 4 == 3 and ex: e2.append(ex.pop(0))
                epi = e2 + ex
            for q in range(4):
                G(q, 0)['other'] += [f"s_waitcnt vmcnt({vms[q]})", "s_barrier"]
                if ty == 'G' and par == 0 and q == 3: G(q, 1)['other'] += [f"s_cmp_eq_u32 s{sXS}, 1\ns_cbranch_scc1 K1_XSIG\nK1_XSIG_B:"]
                tgt = (4*par + q + 7) % 8
                trip = dma_slot(ty, 1 if q == 0 else 2, (q+3) % 4, tgt)
                if q == 1:
                    G(q, 1)['other'] += [f"s_add_u32 s{sT1}, s{sSU}, 2", f"s_cmp_ge_u32 s{sT1}, s{sEND2}"]
                    G(q, 2)['other'] += [f"s_cselect_b32 s{S_WA+2}, 0, s{S_WA+2}", f"s_cselect_b32 s{S_WB+2}, 0, s{S_WB+2}"]
                for j, tr in enumerate(trip):
                    m = (8 + 12*j + 1) if not CH else (8, 20, 32, 40)[j] + 1
                    G(q, m)['other'] += tr[:2]
                    G(q, m+1)['mem'] += [tr[2]]
            oc = ob_calc(ty, -1)
            pos = [(0,1),(0,2),(0,4),(0,5)]
            k = 0
            for p in pos:
                while room(*p) > 0 and k < len(oc): G(*p)['other'].append(oc[k]); k += 1
            assert k == len(oc)
        for nb in range(4):
            m = (16 + 4*nb + 4) if not CH else (4, 5, 16, 35)[nb]
            G(3, m)['other'] += [f"v_xor_b32 v{TRA+2*nb}, 0x10000, v{TRA+2*nb}", f"v_xor_b32 v{TRA+2*nb+1}, 0x10000, v{TRA+2*nb+1}"]
        if not first:
            slots = [(q, m) for q in range(4) for m in range(64) if (m % 4 != 3 if not CH else m % 16 < 12) and (q, m) >= (0, 6)]
            cap = [(s_, room(*s_)) for s_ in slots]
            tot = sum(c for _, c in cap)
            step = max(1.0, 0.8*tot/len(epi))
            flat = [s_ for s_, c in cap for _ in range(c)]
            idx = 0.0
            for op in epi:
                s_ = flat[int(idx)]
                if op.startswith('buffer_store'):
                    i2 = int(idx)
                    while True:
                        s_ = flat[i2]
                        g = G(*s_)
                        if not g['mem'] and not g['other']: break
                        i2 += 1
                    idx = max(idx, i2)
                    G(*s_)['mem'].append(op)
                else:
                    G(*s_)['other'].append(op)
                idx += step
        else:
            seq = ['R0']*8 + ['W0']*4 + ['R1']*8 + ['W1']*4
            def vm(tag): return len(seq) - 1 - max(i for i, e in enumerate(seq) if e == tag)
            def put_triples(q, m0, trips, tag):
                m = m0
                for tr in trips:
                    G(q, m)['other'] += tr[:2]
                    m2 = m + 1 if (m + 1) % 4 != 3 else m + 2
                    G(q, m2)['mem'].append(tr[2]); seq.append(tag)
                    m = m2
                    if len(G(q, m)['other']) >= 1 or True:
                        pass
                return m
            if B4:
                seq += ['R2']*8 + ['R3']*8
                def nxt(m): return m + 1 if (m + 1) % 4 != 3 else m + 2
                def put_reads(q, mm, r):
                    prew.setdefault((q, mm), []).append(f"s_waitcnt vmcnt({vm(f'R{r}')})")
                    rds = c_reads(r)
                    for k in range(4):
                        G(q, mm)['mem'] += rds[2*k:2*k+2]; mm = nxt(mm)
                    return mm
                W = lambda n: dma_slot(ty, n//4, n % 4, n % 8)
                for h in range(8):
                    q = h // 2; base = 32*(h % 2)
                    if h in (1, 3, 5): prew[(q, base)] = ["s_waitcnt lgkmcnt(2)"]
                    if h % 2 == 1: G(q, base)['other'] += [f"s_waitcnt vmcnt({vm(f'W{q+1}')})", "s_barrier"]
                    m = base + 1
                    if h == 0:
                        put_reads(q, 8, 1); put_reads(q, 16, 2); put_reads(q, 24, 3)
                    if h == 1:
                        m = put_triples(q, m, c_round(4), 'R4'); m = put_triples(q, m, W(2), 'W2'); m = put_triples(q, m, c_round(5), 'R5')
                    if h == 2:
                        for n in (3, 4, 5): m = put_triples(q, m, W(n), f'W{n}')
                        put_reads(q, base+18, 4); put_reads(q, base+24, 5)
                    if h == 3:
                        m = put_triples(q, m, c_round(6), 'R6'); m = put_triples(q, m, c_round(7), 'R7')
                    if h == 4:
                        put_reads(q, base+18, 6); put_reads(q, base+24, 7)
                    if h == 5:
                        for n in (6, 7): m = put_triples(q, m, W(n), f'W{n}')
                    if h == 6:
                        for n in (8, 9): m = put_triples(q, m, W(n), f'W{n}')
                    if h == 7: m = put_triples(q, m, W(10), 'W10')
                    assert m < base + 31 and (h != 2 or m < base + 18), (h, m)
            else:
                for h in range(8):
                    q = h // 2; base = 32*(h % 2)
                    if h >= 1: prew[(q, base)] = ["s_waitcnt lgkmcnt(2)"]
                    need = None
                    if h == 1: need = 'W1'
                    elif h in (2, 4, 6): need = f'W{q+1}'
                    if need: G(q, base)['other'] += [f"s_waitcnt vmcnt({vm(need)})", "s_barrier"]
                    if h == 7: G(q, base)['other'] += ["s_barrier"]
                    if HST and h in (2, 4, 6): G(q, base)['other'].append(f"s_memrealtime s[{64+2*(2+h//2)}:{65+2*(2+h//2)}]")
                    m = base + 1
                    if h + 2 <= 7: m = put_triples(q, m, c_round(h+2), f'R{h+2}')
                    if WEARLY:
                        if h <= 1:
                            for n in (2*h+2, 2*h+3): m = put_triples(q, m, dma_slot(ty, n//4, n % 4, n), f'W{n}')
                    elif h <= 3: m = put_triples(q, m, dma_slot(ty, (h+2)//4, (h+2) % 4, h+2), f'W{h+2}')
                    if h == 7:
                        for n in range(6, 11): m = put_triples(q, m, dma_slot(ty, n//4, n % 4, n % 8), f'W{n}')
                        assert m <= 60, m
                    if h == 4 and KV_TOUCH:
                        to = touch_ops(ty)
                        for k, x in enumerate(to):
                            if x.startswith('buffer'): seq.append('T')
                            G(q, base + 16 + (k//4)*1 + (1 if (base+16+(k//4)) % 4 == 3 else 0))['other'].append(x)
                    if h + 1 <= 7:
                        mm = base + 24
                        prew[(q, mm)] = [f"s_waitcnt vmcnt({vm(f'R{h+1}')})"]
                        rds = c_reads(h+1)
                        for k, p in enumerate((mm, mm+1, mm+2, mm+4)):
                            G(q, p)['mem'] += rds[2*k:2*k+2]
        E4 = 4 if CH else 0
        if ty == 'V':
            G(3, 56-E4)['other'] += [f"s_add_u32 s{sT1}, s{sSU}, 3", f"s_cmp_eq_u32 s{sT1}, s{sEND}", f"s_cselect_b32 s{sIA}, s{sHD}, {cs}"]
            G(3, 57-E4)['other'] += [f"s_add_u32 s{sT1}, s{sSU}, 2", f"s_cmp_eq_u32 s{sT1}, s{sEND}", f"s_cselect_b32 s{sIB}, s{sHD}, {cs}"]
            ia, ib = f"s{sIA}", f"s{sIB}"
        else: ia = ib = f"{cs}"
        G(3, 60-E4+CH)['other'] += [f"s_add_u32 s{sDQ}, s{sDQ}, {ia}", f"s_add_u32 s{sDQ+1}, s{sDQ+1}, {ia}"]
        G(3, 61-E4+CH)['other'] += [f"s_add_u32 s{sDQ+2}, s{sDQ+2}, {ia}", f"s_add_u32 s{sDQ+3}, s{sDQ+3}, {ib}", f"s_add_u32 s{sSU}, s{sSU}, 1"]
        G(3, 62-E4+CH)['other'] += [f"s_mov_b32 s{S_OUT+2}, {0 if NOST else WS_USED}", f"s_cmp_ge_u32 s{sSU}, s{sEND}"]
        for q in range(4):
            for m in range(64):
                if CH: nb, t, ks = m // 16, (m // 4) % 4, m % 4; fi = (nb % 2)*4 + ks
                else: ks, nb, t = m // 16, (m // 4) % 4, m % 4; fi = (ks % 2)*4 + nb
                if not CH and m % 8 == 0 and not LGK: A("s_waitcnt lgkmcnt(12)")
                for x in prew.get((q, m), []): A(x)
                d = acc + (nb*4+t)*4
                kk = q*4 + ks
                c = "0" if kk == 0 else vr(d, 4)
                w = vr(WF+4*fi, 4); a = ar((t*16+kk)*4, 4)
                A(f"{MF} {vr(d,4)}, {a}, {w}, {c}" if ty == 'V' else f"{MF} {vr(d,4)}, {w}, {a}, {c}")
                if t == 3:
                    if CH: rd = trreads(fi, nb+2, q, ks) if nb < 2 else trreads(fi, nb-2, (q+1) % 4, ks)
                    elif ks < 2: rd = trreads(fi, nb, q, ks+2)
                    elif CHAIN and q == 3: rd = trreads(fi, fi // 4, 0, fi % 4)
                    else: rd = trreads(fi, nb, (q+1) % 4, ks-2)
                    for x in rd: A(x)
                g = G(q, m)
                for x in g['mem']: A(x)
                for x in g['other']: A(x)

    def vm_table(ty):
        tmp = Asm(); body(ty, 0, vms=[0]*4, A=tmp)
        pat = []; q = -1
        for l in tmp.lines:
            if l == 's_barrier': q += 1; pat.append(('bar', q))
            elif l.startswith('buffer_load'): pat.append(('dma', q))
            elif l.startswith('buffer_store'): pat.append(('st', q))
        if ty in 'KV': seq = [5]*4 + [n for n in range(6, 11) for _ in range(4)]; c0 = 1
        else: seq = [n for n in range(4, 7) for _ in range(4)]; c0 = 0
        tab = {}
        for c in range(c0, 8):
            tab[c] = [0]*4
            for kind, q in pat:
                if kind == 'bar':
                    need = 4*c + q + 1
                    idx = [i for i, e in enumerate(seq) if e == need]
                    tab[c][q] = min(63, len(seq) - 1 - max(idx)) if idx else 63
                    if not EXACT: tab[c][q] = 20
                elif kind == 'dma': seq.append(4*c + q + 7)
                else: seq.append('s')
        return tab

    for ty in 'KVG':
        VN = vm_table(ty)
        if ty in 'KV':
            A.label(f"K1_PRO_{ty}")
            if ACT_TOUCH: act_touch()
            A(f"v_lshrrev_b32 v4, 3, v0\nv_and_b32 v5, 7, v0\nv_lshrrev_b32 v6, 4, v0\nv_xor_b32 v5, v5, v6")
            A(f"v_lshlrev_b32 v4, 10, v4\nv_lshl_add_u32 v{T}, v5, 4, v4\nv_xor_b32 v{T+1}, 64, v{T}")
            for it in c_round(0) + dma_slot(ty, 0, 0, 0) + c_round(1) + dma_slot(ty, 0, 1, 1) + (c_round(2) + c_round(3) if B4 else []):
                for x in it: A(x)
            A(f"v_and_b32 v4, 15, v0\nv_lshrrev_b32 v5, 1, v4\nv_xor_b32 v5, v5, v1\nv_lshlrev_b32 v4, 7, v4\nv_lshl_add_u32 v4, v5, 4, v4")
            A(f"s_add_u32 s{sT1}, s{sSTG}, 98304\nv_add_u32 v{T+2}, s{sT1}, v4\nv_xor_b32 v{T+3}, 64, v{T+2}\nv_subrev_u32 v{T+4}, 0x10000, v{T+2}\nv_subrev_u32 v{T+5}, 0x10000, v{T+3}")
            A(f"s_waitcnt vmcnt({28 if B4 else 12})\ns_barrier")
            for x in c_reads(0): A(x)
            for ks in range(2):
                for nb in range(4):
                    for x in trreads(ks*4+nb, nb, 0, ks): A(x)
            A("s_waitcnt lgkmcnt(12)")
            body(ty, 0, first=True)
            body(ty, 1, vms=VN[1])
            if CODE_TOUCH2: code_touch(A, "K1_FIN", "K2_END", sW, 0, DUM+1, 80)
            if WQ_TOUCH:
                A(f"s_mov_b32 s4, s{P_WQ}\ns_mov_b32 s5, s{P_WQ+1}\ns_mov_b32 s6, {512*8192}\ns_mov_b32 s7, 0x00020000")
                A(f"s_sub_u32 s{sT1}, s{sCG}, {11 if PART == 'A' else 10}\ns_lshl_b32 s{sT1}, s{sT1}, 3\ns_add_u32 s{sT1}, s{sT1}, s{sTB}\ns_mul_i32 s{sT1}, s{sT1}, {196*128}\ns_min_u32 s{sT0}, s{sW}, 3\ns_lshl_b32 s{sT0}, s{sT0}, 13\ns_add_u32 s{sT1}, s{sT1}, s{sT0}")
                A(f"v_lshlrev_b32 v4, 7, v0\nbuffer_load_dword v{DUM}, v4, s[4:7], s{sT1} offen")
            A(f"s_branch K1_LOOP_{ty}")
        else:
            A.label(f"K1_START2_{ty}")
            if W_TOUCH:
                for x in touch_ops(ty): A(x)
            if ty == 'Q':
                for t in range(4): A(f"v_mul_f32 v{SC+t}, {hex(f32bits(CSCALE))}, v{RSTD+t}")
            if ty == 'G':
                for t in range(4): A(f"v_mul_f32 v{SC+t}, v{RSTD+t}, v{RSTD+t}")
            A(f"s_waitcnt vmcnt({14 if W_TOUCH else 12})\ns_barrier")
            for fi in range(8):
                for x in (trreads(fi, fi // 4, 0, fi % 4) if CHAIN else trreads(fi, fi % 4, 0, fi // 4)): A(x)
            A(f"s_waitcnt lgkmcnt({8 if CHAIN else 12})")
        A(".p2align 6")
        A.label(f"K1_LOOP_{ty}")
        c0 = 2 if ty in 'KV' else 0
        v0_ = [min(VN[c][q] for c in range(c0, 8, 2)) for q in range(4)]
        if ty == 'G':
            t1 = Asm(); body(ty, 1, vms=[0]*4, A=t1); t0 = Asm(); body(ty, 0, vms=[0]*4, A=t0)
            vm1 = [l for l in t1.lines if l.startswith('buffer')]
            last = max(i for i, l in enumerate(vm1) if f"s[{S_XC}:{S_XC+3}]" in l)
            nb_ = [i for i, l in enumerate(t0.lines) if l == 's_barrier'][3]
            cnt = len(vm1) - 1 - last + sum(1 for l in t0.lines[:nb_] if l.startswith('buffer'))
            v0_[3] = min(v0_[3], cnt); print("XC signal wait", cnt, v0_)
        body(ty, 0, vms=v0_)
        A(f"s_cbranch_scc1 K1_DRAIN0_{ty}")
        body(ty, 1, vms=[min(VN[c][q] for c in range(c0+1, 8, 2)) for q in range(4)])
        A(f"s_cbranch_scc0 K1_LOOP_{ty}")
        for par in (1, 0):
            A.label(f"K1_DRAIN{par}_{ty}")
            if ty == 'V' and par == 1: A(f"s_cmp_lg_u32 s{sEND}, s{sEND2}\ns_cbranch_scc1 K1_HALF_V")
            A(f"s_mov_b32 s80, s78\ns_mov_b32 s81, s79\ns_mov_b32 s82, 256\ns_mov_b32 s83, 0x00020000\nv_and_b32 v{DUM}, 7, v0\nv_lshlrev_b32 v{DUM}, 2, v{DUM}\nbuffer_load_dword v{DUM+1}, v{DUM}, s[80:83], 0 offen offset:128 sc1")
            for x in ob_calc(ty, -1): A(x)
            A("s_nop 1")
            if WBL2: A(f"s_cmp_lg_u32 s{sW}, 0\ns_cbranch_scc1 K1_NOWB{par}_{ty}\nbuffer_wbl2 sc1\nK1_NOWB{par}_{ty}:")
            for x in epilogue_ops(ty, ACC[par], (' ' + SFD) if SFD else ''): A(x)
            A(f"s_waitcnt vmcnt({4 if ty == 'G' else 8}) lgkmcnt(0)\ns_branch K1_FIN")
    A.label("K1_XSIG")
    A(f"s_mov_b32 s{sXS}, 0\ns_cmp_lg_u32 s{sW}, 0\ns_cbranch_scc1 K1_XSIG_B")
    A(f"s_mov_b32 s80, s78\ns_mov_b32 s81, s79\ns_mov_b32 s82, 256\ns_mov_b32 s83, 0x00020000\ns_lshl_b32 s{sT1}, s{sTB}, 2\nv_mov_b32 v{DUM}, s{sT1}\nv_mov_b32 v{DUM+1}, 1")
    A(f"s_mov_b64 exec, 1\nbuffer_atomic_add v{DUM+1}, v{DUM}, s[80:83], 0 offen offset:128 sc1\ns_mov_b64 exec, -1\ns_branch K1_XSIG_B")
    A.label("K1_HALF_V")
    epi = ob_calc('V', -1) + epilogue_ops('V', ACC[1])
    A("s_waitcnt vmcnt(12)")
    k = 0
    if CHAIN:
        for q in range(4):
            for m in range(32):
                nb, t, ks = m // 16, (m // 4) % 4, m % 4; fi = nb*4 + ks
                d = ACC[0] + (nb*4+t)*4; kk = q*4 + ks
                A(f"{MF} {vr(d,4)}, {ar((t*16+kk)*4,4)}, {vr(WF+4*fi,4)}, {'0' if kk == 0 else vr(d,4)}")
                if q == 0 and m == 0: A("s_barrier")
                if t == 3:
                    if q < 3:
                        for x in trreads(fi, nb, q+1, ks): A(x)
                elif m % 16 == 11: A("s_waitcnt lgkmcnt(0)")
                elif (q, m) >= (0, 8) and k < len(epi):
                    A(epi[k]); k += 1
    else:
        for q in range(4):
            for ks in range(4):
                A("s_waitcnt lgkmcnt(4)")
                for nb in range(2):
                    fi = (ks % 2)*4 + nb
                    for t in range(4):
                        d = ACC[0] + (nb*4+t)*4; kk = q*4 + ks
                        A(f"{MF} {vr(d,4)}, {ar((t*16+kk)*4,4)}, {vr(WF+4*fi,4)}, {'0' if kk == 0 else vr(d,4)}")
                        if kk == 0 and nb == 0 and t == 0: A("s_barrier")
                        if t == 3 and kk < 14:
                            for x in (trreads(fi, nb, q, ks+2) if ks < 2 else trreads(fi, nb, q+1, ks-2)): A(x)
                        elif t < 3 and kk >= 1 and k < len(epi):
                            A(epi[k]); k += 1
    assert k == len(epi), (k, len(epi))
    A(f"s_mov_b32 s80, s78\ns_mov_b32 s81, s79\ns_mov_b32 s82, 256\ns_mov_b32 s83, 0x00020000\nv_and_b32 v{DUM}, 7, v0\nv_lshlrev_b32 v{DUM}, 2, v{DUM}\nbuffer_load_dword v{DUM+1}, v{DUM}, s[80:83], 0 offen offset:128 sc1")
    A(f"s_add_u32 s{sOB}, s{sOBH}, s{sOBASE}\ns_nop 4")
    for x in epilogue_ops('V', ACC[0])[:20]: A(x)
    A("s_waitcnt vmcnt(4) lgkmcnt(0)")
    A.label("K1_FIN")
    stamp(A, 1)
    return dict(sW=sW, XP=DUM+1, XO=DUM)
```

```python
from asmlib import *
import asmlib
import math

import os
ACT_TOUCH = os.environ.get('ACT_TOUCH', '0') == '1'
W_TOUCH = os.environ.get('W_TOUCH', '0') == '1'
XFIRST = os.environ.get('XFIRST', '1') == '1'
KV_TOUCH = os.environ.get('KV_TOUCH', '0') == '1'
NOST = os.environ.get('NOST', '0') == '1'
SFD = os.environ.get('SFD', 'sc1')
WBL2 = os.environ.get('WBL2', '0') == '1'
HST = os.environ.get('HST', '0') == '1'
WEARLY = os.environ.get('WEARLY', '0') == '1'
WQ_TOUCH = os.environ.get('WQ_TOUCH', '1') == '1'
CODE_TOUCH = os.environ.get('CODE_TOUCH', '1') == '1'
CODE_TOUCH2 = os.environ.get('CODE_TOUCH2', '1') == '1'
XSP = os.environ.get('XSP', '1') == '1'
PART = os.environ.get('PART', 'A')
B4 = os.environ.get('B4', '0') == '1'
MAP48 = os.environ.get('MAP48', '1') == '1'
CHAIN = os.environ.get('CHAIN', '1') == '1'
XORD = os.environ.get('XORD', '0') == '1'
LGK = os.environ.get('LGK', '1') == '1'
EXACT = os.environ.get('EXACT', '1') == '1'
ROT = os.environ.get('ROT', '1') == '1'
WS_OFF = int(os.environ.get('WS_OFF', '0')) << 20
KV_BASE = WS_OFF + (1 << 20)
A3_BASE = WS_OFF + (33 << 20)
A3_TB64 = 171 * 4096
XC_BASE = WS_OFF + (56 << 20)
SCQ_BASE = WS_OFF + (58 << 20)
WS_USED = WS_OFF + (59 << 20)
MF = "v_mfma_f32_16x16x32_bf16"
CSCALE = math.log2(math.e) / math.sqrt(128.0)

def f32bits(x):
    import struct
    return struct.unpack('<I', struct.pack('<f', x))[0]

def gen_k1(A, store_flags=""):
    ACC = [8, 72]; WF = 136; TRA = 168; VW = 176; VO = 178; OUT = 184; SC = 196; RSTD = 200; T = 204; GR = 216; SUM = 232; ONESV = 240; MU = 244; DUM = 245; VLN = 247
    S_ACT, S_WA, S_WB, S_OUT = 8, 12, 16, 20
    sW, sTB, sCG, sSU, sEND, sDMA, sOB, sM0, sT0, sT1, sTYPE, sJOB2, sOBASE = 24, 25, 26, 27, 28, 29, 30, 31, 32, 33, 34, 35, 36
    sONES, sSLO, sSHI = 37, 38, 39
    P_X, P_CKV, P_WQ, P_WUK, P_WUV, P_WG, P_WU, P_WS = 40, 42, 44, 46, 48, 50, 52, 54
    sSTG = 56
    sROW = 57
    sEX2, sEX, sMK, sDQ, sROT, sOB2 = 58, 84, 88, 96, 62, 63
    S_XC = 4; sXQ = 44; sSCQ = 48; sEND2 = sJOB2; sHD = 100; sOBH = 101; sIA = 38; sIB = 39
    sRQ = sEX; sXR = 40

    A(".globl k1_kernel\n.p2align 8\n.type k1_kernel,@function")
    A.label("k1_kernel")
    A("s_cmp_ge_u32 s2, 256\ns_cbranch_scc1 K1_END")
    stamp(A, 0)
    A(f"s_load_dwordx4 s[{P_X}:{P_X+3}], s[0:1], 0")
    A(f"s_load_dwordx4 s[{P_WQ}:{P_WQ+3}], s[0:1], 16")
    A(f"s_load_dwordx2 s[{P_WUV}:{P_WUV+1}], s[0:1], 32")
    A(f"s_load_dwordx2 s[{P_WG}:{P_WG+1}], s[0:1], 56")
    A(f"s_load_dwordx2 s[{P_WU}:{P_WU+1}], s[0:1], 64")
    A(f"s_load_dwordx2 s[{P_WS}:{P_WS+1}], s[0:1], 96")
    A(f"v_lshrrev_b32 v1, 6, v0\nv_and_b32 v0, 63, v0\ns_nop 0\nv_readfirstlane_b32 s{sW}, v1")
    if MAP48:
        A(f"s_and_b32 s{sT0}, s2, 1\ns_lshl_b32 s{sT0}, s{sT0}, 2\ns_lshr_b32 s{sT1}, s2, 3\ns_and_b32 s{sTB}, s{sT1}, 3\ns_add_u32 s{sTB}, s{sTB}, s{sT0}")
        A(f"s_lshr_b32 s{sT1}, s{sT1}, 2\ns_and_b32 s{sT0}, s2, 6\ns_lshl_b32 s{sCG}, s{sT0}, 2\ns_add_u32 s{sCG}, s{sCG}, s{sT1}")
    else:
        A(f"s_and_b32 s{sT0}, s2, 7\ns_lshr_b32 s{sT1}, s2, 3\ns_and_b32 s{sTB}, s{sT1}, 7\ns_lshr_b32 s{sT1}, s{sT1}, 3")
        A(f"s_lshl_b32 s{sCG}, s{sT0}, 2\ns_add_u32 s{sCG}, s{sCG}, s{sT1}")
    A(f"s_mov_b32 s{sONES}, 0x3f803f80\ns_mov_b32 s{sSLO}, 0x00003f80\ns_mov_b32 s{sSHI}, 0x3f800000")
    A(f"s_lshl_b32 s{sSTG}, s{sW}, 13")
    A(f"s_lshl_b32 s{sROW}, s{sTB}, 18\ns_lshl_b32 s{sT0}, s{sW}, 16\ns_add_u32 s{sROW}, s{sROW}, s{sT0}")
    for r in (S_ACT, S_WA, S_WB, S_OUT): A(f"s_mov_b32 s{r+3}, 0x00020000")
    A(f"s_mov_b32 s{S_ACT+2}, 0x200000")
    if CODE_TOUCH: code_touch(A, "k1_kernel", "K1_END", sW, 0, DUM, 80)
    A("s_waitcnt lgkmcnt(0)")
    A(f"s_mov_b32 s{S_OUT}, s{P_WS}\ns_mov_b32 s{S_OUT+1}, s{P_WS+1}\ns_mov_b32 s{S_OUT+2}, 0")
    if PART == 'A':
        A(f"s_cmp_ge_u32 s{sCG}, 11\ns_cbranch_scc1 K1_DISP_C")
        A(f"s_mov_b32 s{S_ACT}, s{P_X}\ns_mov_b32 s{S_ACT+1}, s{P_X+1}")
        A(f"s_lshl_b32 s{sSU}, s{sCG}, 2\ns_add_u32 s{sEND}, s{sSU}, 4\ns_min_u32 s{sEND}, s{sEND}, 43\ns_mov_b32 s{sEND2}, s{sEND}\ns_branch K1_SETUP_G")
        A.label("K1_DISP_C")
        A(f"s_mov_b32 s{S_ACT}, s{P_CKV}\ns_mov_b32 s{S_ACT+1}, s{P_CKV+1}")
        A(f"s_cmp_ge_u32 s{sCG}, 22\ns_cbranch_scc1 K1_DISP_V")
        A(f"s_sub_u32 s{sT1}, s{sCG}, 11\ns_min_u32 s{sT0}, s{sT1}, 9\ns_mul_i32 s{sSU}, s{sT1}, 5\ns_add_u32 s{sSU}, s{sSU}, s{sT0}\ns_cmp_lt_u32 s{sT1}, 9\ns_cselect_b32 s{sT0}, 6, 5\ns_add_u32 s{sEND}, s{sSU}, s{sT0}\ns_mov_b32 s{sEND2}, s{sEND}\ns_branch K1_SETUP_K")
        A.label("K1_DISP_V")
        A(f"s_sub_u32 s{sT1}, s{sCG}, 22\ns_mul_i32 s{sSU}, s{sT1}, 6\ns_add_u32 s{sEND}, s{sSU}, 6\ns_cmp_lt_u32 s{sT1}, 8\ns_cselect_b32 s{sT0}, 1, 0\ns_add_u32 s{sEND2}, s{sEND}, s{sT0}")
        A(f"s_lshl_b32 s{sHD}, s{sT1}, 6\ns_add_u32 s{sHD}, s{sHD}, {61*128}\ns_lshl_b32 s{sT0}, s{sEND}, 7\ns_sub_u32 s{sHD}, s{sHD}, s{sT0}")
        A(f"s_lshl_b32 s{sT0}, s{sT1}, 1\ns_add_u32 s{sT0}, s{sT0}, 240\ns_lshr_b32 s{sOBH}, s{sT0}, 3\ns_lshl_b32 s{sOBH}, s{sOBH}, 20\ns_and_b32 s{sT0}, s{sT0}, 7\ns_lshl_b32 s{sT0}, s{sT0}, 10\ns_add_u32 s{sOBH}, s{sOBH}, s{sT0}\ns_branch K1_SETUP_V")

    else:
        A(f"s_cmp_ge_u32 s{sCG}, 10\ns_cbranch_scc1 K1_DISP_C")
        A(f"s_mov_b32 s{S_ACT}, s{P_X}\ns_mov_b32 s{S_ACT+1}, s{P_X+1}")
        A(f"s_min_u32 s{sT0}, s{sCG}, 3\ns_lshl_b32 s{sSU}, s{sCG}, 2\ns_add_u32 s{sSU}, s{sSU}, s{sT0}\ns_cmp_lt_u32 s{sCG}, 3\ns_cselect_b32 s{sT0}, 5, 4\ns_add_u32 s{sEND}, s{sSU}, s{sT0}\ns_mov_b32 s{sEND2}, s{sEND}\ns_branch K1_SETUP_G")
        A.label("K1_DISP_C")
        A(f"s_mov_b32 s{S_ACT}, s{P_CKV}\ns_mov_b32 s{S_ACT+1}, s{P_CKV+1}\ns_mov_b32 s{sHD}, 128\ns_mov_b32 s{sOBH}, 0")
        A(f"s_cmp_ge_u32 s{sCG}, 21\ns_cselect_b32 s{sT0}, 21, 10\ns_sub_u32 s{sT1}, s{sCG}, s{sT0}")
        A(f"s_min_u32 s{sT0}, s{sT1}, 9\ns_mul_i32 s{sSU}, s{sT1}, 5\ns_add_u32 s{sSU}, s{sSU}, s{sT0}\ns_cmp_lt_u32 s{sT1}, 9\ns_cselect_b32 s{sT0}, 6, 5\ns_add_u32 s{sEND}, s{sSU}, s{sT0}\ns_mov_b32 s{sEND2}, s{sEND}")
        A(f"s_cmp_ge_u32 s{sCG}, 21\ns_cbranch_scc1 K1_SETUP_V\ns_branch K1_SETUP_K")

    def dma_consts(ty):
        if ty == 'G':
            return 64, 128*2752, [(S_WA, 0, 0), (S_WA, 0, 16*2752), (S_WB, 0, 0), (S_WB, 0, 16*2752)]
        return 128, 128*8192, [(S_WA, 0, 0), (S_WA, 1, 8*8192), (S_WA, 0, 16*8192), (S_WA, 1, 24*8192)]

    def dma_slot(ty, su_rel, q, ringslot):
        cs, ss, pieces = dma_consts(ty)
        out = []
        for j, (srd, vi, ex) in enumerate(pieces):
            out.append([f"s_add_u32 m0, s{sM0}, {ringslot*16384 + j*1024}",
                        f"s_add_u32 s{sT0}, s{sDQ+q}, {su_rel*cs + ex}",
                        f"buffer_load_dwordx4 v{VW+vi}, s[{srd}:{srd+3}], s{sT0} offen lds"])
        return out

    def setup(ty):
        A.label(f"K1_SETUP_{ty}")
        ptr = {'Q': P_WQ, 'K': P_WUK, 'V': P_WUV, 'G': P_WG}[ty]
        A(f"s_mov_b32 s{S_WA}, s{ptr}\ns_mov_b32 s{S_WA+1}, s{ptr+1}")
        pb = P_WU if ty == 'G' else ptr
        A(f"s_mov_b32 s{S_WB}, s{pb}\ns_mov_b32 s{S_WB+1}, s{pb+1}")
        wsz = 512*2752 if ty == 'G' else 512*8192
        A(f"s_mov_b32 s{S_WA+2}, {wsz}\ns_mov_b32 s{S_WB+2}, {wsz}")
        A(f"s_mov_b32 s{sTYPE}, {'QKVG'.index(ty)}")
        cs, ss, _ = dma_consts(ty)
        pitch = 2752 if ty == 'G' else 8192
        A(f"s_mul_i32 s{sDMA}, s{sSU}, {cs}\ns_mul_i32 s{sT0}, s{sW}, {32*pitch}\ns_add_u32 s{sDMA}, s{sDMA}, s{sT0}")
        A(f"s_lshl_b32 s{sM0}, s{sW}, 12")
        A(f"s_add_u32 s{sROT}, s{sCG}, s{sTB}\ns_and_b32 s{sROT}, s{sROT}, {3 if ROT else 0}")
        for q in range(4):
            A(f"s_add_u32 s{sT0}, s{sROT}, {q}\ns_and_b32 s{sT0}, s{sT0}, 3\ns_mul_i32 s{sT1}, s{sT0}, {ss}\ns_add_u32 s{sDQ+q}, s{sDMA}, s{sT1}")
            if ty in 'KV': A(f"s_lshl_b32 s{sT0}, s{sT0}, 8\ns_add_u32 s{sRQ+q}, s{sROW}, s{sT0}")
        if ty in 'QG':
            for j, (_, _, ex) in enumerate(dma_consts(ty)[2]): A(f"s_mov_b32 s{sEX+j}, {ex}\ns_mov_b32 s{sEX2+j}, {ex+cs}")
        A("v_lshrrev_b32 v1, 4, v0\nv_bfe_u32 v2, v0, 2, 2\nv_and_b32 v3, 3, v0")
        if ty != 'G':
            A("v_lshrrev_b32 v4, 3, v0\nv_and_b32 v5, 7, v0\nv_bfe_u32 v6, v0, 4, 1\nv_lshlrev_b32 v6, 1, v6\nv_xor_b32 v5, v5, v6")
            A(f"v_lshlrev_b32 v4, 13, v4\nv_lshl_add_u32 v{VW}, v5, 4, v4\nv_xor_b32 v{VW+1}, 64, v{VW}")
            A("v_lshrrev_b32 v4, 1, v2\nv_and_b32 v5, 1, v1\nv_lshl_add_u32 v4, v5, 1, v4")
            A("v_lshl_add_u32 v5, v1, 3, v2\nv_lshlrev_b32 v5, 7, v5\nv_lshl_add_u32 v5, v3, 3, v5")
            for nb in range(4):
                A(f"v_xor_b32 v6, {nb}, v4\nv_lshl_add_u32 v{TRA+2*nb}, v6, 5, v5\nv_add_u32 v{TRA+2*nb+1}, 512, v{TRA+2*nb}")
        else:
            A(f"v_lshrrev_b32 v4, 2, v0\nv_lshrrev_b32 v6, 5, v0\nv_lshlrev_b32 v6, 1, v6\nv_xor_b32 v5, v3, v6")
            A(f"v_mul_u32_u24 v4, 2752, v4\nv_lshl_add_u32 v{VW}, v5, 4, v4\nv_mov_b32 v{VW+1}, v{VW}")
            A("v_and_b32 v4, 1, v1")
            A("v_lshl_add_u32 v5, v1, 3, v2\nv_lshlrev_b32 v5, 6, v5\nv_lshl_add_u32 v5, v3, 3, v5")
            for nb in range(4):
                A(f"v_xor_b32 v6, {nb%2}, v4\nv_lshl_add_u32 v6, v6, 5, v5\nv_add_u32 v{TRA+2*nb}, {(nb//2)*2048}, v6\nv_add_u32 v{TRA+2*nb+1}, 256, v{TRA+2*nb}")
        A("v_lshlrev_b32 v4, 4, v0")
        if ty == 'Q':
            for t in range(4): A(f"s_add_u32 s{sT0}, s{sCG}, {t}\ns_and_b32 s{sT0}, s{sT0}, {3 if ROT else 0}\ns_lshl_b32 s{sT0}, s{sT0}, 10\nv_add_u32 v{VO+t}, s{sT0}, v4" if ROT else f"v_add_u32 v{VO+t}, {t*1024}, v4")
            A(f"s_lshl_b32 s{sT0}, s{sTB}, 2\ns_add_u32 s{sT0}, s{sT0}, s{sW}\ns_mul_i32 s{sOBASE}, s{sT0}, {A3_TB64}\ns_add_u32 s{sOBASE}, s{sOBASE}, {A3_BASE}")
        elif ty == 'K':
            for t in range(4): A(f"v_add_u32 v{VO+t}, {(t//2)*16384 + (t%2)*4096}, v4")
            A(f"s_lshl_b32 s{sOBASE}, s{sTB}, 17\ns_lshl_b32 s{sT0}, s{sW}, 15\ns_add_u32 s{sOBASE}, s{sOBASE}, s{sT0}\ns_add_u32 s{sOBASE}, s{sOBASE}, {KV_BASE}")
        elif ty == 'V':
            for t in range(4): A(f"v_add_u32 v{VO+t}, {(t%2)*16384}, v4")
            A(f"s_lshl_b32 s{sOBASE}, s{sTB}, 17\ns_lshl_b32 s{sT0}, s{sW}, 15\ns_add_u32 s{sOBASE}, s{sOBASE}, s{sT0}\ns_add_u32 s{sOBASE}, s{sOBASE}, {KV_BASE+8192}")
        else:
            for t in range(4): A(f"s_add_u32 s{sT0}, s{sCG}, {t}\ns_and_b32 s{sT0}, s{sT0}, {3 if ROT else 0}\ns_lshl_b32 s{sT0}, s{sT0}, 10\nv_add_u32 v{VO+t}, s{sT0}, v4" if ROT else f"v_add_u32 v{VO+t}, {t*1024}, v4")
            A(f"s_lshl_b32 s{sT0}, s{sTB}, 2\ns_add_u32 s{sT0}, s{sT0}, s{sW}\ns_mul_i32 s{sOBASE}, s{sT0}, {A3_TB64}\ns_add_u32 s{sOBASE}, s{sOBASE}, {A3_BASE + 128*4096}")
        A(f"s_mov_b32 s{S_OUT+2}, {0 if ty in 'QG' else WS_USED}")
        A(f"s_branch {'K1_STAGE_X' if ty in 'QG' else 'K1_PRO_' + ty}")

    for ty in 'KVG': setup(ty)

    def wpre(ty, slots):
        for q in slots:
            for tr in dma_slot(ty, q//4, q%4, q):
                for x in tr: A(x)

    def act_touch():
        A(f"s_lshl_b32 s{sT1}, s{sTB}, 18\ns_and_b32 s{sT0}, s{sCG}, 3\ns_lshl_b32 s{sT0}, s{sT0}, 16\ns_add_u32 s{sT1}, s{sT1}, s{sT0}\ns_lshl_b32 s{sT0}, s{sW}, 14\ns_add_u32 s{sT1}, s{sT1}, s{sT0}")
        A(f"v_lshrrev_b32 v4, 3, v0\nv_and_b32 v5, 7, v0\nv_lshlrev_b32 v4, 10, v4\nv_lshl_add_u32 v4, v5, 7, v4\ns_add_u32 s{sT0}, s{sT1}, 8192")
        A(f"buffer_load_dword v{DUM}, v4, s[{S_ACT}:{S_ACT+3}], s{sT1} offen\nbuffer_load_dword v{DUM+1}, v4, s[{S_ACT}:{S_ACT+3}], s{sT0} offen")

    def touch_ops(ty):
        pitch = 2752 if ty == 'G' else 8192
        cs, _, _ = dma_consts(ty)
        o = [f"s_lshl_b32 s{sT1}, s{sTB}, 2", f"s_add_u32 s{sT1}, s{sT1}, s{sW}", f"s_mul_i32 s{sT1}, s{sT1}, {16*pitch}", f"s_mul_i32 s{sT0}, s{sSU}, {cs}", f"s_add_u32 s{sT1}, s{sT1}, s{sT0}"]
        if ty == 'G':
            o += ["v_lshrrev_b32 v4, 2, v0", "v_and_b32 v5, 3, v0", "v_mul_u32_u24 v4, 2752, v4", f"v_add_u32 v4, s{sT1}, v4", "v_and_b32 v4, 0xffffff80, v4", "v_lshl_add_u32 v4, v5, 7, v4"]
            o += [f"buffer_load_dword v{DUM+j}, v4, s[{srd}:{srd+3}], 0 offen" for j, srd in enumerate((S_WA, S_WB))]
        else:
            o += ["v_lshrrev_b32 v4, 3, v0", "v_and_b32 v5, 7, v0", "v_lshlrev_b32 v4, 13, v4", "v_lshl_add_u32 v4, v5, 7, v4"]
            for j in range(2):
                o += [f"s_add_u32 s{sT0}, s{sT1}, {j*8*pitch}", f"buffer_load_dword v{DUM+j}, v4, s[{S_WA}:{S_WA+3}], s{sT0} offen"]
        return o

    BUF = [0, 1, 2, 3, 4, 2, 3, 4]
    A.label("K1_STAGE_X")
    A(f"s_mov_b32 s{S_XC}, s{P_WS}\ns_mov_b32 s{S_XC+1}, s{P_WS+1}\ns_mov_b32 s{S_XC+3}, 0x00020000\ns_cmp_ge_u32 s{sCG}, {7 if PART == 'A' else 6}\ns_cselect_b32 s{S_XC+2}, {WS_USED}, 0")
    A(f"s_lshl_b32 s{sT1}, s{sTB}, 4\ns_lshl_b32 s{sT0}, s{sW}, 2\ns_add_u32 s{sT1}, s{sT1}, s{sT0}\ns_and_b32 s{sT0}, s{sCG}, {3 if ROT else 0}\ns_add_u32 s{sT1}, s{sT1}, s{sT0}")
    A(f"s_lshl_b32 s{sSCQ}, s{sT1}, 6\ns_add_u32 s{sSCQ}, s{sSCQ}, {SCQ_BASE}\ns_lshl_b32 s{sT1}, s{sT1}, 14\ns_add_u32 s{sT1}, s{sT1}, {XC_BASE}")
    for q in range(4): A(f"s_add_u32 s{sT0}, s{sROT}, {q}\ns_and_b32 s{sT0}, s{sT0}, 3\ns_lshl_b32 s{sT0}, s{sT0}, 12\ns_add_u32 s{sXQ+q}, s{sT1}, s{sT0}")
    A(f"v_lshlrev_b32 v{VLN}, 4, v0")
    if ACT_TOUCH: act_touch()
    A(f"s_lshl_b32 s{sT0}, s{sROT}, 4\nv_add_u32 v{T}, s{sT0}, v0\nv_and_b32 v{T}, 63, v{T}\nv_lshlrev_b32 v{T}, 4, v{T}")
    for t in range(4):
        A(f"s_add_u32 s{sT0}, s{sCG}, {t}\ns_and_b32 s{sT0}, s{sT0}, 3\ns_lshl_b32 s{sT0}, s{sT0}, 14\ns_add_u32 s{sXR+t}, s{sROW}, s{sT0}" if ROT else f"s_add_u32 s{sXR+t}, s{sROW}, {t*16384}")
    def x_round(r):
        o = []
        for j in range(8):
            tok = (8*r + j) & 15
            o.append([f"v_xor_b32 v{T+1+(j&1)}, {tok*16}, v{T}", f"s_add_u32 m0, s{sSTG}, {BUF[r]*32768 + j*1024}", f"s_add_u32 s{sT0}, s{sXR+r//2}, {(8*(r%2)+j)*1024}",
                      f"buffer_load_dwordx4 v{T+1+(j&1)}, s[{S_ACT}:{S_ACT+3}], s{sT0} offen lds"])
        return o
    def gw_slot(n):
        o = []
        for j in range(4):
            srd = S_WA if j < 2 else S_WB
            it = [f"s_add_u32 m0, s{sM0}, {n*16384 + j*1024}", f"s_add_u32 s{sT0}, s{sDQ+n%4}, s{(sEX if n < 4 else sEX2)+j}", f"buffer_load_dwordx4 v{VW+(j&1)}, s[{srd}:{srd+3}], s{sT0} offen lds"]
            o.append(it)
        return o
    for r in range(2 if XORD else 4):
        for it in x_round(r):
            for x in it: A(x)
    stamp(A, 1)
    A(f"v_and_b32 v4, 15, v0\nv_and_b32 v5, 7, v0\nv_lshlrev_b32 v5, 10, v5\nv_and_b32 v6, 3, v0\nv_xor_b32 v6, v6, v1\nv_lshl_add_u32 v5, v6, 4, v5")
    A(f"v_add_u32 v5, s{sSTG}, v5\nv_lshrrev_b32 v6, 2, v4")
    for k in range(4):
        A(f"v_xor_b32 v7, {k}, v6\nv_lshl_add_u32 v{T+4+k}, v7, 6, v5")
    A(f"v_cmp_lt_u32 vcc, 7, v4")
    A(f"v_lshlrev_b32 v5, 2, v1\nv_sub_u32 v5, v4, v5")
    for i in range(4): A(f"v_cmp_eq_u32 s[{sMK+2*i}:{sMK+2*i+1}], {i}, v5")
    for i in range(4): A(f"v_mov_b32 v{ONESV+i}, s{sONES}")
    L = WF
    def x_read(t, vm):
        X = ACC[t % 2]
        ba, bb = BUF[2*t], BUF[2*t+1]
        o = [f"v_mov_b32 v2, {ba*32768}", f"v_mov_b32 v3, {bb*32768}", "v_cndmask_b32 v2, v2, v3, vcc"]
        o += [f"v_add_u32 v{T+8+k}, v2, v{T+4+k}" for k in range(4)]
        o.append(f"s_waitcnt vmcnt({vm})")
        o += [f"ds_read_b128 {vr(X+4*ks,4)}, v{T+8+(ks&3)} offset:{(ks&12)*64}" for ks in range(16)]
        return o
    def sumx(t):
        d = SUM + 4*(t % 2); X = ACC[t % 2]
        return [[f"{MF} {vr(d,4)}, {vr(ONESV,4)}, {vr(X+4*ks,4)}, {'0' if ks == 0 else vr(d,4)}"] for ks in range(16)]
    def gram(t):
        d = GR + 4*t
        return [[f"{MF} {vr(d,4)}, {ar((t*16+ks)*4,4)}, {ar((t*16+ks)*4,4)}, {'0' if ks == 0 else vr(d,4)}"] for ks in range(16)]
    def ln_stream(t):
        X = ACC[t % 2]; mu = MU
        o = [f"v_mul_f32 v{mu}, {hex(f32bits(-1.0/512))}, v{SUM+4*(t%2)}"]
        for b in range(16):
            tb_ = L + 8*(b % 2)
            for i in range(4):
                o.append(f"v_lshlrev_b32 v{tb_+2*i}, 16, v{X+4*b+i}"); o.append(f"v_and_b32 v{tb_+2*i+1}, 0xffff0000, v{X+4*b+i}")
            for i in range(8): o.append(f"v_add_f32 v{tb_+i}, v{tb_+i}, v{mu}")
            for i in range(4): o.append(f"v_cvt_pk_bf16_f32 v{X+4*b+i}, v{tb_+2*i}, v{tb_+2*i+1}")
            for i in range(4): o.append(f"v_accvgpr_write_b32 a{(t*16+b)*4+i}, v{X+4*b+i}")
        return o
    def interleave(main, sides):
        n = len(main)
        ins = {}
        for f0, f1, items in sides:
            for k, it in enumerate(items or []):
                p = int(n*(f0 + (f1-f0)*(k+0.5)/len(items)))
                ins.setdefault(p, []).extend(it)
        for i, x in enumerate(main):
            for y in ins.get(i, []): A(y)
            A(x)
    w03 = [it for n in range(4) for it in gw_slot(n)]
    if XORD:
        for x in x_read(0, 0): A(x)
        r23 = x_round(2) + x_round(3)
        for it in r23[:4]:
            for x in it: A(x)
        A("s_waitcnt lgkmcnt(0)")
        stamp(A, 2)
        for k, it in enumerate(sumx(0)):
            for x in it: A(x)
            if k < 12:
                for x in r23[4+k]: A(x)
        stamp(A, 3)
        interleave(ln_stream(0), [(0.01, 0.25, x_round(4)), (0.40, 0.41, [x_read(1, 8)]), (0.55, 0.56, [["s_waitcnt lgkmcnt(0)", "s_barrier"]]), (0.57, 0.8, x_round(5) + x_round(6)), (0.8, 0.99, w03), (0.6, 0.92, sumx(1))])
    else:
        for x in x_read(0, 16): A(x)
        A("s_waitcnt lgkmcnt(0)")
        stamp(A, 2)
        r4 = x_round(4)
        for k, it in enumerate(sumx(0)):
            for x in it: A(x)
            if k % 2 == 0:
                for x in r4[k//2]: A(x)
        for x in x_read(1, 8): A(x)
        stamp(A, 3)
        interleave(ln_stream(0), [(0.10, 0.11, [["s_waitcnt lgkmcnt(0)", "s_barrier"]]), (0.12, 0.45 if not XSP else 0.95, x_round(5) + x_round(6)), (0.45, 0.98, w03 if not XSP else []), (0.5, 0.9, sumx(1))])
    w46 = [it for n in range(4, 7) for it in gw_slot(n)]
    if XSP:
        for x in x_read(2, 8): A(x)
        stamp(A, 4)
        interleave(ln_stream(1), [(0.05, 0.45, gram(0)), (0.15, 0.16, [["s_waitcnt lgkmcnt(0)"]]), (0.17, 0.5, x_round(7)), (0.5, 0.98, w03[:8]), (0.5, 0.9, sumx(2))])
        for x in x_read(3, 8): A(x)
        interleave(ln_stream(2), [(0.05, 0.45, gram(1)), (0.02, 0.6, w03[8:]), (0.15, 0.16, [["s_waitcnt lgkmcnt(0)"]]), (0.62, 0.63, [["s_barrier"]]), (0.65, 0.98, w46[:4]), (0.5, 0.9, sumx(3))])
        w46 = w46[4:]
    else:
        for x in x_read(2, 24): A(x)
        stamp(A, 4)
        interleave(ln_stream(1), [(0.05, 0.45, gram(0)), (0.15, 0.16, [["s_waitcnt lgkmcnt(0)"]]), (0.17, 0.4, x_round(7)), (0.5, 0.9, sumx(2))])
        for x in x_read(3, 0): A(x)
        interleave(ln_stream(2), [(0.05, 0.45, gram(1)), (0.15, 0.16, [["s_waitcnt lgkmcnt(0)", "s_barrier"]]), (0.17, 0.7, w46), (0.5, 0.9, sumx(3))])
        w46 = []
    stamp(A, 5)
    xcst = [[f"buffer_store_dwordx4 {ar(b*4,4)}, v{VLN}, s[{S_XC}:{S_XC+3}], s{sXQ+b//4} offen offset:{(b%4)*1024} sc1"] for b in range(16)]
    interleave(ln_stream(3), [(0.05, 0.45, gram(2)), (0.05, 0.8, w46)])
    A("s_nop 1")
    for it in gram(3):
        for x in it: A(x)
    def extract(t):
        g = GR + 4*t; D, D2 = L, L+1
        A(f"v_cndmask_b32 v{D}, 0, v{g}, s[{sMK}:{sMK+1}]")
        for i in range(1, 4): A(f"v_cndmask_b32 v{D}, v{D}, v{g+i}, s[{sMK+2*i}:{sMK+2*i+1}]")
        A(f"v_mov_b32 v{D2}, v{D}\ns_nop 1\nv_permlane16_swap_b32 v{D}, v{D2}\nv_add_f32 v{D}, v{D}, v{D2}")
        A(f"v_mov_b32 v{D2}, v{D}\ns_nop 1\nv_permlane32_swap_b32 v{D}, v{D2}\nv_add_f32 v{D}, v{D}, v{D2}")
        A(f"v_mov_b32 v{D2}, {hex(f32bits(1e-5))}\nv_fmac_f32 v{D2}, {hex(f32bits(1.0/512))}, v{D}")
        A(f"v_rsq_f32 v{RSTD+t}, v{D2}")
    for t in range(4): extract(t)
    A(f"v_mul_f32 v{MU}, {hex(f32bits(CSCALE))}, v{RSTD}\nv_and_b32 v{SUM}, 15, v0\nv_lshlrev_b32 v{SUM}, 2, v{SUM}")
    A("s_branch K1_START2_G")

    def epilogue_ops(ty, acc, store_flags=store_flags):
        ops = []
        blk = lambda nb, t: acc + (nb*4 + t)*4
        oq = 0
        def store(q, vo, off, so=sOB): return f"buffer_store_dwordx4 {vr(OUT+4*q,4)}, v{vo}, s[{S_OUT}:{S_OUT+3}], s{so} offen offset:{off}{store_flags}"
        if ty in 'QK':
            for pr in range(2):
                for t in range(4):
                    for h in range(2):
                        b = blk(2*pr+h, t)
                        if ty == 'Q':
                            for i in range(4): ops.append(f"v_mul_f32 v{b+i}, v{b+i}, v{SC+t}")
                        ops.append(f"v_cvt_pk_bf16_f32 v{OUT+4*oq+2*h}, v{b}, v{b+1}")
                        ops.append(f"v_cvt_pk_bf16_f32 v{OUT+4*oq+2*h+1}, v{b+2}, v{b+3}")
                    ops.append(store(oq, VO+t, pr*1024) if ty == 'K' else store(oq, VO+t, 0, sOB2 if pr else sOB)); oq = (oq+1) % 3
        elif ty == 'V':
            for nb in range(4):
                for v in range(2):
                    for h in range(2):
                        b = blk(nb, 2*v+h)
                        ops.append(f"v_cvt_pk_bf16_f32 v{OUT+4*oq+2*h}, v{b}, v{b+1}")
                        ops.append(f"v_cvt_pk_bf16_f32 v{OUT+4*oq+2*h+1}, v{b+2}, v{b+3}")
                    ops.append(store(oq, VO+v, nb*1024)); oq = (oq+1) % 3
        else:
            for t in range(4):
                for h in range(2):
                    g = blk(h, t); u = blk(h+2, t)
                    for i in range(4): ops.append(f"v_max_f32 v{g+i}, 0, v{g+i}")
                    for i in range(4): ops.append(f"v_mul_f32 v{u+i}, v{u+i}, v{SC+t}")
                    for i in range(4): ops.append(f"v_mul_f32 v{g+i}, v{g+i}, v{u+i}")
                    ops.append(f"v_cvt_pk_bf16_f32 v{OUT+4*oq+2*h}, v{g}, v{g+1}")
                    ops.append(f"v_cvt_pk_bf16_f32 v{OUT+4*oq+2*h+1}, v{g+2}, v{g+3}")
                ops.append(store(oq, VO+t, 0)); oq = (oq+1) % 3
        return ops

    def ob_calc(ty, su_reg_delta):
        o = [f"s_add_u32 s{sT1}, s{sSU}, {su_reg_delta}"] if su_reg_delta >= 0 else [f"s_sub_u32 s{sT1}, s{sSU}, {-su_reg_delta}"]
        if ty in 'GQ':
            o += [f"s_lshl_b32 s{sT1}, s{sT1}, {12 if ty == 'G' else 13}", f"s_add_u32 s{sOB}, s{sOBASE}, s{sT1}"]
            if ty == 'Q': o.append(f"s_add_u32 s{sOB2}, s{sOB}, 4096")
        else:
            hs = 19 if ty == 'Q' else 20
            ls = 12 if ty == 'V' else 11
            o += [f"s_lshr_b32 s{sOB}, s{sT1}, 1", f"s_lshl_b32 s{sOB}, s{sOB}, {hs}", f"s_and_b32 s{sT1}, s{sT1}, 1", f"s_lshl_b32 s{sT1}, s{sT1}, {ls}",
                  f"s_add_u32 s{sOB}, s{sOB}, s{sT1}", f"s_add_u32 s{sOB}, s{sOB}, s{sOBASE}"]
        return o

    def trreads(fi, nb, slot_in_half, ks):
        off = slot_in_half*16384 + ks*4096
        return [f"ds_read_b64_tr_b16 {vr(WF+4*fi,2)}, v{TRA+2*nb} offset:{off}",
                f"ds_read_b64_tr_b16 {vr(WF+4*fi+2,2)}, v{TRA+2*nb+1} offset:{off}"]

    CB = [32768, 65536, 98304, 131072, 98304, 131072, 98304, 131072] if B4 else [98304 + (r % 2)*32768 for r in range(8)]
    def c_round(r):
        return [[f"s_add_u32 m0, s{sSTG}, {CB[r] + j*1024}", f"s_add_u32 s{sT0}, s{sRQ+r//2}, {j*8192 + (r%2)*128}",
                 f"buffer_load_dwordx4 v{T+(j&1)}, s[{S_ACT}:{S_ACT+3}], s{sT0} offen lds"] for j in range(8)]
    def c_reads(r):
        base, o = (T+2, CB[r] - 98304) if CB[r] >= 98304 else (T+4, CB[r] - 32768)
        return [f"ds_read_b128 {ar((t*16+2*r+k2)*4, 4)}, v{base+k2} offset:{o + t*2048}" for t in range(4) for k2 in range(2)]

    def body(ty, par, first=False, vms=None, A=A):
        acc = ACC[par]; old = ACC[1-par]
        cs, ss, _ = dma_consts(ty)
        gaps = {}
        def G(q, m): return gaps.setdefault((q, m), {'mem': [], 'other': []})
        def room(q, m):
            g = G(q, m); return 2 - len(g['mem']) - len(g['other'])
        prew = {}
        CH = CHAIN and not first
        if CH:
            for q in range(4):
                for nb in range(4): G(q, nb*16 + 11)['other'].append("s_waitcnt lgkmcnt(0)")
        elif LGK:
            for q in range(4):
                for grp in range(1, 16, 2): G(q, grp*4 + 2)['other'].append(f"s_waitcnt lgkmcnt({6 if (CHAIN and q == 3 and grp == 15) else 10})")
        if not first:
            epi = epilogue_ops(ty, old)
            if ty == 'G' and par == 1:
                ex = [x[0] for x in xcst] + [f"buffer_store_dword v{MU}, v{SUM}, s[{S_XC}:{S_XC+3}], s{sSCQ} offen sc1", f"s_mov_b32 s{S_XC+2}, 0"]
                e2 = []
                for k, x in enumerate(epi):
                    e2.append(x)
                    if k % 6 == 5 and ex: e2.append(ex.pop(0))
                epi = e2 + ex
            for q in range(4):
                G(q, 0)['other'] += [f"s_waitcnt vmcnt({vms[q]})", "s_barrier"]
                tgt = (4*par + q + 7) % 8
                trip = dma_slot(ty, 1 if q == 0 else 2, (q+3) % 4, tgt)
                if q == 1:
                    G(q, 1)['other'] += [f"s_add_u32 s{sT1}, s{sSU}, 2", f"s_cmp_ge_u32 s{sT1}, s{sEND2}"]
                    G(q, 2)['other'] += [f"s_cselect_b32 s{S_WA+2}, 0, s{S_WA+2}", f"s_cselect_b32 s{S_WB+2}, 0, s{S_WB+2}"]
                for j, tr in enumerate(trip):
                    m = (8 + 12*j + 1) if not CH else (8, 20, 32, 40)[j] + 1
                    G(q, m)['other'] += tr[:2]
                    G(q, m+1)['mem'] += [tr[2]]
            oc = ob_calc(ty, -1)
            pos = [(0,1),(0,2),(0,4),(0,5)]
            k = 0
            for p in pos:
                while room(*p) > 0 and k < len(oc): G(*p)['other'].append(oc[k]); k += 1
            assert k == len(oc)
        for nb in range(4):
            m = (16 + 4*nb + 4) if not CH else (4, 5, 16, 35)[nb]
            G(3, m)['other'] += [f"v_xor_b32 v{TRA+2*nb}, 0x10000, v{TRA+2*nb}", f"v_xor_b32 v{TRA+2*nb+1}, 0x10000, v{TRA+2*nb+1}"]
        if not first:
            slots = [(q, m) for q in range(4) for m in range(64) if (m % 4 != 3 if not CH else m % 16 < 12) and (q, m) >= (0, 6)]
            cap = [(s_, room(*s_)) for s_ in slots]
            tot = sum(c for _, c in cap)
            step = max(1.0, 0.8*tot/len(epi))
            flat = [s_ for s_, c in cap for _ in range(c)]
            idx = 0.0
            for op in epi:
                s_ = flat[int(idx)]
                if op.startswith('buffer_store'):
                    i2 = int(idx)
                    while True:
                        s_ = flat[i2]
                        g = G(*s_)
                        if not g['mem'] and not g['other']: break
                        i2 += 1
                    idx = max(idx, i2)
                    G(*s_)['mem'].append(op)
                else:
                    G(*s_)['other'].append(op)
                idx += step
        else:
            seq = ['R0']*8 + ['W0']*4 + ['R1']*8 + ['W1']*4
            def vm(tag): return len(seq) - 1 - max(i for i, e in enumerate(seq) if e == tag)
            def put_triples(q, m0, trips, tag):
                m = m0
                for tr in trips:
                    G(q, m)['other'] += tr[:2]
                    m2 = m + 1 if (m + 1) % 4 != 3 else m + 2
                    G(q, m2)['mem'].append(tr[2]); seq.append(tag)
                    m = m2
                    if len(G(q, m)['other']) >= 1 or True:
                        pass
                return m
            if B4:
                seq += ['R2']*8 + ['R3']*8
                def nxt(m): return m + 1 if (m + 1) % 4 != 3 else m + 2
                def put_reads(q, mm, r):
                    prew.setdefault((q, mm), []).append(f"s_waitcnt vmcnt({vm(f'R{r}')})")
                    rds = c_reads(r)
                    for k in range(4):
                        G(q, mm)['mem'] += rds[2*k:2*k+2]; mm = nxt(mm)
                    return mm
                W = lambda n: dma_slot(ty, n//4, n % 4, n % 8)
                for h in range(8):
                    q = h // 2; base = 32*(h % 2)
                    if h in (1, 3, 5): prew[(q, base)] = ["s_waitcnt lgkmcnt(2)"]
                    if h % 2 == 1: G(q, base)['other'] += [f"s_waitcnt vmcnt({vm(f'W{q+1}')})", "s_barrier"]
                    m = base + 1
                    if h == 0:
                        put_reads(q, 8, 1); put_reads(q, 16, 2); put_reads(q, 24, 3)
                    if h == 1:
                        m = put_triples(q, m, c_round(4), 'R4'); m = put_triples(q, m, W(2), 'W2'); m = put_triples(q, m, c_round(5), 'R5')
                    if h == 2:
                        for n in (3, 4, 5): m = put_triples(q, m, W(n), f'W{n}')
                        put_reads(q, base+18, 4); put_reads(q, base+24, 5)
                    if h == 3:
                        m = put_triples(q, m, c_round(6), 'R6'); m = put_triples(q, m, c_round(7), 'R7')
                    if h == 4:
                        put_reads(q, base+18, 6); put_reads(q, base+24, 7)
                    if h == 5:
                        for n in (6, 7): m = put_triples(q, m, W(n), f'W{n}')
                    if h == 6:
                        for n in (8, 9): m = put_triples(q, m, W(n), f'W{n}')
                    if h == 7: m = put_triples(q, m, W(10), 'W10')
                    assert m < base + 31 and (h != 2 or m < base + 18), (h, m)
            else:
                for h in range(8):
                    q = h // 2; base = 32*(h % 2)
                    if h >= 1: prew[(q, base)] = ["s_waitcnt lgkmcnt(2)"]
                    need = None
                    if h == 1: need = 'W1'
                    elif h in (2, 4, 6): need = f'W{q+1}'
                    if need: G(q, base)['other'] += [f"s_waitcnt vmcnt({vm(need)})", "s_barrier"]
                    if h == 7: G(q, base)['other'] += ["s_barrier"]
                    if HST and h in (2, 4, 6): G(q, base)['other'].append(f"s_memrealtime s[{64+2*(2+h//2)}:{65+2*(2+h//2)}]")
                    m = base + 1
                    if h + 2 <= 7: m = put_triples(q, m, c_round(h+2), f'R{h+2}')
                    if WEARLY:
                        if h <= 1:
                            for n in (2*h+2, 2*h+3): m = put_triples(q, m, dma_slot(ty, n//4, n % 4, n), f'W{n}')
                    elif h <= 3: m = put_triples(q, m, dma_slot(ty, (h+2)//4, (h+2) % 4, h+2), f'W{h+2}')
                    if h == 7:
                        for n in range(6, 11): m = put_triples(q, m, dma_slot(ty, n//4, n % 4, n % 8), f'W{n}')
                        assert m <= 60, m
                    if h == 4 and KV_TOUCH:
                        to = touch_ops(ty)
                        for k, x in enumerate(to):
                            if x.startswith('buffer'): seq.append('T')
                            G(q, base + 16 + (k//4)*1 + (1 if (base+16+(k//4)) % 4 == 3 else 0))['other'].append(x)
                    if h + 1 <= 7:
                        mm = base + 24
                        prew[(q, mm)] = [f"s_waitcnt vmcnt({vm(f'R{h+1}')})"]
                        rds = c_reads(h+1)
                        for k, p in enumerate((mm, mm+1, mm+2, mm+4)):
                            G(q, p)['mem'] += rds[2*k:2*k+2]
        E4 = 4 if CH else 0
        if ty == 'V':
            G(3, 56-E4)['other'] += [f"s_add_u32 s{sT1}, s{sSU}, 3", f"s_cmp_eq_u32 s{sT1}, s{sEND}", f"s_cselect_b32 s{sIA}, s{sHD}, {cs}"]
            G(3, 57-E4)['other'] += [f"s_add_u32 s{sT1}, s{sSU}, 2", f"s_cmp_eq_u32 s{sT1}, s{sEND}", f"s_cselect_b32 s{sIB}, s{sHD}, {cs}"]
            ia, ib = f"s{sIA}", f"s{sIB}"
        else: ia = ib = f"{cs}"
        G(3, 60-E4+CH)['other'] += [f"s_add_u32 s{sDQ}, s{sDQ}, {ia}", f"s_add_u32 s{sDQ+1}, s{sDQ+1}, {ia}"]
        G(3, 61-E4+CH)['other'] += [f"s_add_u32 s{sDQ+2}, s{sDQ+2}, {ia}", f"s_add_u32 s{sDQ+3}, s{sDQ+3}, {ib}", f"s_add_u32 s{sSU}, s{sSU}, 1"]
        G(3, 62-E4+CH)['other'] += [f"s_mov_b32 s{S_OUT+2}, {0 if NOST else WS_USED}", f"s_cmp_ge_u32 s{sSU}, s{sEND}"]
        for q in range(4):
            for m in range(64):
                if CH: nb, t, ks = m // 16, (m // 4) % 4, m % 4; fi = (nb % 2)*4 + ks
                else: ks, nb, t = m // 16, (m // 4) % 4, m % 4; fi = (ks % 2)*4 + nb
                if not CH and m % 8 == 0 and not LGK: A("s_waitcnt lgkmcnt(12)")
                for x in prew.get((q, m), []): A(x)
                d = acc + (nb*4+t)*4
                kk = q*4 + ks
                c = "0" if kk == 0 else vr(d, 4)
                w = vr(WF+4*fi, 4); a = ar((t*16+kk)*4, 4)
                A(f"{MF} {vr(d,4)}, {a}, {w}, {c}" if ty == 'V' else f"{MF} {vr(d,4)}, {w}, {a}, {c}")
                if t == 3:
                    if CH: rd = trreads(fi, nb+2, q, ks) if nb < 2 else trreads(fi, nb-2, (q+1) % 4, ks)
                    elif ks < 2: rd = trreads(fi, nb, q, ks+2)
                    elif CHAIN and q == 3: rd = trreads(fi, fi // 4, 0, fi % 4)
                    else: rd = trreads(fi, nb, (q+1) % 4, ks-2)
                    for x in rd: A(x)
                g = G(q, m)
                for x in g['mem']: A(x)
                for x in g['other']: A(x)

    def vm_table(ty):
        tmp = Asm(); body(ty, 0, vms=[0]*4, A=tmp)
        pat = []; q = -1
        for l in tmp.lines:
            if l == 's_barrier': q += 1; pat.append(('bar', q))
            elif l.startswith('buffer_load'): pat.append(('dma', q))
            elif l.startswith('buffer_store'): pat.append(('st', q))
        if ty in 'KV': seq = [5]*4 + [n for n in range(6, 11) for _ in range(4)]; c0 = 1
        else: seq = [n for n in range(4, 7) for _ in range(4)]; c0 = 0
        tab = {}
        for c in range(c0, 8):
            tab[c] = [0]*4
            for kind, q in pat:
                if kind == 'bar':
                    need = 4*c + q + 1
                    idx = [i for i, e in enumerate(seq) if e == need]
                    tab[c][q] = min(63, len(seq) - 1 - max(idx)) if idx else 63
                    if not EXACT: tab[c][q] = 20
                elif kind == 'dma': seq.append(4*c + q + 7)
                else: seq.append('s')
        return tab

    for ty in 'KVG':
        VN = vm_table(ty)
        if ty in 'KV':
            A.label(f"K1_PRO_{ty}")
            if ACT_TOUCH: act_touch()
            A(f"v_lshrrev_b32 v4, 3, v0\nv_and_b32 v5, 7, v0\nv_lshrrev_b32 v6, 4, v0\nv_xor_b32 v5, v5, v6")
            A(f"v_lshlrev_b32 v4, 10, v4\nv_lshl_add_u32 v{T}, v5, 4, v4\nv_xor_b32 v{T+1}, 64, v{T}")
            for it in c_round(0) + dma_slot(ty, 0, 0, 0) + c_round(1) + dma_slot(ty, 0, 1, 1) + (c_round(2) + c_round(3) if B4 else []):
                for x in it: A(x)
            stamp(A, 1)
            A(f"v_and_b32 v4, 15, v0\nv_lshrrev_b32 v5, 1, v4\nv_xor_b32 v5, v5, v1\nv_lshlrev_b32 v4, 7, v4\nv_lshl_add_u32 v4, v5, 4, v4")
            A(f"s_add_u32 s{sT1}, s{sSTG}, 98304\nv_add_u32 v{T+2}, s{sT1}, v4\nv_xor_b32 v{T+3}, 64, v{T+2}\nv_subrev_u32 v{T+4}, 0x10000, v{T+2}\nv_subrev_u32 v{T+5}, 0x10000, v{T+3}")
            A(f"s_waitcnt vmcnt({28 if B4 else 12})\ns_barrier")
            stamp(A, 2)
            for x in c_reads(0): A(x)
            for ks in range(2):
                for nb in range(4):
                    for x in trreads(ks*4+nb, nb, 0, ks): A(x)
            A("s_waitcnt lgkmcnt(12)")
            body(ty, 0, first=True)
            stamp(A, 6)
            if not HST: stampc(A, 4)
            body(ty, 1, vms=VN[1])
            if CODE_TOUCH2: code_touch(A, "k2_kernel", "K2_END", sW, 0, DUM+1, 80)
            if WQ_TOUCH:
                A(f"s_mov_b32 s4, s{P_WQ}\ns_mov_b32 s5, s{P_WQ+1}\ns_mov_b32 s6, {512*8192}\ns_mov_b32 s7, 0x00020000")
                A(f"s_sub_u32 s{sT1}, s{sCG}, {11 if PART == 'A' else 10}\ns_lshl_b32 s{sT1}, s{sT1}, 3\ns_add_u32 s{sT1}, s{sT1}, s{sTB}\ns_mul_i32 s{sT1}, s{sT1}, {196*128}\ns_min_u32 s{sT0}, s{sW}, 3\ns_lshl_b32 s{sT0}, s{sT0}, 13\ns_add_u32 s{sT1}, s{sT1}, s{sT0}")
                A(f"v_lshlrev_b32 v4, 7, v0\nbuffer_load_dword v{DUM}, v4, s[4:7], s{sT1} offen")
            A(f"s_branch K1_LOOP_{ty}")
        else:
            A.label(f"K1_START2_{ty}")
            stamp(A, 2)
            if W_TOUCH:
                for x in touch_ops(ty): A(x)
            if ty == 'Q':
                for t in range(4): A(f"v_mul_f32 v{SC+t}, {hex(f32bits(CSCALE))}, v{RSTD+t}")
            if ty == 'G':
                for t in range(4): A(f"v_mul_f32 v{SC+t}, v{RSTD+t}, v{RSTD+t}")
            A(f"s_waitcnt vmcnt({14 if W_TOUCH else 12})\ns_barrier")
            stamp(A, 6)
            for fi in range(8):
                for x in (trreads(fi, fi // 4, 0, fi % 4) if CHAIN else trreads(fi, fi % 4, 0, fi // 4)): A(x)
            A(f"s_waitcnt lgkmcnt({8 if CHAIN else 12})")
        A(".p2align 6")
        A.label(f"K1_LOOP_{ty}")
        c0 = 2 if ty in 'KV' else 0
        body(ty, 0, vms=[min(VN[c][q] for c in range(c0, 8, 2)) for q in range(4)])
        A(f"s_cbranch_scc1 K1_DRAIN0_{ty}")
        body(ty, 1, vms=[min(VN[c][q] for c in range(c0+1, 8, 2)) for q in range(4)])
        A(f"s_cbranch_scc0 K1_LOOP_{ty}")
        for par in (1, 0):
            A.label(f"K1_DRAIN{par}_{ty}")
            if ty == 'V' and par == 1: A(f"s_cmp_lg_u32 s{sEND}, s{sEND2}\ns_cbranch_scc1 K1_HALF_V")
            if ty in 'KV' and not HST: stamp(A, 3); stampc(A, 5)
            for x in ob_calc(ty, -1): A(x)
            A("s_nop 1")
            if WBL2: A(f"s_cmp_lg_u32 s{sW}, 0\ns_cbranch_scc1 K1_NOWB{par}_{ty}\nbuffer_wbl2 sc1\nK1_NOWB{par}_{ty}:")
            for x in epilogue_ops(ty, ACC[par], (' ' + SFD) if SFD else ''): A(x)
            A("s_branch K1_FIN")
    A.label("K1_HALF_V")
    epi = ob_calc('V', -1) + epilogue_ops('V', ACC[1])
    A("s_waitcnt vmcnt(12)")
    k = 0
    if CHAIN:
        for q in range(4):
            for m in range(32):
                nb, t, ks = m // 16, (m // 4) % 4, m % 4; fi = nb*4 + ks
                d = ACC[0] + (nb*4+t)*4; kk = q*4 + ks
                A(f"{MF} {vr(d,4)}, {ar((t*16+kk)*4,4)}, {vr(WF+4*fi,4)}, {'0' if kk == 0 else vr(d,4)}")
                if q == 0 and m == 0: A("s_barrier")
                if t == 3:
                    if q < 3:
                        for x in trreads(fi, nb, q+1, ks): A(x)
                elif m % 16 == 11: A("s_waitcnt lgkmcnt(0)")
                elif (q, m) >= (0, 8) and k < len(epi):
                    A(epi[k]); k += 1
    else:
        for q in range(4):
            for ks in range(4):
                A("s_waitcnt lgkmcnt(4)")
                for nb in range(2):
                    fi = (ks % 2)*4 + nb
                    for t in range(4):
                        d = ACC[0] + (nb*4+t)*4; kk = q*4 + ks
                        A(f"{MF} {vr(d,4)}, {ar((t*16+kk)*4,4)}, {vr(WF+4*fi,4)}, {'0' if kk == 0 else vr(d,4)}")
                        if kk == 0 and nb == 0 and t == 0: A("s_barrier")
                        if t == 3 and kk < 14:
                            for x in (trreads(fi, nb, q, ks+2) if ks < 2 else trreads(fi, nb, q+1, ks-2)): A(x)
                        elif t < 3 and kk >= 1 and k < len(epi):
                            A(epi[k]); k += 1
    assert k == len(epi), (k, len(epi))
    A(f"s_add_u32 s{sOB}, s{sOBH}, s{sOBASE}\ns_nop 4")
    for x in epilogue_ops('V', ACC[0])[:20]: A(x)
    A.label("K1_FIN")
    if asmlib.STAMP:
        A("s_waitcnt vmcnt(0)")
        stamp_flush(A, 0, 8, P_WS, sW)
    A.label("K1_END")
    A("s_endpgm")
    return dict(name="k1_kernel", vgpr=248+256, accum=248, sgpr=102, grid=256, block=256, lds=163840)
```

```python
from asmlib import *
import asmlib
from k1f import KV_BASE, A3_BASE, A3_TB64, WS_USED, MF, f32bits, XC_BASE, SCQ_BASE

import os
QST = os.environ.get('QST', '0') == '1'
QPLAN = os.environ.get('QPLAN', '3')
CT = os.environ.get('CODE_TOUCH2', '1') == '1'
QROT = int(os.environ.get('QROT', '2'))
LATEKV = os.environ.get('LATEKV', '1') == '1'
NOBAR = os.environ.get('NOBAR', '0') == '1'
BARPOS = int(os.environ.get('BARPOS', '0'))
NOCHK = os.environ.get('NOCHK', '0') == '1'
CHKE = os.environ.get('CHKE', '1') == '1'
ONES = os.environ.get('ONES', '0') == '1'
BIAS = 24.0
PCHK = int(os.environ.get('PCHK', '10'))
CTX_TOUCH = os.environ.get('CTX_TOUCH', '0') == '1'
def gen_k2(A, k1i, store_flags="", thr=2.0**30):
    O = 0; S01 = 128; S23 = [144, 160]; P01 = [176, 184]; P23 = 192; CX = 200; E = 232; LS = 236; L = 240
    VK = 244; VV = 245; VD = 246; TMP = 247
    AQ = 0; KF = 64; VF = 96; AL = 128; AO = 144
    NG = 34 if ONES else 32
    S_KV, S_WS = 8, 12
    sW, sH, sI, sT0, sT1, sOFF, sHALF, sCNT, sTHR, sNEG = 16, 17, 18, 19, 20, 21, 22, 23, 24, 25
    sMK = 26
    sRET = 34
    sP = 36; sOHI = 37; sOLO = 38
    P_WS = 40; P_WO = 42; P_WD = 44; P_WQ = 46; S_T = 48; sXH = 52; sXL = 53; sWQ = 54; sMQ = 55
    def Sreg(qp, kb, par): return (S01 + (qp*2+kb)*4) if qp < 2 else (S23[par] + ((qp-2)*2+kb)*4)
    def Preg(qp, par): return (P01[par] + qp*4) if qp < 2 else (P23 + (qp-2)*4)
    def Oreg(db, qb): return O + (db*4+qb)*4
    def CXr(qp, kb): return CX + (qp*2+kb)*4
    stubs = []
    uid = [0]
    def U(p): uid[0] += 1; return f"K2_{p}_{uid[0]}"

    def spin(lab, vp, vo, off, expect):
        stubs.append([f"{lab}:", f"s_mov_b32 s{sT1}, 0", f"{lab}_L:", "s_sleep 16", f"buffer_load_dword v{vp}, v{vo}, s[80:83], 0 offen offset:{off} sc1", "s_waitcnt vmcnt(0)",
                      f"v_cmp_ne_u32 vcc, {expect}, v{vp}", f"s_add_u32 s{sT1}, s{sT1}, 1", f"s_cmp_ge_u32 s{sT1}, 0x8000", f"s_cbranch_scc1 {lab}_B", f"s_cbranch_vccnz {lab}_L", f"s_branch {lab}_B"])
    A(f"s_mov_b32 s{sW}, s{k1i['sW']}\nv_mov_b32 v{TMP+1}, v0")
    A(f"s_load_dwordx2 s[{P_WS}:{P_WS+1}], s[0:1], 96\ns_load_dwordx2 s[{P_WO}:{P_WO+1}], s[0:1], 40\ns_load_dwordx2 s[{P_WD}:{P_WD+1}], s[0:1], 72\ns_load_dwordx2 s[{P_WQ}:{P_WQ+1}], s[0:1], 16\ns_mov_b32 s{S_T+3}, 0x00020000")
    A(f"v_cmp_ne_u32 vcc, 4, v{k1i['XP']}\ns_barrier\ns_cbranch_vccnz K2_XSPIN")
    A.label("K2_XSPIN_B")
    spin("K2_XSPIN", k1i['XP'], k1i['XO'], 128, 4)
    A(f"s_and_b32 s{sT0}, s2, 7\ns_lshr_b32 s{sT1}, s2, 3\ns_lshr_b32 s{sI}, s{sT1}, 2\ns_and_b32 s{sT1}, s{sT1}, 3\ns_lshl_b32 s{sH}, s{sT0}, 2\ns_add_u32 s{sH}, s{sH}, s{sT1}")
    A(f"s_mov_b32 s{S_KV+3}, 0x00020000\ns_mov_b32 s{S_WS+3}, 0x00020000\ns_mov_b32 s{S_WS+2}, {WS_USED}")
    A(f"s_lshl_b32 s{sT0}, s{sI}, 16\ns_sub_u32 s{S_KV+2}, 0x108000, s{sT0}")
    A(f"s_mov_b32 s{sTHR}, {hex(0x40000000 if ONES else f32bits(thr))}\ns_mov_b32 s{sNEG}, 0xff800000")
    LN = TMP+1
    A(f"v_lshlrev_b32 v{VK}, 4, v{LN}\nv_add_u32 v{VV}, 0x10000, v{VK}")
    A(f"s_lshl_b32 s{sT0}, s{sW}, 12\nv_add_u32 v{VD}, s{sT0}, v{VK}")
    A(f"s_and_b32 s{sT0}, s{sW}, 1\ns_lshl_b32 s{sHALF}, s{sT0}, 12\ns_lshr_b32 s{sT0}, s{sW}, 1\ns_lshl_b32 s{sT1}, s{sT0}, 16\ns_add_u32 s{sHALF}, s{sHALF}, s{sT1}")
    A(f"s_lshl_b32 s{sT0}, s{sT0}, 15\ns_sub_u32 s{sOFF}, 0x8000, s{sT0}")
    A("s_waitcnt lgkmcnt(0)")
    A(f"s_mov_b32 s{S_WS}, s{P_WS}\ns_mov_b32 s{S_WS+1}, s{P_WS+1}")
    A(f"s_lshl_b32 s{sT0}, s{sH}, 20\ns_add_u32 s{sT0}, s{sT0}, {KV_BASE-0x8000}\ns_add_u32 s{S_KV}, s{P_WS}, s{sT0}\ns_addc_u32 s{S_KV+1}, s{P_WS+1}, 0")
    A(f"s_lshr_b32 s{sT0}, s{sW}, 1\ns_lshl_b32 s{sT1}, s{sI}, 1\ns_add_u32 s{sOLO}, s{sT1}, s{sT0}\ns_sub_u32 s{sOHI}, 30, s{sT1}\ns_add_u32 s{sOHI}, s{sOHI}, s{sT0}")
    A(f"s_mul_i32 s{sOLO}, s{sOLO}, {A3_TB64}\ns_mul_i32 s{sOHI}, s{sOHI}, {A3_TB64}")
    A(f"s_lshl_b32 s{sT0}, s{sH}, 14\ns_and_b32 s{sT1}, s{sW}, 1\ns_lshl_b32 s{sT1}, s{sT1}, 11\ns_add_u32 s{sT0}, s{sT0}, s{sT1}\ns_add_u32 s{sT0}, s{sT0}, {A3_BASE}")
    A(f"s_add_u32 s{sOLO}, s{sOLO}, s{sT0}\ns_add_u32 s{sOHI}, s{sOHI}, s{sT0}")
    def kread(f, unit4): return f"ds_read_b128 {ar(KF+4*f,4)}, v{VK} offset:{unit4*8192 + f*1024}"
    def vread(f, slot4): return f"ds_read_b128 {ar(VF+4*f,4)}, v{VV} offset:{slot4*8192 + f*1024}"
    def dma_group(c):
        pre = [f"s_add_u32 m0, s{sHALF}, {(c%4)*8192}"]
        d = [f"buffer_load_dwordx4 v{VD}, s[{S_KV}:{S_KV+3}], s{sOFF} offen offset:{j*1024} lds" for j in range(4)]
        post = [f"s_add_u32 s{sOFF}, s{sOFF}, 16384"]
        if c % 4 == 3: post.append(f"s_xor_b32 s{sHALF}, s{sHALF}, 0x8000")
        return pre, d, post
    AR = 128; TRQ = S01; VQ = S01 + 8
    A(f"s_mov_b32 s{S_T}, s{P_WQ}\ns_mov_b32 s{S_T+1}, s{P_WQ+1}\ns_mov_b32 s{S_T+2}, {512*8192}")
    A(f"s_lshl_b32 s{sT0}, s{sI}, 3\ns_lshl_b32 s{sT1}, s{sW}, 1\ns_add_u32 s{sXL}, s{sT0}, s{sT1}\ns_sub_u32 s{sXH}, 120, s{sT0}\ns_add_u32 s{sXH}, s{sXH}, s{sT1}")
    A(f"s_lshl_b32 s{sP}, s{sXH}, 6\ns_add_u32 s{sP}, s{sP}, {SCQ_BASE}\ns_lshl_b32 s{sCNT}, s{sXL}, 6\ns_add_u32 s{sCNT}, s{sCNT}, {SCQ_BASE}")
    A(f"s_lshl_b32 s{sXH}, s{sXH}, 14\ns_add_u32 s{sXH}, s{sXH}, {XC_BASE}\ns_lshl_b32 s{sXL}, s{sXL}, 14\ns_add_u32 s{sXL}, s{sXL}, {XC_BASE}")
    A(f"s_lshl_b32 s{sWQ}, s{sH}, 8\ns_lshl_b32 s{sT0}, s{sW}, 16\ns_add_u32 s{sWQ}, s{sWQ}, s{sT0}\ns_lshl_b32 s{sMQ}, s{sW}, 11\ns_add_u32 s{sMQ}, s{sMQ}, 32768")
    A(f"v_lshrrev_b32 v{TMP+2}, 4, v{LN}\nv_and_b32 v{TMP+3}, 15, v{LN}\ns_and_b32 s{sT0}, s{sW}, 1\ns_lshl_b32 s{sT0}, s{sT0}, 2\nv_or_b32 v{TMP+4}, s{sT0}, v{TMP+2}\nv_lshlrev_b32 v{TMP+4}, 1, v{TMP+4}\nv_xor_b32 v{TMP+4}, v{TMP+4}, v{TMP+3}")
    A(f"v_lshlrev_b32 v{TMP+5}, 13, v{TMP+2}\nv_lshl_add_u32 v{VQ}, v{TMP+4}, 4, v{TMP+5}\nv_add_u32 v{VQ+1}, {4*8192-1024}, v{VQ}\nv_add_u32 v{VQ+2}, 16384, v{VK}")
    sQO, sWQQ, sXH1, sXL1 = 56, 60, 84, 85
    rsrc = {0: "0", 1: f"s{sH}", 2: f"s{sI}"}[QROT if QROT < 3 else 1]
    if QROT == 3: A(f"s_add_u32 s{sT1}, s{sH}, s{sI}"); rsrc = f"s{sT1}"
    for q in range(4):
        A(f"s_add_u32 s{sT0}, {rsrc}, {q}\ns_and_b32 s{sT0}, s{sT0}, 3\ns_lshl_b32 s{sQO+q}, s{sT0}, 12\ns_lshl_b32 s{sT0}, s{sT0}, 20\ns_add_u32 s{sWQQ+q}, s{sWQ}, s{sT0}")
    def w_loads(n):
        return [[f"s_add_u32 m0, s{sMQ}, {n*8192}", f"s_add_u32 s{sT0}, s{sWQQ+n//4}, {(n%4)*32*8192}"],
                [f"buffer_load_dwordx4 v{VQ}, s[{S_T}:{S_T+3}], s{sT0} offen lds"], [f"buffer_load_dwordx4 v{VQ+1}, s[{S_T}:{S_T+3}], s{sT0} offen offset:1024 lds"]]
    def adst(n, t):
        if n < 8: return ar(AR+n*16+4*t, 4)
        if n < 12: return ar((n-8)*16+4*t, 4)
        if n < 14: return ar(96+(n-12)*16+4*t, 4)
        return vr(144+(n-14)*16+4*t, 4)
    def a_loads(n):
        o = []
        if n % 4 == 0: o.append([f"s_add_u32 s{sXH1}, s{sXH}, s{sQO+n//4}", f"s_add_u32 s{sXL1}, s{sXL}, s{sQO+n//4}"])
        for t in range(4):
            o.append([f"buffer_load_dwordx4 {adst(n,t)}, v{VQ+2 if t % 2 else VK}, s[{S_WS}:{S_WS+3}], s{sXH1 if t < 2 else sXL1} offen offset:{(n%4)*1024} sc1"])
        return o
    seq = []
    def mk(tags):
        its = []
        for k, n in tags:
            x = (w_loads if k == 'W' else a_loads)(n)
            for it in x:
                for y in it:
                    if y.startswith('buffer'): seq.append((k, n))
            its += x
        return its
    def vmq(tag): return min(63, len(seq) - 1 - max(i for i, e in enumerate(seq) if e == tag))
    def vmq_(tag): return len(seq) - 1 - max(i for i, e in enumerate(seq) if e == tag)
    for it in mk([('W',0),('A',0),('W',1),('W',2),('A',1),('A',2),('W',3),('W',4),('A',3)]):
        for x in it: A(x)
    A(f"v_lshlrev_b32 v{TMP+4}, 2, v{TMP+3}")
    A(f"v_bfe_u32 v{TMP+3}, v{LN}, 2, 2\nv_and_b32 v{TMP+6}, 1, v{TMP+2}\nv_lshl_add_u32 v{TMP+6}, v{TMP+6}, 2, v{TMP+3}\nv_lshl_add_u32 v{TMP+3}, v{TMP+2}, 3, v{TMP+3}\nv_lshlrev_b32 v{TMP+3}, 8, v{TMP+3}")
    A(f"v_and_b32 v{TMP+5}, 3, v{LN}\nv_lshl_add_u32 v{TMP+3}, v{TMP+5}, 3, v{TMP+3}\nv_add_u32 v{TMP+3}, 0x8000, v{TMP+3}")
    for nb in range(8): A(f"v_xor_b32 v{TMP+5}, {nb}, v{TMP+6}\nv_lshl_add_u32 v{TRQ+nb}, v{TMP+5}, 5, v{TMP+3}")
    def qtr(nb, ks): return [f"ds_read_b64_tr_b16 {ar(KF+4*nb,2)}, v{TRQ+nb} offset:{(ks%8)*8192}", f"ds_read_b64_tr_b16 {ar(KF+4*nb+2,2)}, v{TRQ+nb} offset:{(ks%8)*8192+1024}"]
    A(f"s_and_b32 s{sT0}, s2, 15\ns_lshl_b32 s{sT0}, s{sT0}, 2\nv_mov_b32 v{TMP+5}, s{sT0}\nv_mov_b32 v{TMP+6}, 1")
    A(f"s_waitcnt vmcnt({len(seq)})\ns_barrier")
    A(f"s_cmp_lg_u32 s{sW}, 0\ns_cbranch_scc1 K2_NOSIG\ns_mov_b64 exec, 1\nbuffer_atomic_add v{TMP+6}, v{TMP+5}, s[80:83], 0 offen sc1\ns_mov_b64 exec, -1")
    A.label("K2_NOSIG")
    A(f"s_waitcnt vmcnt({vmq(('W', 0))})\ns_barrier")
    for nb in range(8):
        for x in qtr(nb, 0): A(x)
    A("s_waitcnt lgkmcnt(12)")
    plan = {0: [('A',4),('W',5),('A',5),('W',6),('A',6),('W',7)], 1: [('A',7),('W',8),('A',8),('W',9),('A',9),('W',10)], 2: [('A',10),('W',11),('A',11),('W',12),('A',12),('W',13)],
            3: [('A',13),('W',14),('A',14),('W',15),('A',15)]}
    if QPLAN == '2':
        plan = {0: [('A',4),('W',5),('W',6),('A',5),('W',7),('W',8)], 1: [('A',6),('W',9),('W',10),('A',7),('W',11),('W',12)], 2: [('A',8),('W',13),('W',14),('W',15),('A',9)]}
        for k_ in range(3, 9): plan[k_] = [('A', k_+7)]
    if QPLAN == '3':
        plan = {0: [('A',4),('W',5),('A',5)], 1: [('W',6),('A',6),('W',7),('A',7)], 2: [('W',8),('A',8),('W',9),('A',9)], 3: [('W',10),('A',10),('W',11)], 4: [('A',11),('W',12),('W',13)], 5: [('A',12),('W',14),('W',15)], 6: [('A',13)], 7: [('A',14)], 8: [('A',15)]}
    bars = {0: 2, 2: 4, 4: 8, 8: 15}
    NEGV = TMP+8
    misc = [f"v_mov_b32 v{r}, 0" for r in list(range(CX, CX+32)) + list(range(LS, LS+8))]
    misc += [f"v_and_b32 v{TMP+2}, 15, v{LN}", f"v_lshrrev_b32 v{TMP+3}, 4, v{LN}", f"v_lshlrev_b32 v{TMP+3}, 2, v{TMP+3}", f"v_sub_u32 v{TMP+2}, v{TMP+2}, v{TMP+3}"]
    misc += [f"v_cmp_le_i32 s[{sMK+2*i}:{sMK+2*i+1}], {i}, v{TMP+2}" for i in range(4)] + [f"v_mov_b32 v{NEGV}, s{sNEG}", "s_nop 0"]
    def q_epi(ds):
        o = []
        for qb in range(4):
            tq = QT + 4*(qb % 2)
            for h in range(2):
                b_ = Oreg(2*ds+h, qb)
                o += [f"v_mul_f32 v{b_+i}, v{b_+i}, v{E+qb}" for i in range(4)]
                o += [f"v_cvt_pk_bf16_f32 v{tq+2*h}, v{b_}, v{b_+1}", f"v_cvt_pk_bf16_f32 v{tq+2*h+1}, v{b_+2}, v{b_+3}"]
            o += [f"v_accvgpr_write_b32 a{AQ+(qb*4+ds)*4+i}, v{tq+i}" for i in range(4)]
        return o
    QT = P01[0]
    e0 = q_epi(0)
    for ks in range(16):
        gaps = {}
        def G(m): return gaps.setdefault(m, [])
        pre = [f"s_waitcnt vmcnt({vmq(('A', ks))})"]
        if ks in bars: G(0).extend([f"s_waitcnt vmcnt({vmq(('W', bars[ks]))})", "s_barrier"])
        if ks == PCHK + 2: G(0).extend(["s_waitcnt vmcnt(0)", "s_barrier"])
        elif ks == 12: G(0).append("s_barrier")
        if ks == 15: G(0).extend([f"s_waitcnt vmcnt({4 if PCHK >= 10 else 0})", "s_barrier"])
        if ks == PCHK:
            G(1).extend([f"s_waitcnt vmcnt({len(seq) - pollpos})", f"v_cmp_ne_u32 vcc, 16, v{TMP+7}"])
            G(4).extend([f"s_cmp_lg_u32 s{sW}, 0", "s_cbranch_scc1 K2_NOINV", "s_cbranch_vccnz K2_KSPIN", "K2_KSPIN_B:", "buffer_inv sc1", "K2_NOINV:"] + (["s_memrealtime s[68:69]"] if asmlib.STAMP else []))
            spin("K2_KSPIN", TMP+7, TMP+4, 0, 16)
        its = mk(plan.get(ks, []))
        if ks == PCHK - 2:
            its.append([f"s_cmp_lg_u32 s{sW}, 0", "s_cbranch_scc1 K2_NOPOLL", f"buffer_load_dword v{TMP+7}, v{TMP+4}, s[80:83], 0 offen sc1", "K2_NOPOLL:"]); pollpos = len(seq)
        if ks == 6:
            for qb in range(4):
                its.append([f"buffer_load_dword v{E+qb}, v{TMP+4}, s[{S_WS}:{S_WS+3}], s{sP if qb < 2 else sCNT} offen offset:{(qb%2)*64} sc1"]); seq.append(('S', 0))
        for c in {PCHK+2: (0, 1), PCHK+3: (2,), PCHK+4: (3,)}.get(ks, ()):
            p_, d_, po_ = dma_group(c)
            if c < 2:
                lab = U("KS")
                its += [[f"s_cmp_ge_u32 s{sW}, 2", f"s_cbranch_scc1 {lab}"] + p_ + ["s_nop 0"] + d_ + [lab + ":"] + po_]
            else:
                its += [p_] + [[x] for x in d_] + [po_]
                seq += [('KV', c)]*4
        if ks in (13, 14): its += [misc[(ks-13)*26+2*k:(ks-13)*26+2*k+2] for k in range(13)]
        if ks == 15: its += [[vread(2*k, 2), vread(2*k+1, 2)] for k in range(4)]
        m = 1 if ks != PCHK else 5
        for it in its:
            G(m).extend(it)
            m = m + 1 if (m + 1) % 4 != 3 else m + 2
        if ks == 15:
            while m < 31:
                G(m).extend(e0[:2]); e0 = e0[2:]
                m = m + 1 if (m + 1) % 4 != 3 else m + 2
        assert m < 33, m
        if ks < 15:
            for grp in range(1, 8, 2): G(grp*4+2).append("s_waitcnt lgkmcnt(10)")
        else:
            G(6).append("s_waitcnt lgkmcnt(8)"); G(14).append("s_waitcnt lgkmcnt(11)")
        for x in pre: A(x)
        for nb in range(8):
            for t in range(4):
                d = Oreg(nb, t)
                A(f"{MF} {vr(d,4)}, {ar(KF+4*nb,4)}, {adst(ks,t)}, {'0' if ks == 0 else vr(d,4)}")
                if t == 3 and ks < 15:
                    if ks == 7: A(f"v_add_u32 v{TRQ+nb}, 0x10000, v{TRQ+nb}")
                    for x in qtr(nb, ks+1): A(x)
                if t == 3 and ks == 15: A(kread(nb, 0))
                for x in G(nb*4+t): A(x)
    stamp(A, 3)

    def Dpatch(q0):
        o = []
        for i in range(4): o.append(f"v_cndmask_b32 v{CXr(q0,0)+i}, v{NEGV}, v{CXr(q0,0)+i}, s[{sMK+2*i}:{sMK+2*i+1}]")
        for i in range(4): o.append(f"v_mov_b32 v{CXr(q0,1)+i}, v{NEGV}")
        for i in range(4): o.append(f"v_cndmask_b32 v{CXr(q0+1,1)+i}, v{NEGV}, v{CXr(q0+1,1)+i}, s[{sMK+2*i}:{sMK+2*i+1}]")
        return o
    def Fpatch(q0): return [f"v_mov_b32 v{CXr(q0,0)+i}, v{NEGV}" for i in range(16)]
    def patch(q0, j):
        o = []
        lD, lE = U("PD"), U("PE")
        o.append(f"s_cmp_gt_u32 s{sW}, {j}"); o.append(f"s_cbranch_scc1 {lE}")
        if j > 0:
            o.append(f"s_cmp_eq_u32 s{sW}, {j}"); o.append(f"s_cbranch_scc1 {lD}")
            o += Fpatch(q0); o.append(f"s_branch {lE}")
            o.append(lD + ":")
        o += Dpatch(q0)
        o.append(lE + ":")
        o.append("s_nop 1")
        return o


    def sm_gaps1(qs, srcpar, dstpar, look):
        g = [[] for _ in range(34)]
        src = lambda k: Sreg(qs[k//4], (k % 4)//2, srcpar) + 2*(k % 2)
        pr = lambda k: Preg(qs[k//4], dstpar) + k % 4
        for k in range(8):
            en = E + 2*((k+1) % 2); ec = E + 2*(k % 2)
            cv = f"v_cvt_pk_bf16_f32 v{pr(k)}, v{ec}, v{ec+1}"
            orr = None
            if k % 2 == 1: orr = f"v_or_b32 v{TMP}, v{pr(0)}, v{pr(1)}" if k == 1 else f"v_or3_b32 v{TMP}, v{TMP}, v{pr(k-1)}, v{pr(k)}"
            if k < 7:
                g[4*k].append(f"v_exp_f32 v{en}, v{src(k+1)}"); g[4*k+2].append(f"v_exp_f32 v{en+1}, v{src(k+1)+1}")
                g[4*k+1].append(cv)
                if orr: g[4*k+3].append(orr)
            else:
                g[28] += [cv, orr]
                g[29].append(f"v_lshl_or_b32 v{TMP}, v{TMP}, 16, v{TMP}")
                g[30].append(f"v_cmp_le_u32 vcc, s{sTHR}, v{TMP}")
                if look: g[32].append(f"v_exp_f32 v{en}, v{look[0]}"); g[33].append(f"v_exp_f32 v{en+1}, v{look[1]}")
        return g
    def lmf(qps, rows, par, czero):
        return [(f"{MF} {ar(AL+4*r,4)}, {ar(AO,4)}, {vr(Preg(qp,par),4)}, {'0' if czero else ar(AL+4*r,4)}", None) for qp, r in zip(qps, rows)]

    def sm_gaps(qs, srcpar, dstpar, look, ladd):
        g = [[] for _ in range(32)]
        lsb = LS + (0 if qs[0] == 0 else 2)
        src = lambda k: Sreg(qs[k//4], (k % 4)//2, srcpar) + 2*(k % 2)
        for k in range(8):
            if k < 7: a, b = src(k+1), src(k+1)+1
            elif look: a, b = look
            else: a = None
            en = E + 2*((k+1) % 2); ec = E + 2*(k % 2)
            if a is not None:
                g[4*k].append(f"v_exp_f32 v{en}, v{a}"); g[4*k+2].append(f"v_exp_f32 v{en+1}, v{b}")
            ls = lsb + k//4
            if k % 4 == 0:
                g[4*k+1].append(f"v_add_f32 v{ls}, v{ec}, v{ec+1}")
                lr, lsr = ladd[k//4]
                g[4*k+1].append(f"v_add_f32 v{lr}, v{lr}, v{lsr}")
            else:
                g[4*k+1].append(f"v_add_f32 v{ls}, v{ls}, v{ec}"); g[4*k+1].append(f"v_add_f32 v{ls}, v{ls}, v{ec+1}")
            g[4*k+3].append(f"v_cvt_pk_bf16_f32 v{Preg(qs[k//4], dstpar) + k % 4}, v{ec}, v{ec+1}")
        if not NOCHK:
            if CHKE:
                e_a = g[28]; adds = g[29]; e_b = g[30]
                g[28] = adds; g[29] = [f"v_max_f32 v{TMP}, v{lsb}, v{lsb+1}", f"v_cmp_lt_f32 vcc, s{sTHR}, v{TMP}"]
                g[30] = e_a; g[31] = g[31] + e_b
            else:
                g[30].append(f"v_max_f32 v{TMP}, v{lsb}, v{lsb+1}")
                g[31].append(f"v_cmp_lt_f32 vcc, s{sTHR}, v{TMP}")
        return g

    def rescale(rows, init=False):
        o = ["s_nop 7"]
        D, D2, F = TMP+1, TMP+2, TMP+3
        for r in rows:
            s0 = r['S']
            o.append(f"v_max3_f32 v{D}, v{s0}, v{s0+1}, v{s0+2}")
            o.append(f"v_max3_f32 v{D}, v{D}, v{s0+3}, v{s0+4}")
            o.append(f"v_max3_f32 v{D}, v{D}, v{s0+5}, v{s0+6}")
            o.append(f"v_max_f32 v{D}, v{D}, v{s0+7}")
            o += [f"v_mov_b32 v{D2}, v{D}", "s_nop 1", f"v_permlane16_swap_b32 v{D}, v{D2}", f"v_max_f32 v{D}, v{D}, v{D2}"]
            o += [f"v_mov_b32 v{D2}, v{D}", "s_nop 1", f"v_permlane32_swap_b32 v{D}, v{D2}", f"v_max_f32 v{D}, v{D}, v{D2}"]
            o.append(f"v_ceil_f32 v{D}, v{D}")
            if ONES: o.append(f"v_add_f32 v{D}, {hex(f32bits(BIAS))}, v{D}")
            if not init:
                o.append(f"v_max_f32 v{D}, 0, v{D}")
                o.append(f"v_exp_f32 v{F}, -v{D}")
            for b in [s0] + r['subs']:
                for i in range(8): o.append(f"v_sub_f32 v{b+i}, v{b+i}, v{D}")
            if not init:
                qb = r['qb']
                for db in range(8):
                    for i in range(4): o.append(f"v_mul_f32 v{Oreg(db,qb)+i}, v{Oreg(db,qb)+i}, v{F}")
                if ONES:
                    for i in range(4): o += [f"v_accvgpr_read_b32 v{D2}, a{AL+4*qb+i}", f"v_mul_f32 v{D2}, v{D2}, v{F}", f"v_accvgpr_write_b32 a{AL+4*qb+i}, v{D2}"]
                else: o.append(f"v_mul_f32 v{L+qb}, v{L+qb}, v{F}")
                for pr in r.get('Pscale', []):
                    o += [f"v_lshlrev_b32 v{D2}, 16, v{pr}", f"v_and_b32 v{pr}, 0xffff0000, v{pr}", f"v_mul_f32 v{D2}, v{D2}, v{F}", f"v_mul_f32 v{pr}, v{pr}, v{F}",
                          f"v_cvt_pk_bf16_f32 v{pr}, v{D2}, v{pr}"]
            if r.get('P') is not None:
                ls = r['ls']
                for k in range(4):
                    o += [f"v_exp_f32 v{E}, v{s0+2*k}", f"v_exp_f32 v{E+1}, v{s0+2*k+1}", "s_nop 0"]
                    if ONES: pass
                    elif k == 0: o.append(f"v_add_f32 v{ls}, v{E}, v{E+1}")
                    else: o += [f"v_add_f32 v{ls}, v{ls}, v{E}", f"v_add_f32 v{ls}, v{ls}, v{E+1}"]
                    o.append(f"v_cvt_pk_bf16_f32 v{r['P']+k}, v{E}, v{E+1}")
        return o
    def relook(look):
        return [f"v_exp_f32 v{E}, v{look[0]}", f"v_exp_f32 v{E+1}, v{look[1]}", "s_nop 1"] if look else ["s_nop 1"]

    def check_site(code):
        ls, lb = U("SLOW"), U("BACK")
        if not NOCHK: A(f"s_cbranch_vccnz {ls}")
        A.label(lb)
        stubs.append([ls + ":"] + code + [f"s_branch {lb}"])

    def emit_half(mf, gaps, extra, waits):
        for g in range(len(mf)):
            if g in waits: A(waits[g])
            m, rd = mf[g]
            if m: A(m)
            elif g == 28: A("s_nop 0")
            if rd: A(rd)
            ex = extra.get(g, ([], []))
            for x in ex[0]: A(x)
            for x in ex[1]: A(x)
            for x in gaps[g]: A(x)

    def H1(par, mq, ms, ku, toggleK=None, vm=None, dmas=(), noqk=False, nosm=False, last=False, fill=None, czero=False):
        n = 1 - par
        mf = []
        if noqk: mf = [(None, None)]*32
        elif mq == 4:
            for f in range(8):
                kb, ds = f//4, f % 4
                for qp in range(4):
                    d = Sreg(qp, kb, n)
                    c = vr(CXr(qp, kb), 4) if ds == 0 else vr(d, 4)
                    mf.append((f"{MF} {vr(d,4)}, {ar(KF+4*f,4)}, {ar(AQ+(qp*4+ds)*4,4)}, {c}", kread(f, ku[0]) if qp == 3 else None))
        else:
            for j in range(16):
                sel, f = j//8, j % 8
                kb, ds = f//4, f % 4
                for qb in range(2):
                    qp = 2*sel + qb
                    d = Sreg(qp, kb, n)
                    c = vr(CXr(qp, kb), 4) if ds == 0 else vr(d, 4)
                    rd = None
                    if qb == 1 and not (last and sel == 1): rd = kread(f, ku[sel])
                    mf.append((f"{MF} {vr(d,4)}, {ar(KF+4*f,4)}, {ar(AQ+(qb*4+ds)*4,4)}, {c}", rd))
        look = None if noqk else (Sreg(0, 0, n), Sreg(0, 0, n)+1)
        if nosm:
            gaps = [list(fill[2*g:2*g+2]) if fill else [] for g in range(32)]
        else:
            if ONES:
                gaps = sm_gaps1((2, 3), par, par, look); mf = list(mf) + lmf((0, 1), (0, 1), par, czero)
            else: gaps = sm_gaps((2, 3), par, par, look, [(L+0, LS+0), (L+1, LS+1)])
        extra = {}
        waits = {}
        if not noqk:
            waits[0] = "s_waitcnt lgkmcnt(8)"
            if mq == 2: waits[16] = "s_waitcnt lgkmcnt(4)"; waits[24] = "s_waitcnt lgkmcnt(4)"
        if vm is not None:
            extra[BARPOS] = ([], [f"s_waitcnt vmcnt({vm})"] + ([] if NOBAR else ["s_barrier"]))
        if toggleK is not None:
            gi = 0 if toggleK == 0 else 16
            e = extra.setdefault(gi, ([], [])); e[1].append(f"v_xor_b32 v{VK}, 0x8000, v{VK}")
        place_dmas(extra, dmas)
        emit_half(mf, gaps, extra, waits)
        if not nosm:
            rows = []
            for qq in range(2):
                qp = 2 + qq
                r = dict(S=Sreg(qp, 0, par), P=Preg(qp, par), ls=LS+2+qq)
                if ms == 4:
                    r['qb'] = qp
                    r['subs'] = ([Sreg(qp, 0, n), CXr(qp, 0)] if (mq == 4 and not noqk) else [])
                else:
                    r['qb'] = qq
                    r['subs'] = [CXr(qq, 0), CXr(qp, 0)] + ([] if noqk else [Sreg(qq, 0, n), Sreg(qp, 0, n)])
                    r['Pscale'] = [Preg(qq, par)+k for k in range(4)]
                rows.append(r)
            check_site(rescale(rows) + relook(look))

    def place_dmas(extra, dmas):
        for c, g0 in dmas:
            pre, d, post = dma_group(c)
            if ONES:
                for j in range(4): extra.setdefault(3 + 8*j, ([], []))[0].append(d[j])
                extra.setdefault(30, ([], []))[1].extend(post[:1])
                extra.setdefault(31, ([], []))[1].extend(post[1:] + dma_group(c+1)[0])
                continue
            e = extra.setdefault(g0, ([], [])); e[1].extend(pre)
            for j in range(4):
                e = extra.setdefault(g0+1+4*j if g0+1+4*j < 32 else 31, ([], [])); e[0].append(d[j])
            e = extra.setdefault(min(31, g0+2+12), ([], [])); e[1].extend(post)

    def H2(par, mp, mnext, vu, toggleV=None, dmas=(), nopv=False, nosm=False, czero=False):
        n = 1 - par
        mf = []
        if nopv: mf = [(None, None)]*32
        elif mp == 4:
            for db in range(8):
                for qp in range(4):
                    d = Oreg(db, qp)
                    mf.append((f"{MF} {vr(d,4)}, {ar(VF+4*db,4)}, {vr(Preg(qp,par),4)}, {'0' if czero else vr(d,4)}", vread(db, vu[0]) if qp == 3 else None))
        else:
            for j in range(16):
                sel, db = j//8, j % 8
                for qb in range(2):
                    d = Oreg(db, qb)
                    rd = None
                    if qb == 1 and not (nosm and sel == 1): rd = vread(db, vu[sel])
                    mf.append((f"{MF} {vr(d,4)}, {ar(VF+4*db,4)}, {vr(Preg(2*sel+qb,par),4)}, {vr(d,4)}", rd))
        look = (Sreg(2, 0, n), Sreg(2, 0, n)+1)
        lt = (L+2, L+3) if mp == 4 else (L+0, L+1)
        if nosm:
            gaps = [[] for _ in range(34)]
            if not ONES: gaps[1] = [f"v_add_f32 v{lt[0]}, v{lt[0]}, v{LS+2}", f"v_add_f32 v{lt[1]}, v{lt[1]}, v{LS+3}"]
        elif ONES: gaps = sm_gaps1((0, 1), n, n, look)
        else:
            gaps = sm_gaps((0, 1), n, n, look, [(lt[0], LS+2), (lt[1], LS+3)])
        if ONES: mf = list(mf) + (lmf((2, 3), (2, 3) if mp == 4 else (0, 1), par, czero) if not nopv else [(None, None)]*2)
        extra = {}
        waits = {}
        if not nopv:
            waits[0] = "s_waitcnt lgkmcnt(8)" if not nosm else "s_waitcnt lgkmcnt(0)"
            if mp == 2: waits[16] = "s_waitcnt lgkmcnt(4)"; waits[24] = "s_waitcnt lgkmcnt(4)" if not nosm else "s_waitcnt lgkmcnt(0)"
        if toggleV is not None:
            gi = 0 if toggleV == 0 else 16
            e = extra.setdefault(gi, ([], [])); e[1].append(f"v_xor_b32 v{VV}, 0x8000, v{VV}")
        place_dmas(extra, dmas)
        emit_half(mf, gaps, extra, waits)
        if not nosm and not nopv:
            rows = []
            for qb in range(2):
                r = dict(S=Sreg(qb, 0, n), P=Preg(qb, n), ls=LS+qb, qb=qb, subs=[CXr(qb, 0)])
                if mnext == 2: r['subs'] += [Sreg(qb+2, 0, n), CXr(qb+2, 0)]
                rows.append(r)
            check_site(rescale(rows) + relook(look))

    def hook(cond_reg, val, code):
        ls, lb = U("HOOK"), U("HB")
        A(f"s_cmp_eq_u32 s{cond_reg}, {val}\ns_cbranch_scc1 {ls}")
        A.label(lb)
        stubs.append([ls + ":"] + code + [f"s_branch {lb}"])

    hook(sI, 0, patch(2, 0))
    if ONES:
        A(f"v_mov_b32 v{TMP}, 0x3f803f80")
        for i in range(4): A(f"v_accvgpr_write_b32 a{AO+i}, v{TMP}")
    for x in e0: A(x)
    A("s_waitcnt lgkmcnt(0)")
    for ds in range(4):
        p_, d_, po_ = dma_group(4 + ds if LATEKV else 7)
        ep = q_epi(ds+1) if ds < 3 else []
        mfs = []
        for kb in range(2):
            f = kb*4 + ds
            for qp in range(4):
                d = Sreg(qp, kb, 0)
                mfs.append([f"{MF} {vr(d,4)}, {ar(KF+4*f,4)}, {ar(AQ+(qp*4+ds)*4,4)}, {vr(CXr(qp,kb),4) if ds == 0 else vr(d,4)}"] + ([kread(f, 1)] if qp == 3 else []))
        if ds == 0 or LATEKV: mfs[0] = p_ + ["s_nop 0"] + mfs[0]
        if ds == 0 or LATEKV:
            for j in range(4): mfs[1+j] = mfs[1+j] + [d_[j]]
            mfs[6] = mfs[6] + po_
        if ds == 3: A("s_nop 1")
        for k in range(8):
            for x in mfs[k]: A(x)
            for x in ep[8*k:8*k+8]: A(x)
    rows = []
    for qp in range(4): rows.append(dict(S=Sreg(qp, 0, 0), subs=[CXr(qp, 0)], P=None))
    for x in rescale(rows, init=True): A(x)
    A(f"v_exp_f32 v{E}, v{Sreg(0,0,0)}\nv_exp_f32 v{E+1}, v{Sreg(0,0,0)+1}")
    H2(1, 4, 4, None, nopv=True)
    stamp(A, 4)
    A(f"s_mov_b32 s{sCNT}, s{sI}")
    if ONES: A(dma_group(8)[0][0])
    A("s_waitcnt lgkmcnt(0)")

    def period44(r, pre=None, czero=False):
        par = r % 2
        if pre: pre()
        ku = (r+2) % 4; vu = (r+1+2) % 4
        H1(par, 4, 4, [ku], toggleK=0 if ku == 0 else None, vm=16, dmas=[(r, 8)], czero=czero)
        H2(par, 4, 4, [vu], toggleV=0 if vu == 0 else None, czero=czero)

    period44(0, pre=lambda: hook(sI, 0, patch(2, 1)), czero=True)
    A(f"s_cmp_eq_u32 s{sCNT}, 0\ns_cbranch_scc1 K2_SPECIAL_R1\ns_branch K2_LOOPA_R1")
    A(".p2align 6")
    A.label("K2_LOOPA")
    for r in range(4):
        if r == 1: A.label("K2_LOOPA_R1")
        period44(r, pre=(lambda: hook(sCNT, 1, patch(2, 0))) if r == 3 else None)
    A(f"s_sub_u32 s{sCNT}, s{sCNT}, 1\ns_cmp_lg_u32 s{sCNT}, 0\ns_cbranch_scc1 K2_LOOPA")
    A.label("K2_SPECIAL")
    for r in range(3):
        if r == 1: A.label("K2_SPECIAL_R1")
        period44(r, pre=lambda: [A(x) for x in patch(2, r+1)])
    A(f"s_cmp_lt_u32 s{sW}, 2\ns_cselect_b32 s{S_T}, s{P_WO}, s{P_WD}\ns_cselect_b32 s{S_T+1}, s{P_WO+1}, s{P_WD+1}\ns_mov_b32 s{sT0}, {1376*1024}\ns_cselect_b32 s{S_T+2}, {4096*1024}, s{sT0}")
    A(f"s_mul_i32 s{sT0}, s2, {43*128}\ns_lshl_b32 s{sT1}, s2, 14\ns_cselect_b32 s{sT0}, s{sT1}, s{sT0}".replace("s_lshl_b32 s{sT1}, s2, 14".format(sT1=sT1), f"s_mul_i32 s{sT1}, s2, 16384"))
    A(f"s_and_b32 s{sT1}, s{sW}, 1\ns_lshl_b32 s{sT1}, s{sT1}, 13\ns_add_u32 s{sT0}, s{sT0}, s{sT1}\nv_and_b32 v{TMP+7}, 0x3ff, v{VK}\nv_lshlrev_b32 v{TMP+7}, 3, v{TMP+7}")
    A(f"buffer_load_dword v{TMP+7}, v{TMP+7}, s[{S_T}:{S_T+3}], s{sT0} offen")
    if CT:
        A(f"v_and_b32 v{TMP+6}, 0x3ff, v{VK}")
        code_touch(A, "k3_kernel", "K4_END", sW, TMP+6, TMP+6, 80, lane_shift=4)
    if CTX_TOUCH:
        A(f"v_lshrrev_b32 v{TMP+6}, 8, v{VK}\nv_and_b32 v{TMP+6}, 3, v{TMP+6}\nv_lshlrev_b32 v{TMP+6}, 12, v{TMP+6}\nv_and_b32 v{TMP+5}, 0xf0, v{VK}\nv_lshl_add_u32 v{TMP+6}, v{TMP+5}, 3, v{TMP+6}")
        A(f"buffer_load_dword v{TMP+5}, v{TMP+6}, s[{S_WS}:{S_WS+3}], s{sOHI} offen\nbuffer_load_dword v{TMP+6}, v{TMP+6}, s[{S_WS}:{S_WS+3}], s{sOLO} offen")
    for i in range(16): A(f"v_mov_b32 v{CXr(2,0)+i}, v{CXr(0,0)+i}")
    hook(sI, 7, patch(0, 0) + patch(2, 1))
    A("s_nop 1")
    H1(1, 2, 4, [1, 2], vm=16, dmas=[(3, 8)])
    H2(1, 4, 2, [2])
    stamp(A, 5)
    A(f"s_lshl_b32 s{sT0}, s{sI}, 1\ns_sub_u32 s{sCNT}, 14, s{sT0}")
    def period22(r, last_qk=False):
        par = r
        ku = [3, 0] if r == 0 else [1, 2]
        vu = [3, 0] if r == 0 else [1, 2]
        c0 = 2*r
        H1(par, 2, 2, ku, toggleK=1 if r == 0 else None, vm=12, dmas=[(c0, 8)], last=last_qk)
        H2(par, 2, 2, vu, toggleV=1 if r == 0 else None, dmas=[(c0+1, 8)])
    A(f"s_cmp_eq_u32 s{sCNT}, 0\ns_cbranch_scc1 K2_TAIL")
    A(".p2align 6")
    A.label("K2_LOOPB")
    period22(0)
    hook(sCNT, 1, patch(0, 0) + patch(2, 1))
    period22(1)
    A(f"s_sub_u32 s{sCNT}, s{sCNT}, 1\ns_cmp_lg_u32 s{sCNT}, 0\ns_cbranch_scc1 K2_LOOPB")
    A.label("K2_TAIL")
    for x in patch(0, 2) + patch(2, 3): A(x)
    H1(0, 2, 2, [3, 0], toggleK=None, vm=12, last=True)
    H2(0, 2, 2, [3, 0], toggleV=1)
    H1(1, 2, 2, None, noqk=True, vm=0)
    H2(1, 2, 2, [1, 2], nosm=True)
    stamp(A, 6)
    if ONES:
        A("s_nop 7")
        for qb in range(4): A(f"v_accvgpr_read_b32 v{L+qb}, a{AL+4*qb}")
        for qb in range(4): A(f"v_rcp_f32 v{L+qb}, v{L+qb}")
    else:
        for qb in range(4):
            D, D2 = L+qb, TMP+1
            A(f"v_mov_b32 v{D2}, v{D}\ns_nop 1\nv_permlane16_swap_b32 v{D}, v{D2}\nv_add_f32 v{D}, v{D}, v{D2}")
            A(f"v_mov_b32 v{D2}, v{D}\ns_nop 1\nv_permlane32_swap_b32 v{D}, v{D2}\nv_add_f32 v{D}, v{D}, v{D2}")
            A(f"v_rcp_f32 v{D}, v{D}")
    A(f"v_and_b32 v{VK}, 0x3ff, v{VK}")
    oq = 0
    for qb in (2, 3, 0, 1):
        for ds in range(4):
            ob = S01 + 4*oq
            for h in range(2):
                b = Oreg(2*ds+h, qb)
                for i in range(4): A(f"v_mul_f32 v{b+i}, v{b+i}, v{L+qb}")
                A(f"v_cvt_pk_bf16_f32 v{ob+2*h}, v{b}, v{b+1}\nv_cvt_pk_bf16_f32 v{ob+2*h+1}, v{b+2}, v{b+3}")
            A(f"s_add_u32 s{sT0}, s{sOHI if qb < 2 else sOLO}, {ds*4096}")
            A(f"buffer_store_dwordx4 {vr(ob,4)}, v{VK}, s[{S_WS}:{S_WS+3}], s{sT0} offen offset:{(qb%2)*1024}{store_flags}")
            oq = (oq+1) % 4
    if asmlib.STAMP:
        A("s_waitcnt vmcnt(0)")
        stamp_flush(A, 0, 8, P_WS, sW)
    A.label("K2_END")
    A("s_endpgm")
    for st in stubs:
        for x in st: A(x)
    return dict(name="k12_kernel", vgpr=512, accum=256, sgpr=102, grid=256, block=256, lds=163840)
```

```python
from asmlib import *
import asmlib
from k1f import KV_BASE, A3_BASE, A3_TB64, WS_USED, MF, f32bits
import math
P_BASE = KV_BASE
P_END = P_BASE + (8 << 20)

import os
KROT = int(os.environ.get('KROT', '0'))
K3T = os.environ.get('K3T', '0') == '1'
K3S = os.environ.get('K3S', '1') == '1'
def gen_k3(A, RING=10):
    ACC = 0; AF = 64; WF = 96; RA = 128; TRA = 131; VD = 143; VL = 147; T = 148; VT = 156; DT = 157
    S_L, S_O = 8, 12
    sW, sT0, sT1, sT2, sSP, sTM, sTN, sOFF, sSTR, sM0, sTO, sTS = 16, 17, 18, 19, 20, 21, 22, 23, 24, 25, 26, 27
    P_WO, P_WD, P_WS = 32, 34, 36
    NS = 43
    TS = eval(os.environ.get('K3TS', '(4, 12, 20, 28)'))
    A(".globl k3_kernel\n.p2align 8\n.type k3_kernel,@function")
    A.label("k3_kernel")
    A("s_cmp_ge_u32 s2, 256\ns_cbranch_scc1 K3_END")
    stamp(A, 0)
    A(f"s_load_dwordx2 s[{P_WO}:{P_WO+1}], s[0:1], 40\ns_load_dwordx2 s[{P_WD}:{P_WD+1}], s[0:1], 72\ns_load_dwordx2 s[{P_WS}:{P_WS+1}], s[0:1], 96")
    A(f"v_lshrrev_b32 v{T}, 6, v0\nv_and_b32 v{T+1}, 63, v0\ns_nop 0\nv_readfirstlane_b32 s{sW}, v{T}")
    LN = T+1
    A(f"s_and_b32 s{sSP}, s2, 3\ns_lshr_b32 s{sT0}, s2, 2\ns_and_b32 s{sT0}, s{sT0}, 1\ns_lshl_b32 s{sT0}, s{sT0}, 3\ns_lshr_b32 s{sT1}, s2, 3\ns_and_b32 s{sT1}, s{sT1}, 7\ns_add_u32 s{sTM}, s{sT0}, s{sT1}\ns_lshr_b32 s{sTN}, s2, 6")
    A(f"s_mov_b32 s{S_L+3}, 0x00020000\ns_mov_b32 s{S_O+3}, 0x00020000\ns_mov_b32 s{S_O+2}, {P_END}")
    A(f"s_mul_i32 s{sT0}, s{sSP}, 43\ns_cmp_eq_u32 s{sSP}, 3\ns_cselect_b32 s{sT0}, 128, s{sT0}\ns_cselect_b32 s{sT1}, 0, s{sT0}")
    A(f"s_lshl_b32 s{sM0}, s{sW}, 12")
    A(f"v_lshlrev_b32 v{VL}, 4, v{LN}")
    code_touch(A, "k3_kernel", "K3_END", sW, LN, T+6, 80)
    A(f"s_cmp_lt_u32 s{sW}, 2\ns_cbranch_scc0 K3_WSETUP")
    A(f"s_lshl_b32 s{sT2}, s{sTM}, 1\ns_add_u32 s{sT2}, s{sT2}, s{sW}\ns_mul_i32 s{sOFF}, s{sT2}, {A3_TB64}\ns_lshl_b32 s{sT0}, s{sT0}, 12\ns_add_u32 s{sOFF}, s{sOFF}, s{sT0}\ns_add_u32 s{sOFF}, s{sOFF}, {A3_BASE}")
    A(f"s_mov_b32 s{sSTR}, 4096\ns_mov_b32 s{S_L+2}, {WS_USED}")
    for j in range(4): A(f"v_mov_b32 v{VD+j}, v{VL}")
    A(f"v_lshrrev_b32 v{T+2}, 3, v{LN}\nv_and_b32 v{T+3}, 7, v{LN}\nv_lshlrev_b32 v{T+2}, 12, v{T+2}\nv_lshl_add_u32 v{T+2}, v{T+3}, 7, v{T+2}\ns_lshl_b32 s{sT2}, s{sTN}, 10\nv_add_u32 v{VT}, s{sT2}, v{T+2}")
    A(f"s_waitcnt lgkmcnt(0)\ns_mov_b32 s{S_L}, s{P_WS}\ns_mov_b32 s{S_L+1}, s{P_WS+1}\ns_branch K3_SETUP_DONE")
    A.label("K3_WSETUP")
    A(f"s_lshl_b32 s{sOFF}, s{sT1}, 15\ns_sub_u32 s{sT2}, s{sW}, 2\ns_lshl_b32 s{sT2}, s{sT2}, 14\ns_add_u32 s{sOFF}, s{sOFF}, s{sT2}\ns_lshl_b32 s{sT2}, s{sTN}, 8\ns_add_u32 s{sOFF}, s{sOFF}, s{sT2}")
    A(f"s_mov_b32 s{sSTR}, 32768")
    A(f"v_lshrrev_b32 v{T+2}, 4, v{LN}\nv_and_b32 v{T+3}, 15, v{LN}\nv_lshlrev_b32 v{T+4}, 1, v{T+2}\nv_xor_b32 v{T+3}, v{T+3}, v{T+4}\nv_lshlrev_b32 v{T+2}, 10, v{T+2}\nv_lshl_add_u32 v{VD}, v{T+3}, 4, v{T+2}")
    A(f"v_xor_b32 v{T+2}, 128, v{VD}\nv_add_u32 v{VD+1}, 3072, v{T+2}\nv_add_u32 v{VD+2}, 6144, v{VD}\nv_add_u32 v{VD+3}, 9216, v{T+2}")
    A(f"v_bfe_u32 v{T+2}, v{LN}, 2, 3\nv_lshlrev_b32 v{T+2}, 15, v{T+2}\nv_bfe_u32 v{T+3}, v{LN}, 1, 1\nv_lshl_add_u32 v{T+2}, v{T+3}, 10, v{T+2}\nv_and_b32 v{T+3}, 1, v{LN}\nv_lshl_add_u32 v{T+2}, v{T+3}, 7, v{T+2}")
    A(f"s_and_b32 s{sT2}, s{sTM}, 7\ns_lshl_b32 s{sT2}, s{sT2}, 11\nv_add_u32 v{VT}, s{sT2}, v{T+2}")
    A(f"s_cmp_eq_u32 s{sSP}, 3\ns_mov_b32 s{sT2}, {4096*1024}\ns_cselect_b32 s{S_L+2}, {1376*1024}, s{sT2}")
    A(f"s_waitcnt lgkmcnt(0)\ns_cselect_b32 s{S_L}, s{P_WD}, s{P_WO}\ns_cselect_b32 s{S_L+1}, s{P_WD+1}, s{P_WO+1}")
    A.label("K3_SETUP_DONE")
    A(f"s_lshl_b32 s{sTS}, s{sSTR}, 3\ns_mul_i32 s{sTO}, s{sSTR}, {RING-1}\ns_add_u32 s{sTO}, s{sTO}, s{sOFF}")
    sWR = 28
    if KROT:
        A(f"s_add_u32 s{sT0}, s{sTN}, s{sTM}\ns_and_b32 s{sT0}, s{sT0}, {KROT-1}\ns_mul_i32 s{sT0}, s{sT0}, {43//KROT+1}\ns_mul_i32 s{sT1}, s{sT0}, s{sSTR}\ns_add_u32 s{sOFF}, s{sOFF}, s{sT1}\ns_sub_u32 s{sWR}, 43, s{sT0}\ns_mul_i32 s{sWR+1}, s{sSTR}, 42")
    def touch(): return [f"buffer_load_dword v{DT}, v{VT}, s[{S_L}:{S_L+3}], s{sTO} offen", f"s_add_u32 s{sTO}, s{sTO}, s{sTS}"]
    def loads(s):
        pre = [f"s_add_u32 m0, s{sM0}, {(s % RING)*16384}"]
        d = [f"buffer_load_dwordx4 v{VD+j}, s[{S_L}:{S_L+3}], s{sOFF} offen offset:{j*1024} lds" for j in range(4)]
        post = [f"s_add_u32 s{sOFF}, s{sOFF}, s{sSTR}"]
        if KROT and any(s + 1 == 43 - r*(43//KROT+1) for r in range(1, KROT)):
            post = [f"s_sub_u32 s{sT2}, s{sOFF}, s{sWR+1}", f"s_add_u32 s{sOFF}, s{sOFF}, s{sSTR}", f"s_cmp_eq_u32 s{sWR}, {s+1}", f"s_cselect_b32 s{sOFF}, s{sT2}, s{sOFF}"]
        return pre, d, post
    NPRE = RING - 1
    for s in range(3):
        pre, d, post = loads(s)
        for x in pre + ["s_nop 0"] + d + post: A(x)
    A(f"s_and_b32 s{sT0}, s{sW}, 1\ns_lshl_b32 s{sT0}, s{sT0}, 12\nv_add_u32 v{RA}, s{sT0}, v{VL}")
    A(f"v_lshrrev_b32 v{T+2}, 2, v{LN}\nv_and_b32 v{T+3}, 7, v{T+2}\nv_lshlrev_b32 v{T+2}, 8, v{T+2}\nv_and_b32 v{T+4}, 3, v{LN}\nv_lshl_add_u32 v{T+2}, v{T+4}, 3, v{T+2}\nv_add_u32 v{T+2}, 8192, v{T+2}")
    A(f"s_lshr_b32 s{sT0}, s{sW}, 1\ns_lshl_b32 s{sT0}, s{sT0}, 2\nv_xor_b32 v{T+3}, s{sT0}, v{T+3}")
    for nb in range(4): A(f"v_xor_b32 v{T+4}, {nb}, v{T+3}\nv_lshl_add_u32 v{TRA+nb}, v{T+4}, 5, v{T+2}")
    for k in range(1, 3):
        A(f"v_add_u32 v{RA+k}, {k*65536}, v{RA}")
        for nb in range(4): A(f"v_add_u32 v{TRA+4*k+nb}, {k*65536}, v{TRA+nb}")
    A(f"s_lshl_b32 s{sT0}, s{sSP}, 21\ns_lshl_b32 s{sT1}, s{sTM}, 17\ns_add_u32 s{sT0}, s{sT0}, s{sT1}\ns_lshl_b32 s{sT1}, s{sTN}, 15\ns_add_u32 s{sT0}, s{sT0}, s{sT1}\ns_lshl_b32 s{sT1}, s{sW}, 13\ns_add_u32 s{sT0}, s{sT0}, s{sT1}\ns_add_u32 s{sTM}, s{sT0}, {P_BASE}")
    A(f"s_mov_b32 s{S_O}, s{P_WS}\ns_mov_b32 s{S_O+1}, s{P_WS+1}")
    for s in range(3, NPRE):
        pre, d, post = loads(s)
        for x in pre + ["s_nop 0"] + d + post: A(x)
    def reads(s):
        sl = s % RING; hi = (sl*16384) // 65536; off = (sl*16384) % 65536
        o = []
        for k in range(4):
            o.append(f"ds_read_b64_tr_b16 {vr(WF+16*(s%2)+4*k,2)}, v{TRA+4*hi+k} offset:{off}")
            o.append(f"ds_read_b64_tr_b16 {vr(WF+16*(s%2)+4*k+2,2)}, v{TRA+4*hi+k} offset:{off+4096}")
            o.append(f"ds_read_b128 {vr(AF+16*(s%2)+4*k,4)}, v{RA+hi} offset:{off+k*1024}")
        return o
    seq = [n for n in range(NPRE) for _ in range(4)]
    def vmn(n): return len(seq) - 1 - max(i for i, e in enumerate(seq) if e == n)
    if K3T:
        for x in touch(): A(x)
        seq.append('t')
    A(f"s_waitcnt vmcnt({vmn(0)})\ns_barrier")
    stamp(A, 1)
    for x in reads(0): A(x)
    for s in range(NS):
        if s == 21: stamp(A, 2)
        extra = {}
        if K3S and s > 0 or not K3S: pass
        if not (K3S and s > 0): A("s_waitcnt lgkmcnt(0)")
        if K3S: extra[15] = ["s_waitcnt lgkmcnt(0)"]
        if s % 2 == 0:
            need = min(s+2, NS-1)
            extra[0] = [f"s_waitcnt vmcnt({vmn(need)})", "s_barrier"]
        rd = reads(s+1) if s+1 < NS else []
        for k, x in enumerate(rd):
            if K3S: extra.setdefault(1 + k//2, []).append(x)
            else: extra.setdefault(1 + k, []).insert(0, x)
        tgt = s + RING - 1
        if tgt < NS:
            pre, d, post = loads(tgt)
            if K3S:
                extra.setdefault(7, []).extend(pre)
                for j in range(4): extra.setdefault(8 + 2*j, []).append(d[j])
                extra.setdefault(14, []).extend(post)
            else:
                extra.setdefault(2, []).extend(pre)
                for j in range(4): extra.setdefault(4 + 3*j, []).append(d[j])
                extra.setdefault(14, []).extend(post)
            seq += [tgt]*4
        if K3T and s in TS:
            extra.setdefault(15, []).extend(touch()); seq.append('t')
        for nb in range(4):
            for t in range(4):
                g = nb*4 + t
                d_ = ACC + g*4
                c = "0" if s == 0 else vr(d_, 4)
                A(f"{MF} {vr(d_,4)}, {vr(WF+16*(s%2)+4*nb,4)}, {vr(AF+16*(s%2)+4*t,4)}, {c}")
                for x in extra.get(g, []): A(x)
    stamp(A, 3)
    A("s_nop 7")
    for np_ in range(2):
        A(f"s_add_u32 s{sT0}, s{sTM}, {np_*4096}")
        for t in range(4):
            ob = AF + 4*(np_*4+t)
            for h in range(2):
                b_ = ACC + ((2*np_+h)*4 + t)*4
                A(f"v_cvt_pk_bf16_f32 v{ob+2*h}, v{b_}, v{b_+1}\nv_cvt_pk_bf16_f32 v{ob+2*h+1}, v{b_+2}, v{b_+3}")
            A(f"buffer_store_dwordx4 {vr(ob,4)}, v{VL}, s[{S_O}:{S_O+3}], s{sT0} offen offset:{t*1024} sc1")
    if asmlib.STAMP:
        stamp(A, 4)
        A("s_waitcnt vmcnt(0)")
        stamp_flush(A, 2, 6, P_WS, sW)
    A.label("K3_END")
    A("s_endpgm")
    return dict(name="k3_kernel", vgpr=160, accum=160, sgpr=96, grid=256, block=256, lds=RING*16384)

def gen_k4(A):
    S_P, S_X, S_O = 8, 12, 16
    sW, sT0, sT1, sT2 = 20, 21, 22, 23
    P_X, P_OUT, P_WS = 24, 26, 28
    R = 8; XR = 72; G = 80; VL = 2; VX = 3
    A(".globl k4_kernel\n.p2align 8\n.type k4_kernel,@function")
    A.label("k4_kernel")
    A("s_cmp_ge_u32 s2, 256\ns_cbranch_scc1 K4_END")
    stamp(A, 0)
    A(f"s_load_dwordx2 s[{P_X}:{P_X+1}], s[0:1], 0\ns_load_dwordx2 s[{P_OUT}:{P_OUT+1}], s[0:1], 80\ns_load_dwordx2 s[{P_WS}:{P_WS+1}], s[0:1], 96")
    A(f"v_lshrrev_b32 v1, 6, v0\nv_and_b32 v0, 63, v0\ns_nop 0\nv_readfirstlane_b32 s{sW}, v1")
    for r in (S_P, S_X, S_O): A(f"s_mov_b32 s{r+3}, 0x00020000")
    A(f"s_mov_b32 s{S_P+2}, {P_END}\ns_mov_b32 s{S_X+2}, 0x200000\ns_mov_b32 s{S_O+2}, 0x200000")
    A(f"v_lshlrev_b32 v{VL}, 4, v0")
    A(f"s_lshl_b32 s{sT0}, s2, 13\ns_lshl_b32 s{sT1}, s{sW}, 11\ns_add_u32 s{sT0}, s{sT0}, s{sT1}\ns_add_u32 s{sT0}, s{sT0}, {P_BASE}")
    A(f"s_lshr_b32 s{sT1}, s2, 4\ns_lshl_b32 s{sT1}, s{sT1}, 17\ns_and_b32 s{sT2}, s2, 1\ns_lshl_b32 s{sT2}, s{sT2}, 16\ns_add_u32 s{sT1}, s{sT1}, s{sT2}")
    A(f"s_lshr_b32 s{sT2}, s2, 1\ns_and_b32 s{sT2}, s{sT2}, 7\ns_lshl_b32 s{sT2}, s{sT2}, 7\ns_add_u32 s{sT1}, s{sT1}, s{sT2}")
    A(f"s_lshr_b32 s{sT2}, s{sW}, 1\ns_lshl_b32 s{sT2}, s{sT2}, 6\ns_add_u32 s{sT1}, s{sT1}, s{sT2}\ns_and_b32 s{sT2}, s{sW}, 1\ns_lshl_b32 s{sT2}, s{sT2}, 15\ns_add_u32 s{sT1}, s{sT1}, s{sT2}")
    A(f"v_and_b32 v4, 15, v0\nv_lshrrev_b32 v5, 4, v0\nv_lshlrev_b32 v4, 10, v4\nv_lshl_add_u32 v4, v5, 3, v4\nv_add_u32 v{VX}, s{sT1}, v4")
    A("s_waitcnt lgkmcnt(0)")
    A(f"s_mov_b32 s{S_P}, s{P_WS}\ns_mov_b32 s{S_P+1}, s{P_WS+1}\ns_mov_b32 s{S_X}, s{P_X}\ns_mov_b32 s{S_X+1}, s{P_X+1}\ns_mov_b32 s{S_O}, s{P_OUT}\ns_mov_b32 s{S_O+1}, s{P_OUT+1}")
    A(f"s_mov_b32 s{sT2}, 16384")
    PK = 96
    for sp in (3, 0, 1, 2):
        A(f"s_add_u32 s{sT1}, s{sT0}, {sp << 21}")
        for t in range(2): A(f"buffer_load_dwordx4 {vr(PK+8*sp+4*t,4)}, v{VL}, s[{S_P}:{S_P+3}], s{sT1} offen offset:{t*1024}")
    for t in range(2):
        for h in range(2):
            A(f"buffer_load_dwordx2 {vr(XR+4*t+2*h,2)}, v{VX}, s[{S_X}:{S_X+3}], {'s%d' % sT2 if t else '0'} offen offset:{h*32}")
    def unpack(dst, src):
        for i in range(8): A(f"v_lshlrev_b32 v{dst+2*i}, 16, v{src+i}\nv_and_b32 v{dst+2*i+1}, 0xffff0000, v{src+i}")
    A("s_waitcnt vmcnt(10)")
    stamp(A, 2)
    dn = R + 48
    unpack(dn, PK+24)
    for i in range(16): A(f"v_mul_f32 v{G+i}, {hex(f32bits(-math.log2(math.e)))}, v{dn+i}")
    for i in range(16): A(f"v_exp_f32 v{G+i}, v{G+i}")
    for i in range(16): A(f"v_add_f32 v{G+i}, 1.0, v{G+i}")
    for i in range(16): A(f"v_rcp_f32 v{G+i}, v{G+i}")
    for i in range(16): A(f"v_mul_f32 v{G+i}, v{G+i}, v{dn+i}")
    A("s_waitcnt vmcnt(4)")
    stamp(A, 3)
    unpack(R, PK); unpack(R+16, PK+8); unpack(R+32, PK+16)
    for i in range(16): A(f"v_add_f32 v{R+i}, v{R+i}, v{R+16+i}")
    for i in range(16): A(f"v_add_f32 v{R+i}, v{R+i}, v{R+32+i}")
    A("s_waitcnt vmcnt(0)")
    stamp(A, 4)
    unpack(R+16, XR)
    for i in range(16): A(f"v_fmac_f32 v{R+16+i}, v{R+i}, v{G+i}")
    for i in range(8): A(f"v_cvt_pk_bf16_f32 v{R+32+i}, v{R+16+2*i}, v{R+17+2*i}")
    for t in range(2):
        for h in range(2):
            A(f"buffer_store_dwordx2 {vr(R+32+4*t+2*h,2)}, v{VX}, s[{S_O}:{S_O+3}], {'s%d' % sT2 if t else '0'} offen offset:{h*32}")
    if asmlib.STAMP:
        stamp(A, 1)
        A("s_waitcnt vmcnt(0)")
        stamp_flush(A, 3, 6, P_WS, sW)
    A.label("K4_END")
    A("s_endpgm")
    return dict(name="k4_kernel", vgpr=128, accum=128, sgpr=96, grid=256, block=256, lds=0)
```

```python
from asmlib import *
import asmlib
from k1q import KV_BASE, A3_BASE, A3_TB64, WS_USED, MF, f32bits
import math
P_BASE = KV_BASE
P_END = P_BASE + (8 << 20)

import os
KROT = int(os.environ.get('KROT', '0'))
K3T = os.environ.get('K3T', '0') == '1'
K3S = os.environ.get('K3S', '1') == '1'
def gen_k3(A, RING=10):
    ACC = 0; AF = 64; WF = 96; RA = 128; TRA = 131; VD = 143; VL = 147; T = 148; VT = 156; DT = 157
    S_L, S_O = 8, 12
    sW, sT0, sT1, sT2, sSP, sTM, sTN, sOFF, sSTR, sM0, sTO, sTS = 16, 17, 18, 19, 20, 21, 22, 23, 24, 25, 26, 27
    P_WO, P_WD, P_WS = 32, 34, 36
    NS = 43
    TS = eval(os.environ.get('K3TS', '(4, 12, 20, 28)'))
    A(".globl k3_kernel\n.p2align 8\n.type k3_kernel,@function")
    A.label("k3_kernel")
    A("s_cmp_ge_u32 s2, 256\ns_cbranch_scc1 K3_END")
    stamp(A, 0)
    A(f"s_load_dwordx2 s[{P_WO}:{P_WO+1}], s[0:1], 40\ns_load_dwordx2 s[{P_WD}:{P_WD+1}], s[0:1], 72\ns_load_dwordx2 s[{P_WS}:{P_WS+1}], s[0:1], 96")
    A(f"v_lshrrev_b32 v{T}, 6, v0\nv_and_b32 v{T+1}, 63, v0\ns_nop 0\nv_readfirstlane_b32 s{sW}, v{T}")
    LN = T+1
    A(f"s_and_b32 s{sSP}, s2, 3\ns_lshr_b32 s{sT0}, s2, 2\ns_and_b32 s{sT0}, s{sT0}, 1\ns_lshl_b32 s{sT0}, s{sT0}, 3\ns_lshr_b32 s{sT1}, s2, 3\ns_and_b32 s{sT1}, s{sT1}, 7\ns_add_u32 s{sTM}, s{sT0}, s{sT1}\ns_lshr_b32 s{sTN}, s2, 6")
    A(f"s_mov_b32 s{S_L+3}, 0x00020000\ns_mov_b32 s{S_O+3}, 0x00020000\ns_mov_b32 s{S_O+2}, {P_END}")
    A(f"s_mul_i32 s{sT0}, s{sSP}, 43\ns_cmp_eq_u32 s{sSP}, 3\ns_cselect_b32 s{sT0}, 128, s{sT0}\ns_cselect_b32 s{sT1}, 0, s{sT0}")
    A(f"s_lshl_b32 s{sM0}, s{sW}, 12")
    A(f"v_lshlrev_b32 v{VL}, 4, v{LN}")
    code_touch(A, "k3_kernel", "K3_END", sW, LN, T+6, 80)
    A(f"s_cmp_lt_u32 s{sW}, 2\ns_cbranch_scc0 K3_WSETUP")
    A(f"s_lshl_b32 s{sT2}, s{sTM}, 1\ns_add_u32 s{sT2}, s{sT2}, s{sW}\ns_mul_i32 s{sOFF}, s{sT2}, {A3_TB64}\ns_lshl_b32 s{sT0}, s{sT0}, 12\ns_add_u32 s{sOFF}, s{sOFF}, s{sT0}\ns_add_u32 s{sOFF}, s{sOFF}, {A3_BASE}")
    A(f"s_mov_b32 s{sSTR}, 4096\ns_mov_b32 s{S_L+2}, {WS_USED}")
    for j in range(4): A(f"v_mov_b32 v{VD+j}, v{VL}")
    A(f"v_lshrrev_b32 v{T+2}, 3, v{LN}\nv_and_b32 v{T+3}, 7, v{LN}\nv_lshlrev_b32 v{T+2}, 12, v{T+2}\nv_lshl_add_u32 v{T+2}, v{T+3}, 7, v{T+2}\ns_lshl_b32 s{sT2}, s{sTN}, 10\nv_add_u32 v{VT}, s{sT2}, v{T+2}")
    A(f"s_waitcnt lgkmcnt(0)\ns_mov_b32 s{S_L}, s{P_WS}\ns_mov_b32 s{S_L+1}, s{P_WS+1}\ns_branch K3_SETUP_DONE")
    A.label("K3_WSETUP")
    A(f"s_lshl_b32 s{sOFF}, s{sT1}, 15\ns_sub_u32 s{sT2}, s{sW}, 2\ns_lshl_b32 s{sT2}, s{sT2}, 14\ns_add_u32 s{sOFF}, s{sOFF}, s{sT2}\ns_lshl_b32 s{sT2}, s{sTN}, 8\ns_add_u32 s{sOFF}, s{sOFF}, s{sT2}")
    A(f"s_mov_b32 s{sSTR}, 32768")
    A(f"v_lshrrev_b32 v{T+2}, 4, v{LN}\nv_and_b32 v{T+3}, 15, v{LN}\nv_lshlrev_b32 v{T+4}, 1, v{T+2}\nv_xor_b32 v{T+3}, v{T+3}, v{T+4}\nv_lshlrev_b32 v{T+2}, 10, v{T+2}\nv_lshl_add_u32 v{VD}, v{T+3}, 4, v{T+2}")
    A(f"v_xor_b32 v{T+2}, 128, v{VD}\nv_add_u32 v{VD+1}, 3072, v{T+2}\nv_add_u32 v{VD+2}, 6144, v{VD}\nv_add_u32 v{VD+3}, 9216, v{T+2}")
    A(f"v_bfe_u32 v{T+2}, v{LN}, 2, 3\nv_lshlrev_b32 v{T+2}, 15, v{T+2}\nv_bfe_u32 v{T+3}, v{LN}, 1, 1\nv_lshl_add_u32 v{T+2}, v{T+3}, 10, v{T+2}\nv_and_b32 v{T+3}, 1, v{LN}\nv_lshl_add_u32 v{T+2}, v{T+3}, 7, v{T+2}")
    A(f"s_and_b32 s{sT2}, s{sTM}, 7\ns_lshl_b32 s{sT2}, s{sT2}, 11\nv_add_u32 v{VT}, s{sT2}, v{T+2}")
    A(f"s_cmp_eq_u32 s{sSP}, 3\ns_mov_b32 s{sT2}, {4096*1024}\ns_cselect_b32 s{S_L+2}, {1376*1024}, s{sT2}")
    A(f"s_waitcnt lgkmcnt(0)\ns_cselect_b32 s{S_L}, s{P_WD}, s{P_WO}\ns_cselect_b32 s{S_L+1}, s{P_WD+1}, s{P_WO+1}")
    A.label("K3_SETUP_DONE")
    A(f"s_lshl_b32 s{sTS}, s{sSTR}, 3\ns_mul_i32 s{sTO}, s{sSTR}, {RING-1}\ns_add_u32 s{sTO}, s{sTO}, s{sOFF}")
    sWR = 28
    if KROT:
        A(f"s_add_u32 s{sT0}, s{sTN}, s{sTM}\ns_and_b32 s{sT0}, s{sT0}, {KROT-1}\ns_mul_i32 s{sT0}, s{sT0}, {43//KROT+1}\ns_mul_i32 s{sT1}, s{sT0}, s{sSTR}\ns_add_u32 s{sOFF}, s{sOFF}, s{sT1}\ns_sub_u32 s{sWR}, 43, s{sT0}\ns_mul_i32 s{sWR+1}, s{sSTR}, 42")
    def touch(): return [f"buffer_load_dword v{DT}, v{VT}, s[{S_L}:{S_L+3}], s{sTO} offen", f"s_add_u32 s{sTO}, s{sTO}, s{sTS}"]
    def loads(s):
        pre = [f"s_add_u32 m0, s{sM0}, {(s % RING)*16384}"]
        d = [f"buffer_load_dwordx4 v{VD+j}, s[{S_L}:{S_L+3}], s{sOFF} offen offset:{j*1024} lds" for j in range(4)]
        post = [f"s_add_u32 s{sOFF}, s{sOFF}, s{sSTR}"]
        if KROT and any(s + 1 == 43 - r*(43//KROT+1) for r in range(1, KROT)):
            post = [f"s_sub_u32 s{sT2}, s{sOFF}, s{sWR+1}", f"s_add_u32 s{sOFF}, s{sOFF}, s{sSTR}", f"s_cmp_eq_u32 s{sWR}, {s+1}", f"s_cselect_b32 s{sOFF}, s{sT2}, s{sOFF}"]
        return pre, d, post
    NPRE = RING - 1
    for s in range(3):
        pre, d, post = loads(s)
        for x in pre + ["s_nop 0"] + d + post: A(x)
    A(f"s_and_b32 s{sT0}, s{sW}, 1\ns_lshl_b32 s{sT0}, s{sT0}, 12\nv_add_u32 v{RA}, s{sT0}, v{VL}")
    A(f"v_lshrrev_b32 v{T+2}, 2, v{LN}\nv_and_b32 v{T+3}, 7, v{T+2}\nv_lshlrev_b32 v{T+2}, 8, v{T+2}\nv_and_b32 v{T+4}, 3, v{LN}\nv_lshl_add_u32 v{T+2}, v{T+4}, 3, v{T+2}\nv_add_u32 v{T+2}, 8192, v{T+2}")
    A(f"s_lshr_b32 s{sT0}, s{sW}, 1\ns_lshl_b32 s{sT0}, s{sT0}, 2\nv_xor_b32 v{T+3}, s{sT0}, v{T+3}")
    for nb in range(4): A(f"v_xor_b32 v{T+4}, {nb}, v{T+3}\nv_lshl_add_u32 v{TRA+nb}, v{T+4}, 5, v{T+2}")
    for k in range(1, 3):
        A(f"v_add_u32 v{RA+k}, {k*65536}, v{RA}")
        for nb in range(4): A(f"v_add_u32 v{TRA+4*k+nb}, {k*65536}, v{TRA+nb}")
    A(f"s_lshl_b32 s{sT0}, s{sSP}, 21\ns_lshl_b32 s{sT1}, s{sTM}, 17\ns_add_u32 s{sT0}, s{sT0}, s{sT1}\ns_lshl_b32 s{sT1}, s{sTN}, 15\ns_add_u32 s{sT0}, s{sT0}, s{sT1}\ns_lshl_b32 s{sT1}, s{sW}, 13\ns_add_u32 s{sT0}, s{sT0}, s{sT1}\ns_add_u32 s{sTM}, s{sT0}, {P_BASE}")
    A(f"s_mov_b32 s{S_O}, s{P_WS}\ns_mov_b32 s{S_O+1}, s{P_WS+1}")
    for s in range(3, NPRE):
        pre, d, post = loads(s)
        for x in pre + ["s_nop 0"] + d + post: A(x)
    def reads(s):
        sl = s % RING; hi = (sl*16384) // 65536; off = (sl*16384) % 65536
        o = []
        for k in range(4):
            o.append(f"ds_read_b64_tr_b16 {vr(WF+16*(s%2)+4*k,2)}, v{TRA+4*hi+k} offset:{off}")
            o.append(f"ds_read_b64_tr_b16 {vr(WF+16*(s%2)+4*k+2,2)}, v{TRA+4*hi+k} offset:{off+4096}")
            o.append(f"ds_read_b128 {vr(AF+16*(s%2)+4*k,4)}, v{RA+hi} offset:{off+k*1024}")
        return o
    seq = [n for n in range(NPRE) for _ in range(4)]
    def vmn(n): return len(seq) - 1 - max(i for i, e in enumerate(seq) if e == n)
    if K3T:
        for x in touch(): A(x)
        seq.append('t')
    A(f"s_waitcnt vmcnt({vmn(0)})\ns_barrier")
    stamp(A, 1)
    for x in reads(0): A(x)
    for s in range(NS):
        if s == 21: stamp(A, 2)
        extra = {}
        if K3S and s > 0 or not K3S: pass
        if not (K3S and s > 0): A("s_waitcnt lgkmcnt(0)")
        if K3S: extra[15] = ["s_waitcnt lgkmcnt(0)"]
        if s % 2 == 0:
            need = min(s+2, NS-1)
            extra[0] = [f"s_waitcnt vmcnt({vmn(need)})", "s_barrier"]
        rd = reads(s+1) if s+1 < NS else []
        for k, x in enumerate(rd):
            if K3S: extra.setdefault(1 + k//2, []).append(x)
            else: extra.setdefault(1 + k, []).insert(0, x)
        tgt = s + RING - 1
        if tgt < NS:
            pre, d, post = loads(tgt)
            if K3S:
                extra.setdefault(7, []).extend(pre)
                for j in range(4): extra.setdefault(8 + 2*j, []).append(d[j])
                extra.setdefault(14, []).extend(post)
            else:
                extra.setdefault(2, []).extend(pre)
                for j in range(4): extra.setdefault(4 + 3*j, []).append(d[j])
                extra.setdefault(14, []).extend(post)
            seq += [tgt]*4
        if K3T and s in TS:
            extra.setdefault(15, []).extend(touch()); seq.append('t')
        for nb in range(4):
            for t in range(4):
                g = nb*4 + t
                d_ = ACC + g*4
                c = "0" if s == 0 else vr(d_, 4)
                A(f"{MF} {vr(d_,4)}, {vr(WF+16*(s%2)+4*nb,4)}, {vr(AF+16*(s%2)+4*t,4)}, {c}")
                for x in extra.get(g, []): A(x)
    stamp(A, 3)
    A("s_nop 7")
    for np_ in range(2):
        A(f"s_add_u32 s{sT0}, s{sTM}, {np_*4096}")
        for t in range(4):
            ob = AF + 4*(np_*4+t)
            for h in range(2):
                b_ = ACC + ((2*np_+h)*4 + t)*4
                A(f"v_cvt_pk_bf16_f32 v{ob+2*h}, v{b_}, v{b_+1}\nv_cvt_pk_bf16_f32 v{ob+2*h+1}, v{b_+2}, v{b_+3}")
            A(f"buffer_store_dwordx4 {vr(ob,4)}, v{VL}, s[{S_O}:{S_O+3}], s{sT0} offen offset:{t*1024} sc1")
    if asmlib.STAMP:
        stamp(A, 4)
        A("s_waitcnt vmcnt(0)")
        stamp_flush(A, 2, 6, P_WS, sW)
    A.label("K3_END")
    A("s_endpgm")
    return dict(name="k3_kernel", vgpr=160, accum=160, sgpr=96, grid=256, block=256, lds=RING*16384)

def gen_k4(A):
    S_P, S_X, S_O = 8, 12, 16
    sW, sT0, sT1, sT2 = 20, 21, 22, 23
    P_X, P_OUT, P_WS = 24, 26, 28
    R = 8; XR = 72; G = 80; VL = 2; VX = 3
    A(".globl k4_kernel\n.p2align 8\n.type k4_kernel,@function")
    A.label("k4_kernel")
    A("s_cmp_ge_u32 s2, 256\ns_cbranch_scc1 K4_END")
    stamp(A, 0)
    A(f"s_load_dwordx2 s[{P_X}:{P_X+1}], s[0:1], 0\ns_load_dwordx2 s[{P_OUT}:{P_OUT+1}], s[0:1], 80\ns_load_dwordx2 s[{P_WS}:{P_WS+1}], s[0:1], 96")
    A(f"v_lshrrev_b32 v1, 6, v0\nv_and_b32 v0, 63, v0\ns_nop 0\nv_readfirstlane_b32 s{sW}, v1")
    for r in (S_P, S_X, S_O): A(f"s_mov_b32 s{r+3}, 0x00020000")
    A(f"s_mov_b32 s{S_P+2}, {P_END}\ns_mov_b32 s{S_X+2}, 0x200000\ns_mov_b32 s{S_O+2}, 0x200000")
    A(f"v_lshlrev_b32 v{VL}, 4, v0")
    A(f"s_lshl_b32 s{sT0}, s2, 13\ns_lshl_b32 s{sT1}, s{sW}, 11\ns_add_u32 s{sT0}, s{sT0}, s{sT1}\ns_add_u32 s{sT0}, s{sT0}, {P_BASE}")
    A(f"s_lshr_b32 s{sT1}, s2, 4\ns_lshl_b32 s{sT1}, s{sT1}, 17\ns_and_b32 s{sT2}, s2, 1\ns_lshl_b32 s{sT2}, s{sT2}, 16\ns_add_u32 s{sT1}, s{sT1}, s{sT2}")
    A(f"s_lshr_b32 s{sT2}, s2, 1\ns_and_b32 s{sT2}, s{sT2}, 7\ns_lshl_b32 s{sT2}, s{sT2}, 7\ns_add_u32 s{sT1}, s{sT1}, s{sT2}")
    A(f"s_lshr_b32 s{sT2}, s{sW}, 1\ns_lshl_b32 s{sT2}, s{sT2}, 6\ns_add_u32 s{sT1}, s{sT1}, s{sT2}\ns_and_b32 s{sT2}, s{sW}, 1\ns_lshl_b32 s{sT2}, s{sT2}, 15\ns_add_u32 s{sT1}, s{sT1}, s{sT2}")
    A(f"v_and_b32 v4, 15, v0\nv_lshrrev_b32 v5, 4, v0\nv_lshlrev_b32 v4, 10, v4\nv_lshl_add_u32 v4, v5, 3, v4\nv_add_u32 v{VX}, s{sT1}, v4")
    A("s_waitcnt lgkmcnt(0)")
    A(f"s_mov_b32 s{S_P}, s{P_WS}\ns_mov_b32 s{S_P+1}, s{P_WS+1}\ns_mov_b32 s{S_X}, s{P_X}\ns_mov_b32 s{S_X+1}, s{P_X+1}\ns_mov_b32 s{S_O}, s{P_OUT}\ns_mov_b32 s{S_O+1}, s{P_OUT+1}")
    A(f"s_mov_b32 s{sT2}, 16384")
    PK = 96
    for sp in (3, 0, 1, 2):
        A(f"s_add_u32 s{sT1}, s{sT0}, {sp << 21}")
        for t in range(2): A(f"buffer_load_dwordx4 {vr(PK+8*sp+4*t,4)}, v{VL}, s[{S_P}:{S_P+3}], s{sT1} offen offset:{t*1024}")
    for t in range(2):
        for h in range(2):
            A(f"buffer_load_dwordx2 {vr(XR+4*t+2*h,2)}, v{VX}, s[{S_X}:{S_X+3}], {'s%d' % sT2 if t else '0'} offen offset:{h*32}")
    def unpack(dst, src):
        for i in range(8): A(f"v_lshlrev_b32 v{dst+2*i}, 16, v{src+i}\nv_and_b32 v{dst+2*i+1}, 0xffff0000, v{src+i}")
    A("s_waitcnt vmcnt(10)")
    stamp(A, 2)
    dn = R + 48
    unpack(dn, PK+24)
    for i in range(16): A(f"v_mul_f32 v{G+i}, {hex(f32bits(-math.log2(math.e)))}, v{dn+i}")
    for i in range(16): A(f"v_exp_f32 v{G+i}, v{G+i}")
    for i in range(16): A(f"v_add_f32 v{G+i}, 1.0, v{G+i}")
    for i in range(16): A(f"v_rcp_f32 v{G+i}, v{G+i}")
    for i in range(16): A(f"v_mul_f32 v{G+i}, v{G+i}, v{dn+i}")
    A("s_waitcnt vmcnt(4)")
    stamp(A, 3)
    unpack(R, PK); unpack(R+16, PK+8); unpack(R+32, PK+16)
    for i in range(16): A(f"v_add_f32 v{R+i}, v{R+i}, v{R+16+i}")
    for i in range(16): A(f"v_add_f32 v{R+i}, v{R+i}, v{R+32+i}")
    A("s_waitcnt vmcnt(0)")
    stamp(A, 4)
    unpack(R+16, XR)
    for i in range(16): A(f"v_fmac_f32 v{R+16+i}, v{R+i}, v{G+i}")
    for i in range(8): A(f"v_cvt_pk_bf16_f32 v{R+32+i}, v{R+16+2*i}, v{R+17+2*i}")
    for t in range(2):
        for h in range(2):
            A(f"buffer_store_dwordx2 {vr(R+32+4*t+2*h,2)}, v{VX}, s[{S_O}:{S_O+3}], {'s%d' % sT2 if t else '0'} offen offset:{h*32}")
    if asmlib.STAMP:
        stamp(A, 1)
        A("s_waitcnt vmcnt(0)")
        stamp_flush(A, 3, 6, P_WS, sW)
    A.label("K4_END")
    A("s_endpgm")
    return dict(name="k4_kernel", vgpr=128, accum=128, sgpr=96, grid=256, block=256, lds=0)
```

```python
from asmlib import *
import asmlib
import math

import os
ACT_TOUCH = os.environ.get('ACT_TOUCH', '0') == '1'
W_TOUCH = os.environ.get('W_TOUCH', '0') == '1'
XFIRST = os.environ.get('XFIRST', '1') == '1'
KV_TOUCH = os.environ.get('KV_TOUCH', '0') == '1'
NOST = os.environ.get('NOST', '0') == '1'
SFD = os.environ.get('SFD', 'sc1')
WBL2 = os.environ.get('WBL2', '0') == '1'
HST = os.environ.get('HST', '0') == '1'
WEARLY = os.environ.get('WEARLY', '0') == '1'
WQ_TOUCH = os.environ.get('WQ_TOUCH', '1') == '1'
CODE_TOUCH = os.environ.get('CODE_TOUCH', '1') == '1'
CODE_TOUCH2 = os.environ.get('CODE_TOUCH2', '1') == '1'
XSP = os.environ.get('XSP', '1') == '1'
PART = os.environ.get('PART', 'A')
B4 = os.environ.get('B4', '0') == '1'
MAP48 = os.environ.get('MAP48', '1') == '1'
CHAIN = os.environ.get('CHAIN', '1') == '1'
MIX = os.environ.get('MIX', '1') == '1'
XORD = os.environ.get('XORD', '0') == '1'
LGK = os.environ.get('LGK', '1') == '1'
EXACT = os.environ.get('EXACT', '1') == '1'
ROT = os.environ.get('ROT', '1') == '1'
WS_OFF = int(os.environ.get('WS_OFF', '0')) << 20
KV_BASE = WS_OFF + (1 << 20)
A3_BASE = WS_OFF + (33 << 20)
A3_TB64 = 171 * 4096
XC_BASE = WS_OFF + (56 << 20)
SCQ_BASE = WS_OFF + (58 << 20)
P2_BASE = WS_OFF + (60 << 20)
CNT_BASE = WS_OFF + (59 << 20)
WS_USED = WS_OFF + (77 << 20)
MF = "v_mfma_f32_16x16x32_bf16"
CSCALE = math.log2(math.e) / math.sqrt(128.0)

def f32bits(x):
    import struct
    return struct.unpack('<I', struct.pack('<f', x))[0]

def gen_k1(A, store_flags=""):
    ACC = [8, 72]; WF = 136; TRA = 168; VW = 176; VO = 178; OUT = 184; SC = 196; RSTD = 200; T = 204; GR = 216; SUM = 232; ONESV = 240; MU = 244; DUM = 245; VLN = 247
    S_ACT, S_WA, S_WB, S_OUT = 8, 12, 16, 20
    sW, sTB, sCG, sSU, sEND, sDMA, sOB, sM0, sT0, sT1, sTYPE, sJOB2, sOBASE = 24, 25, 26, 27, 28, 29, 30, 31, 32, 33, 34, 35, 36
    sONES, sSLO, sSHI = 37, 38, 39
    P_X, P_CKV, P_WQ, P_WUK, P_WUV, P_WG, P_WU, P_WS = 40, 42, 44, 46, 48, 50, 52, 54
    sSTG = 56
    sROW = 57
    sEX2, sEX, sMK, sDQ, sROT, sOB2 = 58, 84, 88, 96, 62, 63
    S_XC = 4; sXQ = 44; sSCQ = 48; sEND2 = sJOB2; sHD = 100; sOBH = 101; sIA = 38; sIB = 39; sXS = 3; sRC = 34
    sRQ = sEX; sXR = 40

    A(".globl k12_kernel\n.p2align 8\n.type k12_kernel,@function")
    A.label("k12_kernel")
    A("s_cmp_ge_u32 s2, 256\ns_cbranch_scc1 K2_END")
    if os.environ.get('PERM'): A(f"s_mul_i32 s2, s2, {os.environ['PERM']}\ns_add_u32 s2, s2, 11\ns_lshr_b32 s3, s2, 3\ns_and_b32 s3, s3, 7\ns_xor_b32 s2, s2, s3\ns_and_b32 s2, s2, 255")
    stamp(A, 0)
    A(f"s_load_dwordx4 s[{P_X}:{P_X+3}], s[0:1], 0")
    A(f"s_load_dwordx4 s[{P_WQ}:{P_WQ+3}], s[0:1], 16")
    A(f"s_load_dwordx2 s[{P_WUV}:{P_WUV+1}], s[0:1], 32")
    A(f"s_load_dwordx2 s[{P_WG}:{P_WG+1}], s[0:1], 56")
    A(f"s_load_dwordx2 s[{P_WU}:{P_WU+1}], s[0:1], 64")
    A(f"s_load_dwordx2 s[{P_WS}:{P_WS+1}], s[0:1], 96\ns_load_dwordx2 s[78:79], s[0:1], 88\ns_mov_b32 s{sXS}, 0")
    A(f"v_lshrrev_b32 v1, 6, v0\nv_and_b32 v0, 63, v0\ns_nop 0\nv_readfirstlane_b32 s{sW}, v1")
    if MAP48:
        A(f"s_and_b32 s{sT0}, s2, 1\ns_lshl_b32 s{sT0}, s{sT0}, 2\ns_lshr_b32 s{sT1}, s2, 3\ns_and_b32 s{sTB}, s{sT1}, 3\ns_add_u32 s{sTB}, s{sTB}, s{sT0}")
        if MIX: A(f"s_and_b32 s{sT1}, s{sT1}, 28\ns_lshr_b32 s{sT0}, s2, 1\ns_and_b32 s{sT0}, s{sT0}, 3\ns_add_u32 s{sCG}, s{sT0}, s{sT1}\ns_lshr_b32 s{sRC}, s{sCG}, 2")
        else: A(f"s_lshr_b32 s{sT1}, s{sT1}, 2\ns_and_b32 s{sT0}, s2, 6\ns_lshl_b32 s{sCG}, s{sT0}, 2\ns_add_u32 s{sCG}, s{sCG}, s{sT1}\ns_mov_b32 s{sRC}, s{sCG}")
    else:
        A(f"s_and_b32 s{sT0}, s2, 7\ns_lshr_b32 s{sT1}, s2, 3\ns_and_b32 s{sTB}, s{sT1}, 7\ns_lshr_b32 s{sT1}, s{sT1}, 3")
        A(f"s_lshl_b32 s{sCG}, s{sT0}, 2\ns_add_u32 s{sCG}, s{sCG}, s{sT1}")
    A(f"s_mov_b32 s{sONES}, 0x3f803f80\ns_mov_b32 s{sSLO}, 0x00003f80\ns_mov_b32 s{sSHI}, 0x3f800000")
    A(f"s_lshl_b32 s{sSTG}, s{sW}, 13")
    A(f"s_lshl_b32 s{sROW}, s{sTB}, 18\ns_lshl_b32 s{sT0}, s{sW}, 16\ns_add_u32 s{sROW}, s{sROW}, s{sT0}")
    for r in (S_ACT, S_WA, S_WB, S_OUT): A(f"s_mov_b32 s{r+3}, 0x00020000")
    A(f"s_mov_b32 s{S_ACT+2}, 0x200000")
    if CODE_TOUCH: code_touch(A, "k12_kernel", "K1_FIN", sW, 0, DUM, 80)
    A("s_waitcnt lgkmcnt(0)")
    A(f"s_mov_b32 s{S_OUT}, s{P_WS}\ns_mov_b32 s{S_OUT+1}, s{P_WS+1}\ns_mov_b32 s{S_OUT+2}, 0")
    A(f"s_cmp_ge_u32 s2, 2\ns_cbranch_scc1 K1_NOZ\ns_cmp_lg_u32 s{sW}, 0\ns_cbranch_scc1 K1_NOZ")
    A(f"s_mov_b32 s{S_OUT+2}, {WS_USED}\ns_lshl_b32 s{sT0}, s2, 13\ns_add_u32 s{sT0}, s{sT0}, {CNT_BASE}\nv_lshlrev_b32 v4, 7, v0\nv_mov_b32 v5, 0\nbuffer_store_dword v5, v4, s[{S_OUT}:{S_OUT+3}], s{sT0} offen sc1")
    A.label("K1_NOZ")
    if PART == 'A':
        A(f"s_cmp_ge_u32 s{sCG}, 11\ns_cbranch_scc1 K1_DISP_C")
        A(f"s_mov_b32 s{S_ACT}, s{P_X}\ns_mov_b32 s{S_ACT+1}, s{P_X+1}")
        A(f"s_lshl_b32 s{sSU}, s{sCG}, 2\ns_add_u32 s{sEND}, s{sSU}, 4\ns_min_u32 s{sEND}, s{sEND}, 43\ns_mov_b32 s{sEND2}, s{sEND}\ns_branch K1_SETUP_G")
        A.label("K1_DISP_C")
        A(f"s_mov_b32 s{S_ACT}, s{P_CKV}\ns_mov_b32 s{S_ACT+1}, s{P_CKV+1}")
        A(f"s_cmp_ge_u32 s{sCG}, 22\ns_cbranch_scc1 K1_DISP_V")
        A(f"s_sub_u32 s{sT1}, s{sCG}, 11\ns_min_u32 s{sT0}, s{sT1}, 9\ns_mul_i32 s{sSU}, s{sT1}, 5\ns_add_u32 s{sSU}, s{sSU}, s{sT0}\ns_cmp_lt_u32 s{sT1}, 9\ns_cselect_b32 s{sT0}, 6, 5\ns_add_u32 s{sEND}, s{sSU}, s{sT0}\ns_mov_b32 s{sEND2}, s{sEND}\ns_branch K1_SETUP_K")
        A.label("K1_DISP_V")
        A(f"s_sub_u32 s{sT1}, s{sCG}, 22\ns_mul_i32 s{sSU}, s{sT1}, 6\ns_add_u32 s{sEND}, s{sSU}, 6\ns_cmp_lt_u32 s{sT1}, 8\ns_cselect_b32 s{sT0}, 1, 0\ns_add_u32 s{sEND2}, s{sEND}, s{sT0}")
        A(f"s_lshl_b32 s{sHD}, s{sT1}, 6\ns_add_u32 s{sHD}, s{sHD}, {61*128}\ns_lshl_b32 s{sT0}, s{sEND}, 7\ns_sub_u32 s{sHD}, s{sHD}, s{sT0}")
        A(f"s_lshl_b32 s{sT0}, s{sT1}, 1\ns_add_u32 s{sT0}, s{sT0}, 240\ns_lshr_b32 s{sOBH}, s{sT0}, 3\ns_lshl_b32 s{sOBH}, s{sOBH}, 20\ns_and_b32 s{sT0}, s{sT0}, 7\ns_lshl_b32 s{sT0}, s{sT0}, 10\ns_add_u32 s{sOBH}, s{sOBH}, s{sT0}\ns_branch K1_SETUP_V")

    else:
        A(f"s_cmp_ge_u32 s{sCG}, 10\ns_cbranch_scc1 K1_DISP_C")
        A(f"s_mov_b32 s{S_ACT}, s{P_X}\ns_mov_b32 s{S_ACT+1}, s{P_X+1}")
        A(f"s_min_u32 s{sT0}, s{sCG}, 3\ns_lshl_b32 s{sSU}, s{sCG}, 2\ns_add_u32 s{sSU}, s{sSU}, s{sT0}\ns_cmp_lt_u32 s{sCG}, 3\ns_cselect_b32 s{sT0}, 5, 4\ns_add_u32 s{sEND}, s{sSU}, s{sT0}\ns_mov_b32 s{sEND2}, s{sEND}\ns_branch K1_SETUP_G")
        A.label("K1_DISP_C")
        A(f"s_mov_b32 s{S_ACT}, s{P_CKV}\ns_mov_b32 s{S_ACT+1}, s{P_CKV+1}\ns_mov_b32 s{sHD}, 128\ns_mov_b32 s{sOBH}, 0")
        A(f"s_cmp_ge_u32 s{sCG}, 21\ns_cselect_b32 s{sT0}, 21, 10\ns_sub_u32 s{sT1}, s{sCG}, s{sT0}")
        A(f"s_min_u32 s{sT0}, s{sT1}, 9\ns_mul_i32 s{sSU}, s{sT1}, 5\ns_add_u32 s{sSU}, s{sSU}, s{sT0}\ns_cmp_lt_u32 s{sT1}, 9\ns_cselect_b32 s{sT0}, 6, 5\ns_add_u32 s{sEND}, s{sSU}, s{sT0}\ns_mov_b32 s{sEND2}, s{sEND}")
        A(f"s_cmp_ge_u32 s{sCG}, 21\ns_cbranch_scc1 K1_SETUP_V\ns_branch K1_SETUP_K")

    def dma_consts(ty):
        if ty == 'G':
            return 64, 128*2752, [(S_WA, 0, 0), (S_WA, 0, 16*2752), (S_WB, 0, 0), (S_WB, 0, 16*2752)]
        return 128, 128*8192, [(S_WA, 0, 0), (S_WA, 1, 8*8192), (S_WA, 0, 16*8192), (S_WA, 1, 24*8192)]

    def dma_slot(ty, su_rel, q, ringslot):
        cs, ss, pieces = dma_consts(ty)
        out = []
        for j, (srd, vi, ex) in enumerate(pieces):
            out.append([f"s_add_u32 m0, s{sM0}, {ringslot*16384 + j*1024}",
                        f"s_add_u32 s{sT0}, s{sDQ+q}, {su_rel*cs + ex}",
                        f"buffer_load_dwordx4 v{VW+vi}, s[{srd}:{srd+3}], s{sT0} offen lds"])
        return out

    def setup(ty):
        A.label(f"K1_SETUP_{ty}")
        ptr = {'Q': P_WQ, 'K': P_WUK, 'V': P_WUV, 'G': P_WG}[ty]
        A(f"s_mov_b32 s{S_WA}, s{ptr}\ns_mov_b32 s{S_WA+1}, s{ptr+1}")
        pb = P_WU if ty == 'G' else ptr
        A(f"s_mov_b32 s{S_WB}, s{pb}\ns_mov_b32 s{S_WB+1}, s{pb+1}")
        wsz = 512*2752 if ty == 'G' else 512*8192
        A(f"s_mov_b32 s{S_WA+2}, {wsz}\ns_mov_b32 s{S_WB+2}, {wsz}")
        cs, ss, _ = dma_consts(ty)
        pitch = 2752 if ty == 'G' else 8192
        A(f"s_mul_i32 s{sDMA}, s{sSU}, {cs}\ns_mul_i32 s{sT0}, s{sW}, {32*pitch}\ns_add_u32 s{sDMA}, s{sDMA}, s{sT0}")
        A(f"s_lshl_b32 s{sM0}, s{sW}, 12")
        A(f"s_add_u32 s{sROT}, s{sRC}, s{sTB}\ns_and_b32 s{sROT}, s{sROT}, {3 if ROT else 0}")
        for q in range(4):
            A(f"s_add_u32 s{sT0}, s{sROT}, {q}\ns_and_b32 s{sT0}, s{sT0}, 3\ns_mul_i32 s{sT1}, s{sT0}, {ss}\ns_add_u32 s{sDQ+q}, s{sDMA}, s{sT1}")
            if ty in 'KV': A(f"s_lshl_b32 s{sT0}, s{sT0}, 8\ns_add_u32 s{sRQ+q}, s{sROW}, s{sT0}")
        if ty in 'QG':
            for j, (_, _, ex) in enumerate(dma_consts(ty)[2]): A(f"s_mov_b32 s{sEX+j}, {ex}\ns_mov_b32 s{sEX2+j}, {ex+cs}")
        A("v_lshrrev_b32 v1, 4, v0\nv_bfe_u32 v2, v0, 2, 2\nv_and_b32 v3, 3, v0")
        if ty != 'G':
            A("v_lshrrev_b32 v4, 3, v0\nv_and_b32 v5, 7, v0\nv_bfe_u32 v6, v0, 4, 1\nv_lshlrev_b32 v6, 1, v6\nv_xor_b32 v5, v5, v6")
            A(f"v_lshlrev_b32 v4, 13, v4\nv_lshl_add_u32 v{VW}, v5, 4, v4\nv_xor_b32 v{VW+1}, 64, v{VW}")
            A("v_lshrrev_b32 v4, 1, v2\nv_and_b32 v5, 1, v1\nv_lshl_add_u32 v4, v5, 1, v4")
            A("v_lshl_add_u32 v5, v1, 3, v2\nv_lshlrev_b32 v5, 7, v5\nv_lshl_add_u32 v5, v3, 3, v5")
            for nb in range(4):
                A(f"v_xor_b32 v6, {nb}, v4\nv_lshl_add_u32 v{TRA+2*nb}, v6, 5, v5\nv_add_u32 v{TRA+2*nb+1}, 512, v{TRA+2*nb}")
        else:
            A(f"v_lshrrev_b32 v4, 2, v0\nv_lshrrev_b32 v6, 5, v0\nv_lshlrev_b32 v6, 1, v6\nv_xor_b32 v5, v3, v6")
            A(f"v_mul_u32_u24 v4, 2752, v4\nv_lshl_add_u32 v{VW}, v5, 4, v4\nv_mov_b32 v{VW+1}, v{VW}")
            A("v_and_b32 v4, 1, v1")
            A("v_lshl_add_u32 v5, v1, 3, v2\nv_lshlrev_b32 v5, 6, v5\nv_lshl_add_u32 v5, v3, 3, v5")
            for nb in range(4):
                A(f"v_xor_b32 v6, {nb%2}, v4\nv_lshl_add_u32 v6, v6, 5, v5\nv_add_u32 v{TRA+2*nb}, {(nb//2)*2048}, v6\nv_add_u32 v{TRA+2*nb+1}, 256, v{TRA+2*nb}")
        A("v_lshlrev_b32 v4, 4, v0")
        if ty == 'Q':
            for t in range(4): A(f"s_add_u32 s{sT0}, s{sCG}, {t}\ns_and_b32 s{sT0}, s{sT0}, {3 if ROT else 0}\ns_lshl_b32 s{sT0}, s{sT0}, 10\nv_add_u32 v{VO+t}, s{sT0}, v4" if ROT else f"v_add_u32 v{VO+t}, {t*1024}, v4")
            A(f"s_lshl_b32 s{sT0}, s{sTB}, 2\ns_add_u32 s{sT0}, s{sT0}, s{sW}\ns_mul_i32 s{sOBASE}, s{sT0}, {A3_TB64}\ns_add_u32 s{sOBASE}, s{sOBASE}, {A3_BASE}")
        elif ty == 'K':
            for t in range(4): A(f"v_add_u32 v{VO+t}, {(t//2)*16384 + (t%2)*4096}, v4")
            A(f"s_lshl_b32 s{sOBASE}, s{sTB}, 17\ns_lshl_b32 s{sT0}, s{sW}, 15\ns_add_u32 s{sOBASE}, s{sOBASE}, s{sT0}\ns_add_u32 s{sOBASE}, s{sOBASE}, {KV_BASE}")
        elif ty == 'V':
            for t in range(4): A(f"v_add_u32 v{VO+t}, {(t%2)*16384}, v4")
            A(f"s_lshl_b32 s{sOBASE}, s{sTB}, 17\ns_lshl_b32 s{sT0}, s{sW}, 15\ns_add_u32 s{sOBASE}, s{sOBASE}, s{sT0}\ns_add_u32 s{sOBASE}, s{sOBASE}, {KV_BASE+8192}")
        else:
            for t in range(4): A(f"s_add_u32 s{sT0}, s{sCG}, {t}\ns_and_b32 s{sT0}, s{sT0}, {3 if ROT else 0}\ns_lshl_b32 s{sT0}, s{sT0}, 10\nv_add_u32 v{VO+t}, s{sT0}, v4" if ROT else f"v_add_u32 v{VO+t}, {t*1024}, v4")
            A(f"s_lshl_b32 s{sT0}, s{sTB}, 2\ns_add_u32 s{sT0}, s{sT0}, s{sW}\ns_mul_i32 s{sOBASE}, s{sT0}, {A3_TB64}\ns_add_u32 s{sOBASE}, s{sOBASE}, {A3_BASE + 128*4096}")
        A(f"s_mov_b32 s{S_OUT+2}, {0 if (ty in 'QG' or NOST) else WS_USED}")
        A(f"s_branch {'K1_STAGE_X' if ty in 'QG' else 'K1_PRO_' + ty}")

    for ty in 'KVG': setup(ty)

    def wpre(ty, slots):
        for q in slots:
            for tr in dma_slot(ty, q//4, q%4, q):
                for x in tr: A(x)

    def act_touch():
        A(f"s_lshl_b32 s{sT1}, s{sTB}, 18\ns_and_b32 s{sT0}, s{sCG}, 3\ns_lshl_b32 s{sT0}, s{sT0}, 16\ns_add_u32 s{sT1}, s{sT1}, s{sT0}\ns_lshl_b32 s{sT0}, s{sW}, 14\ns_add_u32 s{sT1}, s{sT1}, s{sT0}")
        A(f"v_lshrrev_b32 v4, 3, v0\nv_and_b32 v5, 7, v0\nv_lshlrev_b32 v4, 10, v4\nv_lshl_add_u32 v4, v5, 7, v4\ns_add_u32 s{sT0}, s{sT1}, 8192")
        A(f"buffer_load_dword v{DUM}, v4, s[{S_ACT}:{S_ACT+3}], s{sT1} offen\nbuffer_load_dword v{DUM+1}, v4, s[{S_ACT}:{S_ACT+3}], s{sT0} offen")

    def touch_ops(ty):
        pitch = 2752 if ty == 'G' else 8192
        cs, _, _ = dma_consts(ty)
        o = [f"s_lshl_b32 s{sT1}, s{sTB}, 2", f"s_add_u32 s{sT1}, s{sT1}, s{sW}", f"s_mul_i32 s{sT1}, s{sT1}, {16*pitch}", f"s_mul_i32 s{sT0}, s{sSU}, {cs}", f"s_add_u32 s{sT1}, s{sT1}, s{sT0}"]
        if ty == 'G':
            o += ["v_lshrrev_b32 v4, 2, v0", "v_and_b32 v5, 3, v0", "v_mul_u32_u24 v4, 2752, v4", f"v_add_u32 v4, s{sT1}, v4", "v_and_b32 v4, 0xffffff80, v4", "v_lshl_add_u32 v4, v5, 7, v4"]
            o += [f"buffer_load_dword v{DUM+j}, v4, s[{srd}:{srd+3}], 0 offen" for j, srd in enumerate((S_WA, S_WB))]
        else:
            o += ["v_lshrrev_b32 v4, 3, v0", "v_and_b32 v5, 7, v0", "v_lshlrev_b32 v4, 13, v4", "v_lshl_add_u32 v4, v5, 7, v4"]
            for j in range(2):
                o += [f"s_add_u32 s{sT0}, s{sT1}, {j*8*pitch}", f"buffer_load_dword v{DUM+j}, v4, s[{S_WA}:{S_WA+3}], s{sT0} offen"]
        return o

    BUF = [0, 1, 2, 3, 4, 2, 3, 4]
    A.label("K1_STAGE_X")
    A(f"s_mov_b32 s{S_XC}, s{P_WS}\ns_mov_b32 s{S_XC+1}, s{P_WS+1}\ns_mov_b32 s{S_XC+3}, 0x00020000\ns_cmp_ge_u32 s{sCG}, {7 if PART == 'A' else 6}\ns_cselect_b32 s{S_XC+2}, {WS_USED}, 0")
    A(f"s_lshl_b32 s{sT1}, s{sTB}, 4\ns_lshl_b32 s{sT0}, s{sW}, 2\ns_add_u32 s{sT1}, s{sT1}, s{sT0}\ns_and_b32 s{sT0}, s{sCG}, {3 if ROT else 0}\ns_add_u32 s{sT1}, s{sT1}, s{sT0}")
    A(f"s_lshl_b32 s{sSCQ}, s{sT1}, 6\ns_add_u32 s{sSCQ}, s{sSCQ}, {SCQ_BASE}\ns_lshl_b32 s{sT1}, s{sT1}, 14\ns_add_u32 s{sT1}, s{sT1}, {XC_BASE}")
    for q in range(4): A(f"s_add_u32 s{sT0}, s{sROT}, {q}\ns_and_b32 s{sT0}, s{sT0}, 3\ns_lshl_b32 s{sT0}, s{sT0}, 12\ns_add_u32 s{sXQ+q}, s{sT1}, s{sT0}")
    A(f"v_lshlrev_b32 v{VLN}, 4, v0")
    if ACT_TOUCH: act_touch()
    A(f"s_lshl_b32 s{sT0}, s{sROT}, 4\nv_add_u32 v{T}, s{sT0}, v0\nv_and_b32 v{T}, 63, v{T}\nv_lshlrev_b32 v{T}, 4, v{T}")
    for t in range(4):
        A(f"s_add_u32 s{sT0}, s{sCG}, {t}\ns_and_b32 s{sT0}, s{sT0}, 3\ns_lshl_b32 s{sT0}, s{sT0}, 14\ns_add_u32 s{sXR+t}, s{sROW}, s{sT0}" if ROT else f"s_add_u32 s{sXR+t}, s{sROW}, {t*16384}")
    def x_round(r):
        o = []
        for j in range(8):
            tok = (8*r + j) & 15
            o.append([f"v_xor_b32 v{T+1+(j&1)}, {tok*16}, v{T}", f"s_add_u32 m0, s{sSTG}, {BUF[r]*32768 + j*1024}", f"s_add_u32 s{sT0}, s{sXR+r//2}, {(8*(r%2)+j)*1024}",
                      f"buffer_load_dwordx4 v{T+1+(j&1)}, s[{S_ACT}:{S_ACT+3}], s{sT0} offen lds"])
        return o
    def gw_slot(n):
        o = []
        for j in range(4):
            srd = S_WA if j < 2 else S_WB
            it = [f"s_add_u32 m0, s{sM0}, {n*16384 + j*1024}", f"s_add_u32 s{sT0}, s{sDQ+n%4}, s{(sEX if n < 4 else sEX2)+j}", f"buffer_load_dwordx4 v{VW+(j&1)}, s[{srd}:{srd+3}], s{sT0} offen lds"]
            o.append(it)
        return o
    for r in range(2 if XORD else 4):
        for it in x_round(r):
            for x in it: A(x)
    A(f"v_and_b32 v4, 15, v0\nv_and_b32 v5, 7, v0\nv_lshlrev_b32 v5, 10, v5\nv_and_b32 v6, 3, v0\nv_xor_b32 v6, v6, v1\nv_lshl_add_u32 v5, v6, 4, v5")
    A(f"v_add_u32 v5, s{sSTG}, v5\nv_lshrrev_b32 v6, 2, v4")
    for k in range(4):
        A(f"v_xor_b32 v7, {k}, v6\nv_lshl_add_u32 v{T+4+k}, v7, 6, v5")
    A(f"v_cmp_lt_u32 vcc, 7, v4")
    A(f"v_lshlrev_b32 v5, 2, v1\nv_sub_u32 v5, v4, v5")
    for i in range(4): A(f"v_cmp_eq_u32 s[{sMK+2*i}:{sMK+2*i+1}], {i}, v5")
    for i in range(4): A(f"v_mov_b32 v{ONESV+i}, s{sONES}")
    L = WF
    def x_read(t, vm):
        X = ACC[t % 2]
        ba, bb = BUF[2*t], BUF[2*t+1]
        o = [f"v_mov_b32 v2, {ba*32768}", f"v_mov_b32 v3, {bb*32768}", "v_cndmask_b32 v2, v2, v3, vcc"]
        o += [f"v_add_u32 v{T+8+k}, v2, v{T+4+k}" for k in range(4)]
        o.append(f"s_waitcnt vmcnt({vm})")
        o += [f"ds_read_b128 {vr(X+4*ks,4)}, v{T+8+(ks&3)} offset:{(ks&12)*64}" for ks in range(16)]
        return o
    def sumx(t):
        d = SUM + 4*(t % 2); X = ACC[t % 2]
        return [[f"{MF} {vr(d,4)}, {vr(ONESV,4)}, {vr(X+4*ks,4)}, {'0' if ks == 0 else vr(d,4)}"] for ks in range(16)]
    def gram(t):
        d = GR + 4*t
        return [[f"{MF} {vr(d,4)}, {ar((t*16+ks)*4,4)}, {ar((t*16+ks)*4,4)}, {'0' if ks == 0 else vr(d,4)}"] for ks in range(16)]
    def ln_stream(t):
        X = ACC[t % 2]; mu = MU
        o = [f"v_mul_f32 v{mu}, {hex(f32bits(-1.0/512))}, v{SUM+4*(t%2)}"]
        for b in range(16):
            tb_ = L + 8*(b % 2)
            for i in range(4):
                o.append(f"v_lshlrev_b32 v{tb_+2*i}, 16, v{X+4*b+i}"); o.append(f"v_and_b32 v{tb_+2*i+1}, 0xffff0000, v{X+4*b+i}")
            for i in range(8): o.append(f"v_add_f32 v{tb_+i}, v{tb_+i}, v{mu}")
            for i in range(4): o.append(f"v_cvt_pk_bf16_f32 v{X+4*b+i}, v{tb_+2*i}, v{tb_+2*i+1}")
            for i in range(4): o.append(f"v_accvgpr_write_b32 a{(t*16+b)*4+i}, v{X+4*b+i}")
        return o
    def interleave(main, sides):
        n = len(main)
        ins = {}
        for f0, f1, items in sides:
            for k, it in enumerate(items or []):
                p = int(n*(f0 + (f1-f0)*(k+0.5)/len(items)))
                ins.setdefault(p, []).extend(it)
        for i, x in enumerate(main):
            for y in ins.get(i, []): A(y)
            A(x)
    w03 = [it for n in range(4) for it in gw_slot(n)]
    if XORD:
        for x in x_read(0, 0): A(x)
        r23 = x_round(2) + x_round(3)
        for it in r23[:4]:
            for x in it: A(x)
        A("s_waitcnt lgkmcnt(0)")
        for k, it in enumerate(sumx(0)):
            for x in it: A(x)
            if k < 12:
                for x in r23[4+k]: A(x)
        interleave(ln_stream(0), [(0.01, 0.25, x_round(4)), (0.40, 0.41, [x_read(1, 8)]), (0.55, 0.56, [["s_waitcnt lgkmcnt(0)", "s_barrier"]]), (0.57, 0.8, x_round(5) + x_round(6)), (0.8, 0.99, w03), (0.6, 0.92, sumx(1))])
    else:
        for x in x_read(0, 16): A(x)
        A("s_waitcnt lgkmcnt(0)")
        r4 = x_round(4)
        for k, it in enumerate(sumx(0)):
            for x in it: A(x)
            if k % 2 == 0:
                for x in r4[k//2]: A(x)
        for x in x_read(1, 8): A(x)
        interleave(ln_stream(0), [(0.10, 0.11, [["s_waitcnt lgkmcnt(0)", "s_barrier"]]), (0.12, 0.45 if not XSP else 0.95, x_round(5) + x_round(6)), (0.45, 0.98, w03 if not XSP else []), (0.5, 0.9, sumx(1))])
    w46 = [it for n in range(4, 7) for it in gw_slot(n)]
    if XSP:
        for x in x_read(2, 8): A(x)
        interleave(ln_stream(1), [(0.05, 0.45, gram(0)), (0.15, 0.16, [["s_waitcnt lgkmcnt(0)"]]), (0.17, 0.5, x_round(7)), (0.5, 0.98, w03[:8]), (0.5, 0.9, sumx(2))])
        for x in x_read(3, 8): A(x)
        interleave(ln_stream(2), [(0.05, 0.45, gram(1)), (0.02, 0.6, w03[8:]), (0.15, 0.16, [["s_waitcnt lgkmcnt(0)"]]), (0.62, 0.63, [["s_barrier"]]), (0.65, 0.98, w46[:4]), (0.5, 0.9, sumx(3))])
        w46 = w46[4:]
    else:
        for x in x_read(2, 24): A(x)
        interleave(ln_stream(1), [(0.05, 0.45, gram(0)), (0.15, 0.16, [["s_waitcnt lgkmcnt(0)"]]), (0.17, 0.4, x_round(7)), (0.5, 0.9, sumx(2))])
        for x in x_read(3, 0): A(x)
        interleave(ln_stream(2), [(0.05, 0.45, gram(1)), (0.15, 0.16, [["s_waitcnt lgkmcnt(0)", "s_barrier"]]), (0.17, 0.7, w46), (0.5, 0.9, sumx(3))])
        w46 = []
    xcst = [[f"buffer_store_dwordx4 {ar(b*4,4)}, v{VLN}, s[{S_XC}:{S_XC+3}], s{sXQ+b//4} offen offset:{(b%4)*1024} sc1"] for b in range(16)]
    interleave(ln_stream(3), [(0.05, 0.45, gram(2)), (0.05, 0.8, w46)])
    A("s_nop 1")
    for it in gram(3):
        for x in it: A(x)
    def extract(t):
        g = GR + 4*t; D, D2 = L, L+1
        A(f"v_cndmask_b32 v{D}, 0, v{g}, s[{sMK}:{sMK+1}]")
        for i in range(1, 4): A(f"v_cndmask_b32 v{D}, v{D}, v{g+i}, s[{sMK+2*i}:{sMK+2*i+1}]")
        A(f"v_mov_b32 v{D2}, v{D}\ns_nop 1\nv_permlane16_swap_b32 v{D}, v{D2}\nv_add_f32 v{D}, v{D}, v{D2}")
        A(f"v_mov_b32 v{D2}, v{D}\ns_nop 1\nv_permlane32_swap_b32 v{D}, v{D2}\nv_add_f32 v{D}, v{D}, v{D2}")
        A(f"v_mov_b32 v{D2}, {hex(f32bits(1e-5))}\nv_fmac_f32 v{D2}, {hex(f32bits(1.0/512))}, v{D}")
        A(f"v_rsq_f32 v{RSTD+t}, v{D2}")
    for t in range(4): extract(t)
    A(f"v_mul_f32 v{MU}, {hex(f32bits(CSCALE))}, v{RSTD}\nv_and_b32 v{SUM}, 15, v0\nv_lshlrev_b32 v{SUM}, 2, v{SUM}")
    A("s_branch K1_START2_G")

    def epilogue_ops(ty, acc, store_flags=store_flags):
        ops = []
        blk = lambda nb, t: acc + (nb*4 + t)*4
        oq = 0
        def store(q, vo, off, so=sOB): return f"buffer_store_dwordx4 {vr(OUT+4*q,4)}, v{vo}, s[{S_OUT}:{S_OUT+3}], s{so} offen offset:{off}{store_flags}"
        if ty in 'QK':
            for pr in range(2):
                for t in range(4):
                    for h in range(2):
                        b = blk(2*pr+h, t)
                        if ty == 'Q':
                            for i in range(4): ops.append(f"v_mul_f32 v{b+i}, v{b+i}, v{SC+t}")
                        ops.append(f"v_cvt_pk_bf16_f32 v{OUT+4*oq+2*h}, v{b}, v{b+1}")
                        ops.append(f"v_cvt_pk_bf16_f32 v{OUT+4*oq+2*h+1}, v{b+2}, v{b+3}")
                    ops.append(store(oq, VO+t, pr*1024) if ty == 'K' else store(oq, VO+t, 0, sOB2 if pr else sOB)); oq = (oq+1) % 3
        elif ty == 'V':
            for nb in range(4):
                for v in range(2):
                    for h in range(2):
                        b = blk(nb, 2*v+h)
                        ops.append(f"v_cvt_pk_bf16_f32 v{OUT+4*oq+2*h}, v{b}, v{b+1}")
                        ops.append(f"v_cvt_pk_bf16_f32 v{OUT+4*oq+2*h+1}, v{b+2}, v{b+3}")
                    ops.append(store(oq, VO+v, nb*1024)); oq = (oq+1) % 3
        else:
            for t in range(4):
                for h in range(2):
                    g = blk(h, t); u = blk(h+2, t)
                    for i in range(4): ops.append(f"v_max_f32 v{g+i}, 0, v{g+i}")
                    for i in range(4): ops.append(f"v_mul_f32 v{u+i}, v{u+i}, v{SC+t}")
                    for i in range(4): ops.append(f"v_mul_f32 v{g+i}, v{g+i}, v{u+i}")
                    ops.append(f"v_cvt_pk_bf16_f32 v{OUT+4*oq+2*h}, v{g}, v{g+1}")
                    ops.append(f"v_cvt_pk_bf16_f32 v{OUT+4*oq+2*h+1}, v{g+2}, v{g+3}")
                ops.append(store(oq, VO+t, 0)); oq = (oq+1) % 3
        return ops

    def ob_calc(ty, su_reg_delta):
        o = [f"s_add_u32 s{sT1}, s{sSU}, {su_reg_delta}"] if su_reg_delta >= 0 else [f"s_sub_u32 s{sT1}, s{sSU}, {-su_reg_delta}"]
        if ty in 'GQ':
            o += [f"s_lshl_b32 s{sT1}, s{sT1}, {12 if ty == 'G' else 13}", f"s_add_u32 s{sOB}, s{sOBASE}, s{sT1}"]
            if ty == 'Q': o.append(f"s_add_u32 s{sOB2}, s{sOB}, 4096")
        else:
            hs = 19 if ty == 'Q' else 20
            ls = 12 if ty == 'V' else 11
            o += [f"s_lshr_b32 s{sOB}, s{sT1}, 1", f"s_lshl_b32 s{sOB}, s{sOB}, {hs}", f"s_and_b32 s{sT1}, s{sT1}, 1", f"s_lshl_b32 s{sT1}, s{sT1}, {ls}",
                  f"s_add_u32 s{sOB}, s{sOB}, s{sT1}", f"s_add_u32 s{sOB}, s{sOB}, s{sOBASE}"]
        return o

    def trreads(fi, nb, slot_in_half, ks):
        off = slot_in_half*16384 + ks*4096
        return [f"ds_read_b64_tr_b16 {vr(WF+4*fi,2)}, v{TRA+2*nb} offset:{off}",
                f"ds_read_b64_tr_b16 {vr(WF+4*fi+2,2)}, v{TRA+2*nb+1} offset:{off}"]

    CB = [32768, 65536, 98304, 131072, 98304, 131072, 98304, 131072] if B4 else [98304 + (r % 2)*32768 for r in range(8)]
    def c_round(r):
        return [[f"s_add_u32 m0, s{sSTG}, {CB[r] + j*1024}", f"s_add_u32 s{sT0}, s{sRQ+r//2}, {j*8192 + (r%2)*128}",
                 f"buffer_load_dwordx4 v{T+(j&1)}, s[{S_ACT}:{S_ACT+3}], s{sT0} offen lds"] for j in range(8)]
    def c_reads(r):
        base, o = (T+2, CB[r] - 98304) if CB[r] >= 98304 else (T+4, CB[r] - 32768)
        return [f"ds_read_b128 {ar((t*16+2*r+k2)*4, 4)}, v{base+k2} offset:{o + t*2048}" for t in range(4) for k2 in range(2)]

    def body(ty, par, first=False, vms=None, A=A):
        acc = ACC[par]; old = ACC[1-par]
        cs, ss, _ = dma_consts(ty)
        gaps = {}
        def G(q, m): return gaps.setdefault((q, m), {'mem': [], 'other': []})
        def room(q, m):
            g = G(q, m); return 2 - len(g['mem']) - len(g['other'])
        prew = {}
        CH = CHAIN and not first
        if CH:
            for q in range(4):
                for nb in range(4): G(q, nb*16 + 11)['other'].append("s_waitcnt lgkmcnt(0)")
        elif LGK:
            for q in range(4):
                for grp in range(1, 16, 2): G(q, grp*4 + 2)['other'].append(f"s_waitcnt lgkmcnt({6 if (CHAIN and q == 3 and grp == 15) else 10})")
        if not first:
            epi = epilogue_ops(ty, old)
            if ty == 'G' and par == 1:
                ex = [x[0] for x in xcst] + [f"buffer_store_dword v{MU}, v{SUM}, s[{S_XC}:{S_XC+3}], s{sSCQ} offen sc1", f"s_cmp_lg_u32 s{S_XC+2}, 0\ns_cselect_b32 s{sXS}, 1, s{sXS}\ns_mov_b32 s{S_XC+2}, 0"]
                e2 = []
                for k, x in enumerate(epi):
                    e2.append(x)
                    if k % 4 == 3 and ex: e2.append(ex.pop(0))
                epi = e2 + ex
            for q in range(4):
                G(q, 0)['other'] += [f"s_waitcnt vmcnt({vms[q]})", "s_barrier"]
                if ty == 'G' and par == 0 and q == 3: G(q, 1)['other'] += [f"s_cmp_eq_u32 s{sXS}, 1\ns_cbranch_scc1 K1_XSIG\nK1_XSIG_B:"]
                tgt = (4*par + q + 7) % 8
                trip = dma_slot(ty, 1 if q == 0 else 2, (q+3) % 4, tgt)
                if q == 1:
                    G(q, 1)['other'] += [f"s_add_u32 s{sT1}, s{sSU}, 2", f"s_cmp_ge_u32 s{sT1}, s{sEND2}"]
                    G(q, 2)['other'] += [f"s_cselect_b32 s{S_WA+2}, 0, s{S_WA+2}", f"s_cselect_b32 s{S_WB+2}, 0, s{S_WB+2}"]
                for j, tr in enumerate(trip):
                    m = (8 + 12*j + 1) if not CH else (8, 20, 32, 40)[j] + 1
                    G(q, m)['other'] += tr[:2]
                    G(q, m+1)['mem'] += [tr[2]]
            oc = ob_calc(ty, -1)
            pos = [(0,1),(0,2),(0,4),(0,5)]
            k = 0
            for p in pos:
                while room(*p) > 0 and k < len(oc): G(*p)['other'].append(oc[k]); k += 1
            assert k == len(oc)
        for nb in range(4):
            m = (16 + 4*nb + 4) if not CH else (4, 5, 16, 35)[nb]
            G(3, m)['other'] += [f"v_xor_b32 v{TRA+2*nb}, 0x10000, v{TRA+2*nb}", f"v_xor_b32 v{TRA+2*nb+1}, 0x10000, v{TRA+2*nb+1}"]
        if not first:
            slots = [(q, m) for q in range(4) for m in range(64) if (m % 4 != 3 if not CH else m % 16 < 12) and (q, m) >= (0, 6)]
            cap = [(s_, room(*s_)) for s_ in slots]
            tot = sum(c for _, c in cap)
            step = max(1.0, 0.8*tot/len(epi))
            flat = [s_ for s_, c in cap for _ in range(c)]
            idx = 0.0
            for op in epi:
                s_ = flat[int(idx)]
                if op.startswith('buffer_store'):
                    i2 = int(idx)
                    while True:
                        s_ = flat[i2]
                        g = G(*s_)
                        if not g['mem'] and not g['other']: break
                        i2 += 1
                    idx = max(idx, i2)
                    G(*s_)['mem'].append(op)
                else:
                    G(*s_)['other'].append(op)
                idx += step
        else:
            seq = ['R0']*8 + ['W0']*4 + ['R1']*8 + ['W1']*4
            def vm(tag): return len(seq) - 1 - max(i for i, e in enumerate(seq) if e == tag)
            def put_triples(q, m0, trips, tag):
                m = m0
                for tr in trips:
                    G(q, m)['other'] += tr[:2]
                    m2 = m + 1 if (m + 1) % 4 != 3 else m + 2
                    G(q, m2)['mem'].append(tr[2]); seq.append(tag)
                    m = m2
                    if len(G(q, m)['other']) >= 1 or True:
                        pass
                return m
            if B4:
                seq += ['R2']*8 + ['R3']*8
                def nxt(m): return m + 1 if (m + 1) % 4 != 3 else m + 2
                def put_reads(q, mm, r):
                    prew.setdefault((q, mm), []).append(f"s_waitcnt vmcnt({vm(f'R{r}')})")
                    rds = c_reads(r)
                    for k in range(4):
                        G(q, mm)['mem'] += rds[2*k:2*k+2]; mm = nxt(mm)
                    return mm
                W = lambda n: dma_slot(ty, n//4, n % 4, n % 8)
                for h in range(8):
                    q = h // 2; base = 32*(h % 2)
                    if h in (1, 3, 5): prew[(q, base)] = ["s_waitcnt lgkmcnt(2)"]
                    if h % 2 == 1: G(q, base)['other'] += [f"s_waitcnt vmcnt({vm(f'W{q+1}')})", "s_barrier"]
                    m = base + 1
                    if h == 0:
                        put_reads(q, 8, 1); put_reads(q, 16, 2); put_reads(q, 24, 3)
                    if h == 1:
                        m = put_triples(q, m, c_round(4), 'R4'); m = put_triples(q, m, W(2), 'W2'); m = put_triples(q, m, c_round(5), 'R5')
                    if h == 2:
                        for n in (3, 4, 5): m = put_triples(q, m, W(n), f'W{n}')
                        put_reads(q, base+18, 4); put_reads(q, base+24, 5)
                    if h == 3:
                        m = put_triples(q, m, c_round(6), 'R6'); m = put_triples(q, m, c_round(7), 'R7')
                    if h == 4:
                        put_reads(q, base+18, 6); put_reads(q, base+24, 7)
                    if h == 5:
                        for n in (6, 7): m = put_triples(q, m, W(n), f'W{n}')
                    if h == 6:
                        for n in (8, 9): m = put_triples(q, m, W(n), f'W{n}')
                    if h == 7: m = put_triples(q, m, W(10), 'W10')
                    assert m < base + 31 and (h != 2 or m < base + 18), (h, m)
            else:
                for h in range(8):
                    q = h // 2; base = 32*(h % 2)
                    if h >= 1: prew[(q, base)] = ["s_waitcnt lgkmcnt(2)"]
                    need = None
                    if h == 1: need = 'W1'
                    elif h in (2, 4, 6): need = f'W{q+1}'
                    if need: G(q, base)['other'] += [f"s_waitcnt vmcnt({vm(need)})", "s_barrier"]
                    if h == 7: G(q, base)['other'] += ["s_barrier"]
                    if HST and h in (2, 4, 6): G(q, base)['other'].append(f"s_memrealtime s[{64+2*(2+h//2)}:{65+2*(2+h//2)}]")
                    m = base + 1
                    if h + 2 <= 7: m = put_triples(q, m, c_round(h+2), f'R{h+2}')
                    if WEARLY:
                        if h <= 1:
                            for n in (2*h+2, 2*h+3): m = put_triples(q, m, dma_slot(ty, n//4, n % 4, n), f'W{n}')
                    elif h <= 3: m = put_triples(q, m, dma_slot(ty, (h+2)//4, (h+2) % 4, h+2), f'W{h+2}')
                    if h == 7:
                        for n in range(6, 11): m = put_triples(q, m, dma_slot(ty, n//4, n % 4, n % 8), f'W{n}')
                        assert m <= 60, m
                    if h == 4 and KV_TOUCH:
                        to = touch_ops(ty)
                        for k, x in enumerate(to):
                            if x.startswith('buffer'): seq.append('T')
                            G(q, base + 16 + (k//4)*1 + (1 if (base+16+(k//4)) % 4 == 3 else 0))['other'].append(x)
                    if h + 1 <= 7:
                        mm = base + 24
                        prew[(q, mm)] = [f"s_waitcnt vmcnt({vm(f'R{h+1}')})"]
                        rds = c_reads(h+1)
                        for k, p in enumerate((mm, mm+1, mm+2, mm+4)):
                            G(q, p)['mem'] += rds[2*k:2*k+2]
        E4 = 4 if CH else 0
        if ty == 'V':
            G(3, 56-E4)['other'] += [f"s_add_u32 s{sT1}, s{sSU}, 3", f"s_cmp_eq_u32 s{sT1}, s{sEND}", f"s_cselect_b32 s{sIA}, s{sHD}, {cs}"]
            G(3, 57-E4)['other'] += [f"s_add_u32 s{sT1}, s{sSU}, 2", f"s_cmp_eq_u32 s{sT1}, s{sEND}", f"s_cselect_b32 s{sIB}, s{sHD}, {cs}"]
            ia, ib = f"s{sIA}", f"s{sIB}"
        else: ia = ib = f"{cs}"
        G(3, 60-E4+CH)['other'] += [f"s_add_u32 s{sDQ}, s{sDQ}, {ia}", f"s_add_u32 s{sDQ+1}, s{sDQ+1}, {ia}"]
        G(3, 61-E4+CH)['other'] += [f"s_add_u32 s{sDQ+2}, s{sDQ+2}, {ia}", f"s_add_u32 s{sDQ+3}, s{sDQ+3}, {ib}", f"s_add_u32 s{sSU}, s{sSU}, 1"]
        G(3, 62-E4+CH)['other'] += [f"s_mov_b32 s{S_OUT+2}, {0 if NOST else WS_USED}", f"s_cmp_ge_u32 s{sSU}, s{sEND}"]
        for q in range(4):
            for m in range(64):
                if CH: nb, t, ks = m // 16, (m // 4) % 4, m % 4; fi = (nb % 2)*4 + ks
                else: ks, nb, t = m // 16, (m // 4) % 4, m % 4; fi = (ks % 2)*4 + nb
                if not CH and m % 8 == 0 and not LGK: A("s_waitcnt lgkmcnt(12)")
                for x in prew.get((q, m), []): A(x)
                d = acc + (nb*4+t)*4
                kk = q*4 + ks
                c = "0" if kk == 0 else vr(d, 4)
                w = vr(WF+4*fi, 4); a = ar((t*16+kk)*4, 4)
                A(f"{MF} {vr(d,4)}, {a}, {w}, {c}" if ty == 'V' else f"{MF} {vr(d,4)}, {w}, {a}, {c}")
                if t == 3:
                    if CH: rd = trreads(fi, nb+2, q, ks) if nb < 2 else trreads(fi, nb-2, (q+1) % 4, ks)
                    elif ks < 2: rd = trreads(fi, nb, q, ks+2)
                    elif CHAIN and q == 3: rd = trreads(fi, fi // 4, 0, fi % 4)
                    else: rd = trreads(fi, nb, (q+1) % 4, ks-2)
                    for x in rd: A(x)
                g = G(q, m)
                for x in g['mem']: A(x)
                for x in g['other']: A(x)

    def vm_table(ty):
        tmp = Asm(); body(ty, 0, vms=[0]*4, A=tmp)
        pat = []; q = -1
        for l in tmp.lines:
            if l == 's_barrier': q += 1; pat.append(('bar', q))
            elif l.startswith('buffer_load'): pat.append(('dma', q))
            elif l.startswith('buffer_store'): pat.append(('st', q))
        if ty in 'KV': seq = [5]*4 + [n for n in range(6, 11) for _ in range(4)]; c0 = 1
        else: seq = [n for n in range(4, 7) for _ in range(4)]; c0 = 0
        tab = {}
        for c in range(c0, 8):
            tab[c] = [0]*4
            for kind, q in pat:
                if kind == 'bar':
                    need = 4*c + q + 1
                    idx = [i for i, e in enumerate(seq) if e == need]
                    tab[c][q] = min(63, len(seq) - 1 - max(idx)) if idx else 63
                    if not EXACT: tab[c][q] = 20
                elif kind == 'dma': seq.append(4*c + q + 7)
                else: seq.append('s')
        return tab

    for ty in 'KVG':
        VN = vm_table(ty)
        if ty in 'KV':
            A.label(f"K1_PRO_{ty}")
            if ACT_TOUCH: act_touch()
            A(f"v_lshrrev_b32 v4, 3, v0\nv_and_b32 v5, 7, v0\nv_lshrrev_b32 v6, 4, v0\nv_xor_b32 v5, v5, v6")
            A(f"v_lshlrev_b32 v4, 10, v4\nv_lshl_add_u32 v{T}, v5, 4, v4\nv_xor_b32 v{T+1}, 64, v{T}")
            for it in c_round(0) + dma_slot(ty, 0, 0, 0) + c_round(1) + dma_slot(ty, 0, 1, 1) + (c_round(2) + c_round(3) if B4 else []):
                for x in it: A(x)
            A(f"v_and_b32 v4, 15, v0\nv_lshrrev_b32 v5, 1, v4\nv_xor_b32 v5, v5, v1\nv_lshlrev_b32 v4, 7, v4\nv_lshl_add_u32 v4, v5, 4, v4")
            A(f"s_add_u32 s{sT1}, s{sSTG}, 98304\nv_add_u32 v{T+2}, s{sT1}, v4\nv_xor_b32 v{T+3}, 64, v{T+2}\nv_subrev_u32 v{T+4}, 0x10000, v{T+2}\nv_subrev_u32 v{T+5}, 0x10000, v{T+3}")
            A(f"s_waitcnt vmcnt({28 if B4 else 12})\ns_barrier")
            for x in c_reads(0): A(x)
            for ks in range(2):
                for nb in range(4):
                    for x in trreads(ks*4+nb, nb, 0, ks): A(x)
            A("s_waitcnt lgkmcnt(12)")
            body(ty, 0, first=True)
            body(ty, 1, vms=VN[1])
            if CODE_TOUCH2: code_touch(A, "K1_FIN", "K2_END", sW, 0, DUM+1, 80)
            if WQ_TOUCH:
                A(f"s_mov_b32 s4, s{P_WQ}\ns_mov_b32 s5, s{P_WQ+1}\ns_mov_b32 s6, {512*8192}\ns_mov_b32 s7, 0x00020000")
                A(f"s_sub_u32 s{sT1}, s{sCG}, {11 if PART == 'A' else 10}\ns_lshl_b32 s{sT1}, s{sT1}, 3\ns_add_u32 s{sT1}, s{sT1}, s{sTB}\ns_mul_i32 s{sT1}, s{sT1}, {196*128}\ns_min_u32 s{sT0}, s{sW}, 3\ns_lshl_b32 s{sT0}, s{sT0}, 13\ns_add_u32 s{sT1}, s{sT1}, s{sT0}")
                A(f"v_lshlrev_b32 v4, 7, v0\nbuffer_load_dword v{DUM}, v4, s[4:7], s{sT1} offen")
            A(f"s_branch K1_LOOP_{ty}")
        else:
            A.label(f"K1_START2_{ty}")
            if W_TOUCH:
                for x in touch_ops(ty): A(x)
            if ty == 'Q':
                for t in range(4): A(f"v_mul_f32 v{SC+t}, {hex(f32bits(CSCALE))}, v{RSTD+t}")
            if ty == 'G':
                for t in range(4): A(f"v_mul_f32 v{SC+t}, v{RSTD+t}, v{RSTD+t}")
            A(f"s_waitcnt vmcnt({14 if W_TOUCH else 12})\ns_barrier")
            for fi in range(8):
                for x in (trreads(fi, fi // 4, 0, fi % 4) if CHAIN else trreads(fi, fi % 4, 0, fi // 4)): A(x)
            A(f"s_waitcnt lgkmcnt({8 if CHAIN else 12})")
        A(".p2align 6")
        A.label(f"K1_LOOP_{ty}")
        c0 = 2 if ty in 'KV' else 0
        v0_ = [min(VN[c][q] for c in range(c0, 8, 2)) for q in range(4)]
        if ty == 'G':
            t1 = Asm(); body(ty, 1, vms=[0]*4, A=t1); t0 = Asm(); body(ty, 0, vms=[0]*4, A=t0)
            vm1 = [l for l in t1.lines if l.startswith('buffer')]
            last = max(i for i, l in enumerate(vm1) if f"s[{S_XC}:{S_XC+3}]" in l)
            nb_ = [i for i, l in enumerate(t0.lines) if l == 's_barrier'][3]
            cnt = len(vm1) - 1 - last + sum(1 for l in t0.lines[:nb_] if l.startswith('buffer'))
            v0_[3] = min(v0_[3], cnt); print("XC signal wait", cnt, v0_)
        body(ty, 0, vms=v0_)
        A(f"s_cbranch_scc1 K1_DRAIN0_{ty}")
        body(ty, 1, vms=[min(VN[c][q] for c in range(c0+1, 8, 2)) for q in range(4)])
        A(f"s_cbranch_scc0 K1_LOOP_{ty}")
        for par in (1, 0):
            A.label(f"K1_DRAIN{par}_{ty}")
            if ty == 'V' and par == 1: A(f"s_cmp_lg_u32 s{sEND}, s{sEND2}\ns_cbranch_scc1 K1_HALF_V")
            A(f"s_mov_b32 s80, s78\ns_mov_b32 s81, s79\ns_mov_b32 s82, 256\ns_mov_b32 s83, 0x00020000\nv_and_b32 v{DUM}, 7, v0\nv_lshlrev_b32 v{DUM}, 2, v{DUM}\nbuffer_load_dword v{DUM+1}, v{DUM}, s[80:83], 0 offen offset:128 sc1")
            for x in ob_calc(ty, -1): A(x)
            A("s_nop 1")
            if WBL2: A(f"s_cmp_lg_u32 s{sW}, 0\ns_cbranch_scc1 K1_NOWB{par}_{ty}\nbuffer_wbl2 sc1\nK1_NOWB{par}_{ty}:")
            for x in epilogue_ops(ty, ACC[par], (' ' + SFD) if SFD else ''): A(x)
            A(f"s_waitcnt vmcnt({4 if ty == 'G' else 8}) lgkmcnt(0)\ns_branch K1_FIN")
    A.label("K1_XSIG")
    A(f"s_mov_b32 s{sXS}, 0\ns_cmp_lg_u32 s{sW}, 0\ns_cbranch_scc1 K1_XSIG_B")
    A(f"s_mov_b32 s80, s78\ns_mov_b32 s81, s79\ns_mov_b32 s82, 256\ns_mov_b32 s83, 0x00020000\ns_lshl_b32 s{sT1}, s{sTB}, 2\nv_mov_b32 v{DUM}, s{sT1}\nv_mov_b32 v{DUM+1}, 1")
    A(f"s_mov_b64 exec, 1\nbuffer_atomic_add v{DUM+1}, v{DUM}, s[80:83], 0 offen offset:128 sc1\ns_mov_b64 exec, -1\ns_branch K1_XSIG_B")
    A.label("K1_HALF_V")
    epi = ob_calc('V', -1) + epilogue_ops('V', ACC[1])
    A("s_waitcnt vmcnt(12)")
    k = 0
    if CHAIN:
        for q in range(4):
            for m in range(32):
                nb, t, ks = m // 16, (m // 4) % 4, m % 4; fi = nb*4 + ks
                d = ACC[0] + (nb*4+t)*4; kk = q*4 + ks
                A(f"{MF} {vr(d,4)}, {ar((t*16+kk)*4,4)}, {vr(WF+4*fi,4)}, {'0' if kk == 0 else vr(d,4)}")
                if q == 0 and m == 0: A("s_barrier")
                if t == 3:
                    if q < 3:
                        for x in trreads(fi, nb, q+1, ks): A(x)
                elif m % 16 == 11: A("s_waitcnt lgkmcnt(0)")
                elif (q, m) >= (0, 8) and k < len(epi):
                    A(epi[k]); k += 1
    else:
        for q in range(4):
            for ks in range(4):
                A("s_waitcnt lgkmcnt(4)")
                for nb in range(2):
                    fi = (ks % 2)*4 + nb
                    for t in range(4):
                        d = ACC[0] + (nb*4+t)*4; kk = q*4 + ks
                        A(f"{MF} {vr(d,4)}, {ar((t*16+kk)*4,4)}, {vr(WF+4*fi,4)}, {'0' if kk == 0 else vr(d,4)}")
                        if kk == 0 and nb == 0 and t == 0: A("s_barrier")
                        if t == 3 and kk < 14:
                            for x in (trreads(fi, nb, q, ks+2) if ks < 2 else trreads(fi, nb, q+1, ks-2)): A(x)
                        elif t < 3 and kk >= 1 and k < len(epi):
                            A(epi[k]); k += 1
    assert k == len(epi), (k, len(epi))
    A(f"s_mov_b32 s80, s78\ns_mov_b32 s81, s79\ns_mov_b32 s82, 256\ns_mov_b32 s83, 0x00020000\nv_and_b32 v{DUM}, 7, v0\nv_lshlrev_b32 v{DUM}, 2, v{DUM}\nbuffer_load_dword v{DUM+1}, v{DUM}, s[80:83], 0 offen offset:128 sc1")
    A(f"s_add_u32 s{sOB}, s{sOBH}, s{sOBASE}\ns_nop 4")
    for x in epilogue_ops('V', ACC[0])[:20]: A(x)
    A("s_waitcnt vmcnt(4) lgkmcnt(0)")
    A.label("K1_FIN")
    stamp(A, 1)
    return dict(sW=sW, XP=DUM+1, XO=DUM)
```

```python
from asmlib import *
import asmlib
from k1f import KV_BASE, A3_BASE, A3_TB64, WS_USED, MF, f32bits, XC_BASE, SCQ_BASE, P2_BASE, CNT_BASE
import math

import os
QST = os.environ.get('QST', '0') == '1'
QPLAN = os.environ.get('QPLAN', '3')
CT = os.environ.get('CODE_TOUCH2', '1') == '1'
QROT = int(os.environ.get('QROT', '2'))
LATEKV = os.environ.get('LATEKV', '1') == '1'
NOBAR = os.environ.get('NOBAR', '0') == '1'
BARPOS = int(os.environ.get('BARPOS', '0'))
NOCHK = os.environ.get('NOCHK', '0') == '1'
CHKE = os.environ.get('CHKE', '1') == '1'
ONES = os.environ.get('ONES', '0') == '1'
BIAS = 24.0
SLP = int(os.environ.get('SLP', '8'))
FULL = os.environ.get('FULL', '1') == '1'
SLP2 = int(os.environ.get('SLP2', '4'))
ELO = os.environ.get('ELO', '1') == '1'
PCHK = int(os.environ.get('PCHK', '10'))
CTX_TOUCH = os.environ.get('CTX_TOUCH', '0') == '1'
def gen_k2(A, k1i, store_flags="", thr=2.0**30):
    O = 0; S01 = 128; S23 = [144, 160]; P01 = [176, 184]; P23 = 192; CX = 200; E = 232; LS = 236; L = 240
    VK = 244; VV = 245; VD = 246; TMP = 247
    AQ = 0; KF = 64; VF = 96; AL = 128; AO = 144
    NG = 34 if ONES else 32
    S_KV, S_WS = 8, 12
    sW, sH, sI, sT0, sT1, sOFF, sHALF, sCNT, sTHR, sNEG = 16, 17, 18, 19, 20, 21, 22, 23, 24, 25
    sMK = 26
    sRET = 34
    sP = 36; sOHI = 37; sOLO = 38
    P_WS = 40; P_WO = 42; P_WD = 44; P_WQ = 46; S_T = 48; sXH = 52; sXL = 53; sWQ = 54; sMQ = 55
    def Sreg(qp, kb, par): return (S01 + (qp*2+kb)*4) if qp < 2 else (S23[par] + ((qp-2)*2+kb)*4)
    def Preg(qp, par): return (P01[par] + qp*4) if qp < 2 else (P23 + (qp-2)*4)
    def Oreg(db, qb): return O + (db*4+qb)*4
    def CXr(qp, kb): return CX + (qp*2+kb)*4
    stubs = []
    uid = [0]
    def U(p): uid[0] += 1; return f"K2_{p}_{uid[0]}"

    def spin(lab, vp, vo, off, expect, mask=None, srd='s[80:83]', so='0', slp=None):
        stubs.append([f"{lab}_F:", f"s_mov_b32 s{sT1}, 0", f"s_branch {lab}_N", f"{lab}:", f"s_mov_b32 s{sT1}, 0", f"{lab}_L:", f"s_sleep {slp or SLP}", f"{lab}_N:",
                      f"buffer_load_dword v{vp}, v{vo}, {srd}, {so} offen offset:{off} sc1", "s_waitcnt vmcnt(0)"] + ([f"v_and_b32 v{vp}, {mask}, v{vp}"] if mask else []) +
                     [f"v_cmp_ne_u32 vcc, {expect}, v{vp}", f"s_add_u32 s{sT1}, s{sT1}, 1", f"s_cmp_ge_u32 s{sT1}, 0x8000", f"s_cbranch_scc1 {lab}_B", f"s_cbranch_vccnz {lab}_L", f"s_branch {lab}_B"])
    A(f"s_mov_b32 s{sW}, s{k1i['sW']}\nv_mov_b32 v{TMP+1}, v0")
    A(f"s_load_dwordx2 s[{P_WS}:{P_WS+1}], s[0:1], 96\ns_load_dwordx2 s[{P_WO}:{P_WO+1}], s[0:1], 40\ns_load_dwordx2 s[{P_WD}:{P_WD+1}], s[0:1], 72\ns_load_dwordx2 s[{P_WQ}:{P_WQ+1}], s[0:1], 16\ns_mov_b32 s{S_T+3}, 0x00020000")
    A(f"v_cmp_ne_u32 vcc, 4, v{k1i['XP']}\ns_barrier\ns_cbranch_vccnz K2_XSPIN")
    A.label("K2_XSPIN_B")
    spin("K2_XSPIN", k1i['XP'], k1i['XO'], 128, 4)
    A(f"s_and_b32 s{sT0}, s2, 7\ns_lshr_b32 s{sT1}, s2, 3\ns_lshr_b32 s{sI}, s{sT1}, 2\ns_and_b32 s{sT1}, s{sT1}, 3\ns_lshl_b32 s{sH}, s{sT0}, 2\ns_add_u32 s{sH}, s{sH}, s{sT1}")
    A(f"s_mov_b32 s{S_KV+3}, 0x00020000\ns_mov_b32 s{S_WS+3}, 0x00020000\ns_mov_b32 s{S_WS+2}, {WS_USED}")
    A(f"s_lshl_b32 s{sT0}, s{sI}, 16\ns_sub_u32 s{S_KV+2}, 0x108000, s{sT0}")
    A(f"s_mov_b32 s{sTHR}, {hex(0x40000000 if ONES else f32bits(thr))}\ns_mov_b32 s{sNEG}, 0xff800000")
    LN = TMP+1
    A(f"v_lshlrev_b32 v{VK}, 4, v{LN}\nv_add_u32 v{VV}, 0x10000, v{VK}")
    A(f"s_lshl_b32 s{sT0}, s{sW}, 12\nv_add_u32 v{VD}, s{sT0}, v{VK}")
    A(f"s_and_b32 s{sT0}, s{sW}, 1\ns_lshl_b32 s{sHALF}, s{sT0}, 12\ns_lshr_b32 s{sT0}, s{sW}, 1\ns_lshl_b32 s{sT1}, s{sT0}, 16\ns_add_u32 s{sHALF}, s{sHALF}, s{sT1}")
    A(f"s_lshl_b32 s{sT0}, s{sT0}, 15\ns_sub_u32 s{sOFF}, 0x8000, s{sT0}")
    A("s_waitcnt lgkmcnt(0)")
    A(f"s_mov_b32 s{S_WS}, s{P_WS}\ns_mov_b32 s{S_WS+1}, s{P_WS+1}")
    A(f"s_lshl_b32 s{sT0}, s{sH}, 20\ns_add_u32 s{sT0}, s{sT0}, {KV_BASE-0x8000}\ns_add_u32 s{S_KV}, s{P_WS}, s{sT0}\ns_addc_u32 s{S_KV+1}, s{P_WS+1}, 0")
    A(f"s_lshr_b32 s{sT0}, s{sW}, 1\ns_lshl_b32 s{sT1}, s{sI}, 1\ns_add_u32 s{sOLO}, s{sT1}, s{sT0}\ns_sub_u32 s{sOHI}, 30, s{sT1}\ns_add_u32 s{sOHI}, s{sOHI}, s{sT0}")
    A(f"s_mul_i32 s{sOLO}, s{sOLO}, {A3_TB64}\ns_mul_i32 s{sOHI}, s{sOHI}, {A3_TB64}")
    A(f"s_lshl_b32 s{sT0}, s{sH}, 14\ns_and_b32 s{sT1}, s{sW}, 1\ns_lshl_b32 s{sT1}, s{sT1}, 11\ns_add_u32 s{sT0}, s{sT0}, s{sT1}\ns_add_u32 s{sT0}, s{sT0}, {A3_BASE}")
    A(f"s_add_u32 s{sOLO}, s{sOLO}, s{sT0}\ns_add_u32 s{sOHI}, s{sOHI}, s{sT0}")
    def kread(f, unit4): return f"ds_read_b128 {ar(KF+4*f,4)}, v{VK} offset:{unit4*8192 + f*1024}"
    def vread(f, slot4): return f"ds_read_b128 {ar(VF+4*f,4)}, v{VV} offset:{slot4*8192 + f*1024}"
    def dma_group(c):
        pre = [f"s_add_u32 m0, s{sHALF}, {(c%4)*8192}"]
        d = [f"buffer_load_dwordx4 v{VD}, s[{S_KV}:{S_KV+3}], s{sOFF} offen offset:{j*1024} sc1 lds" for j in range(4)]
        post = [f"s_add_u32 s{sOFF}, s{sOFF}, 16384"]
        if c % 4 == 3: post.append(f"s_xor_b32 s{sHALF}, s{sHALF}, 0x8000")
        return pre, d, post
    AR = 128; TRQ = S01; VQ = S01 + 8
    A(f"s_mov_b32 s{S_T}, s{P_WQ}\ns_mov_b32 s{S_T+1}, s{P_WQ+1}\ns_mov_b32 s{S_T+2}, {512*8192}")
    A(f"s_lshl_b32 s{sT0}, s{sI}, 3\ns_lshl_b32 s{sT1}, s{sW}, 1\ns_add_u32 s{sXL}, s{sT0}, s{sT1}\ns_sub_u32 s{sXH}, 120, s{sT0}\ns_add_u32 s{sXH}, s{sXH}, s{sT1}")
    A(f"s_lshl_b32 s{sP}, s{sXH}, 6\ns_add_u32 s{sP}, s{sP}, {SCQ_BASE}\ns_lshl_b32 s{sCNT}, s{sXL}, 6\ns_add_u32 s{sCNT}, s{sCNT}, {SCQ_BASE}")
    A(f"s_lshl_b32 s{sXH}, s{sXH}, 14\ns_add_u32 s{sXH}, s{sXH}, {XC_BASE}\ns_lshl_b32 s{sXL}, s{sXL}, 14\ns_add_u32 s{sXL}, s{sXL}, {XC_BASE}")
    A(f"s_lshl_b32 s{sWQ}, s{sH}, 8\ns_lshl_b32 s{sT0}, s{sW}, 16\ns_add_u32 s{sWQ}, s{sWQ}, s{sT0}\ns_lshl_b32 s{sMQ}, s{sW}, 11\ns_add_u32 s{sMQ}, s{sMQ}, 32768")
    A(f"v_lshrrev_b32 v{TMP+2}, 4, v{LN}\nv_and_b32 v{TMP+3}, 15, v{LN}\ns_and_b32 s{sT0}, s{sW}, 1\ns_lshl_b32 s{sT0}, s{sT0}, 2\nv_or_b32 v{TMP+4}, s{sT0}, v{TMP+2}\nv_lshlrev_b32 v{TMP+4}, 1, v{TMP+4}\nv_xor_b32 v{TMP+4}, v{TMP+4}, v{TMP+3}")
    A(f"v_lshlrev_b32 v{TMP+5}, 13, v{TMP+2}\nv_lshl_add_u32 v{VQ}, v{TMP+4}, 4, v{TMP+5}\nv_add_u32 v{VQ+1}, {4*8192-1024}, v{VQ}\nv_add_u32 v{VQ+2}, 16384, v{VK}")
    sQO, sWQQ, sXH1, sXL1 = 56, 60, 84, 85
    rsrc = {0: "0", 1: f"s{sH}", 2: f"s{sI}"}[QROT if QROT < 3 else 1]
    if QROT == 3: A(f"s_add_u32 s{sT1}, s{sH}, s{sI}"); rsrc = f"s{sT1}"
    for q in range(4):
        A(f"s_add_u32 s{sT0}, {rsrc}, {q}\ns_and_b32 s{sT0}, s{sT0}, 3\ns_lshl_b32 s{sQO+q}, s{sT0}, 12\ns_lshl_b32 s{sT0}, s{sT0}, 20\ns_add_u32 s{sWQQ+q}, s{sWQ}, s{sT0}")
    def w_loads(n):
        return [[f"s_add_u32 m0, s{sMQ}, {n*8192}", f"s_add_u32 s{sT0}, s{sWQQ+n//4}, {(n%4)*32*8192}"],
                [f"buffer_load_dwordx4 v{VQ}, s[{S_T}:{S_T+3}], s{sT0} offen lds"], [f"buffer_load_dwordx4 v{VQ+1}, s[{S_T}:{S_T+3}], s{sT0} offen offset:1024 lds"]]
    def adst(n, t):
        if n < 8: return ar(AR+n*16+4*t, 4)
        if n < 12: return ar((n-8)*16+4*t, 4)
        if n < 14: return ar(96+(n-12)*16+4*t, 4)
        return vr(144+(n-14)*16+4*t, 4)
    def a_loads(n):
        o = []
        if n % 4 == 0: o.append([f"s_add_u32 s{sXH1}, s{sXH}, s{sQO+n//4}", f"s_add_u32 s{sXL1}, s{sXL}, s{sQO+n//4}"])
        for t in range(4):
            o.append([f"buffer_load_dwordx4 {adst(n,t)}, v{VQ+2 if t % 2 else VK}, s[{S_WS}:{S_WS+3}], s{sXH1 if t < 2 else sXL1} offen offset:{(n%4)*1024} sc1"])
        return o
    seq = []
    def mk(tags):
        its = []
        for k, n in tags:
            x = (w_loads if k == 'W' else a_loads)(n)
            for it in x:
                for y in it:
                    if y.startswith('buffer'): seq.append((k, n))
            its += x
        return its
    def vmq(tag): return min(63, len(seq) - 1 - max(i for i, e in enumerate(seq) if e == tag))
    def vmq_(tag): return len(seq) - 1 - max(i for i, e in enumerate(seq) if e == tag)
    for it in mk([('W',0),('A',0),('W',1),('W',2),('A',1),('A',2),('W',3),('W',4),('A',3)]):
        for x in it: A(x)
    A(f"v_lshlrev_b32 v{TMP+4}, 2, v{TMP+3}")
    A(f"v_bfe_u32 v{TMP+3}, v{LN}, 2, 2\nv_and_b32 v{TMP+6}, 1, v{TMP+2}\nv_lshl_add_u32 v{TMP+6}, v{TMP+6}, 2, v{TMP+3}\nv_lshl_add_u32 v{TMP+3}, v{TMP+2}, 3, v{TMP+3}\nv_lshlrev_b32 v{TMP+3}, 8, v{TMP+3}")
    A(f"v_and_b32 v{TMP+5}, 3, v{LN}\nv_lshl_add_u32 v{TMP+3}, v{TMP+5}, 3, v{TMP+3}\nv_add_u32 v{TMP+3}, 0x8000, v{TMP+3}")
    for nb in range(8): A(f"v_xor_b32 v{TMP+5}, {nb}, v{TMP+6}\nv_lshl_add_u32 v{TRQ+nb}, v{TMP+5}, 5, v{TMP+3}")
    def qtr(nb, ks): return [f"ds_read_b64_tr_b16 {ar(KF+4*nb,2)}, v{TRQ+nb} offset:{(ks%8)*8192}", f"ds_read_b64_tr_b16 {ar(KF+4*nb+2,2)}, v{TRQ+nb} offset:{(ks%8)*8192+1024}"]
    A(f"s_and_b32 s{sT0}, s2, 15\ns_lshl_b32 s{sT0}, s{sT0}, 2\nv_mov_b32 v{TMP+5}, s{sT0}\nv_mov_b32 v{TMP+6}, 1")
    A(f"s_waitcnt vmcnt({len(seq)})\ns_barrier")
    A(f"s_cmp_lg_u32 s{sW}, 0\ns_cbranch_scc1 K2_NOSIG\ns_mov_b64 exec, 1\nbuffer_atomic_add v{TMP+6}, v{TMP+5}, s[80:83], 0 offen sc1\ns_mov_b64 exec, -1")
    A.label("K2_NOSIG")
    A(f"s_waitcnt vmcnt({vmq(('W', 0))})\ns_barrier")
    for nb in range(8):
        for x in qtr(nb, 0): A(x)
    A("s_waitcnt lgkmcnt(12)")
    plan = {0: [('A',4),('W',5),('A',5),('W',6),('A',6),('W',7)], 1: [('A',7),('W',8),('A',8),('W',9),('A',9),('W',10)], 2: [('A',10),('W',11),('A',11),('W',12),('A',12),('W',13)],
            3: [('A',13),('W',14),('A',14),('W',15),('A',15)]}
    if QPLAN == '2':
        plan = {0: [('A',4),('W',5),('W',6),('A',5),('W',7),('W',8)], 1: [('A',6),('W',9),('W',10),('A',7),('W',11),('W',12)], 2: [('A',8),('W',13),('W',14),('W',15),('A',9)]}
        for k_ in range(3, 9): plan[k_] = [('A', k_+7)]
    if QPLAN == '3':
        plan = {0: [('A',4),('W',5),('A',5)], 1: [('W',6),('A',6),('W',7),('A',7)], 2: [('W',8),('A',8),('W',9),('A',9)], 3: [('W',10),('A',10),('W',11)], 4: [('A',11),('W',12),('W',13)], 5: [('A',12),('W',14),('W',15)], 6: [('A',13)], 7: [('A',14)], 8: [('A',15)]}
    bars = {0: 2, 2: 4, 4: 8, 8: 15}
    NEGV = TMP+8
    misc = [f"v_mov_b32 v{r}, 0" for r in list(range(CX, CX+32)) + list(range(LS, LS+8))]
    misc += [f"v_and_b32 v{TMP+2}, 15, v{LN}", f"v_lshrrev_b32 v{TMP+3}, 4, v{LN}", f"v_lshlrev_b32 v{TMP+3}, 2, v{TMP+3}", f"v_sub_u32 v{TMP+2}, v{TMP+2}, v{TMP+3}"]
    misc += [f"v_cmp_le_i32 s[{sMK+2*i}:{sMK+2*i+1}], {i}, v{TMP+2}" for i in range(4)] + [f"v_mov_b32 v{NEGV}, s{sNEG}", "s_nop 0"]
    def q_epi(ds):
        o = []
        for qb in range(4):
            tq = QT + 4*(qb % 2)
            for h in range(2):
                b_ = Oreg(2*ds+h, qb)
                o += [f"v_mul_f32 v{b_+i}, v{b_+i}, v{E+qb}" for i in range(4)]
                o += [f"v_cvt_pk_bf16_f32 v{tq+2*h}, v{b_}, v{b_+1}", f"v_cvt_pk_bf16_f32 v{tq+2*h+1}, v{b_+2}, v{b_+3}"]
            o += [f"v_accvgpr_write_b32 a{AQ+(qb*4+ds)*4+i}, v{tq+i}" for i in range(4)]
        return o
    QT = P01[0]
    e0 = q_epi(0)
    for ks in range(16):
        gaps = {}
        def G(m): return gaps.setdefault(m, [])
        pre = [f"s_waitcnt vmcnt({vmq(('A', ks))})"]
        if ks in bars: G(0).extend([f"s_waitcnt vmcnt({vmq(('W', bars[ks]))})", "s_barrier"])
        if ks == 12: G(0).append("s_barrier")
        sRDY = 86
        if ks == PCHK:
            G(1).extend([f"s_waitcnt vmcnt({vmq(('P', 0))})", f"v_cmp_ne_u32 vcc, 16, v{TMP+7}"])
            G(4).extend([f"s_cmp_eq_u64 vcc, 0", f"s_cselect_b32 s{sRDY}, 1, 0", f"v_mov_b32 v{TMP+6}, s{sRDY}", f"s_cmp_lg_u32 s{sW}, 0", "s_cbranch_scc1 K2_NOMB", f"ds_write_b32 v{TMP+5}, v{TMP+6}", "K2_NOMB:"])
        if ks == 3: G(2).extend([f"v_mov_b32 v{TMP+5}, 0x8000", f"v_mov_b32 v{TMP+6}, 0", f"ds_write_b32 v{TMP+5}, v{TMP+6}"])
        its = mk(plan.get(ks, []))
        if ks == PCHK - 2:
            its.append([f"buffer_load_dword v{TMP+7}, v{TMP+4}, s[80:83], 0 offen sc1"]); seq.append(('P', 0))
        if ks == 6:
            for qb in range(4):
                its.append([f"buffer_load_dword v{E+qb}, v{TMP+4}, s[{S_WS}:{S_WS+3}], s{sP if qb < 2 else sCNT} offen offset:{(qb%2)*64} sc1"]); seq.append(('S', 0))
        def kv_init(c):
            p_, d_, po_ = dma_group(c)
            if c < 2:
                lab = U("KS")
                return [f"s_cmp_ge_u32 s{sW}, 2", f"s_cbranch_scc1 {lab}"] + p_ + ["s_nop 0"] + d_ + [lab + ":"] + po_
            return p_ + ["s_nop 0"] + d_ + po_
        if PCHK <= ks < PCHK + 4:
            lab = U("NR")
            its.append([f"s_cmp_eq_u32 s{sRDY}, 0", f"s_cbranch_scc1 {lab}"] + kv_init(ks - PCHK) + [lab + ":"])
        if ks in (13, 14): its += [misc[(ks-13)*26+2*k:(ks-13)*26+2*k+2] for k in range(13)]
        m = 1 if ks != PCHK else 5
        for it in its:
            G(m).extend(it)
            m = m + 1 if (m + 1) % 4 != 3 else m + 2
        if ks == 15:
            m = max(m, 12)
            while m < 31:
                G(m).extend(e0[:2]); e0 = e0[2:]
                m = m + 1 if (m + 1) % 4 != 3 else m + 2
        assert m < 33, m
        if ks < 15:
            for grp in range(1, 8, 2): G(grp*4+2).append("s_waitcnt lgkmcnt(10)")
        else:
            G(6).append("s_waitcnt lgkmcnt(8)"); G(14).append("s_waitcnt lgkmcnt(0)")
        for x in pre: A(x)
        for nb in range(8):
            for t in range(4):
                d = Oreg(nb, t)
                A(f"{MF} {vr(d,4)}, {ar(KF+4*nb,4)}, {adst(ks,t)}, {'0' if ks == 0 else vr(d,4)}")
                if t == 3 and ks < 15:
                    if ks == 7: A(f"v_add_u32 v{TRQ+nb}, 0x10000, v{TRQ+nb}")
                    for x in qtr(nb, ks+1): A(x)
                for x in G(nb*4+t): A(x)
    stamp(A, 3)

    def Dpatch(q0):
        o = []
        for i in range(4): o.append(f"v_cndmask_b32 v{CXr(q0,0)+i}, v{NEGV}, v{CXr(q0,0)+i}, s[{sMK+2*i}:{sMK+2*i+1}]")
        for i in range(4): o.append(f"v_mov_b32 v{CXr(q0,1)+i}, v{NEGV}")
        for i in range(4): o.append(f"v_cndmask_b32 v{CXr(q0+1,1)+i}, v{NEGV}, v{CXr(q0+1,1)+i}, s[{sMK+2*i}:{sMK+2*i+1}]")
        return o
    def Fpatch(q0): return [f"v_mov_b32 v{CXr(q0,0)+i}, v{NEGV}" for i in range(16)]
    def patch(q0, j):
        o = []
        lD, lE = U("PD"), U("PE")
        o.append(f"s_cmp_gt_u32 s{sW}, {j}"); o.append(f"s_cbranch_scc1 {lE}")
        if j > 0:
            o.append(f"s_cmp_eq_u32 s{sW}, {j}"); o.append(f"s_cbranch_scc1 {lD}")
            o += Fpatch(q0); o.append(f"s_branch {lE}")
            o.append(lD + ":")
        o += Dpatch(q0)
        o.append(lE + ":")
        o.append("s_nop 1")
        return o


    def sm_gaps1(qs, srcpar, dstpar, look):
        g = [[] for _ in range(34)]
        src = lambda k: Sreg(qs[k//4], (k % 4)//2, srcpar) + 2*(k % 2)
        pr = lambda k: Preg(qs[k//4], dstpar) + k % 4
        for k in range(8):
            en = E + 2*((k+1) % 2); ec = E + 2*(k % 2)
            cv = f"v_cvt_pk_bf16_f32 v{pr(k)}, v{ec}, v{ec+1}"
            orr = None
            if k % 2 == 1: orr = f"v_or_b32 v{TMP}, v{pr(0)}, v{pr(1)}" if k == 1 else f"v_or3_b32 v{TMP}, v{TMP}, v{pr(k-1)}, v{pr(k)}"
            if k < 7:
                g[4*k].append(f"v_exp_f32 v{en}, v{src(k+1)}"); g[4*k+2].append(f"v_exp_f32 v{en+1}, v{src(k+1)+1}")
                g[4*k+1].append(cv)
                if orr: g[4*k+3].append(orr)
            else:
                g[28] += [cv, orr]
                g[29].append(f"v_lshl_or_b32 v{TMP}, v{TMP}, 16, v{TMP}")
                g[30].append(f"v_cmp_le_u32 vcc, s{sTHR}, v{TMP}")
                if look: g[32].append(f"v_exp_f32 v{en}, v{look[0]}"); g[33].append(f"v_exp_f32 v{en+1}, v{look[1]}")
        return g
    def lmf(qps, rows, par, czero):
        return [(f"{MF} {ar(AL+4*r,4)}, {ar(AO,4)}, {vr(Preg(qp,par),4)}, {'0' if czero else ar(AL+4*r,4)}", None) for qp, r in zip(qps, rows)]

    def sm_gaps(qs, srcpar, dstpar, look, ladd):
        g = [[] for _ in range(32)]
        lsb = LS + (0 if qs[0] == 0 else 2)
        src = lambda k: Sreg(qs[k//4], (k % 4)//2, srcpar) + 2*(k % 2)
        for k in range(8):
            if k < 7: a, b = src(k+1), src(k+1)+1
            elif look: a, b = look
            else: a = None
            en = E + 2*((k+1) % 2); ec = E + 2*(k % 2)
            if a is not None:
                g[4*k].append(f"v_exp_f32 v{en}, v{a}"); g[4*k+2].append(f"v_exp_f32 v{en+1}, v{b}")
            ls = lsb + k//4
            if k % 4 == 0:
                g[4*k+1].append(f"v_add_f32 v{ls}, v{ec}, v{ec+1}")
                lr, lsr = ladd[k//4]
                g[4*k+1].append(f"v_add_f32 v{lr}, v{lr}, v{lsr}")
            else:
                g[4*k+1].append(f"v_add_f32 v{ls}, v{ls}, v{ec}"); g[4*k+1].append(f"v_add_f32 v{ls}, v{ls}, v{ec+1}")
            g[4*k+3].append(f"v_cvt_pk_bf16_f32 v{Preg(qs[k//4], dstpar) + k % 4}, v{ec}, v{ec+1}")
        if not NOCHK:
            if CHKE:
                e_a = g[28]; adds = g[29]; e_b = g[30]
                g[28] = adds; g[29] = [f"v_max_f32 v{TMP}, v{lsb}, v{lsb+1}", f"v_cmp_lt_f32 vcc, s{sTHR}, v{TMP}"]
                g[30] = e_a; g[31] = g[31] + e_b
            else:
                g[30].append(f"v_max_f32 v{TMP}, v{lsb}, v{lsb+1}")
                g[31].append(f"v_cmp_lt_f32 vcc, s{sTHR}, v{TMP}")
        return g

    def rescale(rows, init=False):
        o = ["s_nop 7"]
        D, D2, F = TMP+1, TMP+2, TMP+3
        for r in rows:
            s0 = r['S']
            o.append(f"v_max3_f32 v{D}, v{s0}, v{s0+1}, v{s0+2}")
            o.append(f"v_max3_f32 v{D}, v{D}, v{s0+3}, v{s0+4}")
            o.append(f"v_max3_f32 v{D}, v{D}, v{s0+5}, v{s0+6}")
            o.append(f"v_max_f32 v{D}, v{D}, v{s0+7}")
            o += [f"v_mov_b32 v{D2}, v{D}", "s_nop 1", f"v_permlane16_swap_b32 v{D}, v{D2}", f"v_max_f32 v{D}, v{D}, v{D2}"]
            o += [f"v_mov_b32 v{D2}, v{D}", "s_nop 1", f"v_permlane32_swap_b32 v{D}, v{D2}", f"v_max_f32 v{D}, v{D}, v{D2}"]
            o.append(f"v_ceil_f32 v{D}, v{D}")
            if ONES: o.append(f"v_add_f32 v{D}, {hex(f32bits(BIAS))}, v{D}")
            if not init:
                o.append(f"v_max_f32 v{D}, 0, v{D}")
                o.append(f"v_exp_f32 v{F}, -v{D}")
            for b in [s0] + r['subs']:
                for i in range(8): o.append(f"v_sub_f32 v{b+i}, v{b+i}, v{D}")
            if not init:
                qb = r['qb']
                for db in range(8):
                    for i in range(4): o.append(f"v_mul_f32 v{Oreg(db,qb)+i}, v{Oreg(db,qb)+i}, v{F}")
                if ONES:
                    for i in range(4): o += [f"v_accvgpr_read_b32 v{D2}, a{AL+4*qb+i}", f"v_mul_f32 v{D2}, v{D2}, v{F}", f"v_accvgpr_write_b32 a{AL+4*qb+i}, v{D2}"]
                else: o.append(f"v_mul_f32 v{L+qb}, v{L+qb}, v{F}")
                for pr in r.get('Pscale', []):
                    o += [f"v_lshlrev_b32 v{D2}, 16, v{pr}", f"v_and_b32 v{pr}, 0xffff0000, v{pr}", f"v_mul_f32 v{D2}, v{D2}, v{F}", f"v_mul_f32 v{pr}, v{pr}, v{F}",
                          f"v_cvt_pk_bf16_f32 v{pr}, v{D2}, v{pr}"]
            if r.get('P') is not None:
                ls = r['ls']
                for k in range(4):
                    o += [f"v_exp_f32 v{E}, v{s0+2*k}", f"v_exp_f32 v{E+1}, v{s0+2*k+1}", "s_nop 0"]
                    if ONES: pass
                    elif k == 0: o.append(f"v_add_f32 v{ls}, v{E}, v{E+1}")
                    else: o += [f"v_add_f32 v{ls}, v{ls}, v{E}", f"v_add_f32 v{ls}, v{ls}, v{E+1}"]
                    o.append(f"v_cvt_pk_bf16_f32 v{r['P']+k}, v{E}, v{E+1}")
        return o
    def relook(look):
        return [f"v_exp_f32 v{E}, v{look[0]}", f"v_exp_f32 v{E+1}, v{look[1]}", "s_nop 1"] if look else ["s_nop 1"]

    def check_site(code):
        ls, lb = U("SLOW"), U("BACK")
        if not NOCHK: A(f"s_cbranch_vccnz {ls}")
        A.label(lb)
        stubs.append([ls + ":"] + code + [f"s_branch {lb}"])

    def emit_half(mf, gaps, extra, waits):
        for g in range(len(mf)):
            if g in waits: A(waits[g])
            m, rd = mf[g]
            if m: A(m)
            elif g == 28: A("s_nop 0")
            if rd: A(rd)
            ex = extra.get(g, ([], []))
            for x in ex[0]: A(x)
            for x in ex[1]: A(x)
            for x in gaps[g]: A(x)

    def H1(par, mq, ms, ku, toggleK=None, vm=None, dmas=(), noqk=False, nosm=False, last=False, fill=None, czero=False):
        n = 1 - par
        mf = []
        if noqk: mf = [(None, None)]*32
        elif mq == 4:
            for f in range(8):
                kb, ds = f//4, f % 4
                for qp in range(4):
                    d = Sreg(qp, kb, n)
                    c = vr(CXr(qp, kb), 4) if ds == 0 else vr(d, 4)
                    mf.append((f"{MF} {vr(d,4)}, {ar(KF+4*f,4)}, {ar(AQ+(qp*4+ds)*4,4)}, {c}", kread(f, ku[0]) if qp == 3 else None))
        else:
            for j in range(16):
                sel, f = j//8, j % 8
                kb, ds = f//4, f % 4
                for qb in range(2):
                    qp = 2*sel + qb
                    d = Sreg(qp, kb, n)
                    c = vr(CXr(qp, kb), 4) if ds == 0 else vr(d, 4)
                    rd = None
                    if qb == 1 and not (last and sel == 1): rd = kread(f, ku[sel])
                    mf.append((f"{MF} {vr(d,4)}, {ar(KF+4*f,4)}, {ar(AQ+(qb*4+ds)*4,4)}, {c}", rd))
        look = None if noqk else (Sreg(0, 0, n), Sreg(0, 0, n)+1)
        if nosm:
            gaps = [list(fill[2*g:2*g+2]) if fill else [] for g in range(32)]
        else:
            if ONES:
                gaps = sm_gaps1((2, 3), par, par, look); mf = list(mf) + lmf((0, 1), (0, 1), par, czero)
            else: gaps = sm_gaps((2, 3), par, par, look, [(L+0, LS+0), (L+1, LS+1)])
        extra = {}
        waits = {}
        if not noqk:
            waits[0] = "s_waitcnt lgkmcnt(8)"
            if mq == 2: waits[16] = "s_waitcnt lgkmcnt(4)"; waits[24] = "s_waitcnt lgkmcnt(4)"
        if vm is not None:
            extra[BARPOS] = ([], [f"s_waitcnt vmcnt({vm})"] + ([] if NOBAR else ["s_barrier"]))
        if toggleK is not None:
            gi = 0 if toggleK == 0 else 16
            e = extra.setdefault(gi, ([], [])); e[1].append(f"v_xor_b32 v{VK}, 0x8000, v{VK}")
        place_dmas(extra, dmas)
        emit_half(mf, gaps, extra, waits)
        if not nosm:
            rows = []
            for qq in range(2):
                qp = 2 + qq
                r = dict(S=Sreg(qp, 0, par), P=Preg(qp, par), ls=LS+2+qq)
                if ms == 4:
                    r['qb'] = qp
                    r['subs'] = ([Sreg(qp, 0, n), CXr(qp, 0)] if (mq == 4 and not noqk) else [])
                else:
                    r['qb'] = qq
                    r['subs'] = [CXr(qq, 0), CXr(qp, 0)] + ([] if noqk else [Sreg(qq, 0, n), Sreg(qp, 0, n)])
                    r['Pscale'] = [Preg(qq, par)+k for k in range(4)]
                rows.append(r)
            check_site(rescale(rows) + relook(look))

    def place_dmas(extra, dmas):
        for c, g0 in dmas:
            pre, d, post = dma_group(c)
            if ONES:
                for j in range(4): extra.setdefault(3 + 8*j, ([], []))[0].append(d[j])
                extra.setdefault(30, ([], []))[1].extend(post[:1])
                extra.setdefault(31, ([], []))[1].extend(post[1:] + dma_group(c+1)[0])
                continue
            e = extra.setdefault(g0, ([], [])); e[1].extend(pre)
            for j in range(4):
                e = extra.setdefault(g0+1+4*j if g0+1+4*j < 32 else 31, ([], [])); e[0].append(d[j])
            e = extra.setdefault(min(31, g0+2+12), ([], [])); e[1].extend(post)

    def H2(par, mp, mnext, vu, toggleV=None, dmas=(), nopv=False, nosm=False, czero=False):
        n = 1 - par
        mf = []
        if nopv: mf = [(None, None)]*32
        elif mp == 4:
            for db in range(8):
                for qp in range(4):
                    d = Oreg(db, qp)
                    mf.append((f"{MF} {vr(d,4)}, {ar(VF+4*db,4)}, {vr(Preg(qp,par),4)}, {'0' if czero else vr(d,4)}", vread(db, vu[0]) if qp == 3 else None))
        else:
            for j in range(16):
                sel, db = j//8, j % 8
                for qb in range(2):
                    d = Oreg(db, qb)
                    rd = None
                    if qb == 1 and not (nosm and sel == 1): rd = vread(db, vu[sel])
                    mf.append((f"{MF} {vr(d,4)}, {ar(VF+4*db,4)}, {vr(Preg(2*sel+qb,par),4)}, {vr(d,4)}", rd))
        look = (Sreg(2, 0, n), Sreg(2, 0, n)+1)
        lt = (L+2, L+3) if mp == 4 else (L+0, L+1)
        if nosm:
            gaps = [[] for _ in range(34)]
            if not ONES: gaps[1] = [f"v_add_f32 v{lt[0]}, v{lt[0]}, v{LS+2}", f"v_add_f32 v{lt[1]}, v{lt[1]}, v{LS+3}"]
        elif ONES: gaps = sm_gaps1((0, 1), n, n, look)
        else:
            gaps = sm_gaps((0, 1), n, n, look, [(lt[0], LS+2), (lt[1], LS+3)])
        if ONES: mf = list(mf) + (lmf((2, 3), (2, 3) if mp == 4 else (0, 1), par, czero) if not nopv else [(None, None)]*2)
        extra = {}
        waits = {}
        if not nopv:
            waits[0] = "s_waitcnt lgkmcnt(8)" if not nosm else "s_waitcnt lgkmcnt(0)"
            if mp == 2: waits[16] = "s_waitcnt lgkmcnt(4)"; waits[24] = "s_waitcnt lgkmcnt(4)" if not nosm else "s_waitcnt lgkmcnt(0)"
        if toggleV is not None:
            gi = 0 if toggleV == 0 else 16
            e = extra.setdefault(gi, ([], [])); e[1].append(f"v_xor_b32 v{VV}, 0x8000, v{VV}")
        place_dmas(extra, dmas)
        emit_half(mf, gaps, extra, waits)
        if not nosm and not nopv:
            rows = []
            for qb in range(2):
                r = dict(S=Sreg(qb, 0, n), P=Preg(qb, n), ls=LS+qb, qb=qb, subs=[CXr(qb, 0)])
                if mnext == 2: r['subs'] += [Sreg(qb+2, 0, n), CXr(qb+2, 0)]
                rows.append(r)
            check_site(rescale(rows) + relook(look))

    def hook(cond_reg, val, code):
        ls, lb = U("HOOK"), U("HB")
        A(f"s_cmp_eq_u32 s{cond_reg}, {val}\ns_cbranch_scc1 {ls}")
        A.label(lb)
        stubs.append([ls + ":"] + code + [f"s_branch {lb}"])

    hook(sI, 0, patch(2, 0))
    if ONES:
        A(f"v_mov_b32 v{TMP}, 0x3f803f80")
        for i in range(4): A(f"v_accvgpr_write_b32 a{AO+i}, v{TMP}")
    A(f"s_cmp_eq_u32 s{sRDY}, 0\ns_cbranch_scc1 K2_KLATE")
    A.label("K2_KOK")
    stubs.append(["K2_KLATE:", f"s_cmp_eq_u32 s{sW}, 0", "s_cbranch_scc1 K2_KSPIN_F", f"s_mov_b32 s{sT1}, 0", "K2_KL:", f"ds_read_b32 v{TMP+7}, v{TMP+5}", "s_waitcnt lgkmcnt(0)", f"v_cmp_ne_u32 vcc, 1, v{TMP+7}",
                  f"s_add_u32 s{sT1}, s{sT1}, 1", f"s_cmp_ge_u32 s{sT1}, 0x100000", "s_cbranch_scc1 K2_KGO", "s_sleep 1", "s_cbranch_vccnz K2_KL", "s_branch K2_KGO"])
    spin("K2_KSPIN", TMP+7, TMP+4, 0, 16)
    stubs.append(["K2_KSPIN_B:", f"v_mov_b32 v{TMP+6}, 1", f"ds_write_b32 v{TMP+5}, v{TMP+6}", "K2_KGO:"] + kv_init(0) + kv_init(1) + kv_init(2) + kv_init(3) + ["s_branch K2_KOK"])
    for x in e0: A(x)
    A("s_waitcnt vmcnt(0)\ns_barrier")
    if asmlib.STAMP: A("s_memrealtime s[68:69]")
    for f in range(8): A(kread(f, 0))
    for f in range(8): A(vread(f, 2))
    A("s_waitcnt lgkmcnt(8)")
    for ds in range(4):
        p_, d_, po_ = dma_group(4 + ds if LATEKV else 7)
        ep = q_epi(ds+1) if ds < 3 else []
        mfs = []
        for kb in range(2):
            f = kb*4 + ds
            for qp in range(4):
                d = Sreg(qp, kb, 0)
                mfs.append([f"{MF} {vr(d,4)}, {ar(KF+4*f,4)}, {ar(AQ+(qp*4+ds)*4,4)}, {vr(CXr(qp,kb),4) if ds == 0 else vr(d,4)}"] + ([kread(f, 1)] if qp == 3 else []))
        if ds == 0 or LATEKV: mfs[0] = p_ + ["s_nop 0"] + mfs[0]
        if ds == 0 or LATEKV:
            for j in range(4): mfs[1+j] = mfs[1+j] + [d_[j]]
            mfs[6] = mfs[6] + po_
        if ds == 3: A("s_nop 1")
        for k in range(8):
            for x in mfs[k]: A(x)
            for x in ep[8*k:8*k+8]: A(x)
    rows = []
    for qp in range(4): rows.append(dict(S=Sreg(qp, 0, 0), subs=[CXr(qp, 0)], P=None))
    for x in rescale(rows, init=True): A(x)
    A(f"v_exp_f32 v{E}, v{Sreg(0,0,0)}\nv_exp_f32 v{E+1}, v{Sreg(0,0,0)+1}")
    H2(1, 4, 4, None, nopv=True)
    stamp(A, 4)
    A(f"s_mov_b32 s{sCNT}, s{sI}")
    if ONES: A(dma_group(8)[0][0])
    A("s_waitcnt lgkmcnt(0)")

    def finalize(qbs, OB, VLANE):
        assert not ONES
        for qb in qbs:
            D, D2 = L+qb, TMP+1
            A(f"v_mov_b32 v{D2}, v{D}\ns_nop 1\nv_permlane16_swap_b32 v{D}, v{D2}\nv_add_f32 v{D}, v{D}, v{D2}")
            A(f"v_mov_b32 v{D2}, v{D}\ns_nop 1\nv_permlane32_swap_b32 v{D}, v{D2}\nv_add_f32 v{D}, v{D}, v{D2}")
            A(f"v_rcp_f32 v{D}, v{D}")
        oq = 0
        for qb in qbs:
            for ds in range(4):
                ob = OB(qb, ds) if callable(OB) else OB + 4*oq
                for h in range(2):
                    b = Oreg(2*ds+h, qb)
                    for i in range(4): A(f"v_mul_f32 v{b+i}, v{b+i}, v{L+qb}")
                for h in range(2):
                    b = Oreg(2*ds+h, qb)
                    A(f"v_cvt_pk_bf16_f32 v{ob+2*h}, v{b}, v{b+1}\nv_cvt_pk_bf16_f32 v{ob+2*h+1}, v{b+2}, v{b+3}")
                A(f"s_add_u32 s{sT0}, s{sOHI if qb < 2 else sOLO}, {ds*4096}")
                A(f"buffer_store_dwordx4 {vr(ob,4)}, v{VLANE}, s[{S_WS}:{S_WS+3}], s{sT0} offen offset:{(qb%2)*1024}{store_flags}")
                oq = (oq+1) % 4

    def period44(r, pre=None, czero=False):
        par = r % 2
        if pre: pre()
        ku = (r+2) % 4; vu = (r+1+2) % 4
        H1(par, 4, 4, [ku], toggleK=0 if ku == 0 else None, vm=16, dmas=[(r, 8)], czero=czero)
        H2(par, 4, 4, [vu], toggleV=0 if vu == 0 else None, czero=czero)

    period44(0, pre=lambda: hook(sI, 0, patch(2, 1)), czero=True)
    A(f"s_cmp_eq_u32 s{sCNT}, 0\ns_cbranch_scc1 K2_SPECIAL_R1\ns_branch K2_LOOPA_R1")
    A(".p2align 6")
    A.label("K2_LOOPA")
    for r in range(4):
        if r == 1: A.label("K2_LOOPA_R1")
        period44(r, pre=(lambda: hook(sCNT, 1, patch(2, 0))) if r == 3 else None)
    A(f"s_sub_u32 s{sCNT}, s{sCNT}, 1\ns_cmp_lg_u32 s{sCNT}, 0\ns_cbranch_scc1 K2_LOOPA")
    A.label("K2_SPECIAL")
    for r in range(3):
        if r == 1: A.label("K2_SPECIAL_R1")
        period44(r, pre=lambda: [A(x) for x in patch(2, r+1)])
    A(f"s_cmp_lt_u32 s{sW}, 2\ns_cselect_b32 s{S_T}, s{P_WO}, s{P_WD}\ns_cselect_b32 s{S_T+1}, s{P_WO+1}, s{P_WD+1}\ns_mov_b32 s{sT0}, {1376*1024}\ns_cselect_b32 s{S_T+2}, {4096*1024}, s{sT0}")
    A(f"s_mul_i32 s{sT0}, s2, {43*128}\ns_lshl_b32 s{sT1}, s2, 14\ns_cselect_b32 s{sT0}, s{sT1}, s{sT0}".replace("s_lshl_b32 s{sT1}, s2, 14".format(sT1=sT1), f"s_mul_i32 s{sT1}, s2, 16384"))
    A(f"s_and_b32 s{sT1}, s{sW}, 1\ns_lshl_b32 s{sT1}, s{sT1}, 13\ns_add_u32 s{sT0}, s{sT0}, s{sT1}\nv_and_b32 v{TMP+7}, 0x3ff, v{VK}\nv_lshlrev_b32 v{TMP+7}, 3, v{TMP+7}")
    A(f"buffer_load_dword v{TMP+7}, v{TMP+7}, s[{S_T}:{S_T+3}], s{sT0} offen")
    if CT:
        A(f"v_and_b32 v{TMP+6}, 0x3ff, v{VK}")
        code_touch(A, "K3_START" if FULL else "k3_kernel", "K2_END" if FULL else "K4_END", sW, TMP+6, TMP+6, 88, lane_shift=4)
    if CTX_TOUCH:
        A(f"v_lshrrev_b32 v{TMP+6}, 8, v{VK}\nv_and_b32 v{TMP+6}, 3, v{TMP+6}\nv_lshlrev_b32 v{TMP+6}, 12, v{TMP+6}\nv_and_b32 v{TMP+5}, 0xf0, v{VK}\nv_lshl_add_u32 v{TMP+6}, v{TMP+5}, 3, v{TMP+6}")
        A(f"buffer_load_dword v{TMP+5}, v{TMP+6}, s[{S_WS}:{S_WS+3}], s{sOHI} offen\nbuffer_load_dword v{TMP+6}, v{TMP+6}, s[{S_WS}:{S_WS+3}], s{sOLO} offen")
    for i in range(16): A(f"v_mov_b32 v{CXr(2,0)+i}, v{CXr(0,0)+i}")
    hook(sI, 7, patch(0, 0) + patch(2, 1))
    A("s_nop 1")
    H1(1, 2, 4, [1, 2], vm=16, dmas=[(3, 8)])
    H2(1, 4, 2, [2])
    if ELO:
        A(f"v_and_b32 v{TMP+2}, 0x3ff, v{VK}")
        finalize((2, 3), lambda qb, ds: Oreg(2*ds, qb), TMP+2)
    stamp(A, 5)
    A(f"s_lshl_b32 s{sT0}, s{sI}, 1\ns_sub_u32 s{sCNT}, 14, s{sT0}")
    def period22(r, last_qk=False):
        par = r
        ku = [3, 0] if r == 0 else [1, 2]
        vu = [3, 0] if r == 0 else [1, 2]
        c0 = 2*r
        H1(par, 2, 2, ku, toggleK=1 if r == 0 else None, vm=12, dmas=[(c0, 8)], last=last_qk)
        H2(par, 2, 2, vu, toggleV=1 if r == 0 else None, dmas=[(c0+1, 8)])
    A(f"s_cmp_eq_u32 s{sCNT}, 0\ns_cbranch_scc1 K2_TAIL")
    A(".p2align 6")
    A.label("K2_LOOPB")
    period22(0)
    hook(sCNT, 1, patch(0, 0) + patch(2, 1))
    period22(1)
    A(f"s_sub_u32 s{sCNT}, s{sCNT}, 1\ns_cmp_lg_u32 s{sCNT}, 0\ns_cbranch_scc1 K2_LOOPB")
    A.label("K2_TAIL")
    for x in patch(0, 2) + patch(2, 3): A(x)
    H1(0, 2, 2, [3, 0], toggleK=None, vm=12, last=True)
    H2(0, 2, 2, [3, 0], toggleV=1)
    H1(1, 2, 2, None, noqk=True, vm=0)
    H2(1, 2, 2, [1, 2], nosm=True)
    stamp(A, 6)
    A(f"v_and_b32 v{VK}, 0x3ff, v{VK}")
    if FULL:
        A.label("K3_START")
        RING, AD, NS = 16, 12, 43
        LEAD = AD - 1
        ACC3, WF3, AR3, TRA, VD3, T3 = 0, 64, 96, 200, 224, 226
        S_W = 8
        sSP, sTM, sTN, sWO, sAO, sM3, sOB3, sT2 = 35, 21, 22, 23, 24, 25, 26, 27
        A(f"s_load_dwordx2 s[28:29], s[0:1], 0\ns_load_dwordx2 s[30:31], s[0:1], 80")
        A(f"s_and_b32 s{sSP}, s2, 3\ns_lshr_b32 s{sT0}, s2, 2\ns_and_b32 s{sT0}, s{sT0}, 1\ns_lshl_b32 s{sT0}, s{sT0}, 3\ns_lshr_b32 s{sT1}, s2, 3\ns_and_b32 s{sT1}, s{sT1}, 7\ns_add_u32 s{sTM}, s{sT0}, s{sT1}\ns_lshr_b32 s{sTN}, s2, 6")
        A(f"s_mul_i32 s{sT0}, s{sSP}, 43\ns_cmp_eq_u32 s{sSP}, 3\ns_cselect_b32 s{sT0}, 128, s{sT0}\ns_cselect_b32 s{sT1}, 0, s{sT0}")
        A(f"s_cselect_b32 s{S_W}, s{P_WD}, s{P_WO}\ns_cselect_b32 s{S_W+1}, s{P_WD+1}, s{P_WO+1}\ns_mov_b32 s{sT2}, {4096*1024}\ns_cselect_b32 s{S_W+2}, {1376*1024}, s{sT2}\ns_mov_b32 s{S_W+3}, 0x00020000")
        A(f"s_lshl_b32 s{sT2}, s{sTM}, 1\ns_lshr_b32 s{sAO}, s{sW}, 1\ns_add_u32 s{sT2}, s{sT2}, s{sAO}\ns_mul_i32 s{sAO}, s{sT2}, {A3_TB64}\ns_lshl_b32 s{sT0}, s{sT0}, 12\ns_add_u32 s{sAO}, s{sAO}, s{sT0}")
        A(f"s_and_b32 s{sT2}, s{sW}, 1\ns_lshl_b32 s{sT2}, s{sT2}, 11\ns_add_u32 s{sAO}, s{sAO}, s{sT2}\ns_add_u32 s{sAO}, s{sAO}, {A3_BASE}")
        A(f"s_lshl_b32 s{sWO}, s{sT1}, 15\ns_lshl_b32 s{sT2}, s{sW}, 13\ns_add_u32 s{sWO}, s{sWO}, s{sT2}\ns_lshl_b32 s{sT2}, s{sTN}, 8\ns_add_u32 s{sWO}, s{sWO}, s{sT2}\ns_lshl_b32 s{sM3}, s{sW}, 11")
        LN3 = T3
        A(f"v_lshrrev_b32 v{LN3}, 4, v{VK}")
        A(f"v_lshrrev_b32 v{T3+2}, 4, v{LN3}\nv_and_b32 v{T3+3}, 15, v{LN3}\nv_lshlrev_b32 v{T3+4}, 1, v{T3+2}\nv_xor_b32 v{T3+3}, v{T3+3}, v{T3+4}\nv_lshlrev_b32 v{T3+2}, 10, v{T3+2}\nv_lshl_add_u32 v{VD3}, v{T3+3}, 4, v{T3+2}")
        A(f"v_xor_b32 v{T3+2}, 128, v{VD3}\nv_add_u32 v{VD3+1}, 3072, v{T3+2}\ns_barrier")
        seq3 = []
        def wl(s_):
            seq3.extend([('W', s_)]*2)
            return [[f"s_add_u32 m0, s{sM3}, {(s_ % RING)*8192}", f"s_add_u32 s{sT1}, s{sWO}, {s_*32768}"],
                    [f"buffer_load_dwordx4 v{VD3}, s[{S_W}:{S_W+3}], s{sT1} offen lds"], [f"buffer_load_dwordx4 v{VD3+1}, s[{S_W}:{S_W+3}], s{sT1} offen offset:1024 lds"]]
        def al(s_):
            seq3.extend([('A', s_)]*2)
            return [[f"s_add_u32 s{sT0}, s{sAO}, {s_*4096}"]] + [[f"buffer_load_dwordx4 {vr(AR3+(s_%AD)*8+4*t,4)}, v{VK}, s[{S_WS}:{S_WS+3}], s{sT0} offen offset:{t*1024} sc1"] for t in range(2)]
        def vm3(tag): return min(63, len(seq3) - 1 - max(i for i, e in enumerate(seq3) if e == tag))
        def emit3(its):
            for it in its:
                for x in it: A(x)
        for s_ in range(LEAD): emit3(wl(s_))
    finalize((0, 1) if ELO else (2, 3, 0, 1), S01, VK)
    if FULL:
        st = (lambda r: A(f"s_memrealtime s[{r}:{r+1}]")) if asmlib.STAMP else (lambda r: None)
        A(f"v_lshrrev_b32 v{T3+2}, 2, v{LN3}\nv_and_b32 v{T3+3}, 7, v{T3+2}\nv_lshlrev_b32 v{T3+2}, 8, v{T3+2}\nv_and_b32 v{T3+4}, 3, v{LN3}\nv_lshl_add_u32 v{T3+2}, v{T3+4}, 3, v{T3+2}")
        for nb in range(8): A(f"v_xor_b32 v{T3+4}, {nb}, v{T3+3}\nv_lshl_add_u32 v{TRA+nb}, v{T3+4}, 5, v{T3+2}\nv_add_u32 v{TRA+8+nb}, 0x10000, v{TRA+nb}")
        A(f"s_mov_b32 s39, {CNT_BASE}\ns_lshl_b32 s{sT0}, s{sI}, 7\ns_sub_u32 s{sT1}, {15*128}, s{sT0}\nv_mov_b32 v{T3+2}, s{sT0}\nv_mov_b32 v{T3+3}, s{sT1}\nv_cmp_eq_u32 vcc, 1, v{LN3}\nv_mov_b32 v{T3+4}, 1\ns_lshl_b32 s{sT0}, s{sTM}, 7\nv_cndmask_b32 v{T3+2}, v{T3+2}, v{T3+3}, vcc\nv_mov_b32 v{T3+5}, s{sT0}")
        A("s_waitcnt vmcnt(0) lgkmcnt(0)\ns_barrier")
        A(f"s_cmp_lg_u32 s{sW}, 0\ns_cbranch_scc1 K3_W0DONE\ns_mov_b64 exec, 3\nbuffer_atomic_add v{T3+4}, v{T3+2}, s[{S_WS}:{S_WS+3}], s39 offen sc1\ns_mov_b64 exec, -1")
        A(f"s_cmp_eq_u32 s{sSP}, 3\ns_cbranch_scc1 K3_W0DONE\ns_branch K3_CSPIN_F")
        A.label("K3_CSPIN_B")
        A.label("K3_W0DONE")
        spin("K3_CSPIN", T3+3, T3+5, 0, 32, srd=f"s[{S_WS}:{S_WS+3}]", so="s39", slp=SLP2)
        def tr3(nb, s_):
            off = (s_ % RING)*8192; hi = off // 65536; off %= 65536
            return [f"ds_read_b64_tr_b16 {vr(WF3+4*nb,2)}, v{TRA+8*hi+nb} offset:{off}", f"ds_read_b64_tr_b16 {vr(WF3+4*nb+2,2)}, v{TRA+8*hi+nb} offset:{off+4096}"]
        for nb in range(8):
            for x in tr3(nb, 0): A(x)
        A("s_barrier")
        st(96)
        seq3.clear(); seq3 += [('W', n) for n in range(LEAD)]
        for s_ in range(LEAD): emit3(al(s_))
        S_X, S_O = 40, 44
        A(f"s_mov_b32 s{S_X}, s28\ns_mov_b32 s{S_X+1}, s29\ns_mov_b32 s{S_X+2}, 0x200000\ns_mov_b32 s{S_X+3}, 0x00020000\ns_mov_b32 s{S_O}, s30\ns_mov_b32 s{S_O+1}, s31\ns_mov_b32 s{S_O+2}, 0x200000\ns_mov_b32 s{S_O+3}, 0x00020000")
        A(f"s_lshl_b32 s{sT0}, s{sTM}, 17\ns_lshl_b32 s{sT1}, s{sSP}, 15\ns_add_u32 s{sT0}, s{sT0}, s{sT1}\ns_lshl_b32 s{sT1}, s{sTN}, 8\ns_add_u32 s{sT0}, s{sT0}, s{sT1}\ns_lshl_b32 s{sT1}, s{sW}, 6\ns_add_u32 s{sT0}, s{sT0}, s{sT1}")
        VX = T3+6
        A(f"v_and_b32 v{T3+2}, 15, v{LN3}\nv_lshrrev_b32 v{T3+3}, 4, v{LN3}\nv_lshlrev_b32 v{T3+2}, 10, v{T3+2}\nv_lshl_add_u32 v{T3+2}, v{T3+3}, 3, v{T3+2}\nv_add_u32 v{VX}, s{sT0}, v{T3+2}\ns_mov_b32 s{sT2}, 16384")
        XR = 236
        for t in range(2):
            for h in range(2):
                A(f"buffer_load_dwordx2 {vr(XR+4*t+2*h,2)}, v{VX}, s[{S_X}:{S_X+3}], {'s%d' % sT2 if t else '0'} offen offset:{h*32}"); seq3.append(('X', 0))
        A(f"s_lshl_b32 s{sT0}, s{sTM}, 17\ns_lshl_b32 s{sT1}, s{sTN}, 15\ns_add_u32 s32, s{sT0}, s{sT1}\ns_add_u32 s32, s32, {P2_BASE}\ns_lshl_b32 s{sT0}, s{sSP}, 21\ns_lshl_b32 s{sT1}, s{sW}, 13\ns_add_u32 s{sOB3}, s32, s{sT0}\ns_add_u32 s{sOB3}, s{sOB3}, s{sT1}")
        BE = 2
        for s_ in range(NS):
            extra = {}
            A(f"s_waitcnt vmcnt({vm3(('A', s_))}) lgkmcnt(8)")
            if s_ % BE == 0 and min(s_+BE, NS-1) >= LEAD:
                extra[0] = [f"s_waitcnt vmcnt({vm3(('W', min(s_+BE, NS-1)))})", "s_barrier"]
            elif s_ % BE == 0: extra[0] = ["s_barrier"]
            extra[6] = ["s_waitcnt lgkmcnt(6)"]
            tgt = s_ + LEAD
            if tgt < NS:
                its = wl(tgt) + al(tgt)
                for k, it in enumerate(its): extra.setdefault(2 + 2*k if k < 2 else 4 + 2*k, []).extend(it)
            for nb in range(8):
                for t in range(2):
                    g = nb*2 + t; d_ = ACC3 + g*4
                    A(f"{MF} {vr(d_,4)}, {vr(WF3+4*nb,4)}, {vr(AR3+(s_%AD)*8+4*t,4)}, {'0' if s_ == 0 else vr(d_,4)}")
                    if t == 1 and s_ + 1 < NS:
                        for x in tr3(nb, s_+1): A(x)
                    for x in extra.get(g, []): A(x)
        st(98)
        A("s_nop 7")
        for np_ in range(4):
            if np_ % 2 == 0: A(f"s_add_u32 s{sT0}, s{sOB3}, {np_*2048}")
            for t in range(2):
                ob = AR3 + 4*(np_*2+t)
                for h in range(2):
                    b_ = ACC3 + ((2*np_+h)*2 + t)*4
                    A(f"v_cvt_pk_bf16_f32 v{ob+2*h}, v{b_}, v{b_+1}\nv_cvt_pk_bf16_f32 v{ob+2*h+1}, v{b_+2}, v{b_+3}")
                A(f"buffer_store_dwordx4 {vr(ob,4)}, v{VK}, s[{S_WS}:{S_WS+3}], s{sT0} offen offset:{(np_%2)*2048 + t*1024} sc1")
        A(f"s_lshl_b32 s{sT0}, s{sTM}, 2\ns_add_u32 s{sT0}, s{sT0}, s{sTN}\ns_lshl_b32 s{sT0}, s{sT0}, 7\ns_add_u32 s{sT0}, s{sT0}, 2048\nv_mov_b32 v{T3+5}, s{sT0}")
        A("s_waitcnt vmcnt(0)\ns_barrier")
        A(f"s_cmp_lg_u32 s{sW}, 0\ns_cbranch_scc1 K4_W0DONE\ns_mov_b64 exec, 1\nbuffer_atomic_add v{T3+4}, v{T3+5}, s[{S_WS}:{S_WS+3}], s39 offen sc1\ns_mov_b64 exec, -1\ns_branch K4_TSPIN_F")
        A.label("K4_TSPIN_B")
        A.label("K4_W0DONE")
        spin("K4_TSPIN", T3+3, T3+5, 0, 4, srd=f"s[{S_WS}:{S_WS+3}]", so="s39", slp=SLP2)
        A("s_barrier")
        st(100)
        R, PK, G_ = 0, 96, 64
        A(f"s_lshl_b32 s{sT0}, s{sSP}, 13\ns_lshl_b32 s{sT1}, s{sW}, 11\ns_add_u32 s{sT0}, s{sT0}, s{sT1}\ns_add_u32 s{sT0}, s{sT0}, s32")
        for sp in (3, 0, 1, 2):
            A(f"s_add_u32 s{sT1}, s{sT0}, {sp << 21}")
            for t in range(2): A(f"buffer_load_dwordx4 {vr(PK+8*sp+4*t,4)}, v{VK}, s[{S_WS}:{S_WS+3}], s{sT1} offen offset:{t*1024} sc1")
        def unpack(dst, src):
            for i in range(8): A(f"v_lshlrev_b32 v{dst+2*i}, 16, v{src+i}\nv_and_b32 v{dst+2*i+1}, 0xffff0000, v{src+i}")
        XU = 128
        unpack(XU, XR)
        A("s_waitcnt vmcnt(6)")
        dn = R + 48
        unpack(dn, PK+24)
        for i in range(16): A(f"v_mul_f32 v{G_+i}, {hex(f32bits(-math.log2(math.e)))}, v{dn+i}")
        for i in range(16): A(f"v_exp_f32 v{G_+i}, v{G_+i}")
        for i in range(16): A(f"v_add_f32 v{G_+i}, 1.0, v{G_+i}")
        for i in range(16): A(f"v_rcp_f32 v{G_+i}, v{G_+i}")
        for i in range(16): A(f"v_mul_f32 v{G_+i}, v{G_+i}, v{dn+i}")
        A("s_waitcnt vmcnt(0)")
        unpack(R, PK); unpack(R+16, PK+8); unpack(R+32, PK+16)
        for i in range(16): A(f"v_add_f32 v{R+i}, v{R+i}, v{R+16+i}")
        for i in range(16): A(f"v_add_f32 v{R+i}, v{R+i}, v{R+32+i}")
        for i in range(16): A(f"v_fmac_f32 v{XU+i}, v{R+i}, v{G_+i}")
        for i in range(8): A(f"v_cvt_pk_bf16_f32 v{R+32+i}, v{XU+2*i}, v{XU+2*i+1}")
        for t in range(2):
            for h in range(2):
                A(f"buffer_store_dwordx2 {vr(R+32+4*t+2*h,2)}, v{VX}, s[{S_O}:{S_O+3}], {'s%d' % sT2 if t else '0'} offen offset:{h*32}")
        if asmlib.STAMP:
            A(f"s_mov_b32 s{P_WS}, s{S_WS}\ns_mov_b32 s{P_WS+1}, s{S_WS+1}\ns_waitcnt lgkmcnt(0)\ns_mov_b64 s[68:69], s[72:73]\ns_mov_b64 s[70:71], s[76:77]\ns_mov_b64 s[72:73], s[96:97]\ns_mov_b64 s[74:75], s[98:99]\ns_mov_b64 s[76:77], s[100:101]")
    if asmlib.STAMP:
        A("s_waitcnt vmcnt(0)")
        stamp_flush(A, 0, 8, P_WS, sW)
    A.label("K2_END")
    A("s_endpgm")
    for st in stubs:
        for x in st: A(x)
    return dict(name="k12_kernel", vgpr=512, accum=256, sgpr=102, grid=256, block=256, lds=163840)
```

```python
from asmlib import *
import asmlib
from k1f import KV_BASE, A3_BASE, A3_TB64, WS_USED, MF, f32bits, XC_BASE, SCQ_BASE, P2_BASE, CNT_BASE
import math

import os
QST = os.environ.get('QST', '0') == '1'
QPLAN = os.environ.get('QPLAN', '3')
CT = os.environ.get('CODE_TOUCH2', '1') == '1'
QROT = int(os.environ.get('QROT', '2'))
LATEKV = os.environ.get('LATEKV', '1') == '1'
NOBAR = os.environ.get('NOBAR', '0') == '1'
BARPOS = int(os.environ.get('BARPOS', '0'))
NOCHK = os.environ.get('NOCHK', '0') == '1'
CHKE = os.environ.get('CHKE', '1') == '1'
ONES = os.environ.get('ONES', '0') == '1'
BIAS = 24.0
SLP = int(os.environ.get('SLP', '8'))
FULL = os.environ.get('FULL', '1') == '1'
SLP2 = int(os.environ.get('SLP2', '4'))
ELO = os.environ.get('ELO', '1') == '1'
FINF = os.environ.get('FINF', '1') == '1'
LOSIG = os.environ.get('LOSIG', '1') == '1'
PCHK = int(os.environ.get('PCHK', '10'))
CTX_TOUCH = os.environ.get('CTX_TOUCH', '0') == '1'
def gen_k2(A, k1i, store_flags="", thr=2.0**30):
    O = 0; S01 = 128; S23 = [144, 160]; P01 = [176, 184]; P23 = 192; CX = 200; E = 232; LS = 236; L = 240
    VK = 244; VV = 245; VD = 246; TMP = 247
    AQ = 0; KF = 64; VF = 96; AL = 128; AO = 144
    NG = 34 if ONES else 32
    S_KV, S_WS = 8, 12
    sW, sH, sI, sT0, sT1, sOFF, sHALF, sCNT, sTHR, sNEG = 16, 17, 18, 19, 20, 21, 22, 23, 24, 25
    sMK = 26
    sRET = 34
    sP = 36; sOHI = 37; sOLO = 38
    P_WS = 40; P_WO = 42; P_WD = 44; P_WQ = 46; S_T = 48; sXH = 52; sXL = 53; sWQ = 54; sMQ = 55
    def Sreg(qp, kb, par): return (S01 + (qp*2+kb)*4) if qp < 2 else (S23[par] + ((qp-2)*2+kb)*4)
    def Preg(qp, par): return (P01[par] + qp*4) if qp < 2 else (P23 + (qp-2)*4)
    def Oreg(db, qb): return O + (db*4+qb)*4
    def CXr(qp, kb): return CX + (qp*2+kb)*4
    stubs = []
    uid = [0]
    def U(p): uid[0] += 1; return f"K2_{p}_{uid[0]}"

    def spin(lab, vp, vo, off, expect, mask=None, srd='s[80:83]', so='0', slp=None):
        stubs.append([f"{lab}_F:", f"s_mov_b32 s{sT1}, 0", f"s_branch {lab}_N", f"{lab}:", f"s_mov_b32 s{sT1}, 0", f"{lab}_L:", f"s_sleep {slp or SLP}", f"{lab}_N:",
                      f"buffer_load_dword v{vp}, v{vo}, {srd}, {so} offen offset:{off} sc1", "s_waitcnt vmcnt(0)"] + ([f"v_and_b32 v{vp}, {mask}, v{vp}"] if mask else []) +
                     [f"v_cmp_ne_u32 vcc, {expect}, v{vp}", f"s_add_u32 s{sT1}, s{sT1}, 1", f"s_cmp_ge_u32 s{sT1}, 0x8000", f"s_cbranch_scc1 {lab}_B", f"s_cbranch_vccnz {lab}_L", f"s_branch {lab}_B"])
    A(f"s_mov_b32 s{sW}, s{k1i['sW']}\nv_mov_b32 v{TMP+1}, v0")
    A(f"s_load_dwordx2 s[{P_WS}:{P_WS+1}], s[0:1], 96\ns_load_dwordx2 s[{P_WO}:{P_WO+1}], s[0:1], 40\ns_load_dwordx2 s[{P_WD}:{P_WD+1}], s[0:1], 72\ns_load_dwordx2 s[{P_WQ}:{P_WQ+1}], s[0:1], 16\ns_mov_b32 s{S_T+3}, 0x00020000")
    A(f"v_cmp_ne_u32 vcc, 4, v{k1i['XP']}\ns_barrier\ns_cbranch_vccnz K2_XSPIN")
    A.label("K2_XSPIN_B")
    spin("K2_XSPIN", k1i['XP'], k1i['XO'], 128, 4)
    A(f"s_and_b32 s{sT0}, s2, 7\ns_lshr_b32 s{sT1}, s2, 3\ns_lshr_b32 s{sI}, s{sT1}, 2\ns_and_b32 s{sT1}, s{sT1}, 3\ns_lshl_b32 s{sH}, s{sT0}, 2\ns_add_u32 s{sH}, s{sH}, s{sT1}")
    A(f"s_mov_b32 s{S_KV+3}, 0x00020000\ns_mov_b32 s{S_WS+3}, 0x00020000\ns_mov_b32 s{S_WS+2}, {WS_USED}")
    A(f"s_lshl_b32 s{sT0}, s{sI}, 16\ns_sub_u32 s{S_KV+2}, 0x108000, s{sT0}")
    A(f"s_mov_b32 s{sTHR}, {hex(0x40000000 if ONES else f32bits(thr))}\ns_mov_b32 s{sNEG}, 0xff800000")
    LN = TMP+1
    A(f"v_lshlrev_b32 v{VK}, 4, v{LN}\nv_add_u32 v{VV}, 0x10000, v{VK}")
    A(f"s_lshl_b32 s{sT0}, s{sW}, 12\nv_add_u32 v{VD}, s{sT0}, v{VK}")
    A(f"s_and_b32 s{sT0}, s{sW}, 1\ns_lshl_b32 s{sHALF}, s{sT0}, 12\ns_lshr_b32 s{sT0}, s{sW}, 1\ns_lshl_b32 s{sT1}, s{sT0}, 16\ns_add_u32 s{sHALF}, s{sHALF}, s{sT1}")
    A(f"s_lshl_b32 s{sT0}, s{sT0}, 15\ns_sub_u32 s{sOFF}, 0x8000, s{sT0}")
    A("s_waitcnt lgkmcnt(0)")
    A(f"s_mov_b32 s{S_WS}, s{P_WS}\ns_mov_b32 s{S_WS+1}, s{P_WS+1}")
    A(f"s_lshl_b32 s{sT0}, s{sH}, 20\ns_add_u32 s{sT0}, s{sT0}, {KV_BASE-0x8000}\ns_add_u32 s{S_KV}, s{P_WS}, s{sT0}\ns_addc_u32 s{S_KV+1}, s{P_WS+1}, 0")
    A(f"s_lshr_b32 s{sT0}, s{sW}, 1\ns_lshl_b32 s{sT1}, s{sI}, 1\ns_add_u32 s{sOLO}, s{sT1}, s{sT0}\ns_sub_u32 s{sOHI}, 30, s{sT1}\ns_add_u32 s{sOHI}, s{sOHI}, s{sT0}")
    A(f"s_mul_i32 s{sOLO}, s{sOLO}, {A3_TB64}\ns_mul_i32 s{sOHI}, s{sOHI}, {A3_TB64}")
    A(f"s_lshl_b32 s{sT0}, s{sH}, 14\ns_and_b32 s{sT1}, s{sW}, 1\ns_lshl_b32 s{sT1}, s{sT1}, 11\ns_add_u32 s{sT0}, s{sT0}, s{sT1}\ns_add_u32 s{sT0}, s{sT0}, {A3_BASE}")
    A(f"s_add_u32 s{sOLO}, s{sOLO}, s{sT0}\ns_add_u32 s{sOHI}, s{sOHI}, s{sT0}")
    def kread(f, unit4): return f"ds_read_b128 {ar(KF+4*f,4)}, v{VK} offset:{unit4*8192 + f*1024}"
    def vread(f, slot4): return f"ds_read_b128 {ar(VF+4*f,4)}, v{VV} offset:{slot4*8192 + f*1024}"
    def dma_group(c):
        pre = [f"s_add_u32 m0, s{sHALF}, {(c%4)*8192}"]
        d = [f"buffer_load_dwordx4 v{VD}, s[{S_KV}:{S_KV+3}], s{sOFF} offen offset:{j*1024} sc1 lds" for j in range(4)]
        post = [f"s_add_u32 s{sOFF}, s{sOFF}, 16384"]
        if c % 4 == 3: post.append(f"s_xor_b32 s{sHALF}, s{sHALF}, 0x8000")
        return pre, d, post
    AR = 128; TRQ = S01; VQ = S01 + 8
    A(f"s_mov_b32 s{S_T}, s{P_WQ}\ns_mov_b32 s{S_T+1}, s{P_WQ+1}\ns_mov_b32 s{S_T+2}, {512*8192}")
    A(f"s_lshl_b32 s{sT0}, s{sI}, 3\ns_lshl_b32 s{sT1}, s{sW}, 1\ns_add_u32 s{sXL}, s{sT0}, s{sT1}\ns_sub_u32 s{sXH}, 120, s{sT0}\ns_add_u32 s{sXH}, s{sXH}, s{sT1}")
    A(f"s_lshl_b32 s{sP}, s{sXH}, 6\ns_add_u32 s{sP}, s{sP}, {SCQ_BASE}\ns_lshl_b32 s{sCNT}, s{sXL}, 6\ns_add_u32 s{sCNT}, s{sCNT}, {SCQ_BASE}")
    A(f"s_lshl_b32 s{sXH}, s{sXH}, 14\ns_add_u32 s{sXH}, s{sXH}, {XC_BASE}\ns_lshl_b32 s{sXL}, s{sXL}, 14\ns_add_u32 s{sXL}, s{sXL}, {XC_BASE}")
    A(f"s_lshl_b32 s{sWQ}, s{sH}, 8\ns_lshl_b32 s{sT0}, s{sW}, 16\ns_add_u32 s{sWQ}, s{sWQ}, s{sT0}\ns_lshl_b32 s{sMQ}, s{sW}, 11\ns_add_u32 s{sMQ}, s{sMQ}, 32768")
    A(f"v_lshrrev_b32 v{TMP+2}, 4, v{LN}\nv_and_b32 v{TMP+3}, 15, v{LN}\ns_and_b32 s{sT0}, s{sW}, 1\ns_lshl_b32 s{sT0}, s{sT0}, 2\nv_or_b32 v{TMP+4}, s{sT0}, v{TMP+2}\nv_lshlrev_b32 v{TMP+4}, 1, v{TMP+4}\nv_xor_b32 v{TMP+4}, v{TMP+4}, v{TMP+3}")
    A(f"v_lshlrev_b32 v{TMP+5}, 13, v{TMP+2}\nv_lshl_add_u32 v{VQ}, v{TMP+4}, 4, v{TMP+5}\nv_add_u32 v{VQ+1}, {4*8192-1024}, v{VQ}\nv_add_u32 v{VQ+2}, 16384, v{VK}")
    sQO, sWQQ, sXH1, sXL1 = 56, 60, 84, 85
    rsrc = {0: "0", 1: f"s{sH}", 2: f"s{sI}"}[QROT if QROT < 3 else 1]
    if QROT == 3: A(f"s_add_u32 s{sT1}, s{sH}, s{sI}"); rsrc = f"s{sT1}"
    for q in range(4):
        A(f"s_add_u32 s{sT0}, {rsrc}, {q}\ns_and_b32 s{sT0}, s{sT0}, 3\ns_lshl_b32 s{sQO+q}, s{sT0}, 12\ns_lshl_b32 s{sT0}, s{sT0}, 20\ns_add_u32 s{sWQQ+q}, s{sWQ}, s{sT0}")
    def w_loads(n):
        return [[f"s_add_u32 m0, s{sMQ}, {n*8192}", f"s_add_u32 s{sT0}, s{sWQQ+n//4}, {(n%4)*32*8192}"],
                [f"buffer_load_dwordx4 v{VQ}, s[{S_T}:{S_T+3}], s{sT0} offen lds"], [f"buffer_load_dwordx4 v{VQ+1}, s[{S_T}:{S_T+3}], s{sT0} offen offset:1024 lds"]]
    def adst(n, t):
        if n < 8: return ar(AR+n*16+4*t, 4)
        if n < 12: return ar((n-8)*16+4*t, 4)
        if n < 14: return ar(96+(n-12)*16+4*t, 4)
        return vr(144+(n-14)*16+4*t, 4)
    def a_loads(n):
        o = []
        if n % 4 == 0: o.append([f"s_add_u32 s{sXH1}, s{sXH}, s{sQO+n//4}", f"s_add_u32 s{sXL1}, s{sXL}, s{sQO+n//4}"])
        for t in range(4):
            o.append([f"buffer_load_dwordx4 {adst(n,t)}, v{VQ+2 if t % 2 else VK}, s[{S_WS}:{S_WS+3}], s{sXH1 if t < 2 else sXL1} offen offset:{(n%4)*1024} sc1"])
        return o
    seq = []
    def mk(tags):
        its = []
        for k, n in tags:
            x = (w_loads if k == 'W' else a_loads)(n)
            for it in x:
                for y in it:
                    if y.startswith('buffer'): seq.append((k, n))
            its += x
        return its
    def vmq(tag): return min(63, len(seq) - 1 - max(i for i, e in enumerate(seq) if e == tag))
    def vmq_(tag): return len(seq) - 1 - max(i for i, e in enumerate(seq) if e == tag)
    for it in mk([('W',0),('A',0),('W',1),('W',2),('A',1),('A',2),('W',3),('W',4),('A',3)]):
        for x in it: A(x)
    A(f"v_lshlrev_b32 v{TMP+4}, 2, v{TMP+3}")
    A(f"v_bfe_u32 v{TMP+3}, v{LN}, 2, 2\nv_and_b32 v{TMP+6}, 1, v{TMP+2}\nv_lshl_add_u32 v{TMP+6}, v{TMP+6}, 2, v{TMP+3}\nv_lshl_add_u32 v{TMP+3}, v{TMP+2}, 3, v{TMP+3}\nv_lshlrev_b32 v{TMP+3}, 8, v{TMP+3}")
    A(f"v_and_b32 v{TMP+5}, 3, v{LN}\nv_lshl_add_u32 v{TMP+3}, v{TMP+5}, 3, v{TMP+3}\nv_add_u32 v{TMP+3}, 0x8000, v{TMP+3}")
    for nb in range(8): A(f"v_xor_b32 v{TMP+5}, {nb}, v{TMP+6}\nv_lshl_add_u32 v{TRQ+nb}, v{TMP+5}, 5, v{TMP+3}")
    def qtr(nb, ks): return [f"ds_read_b64_tr_b16 {ar(KF+4*nb,2)}, v{TRQ+nb} offset:{(ks%8)*8192}", f"ds_read_b64_tr_b16 {ar(KF+4*nb+2,2)}, v{TRQ+nb} offset:{(ks%8)*8192+1024}"]
    A(f"s_and_b32 s{sT0}, s2, 15\ns_lshl_b32 s{sT0}, s{sT0}, 2\nv_mov_b32 v{TMP+5}, s{sT0}\nv_mov_b32 v{TMP+6}, 1")
    A(f"s_waitcnt vmcnt({len(seq)})\ns_barrier")
    A(f"s_cmp_lg_u32 s{sW}, 0\ns_cbranch_scc1 K2_NOSIG\ns_mov_b64 exec, 1\nbuffer_atomic_add v{TMP+6}, v{TMP+5}, s[80:83], 0 offen sc1\ns_mov_b64 exec, -1")
    A.label("K2_NOSIG")
    A(f"s_waitcnt vmcnt({vmq(('W', 0))})\ns_barrier")
    for nb in range(8):
        for x in qtr(nb, 0): A(x)
    A("s_waitcnt lgkmcnt(12)")
    plan = {0: [('A',4),('W',5),('A',5),('W',6),('A',6),('W',7)], 1: [('A',7),('W',8),('A',8),('W',9),('A',9),('W',10)], 2: [('A',10),('W',11),('A',11),('W',12),('A',12),('W',13)],
            3: [('A',13),('W',14),('A',14),('W',15),('A',15)]}
    if QPLAN == '2':
        plan = {0: [('A',4),('W',5),('W',6),('A',5),('W',7),('W',8)], 1: [('A',6),('W',9),('W',10),('A',7),('W',11),('W',12)], 2: [('A',8),('W',13),('W',14),('W',15),('A',9)]}
        for k_ in range(3, 9): plan[k_] = [('A', k_+7)]
    if QPLAN == '3':
        plan = {0: [('A',4),('W',5),('A',5)], 1: [('W',6),('A',6),('W',7),('A',7)], 2: [('W',8),('A',8),('W',9),('A',9)], 3: [('W',10),('A',10),('W',11)], 4: [('A',11),('W',12),('W',13)], 5: [('A',12),('W',14),('W',15)], 6: [('A',13)], 7: [('A',14)], 8: [('A',15)]}
    bars = {0: 2, 2: 4, 4: 8, 8: 15}
    NEGV = TMP+8
    misc = [f"v_mov_b32 v{r}, 0" for r in list(range(CX, CX+32)) + list(range(LS, LS+8))]
    misc += [f"v_and_b32 v{TMP+2}, 15, v{LN}", f"v_lshrrev_b32 v{TMP+3}, 4, v{LN}", f"v_lshlrev_b32 v{TMP+3}, 2, v{TMP+3}", f"v_sub_u32 v{TMP+2}, v{TMP+2}, v{TMP+3}"]
    misc += [f"v_cmp_le_i32 s[{sMK+2*i}:{sMK+2*i+1}], {i}, v{TMP+2}" for i in range(4)] + [f"v_mov_b32 v{NEGV}, s{sNEG}", "s_nop 0"]
    def q_epi(ds):
        o = []
        for qb in range(4):
            tq = QT + 4*(qb % 2)
            for h in range(2):
                b_ = Oreg(2*ds+h, qb)
                o += [f"v_mul_f32 v{b_+i}, v{b_+i}, v{E+qb}" for i in range(4)]
                o += [f"v_cvt_pk_bf16_f32 v{tq+2*h}, v{b_}, v{b_+1}", f"v_cvt_pk_bf16_f32 v{tq+2*h+1}, v{b_+2}, v{b_+3}"]
            o += [f"v_accvgpr_write_b32 a{AQ+(qb*4+ds)*4+i}, v{tq+i}" for i in range(4)]
        return o
    QT = P01[0]
    e0 = q_epi(0)
    for ks in range(16):
        gaps = {}
        def G(m): return gaps.setdefault(m, [])
        pre = [f"s_waitcnt vmcnt({vmq(('A', ks))})"]
        if ks in bars: G(0).extend([f"s_waitcnt vmcnt({vmq(('W', bars[ks]))})", "s_barrier"])
        if ks == 12: G(0).append("s_barrier")
        sRDY = 86
        if ks == PCHK:
            G(1).extend([f"s_waitcnt vmcnt({vmq(('P', 0))})", f"v_cmp_ne_u32 vcc, 16, v{TMP+7}"])
            G(4).extend([f"s_cmp_eq_u64 vcc, 0", f"s_cselect_b32 s{sRDY}, 1, 0", f"v_mov_b32 v{TMP+6}, s{sRDY}", f"s_cmp_lg_u32 s{sW}, 0", "s_cbranch_scc1 K2_NOMB", f"ds_write_b32 v{TMP+5}, v{TMP+6}", "K2_NOMB:"])
        if ks == 3: G(2).extend([f"v_mov_b32 v{TMP+5}, 0x8000", f"v_mov_b32 v{TMP+6}, 0", f"ds_write_b32 v{TMP+5}, v{TMP+6}"])
        its = mk(plan.get(ks, []))
        if ks == PCHK - 2:
            its.append([f"buffer_load_dword v{TMP+7}, v{TMP+4}, s[80:83], 0 offen sc1"]); seq.append(('P', 0))
        if ks == 6:
            for qb in range(4):
                its.append([f"buffer_load_dword v{E+qb}, v{TMP+4}, s[{S_WS}:{S_WS+3}], s{sP if qb < 2 else sCNT} offen offset:{(qb%2)*64} sc1"]); seq.append(('S', 0))
        def kv_init(c):
            p_, d_, po_ = dma_group(c)
            if c < 2:
                lab = U("KS")
                return [f"s_cmp_ge_u32 s{sW}, 2", f"s_cbranch_scc1 {lab}"] + p_ + ["s_nop 0"] + d_ + [lab + ":"] + po_
            return p_ + ["s_nop 0"] + d_ + po_
        if PCHK <= ks < PCHK + 4:
            lab = U("NR")
            its.append([f"s_cmp_eq_u32 s{sRDY}, 0", f"s_cbranch_scc1 {lab}"] + kv_init(ks - PCHK) + [lab + ":"])
        if ks in (13, 14): its += [misc[(ks-13)*26+2*k:(ks-13)*26+2*k+2] for k in range(13)]
        m = 1 if ks != PCHK else 5
        for it in its:
            G(m).extend(it)
            m = m + 1 if (m + 1) % 4 != 3 else m + 2
        if ks == 15:
            m = max(m, 12)
            while m < 31:
                G(m).extend(e0[:2]); e0 = e0[2:]
                m = m + 1 if (m + 1) % 4 != 3 else m + 2
        assert m < 33, m
        if ks < 15:
            for grp in range(1, 8, 2): G(grp*4+2).append("s_waitcnt lgkmcnt(10)")
        else:
            G(6).append("s_waitcnt lgkmcnt(8)"); G(14).append("s_waitcnt lgkmcnt(0)")
        for x in pre: A(x)
        for nb in range(8):
            for t in range(4):
                d = Oreg(nb, t)
                A(f"{MF} {vr(d,4)}, {ar(KF+4*nb,4)}, {adst(ks,t)}, {'0' if ks == 0 else vr(d,4)}")
                if t == 3 and ks < 15:
                    if ks == 7: A(f"v_add_u32 v{TRQ+nb}, 0x10000, v{TRQ+nb}")
                    for x in qtr(nb, ks+1): A(x)
                for x in G(nb*4+t): A(x)
    stamp(A, 3)

    def Dpatch(q0):
        o = []
        for i in range(4): o.append(f"v_cndmask_b32 v{CXr(q0,0)+i}, v{NEGV}, v{CXr(q0,0)+i}, s[{sMK+2*i}:{sMK+2*i+1}]")
        for i in range(4): o.append(f"v_mov_b32 v{CXr(q0,1)+i}, v{NEGV}")
        for i in range(4): o.append(f"v_cndmask_b32 v{CXr(q0+1,1)+i}, v{NEGV}, v{CXr(q0+1,1)+i}, s[{sMK+2*i}:{sMK+2*i+1}]")
        return o
    def Fpatch(q0): return [f"v_mov_b32 v{CXr(q0,0)+i}, v{NEGV}" for i in range(16)]
    def patch(q0, j):
        o = []
        lD, lE = U("PD"), U("PE")
        o.append(f"s_cmp_gt_u32 s{sW}, {j}"); o.append(f"s_cbranch_scc1 {lE}")
        if j > 0:
            o.append(f"s_cmp_eq_u32 s{sW}, {j}"); o.append(f"s_cbranch_scc1 {lD}")
            o += Fpatch(q0); o.append(f"s_branch {lE}")
            o.append(lD + ":")
        o += Dpatch(q0)
        o.append(lE + ":")
        o.append("s_nop 1")
        return o


    def sm_gaps1(qs, srcpar, dstpar, look):
        g = [[] for _ in range(34)]
        src = lambda k: Sreg(qs[k//4], (k % 4)//2, srcpar) + 2*(k % 2)
        pr = lambda k: Preg(qs[k//4], dstpar) + k % 4
        for k in range(8):
            en = E + 2*((k+1) % 2); ec = E + 2*(k % 2)
            cv = f"v_cvt_pk_bf16_f32 v{pr(k)}, v{ec}, v{ec+1}"
            orr = None
            if k % 2 == 1: orr = f"v_or_b32 v{TMP}, v{pr(0)}, v{pr(1)}" if k == 1 else f"v_or3_b32 v{TMP}, v{TMP}, v{pr(k-1)}, v{pr(k)}"
            if k < 7:
                g[4*k].append(f"v_exp_f32 v{en}, v{src(k+1)}"); g[4*k+2].append(f"v_exp_f32 v{en+1}, v{src(k+1)+1}")
                g[4*k+1].append(cv)
                if orr: g[4*k+3].append(orr)
            else:
                g[28] += [cv, orr]
                g[29].append(f"v_lshl_or_b32 v{TMP}, v{TMP}, 16, v{TMP}")
                g[30].append(f"v_cmp_le_u32 vcc, s{sTHR}, v{TMP}")
                if look: g[32].append(f"v_exp_f32 v{en}, v{look[0]}"); g[33].append(f"v_exp_f32 v{en+1}, v{look[1]}")
        return g
    def lmf(qps, rows, par, czero):
        return [(f"{MF} {ar(AL+4*r,4)}, {ar(AO,4)}, {vr(Preg(qp,par),4)}, {'0' if czero else ar(AL+4*r,4)}", None) for qp, r in zip(qps, rows)]

    def sm_gaps(qs, srcpar, dstpar, look, ladd):
        g = [[] for _ in range(32)]
        lsb = LS + (0 if qs[0] == 0 else 2)
        src = lambda k: Sreg(qs[k//4], (k % 4)//2, srcpar) + 2*(k % 2)
        for k in range(8):
            if k < 7: a, b = src(k+1), src(k+1)+1
            elif look: a, b = look
            else: a = None
            en = E + 2*((k+1) % 2); ec = E + 2*(k % 2)
            if a is not None:
                g[4*k].append(f"v_exp_f32 v{en}, v{a}"); g[4*k+2].append(f"v_exp_f32 v{en+1}, v{b}")
            ls = lsb + k//4
            if k % 4 == 0:
                g[4*k+1].append(f"v_add_f32 v{ls}, v{ec}, v{ec+1}")
                lr, lsr = ladd[k//4]
                g[4*k+1].append(f"v_add_f32 v{lr}, v{lr}, v{lsr}")
            else:
                g[4*k+1].append(f"v_add_f32 v{ls}, v{ls}, v{ec}"); g[4*k+1].append(f"v_add_f32 v{ls}, v{ls}, v{ec+1}")
            g[4*k+3].append(f"v_cvt_pk_bf16_f32 v{Preg(qs[k//4], dstpar) + k % 4}, v{ec}, v{ec+1}")
        if not NOCHK:
            if CHKE:
                e_a = g[28]; adds = g[29]; e_b = g[30]
                g[28] = adds; g[29] = [f"v_max_f32 v{TMP}, v{lsb}, v{lsb+1}", f"v_cmp_lt_f32 vcc, s{sTHR}, v{TMP}"]
                g[30] = e_a; g[31] = g[31] + e_b
            else:
                g[30].append(f"v_max_f32 v{TMP}, v{lsb}, v{lsb+1}")
                g[31].append(f"v_cmp_lt_f32 vcc, s{sTHR}, v{TMP}")
        return g

    def rescale(rows, init=False):
        o = ["s_nop 7"]
        D, D2, F = TMP+1, TMP+2, TMP+3
        for r in rows:
            s0 = r['S']
            o.append(f"v_max3_f32 v{D}, v{s0}, v{s0+1}, v{s0+2}")
            o.append(f"v_max3_f32 v{D}, v{D}, v{s0+3}, v{s0+4}")
            o.append(f"v_max3_f32 v{D}, v{D}, v{s0+5}, v{s0+6}")
            o.append(f"v_max_f32 v{D}, v{D}, v{s0+7}")
            o += [f"v_mov_b32 v{D2}, v{D}", "s_nop 1", f"v_permlane16_swap_b32 v{D}, v{D2}", f"v_max_f32 v{D}, v{D}, v{D2}"]
            o += [f"v_mov_b32 v{D2}, v{D}", "s_nop 1", f"v_permlane32_swap_b32 v{D}, v{D2}", f"v_max_f32 v{D}, v{D}, v{D2}"]
            o.append(f"v_ceil_f32 v{D}, v{D}")
            if ONES: o.append(f"v_add_f32 v{D}, {hex(f32bits(BIAS))}, v{D}")
            if not init:
                o.append(f"v_max_f32 v{D}, 0, v{D}")
                o.append(f"v_exp_f32 v{F}, -v{D}")
            for b in [s0] + r['subs']:
                for i in range(8): o.append(f"v_sub_f32 v{b+i}, v{b+i}, v{D}")
            if not init:
                qb = r['qb']
                for db in range(8):
                    for i in range(4): o.append(f"v_mul_f32 v{Oreg(db,qb)+i}, v{Oreg(db,qb)+i}, v{F}")
                if ONES:
                    for i in range(4): o += [f"v_accvgpr_read_b32 v{D2}, a{AL+4*qb+i}", f"v_mul_f32 v{D2}, v{D2}, v{F}", f"v_accvgpr_write_b32 a{AL+4*qb+i}, v{D2}"]
                else: o.append(f"v_mul_f32 v{L+qb}, v{L+qb}, v{F}")
                for pr in r.get('Pscale', []):
                    o += [f"v_lshlrev_b32 v{D2}, 16, v{pr}", f"v_and_b32 v{pr}, 0xffff0000, v{pr}", f"v_mul_f32 v{D2}, v{D2}, v{F}", f"v_mul_f32 v{pr}, v{pr}, v{F}",
                          f"v_cvt_pk_bf16_f32 v{pr}, v{D2}, v{pr}"]
            if r.get('P') is not None:
                ls = r['ls']
                for k in range(4):
                    o += [f"v_exp_f32 v{E}, v{s0+2*k}", f"v_exp_f32 v{E+1}, v{s0+2*k+1}", "s_nop 0"]
                    if ONES: pass
                    elif k == 0: o.append(f"v_add_f32 v{ls}, v{E}, v{E+1}")
                    else: o += [f"v_add_f32 v{ls}, v{ls}, v{E}", f"v_add_f32 v{ls}, v{ls}, v{E+1}"]
                    o.append(f"v_cvt_pk_bf16_f32 v{r['P']+k}, v{E}, v{E+1}")
        return o
    def relook(look):
        return [f"v_exp_f32 v{E}, v{look[0]}", f"v_exp_f32 v{E+1}, v{look[1]}", "s_nop 1"] if look else ["s_nop 1"]

    def check_site(code):
        ls, lb = U("SLOW"), U("BACK")
        if not NOCHK: A(f"s_cbranch_vccnz {ls}")
        A.label(lb)
        stubs.append([ls + ":"] + code + [f"s_branch {lb}"])

    def emit_half(mf, gaps, extra, waits):
        for g in range(len(mf)):
            if g in waits: A(waits[g])
            m, rd = mf[g]
            if m: A(m)
            elif g == 28: A("s_nop 0")
            if rd: A(rd)
            ex = extra.get(g, ([], []))
            for x in ex[0]: A(x)
            for x in ex[1]: A(x)
            for x in gaps[g]: A(x)

    def H1(par, mq, ms, ku, toggleK=None, vm=None, dmas=(), noqk=False, nosm=False, last=False, fill=None, czero=False):
        n = 1 - par
        mf = []
        if noqk: mf = [(None, None)]*32
        elif mq == 4:
            for f in range(8):
                kb, ds = f//4, f % 4
                for qp in range(4):
                    d = Sreg(qp, kb, n)
                    c = vr(CXr(qp, kb), 4) if ds == 0 else vr(d, 4)
                    mf.append((f"{MF} {vr(d,4)}, {ar(KF+4*f,4)}, {ar(AQ+(qp*4+ds)*4,4)}, {c}", kread(f, ku[0]) if qp == 3 else None))
        else:
            for j in range(16):
                sel, f = j//8, j % 8
                kb, ds = f//4, f % 4
                for qb in range(2):
                    qp = 2*sel + qb
                    d = Sreg(qp, kb, n)
                    c = vr(CXr(qp, kb), 4) if ds == 0 else vr(d, 4)
                    rd = None
                    if qb == 1 and not (last and sel == 1): rd = kread(f, ku[sel])
                    mf.append((f"{MF} {vr(d,4)}, {ar(KF+4*f,4)}, {ar(AQ+(qb*4+ds)*4,4)}, {c}", rd))
        look = None if noqk else (Sreg(0, 0, n), Sreg(0, 0, n)+1)
        if nosm:
            gaps = [list(fill[2*g:2*g+2]) if fill else [] for g in range(32)]
        else:
            if ONES:
                gaps = sm_gaps1((2, 3), par, par, look); mf = list(mf) + lmf((0, 1), (0, 1), par, czero)
            else: gaps = sm_gaps((2, 3), par, par, look, [(L+0, LS+0), (L+1, LS+1)])
        extra = {}
        waits = {}
        if not noqk:
            waits[0] = "s_waitcnt lgkmcnt(8)"
            if mq == 2: waits[16] = "s_waitcnt lgkmcnt(4)"; waits[24] = "s_waitcnt lgkmcnt(4)"
        if vm is not None:
            extra[BARPOS] = ([], [f"s_waitcnt vmcnt({vm})"] + ([] if NOBAR else ["s_barrier"]))
        if toggleK is not None:
            gi = 0 if toggleK == 0 else 16
            e = extra.setdefault(gi, ([], [])); e[1].append(f"v_xor_b32 v{VK}, 0x8000, v{VK}")
        place_dmas(extra, dmas)
        emit_half(mf, gaps, extra, waits)
        if not nosm:
            rows = []
            for qq in range(2):
                qp = 2 + qq
                r = dict(S=Sreg(qp, 0, par), P=Preg(qp, par), ls=LS+2+qq)
                if ms == 4:
                    r['qb'] = qp
                    r['subs'] = ([Sreg(qp, 0, n), CXr(qp, 0)] if (mq == 4 and not noqk) else [])
                else:
                    r['qb'] = qq
                    r['subs'] = [CXr(qq, 0), CXr(qp, 0)] + ([] if noqk else [Sreg(qq, 0, n), Sreg(qp, 0, n)])
                    r['Pscale'] = [Preg(qq, par)+k for k in range(4)]
                rows.append(r)
            check_site(rescale(rows) + relook(look))

    def place_dmas(extra, dmas):
        for c, g0 in dmas:
            pre, d, post = dma_group(c)
            if ONES:
                for j in range(4): extra.setdefault(3 + 8*j, ([], []))[0].append(d[j])
                extra.setdefault(30, ([], []))[1].extend(post[:1])
                extra.setdefault(31, ([], []))[1].extend(post[1:] + dma_group(c+1)[0])
                continue
            e = extra.setdefault(g0, ([], [])); e[1].extend(pre)
            for j in range(4):
                e = extra.setdefault(g0+1+4*j if g0+1+4*j < 32 else 31, ([], [])); e[0].append(d[j])
            e = extra.setdefault(min(31, g0+2+12), ([], [])); e[1].extend(post)

    def H2(par, mp, mnext, vu, toggleV=None, dmas=(), nopv=False, nosm=False, czero=False):
        n = 1 - par
        mf = []
        if nopv: mf = [(None, None)]*32
        elif mp == 4:
            for db in range(8):
                for qp in range(4):
                    d = Oreg(db, qp)
                    mf.append((f"{MF} {vr(d,4)}, {ar(VF+4*db,4)}, {vr(Preg(qp,par),4)}, {'0' if czero else vr(d,4)}", vread(db, vu[0]) if qp == 3 else None))
        else:
            for j in range(16):
                sel, db = j//8, j % 8
                for qb in range(2):
                    d = Oreg(db, qb)
                    rd = None
                    if qb == 1 and not (nosm and sel == 1): rd = vread(db, vu[sel])
                    mf.append((f"{MF} {vr(d,4)}, {ar(VF+4*db,4)}, {vr(Preg(2*sel+qb,par),4)}, {vr(d,4)}", rd))
        look = (Sreg(2, 0, n), Sreg(2, 0, n)+1)
        lt = (L+2, L+3) if mp == 4 else (L+0, L+1)
        if nosm:
            gaps = [[] for _ in range(34)]
            if not ONES: gaps[1] = [f"v_add_f32 v{lt[0]}, v{lt[0]}, v{LS+2}", f"v_add_f32 v{lt[1]}, v{lt[1]}, v{LS+3}"]
        elif ONES: gaps = sm_gaps1((0, 1), n, n, look)
        else:
            gaps = sm_gaps((0, 1), n, n, look, [(lt[0], LS+2), (lt[1], LS+3)])
        if ONES: mf = list(mf) + (lmf((2, 3), (2, 3) if mp == 4 else (0, 1), par, czero) if not nopv else [(None, None)]*2)
        extra = {}
        waits = {}
        if not nopv:
            waits[0] = "s_waitcnt lgkmcnt(8)" if not nosm else "s_waitcnt lgkmcnt(0)"
            if mp == 2: waits[16] = "s_waitcnt lgkmcnt(4)"; waits[24] = "s_waitcnt lgkmcnt(4)" if not nosm else "s_waitcnt lgkmcnt(0)"
        if toggleV is not None:
            gi = 0 if toggleV == 0 else 16
            e = extra.setdefault(gi, ([], [])); e[1].append(f"v_xor_b32 v{VV}, 0x8000, v{VV}")
        place_dmas(extra, dmas)
        emit_half(mf, gaps, extra, waits)
        if not nosm and not nopv:
            rows = []
            for qb in range(2):
                r = dict(S=Sreg(qb, 0, n), P=Preg(qb, n), ls=LS+qb, qb=qb, subs=[CXr(qb, 0)])
                if mnext == 2: r['subs'] += [Sreg(qb+2, 0, n), CXr(qb+2, 0)]
                rows.append(r)
            check_site(rescale(rows) + relook(look))

    def hook(cond_reg, val, code):
        ls, lb = U("HOOK"), U("HB")
        A(f"s_cmp_eq_u32 s{cond_reg}, {val}\ns_cbranch_scc1 {ls}")
        A.label(lb)
        stubs.append([ls + ":"] + code + [f"s_branch {lb}"])

    hook(sI, 0, patch(2, 0))
    if ONES:
        A(f"v_mov_b32 v{TMP}, 0x3f803f80")
        for i in range(4): A(f"v_accvgpr_write_b32 a{AO+i}, v{TMP}")
    A(f"s_cmp_eq_u32 s{sRDY}, 0\ns_cbranch_scc1 K2_KLATE")
    A.label("K2_KOK")
    stubs.append(["K2_KLATE:", f"s_cmp_eq_u32 s{sW}, 0", "s_cbranch_scc1 K2_KSPIN_F", f"s_mov_b32 s{sT1}, 0", "K2_KL:", f"ds_read_b32 v{TMP+7}, v{TMP+5}", "s_waitcnt lgkmcnt(0)", f"v_cmp_ne_u32 vcc, 1, v{TMP+7}",
                  f"s_add_u32 s{sT1}, s{sT1}, 1", f"s_cmp_ge_u32 s{sT1}, 0x100000", "s_cbranch_scc1 K2_KGO", "s_sleep 1", "s_cbranch_vccnz K2_KL", "s_branch K2_KGO"])
    spin("K2_KSPIN", TMP+7, TMP+4, 0, 16)
    stubs.append(["K2_KSPIN_B:", f"v_mov_b32 v{TMP+6}, 1", f"ds_write_b32 v{TMP+5}, v{TMP+6}", "K2_KGO:"] + kv_init(0) + kv_init(1) + kv_init(2) + kv_init(3) + ["s_branch K2_KOK"])
    for x in e0: A(x)
    A("s_waitcnt vmcnt(0)\ns_barrier")
    if asmlib.STAMP: A("s_memrealtime s[68:69]")
    for f in range(8): A(kread(f, 0))
    for f in range(8): A(vread(f, 2))
    A("s_waitcnt lgkmcnt(8)")
    for ds in range(4):
        p_, d_, po_ = dma_group(4 + ds if LATEKV else 7)
        ep = q_epi(ds+1) if ds < 3 else []
        mfs = []
        for kb in range(2):
            f = kb*4 + ds
            for qp in range(4):
                d = Sreg(qp, kb, 0)
                mfs.append([f"{MF} {vr(d,4)}, {ar(KF+4*f,4)}, {ar(AQ+(qp*4+ds)*4,4)}, {vr(CXr(qp,kb),4) if ds == 0 else vr(d,4)}"] + ([kread(f, 1)] if qp == 3 else []))
        if ds == 0 or LATEKV: mfs[0] = p_ + ["s_nop 0"] + mfs[0]
        if ds == 0 or LATEKV:
            for j in range(4): mfs[1+j] = mfs[1+j] + [d_[j]]
            mfs[6] = mfs[6] + po_
        if ds == 3: A("s_nop 1")
        for k in range(8):
            for x in mfs[k]: A(x)
            for x in ep[8*k:8*k+8]: A(x)
    rows = []
    for qp in range(4): rows.append(dict(S=Sreg(qp, 0, 0), subs=[CXr(qp, 0)], P=None))
    for x in rescale(rows, init=True): A(x)
    A(f"v_exp_f32 v{E}, v{Sreg(0,0,0)}\nv_exp_f32 v{E+1}, v{Sreg(0,0,0)+1}")
    H2(1, 4, 4, None, nopv=True)
    stamp(A, 4)
    A(f"s_mov_b32 s{sCNT}, s{sI}")
    if ONES: A(dma_group(8)[0][0])
    A("s_waitcnt lgkmcnt(0)")

    def finalize(qbs, OB, VLANE):
        assert not ONES
        for qb in qbs:
            D, D2 = L+qb, TMP+1
            A(f"v_mov_b32 v{D2}, v{D}\ns_nop 1\nv_permlane16_swap_b32 v{D}, v{D2}\nv_add_f32 v{D}, v{D}, v{D2}")
            A(f"v_mov_b32 v{D2}, v{D}\ns_nop 1\nv_permlane32_swap_b32 v{D}, v{D2}\nv_add_f32 v{D}, v{D}, v{D2}")
            A(f"v_rcp_f32 v{D}, v{D}")
        oq = 0
        for qb in qbs:
            for ds in range(4):
                ob = OB(qb, ds) if callable(OB) else OB + 4*oq
                for h in range(2):
                    b = Oreg(2*ds+h, qb)
                    for i in range(4): A(f"v_mul_f32 v{b+i}, v{b+i}, v{L+qb}")
                for h in range(2):
                    b = Oreg(2*ds+h, qb)
                    A(f"v_cvt_pk_bf16_f32 v{ob+2*h}, v{b}, v{b+1}\nv_cvt_pk_bf16_f32 v{ob+2*h+1}, v{b+2}, v{b+3}")
                A(f"s_add_u32 s{sT0}, s{sOHI if qb < 2 else sOLO}, {ds*4096}")
                A(f"buffer_store_dwordx4 {vr(ob,4)}, v{VLANE}, s[{S_WS}:{S_WS+3}], s{sT0} offen offset:{(qb%2)*1024}{store_flags}")
                oq = (oq+1) % 4

    def period44(r, pre=None, czero=False):
        par = r % 2
        if pre: pre()
        ku = (r+2) % 4; vu = (r+1+2) % 4
        H1(par, 4, 4, [ku], toggleK=0 if ku == 0 else None, vm=16, dmas=[(r, 8)], czero=czero)
        H2(par, 4, 4, [vu], toggleV=0 if vu == 0 else None, czero=czero)

    period44(0, pre=lambda: hook(sI, 0, patch(2, 1)), czero=True)
    A(f"s_cmp_eq_u32 s{sCNT}, 0\ns_cbranch_scc1 K2_SPECIAL_R1\ns_branch K2_LOOPA_R1")
    A(".p2align 6")
    A.label("K2_LOOPA")
    for r in range(4):
        if r == 1: A.label("K2_LOOPA_R1")
        period44(r, pre=(lambda: hook(sCNT, 1, patch(2, 0))) if r == 3 else None)
    A(f"s_sub_u32 s{sCNT}, s{sCNT}, 1\ns_cmp_lg_u32 s{sCNT}, 0\ns_cbranch_scc1 K2_LOOPA")
    A.label("K2_SPECIAL")
    for r in range(3):
        if r == 1: A.label("K2_SPECIAL_R1")
        period44(r, pre=lambda: [A(x) for x in patch(2, r+1)])
    A(f"s_cmp_lt_u32 s{sW}, 2\ns_cselect_b32 s{S_T}, s{P_WO}, s{P_WD}\ns_cselect_b32 s{S_T+1}, s{P_WO+1}, s{P_WD+1}\ns_mov_b32 s{sT0}, {1376*1024}\ns_cselect_b32 s{S_T+2}, {4096*1024}, s{sT0}")
    A(f"s_mul_i32 s{sT0}, s2, {43*128}\ns_lshl_b32 s{sT1}, s2, 14\ns_cselect_b32 s{sT0}, s{sT1}, s{sT0}".replace("s_lshl_b32 s{sT1}, s2, 14".format(sT1=sT1), f"s_mul_i32 s{sT1}, s2, 16384"))
    A(f"s_and_b32 s{sT1}, s{sW}, 1\ns_lshl_b32 s{sT1}, s{sT1}, 13\ns_add_u32 s{sT0}, s{sT0}, s{sT1}\nv_and_b32 v{TMP+7}, 0x3ff, v{VK}\nv_lshlrev_b32 v{TMP+7}, 3, v{TMP+7}")
    A(f"buffer_load_dword v{TMP+7}, v{TMP+7}, s[{S_T}:{S_T+3}], s{sT0} offen")
    if CT:
        A(f"v_and_b32 v{TMP+6}, 0x3ff, v{VK}")
        code_touch(A, "K3_START" if FULL else "k3_kernel", "K2_END" if FULL else "K4_END", sW, TMP+6, TMP+6, 88, lane_shift=4)
    if CTX_TOUCH:
        A(f"v_lshrrev_b32 v{TMP+6}, 8, v{VK}\nv_and_b32 v{TMP+6}, 3, v{TMP+6}\nv_lshlrev_b32 v{TMP+6}, 12, v{TMP+6}\nv_and_b32 v{TMP+5}, 0xf0, v{VK}\nv_lshl_add_u32 v{TMP+6}, v{TMP+5}, 3, v{TMP+6}")
        A(f"buffer_load_dword v{TMP+5}, v{TMP+6}, s[{S_WS}:{S_WS+3}], s{sOHI} offen\nbuffer_load_dword v{TMP+6}, v{TMP+6}, s[{S_WS}:{S_WS+3}], s{sOLO} offen")
    for i in range(16): A(f"v_mov_b32 v{CXr(2,0)+i}, v{CXr(0,0)+i}")
    hook(sI, 7, patch(0, 0) + patch(2, 1))
    A("s_nop 1")
    H1(1, 2, 4, [1, 2], vm=16, dmas=[(3, 8)])
    H2(1, 4, 2, [2])
    if ELO:
        A(f"v_and_b32 v{TMP+2}, 0x3ff, v{VK}")
        finalize((2, 3), lambda qb, ds: Oreg(2*ds, qb), TMP+2)
    stamp(A, 5)
    A(f"s_lshl_b32 s{sT0}, s{sI}, 1\ns_sub_u32 s{sCNT}, 14, s{sT0}")
    def period22(r, last_qk=False):
        par = r
        ku = [3, 0] if r == 0 else [1, 2]
        vu = [3, 0] if r == 0 else [1, 2]
        c0 = 2*r
        H1(par, 2, 2, ku, toggleK=1 if r == 0 else None, vm=12, dmas=[(c0, 8)], last=last_qk)
        H2(par, 2, 2, vu, toggleV=1 if r == 0 else None, dmas=[(c0+1, 8)])
    A(f"s_cmp_eq_u32 s{sCNT}, 0\ns_cbranch_scc1 K2_TAIL")
    A(".p2align 6")
    A.label("K2_LOOPB")
    period22(0)
    hook(sCNT, 1, patch(0, 0) + patch(2, 1))
    period22(1)
    A(f"s_sub_u32 s{sCNT}, s{sCNT}, 1\ns_cmp_lg_u32 s{sCNT}, 0\ns_cbranch_scc1 K2_LOOPB")
    A.label("K2_TAIL")
    for x in patch(0, 2) + patch(2, 3): A(x)
    H1(0, 2, 2, [3, 0], toggleK=None, vm=12, last=True)
    H2(0, 2, 2, [3, 0], toggleV=1)
    H1(1, 2, 2, None, noqk=True, vm=0)
    if LOSIG:
        A(f"s_cmp_lg_u32 s{sW}, 0\ns_cbranch_scc1 K2_NOLO\ns_mov_b32 s39, {CNT_BASE}\ns_lshl_b32 s{sT0}, s{sI}, 7\nv_mov_b32 v{TMP+5}, s{sT0}\nv_mov_b32 v{TMP+6}, 1\ns_mov_b64 exec, 1\nbuffer_atomic_add v{TMP+6}, v{TMP+5}, s[{S_WS}:{S_WS+3}], s39 offen sc1\ns_mov_b64 exec, -1")
        A.label("K2_NOLO")
    H2(1, 2, 2, [1, 2], nosm=True)
    stamp(A, 6)
    A(f"v_and_b32 v{VK}, 0x3ff, v{VK}")
    if FINF:
        finalize((0, 1) if ELO else (2, 3, 0, 1), S01, VK)
    if FULL:
        A.label("K3_START")
        RING, AD, NS = 16, 12, 43
        LEAD = AD - 1
        ACC3, WF3, AR3, TRA, VD3, T3 = 0, 64, 96, 200, 224, 226
        S_W = 8
        sSP, sTM, sTN, sWO, sAO, sM3, sOB3, sT2 = 35, 21, 22, 23, 24, 25, 26, 27
        A(f"s_load_dwordx2 s[28:29], s[0:1], 0\ns_load_dwordx2 s[30:31], s[0:1], 80")
        A(f"s_and_b32 s{sSP}, s2, 3\ns_lshr_b32 s{sT0}, s2, 2\ns_and_b32 s{sT0}, s{sT0}, 1\ns_lshl_b32 s{sT0}, s{sT0}, 3\ns_lshr_b32 s{sT1}, s2, 3\ns_and_b32 s{sT1}, s{sT1}, 7\ns_add_u32 s{sTM}, s{sT0}, s{sT1}\ns_lshr_b32 s{sTN}, s2, 6")
        A(f"s_mul_i32 s{sT0}, s{sSP}, 43\ns_cmp_eq_u32 s{sSP}, 3\ns_cselect_b32 s{sT0}, 128, s{sT0}\ns_cselect_b32 s{sT1}, 0, s{sT0}")
        A(f"s_cselect_b32 s{S_W}, s{P_WD}, s{P_WO}\ns_cselect_b32 s{S_W+1}, s{P_WD+1}, s{P_WO+1}\ns_mov_b32 s{sT2}, {4096*1024}\ns_cselect_b32 s{S_W+2}, {1376*1024}, s{sT2}\ns_mov_b32 s{S_W+3}, 0x00020000")
        A(f"s_lshl_b32 s{sT2}, s{sTM}, 1\ns_lshr_b32 s{sAO}, s{sW}, 1\ns_add_u32 s{sT2}, s{sT2}, s{sAO}\ns_mul_i32 s{sAO}, s{sT2}, {A3_TB64}\ns_lshl_b32 s{sT0}, s{sT0}, 12\ns_add_u32 s{sAO}, s{sAO}, s{sT0}")
        A(f"s_and_b32 s{sT2}, s{sW}, 1\ns_lshl_b32 s{sT2}, s{sT2}, 11\ns_add_u32 s{sAO}, s{sAO}, s{sT2}\ns_add_u32 s{sAO}, s{sAO}, {A3_BASE}")
        A(f"s_lshl_b32 s{sWO}, s{sT1}, 15\ns_lshl_b32 s{sT2}, s{sW}, 13\ns_add_u32 s{sWO}, s{sWO}, s{sT2}\ns_lshl_b32 s{sT2}, s{sTN}, 8\ns_add_u32 s{sWO}, s{sWO}, s{sT2}\ns_lshl_b32 s{sM3}, s{sW}, 11")
        LN3 = T3
        A(f"v_lshrrev_b32 v{LN3}, 4, v{VK}")
        A(f"v_lshrrev_b32 v{T3+2}, 4, v{LN3}\nv_and_b32 v{T3+3}, 15, v{LN3}\nv_lshlrev_b32 v{T3+4}, 1, v{T3+2}\nv_xor_b32 v{T3+3}, v{T3+3}, v{T3+4}\nv_lshlrev_b32 v{T3+2}, 10, v{T3+2}\nv_lshl_add_u32 v{VD3}, v{T3+3}, 4, v{T3+2}")
        A(f"v_xor_b32 v{T3+2}, 128, v{VD3}\nv_add_u32 v{VD3+1}, 3072, v{T3+2}\ns_barrier")
        seq3 = []
        def wl(s_):
            seq3.extend([('W', s_)]*2)
            return [[f"s_add_u32 m0, s{sM3}, {(s_ % RING)*8192}", f"s_add_u32 s{sT1}, s{sWO}, {s_*32768}"],
                    [f"buffer_load_dwordx4 v{VD3}, s[{S_W}:{S_W+3}], s{sT1} offen lds"], [f"buffer_load_dwordx4 v{VD3+1}, s[{S_W}:{S_W+3}], s{sT1} offen offset:1024 lds"]]
        def al(s_):
            seq3.extend([('A', s_)]*2)
            return [[f"s_add_u32 s{sT0}, s{sAO}, {s_*4096}"]] + [[f"buffer_load_dwordx4 {vr(AR3+(s_%AD)*8+4*t,4)}, v{VK}, s[{S_WS}:{S_WS+3}], s{sT0} offen offset:{t*1024} sc1"] for t in range(2)]
        def vm3(tag): return min(63, len(seq3) - 1 - max(i for i, e in enumerate(seq3) if e == tag))
        def emit3(its):
            for it in its:
                for x in it: A(x)
        for s_ in range(LEAD): emit3(wl(s_))
    if not FINF:
        finalize((0, 1) if ELO else (2, 3, 0, 1), S01, VK)
    if FULL:
        st = (lambda r: A(f"s_memrealtime s[{r}:{r+1}]")) if asmlib.STAMP else (lambda r: None)
        A(f"v_lshrrev_b32 v{T3+2}, 2, v{LN3}\nv_and_b32 v{T3+3}, 7, v{T3+2}\nv_lshlrev_b32 v{T3+2}, 8, v{T3+2}\nv_and_b32 v{T3+4}, 3, v{LN3}\nv_lshl_add_u32 v{T3+2}, v{T3+4}, 3, v{T3+2}")
        for nb in range(8): A(f"v_xor_b32 v{T3+4}, {nb}, v{T3+3}\nv_lshl_add_u32 v{TRA+nb}, v{T3+4}, 5, v{T3+2}\nv_add_u32 v{TRA+8+nb}, 0x10000, v{TRA+nb}")
        A(f"s_mov_b32 s39, {CNT_BASE}\ns_lshl_b32 s{sT0}, s{sI}, 7\ns_sub_u32 s{sT1}, {15*128}, s{sT0}\nv_mov_b32 v{T3+2}, s{sT0}\nv_mov_b32 v{T3+3}, s{sT1}\nv_cmp_eq_u32 vcc, 1, v{LN3}\nv_mov_b32 v{T3+4}, 1\ns_lshl_b32 s{sT0}, s{sTM}, 7\nv_cndmask_b32 v{T3+2}, v{T3+2}, v{T3+3}, vcc\nv_mov_b32 v{T3+5}, s{sT0}")
        A(f"s_waitcnt vmcnt({2*LEAD if FINF else 0}) lgkmcnt(0)\ns_barrier")
        A(f"s_cmp_lg_u32 s{sW}, 0\ns_cbranch_scc1 K3_W0DONE\ns_mov_b64 exec, {2 if LOSIG else 3}\nbuffer_atomic_add v{T3+4}, v{T3+2}, s[{S_WS}:{S_WS+3}], s39 offen sc1\ns_mov_b64 exec, -1")
        A(f"s_cmp_eq_u32 s{sSP}, 3\ns_cbranch_scc1 K3_W0DONE\ns_branch K3_CSPIN_F")
        A.label("K3_CSPIN_B")
        A.label("K3_W0DONE")
        spin("K3_CSPIN", T3+3, T3+5, 0, 32, srd=f"s[{S_WS}:{S_WS+3}]", so="s39", slp=SLP2)
        def tr3(nb, s_):
            off = (s_ % RING)*8192; hi = off // 65536; off %= 65536
            return [f"ds_read_b64_tr_b16 {vr(WF3+4*nb,2)}, v{TRA+8*hi+nb} offset:{off}", f"ds_read_b64_tr_b16 {vr(WF3+4*nb+2,2)}, v{TRA+8*hi+nb} offset:{off+4096}"]
        if FINF: A("s_waitcnt vmcnt(0)\ns_barrier")
        else:
            for nb in range(8):
                for x in tr3(nb, 0): A(x)
            A("s_barrier")
        st(96)
        seq3.clear(); seq3 += [('W', n) for n in range(LEAD)]
        for s_ in range(LEAD): emit3(al(s_))
        if FINF:
            for nb in range(8):
                for x in tr3(nb, 0): A(x)
        S_X, S_O = 40, 44
        A(f"s_mov_b32 s{S_X}, s28\ns_mov_b32 s{S_X+1}, s29\ns_mov_b32 s{S_X+2}, 0x200000\ns_mov_b32 s{S_X+3}, 0x00020000\ns_mov_b32 s{S_O}, s30\ns_mov_b32 s{S_O+1}, s31\ns_mov_b32 s{S_O+2}, 0x200000\ns_mov_b32 s{S_O+3}, 0x00020000")
        A(f"s_lshl_b32 s{sT0}, s{sTM}, 17\ns_lshl_b32 s{sT1}, s{sSP}, 15\ns_add_u32 s{sT0}, s{sT0}, s{sT1}\ns_lshl_b32 s{sT1}, s{sTN}, 8\ns_add_u32 s{sT0}, s{sT0}, s{sT1}\ns_lshl_b32 s{sT1}, s{sW}, 6\ns_add_u32 s{sT0}, s{sT0}, s{sT1}")
        VX = T3+6
        A(f"v_and_b32 v{T3+2}, 15, v{LN3}\nv_lshrrev_b32 v{T3+3}, 4, v{LN3}\nv_lshlrev_b32 v{T3+2}, 10, v{T3+2}\nv_lshl_add_u32 v{T3+2}, v{T3+3}, 3, v{T3+2}\nv_add_u32 v{VX}, s{sT0}, v{T3+2}\ns_mov_b32 s{sT2}, 16384")
        XR = 236
        for t in range(2):
            for h in range(2):
                A(f"buffer_load_dwordx2 {vr(XR+4*t+2*h,2)}, v{VX}, s[{S_X}:{S_X+3}], {'s%d' % sT2 if t else '0'} offen offset:{h*32}"); seq3.append(('X', 0))
        A(f"s_lshl_b32 s{sT0}, s{sTM}, 17\ns_lshl_b32 s{sT1}, s{sTN}, 15\ns_add_u32 s32, s{sT0}, s{sT1}\ns_add_u32 s32, s32, {P2_BASE}\ns_lshl_b32 s{sT0}, s{sSP}, 21\ns_lshl_b32 s{sT1}, s{sW}, 13\ns_add_u32 s{sOB3}, s32, s{sT0}\ns_add_u32 s{sOB3}, s{sOB3}, s{sT1}")
        BE = 2
        for s_ in range(NS):
            extra = {}
            A(f"s_waitcnt vmcnt({vm3(('A', s_))}) lgkmcnt(8)")
            if s_ % BE == 0 and min(s_+BE, NS-1) >= LEAD:
                extra[0] = [f"s_waitcnt vmcnt({vm3(('W', min(s_+BE, NS-1)))})", "s_barrier"]
            elif s_ % BE == 0: extra[0] = ["s_barrier"]
            extra[6] = ["s_waitcnt lgkmcnt(6)"]
            tgt = s_ + LEAD
            if tgt < NS:
                its = wl(tgt) + al(tgt)
                for k, it in enumerate(its): extra.setdefault(2 + 2*k if k < 2 else 4 + 2*k, []).extend(it)
            for nb in range(8):
                for t in range(2):
                    g = nb*2 + t; d_ = ACC3 + g*4
                    A(f"{MF} {vr(d_,4)}, {vr(WF3+4*nb,4)}, {vr(AR3+(s_%AD)*8+4*t,4)}, {'0' if s_ == 0 else vr(d_,4)}")
                    if t == 1 and s_ + 1 < NS:
                        for x in tr3(nb, s_+1): A(x)
                    for x in extra.get(g, []): A(x)
        st(98)
        A("s_nop 7")
        for np_ in range(4):
            if np_ % 2 == 0: A(f"s_add_u32 s{sT0}, s{sOB3}, {np_*2048}")
            for t in range(2):
                ob = AR3 + 4*(np_*2+t)
                for h in range(2):
                    b_ = ACC3 + ((2*np_+h)*2 + t)*4
                    A(f"v_cvt_pk_bf16_f32 v{ob+2*h}, v{b_}, v{b_+1}\nv_cvt_pk_bf16_f32 v{ob+2*h+1}, v{b_+2}, v{b_+3}")
                A(f"buffer_store_dwordx4 {vr(ob,4)}, v{VK}, s[{S_WS}:{S_WS+3}], s{sT0} offen offset:{(np_%2)*2048 + t*1024} sc1")
        A(f"s_lshl_b32 s{sT0}, s{sTM}, 2\ns_add_u32 s{sT0}, s{sT0}, s{sTN}\ns_lshl_b32 s{sT0}, s{sT0}, 7\ns_add_u32 s{sT0}, s{sT0}, 2048\nv_mov_b32 v{T3+5}, s{sT0}")
        A("s_waitcnt vmcnt(0)\ns_barrier")
        A(f"s_cmp_lg_u32 s{sW}, 0\ns_cbranch_scc1 K4_W0DONE\ns_mov_b64 exec, 1\nbuffer_atomic_add v{T3+4}, v{T3+5}, s[{S_WS}:{S_WS+3}], s39 offen sc1\ns_mov_b64 exec, -1\ns_branch K4_TSPIN_F")
        A.label("K4_TSPIN_B")
        A.label("K4_W0DONE")
        spin("K4_TSPIN", T3+3, T3+5, 0, 4, srd=f"s[{S_WS}:{S_WS+3}]", so="s39", slp=SLP2)
        A("s_barrier")
        st(100)
        R, PK, G_ = 0, 96, 64
        A(f"s_lshl_b32 s{sT0}, s{sSP}, 13\ns_lshl_b32 s{sT1}, s{sW}, 11\ns_add_u32 s{sT0}, s{sT0}, s{sT1}\ns_add_u32 s{sT0}, s{sT0}, s32")
        for sp in (3, 0, 1, 2):
            A(f"s_add_u32 s{sT1}, s{sT0}, {sp << 21}")
            for t in range(2): A(f"buffer_load_dwordx4 {vr(PK+8*sp+4*t,4)}, v{VK}, s[{S_WS}:{S_WS+3}], s{sT1} offen offset:{t*1024} sc1")
        def unpack(dst, src):
            for i in range(8): A(f"v_lshlrev_b32 v{dst+2*i}, 16, v{src+i}\nv_and_b32 v{dst+2*i+1}, 0xffff0000, v{src+i}")
        XU = 128
        unpack(XU, XR)
        A("s_waitcnt vmcnt(6)")
        dn = R + 48
        unpack(dn, PK+24)
        for i in range(16): A(f"v_mul_f32 v{G_+i}, {hex(f32bits(-math.log2(math.e)))}, v{dn+i}")
        for i in range(16): A(f"v_exp_f32 v{G_+i}, v{G_+i}")
        for i in range(16): A(f"v_add_f32 v{G_+i}, 1.0, v{G_+i}")
        for i in range(16): A(f"v_rcp_f32 v{G_+i}, v{G_+i}")
        for i in range(16): A(f"v_mul_f32 v{G_+i}, v{G_+i}, v{dn+i}")
        A("s_waitcnt vmcnt(0)")
        unpack(R, PK); unpack(R+16, PK+8); unpack(R+32, PK+16)
        for i in range(16): A(f"v_add_f32 v{R+i}, v{R+i}, v{R+16+i}")
        for i in range(16): A(f"v_add_f32 v{R+i}, v{R+i}, v{R+32+i}")
        for i in range(16): A(f"v_fmac_f32 v{XU+i}, v{R+i}, v{G_+i}")
        for i in range(8): A(f"v_cvt_pk_bf16_f32 v{R+32+i}, v{XU+2*i}, v{XU+2*i+1}")
        for t in range(2):
            for h in range(2):
                A(f"buffer_store_dwordx2 {vr(R+32+4*t+2*h,2)}, v{VX}, s[{S_O}:{S_O+3}], {'s%d' % sT2 if t else '0'} offen offset:{h*32}")
        if asmlib.STAMP:
            A(f"s_mov_b32 s{P_WS}, s{S_WS}\ns_mov_b32 s{P_WS+1}, s{S_WS+1}\ns_waitcnt lgkmcnt(0)\ns_mov_b64 s[68:69], s[72:73]\ns_mov_b64 s[70:71], s[76:77]\ns_mov_b64 s[72:73], s[96:97]\ns_mov_b64 s[74:75], s[98:99]\ns_mov_b64 s[76:77], s[100:101]")
    if asmlib.STAMP:
        A("s_waitcnt vmcnt(0)")
        stamp_flush(A, 0, 8, P_WS, sW)
    A.label("K2_END")
    A("s_endpgm")
    for st in stubs:
        for x in st: A(x)
    return dict(name="k12_kernel", vgpr=512, accum=256, sgpr=102, grid=256, block=256, lds=163840)
```

```python
from asmlib import *
import asmlib
from k1f import KV_BASE, A3_BASE, A3_TB64, WS_USED, MF, f32bits, XC_BASE, SCQ_BASE, P2_BASE, CNT_BASE
import math

import os
QST = os.environ.get('QST', '0') == '1'
QPLAN = os.environ.get('QPLAN', '3')
CT = os.environ.get('CODE_TOUCH2', '1') == '1'
QROT = int(os.environ.get('QROT', '2'))
LATEKV = os.environ.get('LATEKV', '1') == '1'
NOBAR = os.environ.get('NOBAR', '0') == '1'
BARPOS = int(os.environ.get('BARPOS', '0'))
NOCHK = os.environ.get('NOCHK', '0') == '1'
CHKE = os.environ.get('CHKE', '1') == '1'
ONES = os.environ.get('ONES', '0') == '1'
BIAS = 24.0
SLP = int(os.environ.get('SLP', '8'))
FULL = os.environ.get('FULL', '1') == '1'
SLP2 = int(os.environ.get('SLP2', '4'))
ELO = os.environ.get('ELO', '1') == '1'
FINF = os.environ.get('FINF', '1') == '1'
LOSIG = os.environ.get('LOSIG', '1') == '1'
PCHK = int(os.environ.get('PCHK', '10'))
CTX_TOUCH = os.environ.get('CTX_TOUCH', '0') == '1'
def gen_k2(A, k1i, store_flags="", thr=2.0**30):
    O = 0; S01 = 128; S23 = [144, 160]; P01 = [176, 184]; P23 = 192; CX = 200; E = 232; LS = 236; L = 240
    VK = 244; VV = 245; VD = 246; TMP = 247
    AQ = 0; KF = 64; VF = 96; AL = 128; AO = 144
    NG = 34 if ONES else 32
    S_KV, S_WS = 8, 12
    sW, sH, sI, sT0, sT1, sOFF, sHALF, sCNT, sTHR, sNEG = 16, 17, 18, 19, 20, 21, 22, 23, 24, 25
    sMK = 26
    sRET = 34
    sP = 36; sOHI = 37; sOLO = 38
    P_WS = 40; P_WO = 42; P_WD = 44; P_WQ = 46; S_T = 48; sXH = 52; sXL = 53; sWQ = 54; sMQ = 55
    def Sreg(qp, kb, par): return (S01 + (qp*2+kb)*4) if qp < 2 else (S23[par] + ((qp-2)*2+kb)*4)
    def Preg(qp, par): return (P01[par] + qp*4) if qp < 2 else (P23 + (qp-2)*4)
    def Oreg(db, qb): return O + (db*4+qb)*4
    def CXr(qp, kb): return CX + (qp*2+kb)*4
    stubs = []
    uid = [0]
    def U(p): uid[0] += 1; return f"K2_{p}_{uid[0]}"

    def spin(lab, vp, vo, off, expect, mask=None, srd='s[80:83]', so='0', slp=None):
        stubs.append([f"{lab}_F:", f"s_mov_b32 s{sT1}, 0", f"s_branch {lab}_N", f"{lab}:", f"s_mov_b32 s{sT1}, 0", f"{lab}_L:", f"s_sleep {slp or SLP}", f"{lab}_N:",
                      f"buffer_load_dword v{vp}, v{vo}, {srd}, {so} offen offset:{off} sc1", "s_waitcnt vmcnt(0)"] + ([f"v_and_b32 v{vp}, {mask}, v{vp}"] if mask else []) +
                     [f"v_cmp_ne_u32 vcc, {expect}, v{vp}", f"s_add_u32 s{sT1}, s{sT1}, 1", f"s_cmp_ge_u32 s{sT1}, 0x8000", f"s_cbranch_scc1 {lab}_B", f"s_cbranch_vccnz {lab}_L", f"s_branch {lab}_B"])
    A(f"s_mov_b32 s{sW}, s{k1i['sW']}\nv_mov_b32 v{TMP+1}, v0")
    A(f"s_load_dwordx2 s[{P_WS}:{P_WS+1}], s[0:1], 96\ns_load_dwordx2 s[{P_WO}:{P_WO+1}], s[0:1], 40\ns_load_dwordx2 s[{P_WD}:{P_WD+1}], s[0:1], 72\ns_load_dwordx2 s[{P_WQ}:{P_WQ+1}], s[0:1], 16\ns_mov_b32 s{S_T+3}, 0x00020000")
    A(f"v_cmp_ne_u32 vcc, 4, v{k1i['XP']}\ns_barrier\ns_cbranch_vccnz K2_XSPIN")
    A.label("K2_XSPIN_B")
    spin("K2_XSPIN", k1i['XP'], k1i['XO'], 128, 4)
    A(f"s_and_b32 s{sT0}, s2, 7\ns_lshr_b32 s{sT1}, s2, 3\ns_lshr_b32 s{sI}, s{sT1}, 2\ns_and_b32 s{sT1}, s{sT1}, 3\ns_lshl_b32 s{sH}, s{sT0}, 2\ns_add_u32 s{sH}, s{sH}, s{sT1}")
    A(f"s_mov_b32 s{S_KV+3}, 0x00020000\ns_mov_b32 s{S_WS+3}, 0x00020000\ns_mov_b32 s{S_WS+2}, {WS_USED}")
    A(f"s_lshl_b32 s{sT0}, s{sI}, 16\ns_sub_u32 s{S_KV+2}, 0x108000, s{sT0}")
    A(f"s_mov_b32 s{sTHR}, {hex(0x40000000 if ONES else f32bits(thr))}\ns_mov_b32 s{sNEG}, 0xff800000")
    LN = TMP+1
    A(f"v_lshlrev_b32 v{VK}, 4, v{LN}\nv_add_u32 v{VV}, 0x10000, v{VK}")
    A(f"s_lshl_b32 s{sT0}, s{sW}, 12\nv_add_u32 v{VD}, s{sT0}, v{VK}")
    A(f"s_and_b32 s{sT0}, s{sW}, 1\ns_lshl_b32 s{sHALF}, s{sT0}, 12\ns_lshr_b32 s{sT0}, s{sW}, 1\ns_lshl_b32 s{sT1}, s{sT0}, 16\ns_add_u32 s{sHALF}, s{sHALF}, s{sT1}")
    A(f"s_lshl_b32 s{sT0}, s{sT0}, 15\ns_sub_u32 s{sOFF}, 0x8000, s{sT0}")
    A("s_waitcnt lgkmcnt(0)")
    A(f"s_mov_b32 s{S_WS}, s{P_WS}\ns_mov_b32 s{S_WS+1}, s{P_WS+1}")
    A(f"s_lshl_b32 s{sT0}, s{sH}, 20\ns_add_u32 s{sT0}, s{sT0}, {KV_BASE-0x8000}\ns_add_u32 s{S_KV}, s{P_WS}, s{sT0}\ns_addc_u32 s{S_KV+1}, s{P_WS+1}, 0")
    A(f"s_lshr_b32 s{sT0}, s{sW}, 1\ns_lshl_b32 s{sT1}, s{sI}, 1\ns_add_u32 s{sOLO}, s{sT1}, s{sT0}\ns_sub_u32 s{sOHI}, 30, s{sT1}\ns_add_u32 s{sOHI}, s{sOHI}, s{sT0}")
    A(f"s_mul_i32 s{sOLO}, s{sOLO}, {A3_TB64}\ns_mul_i32 s{sOHI}, s{sOHI}, {A3_TB64}")
    A(f"s_lshl_b32 s{sT0}, s{sH}, 14\ns_and_b32 s{sT1}, s{sW}, 1\ns_lshl_b32 s{sT1}, s{sT1}, 11\ns_add_u32 s{sT0}, s{sT0}, s{sT1}\ns_add_u32 s{sT0}, s{sT0}, {A3_BASE}")
    A(f"s_add_u32 s{sOLO}, s{sOLO}, s{sT0}\ns_add_u32 s{sOHI}, s{sOHI}, s{sT0}")
    def kread(f, unit4): return f"ds_read_b128 {ar(KF+4*f,4)}, v{VK} offset:{unit4*8192 + f*1024}"
    def vread(f, slot4): return f"ds_read_b128 {ar(VF+4*f,4)}, v{VV} offset:{slot4*8192 + f*1024}"
    def dma_group(c):
        pre = [f"s_add_u32 m0, s{sHALF}, {(c%4)*8192}"]
        d = [f"buffer_load_dwordx4 v{VD}, s[{S_KV}:{S_KV+3}], s{sOFF} offen offset:{j*1024} sc1 lds" for j in range(4)]
        post = [f"s_add_u32 s{sOFF}, s{sOFF}, 16384"]
        if c % 4 == 3: post.append(f"s_xor_b32 s{sHALF}, s{sHALF}, 0x8000")
        return pre, d, post
    AR = 128; TRQ = S01; VQ = S01 + 8
    A(f"s_mov_b32 s{S_T}, s{P_WQ}\ns_mov_b32 s{S_T+1}, s{P_WQ+1}\ns_mov_b32 s{S_T+2}, {512*8192}")
    A(f"s_lshl_b32 s{sT0}, s{sI}, 3\ns_lshl_b32 s{sT1}, s{sW}, 1\ns_add_u32 s{sXL}, s{sT0}, s{sT1}\ns_sub_u32 s{sXH}, 120, s{sT0}\ns_add_u32 s{sXH}, s{sXH}, s{sT1}")
    A(f"s_lshl_b32 s{sP}, s{sXH}, 6\ns_add_u32 s{sP}, s{sP}, {SCQ_BASE}\ns_lshl_b32 s{sCNT}, s{sXL}, 6\ns_add_u32 s{sCNT}, s{sCNT}, {SCQ_BASE}")
    A(f"s_lshl_b32 s{sXH}, s{sXH}, 14\ns_add_u32 s{sXH}, s{sXH}, {XC_BASE}\ns_lshl_b32 s{sXL}, s{sXL}, 14\ns_add_u32 s{sXL}, s{sXL}, {XC_BASE}")
    A(f"s_lshl_b32 s{sWQ}, s{sH}, 8\ns_lshl_b32 s{sT0}, s{sW}, 16\ns_add_u32 s{sWQ}, s{sWQ}, s{sT0}\ns_lshl_b32 s{sMQ}, s{sW}, 11\ns_add_u32 s{sMQ}, s{sMQ}, 32768")
    A(f"v_lshrrev_b32 v{TMP+2}, 4, v{LN}\nv_and_b32 v{TMP+3}, 15, v{LN}\ns_and_b32 s{sT0}, s{sW}, 1\ns_lshl_b32 s{sT0}, s{sT0}, 2\nv_or_b32 v{TMP+4}, s{sT0}, v{TMP+2}\nv_lshlrev_b32 v{TMP+4}, 1, v{TMP+4}\nv_xor_b32 v{TMP+4}, v{TMP+4}, v{TMP+3}")
    A(f"v_lshlrev_b32 v{TMP+5}, 13, v{TMP+2}\nv_lshl_add_u32 v{VQ}, v{TMP+4}, 4, v{TMP+5}\nv_add_u32 v{VQ+1}, {4*8192-1024}, v{VQ}\nv_add_u32 v{VQ+2}, 16384, v{VK}")
    sQO, sWQQ, sXH1, sXL1 = 56, 60, 84, 85
    rsrc = {0: "0", 1: f"s{sH}", 2: f"s{sI}"}[QROT if QROT < 3 else 1]
    if QROT == 3: A(f"s_add_u32 s{sT1}, s{sH}, s{sI}"); rsrc = f"s{sT1}"
    for q in range(4):
        A(f"s_add_u32 s{sT0}, {rsrc}, {q}\ns_and_b32 s{sT0}, s{sT0}, 3\ns_lshl_b32 s{sQO+q}, s{sT0}, 12\ns_lshl_b32 s{sT0}, s{sT0}, 20\ns_add_u32 s{sWQQ+q}, s{sWQ}, s{sT0}")
    def w_loads(n):
        return [[f"s_add_u32 m0, s{sMQ}, {n*8192}", f"s_add_u32 s{sT0}, s{sWQQ+n//4}, {(n%4)*32*8192}"],
                [f"buffer_load_dwordx4 v{VQ}, s[{S_T}:{S_T+3}], s{sT0} offen lds"], [f"buffer_load_dwordx4 v{VQ+1}, s[{S_T}:{S_T+3}], s{sT0} offen offset:1024 lds"]]
    def adst(n, t):
        if n < 8: return ar(AR+n*16+4*t, 4)
        if n < 12: return ar((n-8)*16+4*t, 4)
        if n < 14: return ar(96+(n-12)*16+4*t, 4)
        return vr(144+(n-14)*16+4*t, 4)
    def a_loads(n):
        o = []
        if n % 4 == 0: o.append([f"s_add_u32 s{sXH1}, s{sXH}, s{sQO+n//4}", f"s_add_u32 s{sXL1}, s{sXL}, s{sQO+n//4}"])
        for t in range(4):
            o.append([f"buffer_load_dwordx4 {adst(n,t)}, v{VQ+2 if t % 2 else VK}, s[{S_WS}:{S_WS+3}], s{sXH1 if t < 2 else sXL1} offen offset:{(n%4)*1024} sc1"])
        return o
    seq = []
    def mk(tags):
        its = []
        for k, n in tags:
            x = (w_loads if k == 'W' else a_loads)(n)
            for it in x:
                for y in it:
                    if y.startswith('buffer'): seq.append((k, n))
            its += x
        return its
    def vmq(tag): return min(63, len(seq) - 1 - max(i for i, e in enumerate(seq) if e == tag))
    def vmq_(tag): return len(seq) - 1 - max(i for i, e in enumerate(seq) if e == tag)
    for it in mk([('W',0),('A',0),('W',1),('W',2),('A',1),('A',2),('W',3),('W',4),('A',3)]):
        for x in it: A(x)
    A(f"v_lshlrev_b32 v{TMP+4}, 2, v{TMP+3}")
    A(f"v_bfe_u32 v{TMP+3}, v{LN}, 2, 2\nv_and_b32 v{TMP+6}, 1, v{TMP+2}\nv_lshl_add_u32 v{TMP+6}, v{TMP+6}, 2, v{TMP+3}\nv_lshl_add_u32 v{TMP+3}, v{TMP+2}, 3, v{TMP+3}\nv_lshlrev_b32 v{TMP+3}, 8, v{TMP+3}")
    A(f"v_and_b32 v{TMP+5}, 3, v{LN}\nv_lshl_add_u32 v{TMP+3}, v{TMP+5}, 3, v{TMP+3}\nv_add_u32 v{TMP+3}, 0x8000, v{TMP+3}")
    for nb in range(8): A(f"v_xor_b32 v{TMP+5}, {nb}, v{TMP+6}\nv_lshl_add_u32 v{TRQ+nb}, v{TMP+5}, 5, v{TMP+3}")
    def qtr(nb, ks): return [f"ds_read_b64_tr_b16 {ar(KF+4*nb,2)}, v{TRQ+nb} offset:{(ks%8)*8192}", f"ds_read_b64_tr_b16 {ar(KF+4*nb+2,2)}, v{TRQ+nb} offset:{(ks%8)*8192+1024}"]
    A(f"s_and_b32 s{sT0}, s2, 15\ns_lshl_b32 s{sT0}, s{sT0}, 2\nv_mov_b32 v{TMP+5}, s{sT0}\nv_mov_b32 v{TMP+6}, 1")
    A(f"s_waitcnt vmcnt({len(seq)})\ns_barrier")
    A(f"s_cmp_lg_u32 s{sW}, 0\ns_cbranch_scc1 K2_NOSIG\ns_mov_b64 exec, 1\nbuffer_atomic_add v{TMP+6}, v{TMP+5}, s[80:83], 0 offen sc1\ns_mov_b64 exec, -1")
    A.label("K2_NOSIG")
    A(f"s_waitcnt vmcnt({vmq(('W', 0))})\ns_barrier")
    for nb in range(8):
        for x in qtr(nb, 0): A(x)
    A("s_waitcnt lgkmcnt(12)")
    plan = {0: [('A',4),('W',5),('A',5),('W',6),('A',6),('W',7)], 1: [('A',7),('W',8),('A',8),('W',9),('A',9),('W',10)], 2: [('A',10),('W',11),('A',11),('W',12),('A',12),('W',13)],
            3: [('A',13),('W',14),('A',14),('W',15),('A',15)]}
    if QPLAN == '2':
        plan = {0: [('A',4),('W',5),('W',6),('A',5),('W',7),('W',8)], 1: [('A',6),('W',9),('W',10),('A',7),('W',11),('W',12)], 2: [('A',8),('W',13),('W',14),('W',15),('A',9)]}
        for k_ in range(3, 9): plan[k_] = [('A', k_+7)]
    if QPLAN == '3':
        plan = {0: [('A',4),('W',5),('A',5)], 1: [('W',6),('A',6),('W',7),('A',7)], 2: [('W',8),('A',8),('W',9),('A',9)], 3: [('W',10),('A',10),('W',11)], 4: [('A',11),('W',12),('W',13)], 5: [('A',12),('W',14),('W',15)], 6: [('A',13)], 7: [('A',14)], 8: [('A',15)]}
    bars = {0: 2, 2: 4, 4: 8, 8: 15}
    NEGV = TMP+8
    misc = [f"v_mov_b32 v{r}, 0" for r in list(range(CX, CX+32)) + list(range(LS, LS+8))]
    misc += [f"v_and_b32 v{TMP+2}, 15, v{LN}", f"v_lshrrev_b32 v{TMP+3}, 4, v{LN}", f"v_lshlrev_b32 v{TMP+3}, 2, v{TMP+3}", f"v_sub_u32 v{TMP+2}, v{TMP+2}, v{TMP+3}"]
    misc += [f"v_cmp_le_i32 s[{sMK+2*i}:{sMK+2*i+1}], {i}, v{TMP+2}" for i in range(4)] + [f"v_mov_b32 v{NEGV}, s{sNEG}", "s_nop 0"]
    def q_epi(ds):
        o = []
        for qb in range(4):
            tq = QT + 4*(qb % 2)
            for h in range(2):
                b_ = Oreg(2*ds+h, qb)
                o += [f"v_mul_f32 v{b_+i}, v{b_+i}, v{E+qb}" for i in range(4)]
                o += [f"v_cvt_pk_bf16_f32 v{tq+2*h}, v{b_}, v{b_+1}", f"v_cvt_pk_bf16_f32 v{tq+2*h+1}, v{b_+2}, v{b_+3}"]
            o += [f"v_accvgpr_write_b32 a{AQ+(qb*4+ds)*4+i}, v{tq+i}" for i in range(4)]
        return o
    QT = P01[0]
    e0 = q_epi(0)
    for ks in range(16):
        gaps = {}
        def G(m): return gaps.setdefault(m, [])
        pre = [f"s_waitcnt vmcnt({vmq(('A', ks))})"]
        if ks in bars: G(0).extend([f"s_waitcnt vmcnt({vmq(('W', bars[ks]))})", "s_barrier"])
        if ks == 12: G(0).append("s_barrier")
        sRDY = 86
        if ks == PCHK:
            G(1).extend([f"s_waitcnt vmcnt({vmq(('P', 0))})", f"v_cmp_ne_u32 vcc, 16, v{TMP+7}"])
            G(4).extend([f"s_cmp_eq_u64 vcc, 0", f"s_cselect_b32 s{sRDY}, 1, 0", f"v_mov_b32 v{TMP+6}, s{sRDY}", f"s_cmp_lg_u32 s{sW}, 0", "s_cbranch_scc1 K2_NOMB", f"ds_write_b32 v{TMP+5}, v{TMP+6}", "K2_NOMB:"])
        if ks == 3: G(2).extend([f"v_mov_b32 v{TMP+5}, 0x8000", f"v_mov_b32 v{TMP+6}, 0", f"ds_write_b32 v{TMP+5}, v{TMP+6}"])
        its = mk(plan.get(ks, []))
        if ks == PCHK - 2:
            its.append([f"buffer_load_dword v{TMP+7}, v{TMP+4}, s[80:83], 0 offen sc1"]); seq.append(('P', 0))
        if ks == 6:
            for qb in range(4):
                its.append([f"buffer_load_dword v{E+qb}, v{TMP+4}, s[{S_WS}:{S_WS+3}], s{sP if qb < 2 else sCNT} offen offset:{(qb%2)*64} sc1"]); seq.append(('S', 0))
        def kv_init(c):
            p_, d_, po_ = dma_group(c)
            if c < 2:
                lab = U("KS")
                return [f"s_cmp_ge_u32 s{sW}, 2", f"s_cbranch_scc1 {lab}"] + p_ + ["s_nop 0"] + d_ + [lab + ":"] + po_
            return p_ + ["s_nop 0"] + d_ + po_
        if PCHK <= ks < PCHK + 4:
            lab = U("NR")
            its.append([f"s_cmp_eq_u32 s{sRDY}, 0", f"s_cbranch_scc1 {lab}"] + kv_init(ks - PCHK) + [lab + ":"])
        if ks in (13, 14): its += [misc[(ks-13)*26+2*k:(ks-13)*26+2*k+2] for k in range(13)]
        m = 1 if ks != PCHK else 5
        for it in its:
            G(m).extend(it)
            m = m + 1 if (m + 1) % 4 != 3 else m + 2
        if ks == 15:
            m = max(m, 12)
            while m < 31:
                G(m).extend(e0[:2]); e0 = e0[2:]
                m = m + 1 if (m + 1) % 4 != 3 else m + 2
        assert m < 33, m
        if ks < 15:
            for grp in range(1, 8, 2): G(grp*4+2).append("s_waitcnt lgkmcnt(10)")
        else:
            G(6).append("s_waitcnt lgkmcnt(8)"); G(14).append("s_waitcnt lgkmcnt(0)")
        for x in pre: A(x)
        for nb in range(8):
            for t in range(4):
                d = Oreg(nb, t)
                A(f"{MF} {vr(d,4)}, {ar(KF+4*nb,4)}, {adst(ks,t)}, {'0' if ks == 0 else vr(d,4)}")
                if t == 3 and ks < 15:
                    if ks == 7: A(f"v_add_u32 v{TRQ+nb}, 0x10000, v{TRQ+nb}")
                    for x in qtr(nb, ks+1): A(x)
                for x in G(nb*4+t): A(x)
    stamp(A, 3)

    def Dpatch(q0):
        o = []
        for i in range(4): o.append(f"v_cndmask_b32 v{CXr(q0,0)+i}, v{NEGV}, v{CXr(q0,0)+i}, s[{sMK+2*i}:{sMK+2*i+1}]")
        for i in range(4): o.append(f"v_mov_b32 v{CXr(q0,1)+i}, v{NEGV}")
        for i in range(4): o.append(f"v_cndmask_b32 v{CXr(q0+1,1)+i}, v{NEGV}, v{CXr(q0+1,1)+i}, s[{sMK+2*i}:{sMK+2*i+1}]")
        return o
    def Fpatch(q0): return [f"v_mov_b32 v{CXr(q0,0)+i}, v{NEGV}" for i in range(16)]
    def patch(q0, j):
        o = []
        lD, lE = U("PD"), U("PE")
        o.append(f"s_cmp_gt_u32 s{sW}, {j}"); o.append(f"s_cbranch_scc1 {lE}")
        if j > 0:
            o.append(f"s_cmp_eq_u32 s{sW}, {j}"); o.append(f"s_cbranch_scc1 {lD}")
            o += Fpatch(q0); o.append(f"s_branch {lE}")
            o.append(lD + ":")
        o += Dpatch(q0)
        o.append(lE + ":")
        o.append("s_nop 1")
        return o


    def sm_gaps1(qs, srcpar, dstpar, look):
        g = [[] for _ in range(34)]
        src = lambda k: Sreg(qs[k//4], (k % 4)//2, srcpar) + 2*(k % 2)
        pr = lambda k: Preg(qs[k//4], dstpar) + k % 4
        for k in range(8):
            en = E + 2*((k+1) % 2); ec = E + 2*(k % 2)
            cv = f"v_cvt_pk_bf16_f32 v{pr(k)}, v{ec}, v{ec+1}"
            orr = None
            if k % 2 == 1: orr = f"v_or_b32 v{TMP}, v{pr(0)}, v{pr(1)}" if k == 1 else f"v_or3_b32 v{TMP}, v{TMP}, v{pr(k-1)}, v{pr(k)}"
            if k < 7:
                g[4*k].append(f"v_exp_f32 v{en}, v{src(k+1)}"); g[4*k+2].append(f"v_exp_f32 v{en+1}, v{src(k+1)+1}")
                g[4*k+1].append(cv)
                if orr: g[4*k+3].append(orr)
            else:
                g[28] += [cv, orr]
                g[29].append(f"v_lshl_or_b32 v{TMP}, v{TMP}, 16, v{TMP}")
                g[30].append(f"v_cmp_le_u32 vcc, s{sTHR}, v{TMP}")
                if look: g[32].append(f"v_exp_f32 v{en}, v{look[0]}"); g[33].append(f"v_exp_f32 v{en+1}, v{look[1]}")
        return g
    def lmf(qps, rows, par, czero):
        return [(f"{MF} {ar(AL+4*r,4)}, {ar(AO,4)}, {vr(Preg(qp,par),4)}, {'0' if czero else ar(AL+4*r,4)}", None) for qp, r in zip(qps, rows)]

    def sm_gaps(qs, srcpar, dstpar, look, ladd):
        g = [[] for _ in range(32)]
        lsb = LS + (0 if qs[0] == 0 else 2)
        src = lambda k: Sreg(qs[k//4], (k % 4)//2, srcpar) + 2*(k % 2)
        for k in range(8):
            if k < 7: a, b = src(k+1), src(k+1)+1
            elif look: a, b = look
            else: a = None
            en = E + 2*((k+1) % 2); ec = E + 2*(k % 2)
            if a is not None:
                g[4*k].append(f"v_exp_f32 v{en}, v{a}"); g[4*k+2].append(f"v_exp_f32 v{en+1}, v{b}")
            ls = lsb + k//4
            if k % 4 == 0:
                g[4*k+1].append(f"v_add_f32 v{ls}, v{ec}, v{ec+1}")
                lr, lsr = ladd[k//4]
                g[4*k+1].append(f"v_add_f32 v{lr}, v{lr}, v{lsr}")
            else:
                g[4*k+1].append(f"v_add_f32 v{ls}, v{ls}, v{ec}"); g[4*k+1].append(f"v_add_f32 v{ls}, v{ls}, v{ec+1}")
            g[4*k+3].append(f"v_cvt_pk_bf16_f32 v{Preg(qs[k//4], dstpar) + k % 4}, v{ec}, v{ec+1}")
        if not NOCHK:
            if CHKE:
                e_a = g[28]; adds = g[29]; e_b = g[30]
                g[28] = adds; g[29] = [f"v_max_f32 v{TMP}, v{lsb}, v{lsb+1}", f"v_cmp_lt_f32 vcc, s{sTHR}, v{TMP}"]
                g[30] = e_a; g[31] = g[31] + e_b
            else:
                g[30].append(f"v_max_f32 v{TMP}, v{lsb}, v{lsb+1}")
                g[31].append(f"v_cmp_lt_f32 vcc, s{sTHR}, v{TMP}")
        return g

    def rescale(rows, init=False):
        o = ["s_nop 7"]
        D, D2, F = TMP+1, TMP+2, TMP+3
        for r in rows:
            s0 = r['S']
            o.append(f"v_max3_f32 v{D}, v{s0}, v{s0+1}, v{s0+2}")
            o.append(f"v_max3_f32 v{D}, v{D}, v{s0+3}, v{s0+4}")
            o.append(f"v_max3_f32 v{D}, v{D}, v{s0+5}, v{s0+6}")
            o.append(f"v_max_f32 v{D}, v{D}, v{s0+7}")
            o += [f"v_mov_b32 v{D2}, v{D}", "s_nop 1", f"v_permlane16_swap_b32 v{D}, v{D2}", f"v_max_f32 v{D}, v{D}, v{D2}"]
            o += [f"v_mov_b32 v{D2}, v{D}", "s_nop 1", f"v_permlane32_swap_b32 v{D}, v{D2}", f"v_max_f32 v{D}, v{D}, v{D2}"]
            o.append(f"v_ceil_f32 v{D}, v{D}")
            if ONES: o.append(f"v_add_f32 v{D}, {hex(f32bits(BIAS))}, v{D}")
            if not init:
                o.append(f"v_max_f32 v{D}, 0, v{D}")
                o.append(f"v_exp_f32 v{F}, -v{D}")
            for b in [s0] + r['subs']:
                for i in range(8): o.append(f"v_sub_f32 v{b+i}, v{b+i}, v{D}")
            if not init:
                qb = r['qb']
                for db in range(8):
                    for i in range(4): o.append(f"v_mul_f32 v{Oreg(db,qb)+i}, v{Oreg(db,qb)+i}, v{F}")
                if ONES:
                    for i in range(4): o += [f"v_accvgpr_read_b32 v{D2}, a{AL+4*qb+i}", f"v_mul_f32 v{D2}, v{D2}, v{F}", f"v_accvgpr_write_b32 a{AL+4*qb+i}, v{D2}"]
                else: o.append(f"v_mul_f32 v{L+qb}, v{L+qb}, v{F}")
                for pr in r.get('Pscale', []):
                    o += [f"v_lshlrev_b32 v{D2}, 16, v{pr}", f"v_and_b32 v{pr}, 0xffff0000, v{pr}", f"v_mul_f32 v{D2}, v{D2}, v{F}", f"v_mul_f32 v{pr}, v{pr}, v{F}",
                          f"v_cvt_pk_bf16_f32 v{pr}, v{D2}, v{pr}"]
            if r.get('P') is not None:
                ls = r['ls']
                for k in range(4):
                    o += [f"v_exp_f32 v{E}, v{s0+2*k}", f"v_exp_f32 v{E+1}, v{s0+2*k+1}", "s_nop 0"]
                    if ONES: pass
                    elif k == 0: o.append(f"v_add_f32 v{ls}, v{E}, v{E+1}")
                    else: o += [f"v_add_f32 v{ls}, v{ls}, v{E}", f"v_add_f32 v{ls}, v{ls}, v{E+1}"]
                    o.append(f"v_cvt_pk_bf16_f32 v{r['P']+k}, v{E}, v{E+1}")
        return o
    def relook(look):
        return [f"v_exp_f32 v{E}, v{look[0]}", f"v_exp_f32 v{E+1}, v{look[1]}", "s_nop 1"] if look else ["s_nop 1"]

    def check_site(code):
        ls, lb = U("SLOW"), U("BACK")
        if not NOCHK: A(f"s_cbranch_vccnz {ls}")
        A.label(lb)
        stubs.append([ls + ":"] + code + [f"s_branch {lb}"])

    def emit_half(mf, gaps, extra, waits):
        for g in range(len(mf)):
            if g in waits: A(waits[g])
            m, rd = mf[g]
            if m: A(m)
            elif g == 28: A("s_nop 0")
            if rd: A(rd)
            ex = extra.get(g, ([], []))
            for x in ex[0]: A(x)
            for x in ex[1]: A(x)
            for x in gaps[g]: A(x)

    def H1(par, mq, ms, ku, toggleK=None, vm=None, dmas=(), noqk=False, nosm=False, last=False, fill=None, czero=False):
        n = 1 - par
        mf = []
        if noqk: mf = [(None, None)]*32
        elif mq == 4:
            for f in range(8):
                kb, ds = f//4, f % 4
                for qp in range(4):
                    d = Sreg(qp, kb, n)
                    c = vr(CXr(qp, kb), 4) if ds == 0 else vr(d, 4)
                    mf.append((f"{MF} {vr(d,4)}, {ar(KF+4*f,4)}, {ar(AQ+(qp*4+ds)*4,4)}, {c}", kread(f, ku[0]) if qp == 3 else None))
        else:
            for j in range(16):
                sel, f = j//8, j % 8
                kb, ds = f//4, f % 4
                for qb in range(2):
                    qp = 2*sel + qb
                    d = Sreg(qp, kb, n)
                    c = vr(CXr(qp, kb), 4) if ds == 0 else vr(d, 4)
                    rd = None
                    if qb == 1 and not (last and sel == 1): rd = kread(f, ku[sel])
                    mf.append((f"{MF} {vr(d,4)}, {ar(KF+4*f,4)}, {ar(AQ+(qb*4+ds)*4,4)}, {c}", rd))
        look = None if noqk else (Sreg(0, 0, n), Sreg(0, 0, n)+1)
        if nosm:
            gaps = [list(fill[2*g:2*g+2]) if fill else [] for g in range(32)]
        else:
            if ONES:
                gaps = sm_gaps1((2, 3), par, par, look); mf = list(mf) + lmf((0, 1), (0, 1), par, czero)
            else: gaps = sm_gaps((2, 3), par, par, look, [(L+0, LS+0), (L+1, LS+1)])
        extra = {}
        waits = {}
        if not noqk:
            waits[0] = "s_waitcnt lgkmcnt(8)"
            if mq == 2: waits[16] = "s_waitcnt lgkmcnt(4)"; waits[24] = "s_waitcnt lgkmcnt(4)"
        if vm is not None:
            extra[BARPOS] = ([], [f"s_waitcnt vmcnt({vm})"] + ([] if NOBAR else ["s_barrier"]))
        if toggleK is not None:
            gi = 0 if toggleK == 0 else 16
            e = extra.setdefault(gi, ([], [])); e[1].append(f"v_xor_b32 v{VK}, 0x8000, v{VK}")
        place_dmas(extra, dmas)
        emit_half(mf, gaps, extra, waits)
        if not nosm:
            rows = []
            for qq in range(2):
                qp = 2 + qq
                r = dict(S=Sreg(qp, 0, par), P=Preg(qp, par), ls=LS+2+qq)
                if ms == 4:
                    r['qb'] = qp
                    r['subs'] = ([Sreg(qp, 0, n), CXr(qp, 0)] if (mq == 4 and not noqk) else [])
                else:
                    r['qb'] = qq
                    r['subs'] = [CXr(qq, 0), CXr(qp, 0)] + ([] if noqk else [Sreg(qq, 0, n), Sreg(qp, 0, n)])
                    r['Pscale'] = [Preg(qq, par)+k for k in range(4)]
                rows.append(r)
            check_site(rescale(rows) + relook(look))

    def place_dmas(extra, dmas):
        for c, g0 in dmas:
            pre, d, post = dma_group(c)
            if ONES:
                for j in range(4): extra.setdefault(3 + 8*j, ([], []))[0].append(d[j])
                extra.setdefault(30, ([], []))[1].extend(post[:1])
                extra.setdefault(31, ([], []))[1].extend(post[1:] + dma_group(c+1)[0])
                continue
            e = extra.setdefault(g0, ([], [])); e[1].extend(pre)
            for j in range(4):
                e = extra.setdefault(g0+1+4*j if g0+1+4*j < 32 else 31, ([], [])); e[0].append(d[j])
            e = extra.setdefault(min(31, g0+2+12), ([], [])); e[1].extend(post)

    def H2(par, mp, mnext, vu, toggleV=None, dmas=(), nopv=False, nosm=False, czero=False):
        n = 1 - par
        mf = []
        if nopv: mf = [(None, None)]*32
        elif mp == 4:
            for db in range(8):
                for qp in range(4):
                    d = Oreg(db, qp)
                    mf.append((f"{MF} {vr(d,4)}, {ar(VF+4*db,4)}, {vr(Preg(qp,par),4)}, {'0' if czero else vr(d,4)}", vread(db, vu[0]) if qp == 3 else None))
        else:
            for j in range(16):
                sel, db = j//8, j % 8
                for qb in range(2):
                    d = Oreg(db, qb)
                    rd = None
                    if qb == 1 and not (nosm and sel == 1): rd = vread(db, vu[sel])
                    mf.append((f"{MF} {vr(d,4)}, {ar(VF+4*db,4)}, {vr(Preg(2*sel+qb,par),4)}, {vr(d,4)}", rd))
        look = (Sreg(2, 0, n), Sreg(2, 0, n)+1)
        lt = (L+2, L+3) if mp == 4 else (L+0, L+1)
        if nosm:
            gaps = [[] for _ in range(34)]
            if not ONES: gaps[1] = [f"v_add_f32 v{lt[0]}, v{lt[0]}, v{LS+2}", f"v_add_f32 v{lt[1]}, v{lt[1]}, v{LS+3}"]
        elif ONES: gaps = sm_gaps1((0, 1), n, n, look)
        else:
            gaps = sm_gaps((0, 1), n, n, look, [(lt[0], LS+2), (lt[1], LS+3)])
        if ONES: mf = list(mf) + (lmf((2, 3), (2, 3) if mp == 4 else (0, 1), par, czero) if not nopv else [(None, None)]*2)
        extra = {}
        waits = {}
        if not nopv:
            waits[0] = "s_waitcnt lgkmcnt(8)" if not nosm else "s_waitcnt lgkmcnt(0)"
            if mp == 2: waits[16] = "s_waitcnt lgkmcnt(4)"; waits[24] = "s_waitcnt lgkmcnt(4)" if not nosm else "s_waitcnt lgkmcnt(0)"
        if toggleV is not None:
            gi = 0 if toggleV == 0 else 16
            e = extra.setdefault(gi, ([], [])); e[1].append(f"v_xor_b32 v{VV}, 0x8000, v{VV}")
        place_dmas(extra, dmas)
        emit_half(mf, gaps, extra, waits)
        if not nosm and not nopv:
            rows = []
            for qb in range(2):
                r = dict(S=Sreg(qb, 0, n), P=Preg(qb, n), ls=LS+qb, qb=qb, subs=[CXr(qb, 0)])
                if mnext == 2: r['subs'] += [Sreg(qb+2, 0, n), CXr(qb+2, 0)]
                rows.append(r)
            check_site(rescale(rows) + relook(look))

    def hook(cond_reg, val, code):
        ls, lb = U("HOOK"), U("HB")
        A(f"s_cmp_eq_u32 s{cond_reg}, {val}\ns_cbranch_scc1 {ls}")
        A.label(lb)
        stubs.append([ls + ":"] + code + [f"s_branch {lb}"])

    hook(sI, 0, patch(2, 0))
    if ONES:
        A(f"v_mov_b32 v{TMP}, 0x3f803f80")
        for i in range(4): A(f"v_accvgpr_write_b32 a{AO+i}, v{TMP}")
    A(f"s_cmp_eq_u32 s{sRDY}, 0\ns_cbranch_scc1 K2_KLATE")
    A.label("K2_KOK")
    stubs.append(["K2_KLATE:", f"s_cmp_eq_u32 s{sW}, 0", "s_cbranch_scc1 K2_KSPIN_F", f"s_mov_b32 s{sT1}, 0", "K2_KL:", f"ds_read_b32 v{TMP+7}, v{TMP+5}", "s_waitcnt lgkmcnt(0)", f"v_cmp_ne_u32 vcc, 1, v{TMP+7}",
                  f"s_add_u32 s{sT1}, s{sT1}, 1", f"s_cmp_ge_u32 s{sT1}, 0x100000", "s_cbranch_scc1 K2_KGO", "s_sleep 1", "s_cbranch_vccnz K2_KL", "s_branch K2_KGO"])
    spin("K2_KSPIN", TMP+7, TMP+4, 0, 16)
    stubs.append(["K2_KSPIN_B:", f"v_mov_b32 v{TMP+6}, 1", f"ds_write_b32 v{TMP+5}, v{TMP+6}", "K2_KGO:"] + kv_init(0) + kv_init(1) + kv_init(2) + kv_init(3) + ["s_branch K2_KOK"])
    for x in e0: A(x)
    A("s_waitcnt vmcnt(0)\ns_barrier")
    if asmlib.STAMP: A("s_memrealtime s[68:69]")
    for f in range(8): A(kread(f, 0))
    for f in range(8): A(vread(f, 2))
    A("s_waitcnt lgkmcnt(8)")
    for ds in range(4):
        p_, d_, po_ = dma_group(4 + ds if LATEKV else 7)
        ep = q_epi(ds+1) if ds < 3 else []
        mfs = []
        for kb in range(2):
            f = kb*4 + ds
            for qp in range(4):
                d = Sreg(qp, kb, 0)
                mfs.append([f"{MF} {vr(d,4)}, {ar(KF+4*f,4)}, {ar(AQ+(qp*4+ds)*4,4)}, {vr(CXr(qp,kb),4) if ds == 0 else vr(d,4)}"] + ([kread(f, 1)] if qp == 3 else []))
        if ds == 0 or LATEKV: mfs[0] = p_ + ["s_nop 0"] + mfs[0]
        if ds == 0 or LATEKV:
            for j in range(4): mfs[1+j] = mfs[1+j] + [d_[j]]
            mfs[6] = mfs[6] + po_
        if ds == 3: A("s_nop 1")
        for k in range(8):
            for x in mfs[k]: A(x)
            for x in ep[8*k:8*k+8]: A(x)
    rows = []
    for qp in range(4): rows.append(dict(S=Sreg(qp, 0, 0), subs=[CXr(qp, 0)], P=None))
    for x in rescale(rows, init=True): A(x)
    A(f"v_exp_f32 v{E}, v{Sreg(0,0,0)}\nv_exp_f32 v{E+1}, v{Sreg(0,0,0)+1}")
    H2(1, 4, 4, None, nopv=True)
    stamp(A, 4)
    A(f"s_mov_b32 s{sCNT}, s{sI}")
    if ONES: A(dma_group(8)[0][0])
    A("s_waitcnt lgkmcnt(0)")

    def finalize(qbs, OB, VLANE):
        assert not ONES
        for qb in qbs:
            D, D2 = L+qb, TMP+1
            A(f"v_mov_b32 v{D2}, v{D}\ns_nop 1\nv_permlane16_swap_b32 v{D}, v{D2}\nv_add_f32 v{D}, v{D}, v{D2}")
            A(f"v_mov_b32 v{D2}, v{D}\ns_nop 1\nv_permlane32_swap_b32 v{D}, v{D2}\nv_add_f32 v{D}, v{D}, v{D2}")
            A(f"v_rcp_f32 v{D}, v{D}")
        oq = 0
        for qb in qbs:
            for ds in range(4):
                ob = OB(qb, ds) if callable(OB) else OB + 4*oq
                for h in range(2):
                    b = Oreg(2*ds+h, qb)
                    for i in range(4): A(f"v_mul_f32 v{b+i}, v{b+i}, v{L+qb}")
                for h in range(2):
                    b = Oreg(2*ds+h, qb)
                    A(f"v_cvt_pk_bf16_f32 v{ob+2*h}, v{b}, v{b+1}\nv_cvt_pk_bf16_f32 v{ob+2*h+1}, v{b+2}, v{b+3}")
                A(f"s_add_u32 s{sT0}, s{sOHI if qb < 2 else sOLO}, {ds*4096}")
                A(f"buffer_store_dwordx4 {vr(ob,4)}, v{VLANE}, s[{S_WS}:{S_WS+3}], s{sT0} offen offset:{(qb%2)*1024}{store_flags}")
                oq = (oq+1) % 4

    def period44(r, pre=None, czero=False):
        par = r % 2
        if pre: pre()
        ku = (r+2) % 4; vu = (r+1+2) % 4
        H1(par, 4, 4, [ku], toggleK=0 if ku == 0 else None, vm=16, dmas=[(r, 8)], czero=czero)
        H2(par, 4, 4, [vu], toggleV=0 if vu == 0 else None, czero=czero)

    period44(0, pre=lambda: hook(sI, 0, patch(2, 1)), czero=True)
    A(f"s_cmp_eq_u32 s{sCNT}, 0\ns_cbranch_scc1 K2_SPECIAL_R1\ns_branch K2_LOOPA_R1")
    A(".p2align 6")
    A.label("K2_LOOPA")
    for r in range(4):
        if r == 1: A.label("K2_LOOPA_R1")
        period44(r, pre=(lambda: hook(sCNT, 1, patch(2, 0))) if r == 3 else None)
    A(f"s_sub_u32 s{sCNT}, s{sCNT}, 1\ns_cmp_lg_u32 s{sCNT}, 0\ns_cbranch_scc1 K2_LOOPA")
    A.label("K2_SPECIAL")
    for r in range(3):
        if r == 1: A.label("K2_SPECIAL_R1")
        period44(r, pre=lambda: [A(x) for x in patch(2, r+1)])
    A(f"s_cmp_lt_u32 s{sW}, 2\ns_cselect_b32 s{S_T}, s{P_WO}, s{P_WD}\ns_cselect_b32 s{S_T+1}, s{P_WO+1}, s{P_WD+1}\ns_mov_b32 s{sT0}, {1376*1024}\ns_cselect_b32 s{S_T+2}, {4096*1024}, s{sT0}")
    A(f"s_mul_i32 s{sT0}, s2, {43*128}\ns_lshl_b32 s{sT1}, s2, 14\ns_cselect_b32 s{sT0}, s{sT1}, s{sT0}".replace("s_lshl_b32 s{sT1}, s2, 14".format(sT1=sT1), f"s_mul_i32 s{sT1}, s2, 16384"))
    A(f"s_and_b32 s{sT1}, s{sW}, 1\ns_lshl_b32 s{sT1}, s{sT1}, 13\ns_add_u32 s{sT0}, s{sT0}, s{sT1}\nv_and_b32 v{TMP+7}, 0x3ff, v{VK}\nv_lshlrev_b32 v{TMP+7}, 3, v{TMP+7}")
    A(f"buffer_load_dword v{TMP+7}, v{TMP+7}, s[{S_T}:{S_T+3}], s{sT0} offen")
    if CT:
        A(f"v_and_b32 v{TMP+6}, 0x3ff, v{VK}")
        code_touch(A, "K3_START" if FULL else "k3_kernel", "K2_END" if FULL else "K4_END", sW, TMP+6, TMP+6, 88, lane_shift=4)
    if CTX_TOUCH:
        A(f"v_lshrrev_b32 v{TMP+6}, 8, v{VK}\nv_and_b32 v{TMP+6}, 3, v{TMP+6}\nv_lshlrev_b32 v{TMP+6}, 12, v{TMP+6}\nv_and_b32 v{TMP+5}, 0xf0, v{VK}\nv_lshl_add_u32 v{TMP+6}, v{TMP+5}, 3, v{TMP+6}")
        A(f"buffer_load_dword v{TMP+5}, v{TMP+6}, s[{S_WS}:{S_WS+3}], s{sOHI} offen\nbuffer_load_dword v{TMP+6}, v{TMP+6}, s[{S_WS}:{S_WS+3}], s{sOLO} offen")
    for i in range(16): A(f"v_mov_b32 v{CXr(2,0)+i}, v{CXr(0,0)+i}")
    hook(sI, 7, patch(0, 0) + patch(2, 1))
    A("s_nop 1")
    H1(1, 2, 4, [1, 2], vm=16, dmas=[(3, 8)])
    H2(1, 4, 2, [2])
    if ELO:
        A(f"v_and_b32 v{TMP+2}, 0x3ff, v{VK}")
        finalize((2, 3), lambda qb, ds: Oreg(2*ds, qb), TMP+2)
        A(f"s_cmp_eq_u32 s{sW}, 0\ns_cselect_b32 s87, 2, 0x40000000")
    stamp(A, 5)
    A(f"s_lshl_b32 s{sT0}, s{sI}, 1\ns_sub_u32 s{sCNT}, 14, s{sT0}")
    def period22(r, last_qk=False):
        par = r
        ku = [3, 0] if r == 0 else [1, 2]
        vu = [3, 0] if r == 0 else [1, 2]
        c0 = 2*r
        H1(par, 2, 2, ku, toggleK=1 if r == 0 else None, vm=12, dmas=[(c0, 8)], last=last_qk)
        H2(par, 2, 2, vu, toggleV=1 if r == 0 else None, dmas=[(c0+1, 8)])
    A(f"s_cmp_eq_u32 s{sCNT}, 0\ns_cbranch_scc1 K2_TAIL")
    A(".p2align 6")
    A.label("K2_LOOPB")
    period22(0)
    hook(sCNT, 1, patch(0, 0) + patch(2, 1))
    period22(1)
    A(f"s_sub_u32 s87, s87, 1")
    hook(87, 0, [f"s_mov_b32 s39, {CNT_BASE}", f"s_lshl_b32 s{sT0}, s{sI}, 7", f"v_mov_b32 v{TMP+5}, s{sT0}", f"v_mov_b32 v{TMP+6}, 1", "s_mov_b64 exec, 1", f"buffer_atomic_add v{TMP+6}, v{TMP+5}, s[{S_WS}:{S_WS+3}], s39 offen sc1", "s_mov_b64 exec, -1"])
    A(f"s_sub_u32 s{sCNT}, s{sCNT}, 1\ns_cmp_lg_u32 s{sCNT}, 0\ns_cbranch_scc1 K2_LOOPB")
    A.label("K2_TAIL")
    for x in patch(0, 2) + patch(2, 3): A(x)
    H1(0, 2, 2, [3, 0], toggleK=None, vm=12, last=True)
    H2(0, 2, 2, [3, 0], toggleV=1)
    H1(1, 2, 2, None, noqk=True, vm=0)
    A("s_sub_u32 s87, s87, 1\ns_cmp_ge_u32 s87, 2\ns_cbranch_scc1 K2_NOLO")
    for x in [f"s_mov_b32 s39, {CNT_BASE}", f"s_lshl_b32 s{sT0}, s{sI}, 7", f"v_mov_b32 v{TMP+5}, s{sT0}", f"v_mov_b32 v{TMP+6}, 1", "s_mov_b64 exec, 1", f"buffer_atomic_add v{TMP+6}, v{TMP+5}, s[{S_WS}:{S_WS+3}], s39 offen sc1", "s_mov_b64 exec, -1"]: A(x)
    A.label("K2_NOLO")
    H2(1, 2, 2, [1, 2], nosm=True)
    stamp(A, 6)
    A(f"v_and_b32 v{VK}, 0x3ff, v{VK}")
    finalize((0, 1), S01, VK)
    A.label("K3_START")
    st = (lambda r: A(f"s_memrealtime s[{r}:{r+1}]")) if asmlib.STAMP else (lambda r: None)
    RING, AD, NJ = 16, 8, 22
    LW, LA = 11, AD - 1
    ACC3, WF3, AR3, TRA, VD3, T3, VX = [0, 64], 128, 160, 224, 240, 245, 253
    LN3 = T3
    S_W, S_X, S_O = 8, 40, 44
    sSP, sTM, sTN, sWO, sAO, sM3, sOB3, sT2, sPAD, sRD2, sTL = 35, 21, 22, 23, 24, 25, 26, 27, 32, 33, 34
    A(f"s_load_dwordx2 s[28:29], s[0:1], 0\ns_load_dwordx2 s[30:31], s[0:1], 80")
    A(f"s_and_b32 s{sSP}, s2, 7\ns_lshr_b32 s{sT1}, s2, 3\ns_and_b32 s{sTM}, s{sT1}, 7\ns_lshr_b32 s{sTN}, s2, 6")
    A(f"s_mul_i32 s{sT0}, s{sSP}, 21\ns_min_u32 s{sT1}, s{sSP}, 2\ns_add_u32 s{sT0}, s{sT0}, s{sT1}")
    A(f"s_cmp_eq_u32 s{sSP}, 7\ns_cselect_b32 s{sT0}, 150, s{sT0}")
    A(f"s_cmp_lt_u32 s{sSP}, 2\ns_cselect_b32 s{sPAD}, 0, 4096\ns_cmp_eq_u32 s{sSP}, 6\ns_cselect_b32 s{sPAD}, 0, s{sPAD}")
    A(f"s_sub_u32 s{sT1}, s{sT0}, 128\ns_cmp_ge_u32 s{sSP}, 6\ns_cselect_b32 s{sT1}, s{sT1}, s{sT0}\ns_cselect_b32 s{S_W}, s{P_WD}, s{P_WO}\ns_cselect_b32 s{S_W+1}, s{P_WD+1}, s{P_WO+1}\ns_cselect_b32 s{sRD2}, 1, 0\ns_mov_b32 s{S_W+3}, 0x00020000")
    A(f"s_add_u32 s{sT2}, s{sT1}, 22\ns_lshl_b32 s{sT2}, s{sT2}, 15\ns_lshl_b32 s{S_W+2}, s{sPAD}, 3\ns_sub_u32 s{S_W+2}, s{sT2}, s{S_W+2}")
    A(f"s_lshl_b32 s{sT2}, s{sTM}, 1\ns_lshr_b32 s{sAO}, s{sW}, 1\ns_add_u32 s{sT2}, s{sT2}, s{sAO}\ns_mul_i32 s{sAO}, s{sT2}, {A3_TB64}\ns_lshl_b32 s{sT0}, s{sT0}, 12\ns_add_u32 s{sAO}, s{sAO}, s{sT0}")
    A(f"s_and_b32 s{sT2}, s{sW}, 1\ns_lshl_b32 s{sT2}, s{sT2}, 11\ns_add_u32 s{sAO}, s{sAO}, s{sT2}\ns_add_u32 s{sAO}, s{sAO}, {A3_BASE}")
    A(f"s_lshl_b32 s{sWO}, s{sT1}, 15\ns_lshl_b32 s{sT2}, s{sW}, 13\ns_add_u32 s{sWO}, s{sWO}, s{sT2}\ns_lshl_b32 s{sT2}, s{sTN}, 8\ns_add_u32 s{sWO}, s{sWO}, s{sT2}\ns_lshl_b32 s{sM3}, s{sW}, 11")
    A(f"v_lshrrev_b32 v{LN3}, 4, v{VK}")
    A(f"v_lshrrev_b32 v{T3+2}, 4, v{LN3}\nv_and_b32 v{T3+3}, 15, v{LN3}\nv_lshlrev_b32 v{T3+4}, 1, v{T3+2}\nv_xor_b32 v{T3+3}, v{T3+3}, v{T3+4}\nv_lshlrev_b32 v{T3+2}, 10, v{T3+2}\nv_lshl_add_u32 v{VD3}, v{T3+3}, 4, v{T3+2}")
    A(f"v_xor_b32 v{T3+2}, 128, v{VD3}\nv_add_u32 v{VD3+1}, 3072, v{T3+2}")
    A(f"s_mov_b32 s39, {CNT_BASE}\ns_lshl_b32 s{sT0}, s{sTM}, 7\nv_mov_b32 v{T3+5}, s{sT0}\nbuffer_load_dword v{T3+1}, v{T3+5}, s[{S_WS}:{S_WS+3}], s39 offen sc1\ns_barrier")
    seq3 = [('P', 0)]
    def wl(s_):
        seq3.extend([('W', s_)]*2)
        return [[f"s_add_u32 m0, s{sM3}, {(s_ % RING)*8192}", f"s_add_u32 s{sT1}, s{sWO}, {(s_ % NJ)*32768}"],
                [f"buffer_load_dwordx4 v{VD3}, s[{S_W}:{S_W+3}], s{sT1} offen lds"], [f"buffer_load_dwordx4 v{VD3+1}, s[{S_W}:{S_W+3}], s{sT1} offen offset:1024 lds"]]
    def al(s_, track=True):
        if track: seq3.extend([('A', s_)]*2)
        off = (s_ % NJ)*4096 + (s_ // NJ)*16*A3_TB64
        pre = [f"s_add_u32 s{sT0}, s{sAO}, {off}"] + ([f"s_sub_u32 s{sT0}, s{sT0}, s{sPAD}"] if s_ % NJ == NJ-1 else [])
        return [pre] + [[f"buffer_load_dwordx4 {vr(AR3+(s_%AD)*8+4*t,4)}, v{VK}, s[{S_WS}:{S_WS+3}], s{sT0} offen offset:{t*1024} sc1"] for t in range(2)]
    def vm3(tag): return min(63, len(seq3) - 1 - max(i for i, e in enumerate(seq3) if e == tag))
    def emit3(its):
        for it in its:
            for x in it: A(x)
    flat = lambda its: [x for it in its for x in it]
    for s_ in range(4): emit3(wl(s_))
    A(f"v_lshrrev_b32 v{T3+2}, 2, v{LN3}\nv_and_b32 v{T3+3}, 7, v{T3+2}\nv_lshlrev_b32 v{T3+2}, 8, v{T3+2}\nv_and_b32 v{T3+4}, 3, v{LN3}\nv_lshl_add_u32 v{T3+2}, v{T3+4}, 3, v{T3+2}")
    for nb in range(8): A(f"v_xor_b32 v{T3+4}, {nb}, v{T3+3}\nv_lshl_add_u32 v{TRA+nb}, v{T3+4}, 5, v{T3+2}\nv_add_u32 v{TRA+8+nb}, 0x10000, v{TRA+nb}")
    A(f"s_waitcnt vmcnt({vm3(('P', 0))})\nv_cmp_ne_u32 vcc, 32, v{T3+1}\ns_cmp_eq_u32 s{sRD2}, 1\ns_cbranch_scc1 K3_LSPIN_B\ns_cbranch_vccnz K3_LSPIN")
    A.label("K3_LSPIN_B")
    spin("K3_LSPIN", T3+1, T3+5, 0, 32, srd=f"s[{S_WS}:{S_WS+3}]", so="s39", slp=SLP2)
    for s_ in range(LA): emit3(al(s_))
    A(f"s_lshl_b32 s{sT0}, s{sI}, 7\ns_sub_u32 s{sT0}, {15*128}, s{sT0}\nv_mov_b32 v{T3+2}, s{sT0}\nv_mov_b32 v{T3+4}, 1\nv_add_u32 v{T3+5}, 1024, v{T3+5}")
    A(f"s_waitcnt vmcnt({vm3(('W', 0))}) lgkmcnt(0)\ns_barrier")
    A(f"s_cmp_lg_u32 s{sW}, 0\ns_cbranch_scc1 K3_NOSIG\ns_mov_b64 exec, 1\nbuffer_atomic_add v{T3+4}, v{T3+2}, s[{S_WS}:{S_WS+3}], s39 offen sc1\ns_mov_b64 exec, -1")
    A.label("K3_NOSIG")
    st(96)
    def tr3(nb, s_):
        off = (s_ % RING)*8192; hi = off // 65536; off %= 65536
        return [f"ds_read_b64_tr_b16 {vr(WF3+4*nb,2)}, v{TRA+8*hi+nb} offset:{off}", f"ds_read_b64_tr_b16 {vr(WF3+4*nb+2,2)}, v{TRA+8*hi+nb} offset:{off+4096}"]
    for nb in range(8):
        for x in tr3(nb, 0): A(x)
    for s_ in range(4, LW): emit3(wl(s_))
    A(f"s_mov_b32 s{S_X}, s28\ns_mov_b32 s{S_X+1}, s29\ns_mov_b32 s{S_X+2}, 0x200000\ns_mov_b32 s{S_X+3}, 0x00020000\ns_mov_b32 s{S_O}, s30\ns_mov_b32 s{S_O+1}, s31\ns_mov_b32 s{S_O+2}, 0x200000\ns_mov_b32 s{S_O+3}, 0x00020000")
    A(f"s_lshl_b32 s{sT0}, s{sTM}, 17\ns_lshl_b32 s{sT1}, s{sSP}, 14\ns_add_u32 s{sT0}, s{sT0}, s{sT1}\ns_lshl_b32 s{sT1}, s{sTN}, 8\ns_add_u32 s{sT0}, s{sT0}, s{sT1}\ns_lshl_b32 s{sT1}, s{sW}, 6\ns_add_u32 s{sT0}, s{sT0}, s{sT1}")
    A(f"v_and_b32 v{T3+2}, 15, v{LN3}\nv_lshrrev_b32 v{T3+3}, 4, v{LN3}\nv_lshlrev_b32 v{T3+2}, 10, v{T3+2}\nv_lshl_add_u32 v{T3+2}, v{T3+3}, 3, v{T3+2}\nv_add_u32 v{VX}, s{sT0}, v{T3+2}\ns_mov_b32 s{sT2}, 0x100000")
    for jb in range(2):
        for h in range(2):
            A(f"buffer_load_dwordx2 {ar(4*jb+2*h,2)}, v{VX}, s[{S_X}:{S_X+3}], {'s%d' % sT2 if jb else '0'} offen offset:{h*32}"); seq3.append(('X', 0))
    A(f"s_lshl_b32 s{sTL}, s{sTM}, 2\ns_add_u32 s{sTL}, s{sTL}, s{sTN}\ns_lshl_b32 s{sT0}, s{sTL}, 7\ns_add_u32 s{sT0}, s{sT0}, 2048\nv_mov_b32 v{T3+6}, s{sT0}\nv_add_u32 v{T3+7}, 4096, v{T3+6}")
    A(f"s_lshl_b32 s{sTL}, s{sTL}, 18\ns_add_u32 s{sTL}, s{sTL}, {P2_BASE}\ns_lshl_b32 s{sT0}, s{sSP}, 15\ns_lshl_b32 s{sT1}, s{sW}, 13\ns_add_u32 s{sOB3}, s{sTL}, s{sT0}\ns_add_u32 s{sOB3}, s{sOB3}, s{sT1}")
    def epi3(jb):
        o = []
        for np_ in range(4):
            for t in range(2):
                b0 = ACC3[jb] + ((2*np_)*2 + t)*4; b1 = ACC3[jb] + ((2*np_+1)*2 + t)*4
                o += [f"v_cvt_pk_bf16_f32 v{b0}, v{b0}, v{b0+1}", f"v_cvt_pk_bf16_f32 v{b0+1}, v{b0+2}, v{b0+3}", f"v_cvt_pk_bf16_f32 v{b0+2}, v{b1}, v{b1+1}", f"v_cvt_pk_bf16_f32 v{b0+3}, v{b1+2}, v{b1+3}"]
                if t == 0 and np_ % 2 == 0: o.append(f"s_add_u32 s36, s{sOB3}, {jb*(8 << 20) + np_*2048}")
                o.append(f"buffer_store_dwordx4 {vr(b0,4)}, v{VK}, s[{S_WS}:{S_WS+3}], s36 offen offset:{(np_%2)*2048 + t*1024} sc1")
        return o
    eA = epi3(0)
    NS = 2*NJ; EB = NJ - 4
    lateB = [n for n in range(NJ, NJ + 4)]
    for s_ in range(NS):
        jb = s_ // NJ
        extra = {}
        if s_ == NJ:
            A(f"s_cmp_eq_u32 s{sRD2}, 0\ns_cbranch_scc1 K3_HSPIN_F")
            A.label("K3_HOK")
            spin("K3_HSPIN", T3+1, T3+5, 0, 32, srd=f"s[{S_WS}:{S_WS+3}]", so="s39", slp=SLP2)
            stubs.append(["K3_HSPIN_B:"] + [x for n in lateB for x in flat(al(n, False))] + ["s_branch K3_HOK"])
            for n in lateB: seq3.extend([('A', n)]*2)
            st(98)
        A(f"s_waitcnt vmcnt({vm3(('A', s_))}) lgkmcnt(8)")
        if s_ % 2 == 0:
            extra[0] = [f"s_waitcnt vmcnt({min(vm3(('W', min(s_+2, NS-1))), vm3(('SA', 0)) if ('SA', 0) in seq3 and s_ == NJ+8 else 63)})", "s_barrier"]
            if s_ == NJ + 8:
                extra[0] += [f"s_cmp_lg_u32 s{sW}, 0", "s_cbranch_scc1 K3_NOSA", "s_mov_b64 exec, 1", f"buffer_atomic_add v{T3+4}, v{T3+6}, s[{S_WS}:{S_WS+3}], s39 offen sc1", "s_mov_b64 exec, -1", "K3_NOSA:"]
        extra[6] = ["s_waitcnt lgkmcnt(6)"]
        its = []
        if s_ + LW < NS: its += wl(s_ + LW)
        ta = s_ + LA
        if ta < NJ: its += al(ta)
        elif s_ >= NJ:
            for n in ({NJ: [NJ+4, NJ+5], NJ+1: [NJ+6, NJ+7], NJ+2: [NJ+8, NJ+9]}.get(s_, [ta] if NJ+9 < ta < NS else [])): its += al(n)
        if s_ == EB - 3: its.append([f"buffer_load_dword v{T3+1}, v{T3+5}, s[{S_WS}:{S_WS+3}], s39 offen sc1"]); seq3.append(('P', 1))
        if s_ == EB - 1:
            its.append([f"s_waitcnt vmcnt({vm3(('P', 1))})", f"v_cmp_ne_u32 vcc, 32, v{T3+1}"])
            its.append(["s_cmp_eq_u64 vcc, 0", f"s_cselect_b32 s{sRD2}, 1, s{sRD2}"])
        if EB <= s_ < NJ:
            lab = U("NB")
            its.append([f"s_cmp_eq_u32 s{sRD2}, 0", f"s_cbranch_scc1 {lab}"] + flat(al(NJ + s_ - EB, False)) + [lab + ":"])
        g_ = 2
        for it in its:
            extra.setdefault(g_, []).extend(it); g_ = min(14, g_ + 2) if g_ != 4 else 8
        if NJ + 1 <= s_ and eA:
            for g2 in (2, 4, 8, 10, 12, 14):
                for _ in range(2):
                    if eA:
                        x = eA.pop(0); extra.setdefault(g2, []).append(x)
                        if x.startswith('buffer'): seq3.append(('SA', 0))
        for nb in range(8):
            for t in range(2):
                g = nb*2 + t; d_ = ACC3[jb] + g*4
                A(f"{MF} {vr(d_,4)}, {vr(WF3+4*nb,4)}, {vr(AR3+(s_%AD)*8+4*t,4)}, {'0' if s_ % NJ == 0 else vr(d_,4)}")
                if t == 1 and s_ + 1 < NS:
                    for x in tr3(nb, s_+1): A(x)
                for x in extra.get(g, []): A(x)
    assert not eA
    A(f"buffer_load_dword v{T3+1}, v{T3+6}, s[{S_WS}:{S_WS+3}], s39 offen sc1\ns_nop 4")
    for x in epi3(1): A(x)
    PK, R = 128, 0
    def unpack(dst, src, n=4, s='v'):
        for i in range(n): A(f"v_lshlrev_b32 v{dst+2*i}, 16, v{src+i}\nv_and_b32 v{dst+2*i+1}, 0xffff0000, v{src+i}")
    def comb_loads(jb):
        A(f"s_lshr_b32 s{sT0}, s{sSP}, 1\ns_lshl_b32 s{sT0}, s{sT0}, 13\ns_and_b32 s{sT1}, s{sSP}, 1\ns_lshl_b32 s{sT1}, s{sT1}, 10\ns_add_u32 s{sT0}, s{sT0}, s{sT1}\ns_lshl_b32 s{sT1}, s{sW}, 11\ns_add_u32 s{sT0}, s{sT0}, s{sT1}\ns_add_u32 s{sT0}, s{sT0}, s{sTL}")
        for sp in (6, 7, 0, 1, 2, 3, 4, 5):
            A(f"s_add_u32 s{sT1}, s{sT0}, {jb*(8 << 20) + sp*32768}\nbuffer_load_dwordx4 {vr(PK+4*sp,4)}, v{VK}, s[{S_WS}:{S_WS+3}], s{sT1} offen sc1")
    def comb(jb):
        D, G_, XU, SS = 160, 176, 184, 192
        for i in range(4): A(f"v_accvgpr_read_b32 v{SS+i}, a{4*jb+i}")
        unpack(XU, SS)
        A("s_waitcnt vmcnt(6)")
        unpack(D, PK+24); unpack(D+8, PK+28)
        for i in range(8): A(f"v_add_f32 v{D+i}, v{D+i}, v{D+8+i}")
        for i in range(8): A(f"v_mul_f32 v{G_+i}, {hex(f32bits(-math.log2(math.e)))}, v{D+i}")
        for i in range(8): A(f"v_exp_f32 v{G_+i}, v{G_+i}")
        for i in range(8): A(f"v_add_f32 v{G_+i}, 1.0, v{G_+i}")
        for i in range(8): A(f"v_rcp_f32 v{G_+i}, v{G_+i}")
        for i in range(8): A(f"v_mul_f32 v{G_+i}, v{G_+i}, v{D+i}")
        A("s_waitcnt vmcnt(0)")
        unpack(SS, PK)
        for sp in range(1, 6):
            unpack(D, PK+4*sp)
            for i in range(8): A(f"v_add_f32 v{SS+i}, v{SS+i}, v{D+i}")
        for i in range(8): A(f"v_fmac_f32 v{XU+i}, v{SS+i}, v{G_+i}")
        for i in range(4): A(f"v_cvt_pk_bf16_f32 v{D+i}, v{XU+2*i}, v{XU+2*i+1}")
        for h in range(2): A(f"buffer_store_dwordx2 {vr(D+2*h,2)}, v{VX}, s[{S_O}:{S_O+3}], {'s%d' % sT2 if jb else '0'} offen offset:{h*32}")
    A(f"s_waitcnt vmcnt(8)\nv_cmp_ne_u32 vcc, 8, v{T3+1}\ns_cbranch_vccnz K4_LSPIN")
    A.label("K4_LSPIN_B")
    spin("K4_LSPIN", T3+1, T3+6, 0, 8, srd=f"s[{S_WS}:{S_WS+3}]", so="s39", slp=SLP2)
    comb_loads(0)
    A("s_waitcnt vmcnt(8)\ns_barrier")
    A(f"s_cmp_lg_u32 s{sW}, 0\ns_cbranch_scc1 K4_NOSIG\ns_mov_b64 exec, 1\nbuffer_atomic_add v{T3+4}, v{T3+7}, s[{S_WS}:{S_WS+3}], s39 offen sc1\ns_mov_b64 exec, -1")
    A.label("K4_NOSIG")
    comb(0)
    A(f"s_cmp_lg_u32 s{sW}, 0\ns_cbranch_scc0 K4_TSPIN_F")
    A.label("K4_TSPIN_B")
    spin("K4_TSPIN", T3+1, T3+7, 0, 8, srd=f"s[{S_WS}:{S_WS+3}]", so="s39", slp=SLP2)
    A("s_barrier")
    st(100)
    comb_loads(1)
    comb(1)
    if asmlib.STAMP:
        A(f"s_mov_b32 s{P_WS}, s{S_WS}\ns_mov_b32 s{P_WS+1}, s{S_WS+1}\ns_waitcnt lgkmcnt(0)\ns_mov_b64 s[68:69], s[72:73]\ns_mov_b64 s[70:71], s[76:77]\ns_mov_b64 s[72:73], s[96:97]\ns_mov_b64 s[74:75], s[98:99]\ns_mov_b64 s[76:77], s[100:101]")
    if asmlib.STAMP:
        A("s_waitcnt vmcnt(0)")
        stamp_flush(A, 0, 8, P_WS, sW)
    A.label("K2_END")
    A("s_endpgm")
    for st in stubs:
        for x in st: A(x)
    return dict(name="k12_kernel", vgpr=512, accum=256, sgpr=102, grid=256, block=256, lds=163840)
```

```python
from asmlib import *
import asmlib
from k1f import KV_BASE, A3_BASE, A3_TB64, WS_USED, MF, f32bits, XC_BASE, SCQ_BASE, P2_BASE, CNT_BASE
import math

import os
QST = os.environ.get('QST', '0') == '1'
QPLAN = os.environ.get('QPLAN', '3')
CT = os.environ.get('CODE_TOUCH2', '1') == '1'
QROT = int(os.environ.get('QROT', '2'))
LATEKV = os.environ.get('LATEKV', '1') == '1'
NOBAR = os.environ.get('NOBAR', '0') == '1'
BARPOS = int(os.environ.get('BARPOS', '0'))
NOCHK = os.environ.get('NOCHK', '0') == '1'
CHKE = os.environ.get('CHKE', '1') == '1'
ONES = os.environ.get('ONES', '0') == '1'
BIAS = 24.0
SLP = int(os.environ.get('SLP', '8'))
FULL = os.environ.get('FULL', '1') == '1'
SLP2 = int(os.environ.get('SLP2', '4'))
ELO = os.environ.get('ELO', '1') == '1'
FINF = os.environ.get('FINF', '1') == '1'
LOSIG = os.environ.get('LOSIG', '1') == '1'
EPQ = os.environ.get('EPQ', '1') == '1'
PCHK = int(os.environ.get('PCHK', '11'))
CTX_TOUCH = os.environ.get('CTX_TOUCH', '0') == '1'
def gen_k2(A, k1i, store_flags="", thr=2.0**30):
    O = 0; S01 = 128; S23 = [144, 160]; P01 = [176, 184]; P23 = 192; CX = 200; E = 232; LS = 236; L = 240
    VK = 244; VV = 245; VD = 246; TMP = 247
    AQ = 0; KF = 64; VF = 96; AL = 128; AO = 144
    NG = 34 if ONES else 32
    S_KV, S_WS = 8, 12
    sW, sH, sI, sT0, sT1, sOFF, sHALF, sCNT, sTHR, sNEG = 16, 17, 18, 19, 20, 21, 22, 23, 24, 25
    sMK = 26
    sRET = 34
    sP = 36; sOHI = 37; sOLO = 38
    P_WS = 40; P_WO = 42; P_WD = 44; P_WQ = 46; S_T = 48; sXH = 52; sXL = 53; sWQ = 54; sMQ = 55
    def Sreg(qp, kb, par): return (S01 + (qp*2+kb)*4) if qp < 2 else (S23[par] + ((qp-2)*2+kb)*4)
    def Preg(qp, par): return (P01[par] + qp*4) if qp < 2 else (P23 + (qp-2)*4)
    def Oreg(db, qb): return O + (db*4+qb)*4
    def CXr(qp, kb): return CX + (qp*2+kb)*4
    stubs = []
    uid = [0]
    def U(p): uid[0] += 1; return f"K2_{p}_{uid[0]}"

    def spin(lab, vp, vo, off, expect, mask=None, srd='s[80:83]', so='0', slp=None):
        stubs.append([f"{lab}_F:", f"s_mov_b32 s{sT1}, 0", f"s_branch {lab}_N", f"{lab}:", f"s_mov_b32 s{sT1}, 0", f"{lab}_L:", f"s_sleep {slp or SLP}", f"{lab}_N:",
                      f"buffer_load_dword v{vp}, v{vo}, {srd}, {so} offen offset:{off} sc1", "s_waitcnt vmcnt(0)"] + ([f"v_and_b32 v{vp}, {mask}, v{vp}"] if mask else []) +
                     [f"v_cmp_ne_u32 vcc, {expect}, v{vp}", f"s_add_u32 s{sT1}, s{sT1}, 1", f"s_cmp_ge_u32 s{sT1}, 0x8000", f"s_cbranch_scc1 {lab}_B", f"s_cbranch_vccnz {lab}_L", f"s_branch {lab}_B"])
    A(f"s_mov_b32 s{sW}, s{k1i['sW']}\nv_mov_b32 v{TMP+1}, v0")
    A(f"s_load_dwordx2 s[{P_WS}:{P_WS+1}], s[0:1], 96\ns_load_dwordx2 s[{P_WO}:{P_WO+1}], s[0:1], 40\ns_load_dwordx2 s[{P_WD}:{P_WD+1}], s[0:1], 72\ns_load_dwordx2 s[{P_WQ}:{P_WQ+1}], s[0:1], 16\ns_mov_b32 s{S_T+3}, 0x00020000")
    A(f"v_cmp_ne_u32 vcc, 4, v{k1i['XP']}\ns_barrier\ns_cbranch_vccnz K2_XSPIN")
    A.label("K2_XSPIN_B")
    spin("K2_XSPIN", k1i['XP'], k1i['XO'], 128, 4)
    A(f"s_and_b32 s{sT0}, s2, 7\ns_lshr_b32 s{sT1}, s2, 3\ns_lshr_b32 s{sI}, s{sT1}, 2\ns_and_b32 s{sT1}, s{sT1}, 3\ns_lshl_b32 s{sH}, s{sT0}, 2\ns_add_u32 s{sH}, s{sH}, s{sT1}")
    A(f"s_mov_b32 s{S_KV+3}, 0x00020000\ns_mov_b32 s{S_WS+3}, 0x00020000\ns_mov_b32 s{S_WS+2}, {WS_USED}")
    A(f"s_lshl_b32 s{sT0}, s{sI}, 16\ns_sub_u32 s{S_KV+2}, 0x108000, s{sT0}")
    A(f"s_mov_b32 s{sTHR}, {hex(0x40000000 if ONES else f32bits(thr))}\ns_mov_b32 s{sNEG}, 0xff800000")
    LN = TMP+1
    A(f"v_lshlrev_b32 v{VK}, 4, v{LN}\nv_add_u32 v{VV}, 0x10000, v{VK}")
    A(f"s_lshl_b32 s{sT0}, s{sW}, 12\nv_add_u32 v{VD}, s{sT0}, v{VK}")
    A(f"s_and_b32 s{sT0}, s{sW}, 1\ns_lshl_b32 s{sHALF}, s{sT0}, 12\ns_lshr_b32 s{sT0}, s{sW}, 1\ns_lshl_b32 s{sT1}, s{sT0}, 16\ns_add_u32 s{sHALF}, s{sHALF}, s{sT1}")
    A(f"s_lshl_b32 s{sT0}, s{sT0}, 15\ns_sub_u32 s{sOFF}, 0x8000, s{sT0}")
    A("s_waitcnt lgkmcnt(0)")
    A(f"s_mov_b32 s{S_WS}, s{P_WS}\ns_mov_b32 s{S_WS+1}, s{P_WS+1}")
    A(f"s_lshl_b32 s{sT0}, s{sH}, 20\ns_add_u32 s{sT0}, s{sT0}, {KV_BASE-0x8000}\ns_add_u32 s{S_KV}, s{P_WS}, s{sT0}\ns_addc_u32 s{S_KV+1}, s{P_WS+1}, 0")
    A(f"s_lshr_b32 s{sT0}, s{sW}, 1\ns_lshl_b32 s{sT1}, s{sI}, 1\ns_add_u32 s{sOLO}, s{sT1}, s{sT0}\ns_sub_u32 s{sOHI}, 30, s{sT1}\ns_add_u32 s{sOHI}, s{sOHI}, s{sT0}")
    A(f"s_mul_i32 s{sOLO}, s{sOLO}, {A3_TB64}\ns_mul_i32 s{sOHI}, s{sOHI}, {A3_TB64}")
    A(f"s_lshl_b32 s{sT0}, s{sH}, 14\ns_and_b32 s{sT1}, s{sW}, 1\ns_lshl_b32 s{sT1}, s{sT1}, 11\ns_add_u32 s{sT0}, s{sT0}, s{sT1}\ns_add_u32 s{sT0}, s{sT0}, {A3_BASE}")
    A(f"s_add_u32 s{sOLO}, s{sOLO}, s{sT0}\ns_add_u32 s{sOHI}, s{sOHI}, s{sT0}")
    def kread(f, unit4): return f"ds_read_b128 {ar(KF+4*f,4)}, v{VK} offset:{unit4*8192 + f*1024}"
    def vread(f, slot4): return f"ds_read_b128 {ar(VF+4*f,4)}, v{VV} offset:{slot4*8192 + f*1024}"
    def dma_group(c):
        pre = [f"s_add_u32 m0, s{sHALF}, {(c%4)*8192}"]
        d = [f"buffer_load_dwordx4 v{VD}, s[{S_KV}:{S_KV+3}], s{sOFF} offen offset:{j*1024} sc1 lds" for j in range(4)]
        post = [f"s_add_u32 s{sOFF}, s{sOFF}, 16384"]
        if c % 4 == 3: post.append(f"s_xor_b32 s{sHALF}, s{sHALF}, 0x8000")
        return pre, d, post
    AR = 128; TRQ = S01; VQ = S01 + 8
    A(f"s_mov_b32 s{S_T}, s{P_WQ}\ns_mov_b32 s{S_T+1}, s{P_WQ+1}\ns_mov_b32 s{S_T+2}, {512*8192}")
    A(f"s_lshl_b32 s{sT0}, s{sI}, 3\ns_lshl_b32 s{sT1}, s{sW}, 1\ns_add_u32 s{sXL}, s{sT0}, s{sT1}\ns_sub_u32 s{sXH}, 120, s{sT0}\ns_add_u32 s{sXH}, s{sXH}, s{sT1}")
    A(f"s_lshl_b32 s{sP}, s{sXH}, 6\ns_add_u32 s{sP}, s{sP}, {SCQ_BASE}\ns_lshl_b32 s{sCNT}, s{sXL}, 6\ns_add_u32 s{sCNT}, s{sCNT}, {SCQ_BASE}")
    A(f"s_lshl_b32 s{sXH}, s{sXH}, 14\ns_add_u32 s{sXH}, s{sXH}, {XC_BASE}\ns_lshl_b32 s{sXL}, s{sXL}, 14\ns_add_u32 s{sXL}, s{sXL}, {XC_BASE}")
    A(f"s_lshl_b32 s{sWQ}, s{sH}, 8\ns_lshl_b32 s{sT0}, s{sW}, 16\ns_add_u32 s{sWQ}, s{sWQ}, s{sT0}\ns_lshl_b32 s{sMQ}, s{sW}, 11\ns_add_u32 s{sMQ}, s{sMQ}, 32768")
    A(f"v_lshrrev_b32 v{TMP+2}, 4, v{LN}\nv_and_b32 v{TMP+3}, 15, v{LN}\ns_and_b32 s{sT0}, s{sW}, 1\ns_lshl_b32 s{sT0}, s{sT0}, 2\nv_or_b32 v{TMP+4}, s{sT0}, v{TMP+2}\nv_lshlrev_b32 v{TMP+4}, 1, v{TMP+4}\nv_xor_b32 v{TMP+4}, v{TMP+4}, v{TMP+3}")
    A(f"v_lshlrev_b32 v{TMP+5}, 13, v{TMP+2}\nv_lshl_add_u32 v{VQ}, v{TMP+4}, 4, v{TMP+5}\nv_add_u32 v{VQ+1}, {4*8192-1024}, v{VQ}\nv_add_u32 v{VQ+2}, 16384, v{VK}")
    sQO, sWQQ, sXH1, sXL1 = 56, 60, 84, 85
    rsrc = {0: "0", 1: f"s{sH}", 2: f"s{sI}"}[QROT if QROT < 3 else 1]
    if QROT == 3: A(f"s_add_u32 s{sT1}, s{sH}, s{sI}"); rsrc = f"s{sT1}"
    for q in range(4):
        A(f"s_add_u32 s{sT0}, {rsrc}, {q}\ns_and_b32 s{sT0}, s{sT0}, 3\ns_lshl_b32 s{sQO+q}, s{sT0}, 12\ns_lshl_b32 s{sT0}, s{sT0}, 20\ns_add_u32 s{sWQQ+q}, s{sWQ}, s{sT0}")
    def w_loads(n):
        return [[f"s_add_u32 m0, s{sMQ}, {n*8192}", f"s_add_u32 s{sT0}, s{sWQQ+n//4}, {(n%4)*32*8192}"],
                [f"buffer_load_dwordx4 v{VQ}, s[{S_T}:{S_T+3}], s{sT0} offen lds"], [f"buffer_load_dwordx4 v{VQ+1}, s[{S_T}:{S_T+3}], s{sT0} offen offset:1024 lds"]]
    def adst(n, t):
        if n < 8: return ar(AR+n*16+4*t, 4)
        if n < 12: return ar((n-8)*16+4*t, 4)
        if n < 14: return ar(96+(n-12)*16+4*t, 4)
        return vr(144+(n-14)*16+4*t, 4)
    def a_loads(n):
        o = []
        if n % 4 == 0: o.append([f"s_add_u32 s{sXH1}, s{sXH}, s{sQO+n//4}", f"s_add_u32 s{sXL1}, s{sXL}, s{sQO+n//4}"])
        for t in range(4):
            o.append([f"buffer_load_dwordx4 {adst(n,t)}, v{VQ+2 if t % 2 else VK}, s[{S_WS}:{S_WS+3}], s{sXH1 if t < 2 else sXL1} offen offset:{(n%4)*1024} sc1"])
        return o
    seq = []
    def mk(tags):
        its = []
        for k, n in tags:
            x = (w_loads if k == 'W' else a_loads)(n)
            for it in x:
                for y in it:
                    if y.startswith('buffer'): seq.append((k, n))
            its += x
        return its
    def vmq(tag): return min(63, len(seq) - 1 - max(i for i, e in enumerate(seq) if e == tag))
    def vmq_(tag): return len(seq) - 1 - max(i for i, e in enumerate(seq) if e == tag)
    for it in mk([('W',0),('A',0),('W',1),('W',2),('A',1),('A',2),('W',3),('W',4),('A',3)]):
        for x in it: A(x)
    A(f"v_lshlrev_b32 v{TMP+4}, 2, v{TMP+3}")
    A(f"v_bfe_u32 v{TMP+3}, v{LN}, 2, 2\nv_and_b32 v{TMP+6}, 1, v{TMP+2}\nv_lshl_add_u32 v{TMP+6}, v{TMP+6}, 2, v{TMP+3}\nv_lshl_add_u32 v{TMP+3}, v{TMP+2}, 3, v{TMP+3}\nv_lshlrev_b32 v{TMP+3}, 8, v{TMP+3}")
    A(f"v_and_b32 v{TMP+5}, 3, v{LN}\nv_lshl_add_u32 v{TMP+3}, v{TMP+5}, 3, v{TMP+3}\nv_add_u32 v{TMP+3}, 0x8000, v{TMP+3}")
    for nb in range(8): A(f"v_xor_b32 v{TMP+5}, {nb}, v{TMP+6}\nv_lshl_add_u32 v{TRQ+nb}, v{TMP+5}, 5, v{TMP+3}")
    def qtr(nb, ks): return [f"ds_read_b64_tr_b16 {ar(KF+4*nb,2)}, v{TRQ+nb} offset:{(ks%8)*8192}", f"ds_read_b64_tr_b16 {ar(KF+4*nb+2,2)}, v{TRQ+nb} offset:{(ks%8)*8192+1024}"]
    A(f"s_and_b32 s{sT0}, s2, 15\ns_lshl_b32 s{sT0}, s{sT0}, 2\nv_mov_b32 v{TMP+5}, s{sT0}\nv_mov_b32 v{TMP+6}, 1")
    A(f"s_waitcnt vmcnt({len(seq)})\ns_barrier")
    A(f"s_cmp_lg_u32 s{sW}, 0\ns_cbranch_scc1 K2_NOSIG\ns_mov_b64 exec, 1\nbuffer_atomic_add v{TMP+6}, v{TMP+5}, s[80:83], 0 offen sc1\ns_mov_b64 exec, -1")
    A.label("K2_NOSIG")
    A(f"s_waitcnt vmcnt({vmq(('W', 0))})\ns_barrier")
    for nb in range(8):
        for x in qtr(nb, 0): A(x)
    A("s_waitcnt lgkmcnt(12)")
    plan = {0: [('A',4),('W',5),('A',5),('W',6),('A',6),('W',7)], 1: [('A',7),('W',8),('A',8),('W',9),('A',9),('W',10)], 2: [('A',10),('W',11),('A',11),('W',12),('A',12),('W',13)],
            3: [('A',13),('W',14),('A',14),('W',15),('A',15)]}
    if QPLAN == '2':
        plan = {0: [('A',4),('W',5),('W',6),('A',5),('W',7),('W',8)], 1: [('A',6),('W',9),('W',10),('A',7),('W',11),('W',12)], 2: [('A',8),('W',13),('W',14),('W',15),('A',9)]}
        for k_ in range(3, 9): plan[k_] = [('A', k_+7)]
    if QPLAN == '3':
        plan = {0: [('A',4),('W',5),('A',5)], 1: [('W',6),('A',6),('W',7),('A',7)], 2: [('W',8),('A',8),('W',9),('A',9)], 3: [('W',10),('A',10),('W',11)], 4: [('A',11),('W',12),('W',13)], 5: [('A',12),('W',14),('W',15)], 6: [('A',13)], 7: [('A',14)], 8: [('A',15)]}
    bars = {0: 2, 2: 4, 4: 8, 8: 15}
    NEGV = TMP+8
    misc = [f"v_mov_b32 v{r}, 0" for r in list(range(CX, CX+32)) + list(range(LS, LS+8))]
    misc += [f"v_and_b32 v{TMP+2}, 15, v{LN}", f"v_lshrrev_b32 v{TMP+3}, 4, v{LN}", f"v_lshlrev_b32 v{TMP+3}, 2, v{TMP+3}", f"v_sub_u32 v{TMP+2}, v{TMP+2}, v{TMP+3}"]
    misc += [f"v_cmp_le_i32 s[{sMK+2*i}:{sMK+2*i+1}], {i}, v{TMP+2}" for i in range(4)] + [f"v_mov_b32 v{NEGV}, s{sNEG}", "s_nop 0"]
    def q_epi(ds):
        o = []
        for qb in range(4):
            tq = QT + 4*(qb % 2)
            for h in range(2):
                b_ = Oreg(2*ds+h, qb)
                o += [f"v_mul_f32 v{b_+i}, v{b_+i}, v{E+qb}" for i in range(4)]
                o += [f"v_cvt_pk_bf16_f32 v{tq+2*h}, v{b_}, v{b_+1}", f"v_cvt_pk_bf16_f32 v{tq+2*h+1}, v{b_+2}, v{b_+3}"]
            o += [f"v_accvgpr_write_b32 a{AQ+(qb*4+ds)*4+i}, v{tq+i}" for i in range(4)]
        return o
    QT = P01[0]
    e0 = q_epi(0)
    for ks in range(16):
        gaps = {}
        def G(m): return gaps.setdefault(m, [])
        pre = [f"s_waitcnt vmcnt({vmq(('A', ks))})"]
        if ks in bars: G(0).extend([f"s_waitcnt vmcnt({vmq(('W', bars[ks]))})", "s_barrier"])
        if ks == 12: G(0).append("s_barrier")
        sRDY = 86
        if ks == PCHK:
            G(1).extend([f"s_waitcnt vmcnt({vmq(('P', 0))})", f"v_cmp_ne_u32 vcc, 16, v{TMP+7}"])
            G(4).extend([f"s_cmp_eq_u64 vcc, 0", f"s_cselect_b32 s{sRDY}, 1, 0", f"v_mov_b32 v{TMP+6}, s{sRDY}", f"s_cmp_lg_u32 s{sW}, 0", "s_cbranch_scc1 K2_NOMB", f"ds_write_b32 v{TMP+5}, v{TMP+6}", "K2_NOMB:"])
        if ks == 3: G(2).extend([f"v_mov_b32 v{TMP+5}, 0x8000", f"v_mov_b32 v{TMP+6}, 0", f"ds_write_b32 v{TMP+5}, v{TMP+6}"])
        its = mk(plan.get(ks, []))
        if ks == PCHK - 2:
            its.append([f"buffer_load_dword v{TMP+7}, v{TMP+4}, s[80:83], 0 offen sc1"]); seq.append(('P', 0))
        if ks == 6:
            for qb in range(4):
                its.append([f"buffer_load_dword v{E+qb}, v{TMP+4}, s[{S_WS}:{S_WS+3}], s{sP if qb < 2 else sCNT} offen offset:{(qb%2)*64} sc1"]); seq.append(('S', 0))
        def kv_init(c):
            p_, d_, po_ = dma_group(c)
            if c < 2:
                lab = U("KS")
                return [f"s_cmp_ge_u32 s{sW}, 2", f"s_cbranch_scc1 {lab}"] + p_ + ["s_nop 0"] + d_ + [lab + ":"] + po_
            return p_ + ["s_nop 0"] + d_ + po_
        if PCHK <= ks < PCHK + 4:
            lab = U("NR")
            its.append([f"s_cmp_eq_u32 s{sRDY}, 0", f"s_cbranch_scc1 {lab}"] + kv_init(ks - PCHK) + [lab + ":"])
        if ks in (13, 14): its += [misc[(ks-13)*26+2*k:(ks-13)*26+2*k+2] for k in range(13)]
        m = 1 if ks != PCHK else 5
        for it in its:
            G(m).extend(it)
            m = m + 1 if (m + 1) % 4 != 3 else m + 2
        if ks == 15:
            m = max(m, 12)
            while m < 31:
                G(m).extend(e0[:2]); e0 = e0[2:]
                m = m + 1 if (m + 1) % 4 != 3 else m + 2
        assert m < 33, m
        if ks < 15:
            for grp in range(1, 8, 2): G(grp*4+2).append("s_waitcnt lgkmcnt(10)")
        else:
            G(6).append("s_waitcnt lgkmcnt(8)"); G(14).append("s_waitcnt lgkmcnt(0)")
        for x in pre: A(x)
        for nb in range(8):
            for t in range(4):
                d = Oreg(nb, t)
                A(f"{MF} {vr(d,4)}, {ar(KF+4*nb,4)}, {adst(ks,t)}, {'0' if ks == 0 else vr(d,4)}")
                if t == 3 and ks < 15:
                    if ks == 7: A(f"v_add_u32 v{TRQ+nb}, 0x10000, v{TRQ+nb}")
                    for x in qtr(nb, ks+1): A(x)
                for x in G(nb*4+t): A(x)
    stamp(A, 3)

    def Dpatch(q0):
        o = []
        for i in range(4): o.append(f"v_cndmask_b32 v{CXr(q0,0)+i}, v{NEGV}, v{CXr(q0,0)+i}, s[{sMK+2*i}:{sMK+2*i+1}]")
        for i in range(4): o.append(f"v_mov_b32 v{CXr(q0,1)+i}, v{NEGV}")
        for i in range(4): o.append(f"v_cndmask_b32 v{CXr(q0+1,1)+i}, v{NEGV}, v{CXr(q0+1,1)+i}, s[{sMK+2*i}:{sMK+2*i+1}]")
        return o
    def Fpatch(q0): return [f"v_mov_b32 v{CXr(q0,0)+i}, v{NEGV}" for i in range(16)]
    def patch(q0, j):
        o = []
        lD, lE = U("PD"), U("PE")
        o.append(f"s_cmp_gt_u32 s{sW}, {j}"); o.append(f"s_cbranch_scc1 {lE}")
        if j > 0:
            o.append(f"s_cmp_eq_u32 s{sW}, {j}"); o.append(f"s_cbranch_scc1 {lD}")
            o += Fpatch(q0); o.append(f"s_branch {lE}")
            o.append(lD + ":")
        o += Dpatch(q0)
        o.append(lE + ":")
        o.append("s_nop 1")
        return o


    def sm_gaps1(qs, srcpar, dstpar, look):
        g = [[] for _ in range(34)]
        src = lambda k: Sreg(qs[k//4], (k % 4)//2, srcpar) + 2*(k % 2)
        pr = lambda k: Preg(qs[k//4], dstpar) + k % 4
        for k in range(8):
            en = E + 2*((k+1) % 2); ec = E + 2*(k % 2)
            cv = f"v_cvt_pk_bf16_f32 v{pr(k)}, v{ec}, v{ec+1}"
            orr = None
            if k % 2 == 1: orr = f"v_or_b32 v{TMP}, v{pr(0)}, v{pr(1)}" if k == 1 else f"v_or3_b32 v{TMP}, v{TMP}, v{pr(k-1)}, v{pr(k)}"
            if k < 7:
                g[4*k].append(f"v_exp_f32 v{en}, v{src(k+1)}"); g[4*k+2].append(f"v_exp_f32 v{en+1}, v{src(k+1)+1}")
                g[4*k+1].append(cv)
                if orr: g[4*k+3].append(orr)
            else:
                g[28] += [cv, orr]
                g[29].append(f"v_lshl_or_b32 v{TMP}, v{TMP}, 16, v{TMP}")
                g[30].append(f"v_cmp_le_u32 vcc, s{sTHR}, v{TMP}")
                if look: g[32].append(f"v_exp_f32 v{en}, v{look[0]}"); g[33].append(f"v_exp_f32 v{en+1}, v{look[1]}")
        return g
    def lmf(qps, rows, par, czero):
        return [(f"{MF} {ar(AL+4*r,4)}, {ar(AO,4)}, {vr(Preg(qp,par),4)}, {'0' if czero else ar(AL+4*r,4)}", None) for qp, r in zip(qps, rows)]

    def sm_gaps(qs, srcpar, dstpar, look, ladd):
        g = [[] for _ in range(32)]
        lsb = LS + (0 if qs[0] == 0 else 2)
        src = lambda k: Sreg(qs[k//4], (k % 4)//2, srcpar) + 2*(k % 2)
        for k in range(8):
            if k < 7: a, b = src(k+1), src(k+1)+1
            elif look: a, b = look
            else: a = None
            en = E + 2*((k+1) % 2); ec = E + 2*(k % 2)
            if a is not None:
                g[4*k].append(f"v_exp_f32 v{en}, v{a}"); g[4*k+2].append(f"v_exp_f32 v{en+1}, v{b}")
            ls = lsb + k//4
            if k % 4 == 0:
                g[4*k+1].append(f"v_add_f32 v{ls}, v{ec}, v{ec+1}")
                lr, lsr = ladd[k//4]
                g[4*k+1].append(f"v_add_f32 v{lr}, v{lr}, v{lsr}")
            else:
                g[4*k+1].append(f"v_add_f32 v{ls}, v{ls}, v{ec}"); g[4*k+1].append(f"v_add_f32 v{ls}, v{ls}, v{ec+1}")
            g[4*k+3].append(f"v_cvt_pk_bf16_f32 v{Preg(qs[k//4], dstpar) + k % 4}, v{ec}, v{ec+1}")
        if not NOCHK:
            if CHKE:
                e_a = g[28]; adds = g[29]; e_b = g[30]
                g[28] = adds; g[29] = [f"v_max_f32 v{TMP}, v{lsb}, v{lsb+1}", f"v_cmp_lt_f32 vcc, s{sTHR}, v{TMP}"]
                g[30] = e_a; g[31] = g[31] + e_b
            else:
                g[30].append(f"v_max_f32 v{TMP}, v{lsb}, v{lsb+1}")
                g[31].append(f"v_cmp_lt_f32 vcc, s{sTHR}, v{TMP}")
        return g

    def rescale(rows, init=False):
        o = ["s_nop 7"]
        D, D2, F = TMP+1, TMP+2, TMP+3
        for r in rows:
            s0 = r['S']
            o.append(f"v_max3_f32 v{D}, v{s0}, v{s0+1}, v{s0+2}")
            o.append(f"v_max3_f32 v{D}, v{D}, v{s0+3}, v{s0+4}")
            o.append(f"v_max3_f32 v{D}, v{D}, v{s0+5}, v{s0+6}")
            o.append(f"v_max_f32 v{D}, v{D}, v{s0+7}")
            o += [f"v_mov_b32 v{D2}, v{D}", "s_nop 1", f"v_permlane16_swap_b32 v{D}, v{D2}", f"v_max_f32 v{D}, v{D}, v{D2}"]
            o += [f"v_mov_b32 v{D2}, v{D}", "s_nop 1", f"v_permlane32_swap_b32 v{D}, v{D2}", f"v_max_f32 v{D}, v{D}, v{D2}"]
            o.append(f"v_ceil_f32 v{D}, v{D}")
            if ONES: o.append(f"v_add_f32 v{D}, {hex(f32bits(BIAS))}, v{D}")
            if not init:
                o.append(f"v_max_f32 v{D}, 0, v{D}")
                o.append(f"v_exp_f32 v{F}, -v{D}")
            for b in [s0] + r['subs']:
                for i in range(8): o.append(f"v_sub_f32 v{b+i}, v{b+i}, v{D}")
            if not init:
                qb = r['qb']
                for db in range(8):
                    for i in range(4): o.append(f"v_mul_f32 v{Oreg(db,qb)+i}, v{Oreg(db,qb)+i}, v{F}")
                if ONES:
                    for i in range(4): o += [f"v_accvgpr_read_b32 v{D2}, a{AL+4*qb+i}", f"v_mul_f32 v{D2}, v{D2}, v{F}", f"v_accvgpr_write_b32 a{AL+4*qb+i}, v{D2}"]
                else: o.append(f"v_mul_f32 v{L+qb}, v{L+qb}, v{F}")
                for pr in r.get('Pscale', []):
                    o += [f"v_lshlrev_b32 v{D2}, 16, v{pr}", f"v_and_b32 v{pr}, 0xffff0000, v{pr}", f"v_mul_f32 v{D2}, v{D2}, v{F}", f"v_mul_f32 v{pr}, v{pr}, v{F}",
                          f"v_cvt_pk_bf16_f32 v{pr}, v{D2}, v{pr}"]
            if r.get('P') is not None:
                ls = r['ls']
                for k in range(4):
                    o += [f"v_exp_f32 v{E}, v{s0+2*k}", f"v_exp_f32 v{E+1}, v{s0+2*k+1}", "s_nop 0"]
                    if ONES: pass
                    elif k == 0: o.append(f"v_add_f32 v{ls}, v{E}, v{E+1}")
                    else: o += [f"v_add_f32 v{ls}, v{ls}, v{E}", f"v_add_f32 v{ls}, v{ls}, v{E+1}"]
                    o.append(f"v_cvt_pk_bf16_f32 v{r['P']+k}, v{E}, v{E+1}")
        return o
    def relook(look):
        return [f"v_exp_f32 v{E}, v{look[0]}", f"v_exp_f32 v{E+1}, v{look[1]}", "s_nop 1"] if look else ["s_nop 1"]

    def check_site(code):
        ls, lb = U("SLOW"), U("BACK")
        if not NOCHK: A(f"s_cbranch_vccnz {ls}")
        A.label(lb)
        stubs.append([ls + ":"] + code + [f"s_branch {lb}"])

    def emit_half(mf, gaps, extra, waits):
        for g in range(len(mf)):
            if g in waits: A(waits[g])
            m, rd = mf[g]
            if m: A(m)
            elif g == 28: A("s_nop 0")
            if rd: A(rd)
            ex = extra.get(g, ([], []))
            for x in ex[0]: A(x)
            for x in ex[1]: A(x)
            for x in gaps[g]: A(x)

    def H1(par, mq, ms, ku, toggleK=None, vm=None, dmas=(), noqk=False, nosm=False, last=False, fill=None, czero=False):
        n = 1 - par
        mf = []
        if noqk: mf = [(None, None)]*32
        elif mq == 4:
            for f in range(8):
                kb, ds = f//4, f % 4
                for qp in range(4):
                    d = Sreg(qp, kb, n)
                    c = vr(CXr(qp, kb), 4) if ds == 0 else vr(d, 4)
                    mf.append((f"{MF} {vr(d,4)}, {ar(KF+4*f,4)}, {ar(AQ+(qp*4+ds)*4,4)}, {c}", kread(f, ku[0]) if qp == 3 else None))
        else:
            for j in range(16):
                sel, f = j//8, j % 8
                kb, ds = f//4, f % 4
                for qb in range(2):
                    qp = 2*sel + qb
                    d = Sreg(qp, kb, n)
                    c = vr(CXr(qp, kb), 4) if ds == 0 else vr(d, 4)
                    rd = None
                    if qb == 1 and not (last and sel == 1): rd = kread(f, ku[sel])
                    mf.append((f"{MF} {vr(d,4)}, {ar(KF+4*f,4)}, {ar(AQ+(qb*4+ds)*4,4)}, {c}", rd))
        look = None if noqk else (Sreg(0, 0, n), Sreg(0, 0, n)+1)
        if nosm:
            gaps = [list(fill[2*g:2*g+2]) if fill else [] for g in range(32)]
        else:
            if ONES:
                gaps = sm_gaps1((2, 3), par, par, look); mf = list(mf) + lmf((0, 1), (0, 1), par, czero)
            else: gaps = sm_gaps((2, 3), par, par, look, [(L+0, LS+0), (L+1, LS+1)])
        extra = {}
        waits = {}
        if not noqk:
            waits[0] = "s_waitcnt lgkmcnt(8)"
            if mq == 2: waits[16] = "s_waitcnt lgkmcnt(4)"; waits[24] = "s_waitcnt lgkmcnt(4)"
        if vm is not None:
            extra[BARPOS] = ([], [f"s_waitcnt vmcnt({vm})"] + ([] if NOBAR else ["s_barrier"]))
        if toggleK is not None:
            gi = 0 if toggleK == 0 else 16
            e = extra.setdefault(gi, ([], [])); e[1].append(f"v_xor_b32 v{VK}, 0x8000, v{VK}")
        place_dmas(extra, dmas)
        emit_half(mf, gaps, extra, waits)
        if not nosm:
            rows = []
            for qq in range(2):
                qp = 2 + qq
                r = dict(S=Sreg(qp, 0, par), P=Preg(qp, par), ls=LS+2+qq)
                if ms == 4:
                    r['qb'] = qp
                    r['subs'] = ([Sreg(qp, 0, n), CXr(qp, 0)] if (mq == 4 and not noqk) else [])
                else:
                    r['qb'] = qq
                    r['subs'] = [CXr(qq, 0), CXr(qp, 0)] + ([] if noqk else [Sreg(qq, 0, n), Sreg(qp, 0, n)])
                    r['Pscale'] = [Preg(qq, par)+k for k in range(4)]
                rows.append(r)
            check_site(rescale(rows) + relook(look))

    def place_dmas(extra, dmas):
        for c, g0 in dmas:
            pre, d, post = dma_group(c)
            if ONES:
                for j in range(4): extra.setdefault(3 + 8*j, ([], []))[0].append(d[j])
                extra.setdefault(30, ([], []))[1].extend(post[:1])
                extra.setdefault(31, ([], []))[1].extend(post[1:] + dma_group(c+1)[0])
                continue
            e = extra.setdefault(g0, ([], [])); e[1].extend(pre)
            for j in range(4):
                e = extra.setdefault(g0+1+4*j if g0+1+4*j < 32 else 31, ([], [])); e[0].append(d[j])
            e = extra.setdefault(min(31, g0+2+12), ([], [])); e[1].extend(post)

    def H2(par, mp, mnext, vu, toggleV=None, dmas=(), nopv=False, nosm=False, czero=False):
        n = 1 - par
        mf = []
        if nopv: mf = [(None, None)]*32
        elif mp == 4:
            for db in range(8):
                for qp in range(4):
                    d = Oreg(db, qp)
                    mf.append((f"{MF} {vr(d,4)}, {ar(VF+4*db,4)}, {vr(Preg(qp,par),4)}, {'0' if czero else vr(d,4)}", vread(db, vu[0]) if qp == 3 else None))
        else:
            for j in range(16):
                sel, db = j//8, j % 8
                for qb in range(2):
                    d = Oreg(db, qb)
                    rd = None
                    if qb == 1 and not (nosm and sel == 1): rd = vread(db, vu[sel])
                    mf.append((f"{MF} {vr(d,4)}, {ar(VF+4*db,4)}, {vr(Preg(2*sel+qb,par),4)}, {vr(d,4)}", rd))
        look = (Sreg(2, 0, n), Sreg(2, 0, n)+1)
        lt = (L+2, L+3) if mp == 4 else (L+0, L+1)
        if nosm:
            gaps = [[] for _ in range(34)]
            if not ONES: gaps[1] = [f"v_add_f32 v{lt[0]}, v{lt[0]}, v{LS+2}", f"v_add_f32 v{lt[1]}, v{lt[1]}, v{LS+3}"]
        elif ONES: gaps = sm_gaps1((0, 1), n, n, look)
        else:
            gaps = sm_gaps((0, 1), n, n, look, [(lt[0], LS+2), (lt[1], LS+3)])
        if ONES: mf = list(mf) + (lmf((2, 3), (2, 3) if mp == 4 else (0, 1), par, czero) if not nopv else [(None, None)]*2)
        extra = {}
        waits = {}
        if not nopv:
            waits[0] = "s_waitcnt lgkmcnt(8)" if not nosm else "s_waitcnt lgkmcnt(0)"
            if mp == 2: waits[16] = "s_waitcnt lgkmcnt(4)"; waits[24] = "s_waitcnt lgkmcnt(4)" if not nosm else "s_waitcnt lgkmcnt(0)"
        if toggleV is not None:
            gi = 0 if toggleV == 0 else 16
            e = extra.setdefault(gi, ([], [])); e[1].append(f"v_xor_b32 v{VV}, 0x8000, v{VV}")
        place_dmas(extra, dmas)
        emit_half(mf, gaps, extra, waits)
        if not nosm and not nopv:
            rows = []
            for qb in range(2):
                r = dict(S=Sreg(qb, 0, n), P=Preg(qb, n), ls=LS+qb, qb=qb, subs=[CXr(qb, 0)])
                if mnext == 2: r['subs'] += [Sreg(qb+2, 0, n), CXr(qb+2, 0)]
                rows.append(r)
            check_site(rescale(rows) + relook(look))

    def hook(cond_reg, val, code):
        ls, lb = U("HOOK"), U("HB")
        A(f"s_cmp_eq_u32 s{cond_reg}, {val}\ns_cbranch_scc1 {ls}")
        A.label(lb)
        stubs.append([ls + ":"] + code + [f"s_branch {lb}"])

    hook(sI, 0, patch(2, 0))
    if ONES:
        A(f"v_mov_b32 v{TMP}, 0x3f803f80")
        for i in range(4): A(f"v_accvgpr_write_b32 a{AO+i}, v{TMP}")
    if EPQ:
        for x in e0 + q_epi(1): A(x)
        e0 = q_epi(2)
    A(f"s_cmp_eq_u32 s{sRDY}, 0\ns_cbranch_scc1 K2_KLATE")
    A.label("K2_KOK")
    stubs.append(["K2_KLATE:", f"s_cmp_eq_u32 s{sW}, 0", "s_cbranch_scc1 K2_KSPIN_F", f"s_mov_b32 s{sT1}, 0", "K2_KL:", f"ds_read_b32 v{TMP+7}, v{TMP+5}", "s_waitcnt lgkmcnt(0)", f"v_cmp_ne_u32 vcc, 1, v{TMP+7}",
                  f"s_add_u32 s{sT1}, s{sT1}, 1", f"s_cmp_ge_u32 s{sT1}, 0x100000", "s_cbranch_scc1 K2_KGO", "s_sleep 1", "s_cbranch_vccnz K2_KL", "s_branch K2_KGO"])
    spin("K2_KSPIN", TMP+7, TMP+4, 0, 16)
    stubs.append(["K2_KSPIN_B:", f"v_mov_b32 v{TMP+6}, 1", f"ds_write_b32 v{TMP+5}, v{TMP+6}", "K2_KGO:"] + kv_init(0) + kv_init(1) + kv_init(2) + kv_init(3) + ["s_branch K2_KOK"])
    for x in e0: A(x)
    A("s_waitcnt vmcnt(0)\ns_barrier")
    if asmlib.STAMP: A("s_memrealtime s[68:69]")
    for f in range(8): A(kread(f, 0))
    for f in range(8): A(vread(f, 2))
    e3 = q_epi(3)
    if EPQ:
        for x in e3[:16]: A(x)
    A("s_waitcnt lgkmcnt(8)")
    for ds in range(4):
        p_, d_, po_ = dma_group(4 + ds if LATEKV else 7)
        ep = q_epi(ds+1) if ds < 3 else []
        if EPQ: ep = [y for k in range(8) for y in (e3[16+16*ds+2*k:16+16*ds+2*k+2] + [None]*6)] if ds < 3 else []
        mfs = []
        for kb in range(2):
            f = kb*4 + ds
            for qp in range(4):
                d = Sreg(qp, kb, 0)
                mfs.append([f"{MF} {vr(d,4)}, {ar(KF+4*f,4)}, {ar(AQ+(qp*4+ds)*4,4)}, {vr(CXr(qp,kb),4) if ds == 0 else vr(d,4)}"] + ([kread(f, 1)] if qp == 3 else []))
        if ds == 0 or LATEKV: mfs[0] = p_ + ["s_nop 0"] + mfs[0]
        if ds == 0 or LATEKV:
            for j in range(4): mfs[1+j] = mfs[1+j] + [d_[j]]
            mfs[6] = mfs[6] + po_
        if ds == 3: A("s_nop 1")
        for k in range(8):
            for x in mfs[k]: A(x)
            for x in ep[8*k:8*k+8]:
                if x: A(x)
    rows = []
    for qp in range(4): rows.append(dict(S=Sreg(qp, 0, 0), subs=[CXr(qp, 0)], P=None))
    for x in rescale(rows, init=True): A(x)
    A(f"v_exp_f32 v{E}, v{Sreg(0,0,0)}\nv_exp_f32 v{E+1}, v{Sreg(0,0,0)+1}")
    H2(1, 4, 4, None, nopv=True)
    stamp(A, 4)
    A(f"s_mov_b32 s{sCNT}, s{sI}")
    if ONES: A(dma_group(8)[0][0])
    A("s_waitcnt lgkmcnt(0)")

    def finalize(qbs, OB, VLANE):
        assert not ONES
        for qb in qbs:
            D, D2 = L+qb, TMP+1
            A(f"v_mov_b32 v{D2}, v{D}\ns_nop 1\nv_permlane16_swap_b32 v{D}, v{D2}\nv_add_f32 v{D}, v{D}, v{D2}")
            A(f"v_mov_b32 v{D2}, v{D}\ns_nop 1\nv_permlane32_swap_b32 v{D}, v{D2}\nv_add_f32 v{D}, v{D}, v{D2}")
            A(f"v_rcp_f32 v{D}, v{D}")
        oq = 0
        for qb in qbs:
            for ds in range(4):
                ob = OB(qb, ds) if callable(OB) else OB + 4*oq
                for h in range(2):
                    b = Oreg(2*ds+h, qb)
                    for i in range(4): A(f"v_mul_f32 v{b+i}, v{b+i}, v{L+qb}")
                for h in range(2):
                    b = Oreg(2*ds+h, qb)
                    A(f"v_cvt_pk_bf16_f32 v{ob+2*h}, v{b}, v{b+1}\nv_cvt_pk_bf16_f32 v{ob+2*h+1}, v{b+2}, v{b+3}")
                A(f"s_add_u32 s{sT0}, s{sOHI if qb < 2 else sOLO}, {ds*4096}")
                A(f"buffer_store_dwordx4 {vr(ob,4)}, v{VLANE}, s[{S_WS}:{S_WS+3}], s{sT0} offen offset:{(qb%2)*1024}{store_flags}")
                oq = (oq+1) % 4

    def period44(r, pre=None, czero=False):
        par = r % 2
        if pre: pre()
        ku = (r+2) % 4; vu = (r+1+2) % 4
        H1(par, 4, 4, [ku], toggleK=0 if ku == 0 else None, vm=16, dmas=[(r, 8)], czero=czero)
        H2(par, 4, 4, [vu], toggleV=0 if vu == 0 else None, czero=czero)

    period44(0, pre=lambda: hook(sI, 0, patch(2, 1)), czero=True)
    A(f"s_cmp_eq_u32 s{sCNT}, 0\ns_cbranch_scc1 K2_SPECIAL_R1\ns_branch K2_LOOPA_R1")
    A(".p2align 6")
    A.label("K2_LOOPA")
    for r in range(4):
        if r == 1: A.label("K2_LOOPA_R1")
        period44(r, pre=(lambda: hook(sCNT, 1, patch(2, 0))) if r == 3 else None)
    A(f"s_sub_u32 s{sCNT}, s{sCNT}, 1\ns_cmp_lg_u32 s{sCNT}, 0\ns_cbranch_scc1 K2_LOOPA")
    A.label("K2_SPECIAL")
    for r in range(3):
        if r == 1: A.label("K2_SPECIAL_R1")
        period44(r, pre=lambda: [A(x) for x in patch(2, r+1)])
    A(f"s_cmp_lt_u32 s{sW}, 2\ns_cselect_b32 s{S_T}, s{P_WO}, s{P_WD}\ns_cselect_b32 s{S_T+1}, s{P_WO+1}, s{P_WD+1}\ns_mov_b32 s{sT0}, {1376*1024}\ns_cselect_b32 s{S_T+2}, {4096*1024}, s{sT0}")
    A(f"s_mul_i32 s{sT0}, s2, {43*128}\ns_lshl_b32 s{sT1}, s2, 14\ns_cselect_b32 s{sT0}, s{sT1}, s{sT0}".replace("s_lshl_b32 s{sT1}, s2, 14".format(sT1=sT1), f"s_mul_i32 s{sT1}, s2, 16384"))
    A(f"s_and_b32 s{sT1}, s{sW}, 1\ns_lshl_b32 s{sT1}, s{sT1}, 13\ns_add_u32 s{sT0}, s{sT0}, s{sT1}\nv_and_b32 v{TMP+7}, 0x3ff, v{VK}\nv_lshlrev_b32 v{TMP+7}, 3, v{TMP+7}")
    A(f"buffer_load_dword v{TMP+7}, v{TMP+7}, s[{S_T}:{S_T+3}], s{sT0} offen")
    if CT:
        A(f"v_and_b32 v{TMP+6}, 0x3ff, v{VK}")
        code_touch(A, "K3_START" if FULL else "k3_kernel", "K2_END" if FULL else "K4_END", sW, TMP+6, TMP+6, 88, lane_shift=4)
    if CTX_TOUCH:
        A(f"v_lshrrev_b32 v{TMP+6}, 8, v{VK}\nv_and_b32 v{TMP+6}, 3, v{TMP+6}\nv_lshlrev_b32 v{TMP+6}, 12, v{TMP+6}\nv_and_b32 v{TMP+5}, 0xf0, v{VK}\nv_lshl_add_u32 v{TMP+6}, v{TMP+5}, 3, v{TMP+6}")
        A(f"buffer_load_dword v{TMP+5}, v{TMP+6}, s[{S_WS}:{S_WS+3}], s{sOHI} offen\nbuffer_load_dword v{TMP+6}, v{TMP+6}, s[{S_WS}:{S_WS+3}], s{sOLO} offen")
    for i in range(16): A(f"v_mov_b32 v{CXr(2,0)+i}, v{CXr(0,0)+i}")
    hook(sI, 7, patch(0, 0) + patch(2, 1))
    A("s_nop 1")
    H1(1, 2, 4, [1, 2], vm=16, dmas=[(3, 8)])
    H2(1, 4, 2, [2])
    if ELO:
        A(f"v_and_b32 v{TMP+2}, 0x3ff, v{VK}")
        finalize((2, 3), lambda qb, ds: Oreg(2*ds, qb), TMP+2)
        A(f"s_cmp_eq_u32 s{sW}, 0\ns_cselect_b32 s87, 2, 0x40000000")
    stamp(A, 5)
    A(f"s_lshl_b32 s{sT0}, s{sI}, 1\ns_sub_u32 s{sCNT}, 14, s{sT0}")
    def period22(r, last_qk=False):
        par = r
        ku = [3, 0] if r == 0 else [1, 2]
        vu = [3, 0] if r == 0 else [1, 2]
        c0 = 2*r
        H1(par, 2, 2, ku, toggleK=1 if r == 0 else None, vm=12, dmas=[(c0, 8)], last=last_qk)
        H2(par, 2, 2, vu, toggleV=1 if r == 0 else None, dmas=[(c0+1, 8)])
    A(f"s_cmp_eq_u32 s{sCNT}, 0\ns_cbranch_scc1 K2_TAIL")
    A(".p2align 6")
    A.label("K2_LOOPB")
    period22(0)
    hook(sCNT, 1, patch(0, 0) + patch(2, 1))
    period22(1)
    A(f"s_sub_u32 s87, s87, 1")
    hook(87, 0, [f"s_mov_b32 s39, {CNT_BASE}", f"s_lshl_b32 s{sT0}, s{sI}, 7", f"v_mov_b32 v{TMP+5}, s{sT0}", f"v_mov_b32 v{TMP+6}, 1", "s_mov_b64 exec, 1", f"buffer_atomic_add v{TMP+6}, v{TMP+5}, s[{S_WS}:{S_WS+3}], s39 offen sc1", "s_mov_b64 exec, -1"])
    A(f"s_sub_u32 s{sCNT}, s{sCNT}, 1\ns_cmp_lg_u32 s{sCNT}, 0\ns_cbranch_scc1 K2_LOOPB")
    A.label("K2_TAIL")
    for x in patch(0, 2) + patch(2, 3): A(x)
    H1(0, 2, 2, [3, 0], toggleK=None, vm=12, last=True)
    H2(0, 2, 2, [3, 0], toggleV=1)
    H1(1, 2, 2, None, noqk=True, vm=0)
    A("s_sub_u32 s87, s87, 1\ns_cmp_ge_u32 s87, 2\ns_cbranch_scc1 K2_NOLO")
    for x in [f"s_mov_b32 s39, {CNT_BASE}", f"s_lshl_b32 s{sT0}, s{sI}, 7", f"v_mov_b32 v{TMP+5}, s{sT0}", f"v_mov_b32 v{TMP+6}, 1", "s_mov_b64 exec, 1", f"buffer_atomic_add v{TMP+6}, v{TMP+5}, s[{S_WS}:{S_WS+3}], s39 offen sc1", "s_mov_b64 exec, -1"]: A(x)
    A.label("K2_NOLO")
    H2(1, 2, 2, [1, 2], nosm=True)
    stamp(A, 6)
    A(f"v_and_b32 v{VK}, 0x3ff, v{VK}")
    finalize((0, 1), S01, VK)
    A.label("K3_START")
    st = (lambda r: A(f"s_memrealtime s[{r}:{r+1}]")) if asmlib.STAMP else (lambda r: None)
    RING, AD, NJ = 16, 8, 22
    LW, LA = 11, AD - 1
    ACC3, WF3, AR3, TRA, VD3, T3, VX = [0, 64], 128, 160, 224, 240, 245, 253
    LN3 = T3
    S_W, S_X, S_O = 8, 40, 44
    sSP, sTM, sTN, sWO, sAO, sM3, sOB3, sT2, sPAD, sRD2, sTL = 35, 21, 22, 23, 24, 25, 26, 27, 32, 33, 34
    A(f"s_load_dwordx2 s[28:29], s[0:1], 0\ns_load_dwordx2 s[30:31], s[0:1], 80")
    A(f"s_and_b32 s{sSP}, s2, 7\ns_lshr_b32 s{sT1}, s2, 3\ns_and_b32 s{sTM}, s{sT1}, 7\ns_lshr_b32 s{sTN}, s2, 6")
    A(f"s_mul_i32 s{sT0}, s{sSP}, 21\ns_min_u32 s{sT1}, s{sSP}, 2\ns_add_u32 s{sT0}, s{sT0}, s{sT1}")
    A(f"s_cmp_eq_u32 s{sSP}, 7\ns_cselect_b32 s{sT0}, 150, s{sT0}")
    A(f"s_cmp_lt_u32 s{sSP}, 2\ns_cselect_b32 s{sPAD}, 0, 4096\ns_cmp_eq_u32 s{sSP}, 6\ns_cselect_b32 s{sPAD}, 0, s{sPAD}")
    A(f"s_sub_u32 s{sT1}, s{sT0}, 128\ns_cmp_ge_u32 s{sSP}, 6\ns_cselect_b32 s{sT1}, s{sT1}, s{sT0}\ns_cselect_b32 s{S_W}, s{P_WD}, s{P_WO}\ns_cselect_b32 s{S_W+1}, s{P_WD+1}, s{P_WO+1}\ns_cselect_b32 s{sRD2}, 1, 0\ns_mov_b32 s{S_W+3}, 0x00020000")
    A(f"s_add_u32 s{sT2}, s{sT1}, 22\ns_lshl_b32 s{sT2}, s{sT2}, 15\ns_lshl_b32 s{S_W+2}, s{sPAD}, 3\ns_sub_u32 s{S_W+2}, s{sT2}, s{S_W+2}")
    A(f"s_lshl_b32 s{sT2}, s{sTM}, 1\ns_lshr_b32 s{sAO}, s{sW}, 1\ns_add_u32 s{sT2}, s{sT2}, s{sAO}\ns_mul_i32 s{sAO}, s{sT2}, {A3_TB64}\ns_lshl_b32 s{sT0}, s{sT0}, 12\ns_add_u32 s{sAO}, s{sAO}, s{sT0}")
    A(f"s_and_b32 s{sT2}, s{sW}, 1\ns_lshl_b32 s{sT2}, s{sT2}, 11\ns_add_u32 s{sAO}, s{sAO}, s{sT2}\ns_add_u32 s{sAO}, s{sAO}, {A3_BASE}")
    A(f"s_lshl_b32 s{sWO}, s{sT1}, 15\ns_lshl_b32 s{sT2}, s{sW}, 13\ns_add_u32 s{sWO}, s{sWO}, s{sT2}\ns_lshl_b32 s{sT2}, s{sTN}, 8\ns_add_u32 s{sWO}, s{sWO}, s{sT2}\ns_lshl_b32 s{sM3}, s{sW}, 11")
    A(f"v_lshrrev_b32 v{LN3}, 4, v{VK}")
    A(f"v_lshrrev_b32 v{T3+2}, 4, v{LN3}\nv_and_b32 v{T3+3}, 15, v{LN3}\nv_lshlrev_b32 v{T3+4}, 1, v{T3+2}\nv_xor_b32 v{T3+3}, v{T3+3}, v{T3+4}\nv_lshlrev_b32 v{T3+2}, 10, v{T3+2}\nv_lshl_add_u32 v{VD3}, v{T3+3}, 4, v{T3+2}")
    A(f"v_xor_b32 v{T3+2}, 128, v{VD3}\nv_add_u32 v{VD3+1}, 3072, v{T3+2}")
    A(f"s_mov_b32 s39, {CNT_BASE}\ns_lshl_b32 s{sT0}, s{sTM}, 7\nv_mov_b32 v{T3+5}, s{sT0}\nbuffer_load_dword v{T3+1}, v{T3+5}, s[{S_WS}:{S_WS+3}], s39 offen sc1\ns_barrier")
    seq3 = [('P', 0)]
    def wl(s_):
        seq3.extend([('W', s_)]*2)
        return [[f"s_add_u32 m0, s{sM3}, {(s_ % RING)*8192}", f"s_add_u32 s{sT1}, s{sWO}, {(s_ % NJ)*32768}"],
                [f"buffer_load_dwordx4 v{VD3}, s[{S_W}:{S_W+3}], s{sT1} offen lds"], [f"buffer_load_dwordx4 v{VD3+1}, s[{S_W}:{S_W+3}], s{sT1} offen offset:1024 lds"]]
    def al(s_, track=True):
        if track: seq3.extend([('A', s_)]*2)
        off = (s_ % NJ)*4096 + (s_ // NJ)*16*A3_TB64
        pre = [f"s_add_u32 s{sT0}, s{sAO}, {off}"] + ([f"s_sub_u32 s{sT0}, s{sT0}, s{sPAD}"] if s_ % NJ == NJ-1 else [])
        return [pre] + [[f"buffer_load_dwordx4 {vr(AR3+(s_%AD)*8+4*t,4)}, v{VK}, s[{S_WS}:{S_WS+3}], s{sT0} offen offset:{t*1024} sc1"] for t in range(2)]
    def vm3(tag): return min(63, len(seq3) - 1 - max(i for i, e in enumerate(seq3) if e == tag))
    def emit3(its):
        for it in its:
            for x in it: A(x)
    flat = lambda its: [x for it in its for x in it]
    for s_ in range(4): emit3(wl(s_))
    A(f"v_lshrrev_b32 v{T3+2}, 2, v{LN3}\nv_and_b32 v{T3+3}, 7, v{T3+2}\nv_lshlrev_b32 v{T3+2}, 8, v{T3+2}\nv_and_b32 v{T3+4}, 3, v{LN3}\nv_lshl_add_u32 v{T3+2}, v{T3+4}, 3, v{T3+2}")
    for nb in range(8): A(f"v_xor_b32 v{T3+4}, {nb}, v{T3+3}\nv_lshl_add_u32 v{TRA+nb}, v{T3+4}, 5, v{T3+2}\nv_add_u32 v{TRA+8+nb}, 0x10000, v{TRA+nb}")
    A(f"s_waitcnt vmcnt({vm3(('P', 0))})\nv_cmp_ne_u32 vcc, 32, v{T3+1}\ns_cmp_eq_u32 s{sRD2}, 1\ns_cbranch_scc1 K3_LSPIN_B\ns_cbranch_vccnz K3_LSPIN")
    A.label("K3_LSPIN_B")
    spin("K3_LSPIN", T3+1, T3+5, 0, 32, srd=f"s[{S_WS}:{S_WS+3}]", so="s39", slp=SLP2)
    for s_ in range(LA): emit3(al(s_))
    A(f"s_lshl_b32 s{sT0}, s{sI}, 7\ns_sub_u32 s{sT0}, {15*128}, s{sT0}\nv_mov_b32 v{T3+2}, s{sT0}\nv_mov_b32 v{T3+4}, 1\nv_add_u32 v{T3+5}, 1024, v{T3+5}")
    A(f"s_waitcnt vmcnt({vm3(('W', 0))}) lgkmcnt(0)\ns_barrier")
    A(f"s_cmp_lg_u32 s{sW}, 0\ns_cbranch_scc1 K3_NOSIG\ns_mov_b64 exec, 1\nbuffer_atomic_add v{T3+4}, v{T3+2}, s[{S_WS}:{S_WS+3}], s39 offen sc1\ns_mov_b64 exec, -1")
    A.label("K3_NOSIG")
    st(96)
    def tr3(nb, s_):
        off = (s_ % RING)*8192; hi = off // 65536; off %= 65536
        return [f"ds_read_b64_tr_b16 {vr(WF3+4*nb,2)}, v{TRA+8*hi+nb} offset:{off}", f"ds_read_b64_tr_b16 {vr(WF3+4*nb+2,2)}, v{TRA+8*hi+nb} offset:{off+4096}"]
    for nb in range(8):
        for x in tr3(nb, 0): A(x)
    for s_ in range(4, LW): emit3(wl(s_))
    A(f"s_mov_b32 s{S_X}, s28\ns_mov_b32 s{S_X+1}, s29\ns_mov_b32 s{S_X+2}, 0x200000\ns_mov_b32 s{S_X+3}, 0x00020000\ns_mov_b32 s{S_O}, s30\ns_mov_b32 s{S_O+1}, s31\ns_mov_b32 s{S_O+2}, 0x200000\ns_mov_b32 s{S_O+3}, 0x00020000")
    A(f"s_lshl_b32 s{sT0}, s{sTM}, 17\ns_lshl_b32 s{sT1}, s{sSP}, 14\ns_add_u32 s{sT0}, s{sT0}, s{sT1}\ns_lshl_b32 s{sT1}, s{sTN}, 8\ns_add_u32 s{sT0}, s{sT0}, s{sT1}\ns_lshl_b32 s{sT1}, s{sW}, 6\ns_add_u32 s{sT0}, s{sT0}, s{sT1}")
    A(f"v_and_b32 v{T3+2}, 15, v{LN3}\nv_lshrrev_b32 v{T3+3}, 4, v{LN3}\nv_lshlrev_b32 v{T3+2}, 10, v{T3+2}\nv_lshl_add_u32 v{T3+2}, v{T3+3}, 3, v{T3+2}\nv_add_u32 v{VX}, s{sT0}, v{T3+2}\ns_mov_b32 s{sT2}, 0x100000")
    for jb in range(2):
        for h in range(2):
            A(f"buffer_load_dwordx2 {ar(4*jb+2*h,2)}, v{VX}, s[{S_X}:{S_X+3}], {'s%d' % sT2 if jb else '0'} offen offset:{h*32}"); seq3.append(('X', 0))
    A(f"s_lshl_b32 s{sTL}, s{sTM}, 2\ns_add_u32 s{sTL}, s{sTL}, s{sTN}\ns_lshl_b32 s{sT0}, s{sTL}, 7\ns_add_u32 s{sT0}, s{sT0}, 2048\nv_mov_b32 v{T3+6}, s{sT0}\nv_add_u32 v{T3+7}, 4096, v{T3+6}")
    A(f"s_lshl_b32 s{sTL}, s{sTL}, 18\ns_add_u32 s{sTL}, s{sTL}, {P2_BASE}\ns_lshl_b32 s{sT0}, s{sSP}, 15\ns_lshl_b32 s{sT1}, s{sW}, 13\ns_add_u32 s{sOB3}, s{sTL}, s{sT0}\ns_add_u32 s{sOB3}, s{sOB3}, s{sT1}")
    def epi3(jb):
        o = []
        for np_ in range(4):
            for t in range(2):
                b0 = ACC3[jb] + ((2*np_)*2 + t)*4; b1 = ACC3[jb] + ((2*np_+1)*2 + t)*4
                o += [f"v_cvt_pk_bf16_f32 v{b0}, v{b0}, v{b0+1}", f"v_cvt_pk_bf16_f32 v{b0+1}, v{b0+2}, v{b0+3}", f"v_cvt_pk_bf16_f32 v{b0+2}, v{b1}, v{b1+1}", f"v_cvt_pk_bf16_f32 v{b0+3}, v{b1+2}, v{b1+3}"]
                if t == 0 and np_ % 2 == 0: o.append(f"s_add_u32 s36, s{sOB3}, {jb*(8 << 20) + np_*2048}")
                o.append(f"buffer_store_dwordx4 {vr(b0,4)}, v{VK}, s[{S_WS}:{S_WS+3}], s36 offen offset:{(np_%2)*2048 + t*1024} sc1")
        return o
    eA = epi3(0)
    NS = 2*NJ; EB = NJ - 4
    lateB = [n for n in range(NJ, NJ + 4)]
    for s_ in range(NS):
        jb = s_ // NJ
        extra = {}
        if s_ == NJ:
            A(f"s_cmp_eq_u32 s{sRD2}, 0\ns_cbranch_scc1 K3_HSPIN_F")
            A.label("K3_HOK")
            spin("K3_HSPIN", T3+1, T3+5, 0, 32, srd=f"s[{S_WS}:{S_WS+3}]", so="s39", slp=SLP2)
            stubs.append(["K3_HSPIN_B:"] + [x for n in lateB for x in flat(al(n, False))] + ["s_branch K3_HOK"])
            for n in lateB: seq3.extend([('A', n)]*2)
            st(98)
        A(f"s_waitcnt vmcnt({vm3(('A', s_))}) lgkmcnt(8)")
        if s_ % 2 == 0:
            extra[0] = [f"s_waitcnt vmcnt({min(vm3(('W', min(s_+2, NS-1))), vm3(('SA', 0)) if ('SA', 0) in seq3 and s_ == NJ+8 else 63)})", "s_barrier"]
            if s_ == NJ + 8:
                extra[0] += [f"s_cmp_lg_u32 s{sW}, 0", "s_cbranch_scc1 K3_NOSA", "s_mov_b64 exec, 1", f"buffer_atomic_add v{T3+4}, v{T3+6}, s[{S_WS}:{S_WS+3}], s39 offen sc1", "s_mov_b64 exec, -1", "K3_NOSA:"]
        extra[6] = ["s_waitcnt lgkmcnt(6)"]
        its = []
        if s_ + LW < NS: its += wl(s_ + LW)
        ta = s_ + LA
        if ta < NJ: its += al(ta)
        elif s_ >= NJ:
            for n in ({NJ: [NJ+4, NJ+5], NJ+1: [NJ+6, NJ+7], NJ+2: [NJ+8, NJ+9]}.get(s_, [ta] if NJ+9 < ta < NS else [])): its += al(n)
        if s_ == EB - 3: its.append([f"buffer_load_dword v{T3+1}, v{T3+5}, s[{S_WS}:{S_WS+3}], s39 offen sc1"]); seq3.append(('P', 1))
        if s_ == EB - 1:
            its.append([f"s_waitcnt vmcnt({vm3(('P', 1))})", f"v_cmp_ne_u32 vcc, 32, v{T3+1}"])
            its.append(["s_cmp_eq_u64 vcc, 0", f"s_cselect_b32 s{sRD2}, 1, s{sRD2}"])
        if EB <= s_ < NJ:
            lab = U("NB")
            its.append([f"s_cmp_eq_u32 s{sRD2}, 0", f"s_cbranch_scc1 {lab}"] + flat(al(NJ + s_ - EB, False)) + [lab + ":"])
        g_ = 2
        for it in its:
            extra.setdefault(g_, []).extend(it); g_ = min(14, g_ + 2) if g_ != 4 else 8
        if NJ + 1 <= s_ and eA:
            for g2 in (2, 4, 8, 10, 12, 14):
                for _ in range(2):
                    if eA:
                        x = eA.pop(0); extra.setdefault(g2, []).append(x)
                        if x.startswith('buffer'): seq3.append(('SA', 0))
        for nb in range(8):
            for t in range(2):
                g = nb*2 + t; d_ = ACC3[jb] + g*4
                A(f"{MF} {vr(d_,4)}, {vr(WF3+4*nb,4)}, {vr(AR3+(s_%AD)*8+4*t,4)}, {'0' if s_ % NJ == 0 else vr(d_,4)}")
                if t == 1 and s_ + 1 < NS:
                    for x in tr3(nb, s_+1): A(x)
                for x in extra.get(g, []): A(x)
    assert not eA
    A(f"buffer_load_dword v{T3+1}, v{T3+6}, s[{S_WS}:{S_WS+3}], s39 offen sc1\ns_nop 4")
    for x in epi3(1): A(x)
    PK, R = 128, 0
    def unpack(dst, src, n=4, s='v'):
        for i in range(n): A(f"v_lshlrev_b32 v{dst+2*i}, 16, v{src+i}\nv_and_b32 v{dst+2*i+1}, 0xffff0000, v{src+i}")
    def comb_loads(jb):
        A(f"s_lshr_b32 s{sT0}, s{sSP}, 1\ns_lshl_b32 s{sT0}, s{sT0}, 13\ns_and_b32 s{sT1}, s{sSP}, 1\ns_lshl_b32 s{sT1}, s{sT1}, 10\ns_add_u32 s{sT0}, s{sT0}, s{sT1}\ns_lshl_b32 s{sT1}, s{sW}, 11\ns_add_u32 s{sT0}, s{sT0}, s{sT1}\ns_add_u32 s{sT0}, s{sT0}, s{sTL}")
        for sp in (6, 7, 0, 1, 2, 3, 4, 5):
            A(f"s_add_u32 s{sT1}, s{sT0}, {jb*(8 << 20) + sp*32768}\nbuffer_load_dwordx4 {vr(PK+4*sp,4)}, v{VK}, s[{S_WS}:{S_WS+3}], s{sT1} offen sc1")
    def comb(jb):
        D, G_, XU, SS = 160, 176, 184, 192
        for i in range(4): A(f"v_accvgpr_read_b32 v{SS+i}, a{4*jb+i}")
        unpack(XU, SS)
        A("s_waitcnt vmcnt(6)")
        unpack(D, PK+24); unpack(D+8, PK+28)
        for i in range(8): A(f"v_add_f32 v{D+i}, v{D+i}, v{D+8+i}")
        for i in range(8): A(f"v_mul_f32 v{G_+i}, {hex(f32bits(-math.log2(math.e)))}, v{D+i}")
        for i in range(8): A(f"v_exp_f32 v{G_+i}, v{G_+i}")
        for i in range(8): A(f"v_add_f32 v{G_+i}, 1.0, v{G_+i}")
        for i in range(8): A(f"v_rcp_f32 v{G_+i}, v{G_+i}")
        for i in range(8): A(f"v_mul_f32 v{G_+i}, v{G_+i}, v{D+i}")
        A("s_waitcnt vmcnt(0)")
        unpack(SS, PK)
        for sp in range(1, 6):
            unpack(D, PK+4*sp)
            for i in range(8): A(f"v_add_f32 v{SS+i}, v{SS+i}, v{D+i}")
        for i in range(8): A(f"v_fmac_f32 v{XU+i}, v{SS+i}, v{G_+i}")
        for i in range(4): A(f"v_cvt_pk_bf16_f32 v{D+i}, v{XU+2*i}, v{XU+2*i+1}")
        for h in range(2): A(f"buffer_store_dwordx2 {vr(D+2*h,2)}, v{VX}, s[{S_O}:{S_O+3}], {'s%d' % sT2 if jb else '0'} offen offset:{h*32}")
    A(f"s_waitcnt vmcnt(8)\nv_cmp_ne_u32 vcc, 8, v{T3+1}\ns_cbranch_vccnz K4_LSPIN")
    A.label("K4_LSPIN_B")
    spin("K4_LSPIN", T3+1, T3+6, 0, 8, srd=f"s[{S_WS}:{S_WS+3}]", so="s39", slp=SLP2)
    comb_loads(0)
    A("s_waitcnt vmcnt(8)\ns_barrier")
    A(f"s_cmp_lg_u32 s{sW}, 0\ns_cbranch_scc1 K4_NOSIG\ns_mov_b64 exec, 1\nbuffer_atomic_add v{T3+4}, v{T3+7}, s[{S_WS}:{S_WS+3}], s39 offen sc1\ns_mov_b64 exec, -1")
    A.label("K4_NOSIG")
    comb(0)
    A(f"s_cmp_lg_u32 s{sW}, 0\ns_cbranch_scc0 K4_TSPIN_F")
    A.label("K4_TSPIN_B")
    spin("K4_TSPIN", T3+1, T3+7, 0, 8, srd=f"s[{S_WS}:{S_WS+3}]", so="s39", slp=SLP2)
    A("s_barrier")
    st(100)
    comb_loads(1)
    comb(1)
    if asmlib.STAMP:
        A(f"s_mov_b32 s{P_WS}, s{S_WS}\ns_mov_b32 s{P_WS+1}, s{S_WS+1}\ns_waitcnt lgkmcnt(0)\ns_mov_b64 s[68:69], s[72:73]\ns_mov_b64 s[70:71], s[76:77]\ns_mov_b64 s[72:73], s[96:97]\ns_mov_b64 s[74:75], s[98:99]\ns_mov_b64 s[76:77], s[100:101]")
    if asmlib.STAMP:
        A("s_waitcnt vmcnt(0)")
        stamp_flush(A, 0, 8, P_WS, sW)
    A.label("K2_END")
    A("s_endpgm")
    for st in stubs:
        for x in st: A(x)
    return dict(name="k12_kernel", vgpr=512, accum=256, sgpr=102, grid=256, block=256, lds=163840)
```

```python
from asmlib import *
import asmlib, math, os, struct
KV_BASE = 1 << 20
A3_BASE = 33 << 20
A3_TB64 = 171 * 4096
XC_BASE = 56 << 20
SCQ_BASE = 58 << 20
CNT_BASE = 59 << 20
P2_BASE = 60 << 20
WS_USED = 77 << 20
MF = "v_mfma_f32_16x16x32_bf16"
CSCALE = math.log2(math.e) / math.sqrt(128.0)
QD = os.environ.get('QD') == '1'
EPF = float(os.environ.get('EPF', '0.8'))
def f32bits(x): return struct.unpack('<I', struct.pack('<f', x))[0]

class Em:
    def __init__(self, A, seq=None): self.A = A; self.seq = list(seq or [])
    def cnt(self, tag): return len(self.seq) - 1 - max(i for i, e in enumerate(self.seq) if e == tag)
    def __call__(self, x):
        for l in x.split('\n'):
            if l.startswith('@VM:'):
                self.A(f"s_waitcnt vmcnt({min(63, min(self.cnt(t) for t in l[4:].split(',')))})")
            else:
                tag = None
                if ' ;T=' in l: l, tag = l.split(' ;T=')
                if l.startswith('buffer') or l.startswith('global'):
                    if tag != '-': self.seq.append(tag or 'x')
                self.A(l)

def gen_front(A, k2):
    ACC = [8, 72]; WF = 136; TRA = 168; TRG = 184; VW = 192; VWG = 194; VL = 195; VO = 196; OUT = 200; SCG = 208; SCQ = 212; QT = 216; T = 216
    VOH, SCH, XO, XP, DUM = 248+1, 251, 253, 254, 255
    S_WS, S_ACT, S_W, S_G, S_U, S_DBG = 12, 48, 52, 56, 60, 80
    S_Q = S_ACT
    sW, sH, sI, sT0, sT1 = 16, 17, 18, 19, 20
    sTB, sCG, sROT, sOB, sOBASE, sM0, sSTG, sOG = 21, 22, 23, 34, 35, 36, 39, 37
    sRQ8, sRQG, sAQ, sXH, sXL = 88, 92, 96, 100, 101
    P_X, P_CKV, P_WQ, P_WUK, P_WUV, P_DBG = 26, 28, 30, 32, 24, 84
    A(".globl k12_kernel\n.p2align 8\n.type k12_kernel,@function")
    A.label("k12_kernel")
    A("s_cmp_ge_u32 s2, 256\ns_cbranch_scc1 K2_END")
    if os.environ.get('PERM'): A(f"s_mul_i32 s2, s2, {os.environ['PERM']}\ns_add_u32 s2, s2, 11\ns_lshr_b32 s3, s2, 3\ns_and_b32 s3, s3, 7\ns_xor_b32 s2, s2, s3\ns_and_b32 s2, s2, 255")
    stamp(A, 0)
    A(f"s_load_dwordx2 s[{P_X}:{P_X+1}], s[0:1], 0\ns_load_dwordx2 s[{P_CKV}:{P_CKV+1}], s[0:1], 8\ns_load_dwordx2 s[{P_WQ}:{P_WQ+1}], s[0:1], 16\ns_load_dwordx2 s[{P_WUK}:{P_WUK+1}], s[0:1], 24")
    A(f"s_load_dwordx2 s[{P_WUV}:{P_WUV+1}], s[0:1], 32\ns_load_dwordx2 s[{S_G}:{S_G+1}], s[0:1], 56\ns_load_dwordx2 s[{S_U}:{S_U+1}], s[0:1], 64\ns_load_dwordx2 s[{S_WS}:{S_WS+1}], s[0:1], 96\ns_load_dwordx2 s[{S_DBG}:{S_DBG+1}], s[0:1], 88")
    A(f"s_load_dwordx4 s[40:43], s[0:1], 96\ns_load_dwordx2 s[42:43], s[0:1], 40\ns_load_dwordx2 s[44:45], s[0:1], 72".replace("s_load_dwordx4 s[40:43], s[0:1], 96", "s_load_dwordx2 s[40:41], s[0:1], 96"))
    A(f"v_lshrrev_b32 v1, 6, v0\nv_and_b32 v0, 63, v0\ns_nop 0\nv_readfirstlane_b32 s{sW}, v1")
    A(f"s_and_b32 s{sT0}, s2, 1\ns_lshl_b32 s{sT0}, s{sT0}, 2\ns_lshr_b32 s{sT1}, s2, 3\ns_and_b32 s{sTB}, s{sT1}, 3\ns_lshr_b32 s{sI}, s{sT1}, 2\ns_and_b32 s{sH}, s2, 7\ns_lshl_b32 s{sH}, s{sH}, 2\ns_add_u32 s{sH}, s{sH}, s{sTB}\ns_add_u32 s{sTB}, s{sTB}, s{sT0}")
    A(f"s_and_b32 s{sT0}, s2, 6\ns_lshl_b32 s{sCG}, s{sT0}, 2\ns_add_u32 s{sCG}, s{sCG}, s{sI}")
    for r in (S_WS, S_ACT, S_W, S_G, S_U, S_DBG, 4): A(f"s_mov_b32 s{r+3}, 0x00020000")
    A(f"s_mov_b32 s{S_WS+2}, {WS_USED}\ns_mov_b32 s{S_ACT+2}, 0x200000\ns_mov_b32 s{S_DBG+2}, 256\ns_mov_b32 s6, 0x200000")
    A(f"s_lshl_b32 s{sSTG}, s{sW}, 13\ns_lshl_b32 s{sM0}, s{sW}, 12\ns_add_u32 s{sROT}, s{sCG}, s{sTB}\ns_and_b32 s{sROT}, s{sROT}, 3")
    A(f"s_lshl_b32 s{sT1}, s{sTB}, 18\ns_lshl_b32 s{sT0}, s{sW}, 16\ns_add_u32 s{sOB}, s{sT1}, s{sT0}")
    for q in range(4):
        A(f"s_add_u32 s{sT0}, s{sROT}, {q}\ns_and_b32 s{sT0}, s{sT0}, 3\ns_lshl_b32 s{sT1}, s{sT0}, 8\ns_add_u32 s{sAQ+q}, s{sOB}, s{sT1}\ns_lshl_b32 s{sT0}, s{sT0}, 20\ns_lshl_b32 s{sT1}, s{sW}, 18\ns_add_u32 s{sRQ8+q}, s{sT0}, s{sT1}")
    A(f"v_lshlrev_b32 v{VL}, 4, v0\nv_mov_b32 v248, v0\nv_lshrrev_b32 v1, 4, v0\nv_bfe_u32 v2, v0, 2, 2\nv_and_b32 v3, 3, v0")
    A(f"s_lshl_b32 s{sT0}, s2, 13\ns_lshl_b32 s{sT1}, s{sW}, 11\ns_add_u32 s{sT0}, s{sT0}, s{sT1}\nv_lshrrev_b32 v4, 5, v0\nv_lshlrev_b32 v4, 10, v4\nv_and_b32 v5, 31, v0\nv_lshl_add_u32 v4, v5, 4, v4")
    A(f"v_lshrrev_b32 v5, 3, v0\nv_and_b32 v6, 7, v0\nv_xor_b32 v7, v6, v1\nv_lshlrev_b32 v{T}, 10, v5\nv_lshl_add_u32 v{T}, v7, 4, v{T}\nv_xor_b32 v{T+1}, 64, v{T}")
    A(f"v_bfe_u32 v7, v0, 4, 1\nv_lshlrev_b32 v7, 1, v7\nv_xor_b32 v6, v6, v7\nv_lshlrev_b32 v5, 13, v5\nv_lshl_add_u32 v{VW}, v6, 4, v5\nv_xor_b32 v{VW+1}, 64, v{VW}")
    code_touch(A, "k12_kernel", "K1_FIN", sW, 0, DUM, 84)
    A("s_waitcnt lgkmcnt(0)")
    A(f"s_mov_b32 s4, s{P_X}\ns_mov_b32 s5, s{P_X+1}\ns_mov_b32 s{S_ACT}, s{P_CKV}\ns_mov_b32 s{S_ACT+1}, s{P_CKV+1}")
    LX = ACC[1]
    A(f"buffer_load_dwordx4 {vr(LX,4)}, v4, s[4:7], s{sT0} offen\nbuffer_load_dwordx4 {vr(LX+4,4)}, v4, s[4:7], s{sT0} offen offset:512")
    A(f"s_cmp_ge_u32 s{sCG}, 16\ns_cselect_b32 s{S_W}, s{P_WUV}, s{P_WUK}\ns_cselect_b32 s{S_W+1}, s{P_WUV+1}, s{P_WUK+1}\ns_and_b32 s{sT0}, s{sCG}, 15\ns_lshl_b32 s{sT0}, s{sT0}, 9\ns_add_u32 s{S_W}, s{S_W}, s{sT0}\ns_addc_u32 s{S_W+1}, s{S_W+1}, 0\ns_sub_u32 s{S_W+2}, {512*8192}, s{sT0}")

    SUS = ['T', 'T', 'T', 'T', 'G', 'H', 'Q', 'Q']
    def dma_slot(n):
        su, q = n // 4, n % 4
        kind = SUS[su]; o = []
        for j in range(4):
            if kind in 'GH': srd = S_G if j < 2 else S_U; so = f"s_add_u32 s{sT0}, s{sRQG+q}, {(j%2)*16*2752}"; v = VWG
            else:
                srd = S_W if kind == 'T' else S_Q; so = f"s_add_u32 s{sT0}, s{sRQ8+q}, {(su if kind == 'T' else su-6)*128 + j*65536}"; v = VW + (j & 1)
            o.append([f"s_add_u32 m0, s{sM0}, {(n % 8)*16384 + j*1024}", so, f"buffer_load_dwordx4 v{v}, s[{srd}:{srd+3}], s{sT0} offen lds ;T=W{n}"])
        return o
    def trreads(fi, su, nb, q, ks):
        base = (TRG if SUS[su] in 'GH' else TRA + 8*(su % 2)) + 2*nb
        off = q*16384 + ks*4096
        return [f"ds_read_b64_tr_b16 {vr(WF+4*fi,2)}, v{base} offset:{off}", f"ds_read_b64_tr_b16 {vr(WF+4*fi+2,2)}, v{base+1} offset:{off}"]
    def c_round(r):
        return [[f"s_add_u32 m0, s{sSTG}, {98304 + (r%2)*32768 + j*1024}", f"s_add_u32 s{sT0}, s{sAQ+r//2}, {j*8192 + (r%2)*128}",
                 f"buffer_load_dwordx4 v{T+(j&1)}, s[{S_ACT}:{S_ACT+3}], s{sT0} offen lds ;T=R{r}"] for j in range(8)]
    def c_reads(r): return [f"ds_read_b128 {ar((t*16+2*r+k2)*4, 4)}, v{T+2+k2} offset:{(r%2)*32768 + t*2048}" for t in range(4) for k2 in range(2)]
    def store(oq, vo, off, so, tag): return f"buffer_store_dwordx4 {vr(OUT+4*oq,4)}, v{vo}, s[{S_WS}:{S_WS+3}], s{so} offen offset:{off} sc1 ;T={tag}"
    def cv(d, s): return [f"v_cvt_pk_bf16_f32 v{d}, v{s}, v{s+1}", f"v_cvt_pk_bf16_f32 v{d+1}, v{s+2}, v{s+3}"]
    def epi_T(ty, su):
        acc = ACC[su % 2]; blk = lambda nb, t: acc + (nb*4+t)*4
        ops = [f"s_add_u32 s{sOB}, s{sOBASE}, {(su//2)*(1 << 20) + (su%2)*(2048 if ty == 'K' else 4096)}"]; oq = 0
        if ty == 'K':
            for pr in range(2):
                for t in range(4):
                    ops += cv(OUT+4*oq, blk(2*pr, t)) + cv(OUT+4*oq+2, blk(2*pr+1, t)) + [store(oq, VO+t, pr*1024, sOB, f"S{su}")]; oq ^= 1
        else:
            for nb in range(4):
                for v in range(2):
                    ops += cv(OUT+4*oq, blk(nb, 2*v)) + cv(OUT+4*oq+2, blk(nb, 2*v+1)) + [store(oq, VO+v, nb*1024, sOB, f"S{su}")]; oq ^= 1
        return ops
    def epi_G(acc, nt, vo, sc, so, tag):
        blk = lambda nb, t: acc + (nb*nt+t)*4
        ops = []; oq = 0
        for t in range(nt):
            for h in range(2):
                g = blk(h, t); u = blk(h+2, t)
                ops += [f"v_max_f32 v{g+i}, 0, v{g+i}" for i in range(4)] + [f"v_mul_f32 v{u+i}, v{u+i}, v{sc+t}" for i in range(4)] + [f"v_mul_f32 v{g+i}, v{g+i}, v{u+i}" for i in range(4)]
                ops += cv(OUT+4*oq+2*h, g)
            ops.append(store(oq, vo+t, 0, so, tag)); oq ^= 1
        return ops
    def epi_Q(acc, pr, dst, SCQ=SCQ):
        o = []
        for t in range(4):
            for h in range(2):
                b = acc + ((2*pr+h)*4 + t)*4
                o += [f"v_mul_f32 v{b+i}, v{b+i}, v{SCQ+t}" for i in range(4)] + cv(dst(t)+2*h, b)
        return o
    def x_all():
        o = []
        for q in range(4):
            sa, sb = 4 + 2*(q % 2), 5 + 2*(q % 2)
            for n in range(16):
                t, k = n // 4, n % 4
                it = [f"s_add_u32 s{sa}, s{sXH}, s{sAQ+q}", f"s_add_u32 s{sb}, s{sXL}, s{sAQ+q}"] if n == 0 else []
                o.append(it + [f"buffer_load_dwordx4 {ar((t*16+4*q+k)*4,4)}, v{VL if t % 2 == 0 else DUM}, s[{S_WS}:{S_WS+3}], s{sa if t < 2 else sb} offen offset:{k*1024} sc1 ;T=X{q}"])
        return o
    XA = x_all(); XR_ = int(os.environ.get('XRATE', '12'))
    xs = lambda p: XA[min(64, XR_*p):min(64, XR_*(p+1))]
    def sig(vone, voff, off, lab): return [f"s_cmp_lg_u32 s{sW}, 0", f"s_cbranch_scc1 {lab}", "s_mov_b64 exec, 1", f"buffer_atomic_add v{vone}, v{voff}, s[{S_DBG}:{S_DBG+3}], 0 offen offset:{off} sc1 ;T=-", "s_mov_b64 exec, -1", f"{lab}:"]

    def body(E, su, ty, epi, items=None, barx=None, ts=(0, 1, 2, 3), acc=None, prew=None):
        nt = len(ts); GL = 4*nt; NM = 4*GL
        acc = ACC[su % 2] if acc is None else acc
        gaps = {}
        def G(q, m): return gaps.setdefault((q, m), {'mem': [], 'other': []})
        def used(q, m): g = G(q, m); return len(g['mem']) + len(g['other'])
        free = lambda m: m % GL < GL - 4
        prew = dict(prew or {})
        for q in range(4):
            n = 4*su + q
            tags = [f"W{n+1}"] if n + 1 < 32 else []
            bx = (barx or {}).get(q, ([], []))
            tags += bx[0]
            G(q, 0)['other'] += ([f"@VM:{','.join(tags)}"] if tags else []) + ["s_barrier"] + bx[1]
            for nb in range(4):
                if nt == 4: G(q, nb*GL + 11)['other'].append("s_waitcnt lgkmcnt(0)")
                else: prew.setdefault((q, nb*GL), []).append("s_waitcnt lgkmcnt(8)")
            its = list(dma_slot(n+7)) if n + 7 < 32 else []
            fr = [m for m in range(1, NM) if free(m) and not (nt == 4 and m % GL == 11)]
            allit = []
            for tr in its: allit += [tr[:2], tr[2:]]
            allit += (items or {}).get(q, [])
            step = max(1, min(3, len(fr)//max(1, len(allit))))
            for k, it in enumerate(allit):
                m = fr[min(len(fr)-1, k*step)]
                if len(it) == 1 and it[0].startswith('buffer') and not G(q, m)['other']: G(q, m)['mem'] += it
                else: G(q, m)['other'] += it
        slots = [(q, m) for q in range(4) for m in range(NM) if free(m) and (q, m) >= (0, 6)]
        cap = 2
        while True:
            flat = [s_ for s_ in slots for _ in range(max(0, cap - used(*s_)))]
            if len(flat) >= 1.15*len(epi): break
            cap += 1
        step = max(1.0, EPF*len(flat)/max(1, len(epi))); idx = 0.0
        for op in epi:
            i2 = min(int(idx), len(flat)-1)
            if op.startswith('buffer'):
                i3 = i2
                while i3 < min(len(flat), i2 + 6) and used(*flat[i3]): i3 += 1
                if i3 < len(flat) and not used(*flat[i3]): idx = max(idx, i3); G(*flat[i3])['mem'].append(op)
                else: G(*flat[i2])['other'].append(op)
            else: G(*flat[i2])['other'].append(op)
            idx += step
        for q in range(4):
            for m in range(NM):
                nb, ti, ks = m // GL, (m // 4) % nt, m % 4; fi = (nb % 2)*4 + ks
                for x in prew.get((q, m), []): E(x)
                d = acc + (nb*nt+ti)*4; kk = q*4 + ks
                w = vr(WF+4*fi, 4); a = ar((ts[ti]*16+kk)*4, 4); c = "0" if kk == 0 else vr(d, 4)
                E(f"{MF} {vr(d,4)}, {a}, {w}, {c}" if ty == 'V' else f"{MF} {vr(d,4)}, {w}, {a}, {c}")
                if ti == nt - 1:
                    if nb < 2: rd = trreads(fi, su, nb+2, q, ks)
                    elif q < 3: rd = trreads(fi, su, nb-2, q+1, ks)
                    elif su < 7: rd = trreads(fi, su+1, nb-2, 0, ks)
                    else: rd = []
                    for x in rd: E(x)
                for x in G(q, m)['mem'] + G(q, m)['other']: E(x)

    E0 = Em(A, ['x', 'LX', 'LX'])
    for it in c_round(0) + dma_slot(0) + c_round(1) + dma_slot(1):
        for x in it: E0(x)
    A(f"v_lshrrev_b32 v4, 1, v2\nv_and_b32 v5, 1, v1\nv_lshl_add_u32 v4, v5, 1, v4\nv_lshl_add_u32 v6, v1, 3, v2\nv_lshlrev_b32 v7, 7, v6\nv_lshl_add_u32 v7, v3, 3, v7")
    for nb in range(4): A(f"v_xor_b32 v{XP}, {nb}, v4\nv_lshl_add_u32 v{TRA+2*nb}, v{XP}, 5, v7\nv_add_u32 v{TRA+2*nb+1}, 512, v{TRA+2*nb}\nv_add_u32 v{TRA+8+2*nb}, 0x10000, v{TRA+2*nb}\nv_add_u32 v{TRA+9+2*nb}, 0x10000, v{TRA+2*nb+1}")
    A(f"v_lshlrev_b32 v7, 6, v6\nv_lshl_add_u32 v7, v3, 3, v7")
    for nb in range(4): A(f"v_xor_b32 v{XP}, {nb%2}, v5\nv_lshl_add_u32 v{XP}, v{XP}, 5, v7\nv_add_u32 v{TRG+2*nb}, {(nb//2)*2048}, v{XP}\nv_add_u32 v{TRG+2*nb+1}, 256, v{TRG+2*nb}")
    A(f"v_lshrrev_b32 v4, 2, v0\nv_lshrrev_b32 v6, 5, v0\nv_lshlrev_b32 v6, 1, v6\nv_xor_b32 v5, v3, v6\nv_mul_u32_u24 v4, 2752, v4\nv_lshl_add_u32 v{VWG}, v5, 4, v4")
    A(f"v_and_b32 v4, 15, v0\nv_lshrrev_b32 v5, 1, v4\nv_xor_b32 v5, v5, v1\nv_lshlrev_b32 v4, 7, v4\nv_lshl_add_u32 v4, v5, 4, v4\ns_add_u32 s{sT1}, s{sSTG}, 98304\nv_add_u32 v{T+2}, s{sT1}, v4\nv_xor_b32 v{T+3}, 64, v{T+2}")
    A(f"s_lshl_b32 s{sT0}, s{sH}, 6\ns_add_u32 s{S_G}, s{S_G}, s{sT0}\ns_addc_u32 s{S_G+1}, s{S_G+1}, 0\ns_add_u32 s{S_U}, s{S_U}, s{sT0}\ns_addc_u32 s{S_U+1}, s{S_U+1}, 0\ns_sub_u32 s{S_G+2}, {512*2752}, s{sT0}\ns_mov_b32 s{S_U+2}, s{S_G+2}")
    for q in range(4): A(f"s_add_u32 s{sT0}, s{sI}, {q}\ns_and_b32 s{sT0}, s{sT0}, 3\ns_lshl_b32 s{sT0}, s{sT0}, 2\ns_add_u32 s{sT0}, s{sT0}, s{sW}\ns_mul_i32 s{sRQG+q}, s{sT0}, {32*2752}")
    A(f"s_lshl_b32 s{sT0}, s{sI}, 3\ns_lshl_b32 s{sT1}, s{sW}, 1\ns_add_u32 s{sXL}, s{sT0}, s{sT1}\ns_sub_u32 s{sXH}, 120, s{sT0}\ns_add_u32 s{sXH}, s{sXH}, s{sT1}")
    A(f"s_lshl_b32 s{sOBASE}, s{sTB}, 17\ns_lshl_b32 s{sT0}, s{sW}, 15\ns_add_u32 s{sOBASE}, s{sOBASE}, s{sT0}\ns_and_b32 s{sT0}, s{sCG}, 15\ns_lshl_b32 s{sT0}, s{sT0}, 21\ns_add_u32 s{sOBASE}, s{sOBASE}, s{sT0}\ns_add_u32 s{sOBASE}, s{sOBASE}, {KV_BASE}")
    F = ACC[0]; D, D2 = LX+8, LX+9
    def red():
        for n in (8, 4, 2, 1): A(f"s_nop 1\nv_add_f32_dpp v{D}, v{D}, v{D} row_ror:{n} row_mask:0xf bank_mask:0xf")
        A(f"v_mov_b32 v{D2}, v{D}\ns_nop 1\nv_permlane16_swap_b32 v{D}, v{D2}\nv_add_f32 v{D}, v{D}, v{D2}")
    E0("@VM:LX")
    for i in range(8): A(f"v_lshlrev_b32 v{F+2*i}, 16, v{LX+i}\nv_and_b32 v{F+2*i+1}, 0xffff0000, v{LX+i}")
    for i in range(8): A(f"v_add_f32 v{F+16+i}, v{F+i}, v{F+8+i}")
    for n in (4, 2, 1):
        for i in range(n): A(f"v_add_f32 v{F+16+i}, v{F+16+i}, v{F+16+n+i}")
    A(f"v_mov_b32 v{D}, v{F+16}"); red()
    A(f"v_mul_f32 v{D}, {hex(f32bits(-1.0/512))}, v{D}")
    for i in range(16): A(f"v_add_f32 v{F+i}, v{F+i}, v{D}")
    for i in range(8): A(f"v_cvt_pk_bf16_f32 v{LX+i}, v{F+2*i}, v{F+2*i+1}")
    for i in range(4): A(f"v_mul_f32 v{F+16+i}, v{F+i}, v{F+i}")
    for i in range(4, 16): A(f"v_fmac_f32 v{F+16+i%4}, v{F+i}, v{F+i}")
    A(f"v_add_f32 v{F+16}, v{F+16}, v{F+17}\nv_add_f32 v{F+18}, v{F+18}, v{F+19}\nv_add_f32 v{D}, v{F+16}, v{F+18}"); red()
    A(f"v_mov_b32 v{D2}, {hex(f32bits(1e-5))}\nv_fmac_f32 v{D2}, {hex(f32bits(1.0/512))}, v{D}\nv_rsq_f32 v{D}, v{D2}")
    A(f"s_and_b32 s{sT0}, s2, 1\ns_lshl_b32 s{sT0}, s{sT0}, 3\ns_lshl_b32 s{sT1}, s{sW}, 1\ns_add_u32 s{sT0}, s{sT0}, s{sT1}\nv_lshrrev_b32 v4, 5, v0\nv_add_u32 v4, s{sT0}, v4")
    A(f"v_bfe_u32 v5, v0, 2, 3\nv_lshlrev_b32 v5, 10, v5\nv_lshl_add_u32 v5, v3, 8, v5\nv_lshl_add_u32 v5, v4, 4, v5\nv_lshlrev_b32 v4, 2, v4")
    A(f"s_lshr_b32 s{sT0}, s2, 1\ns_lshl_b32 s{sT1}, s{sT0}, 14\ns_add_u32 s{sT1}, s{sT1}, {XC_BASE}\ns_add_u32 s3, s{sT1}, 8192\ns_lshl_b32 s{sT0}, s{sT0}, 6\ns_add_u32 s{sT0}, s{sT0}, {SCQ_BASE}")
    E0(f"buffer_store_dwordx4 {vr(LX,4)}, v5, s[{S_WS}:{S_WS+3}], s{sT1} offen sc1 ;T=LN\nbuffer_store_dwordx4 {vr(LX+4,4)}, v5, s[{S_WS}:{S_WS+3}], s3 offen sc1 ;T=LN\nbuffer_store_dword v{D}, v4, s[{S_WS}:{S_WS+3}], s{sT0} offen sc1 ;T=LN")
    A(f"s_cmp_ge_u32 s2, 2\ns_cbranch_scc1 K1_NOZ\ns_lshl_b32 s{sT0}, s2, 13\ns_add_u32 s{sT0}, s{sT0}, {CNT_BASE}\nv_lshlrev_b32 v4, 7, v0\nv_mov_b32 v5, 0\nbuffer_store_dword v5, v4, s[{S_WS}:{S_WS+3}], s{sT0} offen sc1")
    A.label("K1_NOZ")
    A(f"s_and_b32 s{sT0}, s2, 15\ns_lshl_b32 s{sT0}, s{sT0}, 2\nv_mov_b32 v4, s{sT0}\nv_mov_b32 v5, 1\nv_and_b32 v{XO}, 15, v0\nv_lshlrev_b32 v{XO}, 2, v{XO}")
    E0("@VM:R0,W0"); A("s_barrier")
    A(f"s_cmp_ge_u32 s{sCG}, 16\ns_cbranch_scc1 K1_V")
    seq0 = list(E0.seq); ends = []
    stubs = k2['stubs']
    for ty in 'KV':
        A.label(f"K1_{ty}")
        E = Em(A, seq0)
        for t in range(4): A(f"v_add_u32 v{VO+t}, {((t//2)*16384 + (t%2)*4096) if ty == 'K' else ((t%2)*16384 + 8192)}, v{VL}")
        for x in c_reads(0): A(x)
        for fi in range(8):
            for x in trreads(fi, 0, fi % 4, 0, fi // 4): A(x)
        A("s_waitcnt lgkmcnt(12)")
        gaps = {}; prew = {}
        def G(q, m): return gaps.setdefault((q, m), {'mem': [], 'other': []})
        def put(q, m, trips):
            for tr in trips:
                G(q, m)['other'] += tr[:2]; m = m + 1 if (m + 1) % 4 != 3 else m + 2
                G(q, m)['mem'].append(tr[2])
            return m
        for q in range(4):
            for grp in range(1, 16, 2): G(q, grp*4+2)['other'].append(f"s_waitcnt lgkmcnt({6 if (q == 3 and grp == 15) else 10})")
        for h in range(8):
            q = h // 2; base = 32*(h % 2)
            if h >= 1: prew[(q, base)] = ["s_waitcnt lgkmcnt(2)"]
            need = 'W1' if h == 1 else (f'W{q+1}' if h in (2, 4, 6) else None)
            if need: G(q, base)['other'] += [f"@VM:{need}", "s_barrier"]
            if h == 7: G(q, base)['other'] += ["s_barrier"]
            m = base + 1
            if h + 2 <= 7: m = put(q, m, c_round(h+2))
            if h <= 3: m = put(q, m, dma_slot(h+2))
            if h == 7:
                for n in range(6, 11): m = put(q, m, dma_slot(n))
            if h + 1 <= 7:
                mm = base + 24; prew[(q, mm)] = [f"@VM:R{h+1}"]; rds = c_reads(h+1)
                for k, p in enumerate((mm, mm+1, mm+2, mm+4)): G(q, p)['mem'] += rds[2*k:2*k+2]
        for q in range(4):
            for m in range(64):
                ks, nb, t = m // 16, (m // 4) % 4, m % 4; fi = (ks % 2)*4 + nb
                for x in prew.get((q, m), []): E(x)
                d = ACC[0] + (nb*4+t)*4; kk = q*4 + ks
                w = vr(WF+4*fi, 4); a = ar((t*16+kk)*4, 4); c = "0" if kk == 0 else vr(d, 4)
                E(f"{MF} {vr(d,4)}, {a}, {w}, {c}" if ty == 'V' else f"{MF} {vr(d,4)}, {w}, {a}, {c}")
                if t == 3:
                    rd = trreads(fi, 0, nb, q, ks+2) if ks < 2 else (trreads(fi, 1, fi // 4, 0, fi % 4) if q == 3 else trreads(fi, 0, nb, q+1, ks-2))
                    for x in rd: E(x)
                for x in G(q, m)['mem'] + G(q, m)['other']: E(x)
        stamp(A, 1)
        misc1 = [[f"s_add_u32 s{sT1}, s{sI}, {q}", f"s_and_b32 s{sT1}, s{sT1}, 3", f"s_lshl_b32 s{sAQ+q}, s{sT1}, 12"] for q in range(4)]
        misc1 += [[f"s_lshl_b32 s{sT1}, s{sH}, 8", f"s_add_u32 s{S_Q}, s{P_WQ}, s{sT1}", f"s_addc_u32 s{S_Q+1}, s{P_WQ+1}, 0", f"s_sub_u32 s{S_Q+2}, {512*8192}, s{sT1}"]]
        body(E, 1, ty, epi_T(ty, 0), items={1: misc1}, barx={2: (['LN'], sig(5, 4, 128, f"K1_NS1{ty}"))})
        if QD: stamp(A, 5)
        tmp = Asm(); code_touch(tmp, "K1_FIN", "K2_END", sW, 0, 7, 84)
        for x in tmp.lines: E(x)
        scq = [[f"s_lshl_b32 s{sT1}, s{sXH}, 6", f"s_add_u32 s46, s{sT1}, {SCQ_BASE}"], [f"s_lshl_b32 s{sT1}, s{sXL}, 6", f"s_add_u32 s47, s{sT1}, {SCQ_BASE}"],
               [f"s_lshr_b32 s{sT1}, s{sXH}, 2", f"s_mul_i32 s24, s{sT1}, {A3_TB64}"], [f"s_lshr_b32 s{sT1}, s{sXL}, 2", f"s_mul_i32 s25, s{sT1}, {A3_TB64}"],
               [f"s_lshl_b32 s{sXH}, s{sXH}, 14", f"s_add_u32 s{sXH}, s{sXH}, {XC_BASE}"], [f"s_lshl_b32 s{sXL}, s{sXL}, 14", f"s_add_u32 s{sXL}, s{sXL}, {XC_BASE}"],
               [f"v_add_u32 v{DUM}, 16384, v{VL}"]]
        rq2 = [[f"s_lshl_b32 s{sT1}, s{sAQ+q}, 8", f"s_lshl_b32 s3, s{sW}, 18", f"s_add_u32 s{sRQ8+q}, s{sT1}, s3"] for q in range(4)]
        body(E, 2, ty, epi_T(ty, 1), items={1: scq + rq2, 3: [[f"buffer_load_dword v{XP}, v{XO}, s[{S_DBG}:{S_DBG+3}], 0 offen offset:128 sc1 ;T=P"]]})
        if QD: stamp(A, 6)
        E(f"@VM:P\nv_cmp_ne_u32 vcc, 16, v{XP}\ns_cbranch_vccnz K1_XS{ty}"); A.label(f"K1_XS{ty}_B")
        k2['spin'](f"K1_XS{ty}", XP, XO, 128, 16)
        hsw = [[f"s_lshr_b32 s{sT1}, s{sH}, 1", f"s_add_u32 s{sT1}, s{sT1}, 32", f"s_sub_u32 s{sT1}, s{sT1}, s{sH}", f"s_lshl_b32 s{sT1}, s{sT1}, 6",
                f"s_add_u32 s{S_G}, s{S_G}, s{sT1}", f"s_addc_u32 s{S_G+1}, s{S_G+1}, 0", f"s_add_u32 s{S_U}, s{S_U}, s{sT1}", f"s_addc_u32 s{S_U+1}, s{S_U+1}, 0",
                f"s_sub_u32 s{S_G+2}, s{S_G+2}, s{sT1}", f"s_cmp_lt_u32 s{sH}, 22", f"s_cselect_b32 s{S_G+2}, s{S_G+2}, 0", f"s_mov_b32 s{S_U+2}, s{S_G+2}"]]
        rl = [[f"buffer_load_dword v{SCQ+t}, v{XO}, s[{S_WS}:{S_WS+3}], s{46 if t < 2 else 47} offen offset:{(t%2)*64} sc1 ;T=RS"] for t in range(4)]
        body(E, 3, ty, epi_T(ty, 2), items={0: hsw + rl, 1: xs(0), 2: xs(1), 3: xs(2)})
        if QD: stamp(A, 2)
        sc = [["@VM:RS"] + [f"v_mul_f32 v{SCG+t}, v{SCQ+t}, v{SCQ+t}" for t in range(4)], [f"v_mul_f32 v{SCQ+t}, {hex(f32bits(CSCALE))}, v{SCQ+t}" for t in range(4)]]
        post = [f"s_and_b32 s{sT1}, s{sW}, 1", f"s_lshl_b32 s{sT1}, s{sT1}, 11", f"s_add_u32 s24, s24, s{sT1}", f"s_add_u32 s25, s25, s{sT1}", f"v_add_u32 v{VO}, s24, v{VL}", f"v_add_u32 v{VO+2}, s25, v{VL}",
                f"v_add_u32 v{VO+1}, 1024, v{VO}", f"v_add_u32 v{VO+3}, 1024, v{VO+2}", f"s_lshl_b32 s{sOG}, s{sH}, 12", f"s_add_u32 s{sOG}, s{sOG}, {A3_BASE + 128*4096}"]
        tg = [[f"v_xor_b32 v{TRG+2*nb}, 0x10000, v{TRG+2*nb}", f"v_xor_b32 v{TRG+2*nb+1}, 0x10000, v{TRG+2*nb+1}"] for nb in range(4)]
        body(E, 4, 'G', epi_T(ty, 3) + post, items={0: xs(3), 1: sc + xs(4), 2: xs(5)}, prew={(q, 0): [f"@VM:X{q}"] for q in range(4)} | {(3, 1): tg[0] + tg[1], (3, 17): tg[2], (3, 33): tg[3]})
        ends.append(list(E.seq))
        stamp(A, 3 if QD else 2)
        if ty == 'K': A("s_branch K1_COMMON")
    assert ends[0] == ends[1]
    A.label("K1_COMMON")
    A(f"s_bitcmp1_b32 s{sH}, 0\ns_cbranch_scc1 K1_H1")
    for hv in range(2):
        A.label(f"K1_H{hv}")
        E = Em(A, ends[0])
        hs = [[f"v_mov_b32 v{VOH+k}, v{VO+2*hv+k}", f"v_mov_b32 v{SCH+k}, v{SCG+2*hv+k}"] for k in range(2)]
        body(E, 5, 'G', epi_G(ACC[0], 4, VO, SCG, sOG, 'SG'), items={0: hs}, ts=(2*hv, 2*hv+1), acc=QT, barx={3: (['S3'], sig(5, 4, 0, f"K1_NS2{hv}"))})
        if hv == 0: A("s_branch K1_Q"); e0 = list(E.seq)
    assert e0 == E.seq
    A.label("K1_Q")
    hob = [f"s_lshr_b32 s{sT1}, s{sH}, 1", f"s_lshl_b32 s{sT1}, s{sT1}, 12", f"s_add_u32 s{sOG}, s{sT1}, {A3_BASE + 160*4096}", f"s_cmp_lt_u32 s{sH}, 22\ns_cselect_b32 s{sOG}, s{sOG}, {WS_USED}"]
    k2i = k2['early'](dict(XO=XO, XP=XP))
    body(E, 6, 'Q', hob + epi_G(QT, 2, VOH, SCH, sOG, 'SH'), items=k2i['q0'], acc=ACC[1])
    body(E, 7, 'Q', epi_Q(ACC[1], 0, lambda t: QT+4*t) + epi_Q(ACC[1], 1, lambda t: QT+16+4*t) + [f"v_mov_b32 v{VOH+t}, v{SCQ+t}" for t in range(4)], items=k2i['q1'], acc=ACC[0], barx=k2i['bar1'])
    A.label("K1_FIN")
    return dict(SC2=VOH, QT=QT, ACC=ACC[0], epi_Q=epi_Q, XO=XO, XP=XP)
```

```python
from asmlib import *
import asmlib
from k1f import KV_BASE, A3_BASE, A3_TB64, WS_USED, MF, f32bits, XC_BASE, SCQ_BASE, P2_BASE, CNT_BASE
import math

import os
QST = os.environ.get('QST', '0') == '1'
QPLAN = os.environ.get('QPLAN', '3')
CT = os.environ.get('CODE_TOUCH2', '1') == '1'
QROT = int(os.environ.get('QROT', '2'))
LATEKV = os.environ.get('LATEKV', '1') == '1'
NOBAR = os.environ.get('NOBAR', '0') == '1'
BARPOS = int(os.environ.get('BARPOS', '0'))
NOCHK = os.environ.get('NOCHK', '0') == '1'
CHKE = os.environ.get('CHKE', '1') == '1'
ONES = os.environ.get('ONES', '0') == '1'
BIAS = 24.0
SLP = int(os.environ.get('SLP', '8'))
FULL = os.environ.get('FULL', '1') == '1'
SLP2 = int(os.environ.get('SLP2', '4'))
ELO = os.environ.get('ELO', '1') == '1'
FINF = os.environ.get('FINF', '1') == '1'
LOSIG = os.environ.get('LOSIG', '1') == '1'
EPQ = os.environ.get('EPQ', '1') == '1'
XS = os.environ.get('XS', ' sc1'); KS = os.environ.get('KS', ' sc1'); AS = os.environ.get('AS', ' sc1')
QD = os.environ.get('QD') == '1'
PCHK = int(os.environ.get('PCHK', '11'))
CTX_TOUCH = os.environ.get('CTX_TOUCH', '0') == '1'
def gen_k2(A, k1i, store_flags="", thr=2.0**30):
    O = 0; S01 = 128; S23 = [144, 160]; P01 = [176, 184]; P23 = 192; CX = 200; E = 232; LS = 236; L = 240
    VK = 244; VV = 245; VD = 246; TMP = 247
    AQ = 0; KF = 64; VF = 96; AL = 128; AO = 144
    NG = 34 if ONES else 32
    S_KV, S_WS = 8, 12
    sW, sH, sI, sT0, sT1, sOFF, sHALF, sCNT, sTHR, sNEG = 16, 17, 18, 19, 20, 21, 22, 23, 24, 25
    sMK = 26
    sRET = 34
    sP = 36; sOHI = 37; sOLO = 38
    P_WS = 40; P_WO = 42; P_WD = 44; P_WQ = 46; S_T = 48; sXH = 52; sXL = 53; sWQ = 54; sMQ = 55
    def Sreg(qp, kb, par): return (S01 + (qp*2+kb)*4) if qp < 2 else (S23[par] + ((qp-2)*2+kb)*4)
    def Preg(qp, par): return (P01[par] + qp*4) if qp < 2 else (P23 + (qp-2)*4)
    def Oreg(db, qb): return O + (db*4+qb)*4
    def CXr(qp, kb): return CX + (qp*2+kb)*4
    stubs = []
    uid = [0]
    def U(p): uid[0] += 1; return f"K2_{p}_{uid[0]}"

    def spin(lab, vp, vo, off, expect, mask=None, srd='s[80:83]', so='0', slp=None):
        stubs.append([f"{lab}_F:", f"s_mov_b32 s{sT1}, 0", f"s_branch {lab}_N", f"{lab}:", f"s_mov_b32 s{sT1}, 0", f"{lab}_L:", f"s_sleep {slp or SLP}", f"{lab}_N:",
                      f"buffer_load_dword v{vp}, v{vo}, {srd}, {so} offen offset:{off} sc1", "s_waitcnt vmcnt(0)"] + ([f"v_and_b32 v{vp}, {mask}, v{vp}"] if mask else []) +
                     [f"v_cmp_ne_u32 vcc, {expect}, v{vp}", f"s_add_u32 s{sT1}, s{sT1}, 1", f"s_cmp_ge_u32 s{sT1}, 0x8000", f"s_cbranch_scc1 {lab}_B", f"s_cbranch_vccnz {lab}_L", f"s_branch {lab}_B"])
    A(f"s_mov_b32 s{sW}, s{k1i['sW']}\nv_mov_b32 v{TMP+1}, v0")
    A(f"s_load_dwordx2 s[{P_WS}:{P_WS+1}], s[0:1], 96\ns_load_dwordx2 s[{P_WO}:{P_WO+1}], s[0:1], 40\ns_load_dwordx2 s[{P_WD}:{P_WD+1}], s[0:1], 72\ns_load_dwordx2 s[{P_WQ}:{P_WQ+1}], s[0:1], 16\ns_mov_b32 s{S_T+3}, 0x00020000")
    A(f"v_cmp_ne_u32 vcc, 4, v{k1i['XP']}\ns_barrier\ns_cbranch_vccnz K2_XSPIN")
    A.label("K2_XSPIN_B")
    spin("K2_XSPIN", k1i['XP'], k1i['XO'], 128, 4)
    A(f"s_and_b32 s{sT0}, s2, 7\ns_lshr_b32 s{sT1}, s2, 3\ns_lshr_b32 s{sI}, s{sT1}, 2\ns_and_b32 s{sT1}, s{sT1}, 3\ns_lshl_b32 s{sH}, s{sT0}, 2\ns_add_u32 s{sH}, s{sH}, s{sT1}")
    A(f"s_mov_b32 s{S_KV+3}, 0x00020000\ns_mov_b32 s{S_WS+3}, 0x00020000\ns_mov_b32 s{S_WS+2}, {WS_USED}")
    A(f"s_lshl_b32 s{sT0}, s{sI}, 16\ns_sub_u32 s{S_KV+2}, 0x108000, s{sT0}")
    A(f"s_mov_b32 s{sTHR}, {hex(0x40000000 if ONES else f32bits(thr))}\ns_mov_b32 s{sNEG}, 0xff800000")
    LN = TMP+1
    A(f"v_lshlrev_b32 v{VK}, 4, v{LN}\nv_add_u32 v{VV}, 0x10000, v{VK}")
    A(f"s_lshl_b32 s{sT0}, s{sW}, 12\nv_add_u32 v{VD}, s{sT0}, v{VK}")
    A(f"s_and_b32 s{sT0}, s{sW}, 1\ns_lshl_b32 s{sHALF}, s{sT0}, 12\ns_lshr_b32 s{sT0}, s{sW}, 1\ns_lshl_b32 s{sT1}, s{sT0}, 16\ns_add_u32 s{sHALF}, s{sHALF}, s{sT1}")
    A(f"s_lshl_b32 s{sT0}, s{sT0}, 15\ns_sub_u32 s{sOFF}, 0x8000, s{sT0}")
    A("s_waitcnt lgkmcnt(0)")
    A(f"s_mov_b32 s{S_WS}, s{P_WS}\ns_mov_b32 s{S_WS+1}, s{P_WS+1}")
    A(f"s_lshl_b32 s{sT0}, s{sH}, 20\ns_add_u32 s{sT0}, s{sT0}, {KV_BASE-0x8000}\ns_add_u32 s{S_KV}, s{P_WS}, s{sT0}\ns_addc_u32 s{S_KV+1}, s{P_WS+1}, 0")
    A(f"s_lshr_b32 s{sT0}, s{sW}, 1\ns_lshl_b32 s{sT1}, s{sI}, 1\ns_add_u32 s{sOLO}, s{sT1}, s{sT0}\ns_sub_u32 s{sOHI}, 30, s{sT1}\ns_add_u32 s{sOHI}, s{sOHI}, s{sT0}")
    A(f"s_mul_i32 s{sOLO}, s{sOLO}, {A3_TB64}\ns_mul_i32 s{sOHI}, s{sOHI}, {A3_TB64}")
    A(f"s_lshl_b32 s{sT0}, s{sH}, 14\ns_and_b32 s{sT1}, s{sW}, 1\ns_lshl_b32 s{sT1}, s{sT1}, 11\ns_add_u32 s{sT0}, s{sT0}, s{sT1}\ns_add_u32 s{sT0}, s{sT0}, {A3_BASE}")
    A(f"s_add_u32 s{sOLO}, s{sOLO}, s{sT0}\ns_add_u32 s{sOHI}, s{sOHI}, s{sT0}")
    def kread(f, unit4): return f"ds_read_b128 {ar(KF+4*f,4)}, v{VK} offset:{unit4*8192 + f*1024}"
    def vread(f, slot4): return f"ds_read_b128 {ar(VF+4*f,4)}, v{VV} offset:{slot4*8192 + f*1024}"
    def dma_group(c):
        pre = [f"s_add_u32 m0, s{sHALF}, {(c%4)*8192}"]
        d = [f"buffer_load_dwordx4 v{VD}, s[{S_KV}:{S_KV+3}], s{sOFF} offen offset:{j*1024}{KS} lds" for j in range(4)]
        post = [f"s_add_u32 s{sOFF}, s{sOFF}, 16384"]
        if c % 4 == 3: post.append(f"s_xor_b32 s{sHALF}, s{sHALF}, 0x8000")
        return pre, d, post
    AR = 128; TRQ = S01; VQ = S01 + 8
    A(f"s_mov_b32 s{S_T}, s{P_WQ}\ns_mov_b32 s{S_T+1}, s{P_WQ+1}\ns_mov_b32 s{S_T+2}, {512*8192}")
    A(f"s_lshl_b32 s{sT0}, s{sI}, 3\ns_lshl_b32 s{sT1}, s{sW}, 1\ns_add_u32 s{sXL}, s{sT0}, s{sT1}\ns_sub_u32 s{sXH}, 120, s{sT0}\ns_add_u32 s{sXH}, s{sXH}, s{sT1}")
    A(f"s_lshl_b32 s{sP}, s{sXH}, 6\ns_add_u32 s{sP}, s{sP}, {SCQ_BASE}\ns_lshl_b32 s{sCNT}, s{sXL}, 6\ns_add_u32 s{sCNT}, s{sCNT}, {SCQ_BASE}")
    A(f"s_lshl_b32 s{sXH}, s{sXH}, 14\ns_add_u32 s{sXH}, s{sXH}, {XC_BASE}\ns_lshl_b32 s{sXL}, s{sXL}, 14\ns_add_u32 s{sXL}, s{sXL}, {XC_BASE}")
    A(f"s_lshl_b32 s{sWQ}, s{sH}, 8\ns_lshl_b32 s{sT0}, s{sW}, 16\ns_add_u32 s{sWQ}, s{sWQ}, s{sT0}\ns_lshl_b32 s{sMQ}, s{sW}, 11\ns_add_u32 s{sMQ}, s{sMQ}, 32768")
    A(f"v_lshrrev_b32 v{TMP+2}, 4, v{LN}\nv_and_b32 v{TMP+3}, 15, v{LN}\ns_and_b32 s{sT0}, s{sW}, 1\ns_lshl_b32 s{sT0}, s{sT0}, 2\nv_or_b32 v{TMP+4}, s{sT0}, v{TMP+2}\nv_lshlrev_b32 v{TMP+4}, 1, v{TMP+4}\nv_xor_b32 v{TMP+4}, v{TMP+4}, v{TMP+3}")
    A(f"v_lshlrev_b32 v{TMP+5}, 13, v{TMP+2}\nv_lshl_add_u32 v{VQ}, v{TMP+4}, 4, v{TMP+5}\nv_add_u32 v{VQ+1}, {4*8192-1024}, v{VQ}\nv_add_u32 v{VQ+2}, 16384, v{VK}")
    sQO, sWQQ, sXH1, sXL1 = 56, 60, 84, 85
    rsrc = {0: "0", 1: f"s{sH}", 2: f"s{sI}"}[QROT if QROT < 3 else 1]
    if QROT == 3: A(f"s_add_u32 s{sT1}, s{sH}, s{sI}"); rsrc = f"s{sT1}"
    for q in range(4):
        A(f"s_add_u32 s{sT0}, {rsrc}, {q}\ns_and_b32 s{sT0}, s{sT0}, 3\ns_lshl_b32 s{sQO+q}, s{sT0}, 12\ns_lshl_b32 s{sT0}, s{sT0}, 20\ns_add_u32 s{sWQQ+q}, s{sWQ}, s{sT0}")
    def w_loads(n):
        return [[f"s_add_u32 m0, s{sMQ}, {n*8192}", f"s_add_u32 s{sT0}, s{sWQQ+n//4}, {(n%4)*32*8192}"],
                [f"buffer_load_dwordx4 v{VQ}, s[{S_T}:{S_T+3}], s{sT0} offen lds"], [f"buffer_load_dwordx4 v{VQ+1}, s[{S_T}:{S_T+3}], s{sT0} offen offset:1024 lds"]]
    def adst(n, t):
        if n < 8: return ar(AR+n*16+4*t, 4)
        if n < 12: return ar((n-8)*16+4*t, 4)
        if n < 14: return ar(96+(n-12)*16+4*t, 4)
        return vr(144+(n-14)*16+4*t, 4)
    def a_loads(n):
        o = []
        if n % 4 == 0: o.append([f"s_add_u32 s{sXH1}, s{sXH}, s{sQO+n//4}", f"s_add_u32 s{sXL1}, s{sXL}, s{sQO+n//4}"])
        for t in range(4):
            o.append([f"buffer_load_dwordx4 {adst(n,t)}, v{VQ+2 if t % 2 else VK}, s[{S_WS}:{S_WS+3}], s{sXH1 if t < 2 else sXL1} offen offset:{(n%4)*1024}{XS}"])
        return o
    seq = []
    def mk(tags):
        its = []
        for k, n in tags:
            x = (w_loads if k == 'W' else a_loads)(n)
            for it in x:
                for y in it:
                    if y.startswith('buffer'): seq.append((k, n))
            its += x
        return its
    def vmq(tag): return min(63, len(seq) - 1 - max(i for i, e in enumerate(seq) if e == tag))
    def vmq_(tag): return len(seq) - 1 - max(i for i, e in enumerate(seq) if e == tag)
    for it in mk([('W',0),('A',0),('W',1),('W',2),('A',1),('A',2),('W',3),('W',4),('A',3)]):
        for x in it: A(x)
    A(f"v_lshlrev_b32 v{TMP+4}, 2, v{TMP+3}")
    A(f"v_bfe_u32 v{TMP+3}, v{LN}, 2, 2\nv_and_b32 v{TMP+6}, 1, v{TMP+2}\nv_lshl_add_u32 v{TMP+6}, v{TMP+6}, 2, v{TMP+3}\nv_lshl_add_u32 v{TMP+3}, v{TMP+2}, 3, v{TMP+3}\nv_lshlrev_b32 v{TMP+3}, 8, v{TMP+3}")
    A(f"v_and_b32 v{TMP+5}, 3, v{LN}\nv_lshl_add_u32 v{TMP+3}, v{TMP+5}, 3, v{TMP+3}\nv_add_u32 v{TMP+3}, 0x8000, v{TMP+3}")
    for nb in range(8): A(f"v_xor_b32 v{TMP+5}, {nb}, v{TMP+6}\nv_lshl_add_u32 v{TRQ+nb}, v{TMP+5}, 5, v{TMP+3}")
    def qtr(nb, ks): return [f"ds_read_b64_tr_b16 {ar(KF+4*nb,2)}, v{TRQ+nb} offset:{(ks%8)*8192}", f"ds_read_b64_tr_b16 {ar(KF+4*nb+2,2)}, v{TRQ+nb} offset:{(ks%8)*8192+1024}"]
    A(f"s_and_b32 s{sT0}, s2, 15\ns_lshl_b32 s{sT0}, s{sT0}, 2\nv_mov_b32 v{TMP+5}, s{sT0}\nv_mov_b32 v{TMP+6}, 1")
    A(f"s_waitcnt vmcnt({len(seq)})\ns_barrier")
    A(f"s_cmp_lg_u32 s{sW}, 0\ns_cbranch_scc1 K2_NOSIG\ns_mov_b64 exec, 1\nbuffer_atomic_add v{TMP+6}, v{TMP+5}, s[80:83], 0 offen sc1\ns_mov_b64 exec, -1")
    A.label("K2_NOSIG")
    A(f"s_waitcnt vmcnt({vmq(('W', 0))})\ns_barrier")
    for nb in range(8):
        for x in qtr(nb, 0): A(x)
    A("s_waitcnt lgkmcnt(12)")
    plan = {0: [('A',4),('W',5),('A',5),('W',6),('A',6),('W',7)], 1: [('A',7),('W',8),('A',8),('W',9),('A',9),('W',10)], 2: [('A',10),('W',11),('A',11),('W',12),('A',12),('W',13)],
            3: [('A',13),('W',14),('A',14),('W',15),('A',15)]}
    if QPLAN == '2':
        plan = {0: [('A',4),('W',5),('W',6),('A',5),('W',7),('W',8)], 1: [('A',6),('W',9),('W',10),('A',7),('W',11),('W',12)], 2: [('A',8),('W',13),('W',14),('W',15),('A',9)]}
        for k_ in range(3, 9): plan[k_] = [('A', k_+7)]
    if QPLAN == '3':
        plan = {0: [('A',4),('W',5),('A',5)], 1: [('W',6),('A',6),('W',7),('A',7)], 2: [('W',8),('A',8),('W',9),('A',9)], 3: [('W',10),('A',10),('W',11)], 4: [('A',11),('W',12),('W',13)], 5: [('A',12),('W',14),('W',15)], 6: [('A',13)], 7: [('A',14)], 8: [('A',15)]}
    bars = {0: 2, 2: 4, 4: 8, 8: 15}
    NEGV = TMP+8
    misc = [f"v_mov_b32 v{r}, 0" for r in list(range(CX, CX+32)) + list(range(LS, LS+8))]
    misc += [f"v_and_b32 v{TMP+2}, 15, v{LN}", f"v_lshrrev_b32 v{TMP+3}, 4, v{LN}", f"v_lshlrev_b32 v{TMP+3}, 2, v{TMP+3}", f"v_sub_u32 v{TMP+2}, v{TMP+2}, v{TMP+3}"]
    misc += [f"v_cmp_le_i32 s[{sMK+2*i}:{sMK+2*i+1}], {i}, v{TMP+2}" for i in range(4)] + [f"v_mov_b32 v{NEGV}, s{sNEG}", "s_nop 0"]
    def q_epi(ds):
        o = []
        for qb in range(4):
            tq = QT + 4*(qb % 2)
            for h in range(2):
                b_ = Oreg(2*ds+h, qb)
                o += [f"v_mul_f32 v{b_+i}, v{b_+i}, v{E+qb}" for i in range(4)]
                o += [f"v_cvt_pk_bf16_f32 v{tq+2*h}, v{b_}, v{b_+1}", f"v_cvt_pk_bf16_f32 v{tq+2*h+1}, v{b_+2}, v{b_+3}"]
            o += [f"v_accvgpr_write_b32 a{AQ+(qb*4+ds)*4+i}, v{tq+i}" for i in range(4)]
        return o
    QT = P01[0]
    e0 = q_epi(0)
    for ks in range(16):
        gaps = {}
        def G(m): return gaps.setdefault(m, [])
        pre = [f"s_waitcnt vmcnt({vmq(('A', ks))})"]
        if ks in bars: G(0).extend([f"s_waitcnt vmcnt({vmq(('W', bars[ks]))})", "s_barrier"])
        if ks == 12: G(0).append("s_barrier")
        sRDY = 86
        if ks == PCHK:
            G(1).extend([f"s_waitcnt vmcnt({vmq(('P', 0))})", f"v_cmp_ne_u32 vcc, 16, v{TMP+7}"])
            G(4).extend([f"s_cmp_eq_u64 vcc, 0", f"s_cselect_b32 s{sRDY}, 1, 0", f"v_mov_b32 v{TMP+6}, s{sRDY}", f"s_cmp_lg_u32 s{sW}, 0", "s_cbranch_scc1 K2_NOMB", f"ds_write_b32 v{TMP+5}, v{TMP+6}", "K2_NOMB:"])
        if ks == 3: G(2).extend([f"v_mov_b32 v{TMP+5}, 0x8000", f"v_mov_b32 v{TMP+6}, 0", f"ds_write_b32 v{TMP+5}, v{TMP+6}"])
        its = mk(plan.get(ks, []))
        if ks == PCHK - 2:
            its.append([f"buffer_load_dword v{TMP+7}, v{TMP+4}, s[80:83], 0 offen sc1"]); seq.append(('P', 0))
        if ks == 6:
            for qb in range(4):
                its.append([f"buffer_load_dword v{E+qb}, v{TMP+4}, s[{S_WS}:{S_WS+3}], s{sP if qb < 2 else sCNT} offen offset:{(qb%2)*64} sc1"]); seq.append(('S', 0))
        def kv_init(c):
            p_, d_, po_ = dma_group(c)
            if c < 2:
                lab = U("KS")
                return [f"s_cmp_ge_u32 s{sW}, 2", f"s_cbranch_scc1 {lab}"] + p_ + ["s_nop 0"] + d_ + [lab + ":"] + po_
            return p_ + ["s_nop 0"] + d_ + po_
        if PCHK <= ks < PCHK + 4:
            lab = U("NR")
            its.append([f"s_cmp_eq_u32 s{sRDY}, 0", f"s_cbranch_scc1 {lab}"] + kv_init(ks - PCHK) + [lab + ":"])
        if ks in (13, 14): its += [misc[(ks-13)*26+2*k:(ks-13)*26+2*k+2] for k in range(13)]
        m = 1 if ks != PCHK else 5
        for it in its:
            G(m).extend(it)
            m = m + 1 if (m + 1) % 4 != 3 else m + 2
        if ks == 15:
            m = max(m, 12)
            while m < 31:
                G(m).extend(e0[:2]); e0 = e0[2:]
                m = m + 1 if (m + 1) % 4 != 3 else m + 2
        assert m < 33, m
        if ks < 15:
            for grp in range(1, 8, 2): G(grp*4+2).append("s_waitcnt lgkmcnt(10)")
        else:
            G(6).append("s_waitcnt lgkmcnt(8)"); G(14).append("s_waitcnt lgkmcnt(0)")
        for x in pre: A(x)
        if QD and ks in (0, 8): A(f"s_memrealtime s[{96 if ks == 0 else 98}:{97 if ks == 0 else 99}]")
        for nb in range(8):
            for t in range(4):
                d = Oreg(nb, t)
                A(f"{MF} {vr(d,4)}, {ar(KF+4*nb,4)}, {adst(ks,t)}, {'0' if ks == 0 else vr(d,4)}")
                if t == 3 and ks < 15:
                    if ks == 7: A(f"v_add_u32 v{TRQ+nb}, 0x10000, v{TRQ+nb}")
                    for x in qtr(nb, ks+1): A(x)
                for x in G(nb*4+t): A(x)
    stamp(A, 3)

    def Dpatch(q0):
        o = []
        for i in range(4): o.append(f"v_cndmask_b32 v{CXr(q0,0)+i}, v{NEGV}, v{CXr(q0,0)+i}, s[{sMK+2*i}:{sMK+2*i+1}]")
        for i in range(4): o.append(f"v_mov_b32 v{CXr(q0,1)+i}, v{NEGV}")
        for i in range(4): o.append(f"v_cndmask_b32 v{CXr(q0+1,1)+i}, v{NEGV}, v{CXr(q0+1,1)+i}, s[{sMK+2*i}:{sMK+2*i+1}]")
        return o
    def Fpatch(q0): return [f"v_mov_b32 v{CXr(q0,0)+i}, v{NEGV}" for i in range(16)]
    def patch(q0, j):
        o = []
        lD, lE = U("PD"), U("PE")
        o.append(f"s_cmp_gt_u32 s{sW}, {j}"); o.append(f"s_cbranch_scc1 {lE}")
        if j > 0:
            o.append(f"s_cmp_eq_u32 s{sW}, {j}"); o.append(f"s_cbranch_scc1 {lD}")
            o += Fpatch(q0); o.append(f"s_branch {lE}")
            o.append(lD + ":")
        o += Dpatch(q0)
        o.append(lE + ":")
        o.append("s_nop 1")
        return o


    def sm_gaps1(qs, srcpar, dstpar, look):
        g = [[] for _ in range(34)]
        src = lambda k: Sreg(qs[k//4], (k % 4)//2, srcpar) + 2*(k % 2)
        pr = lambda k: Preg(qs[k//4], dstpar) + k % 4
        for k in range(8):
            en = E + 2*((k+1) % 2); ec = E + 2*(k % 2)
            cv = f"v_cvt_pk_bf16_f32 v{pr(k)}, v{ec}, v{ec+1}"
            orr = None
            if k % 2 == 1: orr = f"v_or_b32 v{TMP}, v{pr(0)}, v{pr(1)}" if k == 1 else f"v_or3_b32 v{TMP}, v{TMP}, v{pr(k-1)}, v{pr(k)}"
            if k < 7:
                g[4*k].append(f"v_exp_f32 v{en}, v{src(k+1)}"); g[4*k+2].append(f"v_exp_f32 v{en+1}, v{src(k+1)+1}")
                g[4*k+1].append(cv)
                if orr: g[4*k+3].append(orr)
            else:
                g[28] += [cv, orr]
                g[29].append(f"v_lshl_or_b32 v{TMP}, v{TMP}, 16, v{TMP}")
                g[30].append(f"v_cmp_le_u32 vcc, s{sTHR}, v{TMP}")
                if look: g[32].append(f"v_exp_f32 v{en}, v{look[0]}"); g[33].append(f"v_exp_f32 v{en+1}, v{look[1]}")
        return g
    def lmf(qps, rows, par, czero):
        return [(f"{MF} {ar(AL+4*r,4)}, {ar(AO,4)}, {vr(Preg(qp,par),4)}, {'0' if czero else ar(AL+4*r,4)}", None) for qp, r in zip(qps, rows)]

    def sm_gaps(qs, srcpar, dstpar, look, ladd):
        g = [[] for _ in range(32)]
        lsb = LS + (0 if qs[0] == 0 else 2)
        src = lambda k: Sreg(qs[k//4], (k % 4)//2, srcpar) + 2*(k % 2)
        for k in range(8):
            if k < 7: a, b = src(k+1), src(k+1)+1
            elif look: a, b = look
            else: a = None
            en = E + 2*((k+1) % 2); ec = E + 2*(k % 2)
            if a is not None:
                g[4*k].append(f"v_exp_f32 v{en}, v{a}"); g[4*k+2].append(f"v_exp_f32 v{en+1}, v{b}")
            ls = lsb + k//4
            if k % 4 == 0:
                g[4*k+1].append(f"v_add_f32 v{ls}, v{ec}, v{ec+1}")
                lr, lsr = ladd[k//4]
                g[4*k+1].append(f"v_add_f32 v{lr}, v{lr}, v{lsr}")
            else:
                g[4*k+1].append(f"v_add_f32 v{ls}, v{ls}, v{ec}"); g[4*k+1].append(f"v_add_f32 v{ls}, v{ls}, v{ec+1}")
            g[4*k+3].append(f"v_cvt_pk_bf16_f32 v{Preg(qs[k//4], dstpar) + k % 4}, v{ec}, v{ec+1}")
        if not NOCHK:
            if CHKE:
                e_a = g[28]; adds = g[29]; e_b = g[30]
                g[28] = adds; g[29] = [f"v_max_f32 v{TMP}, v{lsb}, v{lsb+1}", f"v_cmp_lt_f32 vcc, s{sTHR}, v{TMP}"]
                g[30] = e_a; g[31] = g[31] + e_b
            else:
                g[30].append(f"v_max_f32 v{TMP}, v{lsb}, v{lsb+1}")
                g[31].append(f"v_cmp_lt_f32 vcc, s{sTHR}, v{TMP}")
        return g

    def rescale(rows, init=False):
        o = ["s_nop 7"]
        D, D2, F = TMP+1, TMP+2, TMP+3
        for r in rows:
            s0 = r['S']
            o.append(f"v_max3_f32 v{D}, v{s0}, v{s0+1}, v{s0+2}")
            o.append(f"v_max3_f32 v{D}, v{D}, v{s0+3}, v{s0+4}")
            o.append(f"v_max3_f32 v{D}, v{D}, v{s0+5}, v{s0+6}")
            o.append(f"v_max_f32 v{D}, v{D}, v{s0+7}")
            o += [f"v_mov_b32 v{D2}, v{D}", "s_nop 1", f"v_permlane16_swap_b32 v{D}, v{D2}", f"v_max_f32 v{D}, v{D}, v{D2}"]
            o += [f"v_mov_b32 v{D2}, v{D}", "s_nop 1", f"v_permlane32_swap_b32 v{D}, v{D2}", f"v_max_f32 v{D}, v{D}, v{D2}"]
            o.append(f"v_ceil_f32 v{D}, v{D}")
            if ONES: o.append(f"v_add_f32 v{D}, {hex(f32bits(BIAS))}, v{D}")
            if not init:
                o.append(f"v_max_f32 v{D}, 0, v{D}")
                o.append(f"v_exp_f32 v{F}, -v{D}")
            for b in [s0] + r['subs']:
                for i in range(8): o.append(f"v_sub_f32 v{b+i}, v{b+i}, v{D}")
            if not init:
                qb = r['qb']
                for db in range(8):
                    for i in range(4): o.append(f"v_mul_f32 v{Oreg(db,qb)+i}, v{Oreg(db,qb)+i}, v{F}")
                if ONES:
                    for i in range(4): o += [f"v_accvgpr_read_b32 v{D2}, a{AL+4*qb+i}", f"v_mul_f32 v{D2}, v{D2}, v{F}", f"v_accvgpr_write_b32 a{AL+4*qb+i}, v{D2}"]
                else: o.append(f"v_mul_f32 v{L+qb}, v{L+qb}, v{F}")
                for pr in r.get('Pscale', []):
                    o += [f"v_lshlrev_b32 v{D2}, 16, v{pr}", f"v_and_b32 v{pr}, 0xffff0000, v{pr}", f"v_mul_f32 v{D2}, v{D2}, v{F}", f"v_mul_f32 v{pr}, v{pr}, v{F}",
                          f"v_cvt_pk_bf16_f32 v{pr}, v{D2}, v{pr}"]
            if r.get('P') is not None:
                ls = r['ls']
                for k in range(4):
                    o += [f"v_exp_f32 v{E}, v{s0+2*k}", f"v_exp_f32 v{E+1}, v{s0+2*k+1}", "s_nop 0"]
                    if ONES: pass
                    elif k == 0: o.append(f"v_add_f32 v{ls}, v{E}, v{E+1}")
                    else: o += [f"v_add_f32 v{ls}, v{ls}, v{E}", f"v_add_f32 v{ls}, v{ls}, v{E+1}"]
                    o.append(f"v_cvt_pk_bf16_f32 v{r['P']+k}, v{E}, v{E+1}")
        return o
    def relook(look):
        return [f"v_exp_f32 v{E}, v{look[0]}", f"v_exp_f32 v{E+1}, v{look[1]}", "s_nop 1"] if look else ["s_nop 1"]

    def check_site(code):
        ls, lb = U("SLOW"), U("BACK")
        if not NOCHK: A(f"s_cbranch_vccnz {ls}")
        A.label(lb)
        stubs.append([ls + ":"] + code + [f"s_branch {lb}"])

    def emit_half(mf, gaps, extra, waits):
        for g in range(len(mf)):
            if g in waits: A(waits[g])
            m, rd = mf[g]
            if m: A(m)
            elif g == 28: A("s_nop 0")
            if rd: A(rd)
            ex = extra.get(g, ([], []))
            for x in ex[0]: A(x)
            for x in ex[1]: A(x)
            for x in gaps[g]: A(x)

    def H1(par, mq, ms, ku, toggleK=None, vm=None, dmas=(), noqk=False, nosm=False, last=False, fill=None, czero=False):
        n = 1 - par
        mf = []
        if noqk: mf = [(None, None)]*32
        elif mq == 4:
            for f in range(8):
                kb, ds = f//4, f % 4
                for qp in range(4):
                    d = Sreg(qp, kb, n)
                    c = vr(CXr(qp, kb), 4) if ds == 0 else vr(d, 4)
                    mf.append((f"{MF} {vr(d,4)}, {ar(KF+4*f,4)}, {ar(AQ+(qp*4+ds)*4,4)}, {c}", kread(f, ku[0]) if qp == 3 else None))
        else:
            for j in range(16):
                sel, f = j//8, j % 8
                kb, ds = f//4, f % 4
                for qb in range(2):
                    qp = 2*sel + qb
                    d = Sreg(qp, kb, n)
                    c = vr(CXr(qp, kb), 4) if ds == 0 else vr(d, 4)
                    rd = None
                    if qb == 1 and not (last and sel == 1): rd = kread(f, ku[sel])
                    mf.append((f"{MF} {vr(d,4)}, {ar(KF+4*f,4)}, {ar(AQ+(qb*4+ds)*4,4)}, {c}", rd))
        look = None if noqk else (Sreg(0, 0, n), Sreg(0, 0, n)+1)
        if nosm:
            gaps = [list(fill[2*g:2*g+2]) if fill else [] for g in range(32)]
        else:
            if ONES:
                gaps = sm_gaps1((2, 3), par, par, look); mf = list(mf) + lmf((0, 1), (0, 1), par, czero)
            else: gaps = sm_gaps((2, 3), par, par, look, [(L+0, LS+0), (L+1, LS+1)])
        extra = {}
        waits = {}
        if not noqk:
            waits[0] = "s_waitcnt lgkmcnt(8)"
            if mq == 2: waits[16] = "s_waitcnt lgkmcnt(4)"; waits[24] = "s_waitcnt lgkmcnt(4)"
        if vm is not None:
            extra[BARPOS] = ([], [f"s_waitcnt vmcnt({vm})"] + ([] if NOBAR else ["s_barrier"]))
        if toggleK is not None:
            gi = 0 if toggleK == 0 else 16
            e = extra.setdefault(gi, ([], [])); e[1].append(f"v_xor_b32 v{VK}, 0x8000, v{VK}")
        place_dmas(extra, dmas)
        emit_half(mf, gaps, extra, waits)
        if not nosm:
            rows = []
            for qq in range(2):
                qp = 2 + qq
                r = dict(S=Sreg(qp, 0, par), P=Preg(qp, par), ls=LS+2+qq)
                if ms == 4:
                    r['qb'] = qp
                    r['subs'] = ([Sreg(qp, 0, n), CXr(qp, 0)] if (mq == 4 and not noqk) else [])
                else:
                    r['qb'] = qq
                    r['subs'] = [CXr(qq, 0), CXr(qp, 0)] + ([] if noqk else [Sreg(qq, 0, n), Sreg(qp, 0, n)])
                    r['Pscale'] = [Preg(qq, par)+k for k in range(4)]
                rows.append(r)
            check_site(rescale(rows) + relook(look))

    def place_dmas(extra, dmas):
        for c, g0 in dmas:
            pre, d, post = dma_group(c)
            if ONES:
                for j in range(4): extra.setdefault(3 + 8*j, ([], []))[0].append(d[j])
                extra.setdefault(30, ([], []))[1].extend(post[:1])
                extra.setdefault(31, ([], []))[1].extend(post[1:] + dma_group(c+1)[0])
                continue
            e = extra.setdefault(g0, ([], [])); e[1].extend(pre)
            for j in range(4):
                e = extra.setdefault(g0+1+4*j if g0+1+4*j < 32 else 31, ([], [])); e[0].append(d[j])
            e = extra.setdefault(min(31, g0+2+12), ([], [])); e[1].extend(post)

    def H2(par, mp, mnext, vu, toggleV=None, dmas=(), nopv=False, nosm=False, czero=False):
        n = 1 - par
        mf = []
        if nopv: mf = [(None, None)]*32
        elif mp == 4:
            for db in range(8):
                for qp in range(4):
                    d = Oreg(db, qp)
                    mf.append((f"{MF} {vr(d,4)}, {ar(VF+4*db,4)}, {vr(Preg(qp,par),4)}, {'0' if czero else vr(d,4)}", vread(db, vu[0]) if qp == 3 else None))
        else:
            for j in range(16):
                sel, db = j//8, j % 8
                for qb in range(2):
                    d = Oreg(db, qb)
                    rd = None
                    if qb == 1 and not (nosm and sel == 1): rd = vread(db, vu[sel])
                    mf.append((f"{MF} {vr(d,4)}, {ar(VF+4*db,4)}, {vr(Preg(2*sel+qb,par),4)}, {vr(d,4)}", rd))
        look = (Sreg(2, 0, n), Sreg(2, 0, n)+1)
        lt = (L+2, L+3) if mp == 4 else (L+0, L+1)
        if nosm:
            gaps = [[] for _ in range(34)]
            if not ONES: gaps[1] = [f"v_add_f32 v{lt[0]}, v{lt[0]}, v{LS+2}", f"v_add_f32 v{lt[1]}, v{lt[1]}, v{LS+3}"]
        elif ONES: gaps = sm_gaps1((0, 1), n, n, look)
        else:
            gaps = sm_gaps((0, 1), n, n, look, [(lt[0], LS+2), (lt[1], LS+3)])
        if ONES: mf = list(mf) + (lmf((2, 3), (2, 3) if mp == 4 else (0, 1), par, czero) if not nopv else [(None, None)]*2)
        extra = {}
        waits = {}
        if not nopv:
            waits[0] = "s_waitcnt lgkmcnt(8)" if not nosm else "s_waitcnt lgkmcnt(0)"
            if mp == 2: waits[16] = "s_waitcnt lgkmcnt(4)"; waits[24] = "s_waitcnt lgkmcnt(4)" if not nosm else "s_waitcnt lgkmcnt(0)"
        if toggleV is not None:
            gi = 0 if toggleV == 0 else 16
            e = extra.setdefault(gi, ([], [])); e[1].append(f"v_xor_b32 v{VV}, 0x8000, v{VV}")
        place_dmas(extra, dmas)
        emit_half(mf, gaps, extra, waits)
        if not nosm and not nopv:
            rows = []
            for qb in range(2):
                r = dict(S=Sreg(qb, 0, n), P=Preg(qb, n), ls=LS+qb, qb=qb, subs=[CXr(qb, 0)])
                if mnext == 2: r['subs'] += [Sreg(qb+2, 0, n), CXr(qb+2, 0)]
                rows.append(r)
            check_site(rescale(rows) + relook(look))

    def hook(cond_reg, val, code):
        ls, lb = U("HOOK"), U("HB")
        A(f"s_cmp_eq_u32 s{cond_reg}, {val}\ns_cbranch_scc1 {ls}")
        A.label(lb)
        stubs.append([ls + ":"] + code + [f"s_branch {lb}"])

    hook(sI, 0, patch(2, 0))
    if ONES:
        A(f"v_mov_b32 v{TMP}, 0x3f803f80")
        for i in range(4): A(f"v_accvgpr_write_b32 a{AO+i}, v{TMP}")
    if EPQ:
        for x in e0 + q_epi(1): A(x)
        e0 = q_epi(2)
    A(f"s_cmp_eq_u32 s{sRDY}, 0\ns_cbranch_scc1 K2_KLATE")
    A.label("K2_KOK")
    stubs.append(["K2_KLATE:", f"s_cmp_eq_u32 s{sW}, 0", "s_cbranch_scc1 K2_KSPIN_F", f"s_mov_b32 s{sT1}, 0", "K2_KL:", f"ds_read_b32 v{TMP+7}, v{TMP+5}", "s_waitcnt lgkmcnt(0)", f"v_cmp_ne_u32 vcc, 1, v{TMP+7}",
                  f"s_add_u32 s{sT1}, s{sT1}, 1", f"s_cmp_ge_u32 s{sT1}, 0x100000", "s_cbranch_scc1 K2_KGO", "s_sleep 1", "s_cbranch_vccnz K2_KL", "s_branch K2_KGO"])
    spin("K2_KSPIN", TMP+7, TMP+4, 0, 16)
    stubs.append(["K2_KSPIN_B:", f"v_mov_b32 v{TMP+6}, 1", f"ds_write_b32 v{TMP+5}, v{TMP+6}", "K2_KGO:"] + kv_init(0) + kv_init(1) + kv_init(2) + kv_init(3) + ["s_branch K2_KOK"])
    for x in e0: A(x)
    A("s_waitcnt vmcnt(0)\ns_barrier")
    if asmlib.STAMP: A("s_memrealtime s[68:69]")
    for f in range(8): A(kread(f, 0))
    for f in range(8): A(vread(f, 2))
    e3 = q_epi(3)
    if EPQ:
        for x in e3[:16]: A(x)
    A("s_waitcnt lgkmcnt(8)")
    for ds in range(4):
        p_, d_, po_ = dma_group(4 + ds if LATEKV else 7)
        ep = q_epi(ds+1) if ds < 3 else []
        if EPQ: ep = [y for k in range(8) for y in (e3[16+16*ds+2*k:16+16*ds+2*k+2] + [None]*6)] if ds < 3 else []
        mfs = []
        for kb in range(2):
            f = kb*4 + ds
            for qp in range(4):
                d = Sreg(qp, kb, 0)
                mfs.append([f"{MF} {vr(d,4)}, {ar(KF+4*f,4)}, {ar(AQ+(qp*4+ds)*4,4)}, {vr(CXr(qp,kb),4) if ds == 0 else vr(d,4)}"] + ([kread(f, 1)] if qp == 3 else []))
        if ds == 0 or LATEKV: mfs[0] = p_ + ["s_nop 0"] + mfs[0]
        if ds == 0 or LATEKV:
            for j in range(4): mfs[1+j] = mfs[1+j] + [d_[j]]
            mfs[6] = mfs[6] + po_
        if ds == 3: A("s_nop 1")
        for k in range(8):
            for x in mfs[k]: A(x)
            for x in ep[8*k:8*k+8]:
                if x: A(x)
    rows = []
    for qp in range(4): rows.append(dict(S=Sreg(qp, 0, 0), subs=[CXr(qp, 0)], P=None))
    for x in rescale(rows, init=True): A(x)
    A(f"v_exp_f32 v{E}, v{Sreg(0,0,0)}\nv_exp_f32 v{E+1}, v{Sreg(0,0,0)+1}")
    H2(1, 4, 4, None, nopv=True)
    stamp(A, 4)
    A(f"s_mov_b32 s{sCNT}, s{sI}")
    if ONES: A(dma_group(8)[0][0])
    A("s_waitcnt lgkmcnt(0)")

    def finalize(qbs, OB, VLANE):
        assert not ONES
        for qb in qbs:
            D, D2 = L+qb, TMP+1
            A(f"v_mov_b32 v{D2}, v{D}\ns_nop 1\nv_permlane16_swap_b32 v{D}, v{D2}\nv_add_f32 v{D}, v{D}, v{D2}")
            A(f"v_mov_b32 v{D2}, v{D}\ns_nop 1\nv_permlane32_swap_b32 v{D}, v{D2}\nv_add_f32 v{D}, v{D}, v{D2}")
            A(f"v_rcp_f32 v{D}, v{D}")
        oq = 0
        for qb in qbs:
            for ds in range(4):
                ob = OB(qb, ds) if callable(OB) else OB + 4*oq
                for h in range(2):
                    b = Oreg(2*ds+h, qb)
                    for i in range(4): A(f"v_mul_f32 v{b+i}, v{b+i}, v{L+qb}")
                for h in range(2):
                    b = Oreg(2*ds+h, qb)
                    A(f"v_cvt_pk_bf16_f32 v{ob+2*h}, v{b}, v{b+1}\nv_cvt_pk_bf16_f32 v{ob+2*h+1}, v{b+2}, v{b+3}")
                A(f"s_add_u32 s{sT0}, s{sOHI if qb < 2 else sOLO}, {ds*4096}")
                A(f"buffer_store_dwordx4 {vr(ob,4)}, v{VLANE}, s[{S_WS}:{S_WS+3}], s{sT0} offen offset:{(qb%2)*1024}{store_flags}")
                oq = (oq+1) % 4

    def period44(r, pre=None, czero=False):
        par = r % 2
        if pre: pre()
        ku = (r+2) % 4; vu = (r+1+2) % 4
        H1(par, 4, 4, [ku], toggleK=0 if ku == 0 else None, vm=16, dmas=[(r, 8)], czero=czero)
        H2(par, 4, 4, [vu], toggleV=0 if vu == 0 else None, czero=czero)

    period44(0, pre=lambda: hook(sI, 0, patch(2, 1)), czero=True)
    A(f"s_cmp_eq_u32 s{sCNT}, 0\ns_cbranch_scc1 K2_SPECIAL_R1\ns_branch K2_LOOPA_R1")
    A(".p2align 6")
    A.label("K2_LOOPA")
    for r in range(4):
        if r == 1: A.label("K2_LOOPA_R1")
        period44(r, pre=(lambda: hook(sCNT, 1, patch(2, 0))) if r == 3 else None)
    A(f"s_sub_u32 s{sCNT}, s{sCNT}, 1\ns_cmp_lg_u32 s{sCNT}, 0\ns_cbranch_scc1 K2_LOOPA")
    A.label("K2_SPECIAL")
    for r in range(3):
        if r == 1: A.label("K2_SPECIAL_R1")
        period44(r, pre=lambda: [A(x) for x in patch(2, r+1)])
    A(f"s_cmp_lt_u32 s{sW}, 2\ns_cselect_b32 s{S_T}, s{P_WO}, s{P_WD}\ns_cselect_b32 s{S_T+1}, s{P_WO+1}, s{P_WD+1}\ns_mov_b32 s{sT0}, {1376*1024}\ns_cselect_b32 s{S_T+2}, {4096*1024}, s{sT0}")
    A(f"s_mul_i32 s{sT0}, s2, {43*128}\ns_lshl_b32 s{sT1}, s2, 14\ns_cselect_b32 s{sT0}, s{sT1}, s{sT0}".replace("s_lshl_b32 s{sT1}, s2, 14".format(sT1=sT1), f"s_mul_i32 s{sT1}, s2, 16384"))
    A(f"s_and_b32 s{sT1}, s{sW}, 1\ns_lshl_b32 s{sT1}, s{sT1}, 13\ns_add_u32 s{sT0}, s{sT0}, s{sT1}\nv_and_b32 v{TMP+7}, 0x3ff, v{VK}\nv_lshlrev_b32 v{TMP+7}, 3, v{TMP+7}")
    A(f"buffer_load_dword v{TMP+7}, v{TMP+7}, s[{S_T}:{S_T+3}], s{sT0} offen")
    if CT:
        A(f"v_and_b32 v{TMP+6}, 0x3ff, v{VK}")
        code_touch(A, "K3_START" if FULL else "k3_kernel", "K2_END" if FULL else "K4_END", sW, TMP+6, TMP+6, 88, lane_shift=4)
    if CTX_TOUCH:
        A(f"v_lshrrev_b32 v{TMP+6}, 8, v{VK}\nv_and_b32 v{TMP+6}, 3, v{TMP+6}\nv_lshlrev_b32 v{TMP+6}, 12, v{TMP+6}\nv_and_b32 v{TMP+5}, 0xf0, v{VK}\nv_lshl_add_u32 v{TMP+6}, v{TMP+5}, 3, v{TMP+6}")
        A(f"buffer_load_dword v{TMP+5}, v{TMP+6}, s[{S_WS}:{S_WS+3}], s{sOHI} offen\nbuffer_load_dword v{TMP+6}, v{TMP+6}, s[{S_WS}:{S_WS+3}], s{sOLO} offen")
    for i in range(16): A(f"v_mov_b32 v{CXr(2,0)+i}, v{CXr(0,0)+i}")
    hook(sI, 7, patch(0, 0) + patch(2, 1))
    A("s_nop 1")
    H1(1, 2, 4, [1, 2], vm=16, dmas=[(3, 8)])
    H2(1, 4, 2, [2])
    if ELO:
        A(f"v_and_b32 v{TMP+2}, 0x3ff, v{VK}")
        finalize((2, 3), lambda qb, ds: Oreg(2*ds, qb), TMP+2)
        A(f"s_cmp_eq_u32 s{sW}, 0\ns_cselect_b32 s87, 2, 0x40000000")
    stamp(A, 5)
    A(f"s_lshl_b32 s{sT0}, s{sI}, 1\ns_sub_u32 s{sCNT}, 14, s{sT0}")
    def period22(r, last_qk=False):
        par = r
        ku = [3, 0] if r == 0 else [1, 2]
        vu = [3, 0] if r == 0 else [1, 2]
        c0 = 2*r
        H1(par, 2, 2, ku, toggleK=1 if r == 0 else None, vm=12, dmas=[(c0, 8)], last=last_qk)
        H2(par, 2, 2, vu, toggleV=1 if r == 0 else None, dmas=[(c0+1, 8)])
    A(f"s_cmp_eq_u32 s{sCNT}, 0\ns_cbranch_scc1 K2_TAIL")
    A(".p2align 6")
    A.label("K2_LOOPB")
    period22(0)
    hook(sCNT, 1, patch(0, 0) + patch(2, 1))
    period22(1)
    A(f"s_sub_u32 s87, s87, 1")
    hook(87, 0, [f"s_mov_b32 s39, {CNT_BASE}", f"s_lshl_b32 s{sT0}, s{sI}, 7", f"v_mov_b32 v{TMP+5}, s{sT0}", f"v_mov_b32 v{TMP+6}, 1", "s_mov_b64 exec, 1", f"buffer_atomic_add v{TMP+6}, v{TMP+5}, s[{S_WS}:{S_WS+3}], s39 offen sc1", "s_mov_b64 exec, -1"])
    A(f"s_sub_u32 s{sCNT}, s{sCNT}, 1\ns_cmp_lg_u32 s{sCNT}, 0\ns_cbranch_scc1 K2_LOOPB")
    A.label("K2_TAIL")
    for x in patch(0, 2) + patch(2, 3): A(x)
    H1(0, 2, 2, [3, 0], toggleK=None, vm=12, last=True)
    H2(0, 2, 2, [3, 0], toggleV=1)
    H1(1, 2, 2, None, noqk=True, vm=0)
    A("s_sub_u32 s87, s87, 1\ns_cmp_ge_u32 s87, 2\ns_cbranch_scc1 K2_NOLO")
    for x in [f"s_mov_b32 s39, {CNT_BASE}", f"s_lshl_b32 s{sT0}, s{sI}, 7", f"v_mov_b32 v{TMP+5}, s{sT0}", f"v_mov_b32 v{TMP+6}, 1", "s_mov_b64 exec, 1", f"buffer_atomic_add v{TMP+6}, v{TMP+5}, s[{S_WS}:{S_WS+3}], s39 offen sc1", "s_mov_b64 exec, -1"]: A(x)
    A.label("K2_NOLO")
    H2(1, 2, 2, [1, 2], nosm=True)
    stamp(A, 6)
    A(f"v_and_b32 v{VK}, 0x3ff, v{VK}")
    finalize((0, 1), S01, VK)
    A.label("K3_START")
    st = (lambda r: A(f"s_memrealtime s[{r}:{r+1}]")) if (asmlib.STAMP and not QD) else (lambda r: None)
    RING, AD, NJ = 16, int(os.environ.get('AD3', '8')), 22
    areg = (lambda b, n: vr(b, n)) if AD == 8 else (lambda b, n: ar(b - 160 + 16, n))
    LW, LA = 11, AD - 1
    ACC3, WF3, AR3, TRA, VD3, T3, VX = [0, 64], 128, 160, 224, 240, 245, 253
    LN3 = T3
    S_W, S_X, S_O = 8, 40, 44
    sSP, sTM, sTN, sWO, sAO, sM3, sOB3, sT2, sPAD, sRD2, sTL = 35, 21, 22, 23, 24, 25, 26, 27, 32, 33, 34
    A(f"s_load_dwordx2 s[28:29], s[0:1], 0\ns_load_dwordx2 s[30:31], s[0:1], 80")
    A(f"s_and_b32 s{sSP}, s2, 7\ns_lshr_b32 s{sT1}, s2, 3\ns_and_b32 s{sTM}, s{sT1}, 7\ns_lshr_b32 s{sTN}, s2, 6")
    A(f"s_mul_i32 s{sT0}, s{sSP}, 21\ns_min_u32 s{sT1}, s{sSP}, 2\ns_add_u32 s{sT0}, s{sT0}, s{sT1}")
    A(f"s_cmp_eq_u32 s{sSP}, 7\ns_cselect_b32 s{sT0}, 150, s{sT0}")
    A(f"s_cmp_lt_u32 s{sSP}, 2\ns_cselect_b32 s{sPAD}, 0, 4096\ns_cmp_eq_u32 s{sSP}, 6\ns_cselect_b32 s{sPAD}, 0, s{sPAD}")
    A(f"s_sub_u32 s{sT1}, s{sT0}, 128\ns_cmp_ge_u32 s{sSP}, 6\ns_cselect_b32 s{sT1}, s{sT1}, s{sT0}\ns_cselect_b32 s{S_W}, s{P_WD}, s{P_WO}\ns_cselect_b32 s{S_W+1}, s{P_WD+1}, s{P_WO+1}\ns_cselect_b32 s{sRD2}, 1, 0\ns_mov_b32 s{S_W+3}, 0x00020000")
    A(f"s_add_u32 s{sT2}, s{sT1}, 22\ns_lshl_b32 s{sT2}, s{sT2}, 15\ns_lshl_b32 s{S_W+2}, s{sPAD}, 3\ns_sub_u32 s{S_W+2}, s{sT2}, s{S_W+2}")
    A(f"s_lshl_b32 s{sT2}, s{sTM}, 1\ns_lshr_b32 s{sAO}, s{sW}, 1\ns_add_u32 s{sT2}, s{sT2}, s{sAO}\ns_mul_i32 s{sAO}, s{sT2}, {A3_TB64}\ns_lshl_b32 s{sT0}, s{sT0}, 12\ns_add_u32 s{sAO}, s{sAO}, s{sT0}")
    A(f"s_and_b32 s{sT2}, s{sW}, 1\ns_lshl_b32 s{sT2}, s{sT2}, 11\ns_add_u32 s{sAO}, s{sAO}, s{sT2}\ns_add_u32 s{sAO}, s{sAO}, {A3_BASE}")
    A(f"s_lshl_b32 s{sWO}, s{sT1}, 15\ns_lshl_b32 s{sT2}, s{sW}, 13\ns_add_u32 s{sWO}, s{sWO}, s{sT2}\ns_lshl_b32 s{sT2}, s{sTN}, 8\ns_add_u32 s{sWO}, s{sWO}, s{sT2}\ns_lshl_b32 s{sM3}, s{sW}, 11")
    A(f"v_lshrrev_b32 v{LN3}, 4, v{VK}")
    A(f"v_lshrrev_b32 v{T3+2}, 4, v{LN3}\nv_and_b32 v{T3+3}, 15, v{LN3}\nv_lshlrev_b32 v{T3+4}, 1, v{T3+2}\nv_xor_b32 v{T3+3}, v{T3+3}, v{T3+4}\nv_lshlrev_b32 v{T3+2}, 10, v{T3+2}\nv_lshl_add_u32 v{VD3}, v{T3+3}, 4, v{T3+2}")
    A(f"v_xor_b32 v{T3+2}, 128, v{VD3}\nv_add_u32 v{VD3+1}, 3072, v{T3+2}")
    A(f"s_mov_b32 s39, {CNT_BASE}\ns_lshl_b32 s{sT0}, s{sTM}, 7\nv_mov_b32 v{T3+5}, s{sT0}\nbuffer_load_dword v{T3+1}, v{T3+5}, s[{S_WS}:{S_WS+3}], s39 offen sc1\ns_barrier")
    seq3 = [('P', 0)]
    def wl(s_):
        seq3.extend([('W', s_)]*2)
        return [[f"s_add_u32 m0, s{sM3}, {(s_ % RING)*8192}", f"s_add_u32 s{sT1}, s{sWO}, {(s_ % NJ)*32768}"],
                [f"buffer_load_dwordx4 v{VD3}, s[{S_W}:{S_W+3}], s{sT1} offen lds"], [f"buffer_load_dwordx4 v{VD3+1}, s[{S_W}:{S_W+3}], s{sT1} offen offset:1024 lds"]]
    def al(s_, track=True):
        if track: seq3.extend([('A', s_)]*2)
        off = (s_ % NJ)*4096 + (s_ // NJ)*16*A3_TB64
        pre = [f"s_add_u32 s{sT0}, s{sAO}, {off}"] + ([f"s_sub_u32 s{sT0}, s{sT0}, s{sPAD}"] if s_ % NJ == NJ-1 else [])
        return [pre] + [[f"buffer_load_dwordx4 {areg(AR3+(s_%AD)*8+4*t,4)}, v{VK}, s[{S_WS}:{S_WS+3}], s{sT0} offen offset:{t*1024}{AS}"] for t in range(2)]
    def vm3(tag): return min(63, len(seq3) - 1 - max(i for i, e in enumerate(seq3) if e == tag))
    def emit3(its):
        for it in its:
            for x in it: A(x)
    flat = lambda its: [x for it in its for x in it]
    for s_ in range(4): emit3(wl(s_))
    A(f"v_lshrrev_b32 v{T3+2}, 2, v{LN3}\nv_and_b32 v{T3+3}, 7, v{T3+2}\nv_lshlrev_b32 v{T3+2}, 8, v{T3+2}\nv_and_b32 v{T3+4}, 3, v{LN3}\nv_lshl_add_u32 v{T3+2}, v{T3+4}, 3, v{T3+2}")
    for nb in range(8): A(f"v_xor_b32 v{T3+4}, {nb}, v{T3+3}\nv_lshl_add_u32 v{TRA+nb}, v{T3+4}, 5, v{T3+2}\nv_add_u32 v{TRA+8+nb}, 0x10000, v{TRA+nb}")
    A(f"s_waitcnt vmcnt({vm3(('P', 0))})\nv_cmp_ne_u32 vcc, 32, v{T3+1}\ns_cmp_eq_u32 s{sRD2}, 1\ns_cbranch_scc1 K3_LSPIN_B\ns_cbranch_vccnz K3_LSPIN")
    A.label("K3_LSPIN_B")
    spin("K3_LSPIN", T3+1, T3+5, 0, 32, srd=f"s[{S_WS}:{S_WS+3}]", so="s39", slp=SLP2)
    for s_ in range(LA): emit3(al(s_))
    A(f"s_lshl_b32 s{sT0}, s{sI}, 7\ns_sub_u32 s{sT0}, {15*128}, s{sT0}\nv_mov_b32 v{T3+2}, s{sT0}\nv_mov_b32 v{T3+4}, 1\nv_add_u32 v{T3+5}, 1024, v{T3+5}")
    A(f"s_waitcnt vmcnt({vm3(('W', 0))}) lgkmcnt(0)\ns_barrier")
    A(f"s_cmp_lg_u32 s{sW}, 0\ns_cbranch_scc1 K3_NOSIG\ns_mov_b64 exec, 1\nbuffer_atomic_add v{T3+4}, v{T3+2}, s[{S_WS}:{S_WS+3}], s39 offen sc1\ns_mov_b64 exec, -1")
    A.label("K3_NOSIG")
    st(96)
    def tr3(nb, s_):
        off = (s_ % RING)*8192; hi = off // 65536; off %= 65536
        return [f"ds_read_b64_tr_b16 {vr(WF3+4*nb,2)}, v{TRA+8*hi+nb} offset:{off}", f"ds_read_b64_tr_b16 {vr(WF3+4*nb+2,2)}, v{TRA+8*hi+nb} offset:{off+4096}"]
    for nb in range(8):
        for x in tr3(nb, 0): A(x)
    for s_ in range(4, LW): emit3(wl(s_))
    A(f"s_mov_b32 s{S_X}, s28\ns_mov_b32 s{S_X+1}, s29\ns_mov_b32 s{S_X+2}, 0x200000\ns_mov_b32 s{S_X+3}, 0x00020000\ns_mov_b32 s{S_O}, s30\ns_mov_b32 s{S_O+1}, s31\ns_mov_b32 s{S_O+2}, 0x200000\ns_mov_b32 s{S_O+3}, 0x00020000")
    A(f"s_lshl_b32 s{sT0}, s{sTM}, 17\ns_lshl_b32 s{sT1}, s{sSP}, 14\ns_add_u32 s{sT0}, s{sT0}, s{sT1}\ns_lshl_b32 s{sT1}, s{sTN}, 8\ns_add_u32 s{sT0}, s{sT0}, s{sT1}\ns_lshl_b32 s{sT1}, s{sW}, 6\ns_add_u32 s{sT0}, s{sT0}, s{sT1}")
    A(f"v_and_b32 v{T3+2}, 15, v{LN3}\nv_lshrrev_b32 v{T3+3}, 4, v{LN3}\nv_lshlrev_b32 v{T3+2}, 10, v{T3+2}\nv_lshl_add_u32 v{T3+2}, v{T3+3}, 3, v{T3+2}\nv_add_u32 v{VX}, s{sT0}, v{T3+2}\ns_mov_b32 s{sT2}, 0x100000")
    for jb in range(2):
        for h in range(2):
            A(f"buffer_load_dwordx2 {ar(4*jb+2*h,2)}, v{VX}, s[{S_X}:{S_X+3}], {'s%d' % sT2 if jb else '0'} offen offset:{h*32}"); seq3.append(('X', 0))
    A(f"s_lshl_b32 s{sTL}, s{sTM}, 2\ns_add_u32 s{sTL}, s{sTL}, s{sTN}\ns_lshl_b32 s{sT0}, s{sTL}, 7\ns_add_u32 s{sT0}, s{sT0}, 2048\nv_mov_b32 v{T3+6}, s{sT0}\nv_add_u32 v{T3+7}, 4096, v{T3+6}")
    A(f"s_lshl_b32 s{sTL}, s{sTL}, 18\ns_add_u32 s{sTL}, s{sTL}, {P2_BASE}\ns_lshl_b32 s{sT0}, s{sSP}, 15\ns_lshl_b32 s{sT1}, s{sW}, 13\ns_add_u32 s{sOB3}, s{sTL}, s{sT0}\ns_add_u32 s{sOB3}, s{sOB3}, s{sT1}")
    def epi3(jb):
        o = []
        for np_ in range(4):
            for t in range(2):
                b0 = ACC3[jb] + ((2*np_)*2 + t)*4; b1 = ACC3[jb] + ((2*np_+1)*2 + t)*4
                o += [f"v_cvt_pk_bf16_f32 v{b0}, v{b0}, v{b0+1}", f"v_cvt_pk_bf16_f32 v{b0+1}, v{b0+2}, v{b0+3}", f"v_cvt_pk_bf16_f32 v{b0+2}, v{b1}, v{b1+1}", f"v_cvt_pk_bf16_f32 v{b0+3}, v{b1+2}, v{b1+3}"]
                if t == 0 and np_ % 2 == 0: o.append(f"s_add_u32 s36, s{sOB3}, {jb*(8 << 20) + np_*2048}")
                o.append(f"buffer_store_dwordx4 {vr(b0,4)}, v{VK}, s[{S_WS}:{S_WS+3}], s36 offen offset:{(np_%2)*2048 + t*1024} sc1")
        return o
    eA = epi3(0)
    NS = 2*NJ; EB = NJ - 4
    lateB = [n for n in range(NJ, NJ + 4)]; nxtB = NJ + 4
    for s_ in range(NS):
        jb = s_ // NJ
        extra = {}
        if s_ == NJ:
            A(f"s_cmp_eq_u32 s{sRD2}, 0\ns_cbranch_scc1 K3_HSPIN_F")
            A.label("K3_HOK")
            spin("K3_HSPIN", T3+1, T3+5, 0, 32, srd=f"s[{S_WS}:{S_WS+3}]", so="s39", slp=SLP2)
            stubs.append(["K3_HSPIN_B:"] + [x for n in lateB for x in flat(al(n, False))] + ["s_branch K3_HOK"])
            for n in lateB: seq3.extend([('A', n)]*2)
            st(98)
        A(f"s_waitcnt vmcnt({vm3(('A', s_))}) lgkmcnt(8)")
        if s_ % 2 == 0:
            extra[0] = [f"s_waitcnt vmcnt({min(vm3(('W', min(s_+2, NS-1))), vm3(('SA', 0)) if ('SA', 0) in seq3 and s_ == NJ+8 else 63)})", "s_barrier"]
            if s_ == NJ + 8:
                extra[0] += [f"s_cmp_lg_u32 s{sW}, 0", "s_cbranch_scc1 K3_NOSA", "s_mov_b64 exec, 1", f"buffer_atomic_add v{T3+4}, v{T3+6}, s[{S_WS}:{S_WS+3}], s39 offen sc1", "s_mov_b64 exec, -1", "K3_NOSA:"]
        extra[6] = ["s_waitcnt lgkmcnt(6)"]
        its = []
        if s_ + LW < NS: its += wl(s_ + LW)
        ta = s_ + LA
        if ta < NJ: its += al(ta)
        elif s_ >= NJ:
            for _ in range(2):
                if nxtB <= min(ta, NS-1): its += al(nxtB); nxtB += 1
        if s_ == EB - 3: its.append([f"buffer_load_dword v{T3+1}, v{T3+5}, s[{S_WS}:{S_WS+3}], s39 offen sc1"]); seq3.append(('P', 1))
        if s_ == EB - 1:
            its.append([f"s_waitcnt vmcnt({vm3(('P', 1))})", f"v_cmp_ne_u32 vcc, 32, v{T3+1}"])
            its.append(["s_cmp_eq_u64 vcc, 0", f"s_cselect_b32 s{sRD2}, 1, s{sRD2}"])
        if EB <= s_ < NJ:
            lab = U("NB")
            its.append([f"s_cmp_eq_u32 s{sRD2}, 0", f"s_cbranch_scc1 {lab}"] + flat(al(NJ + s_ - EB, False)) + [lab + ":"])
        g_ = 2
        for it in its:
            extra.setdefault(g_, []).extend(it); g_ = min(14, g_ + 2) if g_ != 4 else 8
        if NJ + 1 <= s_ and eA:
            for g2 in (2, 4, 8, 10, 12, 14):
                for _ in range(2):
                    if eA:
                        x = eA.pop(0); extra.setdefault(g2, []).append(x)
                        if x.startswith('buffer'): seq3.append(('SA', 0))
        for nb in range(8):
            for t in range(2):
                g = nb*2 + t; d_ = ACC3[jb] + g*4
                A(f"{MF} {vr(d_,4)}, {vr(WF3+4*nb,4)}, {areg(AR3+(s_%AD)*8+4*t,4)}, {'0' if s_ % NJ == 0 else vr(d_,4)}")
                if t == 1 and s_ + 1 < NS:
                    for x in tr3(nb, s_+1): A(x)
                for x in extra.get(g, []): A(x)
    assert not eA
    A(f"buffer_load_dword v{T3+1}, v{T3+6}, s[{S_WS}:{S_WS+3}], s39 offen sc1\ns_nop 4")
    for x in epi3(1): A(x)
    PK, R = 128, 0
    def unpack(dst, src, n=4, s='v'):
        for i in range(n): A(f"v_lshlrev_b32 v{dst+2*i}, 16, v{src+i}\nv_and_b32 v{dst+2*i+1}, 0xffff0000, v{src+i}")
    def comb_loads(jb):
        A(f"s_lshr_b32 s{sT0}, s{sSP}, 1\ns_lshl_b32 s{sT0}, s{sT0}, 13\ns_and_b32 s{sT1}, s{sSP}, 1\ns_lshl_b32 s{sT1}, s{sT1}, 10\ns_add_u32 s{sT0}, s{sT0}, s{sT1}\ns_lshl_b32 s{sT1}, s{sW}, 11\ns_add_u32 s{sT0}, s{sT0}, s{sT1}\ns_add_u32 s{sT0}, s{sT0}, s{sTL}")
        for sp in (6, 7, 0, 1, 2, 3, 4, 5):
            A(f"s_add_u32 s{sT1}, s{sT0}, {jb*(8 << 20) + sp*32768}\nbuffer_load_dwordx4 {vr(PK+4*sp,4)}, v{VK}, s[{S_WS}:{S_WS+3}], s{sT1} offen sc1")
    def comb(jb):
        D, G_, XU, SS = 160, 176, 184, 192
        for i in range(4): A(f"v_accvgpr_read_b32 v{SS+i}, a{4*jb+i}")
        unpack(XU, SS)
        A("s_waitcnt vmcnt(6)")
        unpack(D, PK+24); unpack(D+8, PK+28)
        for i in range(8): A(f"v_add_f32 v{D+i}, v{D+i}, v{D+8+i}")
        for i in range(8): A(f"v_mul_f32 v{G_+i}, {hex(f32bits(-math.log2(math.e)))}, v{D+i}")
        for i in range(8): A(f"v_exp_f32 v{G_+i}, v{G_+i}")
        for i in range(8): A(f"v_add_f32 v{G_+i}, 1.0, v{G_+i}")
        for i in range(8): A(f"v_rcp_f32 v{G_+i}, v{G_+i}")
        for i in range(8): A(f"v_mul_f32 v{G_+i}, v{G_+i}, v{D+i}")
        A("s_waitcnt vmcnt(0)")
        unpack(SS, PK)
        for sp in range(1, 6):
            unpack(D, PK+4*sp)
            for i in range(8): A(f"v_add_f32 v{SS+i}, v{SS+i}, v{D+i}")
        for i in range(8): A(f"v_fmac_f32 v{XU+i}, v{SS+i}, v{G_+i}")
        for i in range(4): A(f"v_cvt_pk_bf16_f32 v{D+i}, v{XU+2*i}, v{XU+2*i+1}")
        for h in range(2): A(f"buffer_store_dwordx2 {vr(D+2*h,2)}, v{VX}, s[{S_O}:{S_O+3}], {'s%d' % sT2 if jb else '0'} offen offset:{h*32}")
    A(f"s_waitcnt vmcnt(8)\nv_cmp_ne_u32 vcc, 8, v{T3+1}\ns_cbranch_vccnz K4_LSPIN")
    A.label("K4_LSPIN_B")
    spin("K4_LSPIN", T3+1, T3+6, 0, 8, srd=f"s[{S_WS}:{S_WS+3}]", so="s39", slp=SLP2)
    comb_loads(0)
    A("s_waitcnt vmcnt(8)\ns_barrier")
    A(f"s_cmp_lg_u32 s{sW}, 0\ns_cbranch_scc1 K4_NOSIG\ns_mov_b64 exec, 1\nbuffer_atomic_add v{T3+4}, v{T3+7}, s[{S_WS}:{S_WS+3}], s39 offen sc1\ns_mov_b64 exec, -1")
    A.label("K4_NOSIG")
    comb(0)
    A(f"s_cmp_lg_u32 s{sW}, 0\ns_cbranch_scc0 K4_TSPIN_F")
    A.label("K4_TSPIN_B")
    spin("K4_TSPIN", T3+1, T3+7, 0, 8, srd=f"s[{S_WS}:{S_WS+3}]", so="s39", slp=SLP2)
    A("s_barrier")
    st(100)
    comb_loads(1)
    comb(1)
    if asmlib.STAMP and QD:
        A(f"s_mov_b32 s{P_WS}, s{S_WS}\ns_mov_b32 s{P_WS+1}, s{S_WS+1}\ns_waitcnt lgkmcnt(0)\ns_mov_b64 s[76:77], s[72:73]\ns_mov_b64 s[74:75], s[68:69]\ns_mov_b64 s[72:73], s[70:71]\ns_mov_b64 s[68:69], s[96:97]\ns_mov_b64 s[70:71], s[98:99]")
    elif asmlib.STAMP:
        A(f"s_mov_b32 s{P_WS}, s{S_WS}\ns_mov_b32 s{P_WS+1}, s{S_WS+1}\ns_waitcnt lgkmcnt(0)\ns_mov_b64 s[68:69], s[72:73]\ns_mov_b64 s[70:71], s[76:77]\ns_mov_b64 s[72:73], s[96:97]\ns_mov_b64 s[74:75], s[98:99]\ns_mov_b64 s[76:77], s[100:101]")
    if asmlib.STAMP:
        A("s_waitcnt vmcnt(0)")
        stamp_flush(A, 0, 8, P_WS, sW)
    A.label("K2_END")
    A("s_endpgm")
    for st in stubs:
        for x in st: A(x)
    return dict(name="k12_kernel", vgpr=512, accum=256, sgpr=102, grid=256, block=256, lds=163840)
```

```python
from asmlib import *
import asmlib
from k1n import KV_BASE, A3_BASE, A3_TB64, WS_USED, MF, f32bits, XC_BASE, SCQ_BASE, P2_BASE, CNT_BASE
import math, k1n

import os
QST = os.environ.get('QST', '0') == '1'
QPLAN = os.environ.get('QPLAN', '3')
CT = os.environ.get('CODE_TOUCH2', '1') == '1'
QROT = int(os.environ.get('QROT', '2'))
LATEKV = os.environ.get('LATEKV', '1') == '1'
NOBAR = os.environ.get('NOBAR', '0') == '1'
BARPOS = int(os.environ.get('BARPOS', '0'))
NOCHK = os.environ.get('NOCHK', '0') == '1'
CHKE = os.environ.get('CHKE', '1') == '1'
ONES = os.environ.get('ONES', '0') == '1'
BIAS = 24.0
SLP = int(os.environ.get('SLP', '8'))
FULL = os.environ.get('FULL', '1') == '1'
SLP2 = int(os.environ.get('SLP2', '4'))
ELO = os.environ.get('ELO', '1') == '1'
FINF = os.environ.get('FINF', '1') == '1'
LOSIG = os.environ.get('LOSIG', '1') == '1'
EPQ = os.environ.get('EPQ', '1') == '1'
XS = os.environ.get('XS', ' sc1'); KS = os.environ.get('KS', ' sc1'); AS = os.environ.get('AS', ' sc1')
QD = os.environ.get('QD') == '1'
PCHK = int(os.environ.get('PCHK', '11'))
CTX_TOUCH = os.environ.get('CTX_TOUCH', '0') == '1'
def gen_k2(A, store_flags=" sc1", thr=2.0**30):
    O = 0; S01 = 128; S23 = [144, 160]; P01 = [176, 184]; P23 = 192; CX = 200; E = 232; LS = 236; L = 240
    VK = 244; VV = 245; VD = 246; TMP = 247
    AQ = 0; KF = 64; VF = 96; AL = 128; AO = 144
    NG = 34 if ONES else 32
    S_KV, S_WS = 8, 12
    sW, sH, sI, sT0, sT1, sOFF, sHALF, sCNT, sTHR, sNEG = 16, 17, 18, 19, 20, 21, 22, 23, 24, 25
    sMK = 26
    sRET = 34
    sP = 36; sOHI = 37; sOLO = 38
    P_WS = 40; P_WO = 42; P_WD = 44; P_WQ = 46; S_T = 48; sXH = 52; sXL = 53; sWQ = 54; sMQ = 55
    def Sreg(qp, kb, par): return (S01 + (qp*2+kb)*4) if qp < 2 else (S23[par] + ((qp-2)*2+kb)*4)
    def Preg(qp, par): return (P01[par] + qp*4) if qp < 2 else (P23 + (qp-2)*4)
    def Oreg(db, qb): return O + (db*4+qb)*4
    def CXr(qp, kb): return CX + (qp*2+kb)*4
    stubs = []
    uid = [0]
    def U(p): uid[0] += 1; return f"K2_{p}_{uid[0]}"

    def spin(lab, vp, vo, off, expect, mask=None, srd='s[80:83]', so='0', slp=None):
        stubs.append([f"{lab}_F:", f"s_mov_b32 s{sT1}, 0", f"s_branch {lab}_N", f"{lab}:", f"s_mov_b32 s{sT1}, 0", f"{lab}_L:", f"s_sleep {slp or SLP}", f"{lab}_N:",
                      f"buffer_load_dword v{vp}, v{vo}, {srd}, {so} offen offset:{off} sc1", "s_waitcnt vmcnt(0)"] + ([f"v_and_b32 v{vp}, {mask}, v{vp}"] if mask else []) +
                     [f"v_cmp_ne_u32 vcc, {expect}, v{vp}", f"s_add_u32 s{sT1}, s{sT1}, 1", f"s_cmp_ge_u32 s{sT1}, 0x8000", f"s_cbranch_scc1 {lab}_B", f"s_cbranch_vccnz {lab}_L", f"s_branch {lab}_B"])
    LN = TMP+1; NEGV = TMP+8; sRDY = 86
    def kread(f, unit4): return f"ds_read_b128 {ar(KF+4*f,4)}, v{VK} offset:{unit4*8192 + f*1024}"
    def vread(f, slot4): return f"ds_read_b128 {ar(VF+4*f,4)}, v{VV} offset:{slot4*8192 + f*1024}"
    def dma_group(c, vd=VD):
        pre = [f"s_add_u32 m0, s{sHALF}, {(c%4)*8192}"]
        d = [f"buffer_load_dwordx4 v{vd}, s[{S_KV}:{S_KV+3}], s{sOFF} offen offset:{j*1024} sc1 lds" for j in range(4)]
        post = [f"s_add_u32 s{sOFF}, s{sOFF}, 16384"]
        if c % 4 == 3: post.append(f"s_xor_b32 s{sHALF}, s{sHALF}, 0x8000")
        return pre, d, post
    def kv_init(c):
        p_, d_, po_ = dma_group(c, 7); d_ = [x + " ;T=-" for x in d_]
        if c < 2:
            lab = U("KS")
            return [f"s_cmp_ge_u32 s{sW}, 2", f"s_cbranch_scc1 {lab}"] + p_ + ["s_nop 0"] + d_ + [lab + ":"] + po_
        return p_ + ["s_nop 0"] + d_ + po_
    def early(r):
        XO, XP = r['XO'], r['XP']
        su = [[f"s_mov_b32 s{S_KV+3}, 0x00020000", f"s_lshl_b32 s{sT1}, s{sI}, 16", f"s_sub_u32 s{S_KV+2}, 0x108000, s{sT1}"],
              [f"s_lshl_b32 s{sT1}, s{sH}, 20", f"s_add_u32 s{sT1}, s{sT1}, {KV_BASE-0x8000}", f"s_add_u32 s{S_KV}, s{P_WS}, s{sT1}", f"s_addc_u32 s{S_KV+1}, s{P_WS+1}, 0"],
              [f"s_mov_b32 s{sTHR}, {hex(f32bits(thr))}", f"s_mov_b32 s{sNEG}, 0xff800000"],
              [f"s_lshl_b32 s{sT1}, s{sW}, 12", f"v_lshlrev_b32 v7, 4, v{LN}", f"v_add_u32 v7, s{sT1}, v7"],
              [f"s_and_b32 s{sT1}, s{sW}, 1", f"s_lshl_b32 s{sHALF}, s{sT1}, 12", f"s_lshr_b32 s{sT1}, s{sW}, 1", f"s_lshl_b32 s3, s{sT1}, 16", f"s_add_u32 s{sHALF}, s{sHALF}, s3", f"s_lshl_b32 s{sT1}, s{sT1}, 15", f"s_sub_u32 s{sOFF}, 0x8000, s{sT1}"],
              ["v_mov_b32 v6, 0x20000", "v_mov_b32 v1, 0", "ds_write_b32 v6, v1"],
              [f"v_and_b32 v2, 15, v{LN}", f"v_lshrrev_b32 v3, 4, v{LN}", "v_lshlrev_b32 v3, 2, v3", "v_sub_u32 v2, v2, v3"]] + [[f"v_cmp_le_i32 s[{sMK+2*i}:{sMK+2*i+1}], {i}, v2"] for i in range(4)]
        ob = [[f"s_lshr_b32 s{sT0}, s{sW}, 1", f"s_lshl_b32 s{sT1}, s{sI}, 1", f"s_add_u32 s{sOLO}, s{sT1}, s{sT0}", f"s_sub_u32 s{sOHI}, 30, s{sT1}", f"s_add_u32 s{sOHI}, s{sOHI}, s{sT0}"],
              [f"s_mul_i32 s{sOLO}, s{sOLO}, {A3_TB64}", f"s_mul_i32 s{sOHI}, s{sOHI}, {A3_TB64}"],
              [f"s_lshl_b32 s{sT0}, s{sH}, 14", f"s_and_b32 s{sT1}, s{sW}, 1", f"s_lshl_b32 s{sT1}, s{sT1}, 11", f"s_add_u32 s{sT0}, s{sT0}, s{sT1}", f"s_add_u32 s{sT0}, s{sT0}, {A3_BASE}", f"s_add_u32 s{sOLO}, s{sOLO}, s{sT0}", f"s_add_u32 s{sOHI}, s{sOHI}, s{sT0}"]]
        chk = [["@VM:PK", f"v_cmp_ne_u32 vcc, 16, v{XP}"], ["s_nop 0"], ["s_cmp_eq_u64 vcc, 0", f"s_cselect_b32 s{sRDY}, 1, 0", f"v_mov_b32 v1, s{sRDY}", f"s_cmp_lg_u32 s{sW}, 0", "s_cbranch_scc1 K2_NOMB", "ds_write_b32 v6, v1", "K2_NOMB:"]]
        def guard(c):
            lab = U("NR"); return [f"s_cmp_eq_u32 s{sRDY}, 0", f"s_cbranch_scc1 {lab}"] + kv_init(c) + [lab + ":"]
        pk = [[f"buffer_load_dword v{XP}, v{XO}, s[80:83], 0 offen sc1 ;T=PK"]]
        return dict(q0={1: su}, q1={0: pk + ob, 1: chk + [guard(0), guard(1)], 2: [guard(2), guard(3)]}, bar1={})
    fi_ = k1n.gen_front(A, dict(stubs=stubs, spin=spin, early=early))
    QT, QA, XO, XP = fi_['QT'], fi_['ACC'], fi_['XO'], fi_['XP']
    if not QD: stamp(A, 3)

    def Dpatch(q0):
        o = []
        for i in range(4): o.append(f"v_cndmask_b32 v{CXr(q0,0)+i}, v{NEGV}, v{CXr(q0,0)+i}, s[{sMK+2*i}:{sMK+2*i+1}]")
        for i in range(4): o.append(f"v_mov_b32 v{CXr(q0,1)+i}, v{NEGV}")
        for i in range(4): o.append(f"v_cndmask_b32 v{CXr(q0+1,1)+i}, v{NEGV}, v{CXr(q0+1,1)+i}, s[{sMK+2*i}:{sMK+2*i+1}]")
        return o
    def Fpatch(q0): return [f"v_mov_b32 v{CXr(q0,0)+i}, v{NEGV}" for i in range(16)]
    def patch(q0, j):
        o = []
        lD, lE = U("PD"), U("PE")
        o.append(f"s_cmp_gt_u32 s{sW}, {j}"); o.append(f"s_cbranch_scc1 {lE}")
        if j > 0:
            o.append(f"s_cmp_eq_u32 s{sW}, {j}"); o.append(f"s_cbranch_scc1 {lD}")
            o += Fpatch(q0); o.append(f"s_branch {lE}")
            o.append(lD + ":")
        o += Dpatch(q0)
        o.append(lE + ":")
        o.append("s_nop 1")
        return o


    def sm_gaps1(qs, srcpar, dstpar, look):
        g = [[] for _ in range(34)]
        src = lambda k: Sreg(qs[k//4], (k % 4)//2, srcpar) + 2*(k % 2)
        pr = lambda k: Preg(qs[k//4], dstpar) + k % 4
        for k in range(8):
            en = E + 2*((k+1) % 2); ec = E + 2*(k % 2)
            cv = f"v_cvt_pk_bf16_f32 v{pr(k)}, v{ec}, v{ec+1}"
            orr = None
            if k % 2 == 1: orr = f"v_or_b32 v{TMP}, v{pr(0)}, v{pr(1)}" if k == 1 else f"v_or3_b32 v{TMP}, v{TMP}, v{pr(k-1)}, v{pr(k)}"
            if k < 7:
                g[4*k].append(f"v_exp_f32 v{en}, v{src(k+1)}"); g[4*k+2].append(f"v_exp_f32 v{en+1}, v{src(k+1)+1}")
                g[4*k+1].append(cv)
                if orr: g[4*k+3].append(orr)
            else:
                g[28] += [cv, orr]
                g[29].append(f"v_lshl_or_b32 v{TMP}, v{TMP}, 16, v{TMP}")
                g[30].append(f"v_cmp_le_u32 vcc, s{sTHR}, v{TMP}")
                if look: g[32].append(f"v_exp_f32 v{en}, v{look[0]}"); g[33].append(f"v_exp_f32 v{en+1}, v{look[1]}")
        return g
    def lmf(qps, rows, par, czero):
        return [(f"{MF} {ar(AL+4*r,4)}, {ar(AO,4)}, {vr(Preg(qp,par),4)}, {'0' if czero else ar(AL+4*r,4)}", None) for qp, r in zip(qps, rows)]

    def sm_gaps(qs, srcpar, dstpar, look, ladd):
        g = [[] for _ in range(32)]
        lsb = LS + (0 if qs[0] == 0 else 2)
        src = lambda k: Sreg(qs[k//4], (k % 4)//2, srcpar) + 2*(k % 2)
        for k in range(8):
            if k < 7: a, b = src(k+1), src(k+1)+1
            elif look: a, b = look
            else: a = None
            en = E + 2*((k+1) % 2); ec = E + 2*(k % 2)
            if a is not None:
                g[4*k].append(f"v_exp_f32 v{en}, v{a}"); g[4*k+2].append(f"v_exp_f32 v{en+1}, v{b}")
            ls = lsb + k//4
            if k % 4 == 0:
                g[4*k+1].append(f"v_add_f32 v{ls}, v{ec}, v{ec+1}")
                lr, lsr = ladd[k//4]
                g[4*k+1].append(f"v_add_f32 v{lr}, v{lr}, v{lsr}")
            else:
                g[4*k+1].append(f"v_add_f32 v{ls}, v{ls}, v{ec}"); g[4*k+1].append(f"v_add_f32 v{ls}, v{ls}, v{ec+1}")
            g[4*k+3].append(f"v_cvt_pk_bf16_f32 v{Preg(qs[k//4], dstpar) + k % 4}, v{ec}, v{ec+1}")
        if not NOCHK:
            if CHKE:
                e_a = g[28]; adds = g[29]; e_b = g[30]
                g[28] = adds; g[29] = [f"v_max_f32 v{TMP}, v{lsb}, v{lsb+1}", f"v_cmp_lt_f32 vcc, s{sTHR}, v{TMP}"]
                g[30] = e_a; g[31] = g[31] + e_b
            else:
                g[30].append(f"v_max_f32 v{TMP}, v{lsb}, v{lsb+1}")
                g[31].append(f"v_cmp_lt_f32 vcc, s{sTHR}, v{TMP}")
        return g

    def rescale(rows, init=False):
        o = ["s_nop 7"]
        D, D2, F = TMP+1, TMP+2, TMP+3
        for r in rows:
            s0 = r['S']
            o.append(f"v_max3_f32 v{D}, v{s0}, v{s0+1}, v{s0+2}")
            o.append(f"v_max3_f32 v{D}, v{D}, v{s0+3}, v{s0+4}")
            o.append(f"v_max3_f32 v{D}, v{D}, v{s0+5}, v{s0+6}")
            o.append(f"v_max_f32 v{D}, v{D}, v{s0+7}")
            o += [f"v_mov_b32 v{D2}, v{D}", "s_nop 1", f"v_permlane16_swap_b32 v{D}, v{D2}", f"v_max_f32 v{D}, v{D}, v{D2}"]
            o += [f"v_mov_b32 v{D2}, v{D}", "s_nop 1", f"v_permlane32_swap_b32 v{D}, v{D2}", f"v_max_f32 v{D}, v{D}, v{D2}"]
            o.append(f"v_ceil_f32 v{D}, v{D}")
            if ONES: o.append(f"v_add_f32 v{D}, {hex(f32bits(BIAS))}, v{D}")
            if not init:
                o.append(f"v_max_f32 v{D}, 0, v{D}")
                o.append(f"v_exp_f32 v{F}, -v{D}")
            for b in [s0] + r['subs']:
                for i in range(8): o.append(f"v_sub_f32 v{b+i}, v{b+i}, v{D}")
            if not init:
                qb = r['qb']
                for db in range(8):
                    for i in range(4): o.append(f"v_mul_f32 v{Oreg(db,qb)+i}, v{Oreg(db,qb)+i}, v{F}")
                if ONES:
                    for i in range(4): o += [f"v_accvgpr_read_b32 v{D2}, a{AL+4*qb+i}", f"v_mul_f32 v{D2}, v{D2}, v{F}", f"v_accvgpr_write_b32 a{AL+4*qb+i}, v{D2}"]
                else: o.append(f"v_mul_f32 v{L+qb}, v{L+qb}, v{F}")
                for pr in r.get('Pscale', []):
                    o += [f"v_lshlrev_b32 v{D2}, 16, v{pr}", f"v_and_b32 v{pr}, 0xffff0000, v{pr}", f"v_mul_f32 v{D2}, v{D2}, v{F}", f"v_mul_f32 v{pr}, v{pr}, v{F}",
                          f"v_cvt_pk_bf16_f32 v{pr}, v{D2}, v{pr}"]
            if r.get('P') is not None:
                ls = r['ls']
                for k in range(4):
                    o += [f"v_exp_f32 v{E}, v{s0+2*k}", f"v_exp_f32 v{E+1}, v{s0+2*k+1}", "s_nop 0"]
                    if ONES: pass
                    elif k == 0: o.append(f"v_add_f32 v{ls}, v{E}, v{E+1}")
                    else: o += [f"v_add_f32 v{ls}, v{ls}, v{E}", f"v_add_f32 v{ls}, v{ls}, v{E+1}"]
                    o.append(f"v_cvt_pk_bf16_f32 v{r['P']+k}, v{E}, v{E+1}")
        return o
    def relook(look):
        return [f"v_exp_f32 v{E}, v{look[0]}", f"v_exp_f32 v{E+1}, v{look[1]}", "s_nop 1"] if look else ["s_nop 1"]

    def check_site(code):
        ls, lb = U("SLOW"), U("BACK")
        if not NOCHK: A(f"s_cbranch_vccnz {ls}")
        A.label(lb)
        stubs.append([ls + ":"] + code + [f"s_branch {lb}"])

    def emit_half(mf, gaps, extra, waits):
        for g in range(len(mf)):
            if g in waits: A(waits[g])
            m, rd = mf[g]
            if m: A(m)
            elif g == 28: A("s_nop 0")
            if rd: A(rd)
            ex = extra.get(g, ([], []))
            for x in ex[0]: A(x)
            for x in ex[1]: A(x)
            for x in gaps[g]: A(x)

    def H1(par, mq, ms, ku, toggleK=None, vm=None, dmas=(), noqk=False, nosm=False, last=False, fill=None, czero=False):
        n = 1 - par
        mf = []
        if noqk: mf = [(None, None)]*32
        elif mq == 4:
            for f in range(8):
                kb, ds = f//4, f % 4
                for qp in range(4):
                    d = Sreg(qp, kb, n)
                    c = vr(CXr(qp, kb), 4) if ds == 0 else vr(d, 4)
                    mf.append((f"{MF} {vr(d,4)}, {ar(KF+4*f,4)}, {ar(AQ+(qp*4+ds)*4,4)}, {c}", kread(f, ku[0]) if qp == 3 else None))
        else:
            for j in range(16):
                sel, f = j//8, j % 8
                kb, ds = f//4, f % 4
                for qb in range(2):
                    qp = 2*sel + qb
                    d = Sreg(qp, kb, n)
                    c = vr(CXr(qp, kb), 4) if ds == 0 else vr(d, 4)
                    rd = None
                    if qb == 1 and not (last and sel == 1): rd = kread(f, ku[sel])
                    mf.append((f"{MF} {vr(d,4)}, {ar(KF+4*f,4)}, {ar(AQ+(qb*4+ds)*4,4)}, {c}", rd))
        look = None if noqk else (Sreg(0, 0, n), Sreg(0, 0, n)+1)
        if nosm:
            gaps = [list(fill[2*g:2*g+2]) if fill else [] for g in range(32)]
        else:
            if ONES:
                gaps = sm_gaps1((2, 3), par, par, look); mf = list(mf) + lmf((0, 1), (0, 1), par, czero)
            else: gaps = sm_gaps((2, 3), par, par, look, [(L+0, LS+0), (L+1, LS+1)])
        extra = {}
        waits = {}
        if not noqk:
            waits[0] = "s_waitcnt lgkmcnt(8)"
            if mq == 2: waits[16] = "s_waitcnt lgkmcnt(4)"; waits[24] = "s_waitcnt lgkmcnt(4)"
        if vm is not None:
            extra[BARPOS] = ([], [f"s_waitcnt vmcnt({vm})"] + ([] if NOBAR else ["s_barrier"]))
        if toggleK is not None:
            gi = 0 if toggleK == 0 else 16
            e = extra.setdefault(gi, ([], [])); e[1].append(f"v_xor_b32 v{VK}, 0x8000, v{VK}")
        place_dmas(extra, dmas)
        emit_half(mf, gaps, extra, waits)
        if not nosm:
            rows = []
            for qq in range(2):
                qp = 2 + qq
                r = dict(S=Sreg(qp, 0, par), P=Preg(qp, par), ls=LS+2+qq)
                if ms == 4:
                    r['qb'] = qp
                    r['subs'] = ([Sreg(qp, 0, n), CXr(qp, 0)] if (mq == 4 and not noqk) else [])
                else:
                    r['qb'] = qq
                    r['subs'] = [CXr(qq, 0), CXr(qp, 0)] + ([] if noqk else [Sreg(qq, 0, n), Sreg(qp, 0, n)])
                    r['Pscale'] = [Preg(qq, par)+k for k in range(4)]
                rows.append(r)
            check_site(rescale(rows) + relook(look))

    def place_dmas(extra, dmas):
        for c, g0 in dmas:
            pre, d, post = dma_group(c)
            if ONES:
                for j in range(4): extra.setdefault(3 + 8*j, ([], []))[0].append(d[j])
                extra.setdefault(30, ([], []))[1].extend(post[:1])
                extra.setdefault(31, ([], []))[1].extend(post[1:] + dma_group(c+1)[0])
                continue
            e = extra.setdefault(g0, ([], [])); e[1].extend(pre)
            for j in range(4):
                e = extra.setdefault(g0+1+4*j if g0+1+4*j < 32 else 31, ([], [])); e[0].append(d[j])
            e = extra.setdefault(min(31, g0+2+12), ([], [])); e[1].extend(post)

    def H2(par, mp, mnext, vu, toggleV=None, dmas=(), nopv=False, nosm=False, czero=False):
        n = 1 - par
        mf = []
        if nopv: mf = [(None, None)]*32
        elif mp == 4:
            for db in range(8):
                for qp in range(4):
                    d = Oreg(db, qp)
                    mf.append((f"{MF} {vr(d,4)}, {ar(VF+4*db,4)}, {vr(Preg(qp,par),4)}, {'0' if czero else vr(d,4)}", vread(db, vu[0]) if qp == 3 else None))
        else:
            for j in range(16):
                sel, db = j//8, j % 8
                for qb in range(2):
                    d = Oreg(db, qb)
                    rd = None
                    if qb == 1 and not (nosm and sel == 1): rd = vread(db, vu[sel])
                    mf.append((f"{MF} {vr(d,4)}, {ar(VF+4*db,4)}, {vr(Preg(2*sel+qb,par),4)}, {vr(d,4)}", rd))
        look = (Sreg(2, 0, n), Sreg(2, 0, n)+1)
        lt = (L+2, L+3) if mp == 4 else (L+0, L+1)
        if nosm:
            gaps = [[] for _ in range(34)]
            if not ONES: gaps[1] = [f"v_add_f32 v{lt[0]}, v{lt[0]}, v{LS+2}", f"v_add_f32 v{lt[1]}, v{lt[1]}, v{LS+3}"]
        elif ONES: gaps = sm_gaps1((0, 1), n, n, look)
        else:
            gaps = sm_gaps((0, 1), n, n, look, [(lt[0], LS+2), (lt[1], LS+3)])
        if ONES: mf = list(mf) + (lmf((2, 3), (2, 3) if mp == 4 else (0, 1), par, czero) if not nopv else [(None, None)]*2)
        extra = {}
        waits = {}
        if not nopv:
            waits[0] = "s_waitcnt lgkmcnt(8)" if not nosm else "s_waitcnt lgkmcnt(0)"
            if mp == 2: waits[16] = "s_waitcnt lgkmcnt(4)"; waits[24] = "s_waitcnt lgkmcnt(4)" if not nosm else "s_waitcnt lgkmcnt(0)"
        if toggleV is not None:
            gi = 0 if toggleV == 0 else 16
            e = extra.setdefault(gi, ([], [])); e[1].append(f"v_xor_b32 v{VV}, 0x8000, v{VV}")
        place_dmas(extra, dmas)
        emit_half(mf, gaps, extra, waits)
        if not nosm and not nopv:
            rows = []
            for qb in range(2):
                r = dict(S=Sreg(qb, 0, n), P=Preg(qb, n), ls=LS+qb, qb=qb, subs=[CXr(qb, 0)])
                if mnext == 2: r['subs'] += [Sreg(qb+2, 0, n), CXr(qb+2, 0)]
                rows.append(r)
            check_site(rescale(rows) + relook(look))

    def hook(cond_reg, val, code):
        ls, lb = U("HOOK"), U("HB")
        A(f"s_cmp_eq_u32 s{cond_reg}, {val}\ns_cbranch_scc1 {ls}")
        A.label(lb)
        stubs.append([ls + ":"] + code + [f"s_branch {lb}"])

    strip = lambda l: [x.split(' ;T=')[0] for x in l]
    A(f"s_cmp_eq_u32 s{sRDY}, 0\ns_cbranch_scc1 K2_KLATE")
    A.label("K2_KOK")
    stubs.append(["K2_KLATE:", f"s_cmp_eq_u32 s{sW}, 0", "s_cbranch_scc1 K2_KSPIN_F", f"s_mov_b32 s{sT1}, 0", "K2_KL:", f"ds_read_b32 v{XP}, v6", "s_waitcnt lgkmcnt(0)", f"v_cmp_ne_u32 vcc, 1, v{XP}",
                  f"s_add_u32 s{sT1}, s{sT1}, 1", f"s_cmp_ge_u32 s{sT1}, 0x100000", "s_cbranch_scc1 K2_KGO", "s_sleep 1", "s_cbranch_vccnz K2_KL", "s_branch K2_KGO"])
    spin("K2_KSPIN", XP, XO, 0, 16)
    stubs.append(["K2_KSPIN_B:", "v_mov_b32 v1, 1", "ds_write_b32 v6, v1", "K2_KGO:"] + strip(kv_init(0) + kv_init(1) + kv_init(2) + kv_init(3)) + ["s_branch K2_KOK"])
    for ds in range(2):
        for qb in range(4):
            for i in range(4): A(f"v_accvgpr_write_b32 a{AQ+(qb*4+ds)*4+i}, v{QT+16*ds+4*qb+i}")
    A(f"v_lshlrev_b32 v{VK}, 4, v{LN}\nv_add_u32 v{VV}, 0x10000, v{VK}\nv_mov_b32 v{VD}, v7\nv_mov_b32 v{NEGV}, s{sNEG}")
    for r in list(range(CX, CX+32)) + list(range(LS, LS+8)): A(f"v_mov_b32 v{r}, 0")
    hook(sI, 0, patch(2, 0))
    A("s_waitcnt vmcnt(0)\ns_barrier")
    for f in range(8): A(kread(f, 0))
    for f in range(8): A(vread(f, 2))
    def q_epi(ds):
        o = []; e = fi_['epi_Q'](QA, ds-2, lambda t: P01[0] + 4*(t % 2), SCQ=fi_['SC2'])
        for t in range(4): o += e[12*t:12*t+12] + [f"v_accvgpr_write_b32 a{AQ+(t*4+ds)*4+i}, v{P01[0]+4*(t%2)+i}" for i in range(4)]
        return o
    ee = q_epi(2) + q_epi(3)
    for x in ee[:24]: A(x)
    eps = {0: ee[24:64], 1: ee[64:104], 2: ee[104:], 3: []}
    A("s_waitcnt lgkmcnt(8)")
    for ds in range(4):
        p_, d_, po_ = dma_group(4 + ds)
        mfs = []
        for kb in range(2):
            f = kb*4 + ds
            for qp in range(4):
                d = Sreg(qp, kb, 0)
                mfs.append([f"{MF} {vr(d,4)}, {ar(KF+4*f,4)}, {ar(AQ+(qp*4+ds)*4,4)}, {vr(CXr(qp,kb),4) if ds == 0 else vr(d,4)}"] + ([kread(f, 1)] if qp == 3 else []))
        mfs[0] = p_ + ["s_nop 0"] + mfs[0]
        for j in range(4): mfs[1+j] = mfs[1+j] + [d_[j]]
        mfs[6] = mfs[6] + po_
        if ds >= 2: A("s_nop 1")
        for k in range(8):
            for x in mfs[k]: A(x)
            for x in eps[ds][5*k:5*k+5]: A(x)
    rows = []
    for qp in range(4): rows.append(dict(S=Sreg(qp, 0, 0), subs=[CXr(qp, 0)], P=None))
    for x in rescale(rows, init=True): A(x)
    A(f"v_exp_f32 v{E}, v{Sreg(0,0,0)}\nv_exp_f32 v{E+1}, v{Sreg(0,0,0)+1}")
    H2(1, 4, 4, None, nopv=True)
    stamp(A, 4)
    A(f"s_mov_b32 s{sCNT}, s{sI}")
    if ONES: A(dma_group(8)[0][0])
    A("s_waitcnt lgkmcnt(0)")

    def finalize(qbs, OB, VLANE):
        assert not ONES
        for qb in qbs:
            D, D2 = L+qb, TMP+1
            A(f"v_mov_b32 v{D2}, v{D}\ns_nop 1\nv_permlane16_swap_b32 v{D}, v{D2}\nv_add_f32 v{D}, v{D}, v{D2}")
            A(f"v_mov_b32 v{D2}, v{D}\ns_nop 1\nv_permlane32_swap_b32 v{D}, v{D2}\nv_add_f32 v{D}, v{D}, v{D2}")
            A(f"v_rcp_f32 v{D}, v{D}")
        oq = 0
        for qb in qbs:
            for ds in range(4):
                ob = OB(qb, ds) if callable(OB) else OB + 4*oq
                for h in range(2):
                    b = Oreg(2*ds+h, qb)
                    for i in range(4): A(f"v_mul_f32 v{b+i}, v{b+i}, v{L+qb}")
                for h in range(2):
                    b = Oreg(2*ds+h, qb)
                    A(f"v_cvt_pk_bf16_f32 v{ob+2*h}, v{b}, v{b+1}\nv_cvt_pk_bf16_f32 v{ob+2*h+1}, v{b+2}, v{b+3}")
                A(f"s_add_u32 s{sT0}, s{sOHI if qb < 2 else sOLO}, {ds*4096}")
                A(f"buffer_store_dwordx4 {vr(ob,4)}, v{VLANE}, s[{S_WS}:{S_WS+3}], s{sT0} offen offset:{(qb%2)*1024}{store_flags}")
                oq = (oq+1) % 4

    def period44(r, pre=None, czero=False):
        par = r % 2
        if pre: pre()
        ku = (r+2) % 4; vu = (r+1+2) % 4
        H1(par, 4, 4, [ku], toggleK=0 if ku == 0 else None, vm=16, dmas=[(r, 8)], czero=czero)
        H2(par, 4, 4, [vu], toggleV=0 if vu == 0 else None, czero=czero)

    period44(0, pre=lambda: hook(sI, 0, patch(2, 1)), czero=True)
    A(f"s_cmp_eq_u32 s{sCNT}, 0\ns_cbranch_scc1 K2_SPECIAL_R1\ns_branch K2_LOOPA_R1")
    A(".p2align 6")
    A.label("K2_LOOPA")
    for r in range(4):
        if r == 1: A.label("K2_LOOPA_R1")
        period44(r, pre=(lambda: hook(sCNT, 1, patch(2, 0))) if r == 3 else None)
    A(f"s_sub_u32 s{sCNT}, s{sCNT}, 1\ns_cmp_lg_u32 s{sCNT}, 0\ns_cbranch_scc1 K2_LOOPA")
    A.label("K2_SPECIAL")
    for r in range(3):
        if r == 1: A.label("K2_SPECIAL_R1")
        period44(r, pre=lambda: [A(x) for x in patch(2, r+1)])
    A(f"s_cmp_lt_u32 s{sW}, 2\ns_cselect_b32 s{S_T}, s{P_WO}, s{P_WD}\ns_cselect_b32 s{S_T+1}, s{P_WO+1}, s{P_WD+1}\ns_mov_b32 s{sT0}, {1376*1024}\ns_cselect_b32 s{S_T+2}, {4096*1024}, s{sT0}")
    A(f"s_mul_i32 s{sT0}, s2, {43*128}\ns_lshl_b32 s{sT1}, s2, 14\ns_cselect_b32 s{sT0}, s{sT1}, s{sT0}".replace("s_lshl_b32 s{sT1}, s2, 14".format(sT1=sT1), f"s_mul_i32 s{sT1}, s2, 16384"))
    A(f"s_and_b32 s{sT1}, s{sW}, 1\ns_lshl_b32 s{sT1}, s{sT1}, 13\ns_add_u32 s{sT0}, s{sT0}, s{sT1}\nv_and_b32 v{TMP+7}, 0x3ff, v{VK}\nv_lshlrev_b32 v{TMP+7}, 3, v{TMP+7}")
    A(f"buffer_load_dword v{TMP+7}, v{TMP+7}, s[{S_T}:{S_T+3}], s{sT0} offen")
    if CT:
        A(f"v_and_b32 v{TMP+6}, 0x3ff, v{VK}")
        code_touch(A, "K3_START" if FULL else "k3_kernel", "K2_END" if FULL else "K4_END", sW, TMP+6, TMP+6, 88, lane_shift=4)
    if CTX_TOUCH:
        A(f"v_lshrrev_b32 v{TMP+6}, 8, v{VK}\nv_and_b32 v{TMP+6}, 3, v{TMP+6}\nv_lshlrev_b32 v{TMP+6}, 12, v{TMP+6}\nv_and_b32 v{TMP+5}, 0xf0, v{VK}\nv_lshl_add_u32 v{TMP+6}, v{TMP+5}, 3, v{TMP+6}")
        A(f"buffer_load_dword v{TMP+5}, v{TMP+6}, s[{S_WS}:{S_WS+3}], s{sOHI} offen\nbuffer_load_dword v{TMP+6}, v{TMP+6}, s[{S_WS}:{S_WS+3}], s{sOLO} offen")
    for i in range(16): A(f"v_mov_b32 v{CXr(2,0)+i}, v{CXr(0,0)+i}")
    hook(sI, 7, patch(0, 0) + patch(2, 1))
    A("s_nop 1")
    H1(1, 2, 4, [1, 2], vm=16, dmas=[(3, 8)])
    H2(1, 4, 2, [2])
    if ELO:
        A(f"v_and_b32 v{TMP+2}, 0x3ff, v{VK}")
        finalize((2, 3), lambda qb, ds: Oreg(2*ds, qb), TMP+2)
        A(f"s_cmp_eq_u32 s{sW}, 0\ns_cselect_b32 s87, 2, 0x40000000")
    if not QD: stamp(A, 5)
    A(f"s_lshl_b32 s{sT0}, s{sI}, 1\ns_sub_u32 s{sCNT}, 14, s{sT0}")
    def period22(r, last_qk=False):
        par = r
        ku = [3, 0] if r == 0 else [1, 2]
        vu = [3, 0] if r == 0 else [1, 2]
        c0 = 2*r
        H1(par, 2, 2, ku, toggleK=1 if r == 0 else None, vm=12, dmas=[(c0, 8)], last=last_qk)
        H2(par, 2, 2, vu, toggleV=1 if r == 0 else None, dmas=[(c0+1, 8)])
    A(f"s_cmp_eq_u32 s{sCNT}, 0\ns_cbranch_scc1 K2_TAIL")
    A(".p2align 6")
    A.label("K2_LOOPB")
    period22(0)
    hook(sCNT, 1, patch(0, 0) + patch(2, 1))
    period22(1)
    A(f"s_sub_u32 s87, s87, 1")
    hook(87, 0, [f"s_mov_b32 s39, {CNT_BASE}", f"s_lshl_b32 s{sT0}, s{sI}, 7", f"v_mov_b32 v{TMP+5}, s{sT0}", f"v_mov_b32 v{TMP+6}, 1", "s_mov_b64 exec, 1", f"buffer_atomic_add v{TMP+6}, v{TMP+5}, s[{S_WS}:{S_WS+3}], s39 offen sc1", "s_mov_b64 exec, -1"])
    A(f"s_sub_u32 s{sCNT}, s{sCNT}, 1\ns_cmp_lg_u32 s{sCNT}, 0\ns_cbranch_scc1 K2_LOOPB")
    A.label("K2_TAIL")
    for x in patch(0, 2) + patch(2, 3): A(x)
    H1(0, 2, 2, [3, 0], toggleK=None, vm=12, last=True)
    H2(0, 2, 2, [3, 0], toggleV=1)
    H1(1, 2, 2, None, noqk=True, vm=0)
    A("s_sub_u32 s87, s87, 1\ns_cmp_ge_u32 s87, 2\ns_cbranch_scc1 K2_NOLO")
    for x in [f"s_mov_b32 s39, {CNT_BASE}", f"s_lshl_b32 s{sT0}, s{sI}, 7", f"v_mov_b32 v{TMP+5}, s{sT0}", f"v_mov_b32 v{TMP+6}, 1", "s_mov_b64 exec, 1", f"buffer_atomic_add v{TMP+6}, v{TMP+5}, s[{S_WS}:{S_WS+3}], s39 offen sc1", "s_mov_b64 exec, -1"]: A(x)
    A.label("K2_NOLO")
    H2(1, 2, 2, [1, 2], nosm=True)
    if not QD: stamp(A, 6)
    A(f"v_and_b32 v{VK}, 0x3ff, v{VK}")
    finalize((0, 1), S01, VK)
    A.label("K3_START")
    st = (lambda r: A(f"s_memrealtime s[{r}:{r+1}]")) if (asmlib.STAMP and not QD) else (lambda r: None)
    RING, AD, NJ = 16, int(os.environ.get('AD3', '8')), 22
    areg = (lambda b, n: vr(b, n)) if AD == 8 else (lambda b, n: ar(b - 160 + 16, n))
    LW, LA = 11, AD - 1
    ACC3, WF3, AR3, TRA, VD3, T3, VX = [0, 64], 128, 160, 224, 240, 245, 253
    LN3 = T3
    S_W, S_X, S_O = 8, 40, 44
    sSP, sTM, sTN, sWO, sAO, sM3, sOB3, sT2, sPAD, sRD2, sTL = 35, 21, 22, 23, 24, 25, 26, 27, 32, 33, 34
    A(f"s_load_dwordx2 s[28:29], s[0:1], 0\ns_load_dwordx2 s[30:31], s[0:1], 80")
    A(f"s_and_b32 s{sSP}, s2, 7\ns_lshr_b32 s{sT1}, s2, 3\ns_and_b32 s{sTM}, s{sT1}, 7\ns_lshr_b32 s{sTN}, s2, 6")
    A(f"s_mul_i32 s{sT0}, s{sSP}, 21\ns_min_u32 s{sT1}, s{sSP}, 2\ns_add_u32 s{sT0}, s{sT0}, s{sT1}")
    A(f"s_cmp_eq_u32 s{sSP}, 7\ns_cselect_b32 s{sT0}, 150, s{sT0}")
    A(f"s_cmp_lt_u32 s{sSP}, 2\ns_cselect_b32 s{sPAD}, 0, 4096\ns_cmp_eq_u32 s{sSP}, 6\ns_cselect_b32 s{sPAD}, 0, s{sPAD}")
    A(f"s_sub_u32 s{sT1}, s{sT0}, 128\ns_cmp_ge_u32 s{sSP}, 6\ns_cselect_b32 s{sT1}, s{sT1}, s{sT0}\ns_cselect_b32 s{S_W}, s{P_WD}, s{P_WO}\ns_cselect_b32 s{S_W+1}, s{P_WD+1}, s{P_WO+1}\ns_mov_b32 s{sRD2}, 0\ns_mov_b32 s{S_W+3}, 0x00020000")
    A(f"s_add_u32 s{sT2}, s{sT1}, 22\ns_lshl_b32 s{sT2}, s{sT2}, 15\ns_lshl_b32 s{S_W+2}, s{sPAD}, 3\ns_sub_u32 s{S_W+2}, s{sT2}, s{S_W+2}")
    A(f"s_lshl_b32 s{sT2}, s{sTM}, 1\ns_lshr_b32 s{sAO}, s{sW}, 1\ns_add_u32 s{sT2}, s{sT2}, s{sAO}\ns_mul_i32 s{sAO}, s{sT2}, {A3_TB64}\ns_lshl_b32 s{sT0}, s{sT0}, 12\ns_add_u32 s{sAO}, s{sAO}, s{sT0}")
    A(f"s_and_b32 s{sT2}, s{sW}, 1\ns_lshl_b32 s{sT2}, s{sT2}, 11\ns_add_u32 s{sAO}, s{sAO}, s{sT2}\ns_add_u32 s{sAO}, s{sAO}, {A3_BASE}")
    A(f"s_lshl_b32 s{sWO}, s{sT1}, 15\ns_lshl_b32 s{sT2}, s{sW}, 13\ns_add_u32 s{sWO}, s{sWO}, s{sT2}\ns_lshl_b32 s{sT2}, s{sTN}, 8\ns_add_u32 s{sWO}, s{sWO}, s{sT2}\ns_lshl_b32 s{sM3}, s{sW}, 11")
    A(f"v_lshrrev_b32 v{LN3}, 4, v{VK}")
    A(f"v_lshrrev_b32 v{T3+2}, 4, v{LN3}\nv_and_b32 v{T3+3}, 15, v{LN3}\nv_lshlrev_b32 v{T3+4}, 1, v{T3+2}\nv_xor_b32 v{T3+3}, v{T3+3}, v{T3+4}\nv_lshlrev_b32 v{T3+2}, 10, v{T3+2}\nv_lshl_add_u32 v{VD3}, v{T3+3}, 4, v{T3+2}")
    A(f"v_xor_b32 v{T3+2}, 128, v{VD3}\nv_add_u32 v{VD3+1}, 3072, v{T3+2}")
    A(f"s_mov_b32 s39, {CNT_BASE}\ns_lshl_b32 s{sT0}, s{sTM}, 7\nv_mov_b32 v{T3+5}, s{sT0}\nbuffer_load_dword v{T3+1}, v{T3+5}, s[{S_WS}:{S_WS+3}], s39 offen sc1\ns_barrier")
    seq3 = [('P', 0)]
    def wl(s_):
        seq3.extend([('W', s_)]*2)
        return [[f"s_add_u32 m0, s{sM3}, {(s_ % RING)*8192}", f"s_add_u32 s{sT1}, s{sWO}, {(s_ % NJ)*32768}"],
                [f"buffer_load_dwordx4 v{VD3}, s[{S_W}:{S_W+3}], s{sT1} offen lds"], [f"buffer_load_dwordx4 v{VD3+1}, s[{S_W}:{S_W+3}], s{sT1} offen offset:1024 lds"]]
    def al(s_, track=True):
        if track: seq3.extend([('A', s_)]*2)
        off = (s_ % NJ)*4096 + (s_ // NJ)*16*A3_TB64
        pre = [f"s_add_u32 s{sT0}, s{sAO}, {off}"] + ([f"s_sub_u32 s{sT0}, s{sT0}, s{sPAD}"] if s_ % NJ == NJ-1 else [])
        return [pre] + [[f"buffer_load_dwordx4 {areg(AR3+(s_%AD)*8+4*t,4)}, v{VK}, s[{S_WS}:{S_WS+3}], s{sT0} offen offset:{t*1024}{AS}"] for t in range(2)]
    def vm3(tag): return min(63, len(seq3) - 1 - max(i for i, e in enumerate(seq3) if e == tag))
    def emit3(its):
        for it in its:
            for x in it: A(x)
    flat = lambda its: [x for it in its for x in it]
    for s_ in range(4): emit3(wl(s_))
    A(f"v_lshrrev_b32 v{T3+2}, 2, v{LN3}\nv_and_b32 v{T3+3}, 7, v{T3+2}\nv_lshlrev_b32 v{T3+2}, 8, v{T3+2}\nv_and_b32 v{T3+4}, 3, v{LN3}\nv_lshl_add_u32 v{T3+2}, v{T3+4}, 3, v{T3+2}")
    for nb in range(8): A(f"v_xor_b32 v{T3+4}, {nb}, v{T3+3}\nv_lshl_add_u32 v{TRA+nb}, v{T3+4}, 5, v{T3+2}\nv_add_u32 v{TRA+8+nb}, 0x10000, v{TRA+nb}")
    A(f"s_waitcnt vmcnt({vm3(('P', 0))})\nv_cmp_ne_u32 vcc, 32, v{T3+1}\ns_cbranch_vccnz K3_LSPIN")
    A.label("K3_LSPIN_B")
    spin("K3_LSPIN", T3+1, T3+5, 0, 32, srd=f"s[{S_WS}:{S_WS+3}]", so="s39", slp=SLP2)
    for s_ in range(LA): emit3(al(s_))
    A(f"s_lshl_b32 s{sT0}, s{sI}, 7\ns_sub_u32 s{sT0}, {15*128}, s{sT0}\nv_mov_b32 v{T3+2}, s{sT0}\nv_mov_b32 v{T3+4}, 1\nv_add_u32 v{T3+5}, 1024, v{T3+5}")
    A(f"s_waitcnt vmcnt({vm3(('W', 0))}) lgkmcnt(0)\ns_barrier")
    A(f"s_cmp_lg_u32 s{sW}, 0\ns_cbranch_scc1 K3_NOSIG\ns_mov_b64 exec, 1\nbuffer_atomic_add v{T3+4}, v{T3+2}, s[{S_WS}:{S_WS+3}], s39 offen sc1\ns_mov_b64 exec, -1")
    A.label("K3_NOSIG")
    st(96)
    def tr3(nb, s_):
        off = (s_ % RING)*8192; hi = off // 65536; off %= 65536
        return [f"ds_read_b64_tr_b16 {vr(WF3+4*nb,2)}, v{TRA+8*hi+nb} offset:{off}", f"ds_read_b64_tr_b16 {vr(WF3+4*nb+2,2)}, v{TRA+8*hi+nb} offset:{off+4096}"]
    for nb in range(8):
        for x in tr3(nb, 0): A(x)
    for s_ in range(4, LW): emit3(wl(s_))
    A(f"s_mov_b32 s{S_X}, s28\ns_mov_b32 s{S_X+1}, s29\ns_mov_b32 s{S_X+2}, 0x200000\ns_mov_b32 s{S_X+3}, 0x00020000\ns_mov_b32 s{S_O}, s30\ns_mov_b32 s{S_O+1}, s31\ns_mov_b32 s{S_O+2}, 0x200000\ns_mov_b32 s{S_O+3}, 0x00020000")
    A(f"s_lshl_b32 s{sT0}, s{sTM}, 17\ns_lshl_b32 s{sT1}, s{sSP}, 14\ns_add_u32 s{sT0}, s{sT0}, s{sT1}\ns_lshl_b32 s{sT1}, s{sTN}, 8\ns_add_u32 s{sT0}, s{sT0}, s{sT1}\ns_lshl_b32 s{sT1}, s{sW}, 6\ns_add_u32 s{sT0}, s{sT0}, s{sT1}")
    A(f"v_and_b32 v{T3+2}, 15, v{LN3}\nv_lshrrev_b32 v{T3+3}, 4, v{LN3}\nv_lshlrev_b32 v{T3+2}, 10, v{T3+2}\nv_lshl_add_u32 v{T3+2}, v{T3+3}, 3, v{T3+2}\nv_add_u32 v{VX}, s{sT0}, v{T3+2}\ns_mov_b32 s{sT2}, 0x100000")
    for jb in range(2):
        for h in range(2):
            A(f"buffer_load_dwordx2 {ar(4*jb+2*h,2)}, v{VX}, s[{S_X}:{S_X+3}], {'s%d' % sT2 if jb else '0'} offen offset:{h*32}"); seq3.append(('X', 0))
    A(f"s_lshl_b32 s{sTL}, s{sTM}, 2\ns_add_u32 s{sTL}, s{sTL}, s{sTN}\ns_lshl_b32 s{sT0}, s{sTL}, 7\ns_add_u32 s{sT0}, s{sT0}, 2048\nv_mov_b32 v{T3+6}, s{sT0}\nv_add_u32 v{T3+7}, 4096, v{T3+6}")
    A(f"s_lshl_b32 s{sTL}, s{sTL}, 18\ns_add_u32 s{sTL}, s{sTL}, {P2_BASE}\ns_lshl_b32 s{sT0}, s{sSP}, 15\ns_lshl_b32 s{sT1}, s{sW}, 13\ns_add_u32 s{sOB3}, s{sTL}, s{sT0}\ns_add_u32 s{sOB3}, s{sOB3}, s{sT1}")
    def epi3(jb):
        o = []
        for np_ in range(4):
            for t in range(2):
                b0 = ACC3[jb] + ((2*np_)*2 + t)*4; b1 = ACC3[jb] + ((2*np_+1)*2 + t)*4
                o += [f"v_cvt_pk_bf16_f32 v{b0}, v{b0}, v{b0+1}", f"v_cvt_pk_bf16_f32 v{b0+1}, v{b0+2}, v{b0+3}", f"v_cvt_pk_bf16_f32 v{b0+2}, v{b1}, v{b1+1}", f"v_cvt_pk_bf16_f32 v{b0+3}, v{b1+2}, v{b1+3}"]
                if t == 0 and np_ % 2 == 0: o.append(f"s_add_u32 s36, s{sOB3}, {jb*(8 << 20) + np_*2048}")
                o.append(f"buffer_store_dwordx4 {vr(b0,4)}, v{VK}, s[{S_WS}:{S_WS+3}], s36 offen offset:{(np_%2)*2048 + t*1024} sc1")
        return o
    eA = epi3(0)
    NS = 2*NJ; EB = NJ - 4
    lateB = [n for n in range(NJ, NJ + 4)]; nxtB = NJ + 4
    for s_ in range(NS):
        jb = s_ // NJ
        extra = {}
        if s_ == NJ:
            A(f"s_cmp_eq_u32 s{sRD2}, 0\ns_cbranch_scc1 K3_HSPIN_F")
            A.label("K3_HOK")
            spin("K3_HSPIN", T3+1, T3+5, 0, 32, srd=f"s[{S_WS}:{S_WS+3}]", so="s39", slp=SLP2)
            stubs.append(["K3_HSPIN_B:"] + [x for n in lateB for x in flat(al(n, False))] + ["s_branch K3_HOK"])
            for n in lateB: seq3.extend([('A', n)]*2)
            st(98)
        A(f"s_waitcnt vmcnt({vm3(('A', s_))}) lgkmcnt(8)")
        if s_ % 2 == 0:
            extra[0] = [f"s_waitcnt vmcnt({min(vm3(('W', min(s_+2, NS-1))), vm3(('SA', 0)) if ('SA', 0) in seq3 and s_ == NJ+8 else 63)})", "s_barrier"]
            if s_ == NJ + 8:
                extra[0] += [f"s_cmp_lg_u32 s{sW}, 0", "s_cbranch_scc1 K3_NOSA", "s_mov_b64 exec, 1", f"buffer_atomic_add v{T3+4}, v{T3+6}, s[{S_WS}:{S_WS+3}], s39 offen sc1", "s_mov_b64 exec, -1", "K3_NOSA:"]
        extra[6] = ["s_waitcnt lgkmcnt(6)"]
        its = []
        if s_ + LW < NS: its += wl(s_ + LW)
        ta = s_ + LA
        if ta < NJ: its += al(ta)
        elif s_ >= NJ:
            for _ in range(2):
                if nxtB <= min(ta, NS-1): its += al(nxtB); nxtB += 1
        if s_ == EB - 3: its.append([f"buffer_load_dword v{T3+1}, v{T3+5}, s[{S_WS}:{S_WS+3}], s39 offen sc1"]); seq3.append(('P', 1))
        if s_ == EB - 1:
            its.append([f"s_waitcnt vmcnt({vm3(('P', 1))})", f"v_cmp_ne_u32 vcc, 32, v{T3+1}"])
            its.append(["s_cmp_eq_u64 vcc, 0", f"s_cselect_b32 s{sRD2}, 1, s{sRD2}"])
        if EB <= s_ < NJ:
            lab = U("NB")
            its.append([f"s_cmp_eq_u32 s{sRD2}, 0", f"s_cbranch_scc1 {lab}"] + flat(al(NJ + s_ - EB, False)) + [lab + ":"])
        g_ = 2
        for it in its:
            extra.setdefault(g_, []).extend(it); g_ = min(14, g_ + 2) if g_ != 4 else 8
        if NJ + 1 <= s_ and eA:
            for g2 in (2, 4, 8, 10, 12, 14):
                for _ in range(2):
                    if eA:
                        x = eA.pop(0); extra.setdefault(g2, []).append(x)
                        if x.startswith('buffer'): seq3.append(('SA', 0))
        for nb in range(8):
            for t in range(2):
                g = nb*2 + t; d_ = ACC3[jb] + g*4
                A(f"{MF} {vr(d_,4)}, {vr(WF3+4*nb,4)}, {areg(AR3+(s_%AD)*8+4*t,4)}, {'0' if s_ % NJ == 0 else vr(d_,4)}")
                if t == 1 and s_ + 1 < NS:
                    for x in tr3(nb, s_+1): A(x)
                for x in extra.get(g, []): A(x)
    assert not eA
    A(f"buffer_load_dword v{T3+1}, v{T3+6}, s[{S_WS}:{S_WS+3}], s39 offen sc1\ns_nop 4")
    for x in epi3(1): A(x)
    PK, R = 128, 0
    def unpack(dst, src, n=4, s='v'):
        for i in range(n): A(f"v_lshlrev_b32 v{dst+2*i}, 16, v{src+i}\nv_and_b32 v{dst+2*i+1}, 0xffff0000, v{src+i}")
    def comb_loads(jb):
        A(f"s_lshr_b32 s{sT0}, s{sSP}, 1\ns_lshl_b32 s{sT0}, s{sT0}, 13\ns_and_b32 s{sT1}, s{sSP}, 1\ns_lshl_b32 s{sT1}, s{sT1}, 10\ns_add_u32 s{sT0}, s{sT0}, s{sT1}\ns_lshl_b32 s{sT1}, s{sW}, 11\ns_add_u32 s{sT0}, s{sT0}, s{sT1}\ns_add_u32 s{sT0}, s{sT0}, s{sTL}")
        for sp in (6, 7, 0, 1, 2, 3, 4, 5):
            A(f"s_add_u32 s{sT1}, s{sT0}, {jb*(8 << 20) + sp*32768}\nbuffer_load_dwordx4 {vr(PK+4*sp,4)}, v{VK}, s[{S_WS}:{S_WS+3}], s{sT1} offen sc1")
    def comb(jb):
        D, G_, XU, SS = 160, 176, 184, 192
        for i in range(4): A(f"v_accvgpr_read_b32 v{SS+i}, a{4*jb+i}")
        unpack(XU, SS)
        A("s_waitcnt vmcnt(6)")
        unpack(D, PK+24); unpack(D+8, PK+28)
        for i in range(8): A(f"v_add_f32 v{D+i}, v{D+i}, v{D+8+i}")
        for i in range(8): A(f"v_mul_f32 v{G_+i}, {hex(f32bits(-math.log2(math.e)))}, v{D+i}")
        for i in range(8): A(f"v_exp_f32 v{G_+i}, v{G_+i}")
        for i in range(8): A(f"v_add_f32 v{G_+i}, 1.0, v{G_+i}")
        for i in range(8): A(f"v_rcp_f32 v{G_+i}, v{G_+i}")
        for i in range(8): A(f"v_mul_f32 v{G_+i}, v{G_+i}, v{D+i}")
        A("s_waitcnt vmcnt(0)")
        unpack(SS, PK)
        for sp in range(1, 6):
            unpack(D, PK+4*sp)
            for i in range(8): A(f"v_add_f32 v{SS+i}, v{SS+i}, v{D+i}")
        for i in range(8): A(f"v_fmac_f32 v{XU+i}, v{SS+i}, v{G_+i}")
        for i in range(4): A(f"v_cvt_pk_bf16_f32 v{D+i}, v{XU+2*i}, v{XU+2*i+1}")
        for h in range(2): A(f"buffer_store_dwordx2 {vr(D+2*h,2)}, v{VX}, s[{S_O}:{S_O+3}], {'s%d' % sT2 if jb else '0'} offen offset:{h*32}")
    A(f"s_waitcnt vmcnt(8)\nv_cmp_ne_u32 vcc, 8, v{T3+1}\ns_cbranch_vccnz K4_LSPIN")
    A.label("K4_LSPIN_B")
    spin("K4_LSPIN", T3+1, T3+6, 0, 8, srd=f"s[{S_WS}:{S_WS+3}]", so="s39", slp=SLP2)
    comb_loads(0)
    A("s_waitcnt vmcnt(8)\ns_barrier")
    A(f"s_cmp_lg_u32 s{sW}, 0\ns_cbranch_scc1 K4_NOSIG\ns_mov_b64 exec, 1\nbuffer_atomic_add v{T3+4}, v{T3+7}, s[{S_WS}:{S_WS+3}], s39 offen sc1\ns_mov_b64 exec, -1")
    A.label("K4_NOSIG")
    comb(0)
    A(f"s_cmp_lg_u32 s{sW}, 0\ns_cbranch_scc0 K4_TSPIN_F")
    A.label("K4_TSPIN_B")
    spin("K4_TSPIN", T3+1, T3+7, 0, 8, srd=f"s[{S_WS}:{S_WS+3}]", so="s39", slp=SLP2)
    A("s_barrier")
    st(100)
    comb_loads(1)
    comb(1)
    if asmlib.STAMP and QD:
        A(f"s_mov_b32 s{P_WS}, s{S_WS}\ns_mov_b32 s{P_WS+1}, s{S_WS+1}\ns_waitcnt lgkmcnt(0)")
    elif asmlib.STAMP:
        A(f"s_mov_b32 s{P_WS}, s{S_WS}\ns_mov_b32 s{P_WS+1}, s{S_WS+1}\ns_waitcnt lgkmcnt(0)\ns_mov_b64 s[68:69], s[72:73]\ns_mov_b64 s[70:71], s[76:77]\ns_mov_b64 s[72:73], s[96:97]\ns_mov_b64 s[74:75], s[98:99]\ns_mov_b64 s[76:77], s[100:101]")
    if asmlib.STAMP:
        A("s_waitcnt vmcnt(0)")
        stamp_flush(A, 0, 8, P_WS, sW)
    A.label("K2_END")
    A("s_endpgm")
    for st in stubs:
        for x in st: A(x)
    return dict(name="k12_kernel", vgpr=512, accum=256, sgpr=102, grid=256, block=256, lds=163840)
```

```python
import sys
from asmlib import *
import asmlib, os
asmlib.STAMP = os.environ.get('STAMP','0')=='1'
import k1
HEADER = open('recurrent_scan__compressed_kv_cla__glu_gated_reglu__prompt.s.ref').read().split('; Override')[0]
def build(kernels, check=True):
    A = Asm()
    infos = []
    for g in kernels:
        start = len(A.lines)
        infos.append(g(A))
    body = A.text()
    if check:
        check_hazards(A.lines)
    out = HEADER
    for i in infos:
        out += f"; @launch kernel={i['name']} grid=({i['grid']},1,1) block=({i['block']},1,1) lds={i['lds']}\n"
    MAC = {'v_mfma_f32_16x16x32_bf16': 'mf', 'ds_read_b64_tr_b16': 'trr', 'buffer_load_dwordx4': 'bl4', 'buffer_store_dwordx4': 'bs4', 'v_cvt_pk_bf16_f32': 'cvp',
           'ds_read_b128': 'dr4', 'v_accvgpr_write_b32': 'acw', 'v_exp_f32': 'vex', 'v_add_f32': 'vaf', 'v_mul_f32': 'vmf', 'v_sub_f32': 'vsf', 's_add_u32': 'sad', 's_waitcnt': 'swc'}
    mac = ''.join(f".macro {v} a:vararg\n {k} \\a\n.endm\n" for k, v in MAC.items())
    import re
    body = re.sub(r'(?m)^ (\w+) ', lambda m: ' ' + MAC.get(m.group(1), m.group(1)) + ' ', body)
    out += '.amdgcn_target "amdgcn-amd-amdhsa--gfx950"\n.text\n' + mac + body
    out += '.section .rodata,"a"\n'
    for i in infos:
        out += f""".p2align 6
.amdhsa_kernel {i['name']}
  .amdhsa_next_free_vgpr {i['vgpr']}
  .amdhsa_next_free_sgpr {i['sgpr']}
  .amdhsa_accum_offset {i['accum']}
  .amdhsa_group_segment_fixed_size 0
  .amdhsa_kernarg_size 104
  .amdhsa_user_sgpr_count 2
  .amdhsa_user_sgpr_kernarg_segment_ptr 1
  .amdhsa_system_sgpr_workgroup_id_x 1
.end_amdhsa_kernel
"""
    return out
if __name__ == '__main__' and os.environ.get('NEW') == '1':
    import k2n
    s = build([k2n.gen_k2])
    open(sys.argv[1], 'w').write(s); print(len(s), "bytes")
elif __name__ == '__main__' and os.environ.get('FUSE', '0') == '1':
    import k1f, k2f, k3f
    s = build([lambda A: k2f.gen_k2(A, k1f.gen_k1(A, store_flags=' sc1'), store_flags=' sc1')] + ([] if k2f.FULL else [k3f.gen_k3, k3f.gen_k4]))
    open(sys.argv[1], 'w').write(s); print(len(s), "bytes")
elif __name__ == '__main__' and os.environ.get('QF', '1') == '1':
    import k1q, k2q, k3q
    if os.environ.get('K3E'): import k3e as k3q
    s = build([lambda A: k1q.gen_k1(A, store_flags=' ' + os.environ.get('SF1', 'sc1')), lambda A: k2q.gen_k2(A, store_flags=' sc1'), k3q.gen_k3, k3q.gen_k4])
    open(sys.argv[1], 'w').write(s); print(len(s), "bytes")
elif __name__ == '__main__':
    sf = os.environ.get('SF', 'sc1')
    sf = (' ' + sf) if sf else ''
    sf1 = os.environ.get('SF1', sf.strip()); sf1 = (' ' + sf1) if sf1 else ''
    ks = [lambda A: k1.gen_k1(A, store_flags=sf1)]
    try:
        import k2; ks.append(lambda A: k2.gen_k2(A, store_flags=sf))
        if os.environ.get('K3', 'd') == 'a':
            import k3; ks.append(k3.gen_k3)
        elif os.environ.get('K3', 'd') == 'd':
            import k3d; ks.append(k3d.gen_k3); ks.append(k3d.gen_k4)
        elif os.environ.get('K3', 'c') == 'c':
            import k3c; ks.append(k3c.gen_k3); ks.append(k3c.gen_k4)
        else:
            import k3b; ks.append(k3b.gen_k3); ks.append(k3b.gen_k4)
    except ImportError as e:
        print("partial:", e)
    s = build(ks)
    open(sys.argv[1] if len(sys.argv) > 1 else 'cur.s', 'w').write(s)
    print(len(s), "bytes")
```

```python
from asmlib import *
import asmlib, math, os, struct
KV_BASE = 1 << 20
A3_BASE = 33 << 20
A3_TB64 = 171 * 4096
XC_BASE = 56 << 20
SCQ_BASE = 58 << 20
CNT_BASE = 59 << 20
P2_BASE = 60 << 20
WS_USED = 77 << 20
MF = "v_mfma_f32_16x16x32_bf16"
CSCALE = math.log2(math.e) / math.sqrt(128.0)
QD = os.environ.get('QD') == '1'
EPF = float(os.environ.get('EPF', '0.8'))
def f32bits(x): return struct.unpack('<I', struct.pack('<f', x))[0]

class Em:
    def __init__(self, A, seq=None): self.A = A; self.seq = list(seq or [])
    def cnt(self, tag): return len(self.seq) - 1 - max(i for i, e in enumerate(self.seq) if e == tag)
    def __call__(self, x):
        for l in x.split('\n'):
            if l.startswith('@VM:'):
                self.A(f"s_waitcnt vmcnt({min(63, min(self.cnt(t) for t in l[4:].split(',')))})")
            else:
                tag = None
                if ' ;T=' in l: l, tag = l.split(' ;T=')
                if l.startswith('buffer') or l.startswith('global'):
                    if tag != '-': self.seq.append(tag or 'x')
                self.A(l)

def gen_front(A, k2):
    ACC = [8, 72]; WF = 136; TRA = 168; TRG = 184; VW = 192; VWG = 194; VL = 195; VO = 196; OUT = 200; SCG = 208; SCQ = 212; QT = 216; T = 216
    VOH, SCH, XO, XP, DUM = 248+1, 251, 253, 254, 255
    S_WS, S_ACT, S_W, S_G, S_U, S_DBG = 12, 48, 52, 56, 60, 80
    S_Q = S_ACT
    sW, sH, sI, sT0, sT1 = 16, 17, 18, 19, 20
    sTB, sCG, sROT, sOB, sOBASE, sM0, sSTG, sOG = 21, 22, 23, 34, 35, 36, 39, 37
    sRQ8, sRQG, sAQ, sXH, sXL = 88, 92, 96, 100, 101
    P_X, P_CKV, P_WQ, P_WUK, P_WUV, P_DBG = 26, 28, 30, 32, 24, 84
    A(".globl k12_kernel\n.p2align 8\n.type k12_kernel,@function")
    A.label("k12_kernel")
    A("s_cmp_ge_u32 s2, 256\ns_cbranch_scc1 K2_END")
    if os.environ.get('PERM'): A(f"s_mul_i32 s2, s2, {os.environ['PERM']}\ns_add_u32 s2, s2, 11\ns_lshr_b32 s3, s2, 3\ns_and_b32 s3, s3, 7\ns_xor_b32 s2, s2, s3\ns_and_b32 s2, s2, 255")
    stamp(A, 0)
    A(f"s_load_dwordx2 s[{P_X}:{P_X+1}], s[0:1], 0\ns_load_dwordx2 s[{P_CKV}:{P_CKV+1}], s[0:1], 8\ns_load_dwordx2 s[{P_WQ}:{P_WQ+1}], s[0:1], 16\ns_load_dwordx2 s[{P_WUK}:{P_WUK+1}], s[0:1], 24")
    A(f"s_load_dwordx2 s[{P_WUV}:{P_WUV+1}], s[0:1], 32\ns_load_dwordx2 s[{S_G}:{S_G+1}], s[0:1], 56\ns_load_dwordx2 s[{S_U}:{S_U+1}], s[0:1], 64\ns_load_dwordx2 s[{S_WS}:{S_WS+1}], s[0:1], 96\ns_load_dwordx2 s[{S_DBG}:{S_DBG+1}], s[0:1], 88")
    A(f"s_load_dwordx4 s[40:43], s[0:1], 96\ns_load_dwordx2 s[42:43], s[0:1], 40\ns_load_dwordx2 s[44:45], s[0:1], 72".replace("s_load_dwordx4 s[40:43], s[0:1], 96", "s_load_dwordx2 s[40:41], s[0:1], 96"))
    A(f"v_lshrrev_b32 v1, 6, v0\nv_and_b32 v0, 63, v0\ns_nop 0\nv_readfirstlane_b32 s{sW}, v1")
    A(f"s_and_b32 s{sT0}, s2, 1\ns_lshl_b32 s{sT0}, s{sT0}, 2\ns_lshr_b32 s{sT1}, s2, 3\ns_and_b32 s{sTB}, s{sT1}, 3\ns_lshr_b32 s{sI}, s{sT1}, 2\ns_and_b32 s{sH}, s2, 7\ns_lshl_b32 s{sH}, s{sH}, 2\ns_add_u32 s{sH}, s{sH}, s{sTB}\ns_add_u32 s{sTB}, s{sTB}, s{sT0}")
    A(f"s_and_b32 s{sT0}, s2, 6\ns_lshl_b32 s{sCG}, s{sT0}, 2\ns_add_u32 s{sCG}, s{sCG}, s{sI}")
    for r in (S_WS, S_ACT, S_W, S_G, S_U, S_DBG, 4): A(f"s_mov_b32 s{r+3}, 0x00020000")
    A(f"s_mov_b32 s{S_WS+2}, {WS_USED}\ns_mov_b32 s{S_ACT+2}, 0x200000\ns_mov_b32 s{S_DBG+2}, 256\ns_mov_b32 s6, 0x200000")
    A(f"s_lshl_b32 s{sSTG}, s{sW}, 13\ns_lshl_b32 s{sM0}, s{sW}, 12\ns_add_u32 s{sROT}, s{sCG}, s{sTB}\ns_and_b32 s{sROT}, s{sROT}, 3")
    A(f"s_lshl_b32 s{sT1}, s{sTB}, 18\ns_lshl_b32 s{sT0}, s{sW}, 16\ns_add_u32 s{sOB}, s{sT1}, s{sT0}")
    for q in range(4):
        A(f"s_add_u32 s{sT0}, s{sROT}, {q}\ns_and_b32 s{sT0}, s{sT0}, 3\ns_lshl_b32 s{sT1}, s{sT0}, 8\ns_add_u32 s{sAQ+q}, s{sOB}, s{sT1}\ns_lshl_b32 s{sT0}, s{sT0}, 20\ns_lshl_b32 s{sT1}, s{sW}, 18\ns_add_u32 s{sRQ8+q}, s{sT0}, s{sT1}")
    A(f"v_lshlrev_b32 v{VL}, 4, v0\nv_mov_b32 v248, v0\nv_lshrrev_b32 v1, 4, v0\nv_bfe_u32 v2, v0, 2, 2\nv_and_b32 v3, 3, v0")
    A(f"s_lshl_b32 s{sT0}, s2, 13\ns_lshl_b32 s{sT1}, s{sW}, 11\ns_add_u32 s{sT0}, s{sT0}, s{sT1}\nv_lshrrev_b32 v4, 5, v0\nv_lshlrev_b32 v4, 10, v4\nv_and_b32 v5, 31, v0\nv_lshl_add_u32 v4, v5, 4, v4")
    A(f"v_lshrrev_b32 v5, 3, v0\nv_and_b32 v6, 7, v0\nv_xor_b32 v7, v6, v1\nv_lshlrev_b32 v{T}, 10, v5\nv_lshl_add_u32 v{T}, v7, 4, v{T}\nv_xor_b32 v{T+1}, 64, v{T}")
    A(f"v_bfe_u32 v7, v0, 4, 1\nv_lshlrev_b32 v7, 1, v7\nv_xor_b32 v6, v6, v7\nv_lshlrev_b32 v5, 13, v5\nv_lshl_add_u32 v{VW}, v6, 4, v5\nv_xor_b32 v{VW+1}, 64, v{VW}")
    code_touch(A, "k12_kernel", "K1_FIN", sW, 0, DUM, 84)
    A("s_waitcnt lgkmcnt(0)")
    A(f"s_mov_b32 s4, s{P_X}\ns_mov_b32 s5, s{P_X+1}\ns_mov_b32 s{S_ACT}, s{P_CKV}\ns_mov_b32 s{S_ACT+1}, s{P_CKV+1}")
    LX = ACC[1]
    A(f"buffer_load_dwordx4 {vr(LX,4)}, v4, s[4:7], s{sT0} offen\nbuffer_load_dwordx4 {vr(LX+4,4)}, v4, s[4:7], s{sT0} offen offset:512")
    A(f"s_cmp_ge_u32 s{sCG}, 16\ns_cselect_b32 s{S_W}, s{P_WUV}, s{P_WUK}\ns_cselect_b32 s{S_W+1}, s{P_WUV+1}, s{P_WUK+1}\ns_and_b32 s{sT0}, s{sCG}, 15\ns_lshl_b32 s{sT0}, s{sT0}, 9\ns_add_u32 s{S_W}, s{S_W}, s{sT0}\ns_addc_u32 s{S_W+1}, s{S_W+1}, 0\ns_sub_u32 s{S_W+2}, {512*8192}, s{sT0}")

    SUS = ['T', 'T', 'T', 'T', 'G', 'H', 'Q', 'Q']
    def dma_slot(n):
        su, q = n // 4, n % 4
        kind = SUS[su]; o = []
        for j in range(4):
            if kind in 'GH': srd = S_G if j < 2 else S_U; so = f"s_add_u32 s{sT0}, s{sRQG+q}, {(j%2)*16*2752}"; v = VWG
            else:
                srd = S_W if kind == 'T' else S_Q; so = f"s_add_u32 s{sT0}, s{sRQ8+q}, {(su if kind == 'T' else su-6)*128 + j*65536}"; v = VW + (j & 1)
            o.append([f"s_add_u32 m0, s{sM0}, {(n % 8)*16384 + j*1024}", so, f"buffer_load_dwordx4 v{v}, s[{srd}:{srd+3}], s{sT0} offen lds ;T=W{n}"])
        return o
    def trreads(fi, su, nb, q, ks):
        base = (TRG if SUS[su] in 'GH' else TRA + 8*(su % 2)) + 2*nb
        off = q*16384 + ks*4096
        return [f"ds_read_b64_tr_b16 {vr(WF+4*fi,2)}, v{base} offset:{off}", f"ds_read_b64_tr_b16 {vr(WF+4*fi+2,2)}, v{base+1} offset:{off}"]
    def c_round(r):
        return [[f"s_add_u32 m0, s{sSTG}, {98304 + (r%2)*32768 + j*1024}", f"s_add_u32 s{sT0}, s{sAQ+r//2}, {j*8192 + (r%2)*128}",
                 f"buffer_load_dwordx4 v{T+(j&1)}, s[{S_ACT}:{S_ACT+3}], s{sT0} offen lds ;T=R{r}"] for j in range(8)]
    def c_reads(r): return [f"ds_read_b128 {ar((t*16+2*r+k2)*4, 4)}, v{T+2+k2} offset:{(r%2)*32768 + t*2048}" for t in range(4) for k2 in range(2)]
    def store(oq, vo, off, so, tag): return f"buffer_store_dwordx4 {vr(OUT+4*oq,4)}, v{vo}, s[{S_WS}:{S_WS+3}], s{so} offen offset:{off} sc1 ;T={tag}"
    def cv(d, s): return [f"v_cvt_pk_bf16_f32 v{d}, v{s}, v{s+1}", f"v_cvt_pk_bf16_f32 v{d+1}, v{s+2}, v{s+3}"]
    def epi_T(ty, su):
        acc = ACC[su % 2]; blk = lambda nb, t: acc + (nb*4+t)*4
        ops = [f"s_add_u32 s{sOB}, s{sOBASE}, {(su//2)*(1 << 20) + (su%2)*(2048 if ty == 'K' else 4096)}"]; oq = 0
        if ty == 'K':
            for pr in range(2):
                for t in range(4):
                    ops += cv(OUT+4*oq, blk(2*pr, t)) + cv(OUT+4*oq+2, blk(2*pr+1, t)) + [store(oq, VO+t, pr*1024, sOB, f"S{su}")]; oq ^= 1
        else:
            for nb in range(4):
                for v in range(2):
                    ops += cv(OUT+4*oq, blk(nb, 2*v)) + cv(OUT+4*oq+2, blk(nb, 2*v+1)) + [store(oq, VO+v, nb*1024, sOB, f"S{su}")]; oq ^= 1
        return ops
    def epi_G(acc, nt, vo, sc, so, tag):
        blk = lambda nb, t: acc + (nb*nt+t)*4
        ops = []; oq = 0
        for t in range(nt):
            for h in range(2):
                g = blk(h, t); u = blk(h+2, t)
                ops += [f"v_max_f32 v{g+i}, 0, v{g+i}" for i in range(4)] + [f"v_mul_f32 v{u+i}, v{u+i}, v{sc+t}" for i in range(4)] + [f"v_mul_f32 v{g+i}, v{g+i}, v{u+i}" for i in range(4)]
                ops += cv(OUT+4*oq+2*h, g)
            ops.append(store(oq, vo+t, 0, so, tag)); oq ^= 1
        return ops
    def epi_Q(acc, pr, dst, SCQ=SCQ):
        o = []
        for t in range(4):
            for h in range(2):
                b = acc + ((2*pr+h)*4 + t)*4
                o += [f"v_mul_f32 v{b+i}, v{b+i}, v{SCQ+t}" for i in range(4)] + cv(dst(t)+2*h, b)
        return o
    def x_all():
        o = []
        for q in range(4):
            sa, sb = 4 + 2*(q % 2), 5 + 2*(q % 2)
            for n in range(16):
                t, k = n // 4, n % 4
                it = [f"s_add_u32 s{sa}, s{sXH}, s{sAQ+q}", f"s_add_u32 s{sb}, s{sXL}, s{sAQ+q}"] if n == 0 else []
                o.append(it + [f"buffer_load_dwordx4 {ar((t*16+4*q+k)*4,4)}, v{VL if t % 2 == 0 else DUM}, s[{S_WS}:{S_WS+3}], s{sa if t < 2 else sb} offen offset:{k*1024} sc1 ;T=X{q}"])
        return o
    XA = x_all(); XR_ = int(os.environ.get('XRATE', '16'))
    xs = lambda p: XA[min(64, XR_*p):min(64, XR_*(p+1))]
    def sig(vone, voff, off, lab): return [f"s_cmp_lg_u32 s{sW}, 0", f"s_cbranch_scc1 {lab}", "s_mov_b64 exec, 1", f"buffer_atomic_add v{vone}, v{voff}, s[{S_DBG}:{S_DBG+3}], 0 offen offset:{off} sc1 ;T=-", "s_mov_b64 exec, -1", f"{lab}:"]

    def body(E, su, ty, epi, items=None, barx=None, ts=(0, 1, 2, 3), acc=None, prew=None):
        nt = len(ts); GL = 4*nt; NM = 4*GL
        acc = ACC[su % 2] if acc is None else acc
        gaps = {}
        def G(q, m): return gaps.setdefault((q, m), {'mem': [], 'other': []})
        def used(q, m): g = G(q, m); return len(g['mem']) + len(g['other'])
        free = lambda m: m % GL < GL - 4
        prew = dict(prew or {})
        for q in range(4):
            n = 4*su + q
            tags = [f"W{n+1}"] if n + 1 < 32 else []
            bx = (barx or {}).get(q, ([], []))
            tags += bx[0]
            G(q, 0)['other'] += ([f"@VM:{','.join(tags)}"] if tags else []) + ["s_barrier"] + bx[1]
            for nb in range(4):
                if nt == 4: G(q, nb*GL + 11)['other'].append("s_waitcnt lgkmcnt(0)")
                else: prew.setdefault((q, nb*GL), []).append("s_waitcnt lgkmcnt(8)")
            its = list(dma_slot(n+7)) if n + 7 < 32 else []
            fr = [m for m in range(1, NM) if free(m) and not (nt == 4 and m % GL == 11)]
            allit = []
            for tr in its: allit += [tr[:2], tr[2:]]
            allit += (items or {}).get(q, [])
            step = max(1, min(3, len(fr)//max(1, len(allit))))
            for k, it in enumerate(allit):
                m = fr[min(len(fr)-1, k*step)]
                if len(it) == 1 and it[0].startswith('buffer') and not G(q, m)['other']: G(q, m)['mem'] += it
                else: G(q, m)['other'] += it
        slots = [(q, m) for q in range(4) for m in range(NM) if free(m) and (q, m) >= (0, 6)]
        cap = 2
        while True:
            flat = [s_ for s_ in slots for _ in range(max(0, cap - used(*s_)))]
            if len(flat) >= 1.15*len(epi): break
            cap += 1
        step = max(1.0, EPF*len(flat)/max(1, len(epi))); idx = 0.0
        for op in epi:
            i2 = min(int(idx), len(flat)-1)
            if op.startswith('buffer'):
                i3 = i2
                while i3 < min(len(flat), i2 + 6) and used(*flat[i3]): i3 += 1
                if i3 < len(flat) and not used(*flat[i3]): idx = max(idx, i3); G(*flat[i3])['mem'].append(op)
                else: G(*flat[i2])['other'].append(op)
            else: G(*flat[i2])['other'].append(op)
            idx += step
        for q in range(4):
            for m in range(NM):
                nb, ti, ks = m // GL, (m // 4) % nt, m % 4; fi = (nb % 2)*4 + ks
                for x in prew.get((q, m), []): E(x)
                d = acc + (nb*nt+ti)*4; kk = q*4 + ks
                w = vr(WF+4*fi, 4); a = ar((ts[ti]*16+kk)*4, 4); c = "0" if kk == 0 else vr(d, 4)
                E(f"{MF} {vr(d,4)}, {a}, {w}, {c}" if ty == 'V' else f"{MF} {vr(d,4)}, {w}, {a}, {c}")
                if ti == nt - 1:
                    if nb < 2: rd = trreads(fi, su, nb+2, q, ks)
                    elif q < 3: rd = trreads(fi, su, nb-2, q+1, ks)
                    elif su < 7: rd = trreads(fi, su+1, nb-2, 0, ks)
                    else: rd = []
                    for x in rd: E(x)
                for x in G(q, m)['mem'] + G(q, m)['other']: E(x)

    E0 = Em(A, ['x', 'LX', 'LX'])
    for it in c_round(0) + dma_slot(0) + c_round(1) + dma_slot(1):
        for x in it: E0(x)
    A(f"v_lshrrev_b32 v4, 1, v2\nv_and_b32 v5, 1, v1\nv_lshl_add_u32 v4, v5, 1, v4\nv_lshl_add_u32 v6, v1, 3, v2\nv_lshlrev_b32 v7, 7, v6\nv_lshl_add_u32 v7, v3, 3, v7")
    for nb in range(4): A(f"v_xor_b32 v{XP}, {nb}, v4\nv_lshl_add_u32 v{TRA+2*nb}, v{XP}, 5, v7\nv_add_u32 v{TRA+2*nb+1}, 512, v{TRA+2*nb}\nv_add_u32 v{TRA+8+2*nb}, 0x10000, v{TRA+2*nb}\nv_add_u32 v{TRA+9+2*nb}, 0x10000, v{TRA+2*nb+1}")
    A(f"v_lshlrev_b32 v7, 6, v6\nv_lshl_add_u32 v7, v3, 3, v7")
    for nb in range(4): A(f"v_xor_b32 v{XP}, {nb%2}, v5\nv_lshl_add_u32 v{XP}, v{XP}, 5, v7\nv_add_u32 v{TRG+2*nb}, {(nb//2)*2048}, v{XP}\nv_add_u32 v{TRG+2*nb+1}, 256, v{TRG+2*nb}")
    A(f"v_lshrrev_b32 v4, 2, v0\nv_lshrrev_b32 v6, 5, v0\nv_lshlrev_b32 v6, 1, v6\nv_xor_b32 v5, v3, v6\nv_mul_u32_u24 v4, 2752, v4\nv_lshl_add_u32 v{VWG}, v5, 4, v4")
    A(f"v_and_b32 v4, 15, v0\nv_lshrrev_b32 v5, 1, v4\nv_xor_b32 v5, v5, v1\nv_lshlrev_b32 v4, 7, v4\nv_lshl_add_u32 v4, v5, 4, v4\ns_add_u32 s{sT1}, s{sSTG}, 98304\nv_add_u32 v{T+2}, s{sT1}, v4\nv_xor_b32 v{T+3}, 64, v{T+2}")
    A(f"s_lshl_b32 s{sT0}, s{sH}, 6\ns_add_u32 s{S_G}, s{S_G}, s{sT0}\ns_addc_u32 s{S_G+1}, s{S_G+1}, 0\ns_add_u32 s{S_U}, s{S_U}, s{sT0}\ns_addc_u32 s{S_U+1}, s{S_U+1}, 0\ns_sub_u32 s{S_G+2}, {512*2752}, s{sT0}\ns_mov_b32 s{S_U+2}, s{S_G+2}")
    for q in range(4): A(f"s_add_u32 s{sT0}, s{sI}, {q}\ns_and_b32 s{sT0}, s{sT0}, 3\ns_lshl_b32 s{sT0}, s{sT0}, 2\ns_add_u32 s{sT0}, s{sT0}, s{sW}\ns_mul_i32 s{sRQG+q}, s{sT0}, {32*2752}")
    A(f"s_lshl_b32 s{sT0}, s{sI}, 3\ns_lshl_b32 s{sT1}, s{sW}, 1\ns_add_u32 s{sXL}, s{sT0}, s{sT1}\ns_sub_u32 s{sXH}, 120, s{sT0}\ns_add_u32 s{sXH}, s{sXH}, s{sT1}")
    A(f"s_lshl_b32 s{sOBASE}, s{sTB}, 17\ns_lshl_b32 s{sT0}, s{sW}, 15\ns_add_u32 s{sOBASE}, s{sOBASE}, s{sT0}\ns_and_b32 s{sT0}, s{sCG}, 15\ns_lshl_b32 s{sT0}, s{sT0}, 21\ns_add_u32 s{sOBASE}, s{sOBASE}, s{sT0}\ns_add_u32 s{sOBASE}, s{sOBASE}, {KV_BASE}")
    F = ACC[0]; D, D2 = LX+8, LX+9
    def red():
        for n in (8, 4, 2, 1): A(f"s_nop 1\nv_add_f32_dpp v{D}, v{D}, v{D} row_ror:{n} row_mask:0xf bank_mask:0xf")
        A(f"v_mov_b32 v{D2}, v{D}\ns_nop 1\nv_permlane16_swap_b32 v{D}, v{D2}\nv_add_f32 v{D}, v{D}, v{D2}")
    E0("@VM:LX")
    for i in range(8): A(f"v_lshlrev_b32 v{F+2*i}, 16, v{LX+i}\nv_and_b32 v{F+2*i+1}, 0xffff0000, v{LX+i}")
    for i in range(8): A(f"v_add_f32 v{F+16+i}, v{F+i}, v{F+8+i}")
    for n in (4, 2, 1):
        for i in range(n): A(f"v_add_f32 v{F+16+i}, v{F+16+i}, v{F+16+n+i}")
    A(f"v_mov_b32 v{D}, v{F+16}"); red()
    A(f"v_mul_f32 v{D}, {hex(f32bits(-1.0/512))}, v{D}")
    for i in range(16): A(f"v_add_f32 v{F+i}, v{F+i}, v{D}")
    for i in range(8): A(f"v_cvt_pk_bf16_f32 v{LX+i}, v{F+2*i}, v{F+2*i+1}")
    for i in range(4): A(f"v_mul_f32 v{F+16+i}, v{F+i}, v{F+i}")
    for i in range(4, 16): A(f"v_fmac_f32 v{F+16+i%4}, v{F+i}, v{F+i}")
    A(f"v_add_f32 v{F+16}, v{F+16}, v{F+17}\nv_add_f32 v{F+18}, v{F+18}, v{F+19}\nv_add_f32 v{D}, v{F+16}, v{F+18}"); red()
    A(f"v_mov_b32 v{D2}, {hex(f32bits(1e-5))}\nv_fmac_f32 v{D2}, {hex(f32bits(1.0/512))}, v{D}\nv_rsq_f32 v{D}, v{D2}")
    A(f"s_and_b32 s{sT0}, s2, 1\ns_lshl_b32 s{sT0}, s{sT0}, 3\ns_lshl_b32 s{sT1}, s{sW}, 1\ns_add_u32 s{sT0}, s{sT0}, s{sT1}\nv_lshrrev_b32 v4, 5, v0\nv_add_u32 v4, s{sT0}, v4")
    A(f"v_bfe_u32 v5, v0, 2, 3\nv_lshlrev_b32 v5, 10, v5\nv_lshl_add_u32 v5, v3, 8, v5\nv_lshl_add_u32 v5, v4, 4, v5\nv_lshlrev_b32 v4, 2, v4")
    A(f"s_lshr_b32 s{sT0}, s2, 1\ns_lshl_b32 s{sT1}, s{sT0}, 14\ns_add_u32 s{sT1}, s{sT1}, {XC_BASE}\ns_add_u32 s3, s{sT1}, 8192\ns_lshl_b32 s{sT0}, s{sT0}, 6\ns_add_u32 s{sT0}, s{sT0}, {SCQ_BASE}")
    E0(f"buffer_store_dwordx4 {vr(LX,4)}, v5, s[{S_WS}:{S_WS+3}], s{sT1} offen sc1 ;T=LN\nbuffer_store_dwordx4 {vr(LX+4,4)}, v5, s[{S_WS}:{S_WS+3}], s3 offen sc1 ;T=LN\nbuffer_store_dword v{D}, v4, s[{S_WS}:{S_WS+3}], s{sT0} offen sc1 ;T=LN")
    A(f"s_cmp_ge_u32 s2, 2\ns_cbranch_scc1 K1_NOZ\ns_lshl_b32 s{sT0}, s2, 13\ns_add_u32 s{sT0}, s{sT0}, {CNT_BASE}\nv_lshlrev_b32 v4, 7, v0\nv_mov_b32 v5, 0\nbuffer_store_dword v5, v4, s[{S_WS}:{S_WS+3}], s{sT0} offen sc1")
    A.label("K1_NOZ")
    A(f"s_and_b32 s{sT0}, s2, 15\ns_lshl_b32 s{sT0}, s{sT0}, 2\nv_mov_b32 v4, s{sT0}\nv_mov_b32 v5, 1\nv_and_b32 v{XO}, 15, v0\nv_lshlrev_b32 v{XO}, 2, v{XO}")
    E0("@VM:R0,W0"); A("s_barrier")
    A(f"s_cmp_ge_u32 s{sCG}, 16\ns_cbranch_scc1 K1_V")
    seq0 = list(E0.seq); ends = []
    stubs = k2['stubs']
    for ty in 'KV':
        A.label(f"K1_{ty}")
        E = Em(A, seq0)
        for t in range(4): A(f"v_add_u32 v{VO+t}, {((t//2)*16384 + (t%2)*4096) if ty == 'K' else ((t%2)*16384 + 8192)}, v{VL}")
        for x in c_reads(0): A(x)
        for fi in range(8):
            for x in trreads(fi, 0, fi % 4, 0, fi // 4): A(x)
        A("s_waitcnt lgkmcnt(12)")
        gaps = {}; prew = {}
        def G(q, m): return gaps.setdefault((q, m), {'mem': [], 'other': []})
        def put(q, m, trips):
            for tr in trips:
                G(q, m)['other'] += tr[:2]; m = m + 1 if (m + 1) % 4 != 3 else m + 2
                G(q, m)['mem'].append(tr[2])
            return m
        for q in range(4):
            for grp in range(1, 16, 2): G(q, grp*4+2)['other'].append(f"s_waitcnt lgkmcnt({6 if (q == 3 and grp == 15) else 10})")
        for h in range(8):
            q = h // 2; base = 32*(h % 2)
            if h >= 1: prew[(q, base)] = ["s_waitcnt lgkmcnt(2)"]
            need = 'W1' if h == 1 else (f'W{q+1}' if h in (2, 4, 6) else None)
            if need: G(q, base)['other'] += [f"@VM:{need}", "s_barrier"]
            if h == 7: G(q, base)['other'] += ["s_barrier"]
            m = base + 1
            if h + 2 <= 7: m = put(q, m, c_round(h+2))
            if h <= 3: m = put(q, m, dma_slot(h+2))
            if h == 7:
                for n in range(6, 11): m = put(q, m, dma_slot(n))
            if h + 1 <= 7:
                mm = base + 24; prew[(q, mm)] = [f"@VM:R{h+1}"]; rds = c_reads(h+1)
                for k, p in enumerate((mm, mm+1, mm+2, mm+4)): G(q, p)['mem'] += rds[2*k:2*k+2]
        for q in range(4):
            for m in range(64):
                ks, nb, t = m // 16, (m // 4) % 4, m % 4; fi = (ks % 2)*4 + nb
                for x in prew.get((q, m), []): E(x)
                d = ACC[0] + (nb*4+t)*4; kk = q*4 + ks
                w = vr(WF+4*fi, 4); a = ar((t*16+kk)*4, 4); c = "0" if kk == 0 else vr(d, 4)
                E(f"{MF} {vr(d,4)}, {a}, {w}, {c}" if ty == 'V' else f"{MF} {vr(d,4)}, {w}, {a}, {c}")
                if t == 3:
                    rd = trreads(fi, 0, nb, q, ks+2) if ks < 2 else (trreads(fi, 1, fi // 4, 0, fi % 4) if q == 3 else trreads(fi, 0, nb, q+1, ks-2))
                    for x in rd: E(x)
                for x in G(q, m)['mem'] + G(q, m)['other']: E(x)
        stamp(A, 1)
        misc1 = [[f"s_add_u32 s{sT1}, s{sI}, {q}", f"s_and_b32 s{sT1}, s{sT1}, 3", f"s_lshl_b32 s{sAQ+q}, s{sT1}, 12"] for q in range(4)]
        misc1 += [[f"s_lshl_b32 s{sT1}, s{sH}, 8", f"s_add_u32 s{S_Q}, s{P_WQ}, s{sT1}", f"s_addc_u32 s{S_Q+1}, s{P_WQ+1}, 0", f"s_sub_u32 s{S_Q+2}, {512*8192}, s{sT1}"]]
        body(E, 1, ty, epi_T(ty, 0), items={1: misc1}, barx={2: (['LN'], sig(5, 4, 128, f"K1_NS1{ty}"))})
        if QD: stamp(A, 5)
        tmp = Asm(); code_touch(tmp, "K1_FIN", "K2_END", sW, 0, 7, 84)
        for x in tmp.lines: E(x)
        scq = [[f"s_lshl_b32 s{sT1}, s{sXH}, 6", f"s_add_u32 s46, s{sT1}, {SCQ_BASE}"], [f"s_lshl_b32 s{sT1}, s{sXL}, 6", f"s_add_u32 s47, s{sT1}, {SCQ_BASE}"],
               [f"s_lshr_b32 s{sT1}, s{sXH}, 2", f"s_mul_i32 s24, s{sT1}, {A3_TB64}"], [f"s_lshr_b32 s{sT1}, s{sXL}, 2", f"s_mul_i32 s25, s{sT1}, {A3_TB64}"],
               [f"s_lshl_b32 s{sXH}, s{sXH}, 14", f"s_add_u32 s{sXH}, s{sXH}, {XC_BASE}"], [f"s_lshl_b32 s{sXL}, s{sXL}, 14", f"s_add_u32 s{sXL}, s{sXL}, {XC_BASE}"],
               [f"v_add_u32 v{DUM}, 16384, v{VL}"]]
        rq2 = [[f"s_lshl_b32 s{sT1}, s{sAQ+q}, 8", f"s_lshl_b32 s3, s{sW}, 18", f"s_add_u32 s{sRQ8+q}, s{sT1}, s3"] for q in range(4)]
        body(E, 2, ty, epi_T(ty, 1), items={1: scq + rq2, 3: [[f"buffer_load_dword v{XP}, v{XO}, s[{S_DBG}:{S_DBG+3}], 0 offen offset:128 sc1 ;T=P"]]})
        if QD: stamp(A, 6)
        E(f"@VM:P\nv_cmp_ne_u32 vcc, 16, v{XP}\ns_cbranch_vccnz K1_XS{ty}"); A.label(f"K1_XS{ty}_B")
        k2['spin'](f"K1_XS{ty}", XP, XO, 128, 16)
        hsw = [[f"s_lshr_b32 s{sT1}, s{sH}, 1", f"s_add_u32 s{sT1}, s{sT1}, 32", f"s_sub_u32 s{sT1}, s{sT1}, s{sH}", f"s_lshl_b32 s{sT1}, s{sT1}, 6",
                f"s_add_u32 s{S_G}, s{S_G}, s{sT1}", f"s_addc_u32 s{S_G+1}, s{S_G+1}, 0", f"s_add_u32 s{S_U}, s{S_U}, s{sT1}", f"s_addc_u32 s{S_U+1}, s{S_U+1}, 0",
                f"s_sub_u32 s{S_G+2}, s{S_G+2}, s{sT1}", f"s_cmp_lt_u32 s{sH}, 22", f"s_cselect_b32 s{S_G+2}, s{S_G+2}, 0", f"s_mov_b32 s{S_U+2}, s{S_G+2}"]]
        rl = [[f"buffer_load_dword v{SCQ+t}, v{XO}, s[{S_WS}:{S_WS+3}], s{46 if t < 2 else 47} offen offset:{(t%2)*64} sc1 ;T=RS"] for t in range(4)]
        body(E, 3, ty, epi_T(ty, 2), items={0: hsw + rl, 1: xs(0), 2: xs(1), 3: xs(2)})
        if QD: stamp(A, 2)
        sc = [["@VM:RS"] + [f"v_mul_f32 v{SCG+t}, v{SCQ+t}, v{SCQ+t}" for t in range(4)], [f"v_mul_f32 v{SCQ+t}, {hex(f32bits(CSCALE))}, v{SCQ+t}" for t in range(4)]]
        post = [f"s_and_b32 s{sT1}, s{sW}, 1", f"s_lshl_b32 s{sT1}, s{sT1}, 11", f"s_add_u32 s24, s24, s{sT1}", f"s_add_u32 s25, s25, s{sT1}", f"v_add_u32 v{VO}, s24, v{VL}", f"v_add_u32 v{VO+2}, s25, v{VL}",
                f"v_add_u32 v{VO+1}, 1024, v{VO}", f"v_add_u32 v{VO+3}, 1024, v{VO+2}", f"s_lshl_b32 s{sOG}, s{sH}, 12", f"s_add_u32 s{sOG}, s{sOG}, {A3_BASE + 128*4096}"]
        tg = [[f"v_xor_b32 v{TRG+2*nb}, 0x10000, v{TRG+2*nb}", f"v_xor_b32 v{TRG+2*nb+1}, 0x10000, v{TRG+2*nb+1}"] for nb in range(4)]
        body(E, 4, 'G', epi_T(ty, 3) + post, items={0: xs(3), 1: sc + xs(4), 2: xs(5)}, prew={(q, 0): [f"@VM:X{q}"] for q in range(4)} | {(3, 1): tg[0] + tg[1], (3, 17): tg[2], (3, 33): tg[3]})
        ends.append(list(E.seq))
        stamp(A, 3 if QD else 2)
        if ty == 'K': A("s_branch K1_COMMON")
    assert ends[0] == ends[1]
    A.label("K1_COMMON")
    A(f"s_bitcmp1_b32 s{sH}, 0\ns_cbranch_scc1 K1_H1")
    for hv in range(2):
        A.label(f"K1_H{hv}")
        E = Em(A, ends[0])
        hs = [[f"v_mov_b32 v{VOH+k}, v{VO+2*hv+k}", f"v_mov_b32 v{SCH+k}, v{SCG+2*hv+k}"] for k in range(2)]
        body(E, 5, 'G', epi_G(ACC[0], 4, VO, SCG, sOG, 'SG'), items={0: hs}, ts=(2*hv, 2*hv+1), acc=QT, barx={3: (['S3'], sig(5, 4, 0, f"K1_NS2{hv}"))})
        if hv == 0: A("s_branch K1_Q"); e0 = list(E.seq)
    assert e0 == E.seq
    A.label("K1_Q")
    hob = [f"s_lshr_b32 s{sT1}, s{sH}, 1", f"s_lshl_b32 s{sT1}, s{sT1}, 12", f"s_add_u32 s{sOG}, s{sT1}, {A3_BASE + 160*4096}", f"s_cmp_lt_u32 s{sH}, 22\ns_cselect_b32 s{sOG}, s{sOG}, {WS_USED}"]
    k2i = k2['early'](dict(XO=XO, XP=XP))
    body(E, 6, 'Q', hob + epi_G(QT, 2, VOH, SCH, sOG, 'SH'), items=k2i['q0'], acc=ACC[1])
    body(E, 7, 'Q', epi_Q(ACC[1], 0, lambda t: QT+4*t) + epi_Q(ACC[1], 1, lambda t: QT+16+4*t) + [f"v_mov_b32 v{VOH+t}, v{SCQ+t}" for t in range(4)], items=k2i['q1'], acc=ACC[0], barx=k2i['bar1'])
    A.label("K1_FIN")
    return dict(SC2=VOH, QT=QT, ACC=ACC[0], epi_Q=epi_Q, XO=XO, XP=XP)
```

```python
from asmlib import *
import asmlib, math, os, struct
KV_BASE = 1 << 20
A3_BASE = 33 << 20
A3_TB64 = 171 * 4096
XC_BASE = 56 << 20
SCQ_BASE = 58 << 20
CNT_BASE = 59 << 20
P2_BASE = 60 << 20
WS_USED = 77 << 20
MF = "v_mfma_f32_16x16x32_bf16"
CSCALE = math.log2(math.e) / math.sqrt(128.0)
QD = os.environ.get('QD') == '1'
B4 = os.environ.get('B4', '0') == '1'
ZZ = os.environ.get('ZZ', '1') == '1'
EPF = float(os.environ.get('EPF', '0.95'))
def f32bits(x): return struct.unpack('<I', struct.pack('<f', x))[0]

class Em:
    def __init__(self, A, seq=None): self.A = A; self.seq = list(seq or [])
    def cnt(self, tag): return len(self.seq) - 1 - max(i for i, e in enumerate(self.seq) if e == tag)
    def __call__(self, x):
        for l in x.split('\n'):
            if l.startswith('@VM:'):
                self.A(f"s_waitcnt vmcnt({min(63, min(self.cnt(t) for t in l[4:].split(',')))})")
            else:
                tag = None
                if ' ;T=' in l: l, tag = l.split(' ;T=')
                if l.startswith('buffer') or l.startswith('global'):
                    if tag != '-': self.seq.append(tag or 'x')
                self.A(l)

def gen_front(A, k2):
    ACC = [8, 72]; WF = 136; TRA = 168; TRG = 184; VW = 192; VWG = 194; VL = 195; VO = 196; OUT = 200; SCG = 208; SCQ = 212; QT = 216; T = 216
    VOH, SCH, XO, XP, DUM = 248+1, 251, 253, 254, 255
    S_WS, S_ACT, S_W, S_G, S_U, S_DBG = 12, 48, 52, 56, 60, 80
    S_Q = S_ACT
    sW, sH, sI, sT0, sT1 = 16, 17, 18, 19, 20
    sTB, sCG, sROT, sOB, sOBASE, sM0, sSTG, sOG = 21, 22, 23, 34, 35, 36, 39, 37
    sRQ8, sRQG, sAQ, sXH, sXL = 88, 92, 96, 100, 101
    P_X, P_CKV, P_WQ, P_WUK, P_WUV, P_DBG = 26, 28, 30, 32, 24, 84
    A(".globl k12_kernel\n.p2align 8\n.type k12_kernel,@function")
    A.label("k12_kernel")
    A("s_cmp_ge_u32 s2, 256\ns_cbranch_scc1 K2_END")
    if os.environ.get('PERM'): A(f"s_mul_i32 s2, s2, {os.environ['PERM']}\ns_add_u32 s2, s2, 11\ns_lshr_b32 s3, s2, 3\ns_and_b32 s3, s3, 7\ns_xor_b32 s2, s2, s3\ns_and_b32 s2, s2, 255")
    stamp(A, 0)
    A(f"s_load_dwordx2 s[{P_X}:{P_X+1}], s[0:1], 0\ns_load_dwordx2 s[{P_CKV}:{P_CKV+1}], s[0:1], 8\ns_load_dwordx2 s[{P_WQ}:{P_WQ+1}], s[0:1], 16\ns_load_dwordx2 s[{P_WUK}:{P_WUK+1}], s[0:1], 24")
    A(f"s_load_dwordx2 s[{P_WUV}:{P_WUV+1}], s[0:1], 32\ns_load_dwordx2 s[{S_G}:{S_G+1}], s[0:1], 56\ns_load_dwordx2 s[{S_U}:{S_U+1}], s[0:1], 64\ns_load_dwordx2 s[{S_WS}:{S_WS+1}], s[0:1], 96\ns_load_dwordx2 s[{S_DBG}:{S_DBG+1}], s[0:1], 88")
    A(f"s_load_dwordx4 s[40:43], s[0:1], 96\ns_load_dwordx2 s[42:43], s[0:1], 40\ns_load_dwordx2 s[44:45], s[0:1], 72".replace("s_load_dwordx4 s[40:43], s[0:1], 96", "s_load_dwordx2 s[40:41], s[0:1], 96"))
    A(f"v_lshrrev_b32 v1, 6, v0\nv_and_b32 v0, 63, v0\ns_nop 0\nv_readfirstlane_b32 s{sW}, v1")
    A(f"s_and_b32 s{sT0}, s2, 1\ns_lshl_b32 s{sT0}, s{sT0}, 2\ns_lshr_b32 s{sT1}, s2, 3\ns_and_b32 s{sTB}, s{sT1}, 3\ns_lshr_b32 s{sI}, s{sT1}, 2\ns_and_b32 s{sH}, s2, 7\ns_lshl_b32 s{sH}, s{sH}, 2\ns_add_u32 s{sH}, s{sH}, s{sTB}\ns_add_u32 s{sTB}, s{sTB}, s{sT0}")
    A(f"s_and_b32 s{sT0}, s2, 6\ns_lshl_b32 s{sCG}, s{sT0}, 2\ns_add_u32 s{sCG}, s{sCG}, s{sI}")
    for r in (S_WS, S_ACT, S_W, S_G, S_U, S_DBG, 4): A(f"s_mov_b32 s{r+3}, 0x00020000")
    A(f"s_mov_b32 s{S_WS+2}, {WS_USED}\ns_mov_b32 s{S_ACT+2}, 0x200000\ns_mov_b32 s{S_DBG+2}, 256\ns_mov_b32 s6, 0x200000")
    A(f"s_lshl_b32 s{sSTG}, s{sW}, 13\ns_lshl_b32 s{sM0}, s{sW}, 12\ns_add_u32 s{sROT}, s{sCG}, s{sTB}\ns_and_b32 s{sROT}, s{sROT}, 3")
    A(f"s_lshl_b32 s{sT1}, s{sTB}, 18\ns_lshl_b32 s{sT0}, s{sW}, 16\ns_add_u32 s{sOB}, s{sT1}, s{sT0}")
    for q in range(4):
        A(f"s_add_u32 s{sT0}, s{sROT}, {q}\ns_and_b32 s{sT0}, s{sT0}, 3\ns_lshl_b32 s{sT1}, s{sT0}, 8\ns_add_u32 s{sAQ+q}, s{sOB}, s{sT1}\ns_lshl_b32 s{sT0}, s{sT0}, 20\ns_lshl_b32 s{sT1}, s{sW}, 18\ns_add_u32 s{sRQ8+q}, s{sT0}, s{sT1}")
    A(f"v_lshlrev_b32 v{VL}, 4, v0\nv_mov_b32 v248, v0\nv_lshrrev_b32 v1, 4, v0\nv_bfe_u32 v2, v0, 2, 2\nv_and_b32 v3, 3, v0")
    A(f"s_lshl_b32 s{sT0}, s2, 13\ns_lshl_b32 s{sT1}, s{sW}, 11\ns_add_u32 s{sT0}, s{sT0}, s{sT1}\nv_lshrrev_b32 v4, 5, v0\nv_lshlrev_b32 v4, 10, v4\nv_and_b32 v5, 31, v0\nv_lshl_add_u32 v4, v5, 4, v4")
    A(f"v_lshrrev_b32 v5, 3, v0\nv_and_b32 v6, 7, v0\nv_xor_b32 v7, v6, v1\nv_lshlrev_b32 v{T}, 10, v5\nv_lshl_add_u32 v{T}, v7, 4, v{T}\nv_xor_b32 v{T+1}, 64, v{T}")
    A(f"v_bfe_u32 v7, v0, 4, 1\nv_lshlrev_b32 v7, 1, v7\nv_xor_b32 v6, v6, v7\nv_lshlrev_b32 v5, 13, v5\nv_lshl_add_u32 v{VW}, v6, 4, v5\nv_xor_b32 v{VW+1}, 64, v{VW}")
    code_touch(A, "k12_kernel", "K1_FIN", sW, 0, DUM, 84)
    A("s_waitcnt lgkmcnt(0)")
    A(f"s_mov_b32 s4, s{P_X}\ns_mov_b32 s5, s{P_X+1}\ns_mov_b32 s{S_ACT}, s{P_CKV}\ns_mov_b32 s{S_ACT+1}, s{P_CKV+1}")
    LX = ACC[1]
    A(f"buffer_load_dwordx4 {vr(LX,4)}, v4, s[4:7], s{sT0} offen\nbuffer_load_dwordx4 {vr(LX+4,4)}, v4, s[4:7], s{sT0} offen offset:512")
    A(f"s_cmp_ge_u32 s{sCG}, 16\ns_cselect_b32 s{S_W}, s{P_WUV}, s{P_WUK}\ns_cselect_b32 s{S_W+1}, s{P_WUV+1}, s{P_WUK+1}\ns_and_b32 s{sT0}, s{sCG}, 15\ns_lshl_b32 s{sT0}, s{sT0}, 9\ns_add_u32 s{S_W}, s{S_W}, s{sT0}\ns_addc_u32 s{S_W+1}, s{S_W+1}, 0\ns_sub_u32 s{S_W+2}, {512*8192}, s{sT0}")

    SUS = ['T', 'T', 'T', 'T', 'G', 'H', 'Q', 'Q']
    def dma_slot(n):
        su, q = n // 4, n % 4
        kind = SUS[su]; o = []
        for j in range(4):
            if kind in 'GH': srd = S_G if j < 2 else S_U; so = f"s_add_u32 s{sT0}, s{sRQG+q}, {(j%2)*16*2752}"; v = VWG
            else:
                srd = S_W if kind == 'T' else S_Q; so = f"s_add_u32 s{sT0}, s{sRQ8+q}, {(su if kind == 'T' else su-6)*128 + j*65536}"; v = VW + (j & 1)
            o.append([f"s_add_u32 m0, s{sM0}, {(n % 8)*16384 + j*1024}", so, f"buffer_load_dwordx4 v{v}, s[{srd}:{srd+3}], s{sT0} offen lds ;T=W{n}"])
        return o
    def trreads(fi, su, nb, q, ks):
        base = (TRG if SUS[su] in 'GH' else TRA + 8*(su % 2)) + 2*nb
        off = q*16384 + ks*4096
        return [f"ds_read_b64_tr_b16 {vr(WF+4*fi,2)}, v{base} offset:{off}", f"ds_read_b64_tr_b16 {vr(WF+4*fi+2,2)}, v{base+1} offset:{off}"]
    CB = [32768, 65536, 98304, 131072, 98304, 131072, 98304, 131072] if B4 else [98304 + (r % 2)*32768 for r in range(8)]
    def c_round(r):
        return [[f"s_add_u32 m0, s{sSTG}, {CB[r] + j*1024}", f"s_add_u32 s{sT0}, s{sAQ+r//2}, {j*8192 + (r%2)*128}",
                 f"buffer_load_dwordx4 v{T+(j&1)}, s[{S_ACT}:{S_ACT+3}], s{sT0} offen lds ;T=R{r}"] for j in range(8)]
    def c_reads(r):
        base, o = (T+2, CB[r] - 98304) if CB[r] >= 98304 else (T+4, CB[r] - 32768)
        return [f"ds_read_b128 {ar((t*16+2*r+k2)*4, 4)}, v{base+k2} offset:{o + t*2048}" for t in range(4) for k2 in range(2)]
    def store(oq, vo, off, so, tag): return f"buffer_store_dwordx4 {vr(OUT+4*oq,4)}, v{vo}, s[{S_WS}:{S_WS+3}], s{so} offen offset:{off} sc1 ;T={tag}"
    def cv(d, s): return [f"v_cvt_pk_bf16_f32 v{d}, v{s}, v{s+1}", f"v_cvt_pk_bf16_f32 v{d+1}, v{s+2}, v{s+3}"]
    def epi_T(ty, su):
        acc = ACC[su % 2]; blk = lambda nb, t: acc + (nb*4+t)*4
        ops = [f"s_add_u32 s{sOB}, s{sOBASE}, {(su//2)*(1 << 20) + (su%2)*(2048 if ty == 'K' else 4096)}"]; oq = 0
        if ty == 'K':
            for pr in range(2):
                for t in range(4):
                    ops += cv(OUT+4*oq, blk(2*pr, t)) + cv(OUT+4*oq+2, blk(2*pr+1, t)) + [store(oq, VO+t, pr*1024, sOB, f"S{su}")]; oq ^= 1
        else:
            for nb in range(4):
                for v in range(2):
                    ops += cv(OUT+4*oq, blk(nb, 2*v)) + cv(OUT+4*oq+2, blk(nb, 2*v+1)) + [store(oq, VO+v, nb*1024, sOB, f"S{su}")]; oq ^= 1
        return ops
    def epi_G(acc, nt, vo, sc, so, tag):
        blk = lambda nb, t: acc + (nb*nt+t)*4
        ops = []; oq = 0
        for t in range(nt):
            for h in range(2):
                g = blk(h, t); u = blk(h+2, t)
                ops += [f"v_max_f32 v{g+i}, 0, v{g+i}" for i in range(4)] + [f"v_mul_f32 v{u+i}, v{u+i}, v{sc+t}" for i in range(4)] + [f"v_mul_f32 v{g+i}, v{g+i}, v{u+i}" for i in range(4)]
                ops += cv(OUT+4*oq+2*h, g)
            ops.append(store(oq, vo+t, 0, so, tag)); oq ^= 1
        return ops
    def epi_Q(acc, pr, dst, SCQ=SCQ):
        o = []
        for t in range(4):
            for h in range(2):
                b = acc + ((2*pr+h)*4 + t)*4
                o += [f"v_mul_f32 v{b+i}, v{b+i}, v{SCQ+t}" for i in range(4)] + cv(dst(t)+2*h, b)
        return o
    def x_all():
        o = []
        for q in range(4):
            sa, sb = 4 + 2*(q % 2), 5 + 2*(q % 2)
            for n in range(16):
                t, k = n // 4, n % 4
                it = [f"s_add_u32 s{sa}, s{sXH}, s{sAQ+q}", f"s_add_u32 s{sb}, s{sXL}, s{sAQ+q}"] if n == 0 else []
                o.append(it + [f"buffer_load_dwordx4 {ar((t*16+4*q+k)*4,4)}, v{VL if t % 2 == 0 else DUM}, s[{S_WS}:{S_WS+3}], s{sa if t < 2 else sb} offen offset:{k*1024} sc1 ;T=X{q}"])
        return o
    XA = x_all(); XR_ = int(os.environ.get('XRATE', '16'))
    xs = lambda p: XA[min(64, XR_*p):min(64, XR_*(p+1))]
    def sig(vone, voff, off, lab): return [f"s_cmp_lg_u32 s{sW}, 0", f"s_cbranch_scc1 {lab}", "s_mov_b64 exec, 1", f"buffer_atomic_add v{vone}, v{voff}, s[{S_DBG}:{S_DBG+3}], 0 offen offset:{off} sc1 ;T=-", "s_mov_b64 exec, -1", f"{lab}:"]

    def body(E, su, ty, epi, items=None, barx=None, ts=(0, 1, 2, 3), acc=None, prew=None):
        nt = len(ts); GL = 4*nt; NM = 4*GL
        acc = ACC[su % 2] if acc is None else acc
        gaps = {}
        def G(q, m): return gaps.setdefault((q, m), {'mem': [], 'other': []})
        def used(q, m): g = G(q, m); return len(g['mem']) + len(g['other'])
        free = lambda m: m % GL < GL - 4
        prew = dict(prew or {})
        for q in range(4):
            n = 4*su + q
            tags = [f"W{n+1}"] if n + 1 < 32 else []
            bx = (barx or {}).get(q, ([], []))
            tags += bx[0]
            G(q, 0)['other'] += ([f"@VM:{','.join(tags)}"] if tags else []) + ["s_barrier"] + bx[1]
            for nb in range(4):
                if nt == 4: G(q, nb*GL + 11)['other'].append("s_waitcnt lgkmcnt(0)")
                else: prew.setdefault((q, nb*GL), []).append("s_waitcnt lgkmcnt(8)")
            its = list(dma_slot(n+7)) if n + 7 < 32 else []
            fr = [m for m in range(1, NM) if free(m) and not (nt == 4 and m % GL == 11)]
            allit = []
            for tr in its: allit += [tr[:2], tr[2:]]
            allit += (items or {}).get(q, [])
            step = max(1, min(3, len(fr)//max(1, len(allit))))
            for k, it in enumerate(allit):
                m = fr[min(len(fr)-1, k*step)]
                if len(it) == 1 and it[0].startswith('buffer') and not G(q, m)['other']: G(q, m)['mem'] += it
                else: G(q, m)['other'] += it
        slots = [(q, m) for q in range(4) for m in range(NM) if free(m) and (q, m) >= (0, 6)]
        cap = 2
        while True:
            flat = [s_ for s_ in slots for _ in range(max(0, cap - used(*s_)))]
            if len(flat) >= 1.15*len(epi): break
            cap += 1
        step = max(1.0, EPF*len(flat)/max(1, len(epi))); idx = 0.0
        for op in epi:
            i2 = min(int(idx), len(flat)-1)
            if op.startswith('buffer'):
                i3 = i2
                while i3 < min(len(flat), i2 + 6) and used(*flat[i3]): i3 += 1
                if i3 < len(flat) and not used(*flat[i3]): idx = max(idx, i3); G(*flat[i3])['mem'].append(op)
                else: G(*flat[i2])['other'].append(op)
            else: G(*flat[i2])['other'].append(op)
            idx += step
        for q in range(4):
            for m in range(NM):
                nb, ti, ks = m // GL, (m // 4) % nt, m % 4; fi = (nb % 2)*4 + ks
                for x in prew.get((q, m), []): E(x)
                d = acc + (nb*nt+ti)*4; kk = q*4 + ks
                w = vr(WF+4*fi, 4); a = ar((ts[ti]*16+kk)*4, 4); c = "0" if kk == 0 else vr(d, 4)
                E(f"{MF} {vr(d,4)}, {a}, {w}, {c}" if ty == 'V' else f"{MF} {vr(d,4)}, {w}, {a}, {c}")
                if ti == nt - 1:
                    if nb < 2: rd = trreads(fi, su, nb+2, q, ks)
                    elif q < 3: rd = trreads(fi, su, nb-2, q+1, ks)
                    elif su < 7: rd = trreads(fi, su+1, nb-2, 0, ks)
                    else: rd = []
                    for x in rd: E(x)
                for x in G(q, m)['mem'] + G(q, m)['other']: E(x)

    E0 = Em(A, ['x', 'LX', 'LX'])
    for it in c_round(0) + dma_slot(0) + c_round(1) + dma_slot(1):
        for x in it: E0(x)
    A(f"v_lshrrev_b32 v4, 1, v2\nv_and_b32 v5, 1, v1\nv_lshl_add_u32 v4, v5, 1, v4\nv_lshl_add_u32 v6, v1, 3, v2\nv_lshlrev_b32 v7, 7, v6\nv_lshl_add_u32 v7, v3, 3, v7")
    for nb in range(4): A(f"v_xor_b32 v{XP}, {nb}, v4\nv_lshl_add_u32 v{TRA+2*nb}, v{XP}, 5, v7\nv_add_u32 v{TRA+2*nb+1}, 512, v{TRA+2*nb}\nv_add_u32 v{TRA+8+2*nb}, 0x10000, v{TRA+2*nb}\nv_add_u32 v{TRA+9+2*nb}, 0x10000, v{TRA+2*nb+1}")
    A(f"v_lshlrev_b32 v7, 6, v6\nv_lshl_add_u32 v7, v3, 3, v7")
    for nb in range(4): A(f"v_xor_b32 v{XP}, {nb%2}, v5\nv_lshl_add_u32 v{XP}, v{XP}, 5, v7\nv_add_u32 v{TRG+2*nb}, {(nb//2)*2048}, v{XP}\nv_add_u32 v{TRG+2*nb+1}, 256, v{TRG+2*nb}")
    A(f"v_lshrrev_b32 v4, 2, v0\nv_lshrrev_b32 v6, 5, v0\nv_lshlrev_b32 v6, 1, v6\nv_xor_b32 v5, v3, v6\nv_mul_u32_u24 v4, 2752, v4\nv_lshl_add_u32 v{VWG}, v5, 4, v4")
    A(f"v_and_b32 v4, 15, v0\nv_lshrrev_b32 v5, 1, v4\nv_xor_b32 v5, v5, v1\nv_lshlrev_b32 v4, 7, v4\nv_lshl_add_u32 v4, v5, 4, v4\ns_add_u32 s{sT1}, s{sSTG}, 98304\nv_add_u32 v{T+2}, s{sT1}, v4\nv_xor_b32 v{T+3}, 64, v{T+2}\nv_subrev_u32 v{T+4}, 0x10000, v{T+2}\nv_subrev_u32 v{T+5}, 0x10000, v{T+3}")
    A(f"s_lshl_b32 s{sT0}, s{sH}, 6\ns_add_u32 s{S_G}, s{S_G}, s{sT0}\ns_addc_u32 s{S_G+1}, s{S_G+1}, 0\ns_add_u32 s{S_U}, s{S_U}, s{sT0}\ns_addc_u32 s{S_U+1}, s{S_U+1}, 0\ns_sub_u32 s{S_G+2}, {512*2752}, s{sT0}\ns_mov_b32 s{S_U+2}, s{S_G+2}")
    for q in range(4): A(f"s_add_u32 s{sT0}, s{sI}, {q}\ns_and_b32 s{sT0}, s{sT0}, 3\ns_lshl_b32 s{sT0}, s{sT0}, 2\ns_add_u32 s{sT0}, s{sT0}, s{sW}\ns_mul_i32 s{sRQG+q}, s{sT0}, {32*2752}")
    A(f"s_lshl_b32 s{sT0}, s{sI}, 3\ns_lshl_b32 s{sT1}, s{sW}, {0 if ZZ else 1}\ns_add_u32 s{sXL}, s{sT0}, s{sT1}\ns_sub_u32 s{sXH}, 120, s{sT0}\ns_add_u32 s{sXH}, s{sXH}, s{sT1}")
    A(f"s_lshl_b32 s{sOBASE}, s{sTB}, 17\ns_lshl_b32 s{sT0}, s{sW}, 15\ns_add_u32 s{sOBASE}, s{sOBASE}, s{sT0}\ns_and_b32 s{sT0}, s{sCG}, 15\ns_lshl_b32 s{sT0}, s{sT0}, 21\ns_add_u32 s{sOBASE}, s{sOBASE}, s{sT0}\ns_add_u32 s{sOBASE}, s{sOBASE}, {KV_BASE}")
    F = ACC[0]; D, D2 = LX+8, LX+9
    def red():
        for n in (8, 4, 2, 1): A(f"s_nop 1\nv_add_f32_dpp v{D}, v{D}, v{D} row_ror:{n} row_mask:0xf bank_mask:0xf")
        A(f"v_mov_b32 v{D2}, v{D}\ns_nop 1\nv_permlane16_swap_b32 v{D}, v{D2}\nv_add_f32 v{D}, v{D}, v{D2}")
    E0("@VM:LX")
    for i in range(8): A(f"v_lshlrev_b32 v{F+2*i}, 16, v{LX+i}\nv_and_b32 v{F+2*i+1}, 0xffff0000, v{LX+i}")
    for i in range(8): A(f"v_add_f32 v{F+16+i}, v{F+i}, v{F+8+i}")
    for n in (4, 2, 1):
        for i in range(n): A(f"v_add_f32 v{F+16+i}, v{F+16+i}, v{F+16+n+i}")
    A(f"v_mov_b32 v{D}, v{F+16}"); red()
    A(f"v_mul_f32 v{D}, {hex(f32bits(-1.0/512))}, v{D}")
    for i in range(16): A(f"v_add_f32 v{F+i}, v{F+i}, v{D}")
    for i in range(8): A(f"v_cvt_pk_bf16_f32 v{LX+i}, v{F+2*i}, v{F+2*i+1}")
    for i in range(4): A(f"v_mul_f32 v{F+16+i}, v{F+i}, v{F+i}")
    for i in range(4, 16): A(f"v_fmac_f32 v{F+16+i%4}, v{F+i}, v{F+i}")
    A(f"v_add_f32 v{F+16}, v{F+16}, v{F+17}\nv_add_f32 v{F+18}, v{F+18}, v{F+19}\nv_add_f32 v{D}, v{F+16}, v{F+18}"); red()
    A(f"v_mov_b32 v{D2}, {hex(f32bits(1e-5))}\nv_fmac_f32 v{D2}, {hex(f32bits(1.0/512))}, v{D}\nv_rsq_f32 v{D}, v{D2}")
    A(f"s_and_b32 s{sT0}, s2, 1\ns_lshl_b32 s{sT0}, s{sT0}, 3\ns_lshl_b32 s{sT1}, s{sW}, 1\ns_add_u32 s{sT0}, s{sT0}, s{sT1}\nv_lshrrev_b32 v4, 5, v0\nv_add_u32 v4, s{sT0}, v4")
    A(f"v_bfe_u32 v5, v0, 2, 3\nv_lshlrev_b32 v5, 10, v5\nv_lshl_add_u32 v5, v3, 8, v5\nv_lshl_add_u32 v5, v4, 4, v5\nv_lshlrev_b32 v4, 2, v4")
    A(f"s_lshr_b32 s{sT0}, s2, 1\ns_lshl_b32 s{sT1}, s{sT0}, 14\ns_add_u32 s{sT1}, s{sT1}, {XC_BASE}\ns_add_u32 s3, s{sT1}, 8192\ns_lshl_b32 s{sT0}, s{sT0}, 6\ns_add_u32 s{sT0}, s{sT0}, {SCQ_BASE}")
    E0(f"buffer_store_dwordx4 {vr(LX,4)}, v5, s[{S_WS}:{S_WS+3}], s{sT1} offen sc1 ;T=LN\nbuffer_store_dwordx4 {vr(LX+4,4)}, v5, s[{S_WS}:{S_WS+3}], s3 offen sc1 ;T=LN\nbuffer_store_dword v{D}, v4, s[{S_WS}:{S_WS+3}], s{sT0} offen sc1 ;T=LN")
    A(f"s_cmp_ge_u32 s2, 2\ns_cbranch_scc1 K1_NOZ\ns_lshl_b32 s{sT0}, s2, 13\ns_add_u32 s{sT0}, s{sT0}, {CNT_BASE}\nv_lshlrev_b32 v4, 7, v0\nv_mov_b32 v5, 0\nbuffer_store_dword v5, v4, s[{S_WS}:{S_WS+3}], s{sT0} offen sc1")
    A.label("K1_NOZ")
    A(f"s_and_b32 s{sT0}, s2, 15\ns_lshl_b32 s{sT0}, s{sT0}, 2\nv_mov_b32 v4, s{sT0}\nv_mov_b32 v5, 1\nv_and_b32 v{XO}, 15, v0\nv_lshlrev_b32 v{XO}, 2, v{XO}")
    E0("@VM:R0,W0"); A("s_barrier")
    A(f"s_cmp_ge_u32 s{sCG}, 16\ns_cbranch_scc1 K1_V")
    seq0 = list(E0.seq); ends = []
    stubs = k2['stubs']
    for ty in 'KV':
        A.label(f"K1_{ty}")
        E = Em(A, seq0)
        for t in range(4): A(f"v_add_u32 v{VO+t}, {((t//2)*16384 + (t%2)*4096) if ty == 'K' else ((t%2)*16384 + 8192)}, v{VL}")
        for x in c_reads(0): A(x)
        for fi in range(8):
            for x in trreads(fi, 0, fi % 4, 0, fi // 4): A(x)
        A("s_waitcnt lgkmcnt(12)")
        gaps = {}; prew = {}
        def G(q, m): return gaps.setdefault((q, m), {'mem': [], 'other': []})
        def put(q, m, trips):
            for tr in trips:
                G(q, m)['other'] += tr[:2]; m = m + 1 if (m + 1) % 4 != 3 else m + 2
                G(q, m)['mem'].append(tr[2])
            return m
        for q in range(4):
            for grp in range(1, 16, 2): G(q, grp*4+2)['other'].append(f"s_waitcnt lgkmcnt({6 if (q == 3 and grp == 15) else 10})")
        def nxt(m): return m + 1 if (m + 1) % 4 != 3 else m + 2
        def put_reads(q, mm, r):
            prew.setdefault((q, mm), []).append(f"@VM:R{r}"); rds = c_reads(r)
            for k in range(4): G(q, mm)['mem'] += rds[2*k:2*k+2]; mm = nxt(mm)
        for h in range(8 if B4 else 0):
            q = h // 2; base = 32*(h % 2)
            if h in (1, 2, 3, 5): prew[(q, base)] = ["s_waitcnt lgkmcnt(2)"]
            if h % 2 == 1: G(q, base)['other'] += [f"@VM:W{q+1}", "s_barrier"]
            m = base + 1
            if h == 0: m = put(q, m, c_round(2) + c_round(3)); put_reads(q, 24, 1)
            if h == 1: m = put(q, m, dma_slot(2) + dma_slot(3)); put_reads(q, base+18, 2); put_reads(q, base+24, 3)
            if h == 2: m = put(q, m, c_round(4) + c_round(5))
            if h == 3: m = put(q, m, dma_slot(4) + dma_slot(5)); put_reads(q, base+18, 4); put_reads(q, base+24, 5)
            if h == 4: prew[(q, base)] = ["s_waitcnt lgkmcnt(2)"]; m = put(q, m, c_round(6) + c_round(7))
            if h == 5: put_reads(q, base+18, 6); put_reads(q, base+24, 7)
            if h == 6: prew[(q, base)] = ["s_waitcnt lgkmcnt(2)"]
            if h == 7:
                for n in range(6, 11): m = put(q, m, dma_slot(n))
        for h in range(0 if B4 else 8):
            q = h // 2; base = 32*(h % 2)
            if h >= 1: prew[(q, base)] = ["s_waitcnt lgkmcnt(2)"]
            need = 'W1' if h == 1 else (f'W{q+1}' if h in (2, 4, 6) else None)
            if need: G(q, base)['other'] += [f"@VM:{need}", "s_barrier"]
            if h == 7: G(q, base)['other'] += ["s_barrier"]
            m = base + 1
            if h + 2 <= 7: m = put(q, m, c_round(h+2))
            if h <= 3: m = put(q, m, dma_slot(h+2))
            if h == 7:
                for n in range(6, 11): m = put(q, m, dma_slot(n))
            if h + 1 <= 7:
                mm = base + 24; prew[(q, mm)] = [f"@VM:R{h+1}"]; rds = c_reads(h+1)
                for k, p in enumerate((mm, mm+1, mm+2, mm+4)): G(q, p)['mem'] += rds[2*k:2*k+2]
        for q in range(4):
            for m in range(64):
                ks, nb, t = m // 16, (m // 4) % 4, m % 4; fi = (ks % 2)*4 + nb
                for x in prew.get((q, m), []): E(x)
                d = ACC[0] + (nb*4+t)*4; kk = q*4 + ks
                w = vr(WF+4*fi, 4); a = ar((t*16+kk)*4, 4); c = "0" if kk == 0 else vr(d, 4)
                E(f"{MF} {vr(d,4)}, {a}, {w}, {c}" if ty == 'V' else f"{MF} {vr(d,4)}, {w}, {a}, {c}")
                if t == 3:
                    rd = trreads(fi, 0, nb, q, ks+2) if ks < 2 else (trreads(fi, 1, fi // 4, 0, fi % 4) if q == 3 else trreads(fi, 0, nb, q+1, ks-2))
                    for x in rd: E(x)
                for x in G(q, m)['mem'] + G(q, m)['other']: E(x)
        stamp(A, 1)
        misc1 = [[f"s_add_u32 s{sT1}, s{sI}, {q}", f"s_and_b32 s{sT1}, s{sT1}, 3", f"s_lshl_b32 s{sAQ+q}, s{sT1}, 12"] for q in range(4)]
        misc1 += [[f"s_lshl_b32 s{sT1}, s{sH}, 8", f"s_add_u32 s{S_Q}, s{P_WQ}, s{sT1}", f"s_addc_u32 s{S_Q+1}, s{P_WQ+1}, 0", f"s_sub_u32 s{S_Q+2}, {512*8192}, s{sT1}"]]
        tch = []
        if os.environ.get('TCH', '0') == '1':
            tch = [[f"s_lshl_b32 s{sT1}, s{sI}, 2", f"s_add_u32 s{sT1}, s{sT1}, s{sW}", f"s_lshl_b32 s3, s{sT1}, 17", f"s_mul_i32 s{sT1}, s{sT1}, {16*2752}"],
                   ["v_and_b32 v6, 15, v0", "v_lshlrev_b32 v1, 13, v6"], ["v_bfe_u32 v2, v0, 4, 1", "v_lshl_add_u32 v1, v2, 7, v1"], ["v_mul_u32_u24 v6, 2752, v6"],
                   [f"buffer_load_dword v1, v1, s[{S_Q}:{S_Q+3}], s3 offen"], [f"buffer_load_dword v2, v6, s[{S_G}:{S_G+3}], s{sT1} offen"], [f"buffer_load_dword v3, v6, s[{S_U}:{S_U+3}], s{sT1} offen"]]
        body(E, 1, ty, epi_T(ty, 0), items={1: misc1, 0: [], 3: tch}, barx={2: (['LN'], sig(5, 4, 128, f"K1_NS1{ty}"))})
        if QD: stamp(A, 5)
        tmp = Asm(); code_touch(tmp, "K1_FIN", "K2_END", sW, 0, 7, 84)
        for x in tmp.lines: E(x)
        scq = [[f"s_lshl_b32 s{sT1}, s{sXH}, 6", f"s_add_u32 s46, s{sT1}, {SCQ_BASE}"], [f"s_lshl_b32 s{sT1}, s{sXL}, 6", f"s_add_u32 s47, s{sT1}, {SCQ_BASE}"],
               [f"s_lshr_b32 s{sT1}, s{sXH}, 2", f"s_mul_i32 s24, s{sT1}, {A3_TB64}"], [f"s_lshr_b32 s{sT1}, s{sXL}, 2", f"s_mul_i32 s25, s{sT1}, {A3_TB64}"],
               [f"s_lshl_b32 s{sXH}, s{sXH}, 14", f"s_add_u32 s{sXH}, s{sXH}, {XC_BASE}"], [f"s_lshl_b32 s{sXL}, s{sXL}, 14", f"s_add_u32 s{sXL}, s{sXL}, {XC_BASE}"],
               [f"v_add_u32 v{DUM}, 16384, v{VL}"]]
        if ZZ: scq[-1] = [f"s_lshl_b32 s{sT1}, s{sW}, 1", f"s_sub_u32 s{sT1}, 7, s{sT1}", f"s_lshl_b32 s3, s{sT1}, 14", f"v_add_u32 v{DUM}, s3, v{VL}", f"s_lshl_b32 s3, s{sT1}, 6", f"v_add_u32 v6, s3, v{XO}"]
        rq2 = [[f"s_lshl_b32 s{sT1}, s{sAQ+q}, 8", f"s_lshl_b32 s3, s{sW}, 18", f"s_add_u32 s{sRQ8+q}, s{sT1}, s3"] for q in range(4)]
        body(E, 2, ty, epi_T(ty, 1), items={1: scq + rq2, 3: [[f"buffer_load_dword v{XP}, v{XO}, s[{S_DBG}:{S_DBG+3}], 0 offen offset:128 sc1 ;T=P"]]})
        if QD: stamp(A, 6)
        E(f"@VM:P\nv_cmp_ne_u32 vcc, 16, v{XP}\ns_cbranch_vccnz K1_XS{ty}"); A.label(f"K1_XS{ty}_B")
        k2['spin'](f"K1_XS{ty}", XP, XO, 128, 16)
        hsw = [[f"s_lshr_b32 s{sT1}, s{sH}, 1", f"s_add_u32 s{sT1}, s{sT1}, 32", f"s_sub_u32 s{sT1}, s{sT1}, s{sH}", f"s_lshl_b32 s{sT1}, s{sT1}, 6",
                f"s_add_u32 s{S_G}, s{S_G}, s{sT1}", f"s_addc_u32 s{S_G+1}, s{S_G+1}, 0", f"s_add_u32 s{S_U}, s{S_U}, s{sT1}", f"s_addc_u32 s{S_U+1}, s{S_U+1}, 0",
                f"s_sub_u32 s{S_G+2}, s{S_G+2}, s{sT1}", f"s_cmp_lt_u32 s{sH}, 22", f"s_cselect_b32 s{S_G+2}, s{S_G+2}, 0", f"s_mov_b32 s{S_U+2}, s{S_G+2}"]]
        rl = [[f"buffer_load_dword v{SCQ+t}, v{6 if (ZZ and t % 2) else XO}, s[{S_WS}:{S_WS+3}], s{46 if t < 2 else 47} offen offset:{0 if ZZ else (t%2)*64} sc1 ;T=RS"] for t in range(4)]
        body(E, 3, ty, epi_T(ty, 2), items={0: hsw + rl, 1: xs(0), 2: xs(1), 3: xs(2)})
        if QD: stamp(A, 2)
        sc = [["@VM:RS"] + [f"v_mul_f32 v{SCG+t}, v{SCQ+t}, v{SCQ+t}" for t in range(4)], [f"v_mul_f32 v{SCQ+t}, {hex(f32bits(CSCALE))}, v{SCQ+t}" for t in range(4)]]
        post = [f"s_and_b32 s{sT1}, s{sW}, 1", f"s_lshl_b32 s{sT1}, s{sT1}, 11", f"s_add_u32 s24, s24, s{sT1}", f"s_add_u32 s25, s25, s{sT1}", f"v_add_u32 v{VO}, s24, v{VL}", f"v_add_u32 v{VO+2}, s25, v{VL}",
                f"v_add_u32 v{VO+1}, 1024, v{VO}", f"v_add_u32 v{VO+3}, 1024, v{VO+2}", f"s_lshl_b32 s{sOG}, s{sH}, 12", f"s_add_u32 s{sOG}, s{sOG}, {A3_BASE + 128*4096}"]
        if ZZ:
            post = [f"s_lshl_b32 s{sT1}, s{sW}, 10", f"s_add_u32 s24, s24, s{sT1}", f"s_add_u32 s25, s25, s{sT1}", f"v_add_u32 v{VO}, s24, v{VL}", f"v_add_u32 v{VO+2}, s25, v{VL}",
                    f"s_lshl_b32 s{sT1}, s{sW}, 11", f"s_sub_u32 s{sT1}, {A3_TB64 + 3072}, s{sT1}", f"v_add_u32 v{VO+1}, s{sT1}, v{VO}", f"v_add_u32 v{VO+3}, s{sT1}, v{VO+2}"] + post[-2:]
        tg = [[f"v_xor_b32 v{TRG+2*nb}, 0x10000, v{TRG+2*nb}", f"v_xor_b32 v{TRG+2*nb+1}, 0x10000, v{TRG+2*nb+1}"] for nb in range(4)]
        body(E, 4, 'G', epi_T(ty, 3) + post, items={0: xs(3), 1: sc + xs(4), 2: xs(5)}, prew={(q, 0): [f"@VM:X{q}"] for q in range(4)} | {(3, 1): tg[0] + tg[1], (3, 17): tg[2], (3, 33): tg[3]})
        ends.append(list(E.seq))
        stamp(A, 3 if QD else 2)
        if ty == 'K': A("s_branch K1_COMMON")
    assert ends[0] == ends[1]
    A.label("K1_COMMON")
    A(f"s_bitcmp1_b32 s{sH}, 0\ns_cbranch_scc1 K1_H1")
    for hv in range(2):
        A.label(f"K1_H{hv}")
        E = Em(A, ends[0])
        hs = [[f"v_mov_b32 v{VOH+k}, v{VO+2*hv+k}", f"v_mov_b32 v{SCH+k}, v{SCG+2*hv+k}"] for k in range(2)]
        body(E, 5, 'G', epi_G(ACC[0], 4, VO, SCG, sOG, 'SG'), items={0: hs}, ts=(2*hv, 2*hv+1), acc=QT, barx={3: (['S3'], sig(5, 4, 0, f"K1_NS2{hv}"))})
        if hv == 0: A("s_branch K1_Q"); e0 = list(E.seq)
    assert e0 == E.seq
    A.label("K1_Q")
    hob = [f"s_lshr_b32 s{sT1}, s{sH}, 1", f"s_lshl_b32 s{sT1}, s{sT1}, 12", f"s_add_u32 s{sOG}, s{sT1}, {A3_BASE + 160*4096}", f"s_cmp_lt_u32 s{sH}, 22\ns_cselect_b32 s{sOG}, s{sOG}, {WS_USED}"]
    k2i = k2['early'](dict(XO=XO, XP=XP))
    body(E, 6, 'Q', hob + epi_G(QT, 2, VOH, SCH, sOG, 'SH'), items=k2i['q0'], acc=ACC[1])
    body(E, 7, 'Q', epi_Q(ACC[1], 0, lambda t: QT+4*t) + epi_Q(ACC[1], 1, lambda t: QT+16+4*t) + [f"v_mov_b32 v{VOH+t}, v{SCQ+t}" for t in range(4)], items=k2i['q1'], acc=ACC[0], barx=k2i['bar1'])
    A.label("K1_FIN")
    return dict(SC2=VOH, QT=QT, ACC=ACC[0], epi_Q=epi_Q, XO=XO, XP=XP)
```

```python
from asmlib import *
import asmlib
from k1n import KV_BASE, A3_BASE, A3_TB64, WS_USED, MF, f32bits, XC_BASE, SCQ_BASE, P2_BASE, CNT_BASE
import math, k1n

import os
QST = os.environ.get('QST', '0') == '1'
QPLAN = os.environ.get('QPLAN', '3')
CT = os.environ.get('CODE_TOUCH2', '1') == '1'
QROT = int(os.environ.get('QROT', '2'))
LATEKV = os.environ.get('LATEKV', '1') == '1'
NOBAR = os.environ.get('NOBAR', '0') == '1'
BARPOS = int(os.environ.get('BARPOS', '0'))
NOCHK = os.environ.get('NOCHK', '0') == '1'
CHKE = os.environ.get('CHKE', '1') == '1'
ONES = os.environ.get('ONES', '0') == '1'
BIAS = 24.0
SLP = int(os.environ.get('SLP', '8'))
FULL = os.environ.get('FULL', '1') == '1'
SLP2 = int(os.environ.get('SLP2', '4'))
ELO = os.environ.get('ELO', '1') == '1'
FINF = os.environ.get('FINF', '1') == '1'
LOSIG = os.environ.get('LOSIG', '1') == '1'
EPQ = os.environ.get('EPQ', '1') == '1'
XS = os.environ.get('XS', ' sc1'); KS = os.environ.get('KS', ' sc1'); AS = os.environ.get('AS', ' sc1')
QD = os.environ.get('QD') == '1'
ZZ = k1n.ZZ
PCHK = int(os.environ.get('PCHK', '11'))
CTX_TOUCH = os.environ.get('CTX_TOUCH', '0') == '1'
def gen_k2(A, store_flags=" sc1", thr=2.0**30):
    O = 0; S01 = 128; S23 = [144, 160]; P01 = [176, 184]; P23 = 192; CX = 200; E = 232; LS = 236; L = 240
    VK = 244; VV = 245; VD = 246; TMP = 247
    AQ = 0; KF = 64; VF = 96; AL = 128; AO = 144
    NG = 34 if ONES else 32
    S_KV, S_WS = 8, 12
    sW, sH, sI, sT0, sT1, sOFF, sHALF, sCNT, sTHR, sNEG = 16, 17, 18, 19, 20, 21, 22, 23, 24, 25
    sMK = 26
    sRET = 34
    sP = 36; sOHI = 37; sOLO = 38
    P_WS = 40; P_WO = 42; P_WD = 44; P_WQ = 46; S_T = 48; sXH = 52; sXL = 53; sWQ = 54; sMQ = 55
    def Sreg(qp, kb, par): return (S01 + (qp*2+kb)*4) if qp < 2 else (S23[par] + ((qp-2)*2+kb)*4)
    def Preg(qp, par): return (P01[par] + qp*4) if qp < 2 else (P23 + (qp-2)*4)
    def Oreg(db, qb): return O + (db*4+qb)*4
    def CXr(qp, kb): return CX + (qp*2+kb)*4
    stubs = []
    uid = [0]
    def U(p): uid[0] += 1; return f"K2_{p}_{uid[0]}"

    def spin(lab, vp, vo, off, expect, mask=None, srd='s[80:83]', so='0', slp=None):
        stubs.append([f"{lab}_F:", f"s_mov_b32 s{sT1}, 0", f"s_branch {lab}_N", f"{lab}:", f"s_mov_b32 s{sT1}, 0", f"{lab}_L:", f"s_sleep {slp or SLP}", f"{lab}_N:",
                      f"buffer_load_dword v{vp}, v{vo}, {srd}, {so} offen offset:{off} sc1", "s_waitcnt vmcnt(0)"] + ([f"v_and_b32 v{vp}, {mask}, v{vp}"] if mask else []) +
                     [f"v_cmp_ne_u32 vcc, {expect}, v{vp}", f"s_add_u32 s{sT1}, s{sT1}, 1", f"s_cmp_ge_u32 s{sT1}, 0x8000", f"s_cbranch_scc1 {lab}_B", f"s_cbranch_vccnz {lab}_L", f"s_branch {lab}_B"])
    LN = TMP+1; NEGV = TMP+8; sRDY = 86
    def kread(f, unit4): return f"ds_read_b128 {ar(KF+4*f,4)}, v{VK} offset:{unit4*8192 + f*1024}"
    def vread(f, slot4): return f"ds_read_b128 {ar(VF+4*f,4)}, v{VV} offset:{slot4*8192 + f*1024}"
    def dma_group(c, vd=VD):
        pre = [f"s_add_u32 m0, s{sHALF}, {(c%4)*8192}"]
        d = [f"buffer_load_dwordx4 v{vd}, s[{S_KV}:{S_KV+3}], s{sOFF} offen offset:{j*1024} sc1 lds" for j in range(4)]
        post = [f"s_add_u32 s{sOFF}, s{sOFF}, 16384"]
        if c % 4 == 3: post.append(f"s_xor_b32 s{sHALF}, s{sHALF}, 0x8000")
        return pre, d, post
    def kv_init(c):
        p_, d_, po_ = dma_group(c, 7); d_ = [x + " ;T=-" for x in d_]
        if c < 2:
            lab = U("KS")
            return [f"s_cmp_ge_u32 s{sW}, 2", f"s_cbranch_scc1 {lab}"] + p_ + ["s_nop 0"] + d_ + [lab + ":"] + po_
        return p_ + ["s_nop 0"] + d_ + po_
    def early(r):
        XO, XP = r['XO'], r['XP']
        su = [[f"s_mov_b32 s{S_KV+3}, 0x00020000", f"s_lshl_b32 s{sT1}, s{sI}, 16", f"s_sub_u32 s{S_KV+2}, 0x108000, s{sT1}"],
              [f"s_lshl_b32 s{sT1}, s{sH}, 20", f"s_add_u32 s{sT1}, s{sT1}, {KV_BASE-0x8000}", f"s_add_u32 s{S_KV}, s{P_WS}, s{sT1}", f"s_addc_u32 s{S_KV+1}, s{P_WS+1}, 0"],
              [f"s_mov_b32 s{sTHR}, {hex(0x40000000 if ONES else f32bits(thr))}", f"s_mov_b32 s{sNEG}, 0xff800000"],
              [f"s_lshl_b32 s{sT1}, s{sW}, 12", f"v_lshlrev_b32 v7, 4, v{LN}", f"v_add_u32 v7, s{sT1}, v7"],
              [f"s_and_b32 s{sT1}, s{sW}, 1", f"s_lshl_b32 s{sHALF}, s{sT1}, 12", f"s_lshr_b32 s{sT1}, s{sW}, 1", f"s_lshl_b32 s3, s{sT1}, 16", f"s_add_u32 s{sHALF}, s{sHALF}, s3", f"s_lshl_b32 s{sT1}, s{sT1}, 15", f"s_sub_u32 s{sOFF}, 0x8000, s{sT1}"],
              ["v_mov_b32 v6, 0x20000", "v_mov_b32 v1, 0", "ds_write_b32 v6, v1"],
              [f"v_and_b32 v2, 15, v{LN}", f"v_lshrrev_b32 v3, 4, v{LN}", "v_lshlrev_b32 v3, 2, v3", "v_sub_u32 v2, v2, v3"]] + [[f"v_cmp_le_i32 s[{sMK+2*i}:{sMK+2*i+1}], {i}, v2"] for i in range(4)]
        ob = [[f"s_lshr_b32 s{sT0}, s{sW}, 1", f"s_lshl_b32 s{sT1}, s{sI}, 1", f"s_add_u32 s{sOLO}, s{sT1}, s{sT0}", f"s_sub_u32 s{sOHI}, 30, s{sT1}", f"s_add_u32 s{sOHI}, s{sOHI}, s{sT0}"],
              [f"s_mul_i32 s{sOLO}, s{sOLO}, {A3_TB64}", f"s_mul_i32 s{sOHI}, s{sOHI}, {A3_TB64}"],
              [f"s_lshl_b32 s{sT0}, s{sH}, 14", f"s_and_b32 s{sT1}, s{sW}, 1", f"s_lshl_b32 s{sT1}, s{sT1}, 11", f"s_add_u32 s{sT0}, s{sT0}, s{sT1}", f"s_add_u32 s{sT0}, s{sT0}, {A3_BASE}", f"s_add_u32 s{sOLO}, s{sOLO}, s{sT0}", f"s_add_u32 s{sOHI}, s{sOHI}, s{sT0}"]]
        if ZZ:
            ob = [[f"s_lshl_b32 s{sT1}, s{sI}, 1", f"s_mul_i32 s{sOLO}, s{sT1}, {A3_TB64}", f"s_sub_u32 s{sT1}, 30, s{sT1}", f"s_mul_i32 s{sOHI}, s{sT1}, {A3_TB64}"],
                  [f"s_lshl_b32 s{sT0}, s{sH}, 14", f"s_lshl_b32 s{sT1}, s{sW}, 10", f"s_add_u32 s{sT0}, s{sT0}, s{sT1}", f"s_add_u32 s{sT0}, s{sT0}, {A3_BASE}", f"s_add_u32 s{sOLO}, s{sOLO}, s{sT0}", f"s_add_u32 s{sOHI}, s{sOHI}, s{sT0}"],
                  [f"s_lshl_b32 s{sT1}, s{sW}, 11", f"s_sub_u32 s85, {A3_TB64 + 3072}, s{sT1}"]]
        chk = [["@VM:PK", f"v_cmp_ne_u32 vcc, 16, v{XP}"], ["s_nop 0"], ["s_cmp_eq_u64 vcc, 0", f"s_cselect_b32 s{sRDY}, 1, 0", f"v_mov_b32 v1, s{sRDY}", f"s_cmp_lg_u32 s{sW}, 0", "s_cbranch_scc1 K2_NOMB", "ds_write_b32 v6, v1", "K2_NOMB:"]]
        def guard(c):
            lab = U("NR"); return [f"s_cmp_eq_u32 s{sRDY}, 0", f"s_cbranch_scc1 {lab}"] + kv_init(c) + [lab + ":"]
        pk = [[f"buffer_load_dword v{XP}, v{XO}, s[80:83], 0 offen sc1 ;T=PK"]]
        return dict(q0={1: su}, q1={0: pk + ob, 1: chk + [guard(0), guard(1)], 2: [guard(2), guard(3)]}, bar1={})
    fi_ = k1n.gen_front(A, dict(stubs=stubs, spin=spin, early=early))
    QT, QA, XO, XP = fi_['QT'], fi_['ACC'], fi_['XO'], fi_['XP']
    if not QD: stamp(A, 3)

    def Dpatch(q0):
        o = []
        for i in range(4): o.append(f"v_cndmask_b32 v{CXr(q0,0)+i}, v{NEGV}, v{CXr(q0,0)+i}, s[{sMK+2*i}:{sMK+2*i+1}]")
        for i in range(4): o.append(f"v_mov_b32 v{CXr(q0,1)+i}, v{NEGV}")
        for i in range(4): o.append(f"v_cndmask_b32 v{CXr(q0+1,1)+i}, v{NEGV}, v{CXr(q0+1,1)+i}, s[{sMK+2*i}:{sMK+2*i+1}]")
        return o
    def Fpatch(q0): return [f"v_mov_b32 v{CXr(q0,0)+i}, v{NEGV}" for i in range(16)]
    def zpatch(q0, j):
        o = []
        qp = q0 if j < 2 else q0 + 1
        for kb in range(2):
            kap = 2*j + kb; dv = kap if j < 2 else 7 - kap
            lD, lE = U("PD"), U("PE")
            o += [f"s_cmp_eq_u32 s{sW}, {dv}", f"s_cbranch_scc1 {lD}", f"s_cmp_{'gt' if j < 2 else 'lt'}_u32 s{sW}, {dv}", f"s_cbranch_scc1 {lE}"]
            o += [f"v_mov_b32 v{CXr(qp,kb)+i}, v{NEGV}" for i in range(4)] + [f"s_branch {lE}", lD + ":"]
            o += [f"v_cndmask_b32 v{CXr(qp,kb)+i}, v{NEGV}, v{CXr(qp,kb)+i}, s[{sMK+2*i}:{sMK+2*i+1}]" for i in range(4)] + [lE + ":"]
        return o + ["s_nop 1"]
    def patch(q0, j):
        if ZZ: return zpatch(q0, j)
        return patch_(q0, j)
    def patch_(q0, j):
        o = []
        lD, lE = U("PD"), U("PE")
        o.append(f"s_cmp_gt_u32 s{sW}, {j}"); o.append(f"s_cbranch_scc1 {lE}")
        if j > 0:
            o.append(f"s_cmp_eq_u32 s{sW}, {j}"); o.append(f"s_cbranch_scc1 {lD}")
            o += Fpatch(q0); o.append(f"s_branch {lE}")
            o.append(lD + ":")
        o += Dpatch(q0)
        o.append(lE + ":")
        o.append("s_nop 1")
        return o


    def sm_gaps1(qs, srcpar, dstpar, look):
        g = [[] for _ in range(34)]
        src = lambda k: Sreg(qs[k//4], (k % 4)//2, srcpar) + 2*(k % 2)
        pr = lambda k: Preg(qs[k//4], dstpar) + k % 4
        for k in range(8):
            en = E + 2*((k+1) % 2); ec = E + 2*(k % 2)
            cv = f"v_cvt_pk_bf16_f32 v{pr(k)}, v{ec}, v{ec+1}"
            orr = None
            if k % 2 == 1: orr = f"v_or_b32 v{TMP}, v{pr(0)}, v{pr(1)}" if k == 1 else f"v_or3_b32 v{TMP}, v{TMP}, v{pr(k-1)}, v{pr(k)}"
            if k < 7:
                g[4*k].append(f"v_exp_f32 v{en}, v{src(k+1)}"); g[4*k+2].append(f"v_exp_f32 v{en+1}, v{src(k+1)+1}")
                g[4*k+1].append(cv)
                if orr: g[4*k+3].append(orr)
            else:
                g[28] += [cv, orr]
                g[29].append(f"v_lshl_or_b32 v{TMP}, v{TMP}, 16, v{TMP}")
                g[30].append(f"v_cmp_le_u32 vcc, s{sTHR}, v{TMP}")
                if look: g[32].append(f"v_exp_f32 v{en}, v{look[0]}"); g[33].append(f"v_exp_f32 v{en+1}, v{look[1]}")
        return g
    def lmf(qps, rows, par, czero):
        return [(f"{MF} {ar(AL+4*r,4)}, {ar(AO,4)}, {vr(Preg(qp,par),4)}, {'0' if czero else ar(AL+4*r,4)}", None) for qp, r in zip(qps, rows)]

    def sm_gaps(qs, srcpar, dstpar, look, ladd):
        g = [[] for _ in range(32)]
        lsb = LS + (0 if qs[0] == 0 else 2)
        src = lambda k: Sreg(qs[k//4], (k % 4)//2, srcpar) + 2*(k % 2)
        for k in range(8):
            if k < 7: a, b = src(k+1), src(k+1)+1
            elif look: a, b = look
            else: a = None
            en = E + 2*((k+1) % 2); ec = E + 2*(k % 2)
            if a is not None:
                g[4*k].append(f"v_exp_f32 v{en}, v{a}"); g[4*k+2].append(f"v_exp_f32 v{en+1}, v{b}")
            ls = lsb + k//4
            if k % 4 == 0:
                g[4*k+1].append(f"v_add_f32 v{ls}, v{ec}, v{ec+1}")
                lr, lsr = ladd[k//4]
                g[4*k+1].append(f"v_add_f32 v{lr}, v{lr}, v{lsr}")
            else:
                g[4*k+1].append(f"v_add_f32 v{ls}, v{ls}, v{ec}"); g[4*k+1].append(f"v_add_f32 v{ls}, v{ls}, v{ec+1}")
            g[4*k+3].append(f"v_cvt_pk_bf16_f32 v{Preg(qs[k//4], dstpar) + k % 4}, v{ec}, v{ec+1}")
        if not NOCHK:
            if CHKE:
                e_a = g[28]; adds = g[29]; e_b = g[30]
                g[28] = adds; g[29] = [f"v_max_f32 v{TMP}, v{lsb}, v{lsb+1}", f"v_cmp_lt_f32 vcc, s{sTHR}, v{TMP}"]
                g[30] = e_a; g[31] = g[31] + e_b
            else:
                g[30].append(f"v_max_f32 v{TMP}, v{lsb}, v{lsb+1}")
                g[31].append(f"v_cmp_lt_f32 vcc, s{sTHR}, v{TMP}")
        return g

    def sm_list(qs, srcpar, dstpar, look, ladd):
        o = []; n = 4*len(qs)
        src = lambda k: Sreg(qs[k//4], (k % 4)//2, srcpar) + 2*(k % 2)
        per = []
        for k in range(n):
            en = E + 2*((k+1) % 2); ec = E + 2*(k % 2); ls = LS + qs[k//4]
            nx = (src(k+1), src(k+1)+1) if k < n-1 else look
            ad = [f"v_add_f32 v{ls}, v{ec}, v{ec+1}"] if k % 4 == 0 else [f"v_add_f32 v{ls}, v{ls}, v{ec}", f"v_add_f32 v{ls}, v{ls}, v{ec+1}"]
            cvt = [f"v_cvt_pk_bf16_f32 v{Preg(qs[k//4], dstpar) + k % 4}, v{ec}, v{ec+1}"]
            if k == n-1:
                chk = ([f"v_max_f32 v{TMP}, v{LS+qs[0]}, v{LS+qs[1]}", f"v_cmp_lt_f32 vcc, s{sTHR}, v{TMP}"] if len(qs) == 2 else [f"v_cmp_lt_f32 vcc, s{sTHR}, v{ls}"])
                o += ["s_nop 0"] + ad + chk + cvt + ([f"v_exp_f32 v{en}, v{nx[0]}", f"v_exp_f32 v{en+1}, v{nx[1]}"] if nx else [])
            else: o += [f"v_exp_f32 v{en}, v{nx[0]}"] + ad + [f"v_exp_f32 v{en+1}, v{nx[1]}"] + cvt
            if k == 0: o += [f"v_add_f32 v{lr}, v{lr}, v{lsr}" for lr, lsr in ladd]
        return o
    def spread(ops, n):
        g = [[] for _ in range(n)]
        for i, x in enumerate(ops): g[min(n-1, i*n//max(1, len(ops)))].append(x)
        return g

    def rescale(rows, init=False):
        o = ["s_nop 7"]
        D, D2, F = TMP+1, TMP+2, TMP+3
        for r in rows:
            s0 = r['S']
            o.append(f"v_max3_f32 v{D}, v{s0}, v{s0+1}, v{s0+2}")
            o.append(f"v_max3_f32 v{D}, v{D}, v{s0+3}, v{s0+4}")
            o.append(f"v_max3_f32 v{D}, v{D}, v{s0+5}, v{s0+6}")
            o.append(f"v_max_f32 v{D}, v{D}, v{s0+7}")
            o += [f"v_mov_b32 v{D2}, v{D}", "s_nop 1", f"v_permlane16_swap_b32 v{D}, v{D2}", f"v_max_f32 v{D}, v{D}, v{D2}"]
            o += [f"v_mov_b32 v{D2}, v{D}", "s_nop 1", f"v_permlane32_swap_b32 v{D}, v{D2}", f"v_max_f32 v{D}, v{D}, v{D2}"]
            o.append(f"v_ceil_f32 v{D}, v{D}")
            if ONES: o.append(f"v_add_f32 v{D}, {hex(f32bits(BIAS))}, v{D}")
            if not init:
                o.append(f"v_max_f32 v{D}, 0, v{D}")
                o.append(f"v_exp_f32 v{F}, -v{D}")
            for b in [s0] + r['subs']:
                for i in range(8): o.append(f"v_sub_f32 v{b+i}, v{b+i}, v{D}")
            if not init:
                qb = r['qb']
                for db in range(8):
                    for i in range(4): o.append(f"v_mul_f32 v{Oreg(db,qb)+i}, v{Oreg(db,qb)+i}, v{F}")
                if ONES:
                    for i in range(4): o += [f"v_accvgpr_read_b32 v{D2}, a{AL+4*qb+i}", f"v_mul_f32 v{D2}, v{D2}, v{F}", f"v_accvgpr_write_b32 a{AL+4*qb+i}, v{D2}"]
                else: o.append(f"v_mul_f32 v{L+qb}, v{L+qb}, v{F}")
                for pr in r.get('Pscale', []):
                    o += [f"v_lshlrev_b32 v{D2}, 16, v{pr}", f"v_and_b32 v{pr}, 0xffff0000, v{pr}", f"v_mul_f32 v{D2}, v{D2}, v{F}", f"v_mul_f32 v{pr}, v{pr}, v{F}",
                          f"v_cvt_pk_bf16_f32 v{pr}, v{D2}, v{pr}"]
            if r.get('P') is not None:
                ls = r['ls']
                for k in range(4):
                    o += [f"v_exp_f32 v{E}, v{s0+2*k}", f"v_exp_f32 v{E+1}, v{s0+2*k+1}", "s_nop 0"]
                    if ONES: pass
                    elif k == 0: o.append(f"v_add_f32 v{ls}, v{E}, v{E+1}")
                    else: o += [f"v_add_f32 v{ls}, v{ls}, v{E}", f"v_add_f32 v{ls}, v{ls}, v{E+1}"]
                    o.append(f"v_cvt_pk_bf16_f32 v{r['P']+k}, v{E}, v{E+1}")
        return o
    def relook(look):
        return [f"v_exp_f32 v{E}, v{look[0]}", f"v_exp_f32 v{E+1}, v{look[1]}", "s_nop 1"] if look else ["s_nop 1"]

    def check_site(code):
        ls, lb = U("SLOW"), U("BACK")
        if not NOCHK: A(f"s_cbranch_vccnz {ls}")
        A.label(lb)
        stubs.append([ls + ":"] + code + [f"s_branch {lb}"])

    def emit_half(mf, gaps, extra, waits):
        for g in range(len(mf)):
            if g in waits: A(waits[g])
            m, rd = mf[g]
            if m: A(m)
            elif g == 28: A("s_nop 0")
            if rd: A(rd)
            ex = extra.get(g, ([], []))
            for x in ex[0]: A(x)
            for x in ex[1]: A(x)
            for x in gaps[g]: A(x)

    def emit_drop(mf, keep, ops, extra, waits):
        idx = [g for g in range(32) if keep(g) and mf[g][0]]
        if not idx:
            for g in sorted(extra):
                for x in extra[g][0] + extra[g][1]: A(x)
            for x in ops: A(x)
            return
        w2 = {}; e2 = {}
        for g, t in waits.items(): w2[min(k for k, o in enumerate(idx) if o >= g)] = t
        for g in sorted(extra):
            c = [k for k, o in enumerate(idx) if o <= g]
            if c: e = e2.setdefault(c[-1], ([], [])); e[0].extend(extra[g][0]); e[1].extend(extra[g][1])
            else:
                for x in extra[g][0] + extra[g][1]: A(x)
        emit_half([mf[g] for g in idx], spread(ops, len(idx)), e2, w2)

    def H1(par, mq, ms, ku, toggleK=None, vm=None, dmas=(), noqk=False, nosm=False, last=False, fill=None, czero=False, dq=(), sm=(2, 3), lad=(0, 1), lookq=0):
        n = 1 - par
        mf = []
        if noqk: mf = [(None, None)]*32
        elif mq == 4:
            for f in range(8):
                kb, ds = f//4, f % 4
                for qp in range(4):
                    d = Sreg(qp, kb, n)
                    c = vr(CXr(qp, kb), 4) if ds == 0 else vr(d, 4)
                    mf.append((f"{MF} {vr(d,4)}, {ar(KF+4*f,4)}, {ar(AQ+(qp*4+ds)*4,4)}, {c}", kread(f, ku[0]) if qp == 3 else None))
        else:
            for j in range(16):
                sel, f = j//8, j % 8
                kb, ds = f//4, f % 4
                for qb in range(2):
                    qp = 2*sel + qb
                    d = Sreg(qp, kb, n)
                    c = vr(CXr(qp, kb), 4) if ds == 0 else vr(d, 4)
                    rd = None
                    if qb == 1 and not (last and sel == 1): rd = kread(f, ku[sel])
                    mf.append((f"{MF} {vr(d,4)}, {ar(KF+4*f,4)}, {ar(AQ+(qb*4+ds)*4,4)}, {c}", rd))
        look = None if noqk else (Sreg(lookq, 0, n), Sreg(lookq, 0, n)+1)
        if nosm:
            gaps = [list(fill[2*g:2*g+2]) if fill else [] for g in range(32)]
        else:
            if ONES:
                gaps = sm_gaps1((2, 3), par, par, look); mf = list(mf) + lmf((0, 1), (0, 1), par, czero)
            else: gaps = sm_gaps((2, 3), par, par, look, [(L+0, LS+0), (L+1, LS+1)])
        extra = {}
        waits = {}
        if not noqk:
            waits[0] = "s_waitcnt lgkmcnt(8)"
            if mq == 2: waits[16] = "s_waitcnt lgkmcnt(4)"; waits[24] = "s_waitcnt lgkmcnt(0)" if last else "s_waitcnt lgkmcnt(4)"
        if vm is not None:
            extra[BARPOS] = ([], [f"s_waitcnt vmcnt({vm})"] + ([] if NOBAR else ["s_barrier"]))
        if toggleK is not None:
            gi = 0 if toggleK == 0 else 16
            e = extra.setdefault(gi, ([], [])); e[1].append(f"v_xor_b32 v{VK}, 0x8000, v{VK}")
        place_dmas(extra, dmas)
        if dq or len(sm) < 2 or len(lad) < 2:
            emit_drop(mf, lambda g: ((g % 4) if mq == 4 else (2*(g//16) + g % 2)) not in dq, sm_list(sm, par, par, look, [(L+k, LS+k) for k in lad]), extra, waits)
        else: emit_half(mf, gaps, extra, waits)
        if not nosm:
            rows = []
            for qp in sm:
                qq = qp - 2
                r = dict(S=Sreg(qp, 0, par), P=Preg(qp, par), ls=LS+2+qq)
                if ms == 4:
                    r['qb'] = qp
                    r['subs'] = ([Sreg(qp, 0, n), CXr(qp, 0)] if (mq == 4 and not noqk) else [])
                else:
                    r['qb'] = qq
                    r['subs'] = [CXr(qq, 0), CXr(qp, 0)] + ([] if noqk else [Sreg(qq, 0, n), Sreg(qp, 0, n)])
                    r['Pscale'] = [Preg(qq, par)+k for k in range(4)]
                rows.append(r)
            check_site(rescale(rows) + relook(look))

    def place_dmas(extra, dmas):
        for c, g0 in dmas:
            pre, d, post = dma_group(c)
            if ONES:
                for j in range(4): extra.setdefault(3 + 8*j, ([], []))[0].append(d[j])
                extra.setdefault(30, ([], []))[1].extend(post[:1])
                extra.setdefault(31, ([], []))[1].extend(post[1:] + dma_group(c+1)[0])
                continue
            e = extra.setdefault(g0, ([], [])); e[1].extend(pre)
            for j in range(4):
                e = extra.setdefault(g0+1+4*j if g0+1+4*j < 32 else 31, ([], [])); e[0].append(d[j])
            e = extra.setdefault(min(31, g0+2+12), ([], [])); e[1].extend(post)

    def H2(par, mp, mnext, vu, toggleV=None, dmas=(), nopv=False, nosm=False, czero=False, dq=(), sm=(0, 1), lad=(2, 3), lookq=2):
        n = 1 - par
        mf = []
        if nopv: mf = [(None, None)]*32
        elif mp == 4:
            for db in range(8):
                for qp in range(4):
                    d = Oreg(db, qp)
                    mf.append((f"{MF} {vr(d,4)}, {ar(VF+4*db,4)}, {vr(Preg(qp,par),4)}, {'0' if czero else vr(d,4)}", vread(db, vu[0]) if qp == 3 else None))
        else:
            for j in range(16):
                sel, db = j//8, j % 8
                for qb in range(2):
                    d = Oreg(db, qb)
                    rd = None
                    if qb == 1 and not (nosm and sel == 1): rd = vread(db, vu[sel])
                    mf.append((f"{MF} {vr(d,4)}, {ar(VF+4*db,4)}, {vr(Preg(2*sel+qb,par),4)}, {vr(d,4)}", rd))
        look = (Sreg(lookq, 0, n), Sreg(lookq, 0, n)+1)
        lt = (L+2, L+3) if mp == 4 else (L+0, L+1)
        if nosm:
            gaps = [[] for _ in range(34)]
            if not ONES: gaps[1] = [f"v_add_f32 v{lt[0]}, v{lt[0]}, v{LS+2}", f"v_add_f32 v{lt[1]}, v{lt[1]}, v{LS+3}"]
        elif ONES: gaps = sm_gaps1((0, 1), n, n, look)
        else:
            gaps = sm_gaps((0, 1), n, n, look, [(lt[0], LS+2), (lt[1], LS+3)])
        if ONES: mf = list(mf) + (lmf((2, 3), (2, 3) if mp == 4 else (0, 1), par, czero) if not nopv else [(None, None)]*2)
        extra = {}
        waits = {}
        if not nopv:
            waits[0] = "s_waitcnt lgkmcnt(8)" if not nosm else "s_waitcnt lgkmcnt(0)"
            if mp == 2: waits[16] = "s_waitcnt lgkmcnt(4)"; waits[24] = "s_waitcnt lgkmcnt(4)" if not nosm else "s_waitcnt lgkmcnt(0)"
        if toggleV is not None:
            gi = 0 if toggleV == 0 else 16
            e = extra.setdefault(gi, ([], [])); e[1].append(f"v_xor_b32 v{VV}, 0x8000, v{VV}")
        place_dmas(extra, dmas)
        if dq or len(sm) < 2 or len(lad) < 2:
            la = [(lt[k-2], LS+k) for k in lad]
            ops = [f"v_add_f32 v{a_}, v{a_}, v{b_}" for a_, b_ in la] if nosm else sm_list(sm, n, n, look, la)
            emit_drop(mf, lambda g: ((g % 4) if mp == 4 else (2*(g//16) + g % 2)) not in dq, ops, extra, waits)
        else: emit_half(mf, gaps, extra, waits)
        if not nosm and not nopv:
            rows = []
            for qb in sm:
                r = dict(S=Sreg(qb, 0, n), P=Preg(qb, n), ls=LS+qb, qb=qb, subs=[CXr(qb, 0)])
                if mnext == 2: r['subs'] += [Sreg(qb+2, 0, n), CXr(qb+2, 0)]
                rows.append(r)
            check_site(rescale(rows) + relook(look))

    def hook(cond_reg, val, code):
        ls, lb = U("HOOK"), U("HB")
        A(f"s_cmp_eq_u32 s{cond_reg}, {val}\ns_cbranch_scc1 {ls}")
        A.label(lb)
        stubs.append([ls + ":"] + code + [f"s_branch {lb}"])

    strip = lambda l: [x.split(' ;T=')[0] for x in l]
    A(f"s_cmp_eq_u32 s{sRDY}, 0\ns_cbranch_scc1 K2_KLATE")
    A.label("K2_KOK")
    stubs.append(["K2_KLATE:", f"s_cmp_eq_u32 s{sW}, 0", "s_cbranch_scc1 K2_KSPIN_F", f"s_mov_b32 s{sT1}, 0", "K2_KL:", f"ds_read_b32 v{XP}, v6", "s_waitcnt lgkmcnt(0)", f"v_cmp_ne_u32 vcc, 1, v{XP}",
                  f"s_add_u32 s{sT1}, s{sT1}, 1", f"s_cmp_ge_u32 s{sT1}, 0x100000", "s_cbranch_scc1 K2_KGO", "s_sleep 1", "s_cbranch_vccnz K2_KL", "s_branch K2_KGO"])
    spin("K2_KSPIN", XP, XO, 0, 16)
    stubs.append(["K2_KSPIN_B:", "v_mov_b32 v1, 1", "ds_write_b32 v6, v1", "K2_KGO:"] + strip(kv_init(0) + kv_init(1) + kv_init(2) + kv_init(3)) + ["s_branch K2_KOK"])
    for ds in range(2):
        for qb in range(4):
            for i in range(4): A(f"v_accvgpr_write_b32 a{AQ+(qb*4+ds)*4+i}, v{QT+16*ds+4*qb+i}")
    A(f"v_lshlrev_b32 v{VK}, 4, v{LN}\nv_add_u32 v{VV}, 0x10000, v{VK}\nv_mov_b32 v{VD}, v7\nv_mov_b32 v{NEGV}, s{sNEG}")
    for r in list(range(CX, CX+32)) + list(range(LS, LS+8)): A(f"v_mov_b32 v{r}, 0")
    hook(sI, 0, patch(2, 0))
    if ONES:
        A(f"v_mov_b32 v{TMP}, 0x3f803f80")
        for i in range(4): A(f"v_accvgpr_write_b32 a{AO+i}, v{TMP}")
    A("s_waitcnt vmcnt(0)\ns_barrier")
    for f in range(8): A(kread(f, 0))
    for f in range(8): A(vread(f, 2))
    def q_epi(ds):
        o = []; e = fi_['epi_Q'](QA, ds-2, lambda t: P01[0] + 4*(t % 2), SCQ=fi_['SC2'])
        for t in range(4): o += e[12*t:12*t+12] + [f"v_accvgpr_write_b32 a{AQ+(t*4+ds)*4+i}, v{P01[0]+4*(t%2)+i}" for i in range(4)]
        return o
    ee = q_epi(2) + q_epi(3)
    for x in ee[:24]: A(x)
    eps = {0: ee[24:64], 1: ee[64:104], 2: ee[104:], 3: []}
    A("s_waitcnt lgkmcnt(8)")
    for ds in range(4):
        p_, d_, po_ = dma_group(4 + ds)
        mfs = []
        for kb in range(2):
            f = kb*4 + ds
            for qp in range(4):
                d = Sreg(qp, kb, 0)
                mfs.append([f"{MF} {vr(d,4)}, {ar(KF+4*f,4)}, {ar(AQ+(qp*4+ds)*4,4)}, {vr(CXr(qp,kb),4) if ds == 0 else vr(d,4)}"] + ([kread(f, 1)] if qp == 3 else []))
        mfs[0] = p_ + ["s_nop 0"] + mfs[0]
        for j in range(4): mfs[1+j] = mfs[1+j] + [d_[j]]
        mfs[6] = mfs[6] + po_
        if ds >= 2: A("s_nop 1")
        for k in range(8):
            for x in mfs[k]: A(x)
            for x in eps[ds][5*k:5*k+5]: A(x)
    rows = []
    for qp in range(4): rows.append(dict(S=Sreg(qp, 0, 0), subs=[CXr(qp, 0)], P=None))
    for x in rescale(rows, init=True): A(x)
    A(f"v_exp_f32 v{E}, v{Sreg(0,0,0)}\nv_exp_f32 v{E+1}, v{Sreg(0,0,0)+1}")
    H2(1, 4, 4, None, nopv=True)
    stamp(A, 4)
    A(f"s_mov_b32 s{sCNT}, s{sI}")
    if ONES: A(dma_group(8)[0][0])
    A("s_waitcnt lgkmcnt(0)")

    def finalize(qbs, OB, VLANE):
        if ONES:
            A("s_nop 7")
            for qb in qbs: A(f"v_accvgpr_read_b32 v{L+qb}, a{AL+4*qb}")
            for qb in qbs: A(f"v_rcp_f32 v{L+qb}, v{L+qb}")
        for qb in (qbs if not ONES else ()):
            D, D2 = L+qb, TMP+1
            A(f"v_mov_b32 v{D2}, v{D}\ns_nop 1\nv_permlane16_swap_b32 v{D}, v{D2}\nv_add_f32 v{D}, v{D}, v{D2}")
            A(f"v_mov_b32 v{D2}, v{D}\ns_nop 1\nv_permlane32_swap_b32 v{D}, v{D2}\nv_add_f32 v{D}, v{D}, v{D2}")
            A(f"v_rcp_f32 v{D}, v{D}")
        oq = 0
        for qb in qbs:
            for ds in range(4):
                ob = OB(qb, ds) if callable(OB) else OB + 4*oq
                for h in range(2):
                    b = Oreg(2*ds+h, qb)
                    for i in range(4): A(f"v_mul_f32 v{b+i}, v{b+i}, v{L+qb}")
                for h in range(2):
                    b = Oreg(2*ds+h, qb)
                    A(f"v_cvt_pk_bf16_f32 v{ob+2*h}, v{b}, v{b+1}\nv_cvt_pk_bf16_f32 v{ob+2*h+1}, v{b+2}, v{b+3}")
                A(f"s_add_u32 s{sT0}, s{sOHI if qb < 2 else sOLO}, {ds*4096}")
                if ZZ and qb % 2: A(f"s_add_u32 s{sT0}, s{sT0}, s85")
                A(f"buffer_store_dwordx4 {vr(ob,4)}, v{VLANE}, s[{S_WS}:{S_WS+3}], s{sT0} offen offset:{0 if ZZ else (qb%2)*1024}{store_flags}")
                oq = (oq+1) % 4

    def period44(r, pre=None, czero=False, k1={}, k2={}):
        par = r % 2
        if pre: pre()
        ku = (r+2) % 4; vu = (r+1+2) % 4
        H1(par, 4, 4, [ku], toggleK=0 if ku == 0 else None, vm=16, dmas=[(r, 8)], czero=czero, **k1)
        H2(par, 4, 4, [vu], toggleV=0 if vu == 0 else None, czero=czero, **k2)

    period44(0, pre=lambda: hook(sI, 0, patch(2, 1)), czero=True)
    A(f"s_cmp_eq_u32 s{sCNT}, 0\ns_cbranch_scc1 K2_SPECIAL_R1\ns_branch K2_LOOPA_R1")
    A(".p2align 6")
    A.label("K2_LOOPA")
    for r in range(4):
        if r == 1: A.label("K2_LOOPA_R1")
        period44(r, pre=(lambda: hook(sCNT, 1, patch(2, 0))) if r == 3 else None)
    A(f"s_sub_u32 s{sCNT}, s{sCNT}, 1\ns_cmp_lg_u32 s{sCNT}, 0\ns_cbranch_scc1 K2_LOOPA")
    A.label("K2_SPECIAL")
    for r in range(3):
        if r == 1: A.label("K2_SPECIAL_R1")
        zk = {1: (dict(dq=(2,)), dict(lookq=3)), 2: (dict(dq=(2,), sm=(3,)), dict(dq=(2,), lad=(3,), lookq=3))}.get(r, ({}, {})) if ZZ else ({}, {})
        period44(r, pre=lambda: [A(x) for x in patch(2, r+1)], k1=zk[0], k2=zk[1])
    A(f"s_cmp_lt_u32 s{sW}, 2\ns_cselect_b32 s{S_T}, s{P_WO}, s{P_WD}\ns_cselect_b32 s{S_T+1}, s{P_WO+1}, s{P_WD+1}\ns_mov_b32 s{sT0}, {1376*1024}\ns_cselect_b32 s{S_T+2}, {4096*1024}, s{sT0}")
    A(f"s_mul_i32 s{sT0}, s2, {43*128}\ns_lshl_b32 s{sT1}, s2, 14\ns_cselect_b32 s{sT0}, s{sT1}, s{sT0}".replace("s_lshl_b32 s{sT1}, s2, 14".format(sT1=sT1), f"s_mul_i32 s{sT1}, s2, 16384"))
    A(f"s_and_b32 s{sT1}, s{sW}, 1\ns_lshl_b32 s{sT1}, s{sT1}, 13\ns_add_u32 s{sT0}, s{sT0}, s{sT1}\nv_and_b32 v{TMP+7}, 0x3ff, v{VK}\nv_lshlrev_b32 v{TMP+7}, 3, v{TMP+7}")
    A(f"buffer_load_dword v{TMP+7}, v{TMP+7}, s[{S_T}:{S_T+3}], s{sT0} offen")
    if CT:
        A(f"v_and_b32 v{TMP+6}, 0x3ff, v{VK}")
        code_touch(A, "K3_START" if FULL else "k3_kernel", "K2_END" if FULL else "K4_END", sW, TMP+6, TMP+6, 88, lane_shift=4)
    if CTX_TOUCH:
        A(f"v_lshrrev_b32 v{TMP+6}, 8, v{VK}\nv_and_b32 v{TMP+6}, 3, v{TMP+6}\nv_lshlrev_b32 v{TMP+6}, 12, v{TMP+6}\nv_and_b32 v{TMP+5}, 0xf0, v{VK}\nv_lshl_add_u32 v{TMP+6}, v{TMP+5}, 3, v{TMP+6}")
        A(f"buffer_load_dword v{TMP+5}, v{TMP+6}, s[{S_WS}:{S_WS+3}], s{sOHI} offen\nbuffer_load_dword v{TMP+6}, v{TMP+6}, s[{S_WS}:{S_WS+3}], s{sOLO} offen")
    for i in range(16): A(f"v_mov_b32 v{CXr(2,0)+i}, v{CXr(0,0)+i}")
    hook(sI, 7, patch(0, 0) + patch(2, 1))
    A("s_nop 1")
    H1(1, 2, 4, [1, 2], vm=16, dmas=[(3, 8)], **(dict(sm=(3,)) if ZZ else {}))
    H2(1, 4, 2, [2], **(dict(dq=(2,), lad=(3,)) if ZZ else {}))
    if ELO:
        A(f"v_and_b32 v{TMP+2}, 0x3ff, v{VK}")
        finalize((2, 3), lambda qb, ds: Oreg(2*ds, qb), TMP+2)
        A(f"s_cmp_eq_u32 s{sW}, 0\ns_cselect_b32 s87, 2, 0x40000000")
    if not QD: stamp(A, 5)
    A(f"s_lshl_b32 s{sT0}, s{sI}, 1\ns_sub_u32 s{sCNT}, 14, s{sT0}")
    def period22(r, last_qk=False):
        par = r
        ku = [3, 0] if r == 0 else [1, 2]
        vu = [3, 0] if r == 0 else [1, 2]
        c0 = 2*r
        H1(par, 2, 2, ku, toggleK=1 if r == 0 else None, vm=12, dmas=[(c0, 8)], last=last_qk)
        H2(par, 2, 2, vu, toggleV=1 if r == 0 else None, dmas=[(c0+1, 8)])
    A(f"s_cmp_eq_u32 s{sCNT}, 0\ns_cbranch_scc1 K2_TAIL")
    A(".p2align 6")
    A.label("K2_LOOPB")
    period22(0)
    hook(sCNT, 1, patch(0, 0) + patch(2, 1))
    period22(1)
    A(f"s_sub_u32 s87, s87, 1")
    hook(87, 0, [f"s_mov_b32 s39, {CNT_BASE}", f"s_lshl_b32 s{sT0}, s{sI}, 7", f"v_mov_b32 v{TMP+5}, s{sT0}", f"v_mov_b32 v{TMP+6}, 1", "s_mov_b64 exec, 1", f"buffer_atomic_add v{TMP+6}, v{TMP+5}, s[{S_WS}:{S_WS+3}], s39 offen sc1", "s_mov_b64 exec, -1"])
    A(f"s_sub_u32 s{sCNT}, s{sCNT}, 1\ns_cmp_lg_u32 s{sCNT}, 0\ns_cbranch_scc1 K2_LOOPB")
    A.label("K2_TAIL")
    for x in patch(0, 2) + patch(2, 3): A(x)
    H1(0, 2, 2, [3, 0], toggleK=None, vm=12, last=True, **(dict(dq=(0, 2), lookq=1) if ZZ else {}))
    H2(0, 2, 2, [3, 0], toggleV=1, **(dict(sm=(1,), lookq=3) if ZZ else {}))
    H1(1, 2, 2, None, noqk=True, vm=0, **(dict(sm=(3,), lad=(1,)) if ZZ else {}))
    A("s_sub_u32 s87, s87, 1\ns_cmp_ge_u32 s87, 2\ns_cbranch_scc1 K2_NOLO")
    for x in [f"s_mov_b32 s39, {CNT_BASE}", f"s_lshl_b32 s{sT0}, s{sI}, 7", f"v_mov_b32 v{TMP+5}, s{sT0}", f"v_mov_b32 v{TMP+6}, 1", "s_mov_b64 exec, 1", f"buffer_atomic_add v{TMP+6}, v{TMP+5}, s[{S_WS}:{S_WS+3}], s39 offen sc1", "s_mov_b64 exec, -1"]: A(x)
    A.label("K2_NOLO")
    H2(1, 2, 2, [1, 2], nosm=True, **(dict(dq=(0, 2), lad=(3,)) if ZZ else {}))
    if not QD: stamp(A, 6)
    A(f"v_and_b32 v{VK}, 0x3ff, v{VK}")
    finalize((0, 1), S01, VK)
    A.label("K3_START")
    st = (lambda r: A(f"s_memrealtime s[{r}:{r+1}]")) if (asmlib.STAMP and not QD) else (lambda r: None)
    RING, AD, NJ = 16, int(os.environ.get('AD3', '8')), 22
    areg = (lambda b, n: vr(b, n)) if AD == 8 else (lambda b, n: ar(b - 160 + 16, n))
    LW, LA = 11, AD - 1
    ACC3, WF3, AR3, TRA, VD3, T3, VX = [0, 64], 128, 160, 224, 240, 245, 253
    LN3 = T3
    S_W, S_X, S_O = 8, 40, 44
    sSP, sTM, sTN, sWO, sAO, sM3, sOB3, sT2, sPAD, sRD2, sTL = 35, 21, 22, 23, 24, 25, 26, 27, 32, 33, 34
    A(f"s_load_dwordx2 s[28:29], s[0:1], 0\ns_load_dwordx2 s[30:31], s[0:1], 80")
    A(f"s_and_b32 s{sSP}, s2, 7\ns_lshr_b32 s{sT1}, s2, 3\ns_and_b32 s{sTM}, s{sT1}, 7\ns_lshr_b32 s{sTN}, s2, 6")
    A(f"s_mul_i32 s{sT0}, s{sSP}, 21\ns_min_u32 s{sT1}, s{sSP}, 2\ns_add_u32 s{sT0}, s{sT0}, s{sT1}")
    A(f"s_cmp_eq_u32 s{sSP}, 7\ns_cselect_b32 s{sT0}, 150, s{sT0}")
    A(f"s_cmp_lt_u32 s{sSP}, 2\ns_cselect_b32 s{sPAD}, 0, 4096\ns_cmp_eq_u32 s{sSP}, 6\ns_cselect_b32 s{sPAD}, 0, s{sPAD}")
    A(f"s_sub_u32 s{sT1}, s{sT0}, 128\ns_cmp_ge_u32 s{sSP}, 6\ns_cselect_b32 s{sT1}, s{sT1}, s{sT0}\ns_cselect_b32 s{S_W}, s{P_WD}, s{P_WO}\ns_cselect_b32 s{S_W+1}, s{P_WD+1}, s{P_WO+1}\ns_mov_b32 s{sRD2}, 0\ns_mov_b32 s{S_W+3}, 0x00020000")
    A(f"s_add_u32 s{sT2}, s{sT1}, 22\ns_lshl_b32 s{sT2}, s{sT2}, 15\ns_lshl_b32 s{S_W+2}, s{sPAD}, 3\ns_sub_u32 s{S_W+2}, s{sT2}, s{S_W+2}")
    A(f"s_lshl_b32 s{sT2}, s{sTM}, 1\ns_lshr_b32 s{sAO}, s{sW}, 1\ns_add_u32 s{sT2}, s{sT2}, s{sAO}\ns_mul_i32 s{sAO}, s{sT2}, {A3_TB64}\ns_lshl_b32 s{sT0}, s{sT0}, 12\ns_add_u32 s{sAO}, s{sAO}, s{sT0}")
    A(f"s_and_b32 s{sT2}, s{sW}, 1\ns_lshl_b32 s{sT2}, s{sT2}, 11\ns_add_u32 s{sAO}, s{sAO}, s{sT2}\ns_add_u32 s{sAO}, s{sAO}, {A3_BASE}")
    A(f"s_lshl_b32 s{sWO}, s{sT1}, 15\ns_lshl_b32 s{sT2}, s{sW}, 13\ns_add_u32 s{sWO}, s{sWO}, s{sT2}\ns_lshl_b32 s{sT2}, s{sTN}, 8\ns_add_u32 s{sWO}, s{sWO}, s{sT2}\ns_lshl_b32 s{sM3}, s{sW}, 11")
    A(f"v_lshrrev_b32 v{LN3}, 4, v{VK}")
    A(f"v_lshrrev_b32 v{T3+2}, 4, v{LN3}\nv_and_b32 v{T3+3}, 15, v{LN3}\nv_lshlrev_b32 v{T3+4}, 1, v{T3+2}\nv_xor_b32 v{T3+3}, v{T3+3}, v{T3+4}\nv_lshlrev_b32 v{T3+2}, 10, v{T3+2}\nv_lshl_add_u32 v{VD3}, v{T3+3}, 4, v{T3+2}")
    A(f"v_xor_b32 v{T3+2}, 128, v{VD3}\nv_add_u32 v{VD3+1}, 3072, v{T3+2}")
    A(f"s_mov_b32 s39, {CNT_BASE}\ns_lshl_b32 s{sT0}, s{sTM}, 7\nv_mov_b32 v{T3+5}, s{sT0}\nbuffer_load_dword v{T3+1}, v{T3+5}, s[{S_WS}:{S_WS+3}], s39 offen sc1\ns_barrier")
    seq3 = [('P', 0)]
    def wl(s_):
        seq3.extend([('W', s_)]*2)
        return [[f"s_add_u32 m0, s{sM3}, {(s_ % RING)*8192}", f"s_add_u32 s{sT1}, s{sWO}, {(s_ % NJ)*32768}"],
                [f"buffer_load_dwordx4 v{VD3}, s[{S_W}:{S_W+3}], s{sT1} offen lds"], [f"buffer_load_dwordx4 v{VD3+1}, s[{S_W}:{S_W+3}], s{sT1} offen offset:1024 lds"]]
    def al(s_, track=True):
        if track: seq3.extend([('A', s_)]*2)
        off = (s_ % NJ)*4096 + (s_ // NJ)*16*A3_TB64
        pre = [f"s_add_u32 s{sT0}, s{sAO}, {off}"] + ([f"s_sub_u32 s{sT0}, s{sT0}, s{sPAD}"] if s_ % NJ == NJ-1 else [])
        return [pre] + [[f"buffer_load_dwordx4 {areg(AR3+(s_%AD)*8+4*t,4)}, v{VK}, s[{S_WS}:{S_WS+3}], s{sT0} offen offset:{t*1024}{AS}"] for t in range(2)]
    def vm3(tag): return min(63, len(seq3) - 1 - max(i for i, e in enumerate(seq3) if e == tag))
    def emit3(its):
        for it in its:
            for x in it: A(x)
    flat = lambda its: [x for it in its for x in it]
    for s_ in range(4): emit3(wl(s_))
    A(f"v_lshrrev_b32 v{T3+2}, 2, v{LN3}\nv_and_b32 v{T3+3}, 7, v{T3+2}\nv_lshlrev_b32 v{T3+2}, 8, v{T3+2}\nv_and_b32 v{T3+4}, 3, v{LN3}\nv_lshl_add_u32 v{T3+2}, v{T3+4}, 3, v{T3+2}")
    for nb in range(8): A(f"v_xor_b32 v{T3+4}, {nb}, v{T3+3}\nv_lshl_add_u32 v{TRA+nb}, v{T3+4}, 5, v{T3+2}\nv_add_u32 v{TRA+8+nb}, 0x10000, v{TRA+nb}")
    A(f"s_waitcnt vmcnt({vm3(('P', 0))})\nv_cmp_ne_u32 vcc, 32, v{T3+1}\ns_cbranch_vccnz K3_LSPIN")
    A.label("K3_LSPIN_B")
    spin("K3_LSPIN", T3+1, T3+5, 0, 32, srd=f"s[{S_WS}:{S_WS+3}]", so="s39", slp=SLP2)
    for s_ in range(LA): emit3(al(s_))
    A(f"s_lshl_b32 s{sT0}, s{sI}, 7\ns_sub_u32 s{sT0}, {15*128}, s{sT0}\nv_mov_b32 v{T3+2}, s{sT0}\nv_mov_b32 v{T3+4}, 1\nv_add_u32 v{T3+5}, 1024, v{T3+5}")
    A(f"s_waitcnt vmcnt({vm3(('W', 0))}) lgkmcnt(0)\ns_barrier")
    A(f"s_cmp_lg_u32 s{sW}, 0\ns_cbranch_scc1 K3_NOSIG\ns_mov_b64 exec, 1\nbuffer_atomic_add v{T3+4}, v{T3+2}, s[{S_WS}:{S_WS+3}], s39 offen sc1\ns_mov_b64 exec, -1")
    A.label("K3_NOSIG")
    st(96)
    def tr3(nb, s_):
        off = (s_ % RING)*8192; hi = off // 65536; off %= 65536
        return [f"ds_read_b64_tr_b16 {vr(WF3+4*nb,2)}, v{TRA+8*hi+nb} offset:{off}", f"ds_read_b64_tr_b16 {vr(WF3+4*nb+2,2)}, v{TRA+8*hi+nb} offset:{off+4096}"]
    for nb in range(8):
        for x in tr3(nb, 0): A(x)
    for s_ in range(4, LW): emit3(wl(s_))
    A(f"s_mov_b32 s{S_X}, s28\ns_mov_b32 s{S_X+1}, s29\ns_mov_b32 s{S_X+2}, 0x200000\ns_mov_b32 s{S_X+3}, 0x00020000\ns_mov_b32 s{S_O}, s30\ns_mov_b32 s{S_O+1}, s31\ns_mov_b32 s{S_O+2}, 0x200000\ns_mov_b32 s{S_O+3}, 0x00020000")
    A(f"s_lshl_b32 s{sT0}, s{sTM}, 17\ns_lshl_b32 s{sT1}, s{sSP}, 14\ns_add_u32 s{sT0}, s{sT0}, s{sT1}\ns_lshl_b32 s{sT1}, s{sTN}, 8\ns_add_u32 s{sT0}, s{sT0}, s{sT1}\ns_lshl_b32 s{sT1}, s{sW}, 6\ns_add_u32 s{sT0}, s{sT0}, s{sT1}")
    A(f"v_and_b32 v{T3+2}, 15, v{LN3}\nv_lshrrev_b32 v{T3+3}, 4, v{LN3}\nv_lshlrev_b32 v{T3+2}, 10, v{T3+2}\nv_lshl_add_u32 v{T3+2}, v{T3+3}, 3, v{T3+2}\nv_add_u32 v{VX}, s{sT0}, v{T3+2}\ns_mov_b32 s{sT2}, 0x100000")
    for jb in range(2):
        for h in range(2):
            A(f"buffer_load_dwordx2 {ar(4*jb+2*h,2)}, v{VX}, s[{S_X}:{S_X+3}], {'s%d' % sT2 if jb else '0'} offen offset:{h*32}"); seq3.append(('X', 0))
    A(f"s_lshl_b32 s{sTL}, s{sTM}, 2\ns_add_u32 s{sTL}, s{sTL}, s{sTN}\ns_lshl_b32 s{sT0}, s{sTL}, 7\ns_add_u32 s{sT0}, s{sT0}, 2048\nv_mov_b32 v{T3+6}, s{sT0}\nv_add_u32 v{T3+7}, 4096, v{T3+6}")
    A(f"s_lshl_b32 s{sTL}, s{sTL}, 18\ns_add_u32 s{sTL}, s{sTL}, {P2_BASE}\ns_lshl_b32 s{sT0}, s{sSP}, 15\ns_lshl_b32 s{sT1}, s{sW}, 13\ns_add_u32 s{sOB3}, s{sTL}, s{sT0}\ns_add_u32 s{sOB3}, s{sOB3}, s{sT1}")
    def epi3(jb):
        o = []
        for np_ in range(4):
            for t in range(2):
                b0 = ACC3[jb] + ((2*np_)*2 + t)*4; b1 = ACC3[jb] + ((2*np_+1)*2 + t)*4
                o += [f"v_cvt_pk_bf16_f32 v{b0}, v{b0}, v{b0+1}", f"v_cvt_pk_bf16_f32 v{b0+1}, v{b0+2}, v{b0+3}", f"v_cvt_pk_bf16_f32 v{b0+2}, v{b1}, v{b1+1}", f"v_cvt_pk_bf16_f32 v{b0+3}, v{b1+2}, v{b1+3}"]
                if t == 0 and np_ % 2 == 0: o.append(f"s_add_u32 s36, s{sOB3}, {jb*(8 << 20) + np_*2048}")
                o.append(f"buffer_store_dwordx4 {vr(b0,4)}, v{VK}, s[{S_WS}:{S_WS+3}], s36 offen offset:{(np_%2)*2048 + t*1024} sc1")
        return o
    eA = epi3(0)
    NS = 2*NJ; EB = NJ - 4
    lateB = [n for n in range(NJ, NJ + 4)]; nxtB = NJ + 4
    for s_ in range(NS):
        jb = s_ // NJ
        extra = {}
        if s_ == NJ:
            A(f"s_cmp_eq_u32 s{sRD2}, 0\ns_cbranch_scc1 K3_HSPIN_F")
            A.label("K3_HOK")
            spin("K3_HSPIN", T3+1, T3+5, 0, 32, srd=f"s[{S_WS}:{S_WS+3}]", so="s39", slp=SLP2)
            stubs.append(["K3_HSPIN_B:"] + [x for n in lateB for x in flat(al(n, False))] + ["s_branch K3_HOK"])
            for n in lateB: seq3.extend([('A', n)]*2)
            st(98)
        A(f"s_waitcnt vmcnt({vm3(('A', s_))}) lgkmcnt(8)")
        if s_ % 2 == 0:
            extra[0] = [f"s_waitcnt vmcnt({min(vm3(('W', min(s_+2, NS-1))), vm3(('SA', 0)) if ('SA', 0) in seq3 and s_ == NJ+8 else 63)})", "s_barrier"]
            if s_ == NJ + 8:
                extra[0] += [f"s_cmp_lg_u32 s{sW}, 0", "s_cbranch_scc1 K3_NOSA", "s_mov_b64 exec, 1", f"buffer_atomic_add v{T3+4}, v{T3+6}, s[{S_WS}:{S_WS+3}], s39 offen sc1", "s_mov_b64 exec, -1", "K3_NOSA:"]
        extra[6] = ["s_waitcnt lgkmcnt(6)"]
        its = []
        if s_ + LW < NS: its += wl(s_ + LW)
        ta = s_ + LA
        if ta < NJ: its += al(ta)
        elif s_ >= NJ:
            for _ in range(2):
                if nxtB <= min(ta, NS-1): its += al(nxtB); nxtB += 1
        if s_ == EB - 3: its.append([f"buffer_load_dword v{T3+1}, v{T3+5}, s[{S_WS}:{S_WS+3}], s39 offen sc1"]); seq3.append(('P', 1))
        if s_ == EB - 1:
            its.append([f"s_waitcnt vmcnt({vm3(('P', 1))})", f"v_cmp_ne_u32 vcc, 32, v{T3+1}"])
            its.append(["s_cmp_eq_u64 vcc, 0", f"s_cselect_b32 s{sRD2}, 1, s{sRD2}"])
        if EB <= s_ < NJ:
            lab = U("NB")
            its.append([f"s_cmp_eq_u32 s{sRD2}, 0", f"s_cbranch_scc1 {lab}"] + flat(al(NJ + s_ - EB, False)) + [lab + ":"])
        g_ = 2
        for it in its:
            extra.setdefault(g_, []).extend(it); g_ = min(14, g_ + 2) if g_ != 4 else 8
        if NJ + 1 <= s_ and eA:
            for g2 in (2, 4, 8, 10, 12, 14):
                for _ in range(2):
                    if eA:
                        x = eA.pop(0); extra.setdefault(g2, []).append(x)
                        if x.startswith('buffer'): seq3.append(('SA', 0))
        for nb in range(8):
            for t in range(2):
                g = nb*2 + t; d_ = ACC3[jb] + g*4
                A(f"{MF} {vr(d_,4)}, {vr(WF3+4*nb,4)}, {areg(AR3+(s_%AD)*8+4*t,4)}, {'0' if s_ % NJ == 0 else vr(d_,4)}")
                if t == 1 and s_ + 1 < NS:
                    for x in tr3(nb, s_+1): A(x)
                for x in extra.get(g, []): A(x)
    assert not eA
    A(f"buffer_load_dword v{T3+1}, v{T3+6}, s[{S_WS}:{S_WS+3}], s39 offen sc1\ns_nop 4")
    for x in epi3(1): A(x)
    PK, R = 128, 0
    def unpack(dst, src, n=4, s='v'):
        for i in range(n): A(f"v_lshlrev_b32 v{dst+2*i}, 16, v{src+i}\nv_and_b32 v{dst+2*i+1}, 0xffff0000, v{src+i}")
    def comb_loads(jb):
        A(f"s_lshr_b32 s{sT0}, s{sSP}, 1\ns_lshl_b32 s{sT0}, s{sT0}, 13\ns_and_b32 s{sT1}, s{sSP}, 1\ns_lshl_b32 s{sT1}, s{sT1}, 10\ns_add_u32 s{sT0}, s{sT0}, s{sT1}\ns_lshl_b32 s{sT1}, s{sW}, 11\ns_add_u32 s{sT0}, s{sT0}, s{sT1}\ns_add_u32 s{sT0}, s{sT0}, s{sTL}")
        for sp in (6, 7, 0, 1, 2, 3, 4, 5):
            A(f"s_add_u32 s{sT1}, s{sT0}, {jb*(8 << 20) + sp*32768}\nbuffer_load_dwordx4 {vr(PK+4*sp,4)}, v{VK}, s[{S_WS}:{S_WS+3}], s{sT1} offen sc1")
    def comb(jb):
        D, G_, XU, SS = 160, 176, 184, 192
        for i in range(4): A(f"v_accvgpr_read_b32 v{SS+i}, a{4*jb+i}")
        unpack(XU, SS)
        A("s_waitcnt vmcnt(6)")
        unpack(D, PK+24); unpack(D+8, PK+28)
        for i in range(8): A(f"v_add_f32 v{D+i}, v{D+i}, v{D+8+i}")
        for i in range(8): A(f"v_mul_f32 v{G_+i}, {hex(f32bits(-math.log2(math.e)))}, v{D+i}")
        for i in range(8): A(f"v_exp_f32 v{G_+i}, v{G_+i}")
        for i in range(8): A(f"v_add_f32 v{G_+i}, 1.0, v{G_+i}")
        for i in range(8): A(f"v_rcp_f32 v{G_+i}, v{G_+i}")
        for i in range(8): A(f"v_mul_f32 v{G_+i}, v{G_+i}, v{D+i}")
        A("s_waitcnt vmcnt(0)")
        unpack(SS, PK)
        for sp in range(1, 6):
            unpack(D, PK+4*sp)
            for i in range(8): A(f"v_add_f32 v{SS+i}, v{SS+i}, v{D+i}")
        for i in range(8): A(f"v_fmac_f32 v{XU+i}, v{SS+i}, v{G_+i}")
        for i in range(4): A(f"v_cvt_pk_bf16_f32 v{D+i}, v{XU+2*i}, v{XU+2*i+1}")
        for h in range(2): A(f"buffer_store_dwordx2 {vr(D+2*h,2)}, v{VX}, s[{S_O}:{S_O+3}], {'s%d' % sT2 if jb else '0'} offen offset:{h*32}")
    A(f"s_waitcnt vmcnt(8)\nv_cmp_ne_u32 vcc, 8, v{T3+1}\ns_cbranch_vccnz K4_LSPIN")
    A.label("K4_LSPIN_B")
    spin("K4_LSPIN", T3+1, T3+6, 0, 8, srd=f"s[{S_WS}:{S_WS+3}]", so="s39", slp=SLP2)
    comb_loads(0)
    A("s_waitcnt vmcnt(8)\ns_barrier")
    A(f"s_cmp_lg_u32 s{sW}, 0\ns_cbranch_scc1 K4_NOSIG\ns_mov_b64 exec, 1\nbuffer_atomic_add v{T3+4}, v{T3+7}, s[{S_WS}:{S_WS+3}], s39 offen sc1\ns_mov_b64 exec, -1")
    A.label("K4_NOSIG")
    comb(0)
    A(f"s_cmp_lg_u32 s{sW}, 0\ns_cbranch_scc0 K4_TSPIN_F")
    A.label("K4_TSPIN_B")
    spin("K4_TSPIN", T3+1, T3+7, 0, 8, srd=f"s[{S_WS}:{S_WS+3}]", so="s39", slp=SLP2)
    A("s_barrier")
    st(100)
    comb_loads(1)
    comb(1)
    if asmlib.STAMP and QD:
        A(f"s_mov_b32 s{P_WS}, s{S_WS}\ns_mov_b32 s{P_WS+1}, s{S_WS+1}\ns_waitcnt lgkmcnt(0)")
    elif asmlib.STAMP:
        A(f"s_mov_b32 s{P_WS}, s{S_WS}\ns_mov_b32 s{P_WS+1}, s{S_WS+1}\ns_waitcnt lgkmcnt(0)\ns_mov_b64 s[68:69], s[72:73]\ns_mov_b64 s[70:71], s[76:77]\ns_mov_b64 s[72:73], s[96:97]\ns_mov_b64 s[74:75], s[98:99]\ns_mov_b64 s[76:77], s[100:101]")
    if asmlib.STAMP:
        A("s_waitcnt vmcnt(0)")
        stamp_flush(A, 0, 8, P_WS, sW)
    A.label("K2_END")
    A("s_endpgm")
    for st in stubs:
        for x in st: A(x)
    return dict(name="k12_kernel", vgpr=512, accum=256, sgpr=102, grid=256, block=256, lds=163840)
```
